```python
import torch

def _softmax(x, axis=-1):
    return torch.softmax(x, dim=axis)
def _gelu(x):
    return torch.nn.functional.gelu(x, approximate="tanh")
def _silu(x):
    return torch.nn.functional.silu(x)
def _sigmoid(x):
    return torch.sigmoid(x)
def _layernorm(x, axis=-1, eps=1e-5):
    m = x.mean(dim=axis, keepdim=True)
    v = x.var(dim=axis, keepdim=True, unbiased=False)
    return (x - m) / torch.sqrt(v + eps)
def _scatter_add(tgt, idx, src, axis=0):
    return tgt.clone().index_add_(axis, idx, src)
def _segment_sum(src, seg, n):
    out = torch.zeros((n,) + src.shape[1:], dtype=src.dtype)
    return out.index_add_(0, seg, src)
def _pad(x, pw):
    flat = tuple(v for pair in reversed(pw) for v in pair)
    return torch.nn.functional.pad(x, flat)

kernel_name = 'recurrent_scan__sliding_block_cached__mixer_channel_mlp__decode'

def setup_inputs():

    _w = (lambda a: (lambda t: t.to(torch.bfloat16) if t.is_floating_point() else t)(torch.as_tensor(a)))
    def _A_setup():
        B, Sq, D = 4, 1, 512
        Hq, Hkv, Sk, Dh = 32, 8, 4096, 128
        assert Hq % Hkv == 0, (Hq, Hkv)
        return {
            "x": _w((lambda *s: torch.randn(*s, dtype=torch.bfloat16) * 0.1)(B, Sq, D)),
            "k_cache": _w((lambda *s: torch.randn(*s, dtype=torch.bfloat16) * 0.8)(B, Hkv, Sk, Dh)),
            "v_cache": _w((lambda *s: torch.randn(*s, dtype=torch.bfloat16) * 3.2)(B, Hkv, Sk, Dh)),
            "wq": _w((lambda *s: torch.randn(*s, dtype=torch.bfloat16) * 0.8)(D, Hq * Dh) * (D ** -0.5)),
            "wo": _w((lambda *s: torch.randn(*s, dtype=torch.bfloat16) * 3.2)(Hq * Dh, D) * ((Hq * Dh) ** -0.5)),
        }
    _A_in = _A_setup()

    def _B_setup():
        B, S, D, F = 4, 1, 512, 1792
        return {
            "x": _w((lambda *s: torch.randn(*s, dtype=torch.bfloat16) * 0.1)(B, S, D)),
            "w1": _w((lambda *s: torch.randn(*s, dtype=torch.bfloat16) * 3.2)(D, F) * (D ** -0.5)),
            "b1": _w((lambda *s: torch.randn(*s, dtype=torch.bfloat16) * 3.2)(F)),
            "w2": _w((lambda *s: torch.randn(*s, dtype=torch.bfloat16) * 3.2)(F, D) * (F ** -0.5)),
            "b2": _w((lambda *s: torch.randn(*s, dtype=torch.bfloat16) * 3.2)(D)),
        }
    _B_in = _B_setup()

    return {
        "A_x": _A_in["x"],
        "A_k_cache": _A_in["k_cache"],
        "A_v_cache": _A_in["v_cache"],
        "A_wq": _A_in["wq"],
        "A_wo": _A_in["wo"],
        "B_x": _B_in["x"],
        "B_w1": _B_in["w1"],
        "B_b1": _B_in["b1"],
        "B_w2": _B_in["w2"],
        "B_b2": _B_in["b2"],
    }

def reference(A_x, A_k_cache, A_v_cache, A_wq, A_wo, B_x, B_w1, B_b1, B_w2, B_b2):
    def _A_ref(x, k_cache, v_cache, wq, wo):
        B, Sq, D = x.shape
        Hq, Dh = 32, 128
        Hkv, Sk = k_cache.shape[1], k_cache.shape[2]
        W = min(4096, max(256, Sk // 4))
        rep = Hq // Hkv
        q = (lambda x, *d: x.permute(*d))((x @ wq).reshape(B, Sq, Hq, Dh), 0, 2, 1, 3)
        k = (lambda x, n, axis: torch.repeat_interleave(x, n, dim=axis))(k_cache[:, :, Sk - W:, :], rep, axis=1)
        v = (lambda x, n, axis: torch.repeat_interleave(x, n, dim=axis))(v_cache[:, :, Sk - W:, :], rep, axis=1)
        scores = torch.einsum("bhqd,bhkd->bhqk", q, k) * (Dh ** -0.5)
        p = _softmax(scores, axis=-1)
        o = torch.einsum("bhqk,bhkd->bhqd", p, v)
        return (lambda x, *d: x.permute(*d))(o, 0, 2, 1, 3).reshape(B, Sq, Hq * Dh) @ wo

    def _B_ref(x, w1, b1, w2, b2):
        y = _layernorm(x, axis=-1)
        h = _gelu(torch.einsum("bsd,df->bsf", y, w1) + b1)
        return torch.einsum("bsf,fd->bsd", h, w2) + b2

    x = A_x
    xn = _layernorm(x, axis=-1)
    s = _A_ref(xn, A_k_cache, A_v_cache, A_wq, A_wo)
    g = _silu(_B_ref(xn, B_w1, B_b1, B_w2, B_b2))
    return x + s * g
```

```python
NAME = 'recurrent_scan__sliding_block_cached__mixer_channel_mlp__decode'

HEADER = """; Kernarg layout for this problem (104 bytes, ptrs only, base s[0:1]):
"""

def wrap(body, grid, block, lds, vgpr, sgpr=102, accum=None):
    if accum is None:
        accum = (vgpr + 3) // 4 * 4
    s = HEADER
    s += f"; @launch grid=({grid},1,1) block=({block},1,1) lds={lds}\n"
    s += '.amdgcn_target "amdgcn-amd-amdhsa--gfx950"\n.text\n'
    s += f".globl {NAME}_kernel\n.p2align 8\n.type {NAME}_kernel,@function\n{NAME}_kernel:\n"
    s += body
    s += f"""
.section .rodata,"a"
.p2align 6
.amdhsa_kernel {NAME}_kernel
  .amdhsa_next_free_vgpr {vgpr}
  .amdhsa_next_free_sgpr {sgpr}
  .amdhsa_accum_offset {accum}
  .amdhsa_group_segment_fixed_size 0
  .amdhsa_kernarg_size 104
  .amdhsa_user_sgpr_count 2
  .amdhsa_user_sgpr_kernarg_segment_ptr 1
  .amdhsa_system_sgpr_workgroup_id_x 1
  .amdhsa_float_denorm_mode_32 3
  .amdhsa_float_denorm_mode_16_64 3
.end_amdhsa_kernel
"""
    return s
```

```python
import re

TRANS = ('v_exp_f32', 'v_log_f32', 'v_rcp_f32', 'v_rsq_f32', 'v_sqrt_f32', 'v_sin_f32', 'v_cos_f32', 'v_rcp_iflag_f32')

def regs_of(op):
    op = op.strip()
    op = re.sub(r'^-', '', op)
    m = re.match(r'^(?:abs\()?\|?([vsa])\[(\d+):(\d+)\]', op)
    if m:
        return {f'{m.group(1)}{i}' for i in range(int(m.group(2)), int(m.group(3)) + 1)}
    m = re.match(r'^(?:abs\()?\|?([vsa])(\d+)\b', op)
    if m:
        return {f'{m.group(1)}{m.group(2)}'}
    if op.startswith('vcc'): return {'vcc'}
    if op.startswith('exec'): return {'exec'}
    if op.startswith('m0'): return {'m0'}
    return set()

class Ins:
    def __init__(self, text):
        self.text = text
        t = text.split(';')[0].strip()
        self.label = None
        self.mn = None
        if t.endswith(':'):
            self.label = t[:-1]; return
        if not t or t.startswith('.'):
            return
        parts = t.split(None, 1)
        mn = parts[0]
        self.mn = re.sub(r'_(e32|e64|dpp)$', '', mn)
        rest = parts[1] if len(parts) > 1 else ''
        ops = []
        depth = 0; cur = ''
        for ch in rest:
            if ch in '[(': depth += 1
            if ch in '])': depth -= 1
            if ch == ',' and depth == 0:
                ops.append(cur.strip()); cur = ''
            else:
                cur += ch
        if cur.strip(): ops.append(cur.strip())
        self.ops = ops
        m = self.mn
        self.valu = m.startswith('v_') and not m.startswith('v_mfma')
        self.mfma = m.startswith('v_mfma')
        self.salu = m.startswith('s_')
        self.vmem = m.startswith(('buffer_', 'global_'))
        self.ds = m.startswith('ds_')
        self.dpp = bool(re.search(r'\b(row_|quad_perm|wave_)', rest)) or mn.endswith('_dpp')
        self.trans = m in TRANS
        self.perml = m.startswith('v_permlane')
        self.rdlane = m in ('v_readlane_b32', 'v_readfirstlane_b32')
        self.lds_dma = self.vmem and (re.search(r'\blds\b', rest) is not None or '_lds_' in m)
        R = [regs_of(o.split()[0]) if o else set() for o in ops]
        self.w = set(); self.r = set()
        self.srcC = set(); self.srcAB = set(); self.stdata = set()
        if self.mfma:
            self.w = R[0]; self.srcAB = R[1] | R[2]; self.srcC = R[3]; self.r = self.srcAB | self.srcC
        elif self.valu:
            if self.perml:
                self.w = R[0] | R[1]; self.r = R[0] | R[1]
            elif m.startswith(('v_add_co', 'v_sub_co', 'v_addc_co', 'v_subb_co')):
                self.w = R[0] | R[1]; self.r = set().union(*R[2:])
            else:
                self.w = R[0]; self.r = set().union(*R[1:]) if len(R) > 1 else set()
                if m.startswith(('v_fmac', 'v_writelane', 'v_pk_fmac')) or self.dpp:
                    self.r |= R[0]
                if m == 'v_cndmask_b32' and len(ops) == 3:
                    self.r |= {'vcc'}
        elif self.vmem and m.startswith('buffer_wbl2'):
            pass
        elif self.vmem:
            if 'store' in m or 'atomic' in m:
                self.r = set().union(*R)
                if m.endswith(('x3', 'x4')):
                    self.stdata = R[0] if m.startswith('buffer_') else R[1]
            elif self.lds_dma:
                self.r = set().union(*R) | {'m0'}
            else:
                self.w = R[0]; self.r = set().union(*R[1:])
        elif self.ds:
            if m.startswith(('ds_read', 'ds_bpermute', 'ds_permute', 'ds_swizzle')) or '_rtn' in m:
                self.w = R[0]; self.r = set().union(*R[1:])
            else:
                self.r = set().union(*R)
        elif self.salu:
            if m.startswith(('s_cmp', 's_cbranch', 's_branch', 's_waitcnt', 's_nop', 's_barrier', 's_sleep', 's_endpgm', 's_setprio', 's_bitcmp')):
                self.r = set().union(*R) if R else set()
            else:
                self.w = R[0] if R else set(); self.r = set().union(*R[1:]) if len(R) > 1 else set()
                if 'saveexec' in m: self.w |= {'exec'}
    @property
    def states(self):
        if self.mn is None: return 0
        if self.mn == 's_nop': return int(self.ops[0], 0) + 1
        return 1

def need(p, c):
    n = 0
    if p.mn is None or c.mn is None: return 0
    pv = {x for x in p.w if x[0] in 'va' and x != 'vcc'}
    ps = {x for x in p.w if x[0] == 's' or x == 'vcc'}
    if p.valu:
        if c.valu and c.dpp and pv & c.r: n = max(n, 2)
        if c.rdlane and pv & c.r: n = max(n, 1)
        if c.perml and pv & c.r: n = max(n, 2)
        if c.mfma and pv & c.r: n = max(n, 2)
        if c.valu and ps & c.r:
            n = max(n, 4 if c.mn in ('v_readlane_b32', 'v_writelane_b32') else 2)
        if c.vmem and ps & c.r: n = max(n, 5)
        if c.salu and ps & c.r and not c.mn.startswith('s_cbranch'): n = max(n, 1)
        if p.trans and (c.valu or c.mfma or c.vmem or c.ds) and pv & c.r: n = max(n, 1)
    if p.mfma:
        assert '16x16x32' in p.mn or '16x16x16' in p.mn, p.mn
        if c.mfma:
            if p.w & c.srcAB: n = max(n, 8)
            if p.w & c.srcC and p.w != c.srcC: n = max(n, 6)
            if p.w & c.w and not (p.w & c.srcC): n = max(n, 6)
        elif (c.valu or c.vmem or c.ds) and p.w & (c.r | c.w): n = max(n, 8)
        if c.valu and p.srcC & c.w: n = max(n, 3)
    if p.stdata:
        if c.valu and p.stdata & c.w: n = max(n, 2)
        elif p.stdata & c.w: n = max(n, 1)
    if p.salu and 'm0' in p.w and c.lds_dma: n = max(n, 1)
    return n

def fix(lines, verbose=False):
    ins = [Ins(l) for l in lines]
    i = 0
    added = 0
    while i < len(ins):
        c = ins[i]
        if c.mn is None:
            i += 1; continue
        branches = {}
        for k, x in enumerate(ins):
            if x.mn and x.mn.startswith(('s_cbranch', 's_branch')):
                branches.setdefault(x.ops[0], []).append(k)
        short = 0
        stack = [(i - 1, 0)]
        seen = set()
        while stack:
            k, d = stack.pop()
            while k >= 0 and d < 8:
                if (k, d) in seen: break
                seen.add((k, d))
                p = ins[k]
                if p.label is not None:
                    for bk in branches.get(p.label, []):
                        stack.append((bk, d))
                    kk = k - 1
                    while kk >= 0 and ins[kk].mn is None and ins[kk].label is None: kk -= 1
                    if kk >= 0 and ins[kk].mn in ('s_branch', 's_endpgm'): break
                    k -= 1; continue
                if p.mn is None:
                    k -= 1; continue
                nd = need(p, c)
                if nd > d: short = max(short, nd - d)
                d += p.states
                k -= 1
        if short:
            ins.insert(i, Ins(f's_nop {short-1}'))
            added += 1
            if verbose: print('nop', short, 'before', c.text)
            i += 1
        i += 1
    return [x.text for x in ins], added
```

```python
import sys, math, struct
sys.path.insert(0, 'dev')
from common import *
import hazard

def f2u(x):
    return struct.unpack('<I', struct.pack('<f', x))[0]

WQ, W1, KB, W2, VB, WO = 0, 16384, 24576, 57344, 65536, 98304
XN = 114688; XS = 1088
YL = XN + 4 * XS
QL = YL + 4 * XS; QS = 288
PL = QL + 8 * QS
RED = PL + 4096
HL = RED + 4096; HS = 144
MX = HL + 640
LS = MX + 64
FAC = LS + 64
GX = FAC + 64
FL = GX + 512
LDS_TOTAL = FL + 256
F_WQ, F_W1, F_K, F_W2, F_V0, F_V1, F_V2, F_V3, F_WO, C_XN, C_Y, F_Q, C_MX, C_P, F_FAC, C_QP, C_HP = [4 * i for i in range(17)]

WS_Q = 0x1000
WS_H = WS_Q + 0x20000
WS_LSE = WS_H + 0x20000
WS_O = WS_LSE + 0x4000
WS_M = WS_O + 0x80000
WS_S = WS_M + 0x40000
WS_END = WS_S + 0x40000
STAMP = 0x8000000

class G:
    def __init__(s, **kw):
        s.o = []
        s.nl = 0
        s.kw = kw
        s.stamps = kw.get('stamps', False)
    def a(s, t):
        for l in t.split('\n'):
            l = l.strip()
            if l: s.o.append(l)
    def lab(s, p='L'):
        s.nl += 1
        return f'{p}_{s.nl}'
    def stamp(s, i):
        if s.stamps:
            s.a(f's_memrealtime s[{64+2*i}:{65+2*i}]')
    def budget(s):
        s.a('s_sub_u32 s46, s46, 1\ns_cbranch_scc1 L_end')
    def wait_flag(s, off, n, vt='v9', sleep=0):
        L = s.lab('W')
        s.a(f'{L}:')
        if sleep: s.a(f's_sleep {sleep}')
        s.a(f'ds_read_b32 {vt}, v8 offset:{off}')
        s.budget()
        s.a('s_waitcnt lgkmcnt(0)')
        s.a(f'v_cmp_gt_u32 vcc, {n}, {vt}')
        s.a(f's_cbranch_vccnz {L}')
    def srd(s, d, p, n):
        s.a(f's_mov_b32 s{d}, s{p}\ns_mov_b32 s{d+1}, s{p+1}')
    def srd_const(s, d, n):
        s.a(f's_mov_b32 s{d+2}, {n}\ns_mov_b32 s{d+3}, 0x20000')
    def wave_sum(s, v, sd):
        for m in ('quad_perm:[1,0,3,2]', 'quad_perm:[2,3,0,1]', 'row_half_mirror', 'row_mirror'):
            s.a(f'v_add_f32_dpp {v}, {v}, {v} {m} row_mask:0xf bank_mask:0xf')
        s.a(f'v_add_f32_dpp {v}, {v}, {v} row_bcast:15 row_mask:0xa bank_mask:0xf')
        s.a(f'v_add_f32_dpp {v}, {v}, {v} row_bcast:31 row_mask:0xc bank_mask:0xf')
        s.a(f'v_readlane_b32 {sd}, {v}, 63')
    def rows_allreduce(s, op, v, t, both=True):
        s.a(f'v_mov_b32 {t}, {v}\nv_permlane16_swap_b32 {t}, {v}\n{op} {v}, {t}, {v}')
        if both:
            s.a(f'v_mov_b32 {t}, {v}\nv_permlane32_swap_b32 {t}, {v}\n{op} {v}, {t}, {v}')
    def layernorm(s, src, f, t):
        for k in range(4):
            s.a(f'v_lshlrev_b32 v{f+2*k}, 16, v{src+k}\nv_and_b32 v{f+2*k+1}, 0xffff0000, v{src+k}')
        s.a(f'v_add_f32 v{t}, v{f}, v{f+1}\nv_add_f32 v{t+1}, v{f+2}, v{f+3}\nv_add_f32 v{t+2}, v{f+4}, v{f+5}\nv_add_f32 v{t+3}, v{f+6}, v{f+7}')
        s.a(f'v_add_f32 v{t}, v{t}, v{t+1}\nv_add_f32 v{t+2}, v{t+2}, v{t+3}\nv_add_f32 v{t}, v{t}, v{t+2}')
        s.wave_sum(f'v{t}', 's10')
        s.a(f'v_mov_b32 v{src}, {hex(f2u(1/512))}')
        s.a(f'v_mul_f32 v{src+1}, s10, v{src}')
        for k in range(8):
            s.a(f'v_sub_f32 v{t+k}, v{f+k}, v{src+1}')
        s.a(f'v_mul_f32 v{src+2}, v{t}, v{t}\nv_mul_f32 v{src+3}, v{t+1}, v{t+1}')
        for k in range(2, 8):
            s.a(f'v_fmac_f32 v{src+2+(k&1)}, v{t+k}, v{t+k}')
        s.a(f'v_add_f32 v{src+2}, v{src+2}, v{src+3}')
        s.wave_sum(f'v{src+2}', 's10')
        s.a(f'v_mul_f32 v{src+2}, s10, v{src}')
        s.a(f'v_cvt_pk_bf16_f32 v{src+1}, v{src+1}, v{src+2}')
        s.a(f'v_and_b32 v{src+2}, 0xffff0000, v{src+1}')
        s.a(f'v_lshlrev_b32 v{src+1}, 16, v{src+1}')
        s.a(f'v_add_f32 v{src+2}, {hex(f2u(1e-5))}, v{src+2}')
        s.a(f'v_cvt_pk_bf16_f32 v{src+2}, v{src+2}, v{src+2}')
        s.a(f'v_lshlrev_b32 v{src+2}, 16, v{src+2}')
        s.a(f'v_sqrt_f32 v{src+2}, v{src+2}')
        for k in range(8):
            s.a(f'v_sub_f32 v{f+k}, v{f+k}, v{src+1}')
        s.a(f'v_cvt_pk_bf16_f32 v{src+2}, v{src+2}, v{src+2}')
        s.a(f'v_lshlrev_b32 v{src+2}, 16, v{src+2}')
        s.a(f'v_rcp_f32 v{t+7}, v{src+2}')
        for k in range(4):
            s.a(f'v_cvt_pk_bf16_f32 v{t+k}, v{f+2*k}, v{f+2*k+1}')
        for k in range(4):
            s.a(f'v_lshlrev_b32 v{f+2*k}, 16, v{t+k}\nv_and_b32 v{f+2*k+1}, 0xffff0000, v{t+k}')
        for k in range(8):
            s.a(f'v_mul_f32 v{f+k}, v{f+k}, v{t+7}')
        for k in range(4):
            s.a(f'v_cvt_pk_bf16_f32 v{src+k}, v{f+2*k}, v{f+2*k+1}')
    def round_bf16(s, v):
        s.a(f'v_cvt_pk_bf16_f32 {v}, {v}, {v}\nv_lshlrev_b32 {v}, 16, {v}')
    def tag_setup(s):
        s.a('s_load_dword s44, s[40:41], 0')
    def tag_finish(s):
        s.a('s_mul_i32 s44, s44, 0x2c9277b5\ns_add_u32 s44, s44, 0xac564b05')
    def pack24(s, d, a, b, c, e):
        s.a(f'v_perm_b32 v{d}, v{a}, v{e}, s50\nv_perm_b32 v{d+1}, v{b}, v{e}, s51\nv_perm_b32 v{d+2}, v{c}, v{e}, s52')
    def pack24_consts(s):
        s.a('s_mov_b32 s50, 0x07060503\ns_mov_b32 s51, 0x07060502\ns_mov_b32 s52, 0x07060501')
    def unpack24(s, r):
        s.a(f'v_perm_b32 v{r+3}, v{r}, v{r+1}, s53\nv_perm_b32 v{r+3}, v{r+3}, v{r+2}, s54')
    def unpack24_consts(s):
        s.a('s_mov_b32 s53, 0x04000c0c\ns_mov_b32 s54, 0x0706000c')
    def reduce32(s, r):
        s.a(f'v_permlane32_swap_b32 v{r}, v{r+2}\nv_permlane32_swap_b32 v{r+1}, v{r+3}')
        s.a(f'v_add_f32 v{r}, v{r}, v{r+2}\nv_add_f32 v{r+1}, v{r+1}, v{r+3}')
        s.a(f'v_permlane16_swap_b32 v{r}, v{r+1}\nv_add_f32 v{r}, v{r}, v{r+1}')
        for m in ('row_ror:8', 'row_ror:4', 'row_ror:2'):
            s.a(f'v_add_f32_dpp v{r}, v{r}, v{r} {m} row_mask:0xf bank_mask:0xf')
    def dump_stamps(s, nst=16):
        if not s.stamps: return
        s.a('s_waitcnt lgkmcnt(0)\ns_mov_b64 exec, -1\nv_mov_b32 v10, 0')
        for i in range(nst):
            s.a(f'v_writelane_b32 v10, s{64+2*i}, {i}')
        s.a(f's_mul_i32 s10, s2, {7*64}\ns_lshl_b32 s11, s7, 6\ns_add_u32 s10, s10, s11\ns_add_u32 s10, s10, {STAMP}')
        s.a('v_lshlrev_b32 v11, 2, v1\ns_mov_b64 exec, 0xffff\nbuffer_store_dword v10, v11, s[40:43], s10 offen')

def gen(**kw):
    s = G(**kw)
    a = s.a
    depth = kw.get('depth', 32)
    order = kw.get('order', 'q1k2vo')
    NT = kw.get('nt', 'nt')
    npq = kw.get('npq', 3); gapq = kw.get('gapq', 10)
    npl = kw.get('npl', 4); gapl = kw.get('gapl', 6)
    CSC = math.log2(math.e) / math.sqrt(128)
    if s.stamps:
        for i in range(16): a(f's_mov_b32 s{64+2*i}, 0')
    s.stamp(0)
    a('s_cmp_ge_u32 s2, 256\ns_cbranch_scc1 L_exit')
    a('s_load_dwordx16 s[16:31], s[0:1], 0\ns_load_dwordx8 s[32:39], s[0:1], 64\ns_load_dwordx2 s[40:41], s[0:1], 96')
    a('v_lshrrev_b32 v2, 6, v0\nv_and_b32 v1, 63, v0')
    if kw.get('prefetch', True):
        a('s_getpc_b64 s[8:9]\nL_pc:')
        a('v_lshlrev_b32 v3, 7, v0\nv_min_u32 v3, L_exit-L_pc, v3\nglobal_load_dword v7, v3, s[8:9]')
    a('v_readfirstlane_b32 s7, v2')
    a('s_and_b32 s3, s2, 7\ns_lshr_b32 s4, s2, 3\ns_lshr_b32 s5, s4, 3\ns_and_b32 s6, s4, 7')
    a(f's_mov_b32 s42, {STAMP + 0x100000 if s.stamps else WS_END}\ns_mov_b32 s43, 0x20000')
    a(f's_mov_b32 s46, {kw.get("budget", 400000)}')
    a(f'v_mov_b32 v8, {FL}')
    a('v_lshrrev_b32 v2, 4, v1\nv_and_b32 v3, 15, v1')
    a('s_cmp_lt_u32 s7, 4\ns_cbranch_scc1 L_C\ns_cmp_eq_u32 s7, 4\ns_cbranch_scc1 L_P\ns_cmp_eq_u32 s7, 5\ns_cbranch_scc1 L_M')
    a('v_lshrrev_b32 v4, 2, v1\nv_lshrrev_b32 v5, 4, v1\nv_and_b32 v5, 2, v5\nv_and_b32 v6, 3, v1\nv_xor_b32 v5, v5, v6\nv_lshlrev_b32 v5, 4, v5')
    a('v_lshl_add_u32 v10, v4, 13, v5')
    for r in range(1, 4): a(f'v_add_u32 v{10+r}, {r*(16*8192-1024)}, v10')
    s.srd_const(48, 4 << 20)
    a('s_and_b32 s10, s4, 1\ns_lshl_b32 s10, s10, 21\ns_lshl_b32 s11, s3, 10\ns_add_u32 s10, s10, s11\ns_lshr_b32 s11, s4, 1\ns_lshl_b32 s11, s11, 6\ns_add_u32 s10, s10, s11')
    a('v_mul_u32_u24 v14, 3584, v4\nv_add_u32 v14, v14, v5')
    for r in range(1, 4): a(f'v_add_u32 v{14+r}, {r*(16*3584-1024)}, v14')
    a(f's_cmp_lt_u32 s4, 28\ns_cselect_b32 s54, {512*3584}, 0\ns_mov_b32 s55, 0x20000')
    a(f's_and_b32 s11, s4, 3\ns_mul_i32 s11, s11, {128*3584}\ns_mul_i32 s12, s3, 7\ns_lshr_b32 s13, s4, 2\ns_add_u32 s12, s12, s13\ns_lshl_b32 s12, s12, 6\ns_add_u32 s11, s11, s12')
    a('v_xor_b32 v4, v3, v2\nv_lshlrev_b32 v4, 4, v4\nv_lshl_add_u32 v18, v2, 8, v4')
    for r in range(1, 4): a(f'v_xor_b32 v{18+r}, {r*64}, v18\nv_add_u32 v{18+r}, {r*7168}, v{18+r}')
    s.srd_const(56, 32 << 20)
    a(f's_lshl_b32 s12, s5, 23\ns_lshl_b32 s13, s3, 20\ns_add_u32 s12, s12, s13\ns_lshl_b32 s13, s6, 10\ns_add_u32 s12, s12, s13\ns_add_u32 s12, s12, {3072*256}')
    a('s_mov_b32 s13, s12')
    a('v_mov_b32 v30, 1')
    a('s_waitcnt lgkmcnt(0)')
    s.stamp(1)
    segs = {'q': (10, 48, 22, 10, 64 * 8192, 4, WQ), '1': (14, 52, 28, 11, 64 * 3584, 2, W1), 'k': (18, 56, 18, 12, 32768, 8, KB),
            'v': (22, 60, 20, 13, 32768, 8, VB), 'o': (26, 96, 24, 14, 32768, 4, WO), '2': (26, 48, 32, 15, 32768, 2, W2)}
    flat = []
    for c in order: flat += [(c, i) for i in range(segs[c][5])]
    marks = {}
    for gi, (c, i) in enumerate(flat):
        if c == 'v' and i % 2 == 1: marks[gi + 1] = F_V0 + 4 * (i // 2)
        elif c != 'v' and i == segs[c][5] - 1: marks[gi + 1] = {'q': F_WQ, '1': F_W1, 'k': F_K, '2': F_W2, 'o': F_WO}[c]
    stampid = {F_WQ: 2, F_W1: 3, F_K: 4, F_W2: 5, F_V3: 6, F_WO: 7}
    dg = depth // 4
    landed = 0
    def mark_upto(n):
        nonlocal landed
        while landed < n:
            landed += 1
            if landed in marks:
                a(f'ds_write_b32 v8, v30 offset:{marks[landed]}')
                if marks[landed] in stampid: s.stamp(stampid[marks[landed]])
    late_setup_done = False
    for gi, (c, i) in enumerate(flat):
        vr, sd, ptr, so, step, n, lds = segs[c]
        if gi == dg:
            a('v_lshlrev_b32 v4, 1, v2\nv_xor_b32 v4, v3, v4\nv_lshlrev_b32 v4, 4, v4\nv_lshl_add_u32 v22, v2, 8, v4')
            a(f'v_xor_b32 v23, 128, v22\nv_add_u32 v24, {2*7168}, v22\nv_add_u32 v25, {3*7168}, v23\nv_add_u32 v23, 7168, v23')
            a('v_lshrrev_b32 v4, 3, v1\nv_and_b32 v5, 6, v4\nv_and_b32 v6, 7, v1\nv_xor_b32 v5, v5, v6\nv_lshlrev_b32 v5, 4, v5\nv_lshl_add_u32 v26, v4, 10, v5')
            for r in range(1, 4): a(f'v_add_u32 v{26+r}, {r*7168}, v26')
            s.srd_const(60, 32 << 20); s.srd_const(96, 4 << 20)
            a('s_lshl_b32 s14, s3, 2\ns_add_u32 s14, s14, s5\ns_mul_i32 s15, s14, 57344\ns_lshl_b32 s14, s14, 17\ns_lshl_b32 s9, s6, 7\ns_add_u32 s14, s14, s9\ns_add_u32 s15, s15, s9')
            a('s_barrier')
            late_setup_done = True
        if gi >= dg:
            a(f's_waitcnt vmcnt({depth-4})')
            mark_upto(gi - dg + 1)
        assert late_setup_done or c in 'q1k'
        if i == 0:
            s.srd(sd, ptr, 0)
            if c == '2': a(f's_mov_b32 s50, {1792*1024}')
            a(f's_mov_b32 m0, {lds}')
        else:
            a(f's_addk_i32 m0, 4096\ns_add_u32 s{so}, s{so}, {step}')
        for r in range(4):
            a(f'buffer_load_dwordx4 v{vr+r}, s[{sd}:{sd+3}], s{so} offen offset:{r*1024} {NT} lds')
    while landed < len(flat):
        nxt = min(k for k in marks if k > landed)
        a(f's_waitcnt vmcnt({(len(flat)-nxt)*4})')
        mark_upto(nxt)
    a('s_branch L_end')

    a('L_C:')
    a('s_setprio 2')
    s.srd_const(48, 4096)
    a('s_lshl_b32 s10, s7, 10\nv_lshlrev_b32 v10, 4, v1')
    a('v_bfe_u32 v4, v1, 2, 2\nv_and_b32 v5, 3, v1')
    a('s_waitcnt lgkmcnt(0)')
    s.srd(48, 16, 0)
    a('buffer_load_dwordx4 v[12:15], v10, s[48:51], s10 offen')
    s.tag_setup()
    a('s_getreg_b32 s45, hwreg(HW_REG_XCC_ID, 0, 4)')
    a(f's_mul_i32 s11, s7, {XS}\ns_add_u32 s11, s11, {XN}\nv_add_u32 v11, s11, v10')
    a('v_mov_b32 v6, 1')
    a('s_barrier')
    a('s_waitcnt vmcnt(0) lgkmcnt(0)')
    s.stamp(1)
    s.tag_finish()
    s.pack24_consts()
    s.layernorm(12, 16, 24)
    a(f'ds_write_b128 v11, v[12:15]')
    a('s_mov_b64 exec, 1')
    a(f'ds_add_u32 v8, v6 offset:{C_XN}')
    a('s_mov_b64 exec, -1')
    s.layernorm(12, 16, 24)
    a(f'ds_write_b128 v11, v[12:15] offset:{YL-XN}')
    a('s_mov_b64 exec, 1')
    a(f'ds_add_u32 v8, v6 offset:{C_Y}')
    a('s_mov_b64 exec, -1')
    s.stamp(2)
    a('s_and_b32 s12, s7, 1')
    a('v_lshl_add_u32 v10, v2, 3, v4\nv_lshlrev_b32 v10, 6, v10\nv_and_b32 v11, 1, v2\nv_xor_b32 v11, s12, v11\nv_lshl_add_u32 v10, v11, 5, v10\nv_lshl_add_u32 v10, v5, 3, v10')
    a(f'v_mul_u32_u24 v11, {XS}, v5\nv_lshl_add_u32 v11, v2, 4, v11')
    a('s_cmp_ge_u32 s7, 2\ns_cbranch_scc1 L_mlp1')
    a(f's_and_b32 s13, s4, 1\ns_lshl_b32 s10, s13, 9\ns_add_u32 s10, s10, {XN}\nv_add_u32 v11, s10, v11')
    a(f's_lshl_b32 s10, s3, 14\ns_lshl_b32 s13, s13, 11\ns_add_u32 s10, s10, s13\ns_lshr_b32 s13, s4, 1\ns_lshl_b32 s13, s13, 7\ns_add_u32 s10, s10, s13\ns_lshl_b32 s13, s12, 6\ns_add_u32 s10, s10, s13\ns_add_u32 s10, s10, {WS_Q}')
    a('v_lshlrev_b32 v12, 12, v3\nv_lshl_add_u32 v12, v2, 4, v12')
    s.wait_flag(C_XN, 4)
    for t in range(8): a(f'ds_read_b128 v[{64+4*t}:{67+4*t}], v11 offset:{t*64}')
    s.wait_flag(F_WQ, 1)
    for t in range(8):
        a(f'ds_read_b64_tr_b16 v[{32+4*t}:{33+4*t}], v10 offset:{WQ+t*2048}\nds_read_b64_tr_b16 v[{34+4*t}:{35+4*t}], v10 offset:{WQ+t*2048+256}')
    for t in range(8):
        a(f's_waitcnt lgkmcnt({14-2*t})')
        a(f'v_mfma_f32_16x16x32_bf16 v[16:19], v[{32+4*t}:{35+4*t}], v[{64+4*t}:{67+4*t}], {"0" if t == 0 else "v[16:19]"}')
    a('v_mov_b32 v22, s45\nv_mov_b32 v23, s44')
    a('s_mov_b32 exec_lo, 0x000f000f\ns_mov_b32 exec_hi, 0x000f000f')
    a('v_cvt_pk_bf16_f32 v20, v16, v17\nv_cvt_pk_bf16_f32 v21, v18, v19')
    a('buffer_store_dwordx4 v[20:23], v12, s[40:43], s10 offen sc1')
    a(f's_mov_b64 exec, 1\nds_add_u32 v8, v6 offset:{C_QP}\ns_mov_b64 exec, -1')
    a('s_branch L_qk')
    a('L_mlp1:')
    a(f's_and_b32 s13, s4, 3\ns_lshl_b32 s10, s13, 8\ns_add_u32 s10, s10, {YL}\nv_add_u32 v11, s10, v11')
    a(f's_lshl_b32 s10, s3, 14\ns_lshl_b32 s13, s13, 12\ns_add_u32 s10, s10, s13\ns_lshr_b32 s13, s4, 2\ns_lshl_b32 s13, s13, 7\ns_add_u32 s10, s10, s13\ns_lshl_b32 s13, s12, 6\ns_add_u32 s10, s10, s13\ns_add_u32 s10, s10, {WS_H}')
    a('v_lshlrev_b32 v12, 10, v3\nv_lshl_add_u32 v12, v2, 4, v12')
    s.wait_flag(C_Y, 4)
    for t in range(4): a(f'ds_read_b128 v[{64+4*t}:{67+4*t}], v11 offset:{t*64}')
    s.wait_flag(F_W1, 1)
    for t in range(4):
        a(f'ds_read_b64_tr_b16 v[{32+4*t}:{33+4*t}], v10 offset:{W1+t*2048}\nds_read_b64_tr_b16 v[{34+4*t}:{35+4*t}], v10 offset:{W1+t*2048+256}')
    for t in range(4):
        a(f's_waitcnt lgkmcnt({6-2*t})')
        a(f'v_mfma_f32_16x16x32_bf16 v[16:19], v[{32+4*t}:{35+4*t}], v[{64+4*t}:{67+4*t}], {"0" if t == 0 else "v[16:19]"}')
    a('v_mov_b32 v23, s44')
    a('s_mov_b32 exec_lo, 0x000f000f\ns_mov_b32 exec_hi, 0x000f000f')
    s.pack24(20, 16, 17, 18, 19)
    a('buffer_store_dwordx4 v[20:23], v12, s[40:43], s10 offen sc1')
    a(f's_mov_b64 exec, 1\nds_add_u32 v8, v6 offset:{C_HP}\ns_mov_b64 exec, -1')
    a('L_qk:')
    s.stamp(3)
    a(f's_lshl_b32 s10, s7, 13\ns_add_u32 s10, s10, {KB}')
    a('v_xor_b32 v10, v2, v3\nv_lshlrev_b32 v10, 4, v10\nv_lshl_add_u32 v10, v3, 8, v10\nv_add_u32 v10, s10, v10')
    a('v_xor_b32 v11, 64, v10\nv_xor_b32 v12, 128, v10\nv_xor_b32 v13, 192, v10')
    a(f'v_and_b32 v14, 7, v3\nv_mul_u32_u24 v14, {QS}, v14\nv_lshl_add_u32 v14, v2, 4, v14\nv_add_u32 v14, {QL}, v14')
    a(f's_lshl_b32 s10, s7, 2\ns_add_u32 s10, s10, {MX}\nv_lshlrev_b32 v15, 4, v5\nv_add_u32 v24, s10, v15\nv_add_u32 v15, {MX}, v15')
    a(f's_lshl_b32 s10, s7, 10\ns_add_u32 s10, s10, {PL}\nv_lshlrev_b32 v25, 4, v1\nv_add_u32 v26, s10, v25\nv_add_u32 v25, {PL}, v25')
    a('v_lshl_add_u32 v27, v2, 2, v4\nv_and_b32 v28, 7, v27\ns_lshl_b32 s10, s7, 1\nv_xor_b32 v28, s10, v28\nv_lshlrev_b32 v28, 5, v28\nv_lshl_add_u32 v28, v27, 8, v28\nv_lshl_add_u32 v28, v5, 3, v28')
    a(f'v_add_u32 v28, {VB}, v28\nv_xor_b32 v29, 32, v28')
    a(f's_lshr_b32 s10, s7, 1\ns_lshl_b32 s11, s10, 13\ns_add_u32 s11, s11, {WO}')
    a('v_bfe_u32 v30, v27, 1, 2\nv_lshlrev_b32 v30, 5, v30\nv_lshl_add_u32 v30, v27, 7, v30\nv_lshl_add_u32 v30, v5, 3, v30\nv_add_u32 v96, s11, v30')
    a('v_xor_b32 v97, 32, v96\nv_xor_b32 v98, 64, v96\nv_xor_b32 v99, 96, v96')
    a('v_lshlrev_b32 v30, 14, v3\nv_lshl_add_u32 v30, v2, 5, v30')
    a(f's_lshl_b32 s14, s3, 16\ns_add_u32 s14, s14, {WS_O}\ns_lshl_b32 s11, s4, 9\ns_lshl_b32 s12, s7, 7\ns_add_u32 s11, s11, s12')
    a('v_lshlrev_b32 v31, 12, v4\nv_lshl_add_u32 v31, v5, 9, v31\nv_lshl_add_u32 v31, v2, 5, v31')
    a('s_lshl_b32 s15, s5, 14\ns_add_u32 s15, s15, s14\ns_lshl_b32 s10, s10, 8\ns_add_u32 s15, s15, s10\ns_and_b32 s10, s7, 1\ns_lshl_b32 s10, s10, 11\ns_add_u32 s15, s15, s10')
    a('s_add_u32 s14, s14, s11')
    a(f's_mov_b32 s13, {hex(f2u(CSC))}')
    s.wait_flag(F_K, 1, sleep=1)
    for u in range(2):
        for t in range(4):
            a(f'ds_read_b128 v[{32+16*u+4*t}:{35+16*u+4*t}], v{10+t} offset:{u*4096}')
    s.wait_flag(F_Q, 1)
    s.stamp(4)
    a('v_readfirstlane_b32 s47, v9')
    for t in range(4): a(f'ds_read_b128 v[{64+4*t}:{67+4*t}], v14 offset:{t*64}')
    for t in range(4):
        a(f's_waitcnt lgkmcnt({3-t})')
        for u in range(2):
            a(f'v_mfma_f32_16x16x32_bf16 v[{16+4*u}:{19+4*u}], v[{32+16*u+4*t}:{35+16*u+4*t}], v[{64+4*t}:{67+4*t}], {"0" if t == 0 else f"v[{16+4*u}:{19+4*u}]"}')
    for k in range(8): a(f'v_add_f32_dpp v{16+k}, v{16+k}, v{16+k} row_ror:4 row_mask:0xf bank_mask:0xf')
    a('v_max3_f32 v10, v16, v17, v18\nv_max3_f32 v11, v19, v20, v21\nv_max3_f32 v10, v10, v22, v23\nv_max_f32 v10, v10, v11')
    s.rows_allreduce('v_max_f32', 'v10', 'v11')
    a('v_mul_f32 v10, s13, v10')
    a(f'ds_write_b32 v24, v10\ns_mov_b64 exec, 1\nds_add_u32 v8, v6 offset:{C_MX}\ns_mov_b64 exec, -1')
    s.wait_flag(C_MX, 4)
    a('ds_read_b128 v[32:35], v15\ns_waitcnt lgkmcnt(0)')
    a('v_max3_f32 v10, v32, v33, v34\nv_max_f32 v10, v10, v35')
    for k in range(8): a(f'v_fma_f32 v{16+k}, v{16+k}, s13, -v10')
    for k in range(8): a(f'v_exp_f32 v{16+k}, v{16+k}')
    for k in range(4): a(f'v_cvt_pk_bf16_f32 v{32+k}, v{16+2*k}, v{17+2*k}')
    a('ds_write_b128 v26, v[32:35]')
    a('v_add_f32 v16, v16, v17\nv_add_f32 v18, v18, v19\nv_add_f32 v20, v20, v21\nv_add_f32 v22, v22, v23\nv_add_f32 v16, v16, v18\nv_add_f32 v20, v20, v22\nv_add_f32 v10, v16, v20')
    s.rows_allreduce('v_add_f32', 'v10', 'v11')
    a(f'ds_write_b32 v24, v10 offset:{LS-MX}\ns_mov_b64 exec, 1\nds_add_u32 v8, v6 offset:{C_P}\ns_mov_b64 exec, -1')
    s.stamp(5)
    a(f'v_lshlrev_b32 v15, 2, v5\nv_add_u32 v15, {FAC}, v15')
    a('v_mov_b32 v40, s44\nv_mov_b32 v41, s44\nv_mov_b32 v46, s44\nv_mov_b32 v47, s44')
    s.wait_flag(C_P, 4)
    for t in range(4): a(f'ds_read_b128 v[{64+4*t}:{67+4*t}], v25 offset:{t*1024}')
    for t in range(4):
        if t == 3:
            s.wait_flag(F_FAC, 1)
            a('ds_read_b32 v10, v15')
            s.stamp(6)
        s.wait_flag(F_V0 + 4 * t, 1)
        if t == 3: s.stamp(7)
        for T in range(2):
            for u in range(2):
                a(f'ds_read_b64_tr_b16 v[{32+4*T+2*u}:{33+4*T+2*u}], v{28+T} offset:{t*8192+u*4096}')
        for T in range(2):
            a(f's_waitcnt lgkmcnt({2-2*T})')
            a(f'v_mfma_f32_16x16x32_bf16 v[{16+4*T}:{19+4*T}], v[{32+4*T}:{35+4*T}], v[{64+4*t}:{67+4*t}], {"0" if t == 0 else f"v[{16+4*T}:{19+4*T}]"}')
    a('s_mov_b32 exec_lo, 0x000f000f\ns_mov_b32 exec_hi, 0x000f000f\ns_cmp_eq_u32 s47, 1')
    for k in range(8): a(f'v_mul_f32 v{16+k}, v{16+k}, v10')
    for k in range(4): a(f'v_cvt_pk_bf16_f32 v{42+k}, v{16+2*k}, v{17+2*k}')
    a('s_cbranch_scc0 L_orem')
    a('buffer_store_dwordx4 v[40:43], v30, s[40:43], s14 offen\nbuffer_store_dwordx4 v[44:47], v30, s[40:43], s14 offen offset:16')
    a('L_ost:')
    a('s_mov_b64 exec, -1')
    s.stamp(8)
    for k in range(4): a(f'buffer_load_dwordx4 v[{48+4*k}:{51+4*k}], v31, s[40:43], s15 offen offset:{(k>>1)*128+(k&1)*16} sc1')
    s.wait_flag(F_WO, 1)
    for ks in range(2):
        for T in range(4):
            for u in range(2):
                r = 64 + 16 * ks + 4 * T + 2 * u
                a(f'ds_read_b64_tr_b16 v[{r}:{r+1}], v{96+T} offset:{ks*4096+u*2048}')
    s.stamp(9)
    a('L_opoll:')
    a('s_waitcnt vmcnt(0)')
    a('v_xor_b32 v10, s44, v48\nv_bitop3_b32 v10, v55, s44, v10 bitop3:0xbe\nv_bitop3_b32 v10, v56, s44, v10 bitop3:0xbe\nv_bitop3_b32 v10, v63, s44, v10 bitop3:0xbe')
    a('v_cmp_ne_u32 vcc, 0, v10\ns_cbranch_vccz L_odone')
    a('s_mov_b64 exec, vcc')
    for k in range(4): a(f'buffer_load_dwordx4 v[{48+4*k}:{51+4*k}], v31, s[40:43], s15 offen offset:{(k>>1)*128+(k&1)*16} sc1')
    s.budget()
    a('s_branch L_opoll')
    a('L_orem:')
    a('buffer_store_dwordx4 v[40:43], v30, s[40:43], s14 offen sc1\nbuffer_store_dwordx4 v[44:47], v30, s[40:43], s14 offen offset:16 sc1')
    a('s_branch L_ost')
    a('L_odone:')
    a('s_mov_b64 exec, -1')
    s.stamp(10)
    a('s_waitcnt lgkmcnt(0)')
    for ks in range(2):
        for T in range(4):
            a(f'v_mfma_f32_16x16x32_bf16 v[{32+4*T}:{35+4*T}], v[{50+8*ks}:{53+8*ks}], v[{64+16*ks+4*T}:{67+16*ks+4*T}], {"0" if ks == 0 else f"v[{32+4*T}:{35+4*T}]"}')
    for T in range(4):
        a(f'v_add_f32 v{32+4*T}, v{32+4*T}, v{33+4*T}\nv_add_f32 v{34+4*T}, v{34+4*T}, v{35+4*T}\nv_add_f32 v{16+T}, v{32+4*T}, v{34+4*T}')
    a(f'ds_write_b128 v26, v[16:19] offset:{RED-PL}')
    a('s_waitcnt lgkmcnt(0)\ns_barrier')
    s.stamp(11)
    a('s_cmp_eq_u32 s7, 1\ns_cbranch_scc1 L_final\ns_cmp_lg_u32 s7, 0\ns_cbranch_scc1 L_end')
    for k in range(1, 4): a(f'ds_read_b128 v[{44+4*k}:{47+4*k}], v25 offset:{RED-PL+k*1024}')
    a(f's_lshl_b32 s10, s6, 5\ns_lshl_b32 s11, s3, 2\ns_add_u32 s10, s10, s11\ns_add_u32 s10, s10, s5\ns_lshl_b32 s10, s10, 10\ns_add_u32 s10, s10, {WS_S}')
    a('v_lshlrev_b32 v10, 4, v1\nv_mov_b32 v35, s44')
    a('s_waitcnt lgkmcnt(2)')
    for k in range(4): a(f'v_add_f32 v{16+k}, v{16+k}, v{48+k}')
    a('s_waitcnt lgkmcnt(0)')
    for k in range(4): a(f'v_add_f32 v{52+k}, v{52+k}, v{56+k}')
    for k in range(4): a(f'v_add_f32 v{16+k}, v{16+k}, v{52+k}')
    s.pack24(32, 16, 17, 18, 19)
    a('buffer_store_dwordx4 v[32:35], v10, s[40:43], s10 offen sc1')
    s.stamp(12)
    a('s_branch L_end')
    a('L_final:')
    a(f'v_lshlrev_b32 v10, 3, v1\nv_add_u32 v10, {GX}, v10\nds_read_b64 v[12:13], v10')
    a('v_lshrrev_b32 v10, 1, v1\nv_lshlrev_b32 v10, 10, v10\nv_and_b32 v11, 1, v1\nv_lshl_add_u32 v10, v11, 4, v10')
    a(f's_lshl_b32 s10, s3, 15\ns_lshl_b32 s11, s4, 5\ns_add_u32 s10, s10, s11\ns_add_u32 s10, s10, {WS_S}')
    s.unpack24_consts()
    s.srd_const(48, 4096); s.srd(48, 36, 0)
    a('v_lshlrev_b32 v14, 5, v2\nv_lshl_add_u32 v14, v11, 1, v14')
    a('s_lshl_b32 s11, s5, 10\ns_lshl_b32 s12, s3, 7\ns_add_u32 s11, s11, s12\ns_lshl_b32 s12, s6, 2\ns_add_u32 s11, s11, s12')
    fd = kw.get('fdelay', 8)
    if fd: a(f's_sleep {fd}')
    a('buffer_load_dwordx4 v[16:19], v10, s[40:43], s10 offen sc1')
    a(f's_sleep {kw.get("fgap", 5)}')
    a('L_fpoll:')
    a('buffer_load_dwordx4 v[20:23], v10, s[40:43], s10 offen sc1')
    s.budget()
    a('s_waitcnt vmcnt(1)\nv_cmp_ne_u32 vcc, s44, v19\ns_cbranch_vccz L_fdone')
    a('buffer_load_dwordx4 v[16:19], v10, s[40:43], s10 offen sc1')
    a('s_waitcnt vmcnt(1)\nv_cmp_ne_u32 vcc, s44, v23\ns_cbranch_vccnz L_fpoll')
    def finish(r):
        s.stamp(12)
        s.unpack24(r)
        s.reduce32(r)
        a('s_waitcnt lgkmcnt(0)')
        s.round_bf16(f'v{r}')
        a(f'v_mul_f32 v{r}, v{r}, v12')
        s.round_bf16(f'v{r}')
        a(f'v_add_f32 v{r}, v{r}, v13')
        a('s_mov_b32 exec_lo, 0x00030003\ns_mov_b32 exec_hi, 0x00030003')
        a(f'v_cvt_pk_bf16_f32 v{r}, v{r}, v{r}')
        a(f'buffer_store_short v{r}, v14, s[48:51], s11 offen')
    finish(20)
    a('s_branch L_epoch')
    a('L_fdone:')
    finish(16)
    a('L_epoch:')
    s.stamp(13)
    a('s_cmp_lg_u32 s2, 0\ns_cbranch_scc1 L_end')
    a('s_mov_b64 exec, 1\nv_mov_b32 v10, 0\nv_mov_b32 v11, s44\nbuffer_store_dword v11, v10, s[40:43], 0 offen sc1')
    a('s_branch L_end')

    a('L_P:')
    a('s_setprio 3')
    a(f'v_lshl_add_u32 v10, v1, 2, v8\nv_mov_b32 v11, 0\nds_write_b32 v10, v11')
    a('v_lshrrev_b32 v10, 2, v1\nv_lshlrev_b32 v10, 14, v10\nv_and_b32 v5, 3, v1\nv_lshl_add_u32 v10, v5, 7, v10')
    a(f's_lshl_b32 s10, s3, 16\ns_lshl_b32 s11, s4, 9\ns_add_u32 s10, s10, s11\ns_add_u32 s10, s10, {WS_O}\nv_add_u32 v10, s10, v10')
    a(f's_lshl_b32 s12, s3, 11\ns_lshl_b32 s11, s4, 6\ns_add_u32 s12, s12, s11\ns_add_u32 s12, s12, {WS_LSE}')
    a('v_mov_b32 v11, s12\nv_cmp_gt_u32 vcc, 16, v1\nv_cndmask_b32 v10, v11, v10, vcc')
    a('s_waitcnt lgkmcnt(0)')
    s.tag_setup()
    a('buffer_load_dword v7, v10, s[40:43], 0 offen')
    a('s_getreg_b32 s45, hwreg(HW_REG_XCC_ID, 0, 4)')
    a('s_barrier')
    a(f's_lshl_b32 s10, s3, 14\ns_lshl_b32 s11, s5, 12\ns_add_u32 s10, s10, s11\ns_add_u32 s10, s10, {WS_Q}')
    a('v_lshlrev_b32 v10, 4, v1')
    a(f'v_lshrrev_b32 v11, 5, v1\nv_mul_u32_u24 v11, {QS}, v11\nv_and_b32 v12, 31, v1\nv_lshl_add_u32 v11, v12, 3, v11\nv_add_u32 v11, {QL}, v11')
    a('v_lshlrev_b32 v12, 4, v12')
    a(f'v_lshlrev_b32 v13, 4, v5\nv_add_u32 v14, {MX}, v13')
    a('s_and_b32 s13, s12, 0xfffffe00')
    a('s_waitcnt lgkmcnt(0)')
    s.tag_finish()
    s.wait_flag(C_QP, 2, sleep=1)
    s.stamp(1)
    def qissue(k):
        for c in range(4): a(f'buffer_load_dwordx4 v[{32+16*k+4*c}:{35+16*k+4*c}], v10, s[40:43], s10 offen offset:{c*1024} sc1')
    for k in range(npq - 1):
        qissue(k); a(f's_sleep {gapq}')
    a('L_qpoll:')
    for k in range(npq):
        qissue((k + npq - 1) % npq)
        s.budget()
        r = 32 + 16 * k
        a(f's_waitcnt vmcnt({4*(npq-1)})')
        a(f'v_xor_b32 v15, s44, v{r+3}')
        for c in range(1, 4): a(f'v_bitop3_b32 v15, v{r+4*c+3}, s44, v15 bitop3:0xbe')
        a(f'v_cmp_ne_u32 vcc, 0, v15\ns_cbranch_vccz L_qgot{k}')
    a('s_branch L_qpoll')
    for k in range(npq):
        r = 32 + 16 * k
        a(f'L_qgot{k}:')
        for c in range(4): a(f'ds_write_b64 v11, v[{r+4*c}:{r+4*c+1}] offset:{((c>>1)*4+(c&1)*2)*QS}')
        a(f'v_xor_b32 v15, s45, v{r+2}')
        for c in range(1, 4): a(f'v_bitop3_b32 v15, v{r+4*c+2}, s45, v15 bitop3:0xbe')
        if k != npq - 1: a('s_branch L_qdone')
    a('L_qdone:')
    a('v_cmp_ne_u32 vcc, 0, v15\ns_cmp_eq_u64 vcc, 0\ns_cselect_b32 s47, 1, 2')
    if kw.get('force_remote'): a('s_mov_b32 s47, 2')
    a(f'v_mov_b32 v15, s47\nds_write_b32 v8, v15 offset:{F_Q}')
    s.stamp(2)
    a('v_mov_b32 v18, s44\nv_mov_b32 v19, s44')
    s.wait_flag(C_P, 4)
    a(f'ds_read_b128 v[20:23], v14\nds_read_b128 v[24:27], v14 offset:{LS-MX}\ns_waitcnt lgkmcnt(0)')
    a('v_max3_f32 v16, v20, v21, v22\nv_add_f32 v24, v24, v25\nv_add_f32 v26, v26, v27\nv_max_f32 v16, v16, v23\nv_add_f32 v17, v24, v26')
    a('s_mov_b64 exec, 15\ns_cmp_eq_u32 s47, 1\ns_cbranch_scc0 L_lrem')
    a('buffer_store_dwordx4 v[16:19], v13, s[40:43], s12 offen\ns_branch L_lst')
    a('L_lrem:\nbuffer_store_dwordx4 v[16:19], v13, s[40:43], s12 offen sc1')
    a('L_lst:\ns_mov_b64 exec, -1')
    s.stamp(3)
    LB = 96
    def lissue(k): a(f'buffer_load_dwordx4 v[{LB+4*k}:{LB+3+4*k}], v12, s[40:43], s13 offen sc1')
    for k in range(npl - 1):
        lissue(k); a(f's_sleep {gapl}')
    a('L_lpoll:')
    for k in range(npl):
        lissue((k + npl - 1) % npl)
        s.budget()
        a(f's_waitcnt vmcnt({npl-1})')
        a(f'v_mov_b32 v20, v{LB+4*k}\nv_mov_b32 v21, v{LB+4*k+1}\nv_cmp_ne_u32 vcc, s44, v{LB+4*k+3}')
        a('s_cbranch_vccz L_lgot' if k != npl - 1 else 's_cbranch_vccnz L_lpoll')
    a('L_lgot:')
    s.stamp(4)
    a('v_max_f32_dpp v22, v20, v20 row_ror:4 row_mask:0xf bank_mask:0xf')
    a('v_max_f32_dpp v22, v22, v22 row_ror:8 row_mask:0xf bank_mask:0xf')
    s.rows_allreduce('v_max_f32', 'v22', 'v23', both=False)
    a('v_sub_f32 v20, v20, v22\nv_sub_f32 v16, v16, v22\nv_exp_f32 v20, v20\nv_exp_f32 v16, v16\nv_mul_f32 v21, v21, v20')
    a('v_add_f32_dpp v21, v21, v21 row_ror:4 row_mask:0xf bank_mask:0xf')
    a('v_add_f32_dpp v21, v21, v21 row_ror:8 row_mask:0xf bank_mask:0xf')
    s.rows_allreduce('v_add_f32', 'v21', 'v23', both=False)
    a(f'v_rcp_f32 v21, v21\nv_lshlrev_b32 v13, 2, v5\nv_add_u32 v13, {FAC}, v13\nv_mul_f32 v16, v16, v21\nv_mov_b32 v15, 1')
    a(f'ds_write_b32 v13, v16\nds_write_b32 v8, v15 offset:{F_FAC}')
    s.stamp(5)
    a('s_branch L_end')

    a('L_M:')
    a('s_setprio 1')
    a('v_bfe_u32 v4, v1, 2, 2\nv_and_b32 v5, 3, v1')
    a('v_lshl_add_u32 v10, v4, 2, v2')
    a('v_cmp_gt_u32 s[56:57], 14, v10')
    a('s_mul_i32 s10, s5, 14\nv_add_u32 v10, s10, v10')
    a('v_lshlrev_b32 v11, 3, v10')
    a('v_lshlrev_b32 v10, 4, v10\nv_lshl_add_u32 v10, v5, 10, v10')
    a('s_mul_i32 s11, s3, 448')
    a('v_and_b32 v6, 1, v1\nv_lshlrev_b32 v12, 5, v2\nv_lshl_add_u32 v12, v6, 1, v12')
    a('s_lshl_b32 s12, s3, 7\ns_lshl_b32 s13, s6, 2\ns_add_u32 s12, s12, s13\ns_lshl_b32 s13, s5, 10\ns_add_u32 s13, s13, s12')
    s.srd_const(48, 3584); s.srd_const(60, 1024); s.srd_const(96, 4096)
    a('s_waitcnt lgkmcnt(0)')
    s.tag_setup()
    s.srd(48, 30, 0); s.srd(60, 34, 0); s.srd(96, 16, 0)
    a('buffer_load_dwordx2 v[14:15], v11, s[48:51], s11 offen')
    a('buffer_load_ushort v16, v12, s[60:63], s12 offen')
    a('buffer_load_ushort v17, v12, s[96:99], s13 offen')
    a('s_barrier')
    a(f's_lshl_b32 s10, s3, 14\ns_add_u32 s10, s10, {WS_H}\ns_add_u32 s11, s10, 4096\ns_add_u32 s12, s10, 8192\ns_add_u32 s13, s10, 12288')
    a(f'v_mul_u32_u24 v11, {HS}, v5\nv_lshl_add_u32 v11, v2, 4, v11\nv_lshrrev_b32 v12, 1, v4\nv_lshl_add_u32 v11, v12, 6, v11\nv_and_b32 v12, 1, v4\nv_lshl_add_u32 v11, v12, 3, v11\nv_add_u32 v11, {HL}, v11')
    a(f'v_mul_u32_u24 v12, {HS}, v4\nv_lshl_add_u32 v12, v2, 4, v12\nv_add_u32 v12, {HL}, v12')
    a('v_lshl_add_u32 v27, v2, 2, v4\nv_bfe_u32 v28, v27, 1, 2\nv_lshlrev_b32 v28, 5, v28\nv_lshl_add_u32 v28, v27, 7, v28\nv_lshl_add_u32 v28, v5, 3, v28')
    a(f'v_add_u32 v28, {W2}, v28\nv_xor_b32 v29, 32, v28\nv_xor_b32 v30, 64, v28\nv_xor_b32 v31, 96, v28')
    a('s_waitcnt lgkmcnt(0)')
    s.tag_finish()
    a('s_nop 0')
    s.pack24_consts(); s.unpack24_consts()
    s.wait_flag(C_HP, 2, sleep=1)
    a(f's_sleep {kw.get("hdelay", 8)}')
    s.stamp(1)
    a('s_mov_b64 exec, s[56:57]')
    a('L_hpoll:')
    for c in range(4): a(f'buffer_load_dwordx4 v[{32+4*c}:{35+4*c}], v10, s[40:43], s{10+c} offen sc1')
    s.budget()
    a('s_waitcnt vmcnt(0)')
    a('v_xor_b32 v13, s44, v35')
    for c in range(1, 4): a(f'v_bitop3_b32 v13, v{35+4*c}, s44, v13 bitop3:0xbe')
    a('v_cmp_ne_u32 vcc, 0, v13\ns_cbranch_vccnz L_hpoll')
    s.stamp(2)
    for c in range(4): s.unpack24(32 + 4 * c)
    for k in range(4): a(f'v_add_f32 v{32+k}, v{32+k}, v{36+k}\nv_add_f32 v{40+k}, v{40+k}, v{44+k}')
    for k in range(4): a(f'v_add_f32 v{32+k}, v{32+k}, v{40+k}')
    a('v_cvt_pk_bf16_f32 v36, v32, v33\nv_cvt_pk_bf16_f32 v37, v34, v35')
    for k in range(2):
        a(f'v_lshlrev_b32 v{32+2*k}, 16, v{36+k}\nv_and_b32 v{33+2*k}, 0xffff0000, v{36+k}\nv_lshlrev_b32 v{40+2*k}, 16, v{14+k}\nv_and_b32 v{41+2*k}, 0xffff0000, v{14+k}')
    for k in range(4): a(f'v_add_f32 v{32+k}, v{32+k}, v{40+k}')
    a('v_cvt_pk_bf16_f32 v36, v32, v33\nv_cvt_pk_bf16_f32 v37, v34, v35')
    for k in range(2): a(f'v_lshlrev_b32 v{32+2*k}, 16, v{36+k}\nv_and_b32 v{33+2*k}, 0xffff0000, v{36+k}')
    K1 = -2 * math.sqrt(2 / math.pi) * math.log2(math.e)
    a(f'v_mov_b32 v44, {hex(f2u(K1))}')
    for k in range(4): a(f'v_mul_f32 v{36+k}, v{32+k}, v{32+k}')
    for k in range(4): a(f'v_fmamk_f32 v{36+k}, v{36+k}, {hex(f2u(K1*0.044715))}, v44')
    for k in range(4): a(f'v_mul_f32 v{36+k}, v{36+k}, v{32+k}')
    for k in range(4): a(f'v_exp_f32 v{36+k}, v{36+k}')
    for k in range(4): a(f'v_add_f32 v{36+k}, 1.0, v{36+k}')
    for k in range(4): a(f'v_rcp_f32 v{36+k}, v{36+k}')
    for k in range(4): a(f'v_mul_f32 v{32+k}, v{32+k}, v{36+k}')
    a('s_mov_b64 exec, -1\nv_mov_b32 v40, 0\nv_mov_b32 v41, 0\ns_mov_b64 exec, s[56:57]')
    a('v_cvt_pk_bf16_f32 v40, v32, v33\nv_cvt_pk_bf16_f32 v41, v34, v35')
    a('s_mov_b64 exec, -1')
    a('ds_write_b64 v11, v[40:41]\nds_read_b128 v[48:51], v12\nds_read_b128 v[52:55], v12 offset:64')
    a(f's_lshl_b32 s10, s6, 5\ns_lshl_b32 s11, s3, 2\ns_add_u32 s10, s10, s11\ns_add_u32 s10, s10, s5\ns_lshl_b32 s10, s10, 10\ns_add_u32 s10, s10, {WS_M}')
    a(f's_lshl_b32 s11, s3, 15\ns_lshl_b32 s12, s4, 5\ns_add_u32 s11, s11, s12\ns_add_u32 s11, s11, {WS_M}')
    a('v_lshlrev_b32 v10, 4, v1\nv_lshrrev_b32 v11, 1, v1\nv_lshlrev_b32 v11, 10, v11\nv_lshl_add_u32 v11, v6, 4, v11\nv_mov_b32 v23, s44')
    s.wait_flag(F_W2, 1, sleep=1)
    for ks in range(2):
        for T in range(4):
            for u in range(2):
                r = 64 + 16 * ks + 4 * T + 2 * u
                a(f'ds_read_b64_tr_b16 v[{r}:{r+1}], v{28+T} offset:{ks*4096+u*2048}')
    a('s_waitcnt lgkmcnt(0)')
    for ks in range(2):
        for T in range(4):
            a(f'v_mfma_f32_16x16x32_bf16 v[{32+4*T}:{35+4*T}], v[{48+4*ks}:{51+4*ks}], v[{64+16*ks+4*T}:{67+16*ks+4*T}], {"0" if ks == 0 else f"v[{32+4*T}:{35+4*T}]"}')
    s.pack24(20, 32, 36, 40, 44)
    a('buffer_store_dwordx4 v[20:23], v10, s[40:43], s10 offen sc1')
    s.stamp(3)
    a(f'v_lshlrev_b32 v12, 3, v1\nv_add_u32 v12, {GX}, v12\nv_lshlrev_b32 v16, 16, v16\nv_lshlrev_b32 v17, 16, v17')
    a(f's_sleep {kw.get("mdelay", 8)}')
    a('L_mpoll:')
    a('buffer_load_dwordx4 v[32:35], v11, s[40:43], s11 offen sc1')
    s.budget()
    a('s_waitcnt vmcnt(0)\nv_cmp_ne_u32 vcc, s44, v35\ns_cbranch_vccnz L_mpoll')
    s.stamp(4)
    s.unpack24(32)
    s.reduce32(32)
    s.round_bf16('v32')
    a('v_add_f32 v32, v32, v16')
    s.round_bf16('v32')
    a(f'v_mul_f32 v33, {hex(f2u(-math.log2(math.e)))}, v32\nv_exp_f32 v33, v33\nv_add_f32 v33, 1.0, v33\nv_rcp_f32 v33, v33\nv_mul_f32 v16, v32, v33')
    s.round_bf16('v16')
    a('ds_write_b64 v12, v[16:17]')
    s.stamp(5)
    a('L_end:')
    s.dump_stamps()
    a('L_exit:')
    a('s_endpgm')
    lines, added = hazard.fix(s.o, verbose=kw.get('verbose', False))
    return wrap('\n'.join(lines) + '\n', 256, 448, LDS_TOTAL, 128)

if __name__ == '__main__':
    import ast
    out = sys.argv[1]
    kw = {}
    for x in sys.argv[2:]:
        k, v = x.split('=')
        try: kw[k] = ast.literal_eval(v)
        except Exception: kw[k] = v
    open(out, 'w').write(gen(**kw))
```

```python
import sys, math, struct
sys.path.insert(0, 'dev')
from common import *
import hazard

def f2u(x):
    return struct.unpack('<I', struct.pack('<f', x))[0]

WQ, W1, KB, W2, VB, WO = 0, 16384, 24576, 57344, 65536, 98304
XN = 114688; XS = 1088
YL = XN + 4 * XS
QL = YL + 4 * XS; QS = 288
PL = QL + 8 * QS
RED = PL + 4096
HL = RED + 4096; HS = 144
MX = HL + 640
LS = MX + 64
FAC = LS + 64
GX = FAC + 64
FL = GX + 512
LDS_TOTAL = FL + 256
F_WQ, F_W1, F_K, F_W2, F_V0, F_V1, F_V2, F_V3, F_WO, C_XN, C_Y, F_Q, C_MX, C_P, F_FAC, C_QP, C_HP = [4 * i for i in range(17)]

WS_Q = 0x1000
WS_H = WS_Q + 0x20000
WS_LSE = WS_H + 0x20000
WS_O = WS_LSE + 0x4000
WS_M = WS_O + 0x80000
WS_S = WS_M + 0x40000
WS_END = WS_S + 0x40000
STAMP = 0x8000000

class G:
    def __init__(s, **kw):
        s.o = []
        s.nl = 0
        s.kw = kw
        s.stamps = kw.get('stamps', False)
    def a(s, t):
        for l in t.split('\n'):
            l = l.strip()
            if l: s.o.append(l)
    def lab(s, p='L'):
        s.nl += 1
        return f'{p}_{s.nl}'
    def stamp(s, i):
        pr = s.kw.get('probe')
        if s.stamps or (pr and i in (0, pr[1])):
            s.a(f's_memrealtime s[{64+2*i}:{65+2*i}]')
    def budget(s):
        s.a('s_sub_u32 s46, s46, 1\ns_cbranch_scc1 L_end')
    def wait_flag(s, off, n, vt='v9', sleep=0):
        L = s.lab('W')
        s.a(f'{L}:')
        if sleep: s.a(f's_sleep {sleep}')
        s.a(f'ds_read_b32 {vt}, v8 offset:{off}')
        s.budget()
        s.a('s_waitcnt lgkmcnt(0)')
        s.a(f'v_cmp_gt_u32 vcc, {n}, {vt}')
        s.a(f's_cbranch_vccnz {L}')
    def srd(s, d, p, n):
        s.a(f's_mov_b32 s{d}, s{p}\ns_mov_b32 s{d+1}, s{p+1}')
    def srd_const(s, d, n):
        s.a(f's_mov_b32 s{d+2}, {n}\ns_mov_b32 s{d+3}, 0x20000')
    def wave_sum(s, v, sd):
        for m in ('quad_perm:[1,0,3,2]', 'quad_perm:[2,3,0,1]', 'row_half_mirror', 'row_mirror'):
            s.a(f'v_add_f32_dpp {v}, {v}, {v} {m} row_mask:0xf bank_mask:0xf')
        s.a(f'v_add_f32_dpp {v}, {v}, {v} row_bcast:15 row_mask:0xa bank_mask:0xf')
        s.a(f'v_add_f32_dpp {v}, {v}, {v} row_bcast:31 row_mask:0xc bank_mask:0xf')
        s.a(f'v_readlane_b32 {sd}, {v}, 63')
    def rows_allreduce(s, op, v, t, both=True):
        s.a(f'v_mov_b32 {t}, {v}\nv_permlane16_swap_b32 {t}, {v}\n{op} {v}, {t}, {v}')
        if both:
            s.a(f'v_mov_b32 {t}, {v}\nv_permlane32_swap_b32 {t}, {v}\n{op} {v}, {t}, {v}')
    def layernorm(s, src, f, t):
        for k in range(4):
            s.a(f'v_lshlrev_b32 v{f+2*k}, 16, v{src+k}\nv_and_b32 v{f+2*k+1}, 0xffff0000, v{src+k}')
        s.a(f'v_add_f32 v{t}, v{f}, v{f+1}\nv_add_f32 v{t+1}, v{f+2}, v{f+3}\nv_add_f32 v{t+2}, v{f+4}, v{f+5}\nv_add_f32 v{t+3}, v{f+6}, v{f+7}')
        s.a(f'v_add_f32 v{t}, v{t}, v{t+1}\nv_add_f32 v{t+2}, v{t+2}, v{t+3}\nv_add_f32 v{t}, v{t}, v{t+2}')
        s.wave_sum(f'v{t}', 's10')
        s.a(f'v_mov_b32 v{src}, {hex(f2u(1/512))}')
        s.a(f'v_mul_f32 v{src+1}, s10, v{src}')
        for k in range(8):
            s.a(f'v_sub_f32 v{t+k}, v{f+k}, v{src+1}')
        s.a(f'v_mul_f32 v{src+2}, v{t}, v{t}\nv_mul_f32 v{src+3}, v{t+1}, v{t+1}')
        for k in range(2, 8):
            s.a(f'v_fmac_f32 v{src+2+(k&1)}, v{t+k}, v{t+k}')
        s.a(f'v_add_f32 v{src+2}, v{src+2}, v{src+3}')
        s.wave_sum(f'v{src+2}', 's10')
        s.a(f'v_mul_f32 v{src+2}, s10, v{src}')
        s.a(f'v_cvt_pk_bf16_f32 v{src+1}, v{src+1}, v{src+2}')
        s.a(f'v_and_b32 v{src+2}, 0xffff0000, v{src+1}')
        s.a(f'v_lshlrev_b32 v{src+1}, 16, v{src+1}')
        s.a(f'v_add_f32 v{src+2}, {hex(f2u(1e-5))}, v{src+2}')
        s.a(f'v_cvt_pk_bf16_f32 v{src+2}, v{src+2}, v{src+2}')
        s.a(f'v_lshlrev_b32 v{src+2}, 16, v{src+2}')
        s.a(f'v_sqrt_f32 v{src+2}, v{src+2}')
        for k in range(8):
            s.a(f'v_sub_f32 v{f+k}, v{f+k}, v{src+1}')
        s.a(f'v_cvt_pk_bf16_f32 v{src+2}, v{src+2}, v{src+2}')
        s.a(f'v_lshlrev_b32 v{src+2}, 16, v{src+2}')
        s.a(f'v_rcp_f32 v{t+7}, v{src+2}')
        for k in range(4):
            s.a(f'v_cvt_pk_bf16_f32 v{t+k}, v{f+2*k}, v{f+2*k+1}')
        for k in range(4):
            s.a(f'v_lshlrev_b32 v{f+2*k}, 16, v{t+k}\nv_and_b32 v{f+2*k+1}, 0xffff0000, v{t+k}')
        for k in range(8):
            s.a(f'v_mul_f32 v{f+k}, v{f+k}, v{t+7}')
        for k in range(4):
            s.a(f'v_cvt_pk_bf16_f32 v{src+k}, v{f+2*k}, v{f+2*k+1}')
    def round_bf16(s, v):
        s.a(f'v_cvt_pk_bf16_f32 {v}, {v}, {v}\nv_lshlrev_b32 {v}, 16, {v}')
    def tag_setup(s):
        s.a('s_load_dword s44, s[40:41], 0')
    def tag_finish(s):
        s.a('s_mul_i32 s44, s44, 0x2c9277b5\ns_add_u32 s44, s44, 0xac564b05')
    def pack24(s, d, a, b, c, e):
        s.a(f'v_perm_b32 v{d}, v{a}, v{e}, s50\nv_perm_b32 v{d+1}, v{b}, v{e}, s51\nv_perm_b32 v{d+2}, v{c}, v{e}, s52')
    def pack24_consts(s):
        s.a('s_mov_b32 s50, 0x07060503\ns_mov_b32 s51, 0x07060502\ns_mov_b32 s52, 0x07060501')
    def unpack24(s, r):
        s.a(f'v_perm_b32 v{r+3}, v{r}, v{r+1}, s53\nv_perm_b32 v{r+3}, v{r+3}, v{r+2}, s54')
    def unpack24_consts(s):
        s.a('s_mov_b32 s53, 0x04000c0c\ns_mov_b32 s54, 0x0706000c')
    def reduce32(s, r):
        s.a(f'v_permlane32_swap_b32 v{r}, v{r+2}\nv_permlane32_swap_b32 v{r+1}, v{r+3}')
        s.a(f'v_add_f32 v{r}, v{r}, v{r+2}\nv_add_f32 v{r+1}, v{r+1}, v{r+3}')
        s.a(f'v_permlane16_swap_b32 v{r}, v{r+1}\nv_add_f32 v{r}, v{r}, v{r+1}')
        for m in ('row_ror:8', 'row_ror:4', 'row_ror:2'):
            s.a(f'v_add_f32_dpp v{r}, v{r}, v{r} {m} row_mask:0xf bank_mask:0xf')
    def dump_stamps(s, nst=16):
        if not s.stamps: return
        s.a('s_waitcnt lgkmcnt(0)\ns_mov_b64 exec, -1\nv_mov_b32 v10, 0')
        for i in range(nst):
            s.a(f'v_writelane_b32 v10, s{64+2*i}, {i}')
        s.a(f's_mul_i32 s10, s2, {7*64}\ns_lshl_b32 s11, s7, 6\ns_add_u32 s10, s10, s11\ns_add_u32 s10, s10, {STAMP}')
        s.a('v_lshlrev_b32 v11, 2, v1\ns_mov_b64 exec, 0xffff\nbuffer_store_dword v10, v11, s[40:43], s10 offen')

def gen(**kw):
    s = G(**kw)
    a = s.a
    depth = kw.get('depth', 32)
    order = kw.get('order', 'q1k2vo')
    NT = kw.get('nt', 'nt')
    npq = kw.get('npq', 3); gapq = kw.get('gapq', 10)
    npl = kw.get('npl', 4); gapl = kw.get('gapl', 6)
    CSC = math.log2(math.e) / math.sqrt(128)
    if s.stamps:
        for i in range(16): a(f's_mov_b32 s{64+2*i}, 0')
    s.stamp(0)
    a('s_cmp_ge_u32 s2, 256\ns_cbranch_scc1 L_exit')
    a('s_load_dwordx16 s[16:31], s[0:1], 0\ns_load_dwordx8 s[32:39], s[0:1], 64\ns_load_dwordx2 s[40:41], s[0:1], 96')
    a('v_lshrrev_b32 v2, 6, v0\nv_and_b32 v1, 63, v0')
    if kw.get('prefetch', True):
        a('s_getpc_b64 s[8:9]\nL_pc:')
        a('v_lshlrev_b32 v3, 7, v0\nv_min_u32 v3, L_exit-L_pc, v3\nglobal_load_dword v7, v3, s[8:9]')
    a('v_readfirstlane_b32 s7, v2')
    a('s_and_b32 s3, s2, 7\ns_lshr_b32 s4, s2, 3\ns_lshr_b32 s5, s4, 3\ns_and_b32 s6, s4, 7')
    a(f's_mov_b32 s42, {STAMP + 0x100000 if s.stamps else WS_END}\ns_mov_b32 s43, 0x20000')
    a(f's_mov_b32 s46, {kw.get("budget", 400000)}')
    a(f'v_mov_b32 v8, {FL}')
    a('v_lshrrev_b32 v2, 4, v1\nv_and_b32 v3, 15, v1')
    a('s_cmp_lt_u32 s7, 4\ns_cbranch_scc1 L_C\ns_cmp_eq_u32 s7, 4\ns_cbranch_scc1 L_P\ns_cmp_eq_u32 s7, 5\ns_cbranch_scc1 L_M')
    a('v_lshrrev_b32 v4, 2, v1\nv_lshrrev_b32 v5, 4, v1\nv_and_b32 v5, 2, v5\nv_and_b32 v6, 3, v1\nv_xor_b32 v5, v5, v6\nv_lshlrev_b32 v5, 4, v5')
    a('v_lshl_add_u32 v10, v4, 13, v5')
    for r in range(1, 4): a(f'v_add_u32 v{10+r}, {r*(16*8192-1024)}, v10')
    s.srd_const(48, 4 << 20)
    a('s_and_b32 s10, s4, 1\ns_lshl_b32 s10, s10, 21\ns_lshl_b32 s11, s3, 10\ns_add_u32 s10, s10, s11\ns_lshr_b32 s11, s4, 1\ns_lshl_b32 s11, s11, 6\ns_add_u32 s10, s10, s11')
    a('v_mul_u32_u24 v14, 3584, v4\nv_add_u32 v14, v14, v5')
    for r in range(1, 4): a(f'v_add_u32 v{14+r}, {r*(16*3584-1024)}, v14')
    a(f's_cmp_lt_u32 s4, 28\ns_cselect_b32 s54, {512*3584}, 0\ns_mov_b32 s55, 0x20000')
    a(f's_and_b32 s11, s4, 3\ns_mul_i32 s11, s11, {128*3584}\ns_mul_i32 s12, s3, 7\ns_lshr_b32 s13, s4, 2\ns_add_u32 s12, s12, s13\ns_lshl_b32 s12, s12, 6\ns_add_u32 s11, s11, s12')
    a('v_xor_b32 v4, v3, v2\nv_lshlrev_b32 v4, 4, v4\nv_lshl_add_u32 v18, v2, 8, v4')
    for r in range(1, 4): a(f'v_xor_b32 v{18+r}, {r*64}, v18\nv_add_u32 v{18+r}, {r*7168}, v{18+r}')
    s.srd_const(56, 32 << 20)
    a(f's_lshl_b32 s12, s5, 23\ns_lshl_b32 s13, s3, 20\ns_add_u32 s12, s12, s13\ns_lshl_b32 s13, s6, 10\ns_add_u32 s12, s12, s13\ns_add_u32 s12, s12, {3072*256}')
    a('s_mov_b32 s13, s12')
    a('v_mov_b32 v30, 1')
    a('s_waitcnt lgkmcnt(0)')
    s.stamp(1)
    segs = {'q': (10, 48, 22, 10, 64 * 8192, 4, WQ), '1': (14, 52, 28, 11, 64 * 3584, 2, W1), 'k': (18, 56, 18, 12, 32768, 8, KB),
            'v': (22, 60, 20, 13, 32768, 8, VB), 'o': (26, 96, 24, 14, 32768, 4, WO), '2': (26, 48, 32, 15, 32768, 2, W2)}
    flat = []
    for c in order: flat += [(c, i) for i in range(segs[c][5])]
    marks = {}
    for gi, (c, i) in enumerate(flat):
        if c == 'v' and i % 2 == 1: marks[gi + 1] = F_V0 + 4 * (i // 2)
        elif c != 'v' and i == segs[c][5] - 1: marks[gi + 1] = {'q': F_WQ, '1': F_W1, 'k': F_K, '2': F_W2, 'o': F_WO}[c]
    stampid = {F_WQ: 2, F_W1: 3, F_K: 4, F_W2: 5, F_V3: 6, F_WO: 7}
    dg = depth // 4
    landed = 0
    def mark_upto(n):
        nonlocal landed
        while landed < n:
            landed += 1
            if landed in marks:
                a(f'ds_write_b32 v8, v30 offset:{marks[landed]}')
                if marks[landed] in stampid: s.stamp(stampid[marks[landed]])
    late_setup_done = False
    for gi, (c, i) in enumerate(flat):
        vr, sd, ptr, so, step, n, lds = segs[c]
        if gi == dg:
            a('v_lshlrev_b32 v4, 1, v2\nv_xor_b32 v4, v3, v4\nv_lshlrev_b32 v4, 4, v4\nv_lshl_add_u32 v22, v2, 8, v4')
            a(f'v_xor_b32 v23, 128, v22\nv_add_u32 v24, {2*7168}, v22\nv_add_u32 v25, {3*7168}, v23\nv_add_u32 v23, 7168, v23')
            a('v_lshrrev_b32 v4, 3, v1\nv_and_b32 v5, 6, v4\nv_and_b32 v6, 7, v1\nv_xor_b32 v5, v5, v6\nv_lshlrev_b32 v5, 4, v5\nv_lshl_add_u32 v26, v4, 10, v5')
            for r in range(1, 4): a(f'v_add_u32 v{26+r}, {r*7168}, v26')
            s.srd_const(60, 32 << 20); s.srd_const(96, 4 << 20)
            a('s_lshl_b32 s14, s3, 2\ns_add_u32 s14, s14, s5\ns_mul_i32 s15, s14, 57344\ns_lshl_b32 s14, s14, 17\ns_lshl_b32 s9, s6, 7\ns_add_u32 s14, s14, s9\ns_add_u32 s15, s15, s9')
            a('s_barrier')
            late_setup_done = True
        if gi >= dg:
            a(f's_waitcnt vmcnt({depth-4})')
            mark_upto(gi - dg + 1)
        assert late_setup_done or c in 'q1k'
        if i == 0:
            s.srd(sd, ptr, 0)
            if c == '2': a(f's_mov_b32 s50, {1792*1024}')
            a(f's_mov_b32 m0, {lds}')
        else:
            a(f's_addk_i32 m0, 4096\ns_add_u32 s{so}, s{so}, {step}')
        for r in range(4):
            a(f'buffer_load_dwordx4 v{vr+r}, s[{sd}:{sd+3}], s{so} offen offset:{r*1024} {NT} lds')
    while landed < len(flat):
        nxt = min(k for k in marks if k > landed)
        a(f's_waitcnt vmcnt({(len(flat)-nxt)*4})')
        mark_upto(nxt)
    a('s_branch L_end')

    a('L_C:')
    a('s_setprio 2')
    s.srd_const(48, 4096)
    a('s_lshl_b32 s10, s7, 10\nv_lshlrev_b32 v10, 4, v1')
    a('v_bfe_u32 v4, v1, 2, 2\nv_and_b32 v5, 3, v1')
    a('s_waitcnt lgkmcnt(0)')
    s.srd(48, 16, 0)
    a('buffer_load_dwordx4 v[12:15], v10, s[48:51], s10 offen')
    s.tag_setup()
    a('s_getreg_b32 s45, hwreg(HW_REG_XCC_ID, 0, 4)')
    a(f's_mul_i32 s11, s7, {XS}\ns_add_u32 s11, s11, {XN}\nv_add_u32 v11, s11, v10')
    a('v_mov_b32 v6, 1')
    a('s_barrier')
    a('s_waitcnt vmcnt(0) lgkmcnt(0)')
    s.stamp(1)
    s.tag_finish()
    s.pack24_consts()
    s.layernorm(12, 16, 24)
    a(f'ds_write_b128 v11, v[12:15]')
    a('s_mov_b64 exec, 1')
    a(f'ds_add_u32 v8, v6 offset:{C_XN}')
    a('s_mov_b64 exec, -1')
    s.layernorm(12, 16, 24)
    a(f'ds_write_b128 v11, v[12:15] offset:{YL-XN}')
    a('s_mov_b64 exec, 1')
    a(f'ds_add_u32 v8, v6 offset:{C_Y}')
    a('s_mov_b64 exec, -1')
    s.stamp(2)
    a('s_and_b32 s12, s7, 1')
    a('v_lshl_add_u32 v10, v2, 3, v4\nv_lshlrev_b32 v10, 6, v10\nv_and_b32 v11, 1, v2\nv_xor_b32 v11, s12, v11\nv_lshl_add_u32 v10, v11, 5, v10\nv_lshl_add_u32 v10, v5, 3, v10')
    a(f'v_mul_u32_u24 v11, {XS}, v5\nv_lshl_add_u32 v11, v2, 4, v11')
    a('s_cmp_ge_u32 s7, 2\ns_cbranch_scc1 L_mlp1')
    a(f's_and_b32 s13, s4, 1\ns_lshl_b32 s10, s13, 9\ns_add_u32 s10, s10, {XN}\nv_add_u32 v11, s10, v11')
    a(f's_lshl_b32 s10, s3, 14\ns_lshl_b32 s13, s13, 11\ns_add_u32 s10, s10, s13\ns_lshr_b32 s13, s4, 1\ns_lshl_b32 s13, s13, 7\ns_add_u32 s10, s10, s13\ns_lshl_b32 s13, s12, 6\ns_add_u32 s10, s10, s13\ns_add_u32 s10, s10, {WS_Q}')
    a('v_lshlrev_b32 v12, 12, v3\nv_lshl_add_u32 v12, v2, 4, v12')
    s.wait_flag(C_XN, 4)
    for t in range(8): a(f'ds_read_b128 v[{64+4*t}:{67+4*t}], v11 offset:{t*64}')
    s.wait_flag(F_WQ, 1)
    for t in range(8):
        a(f'ds_read_b64_tr_b16 v[{32+4*t}:{33+4*t}], v10 offset:{WQ+t*2048}\nds_read_b64_tr_b16 v[{34+4*t}:{35+4*t}], v10 offset:{WQ+t*2048+256}')
    for t in range(8):
        a(f's_waitcnt lgkmcnt({14-2*t})')
        a(f'v_mfma_f32_16x16x32_bf16 v[16:19], v[{32+4*t}:{35+4*t}], v[{64+4*t}:{67+4*t}], {"0" if t == 0 else "v[16:19]"}')
    a('v_mov_b32 v22, s45\nv_mov_b32 v23, s44')
    a('s_mov_b32 exec_lo, 0x000f000f\ns_mov_b32 exec_hi, 0x000f000f')
    a('v_cvt_pk_bf16_f32 v20, v16, v17\nv_cvt_pk_bf16_f32 v21, v18, v19')
    a('buffer_store_dwordx4 v[20:23], v12, s[40:43], s10 offen sc1')
    a(f's_mov_b64 exec, 1\nds_add_u32 v8, v6 offset:{C_QP}\ns_mov_b64 exec, -1')
    a('s_branch L_qk')
    a('L_mlp1:')
    a(f's_and_b32 s13, s4, 3\ns_lshl_b32 s10, s13, 8\ns_add_u32 s10, s10, {YL}\nv_add_u32 v11, s10, v11')
    a(f's_lshl_b32 s10, s3, 14\ns_lshl_b32 s13, s13, 12\ns_add_u32 s10, s10, s13\ns_lshr_b32 s13, s4, 2\ns_lshl_b32 s13, s13, 7\ns_add_u32 s10, s10, s13\ns_lshl_b32 s13, s12, 6\ns_add_u32 s10, s10, s13\ns_add_u32 s10, s10, {WS_H}')
    a('v_lshlrev_b32 v12, 10, v3\nv_lshl_add_u32 v12, v2, 4, v12')
    s.wait_flag(C_Y, 4)
    for t in range(4): a(f'ds_read_b128 v[{64+4*t}:{67+4*t}], v11 offset:{t*64}')
    s.wait_flag(F_W1, 1)
    for t in range(4):
        a(f'ds_read_b64_tr_b16 v[{32+4*t}:{33+4*t}], v10 offset:{W1+t*2048}\nds_read_b64_tr_b16 v[{34+4*t}:{35+4*t}], v10 offset:{W1+t*2048+256}')
    for t in range(4):
        a(f's_waitcnt lgkmcnt({6-2*t})')
        a(f'v_mfma_f32_16x16x32_bf16 v[16:19], v[{32+4*t}:{35+4*t}], v[{64+4*t}:{67+4*t}], {"0" if t == 0 else "v[16:19]"}')
    a('v_mov_b32 v23, s44')
    a('s_mov_b32 exec_lo, 0x000f000f\ns_mov_b32 exec_hi, 0x000f000f')
    s.pack24(20, 16, 17, 18, 19)
    a('buffer_store_dwordx4 v[20:23], v12, s[40:43], s10 offen sc1')
    a(f's_mov_b64 exec, 1\nds_add_u32 v8, v6 offset:{C_HP}\ns_mov_b64 exec, -1')
    a('L_qk:')
    s.stamp(3)
    a(f's_lshl_b32 s10, s7, 13\ns_add_u32 s10, s10, {KB}')
    a('v_xor_b32 v10, v2, v3\nv_lshlrev_b32 v10, 4, v10\nv_lshl_add_u32 v10, v3, 8, v10\nv_add_u32 v10, s10, v10')
    a('v_xor_b32 v11, 64, v10\nv_xor_b32 v12, 128, v10\nv_xor_b32 v13, 192, v10')
    a(f'v_and_b32 v14, 7, v3\nv_mul_u32_u24 v14, {QS}, v14\nv_lshl_add_u32 v14, v2, 4, v14\nv_add_u32 v14, {QL}, v14')
    a(f's_lshl_b32 s10, s7, 2\ns_add_u32 s10, s10, {MX}\nv_lshlrev_b32 v15, 4, v5\nv_add_u32 v24, s10, v15\nv_add_u32 v15, {MX}, v15')
    a(f's_lshl_b32 s10, s7, 10\ns_add_u32 s10, s10, {PL}\nv_lshlrev_b32 v25, 4, v1\nv_add_u32 v26, s10, v25\nv_add_u32 v25, {PL}, v25')
    a('v_lshl_add_u32 v27, v2, 2, v4\nv_and_b32 v28, 7, v27\ns_lshl_b32 s10, s7, 1\nv_xor_b32 v28, s10, v28\nv_lshlrev_b32 v28, 5, v28\nv_lshl_add_u32 v28, v27, 8, v28\nv_lshl_add_u32 v28, v5, 3, v28')
    a(f'v_add_u32 v28, {VB}, v28\nv_xor_b32 v29, 32, v28')
    a(f's_lshr_b32 s10, s7, 1\ns_lshl_b32 s11, s10, 13\ns_add_u32 s11, s11, {WO}')
    a('v_bfe_u32 v30, v27, 1, 2\nv_lshlrev_b32 v30, 5, v30\nv_lshl_add_u32 v30, v27, 7, v30\nv_lshl_add_u32 v30, v5, 3, v30\nv_add_u32 v96, s11, v30')
    a('v_xor_b32 v97, 32, v96\nv_xor_b32 v98, 64, v96\nv_xor_b32 v99, 96, v96')
    a('v_lshlrev_b32 v30, 14, v3\nv_lshl_add_u32 v30, v2, 5, v30')
    a(f's_lshl_b32 s14, s3, 16\ns_add_u32 s14, s14, {WS_O}\ns_lshl_b32 s11, s4, 9\ns_lshl_b32 s12, s7, 7\ns_add_u32 s11, s11, s12')
    a('v_lshlrev_b32 v31, 12, v4\nv_lshl_add_u32 v31, v5, 9, v31\nv_lshl_add_u32 v31, v2, 5, v31')
    a('s_lshl_b32 s15, s5, 14\ns_add_u32 s15, s15, s14\ns_lshl_b32 s10, s10, 8\ns_add_u32 s15, s15, s10\ns_and_b32 s10, s7, 1\ns_lshl_b32 s10, s10, 11\ns_add_u32 s15, s15, s10')
    a('s_add_u32 s14, s14, s11')
    a(f's_mov_b32 s13, {hex(f2u(CSC))}')
    s.wait_flag(F_K, 1, sleep=1)
    for u in range(2):
        for t in range(4):
            a(f'ds_read_b128 v[{32+16*u+4*t}:{35+16*u+4*t}], v{10+t} offset:{u*4096}')
    s.wait_flag(F_Q, 1)
    s.stamp(4)
    a('v_readfirstlane_b32 s47, v9')
    for t in range(4): a(f'ds_read_b128 v[{64+4*t}:{67+4*t}], v14 offset:{t*64}')
    for t in range(4):
        a(f's_waitcnt lgkmcnt({3-t})')
        for u in range(2):
            a(f'v_mfma_f32_16x16x32_bf16 v[{16+4*u}:{19+4*u}], v[{32+16*u+4*t}:{35+16*u+4*t}], v[{64+4*t}:{67+4*t}], {"0" if t == 0 else f"v[{16+4*u}:{19+4*u}]"}')
    for k in range(8): a(f'v_add_f32_dpp v{16+k}, v{16+k}, v{16+k} row_ror:4 row_mask:0xf bank_mask:0xf')
    a('v_max3_f32 v10, v16, v17, v18\nv_max3_f32 v11, v19, v20, v21\nv_max3_f32 v10, v10, v22, v23\nv_max_f32 v10, v10, v11')
    s.rows_allreduce('v_max_f32', 'v10', 'v11')
    a('v_mul_f32 v10, s13, v10')
    a(f'ds_write_b32 v24, v10\ns_mov_b64 exec, 1\nds_add_u32 v8, v6 offset:{C_MX}\ns_mov_b64 exec, -1')
    s.wait_flag(C_MX, 4)
    a('ds_read_b128 v[32:35], v15\ns_waitcnt lgkmcnt(0)')
    a('v_max3_f32 v10, v32, v33, v34\nv_max_f32 v10, v10, v35')
    for k in range(8): a(f'v_fma_f32 v{16+k}, v{16+k}, s13, -v10')
    for k in range(8): a(f'v_exp_f32 v{16+k}, v{16+k}')
    for k in range(4): a(f'v_cvt_pk_bf16_f32 v{32+k}, v{16+2*k}, v{17+2*k}')
    a('ds_write_b128 v26, v[32:35]')
    a('v_add_f32 v16, v16, v17\nv_add_f32 v18, v18, v19\nv_add_f32 v20, v20, v21\nv_add_f32 v22, v22, v23\nv_add_f32 v16, v16, v18\nv_add_f32 v20, v20, v22\nv_add_f32 v10, v16, v20')
    s.rows_allreduce('v_add_f32', 'v10', 'v11')
    a(f'ds_write_b32 v24, v10 offset:{LS-MX}\ns_mov_b64 exec, 1\nds_add_u32 v8, v6 offset:{C_P}\ns_mov_b64 exec, -1')
    s.stamp(5)
    a(f'v_lshlrev_b32 v15, 2, v5\nv_add_u32 v15, {FAC}, v15')
    a('v_mov_b32 v40, s44\nv_mov_b32 v41, s44\nv_mov_b32 v46, s44\nv_mov_b32 v47, s44')
    s.wait_flag(C_P, 4)
    for t in range(4): a(f'ds_read_b128 v[{64+4*t}:{67+4*t}], v25 offset:{t*1024}')
    for t in range(4):
        if t == 3:
            s.wait_flag(F_FAC, 1)
            a('ds_read_b32 v10, v15')
            s.stamp(6)
        s.wait_flag(F_V0 + 4 * t, 1)
        if t == 3: s.stamp(7)
        for T in range(2):
            for u in range(2):
                a(f'ds_read_b64_tr_b16 v[{32+4*T+2*u}:{33+4*T+2*u}], v{28+T} offset:{t*8192+u*4096}')
        for T in range(2):
            a(f's_waitcnt lgkmcnt({2-2*T})')
            a(f'v_mfma_f32_16x16x32_bf16 v[{16+4*T}:{19+4*T}], v[{32+4*T}:{35+4*T}], v[{64+4*t}:{67+4*t}], {"0" if t == 0 else f"v[{16+4*T}:{19+4*T}]"}')
    a('s_mov_b32 exec_lo, 0x000f000f\ns_mov_b32 exec_hi, 0x000f000f\ns_cmp_eq_u32 s47, 1')
    for k in range(8): a(f'v_mul_f32 v{16+k}, v{16+k}, v10')
    for k in range(4): a(f'v_cvt_pk_bf16_f32 v{42+k}, v{16+2*k}, v{17+2*k}')
    a('s_cbranch_scc0 L_orem')
    a('buffer_store_dwordx4 v[40:43], v30, s[40:43], s14 offen\nbuffer_store_dwordx4 v[44:47], v30, s[40:43], s14 offen offset:16')
    a('L_ost:')
    a('s_mov_b64 exec, -1')
    s.stamp(8)
    for k in range(4): a(f'buffer_load_dwordx4 v[{48+4*k}:{51+4*k}], v31, s[40:43], s15 offen offset:{(k>>1)*128+(k&1)*16} sc1')
    s.wait_flag(F_WO, 1)
    for ks in range(2):
        for T in range(4):
            for u in range(2):
                r = 64 + 16 * ks + 4 * T + 2 * u
                a(f'ds_read_b64_tr_b16 v[{r}:{r+1}], v{96+T} offset:{ks*4096+u*2048}')
    s.stamp(9)
    a('L_opoll:')
    a('s_waitcnt vmcnt(0)')
    a('v_xor_b32 v10, s44, v48\nv_bitop3_b32 v10, v55, s44, v10 bitop3:0xbe\nv_bitop3_b32 v10, v56, s44, v10 bitop3:0xbe\nv_bitop3_b32 v10, v63, s44, v10 bitop3:0xbe')
    a('v_cmp_ne_u32 vcc, 0, v10\ns_cbranch_vccz L_odone')
    a('s_mov_b64 exec, vcc')
    for k in range(4): a(f'buffer_load_dwordx4 v[{48+4*k}:{51+4*k}], v31, s[40:43], s15 offen offset:{(k>>1)*128+(k&1)*16} sc1')
    s.budget()
    a('s_branch L_opoll')
    a('L_orem:')
    a('buffer_store_dwordx4 v[40:43], v30, s[40:43], s14 offen sc1\nbuffer_store_dwordx4 v[44:47], v30, s[40:43], s14 offen offset:16 sc1')
    a('s_branch L_ost')
    a('L_odone:')
    a('s_mov_b64 exec, -1')
    s.stamp(10)
    a('s_waitcnt lgkmcnt(0)')
    for ks in range(2):
        for T in range(4):
            a(f'v_mfma_f32_16x16x32_bf16 v[{32+4*T}:{35+4*T}], v[{50+8*ks}:{53+8*ks}], v[{64+16*ks+4*T}:{67+16*ks+4*T}], {"0" if ks == 0 else f"v[{32+4*T}:{35+4*T}]"}')
    for T in range(4):
        a(f'v_add_f32 v{32+4*T}, v{32+4*T}, v{33+4*T}\nv_add_f32 v{34+4*T}, v{34+4*T}, v{35+4*T}\nv_add_f32 v{16+T}, v{32+4*T}, v{34+4*T}')
    a(f'ds_write_b128 v26, v[16:19] offset:{RED-PL}')
    a('s_waitcnt lgkmcnt(0)\ns_barrier')
    s.stamp(11)
    a('s_cmp_eq_u32 s7, 1\ns_cbranch_scc1 L_final\ns_cmp_lg_u32 s7, 0\ns_cbranch_scc1 L_end')
    for k in range(1, 4): a(f'ds_read_b128 v[{44+4*k}:{47+4*k}], v25 offset:{RED-PL+k*1024}')
    a(f's_lshl_b32 s10, s6, 5\ns_lshl_b32 s11, s3, 2\ns_add_u32 s10, s10, s11\ns_add_u32 s10, s10, s5\ns_lshl_b32 s10, s10, 10\ns_add_u32 s10, s10, {WS_S}')
    a('v_lshlrev_b32 v10, 4, v1\nv_mov_b32 v35, s44')
    a('s_waitcnt lgkmcnt(2)')
    for k in range(4): a(f'v_add_f32 v{16+k}, v{16+k}, v{48+k}')
    a('s_waitcnt lgkmcnt(0)')
    for k in range(4): a(f'v_add_f32 v{52+k}, v{52+k}, v{56+k}')
    for k in range(4): a(f'v_add_f32 v{16+k}, v{16+k}, v{52+k}')
    s.pack24(32, 16, 17, 18, 19)
    a('buffer_store_dwordx4 v[32:35], v10, s[40:43], s10 offen sc1')
    s.stamp(12)
    a('s_branch L_end')
    a('L_final:')
    a(f'v_lshlrev_b32 v10, 3, v1\nv_add_u32 v10, {GX}, v10\nds_read_b64 v[12:13], v10')
    a('v_lshrrev_b32 v10, 1, v1\nv_lshlrev_b32 v10, 10, v10\nv_and_b32 v11, 1, v1\nv_lshl_add_u32 v10, v11, 4, v10')
    a(f's_lshl_b32 s10, s3, 15\ns_lshl_b32 s11, s4, 5\ns_add_u32 s10, s10, s11\ns_add_u32 s10, s10, {WS_S}')
    s.unpack24_consts()
    s.srd_const(48, 4096); s.srd(48, 36, 0)
    a('v_lshlrev_b32 v14, 5, v2\nv_lshl_add_u32 v14, v11, 1, v14')
    a('s_lshl_b32 s11, s5, 10\ns_lshl_b32 s12, s3, 7\ns_add_u32 s11, s11, s12\ns_lshl_b32 s12, s6, 2\ns_add_u32 s11, s11, s12')
    fd = kw.get('fdelay', 8)
    if fd: a(f's_sleep {fd}')
    a('buffer_load_dwordx4 v[16:19], v10, s[40:43], s10 offen sc1')
    a(f's_sleep {kw.get("fgap", 5)}')
    a('L_fpoll:')
    a('buffer_load_dwordx4 v[20:23], v10, s[40:43], s10 offen sc1')
    s.budget()
    a('s_waitcnt vmcnt(1)\nv_cmp_ne_u32 vcc, s44, v19\ns_cbranch_vccz L_fdone')
    a('buffer_load_dwordx4 v[16:19], v10, s[40:43], s10 offen sc1')
    a('s_waitcnt vmcnt(1)\nv_cmp_ne_u32 vcc, s44, v23\ns_cbranch_vccnz L_fpoll')
    def finish(r):
        s.stamp(12)
        s.unpack24(r)
        s.reduce32(r)
        a('s_waitcnt lgkmcnt(0)')
        s.round_bf16(f'v{r}')
        a(f'v_mul_f32 v{r}, v{r}, v12')
        s.round_bf16(f'v{r}')
        a(f'v_add_f32 v{r}, v{r}, v13')
        a('s_mov_b32 exec_lo, 0x00030003\ns_mov_b32 exec_hi, 0x00030003')
        a(f'v_cvt_pk_bf16_f32 v{r}, v{r}, v{r}')
        a(f'buffer_store_short v{r}, v14, s[48:51], s11 offen')
    finish(20)
    a('s_branch L_epoch')
    a('L_fdone:')
    finish(16)
    a('L_epoch:')
    s.stamp(13)
    a('s_cmp_lg_u32 s2, 0\ns_cbranch_scc1 L_end')
    a('s_mov_b64 exec, 1\nv_mov_b32 v10, 0\nv_mov_b32 v11, s44\nbuffer_store_dword v11, v10, s[40:43], 0 offen sc1')
    a('s_branch L_end')

    a('L_P:')
    a('s_setprio 3')
    a(f'v_lshl_add_u32 v10, v1, 2, v8\nv_mov_b32 v11, 0\nds_write_b32 v10, v11')
    a('v_lshrrev_b32 v10, 2, v1\nv_lshlrev_b32 v10, 14, v10\nv_and_b32 v5, 3, v1\nv_lshl_add_u32 v10, v5, 7, v10')
    a(f's_lshl_b32 s10, s3, 16\ns_lshl_b32 s11, s4, 9\ns_add_u32 s10, s10, s11\ns_add_u32 s10, s10, {WS_O}\nv_add_u32 v10, s10, v10')
    a(f's_lshl_b32 s12, s3, 11\ns_lshl_b32 s11, s4, 6\ns_add_u32 s12, s12, s11\ns_add_u32 s12, s12, {WS_LSE}')
    a('v_mov_b32 v11, s12\nv_cmp_gt_u32 vcc, 16, v1\nv_cndmask_b32 v10, v11, v10, vcc')
    a('s_waitcnt lgkmcnt(0)')
    s.tag_setup()
    a('buffer_load_dword v7, v10, s[40:43], 0 offen')
    a('s_getreg_b32 s45, hwreg(HW_REG_XCC_ID, 0, 4)')
    a('s_barrier')
    a(f's_lshl_b32 s10, s3, 14\ns_lshl_b32 s11, s5, 12\ns_add_u32 s10, s10, s11\ns_add_u32 s10, s10, {WS_Q}')
    a('v_lshlrev_b32 v10, 4, v1')
    a(f'v_lshrrev_b32 v11, 5, v1\nv_mul_u32_u24 v11, {QS}, v11\nv_and_b32 v12, 31, v1\nv_lshl_add_u32 v11, v12, 3, v11\nv_add_u32 v11, {QL}, v11')
    a('v_lshlrev_b32 v12, 4, v12')
    a(f'v_lshlrev_b32 v13, 4, v5\nv_add_u32 v14, {MX}, v13')
    a('s_and_b32 s13, s12, 0xfffffe00')
    a('s_waitcnt lgkmcnt(0)')
    s.tag_finish()
    s.wait_flag(C_QP, 2, sleep=1)
    s.stamp(1)
    def qissue(k):
        for c in range(4): a(f'buffer_load_dwordx4 v[{32+16*k+4*c}:{35+16*k+4*c}], v10, s[40:43], s10 offen offset:{c*1024} sc1')
    for k in range(npq - 1):
        qissue(k); a(f's_sleep {gapq}')
    a('L_qpoll:')
    for k in range(npq):
        qissue((k + npq - 1) % npq)
        s.budget()
        r = 32 + 16 * k
        a(f's_waitcnt vmcnt({4*(npq-1)})')
        a(f'v_xor_b32 v15, s44, v{r+3}')
        for c in range(1, 4): a(f'v_bitop3_b32 v15, v{r+4*c+3}, s44, v15 bitop3:0xbe')
        a(f'v_cmp_ne_u32 vcc, 0, v15\ns_cbranch_vccz L_qgot{k}')
    a('s_branch L_qpoll')
    for k in range(npq):
        r = 32 + 16 * k
        a(f'L_qgot{k}:')
        for c in range(4): a(f'ds_write_b64 v11, v[{r+4*c}:{r+4*c+1}] offset:{((c>>1)*4+(c&1)*2)*QS}')
        a(f'v_xor_b32 v15, s45, v{r+2}')
        for c in range(1, 4): a(f'v_bitop3_b32 v15, v{r+4*c+2}, s45, v15 bitop3:0xbe')
        if k != npq - 1: a('s_branch L_qdone')
    a('L_qdone:')
    a('v_cmp_ne_u32 vcc, 0, v15\ns_cmp_eq_u64 vcc, 0\ns_cselect_b32 s47, 1, 2')
    if kw.get('force_remote'): a('s_mov_b32 s47, 2')
    a(f'v_mov_b32 v15, s47\nds_write_b32 v8, v15 offset:{F_Q}')
    s.stamp(2)
    a('v_mov_b32 v18, s44\nv_mov_b32 v19, s44')
    s.wait_flag(C_P, 4)
    a(f'ds_read_b128 v[20:23], v14\nds_read_b128 v[24:27], v14 offset:{LS-MX}\ns_waitcnt lgkmcnt(0)')
    a('v_max3_f32 v16, v20, v21, v22\nv_add_f32 v24, v24, v25\nv_add_f32 v26, v26, v27\nv_max_f32 v16, v16, v23\nv_add_f32 v17, v24, v26')
    a('s_mov_b64 exec, 15\ns_cmp_eq_u32 s47, 1\ns_cbranch_scc0 L_lrem')
    a('buffer_store_dwordx4 v[16:19], v13, s[40:43], s12 offen\ns_branch L_lst')
    a('L_lrem:\nbuffer_store_dwordx4 v[16:19], v13, s[40:43], s12 offen sc1')
    a('L_lst:\ns_mov_b64 exec, -1')
    s.stamp(3)
    LB = 96
    def lissue(k): a(f'buffer_load_dwordx4 v[{LB+4*k}:{LB+3+4*k}], v12, s[40:43], s13 offen sc1')
    for k in range(npl - 1):
        lissue(k); a(f's_sleep {gapl}')
    a('L_lpoll:')
    for k in range(npl):
        lissue((k + npl - 1) % npl)
        s.budget()
        a(f's_waitcnt vmcnt({npl-1})')
        a(f'v_mov_b32 v20, v{LB+4*k}\nv_mov_b32 v21, v{LB+4*k+1}\nv_cmp_ne_u32 vcc, s44, v{LB+4*k+3}')
        a('s_cbranch_vccz L_lgot' if k != npl - 1 else 's_cbranch_vccnz L_lpoll')
    a('L_lgot:')
    s.stamp(4)
    a('v_max_f32_dpp v22, v20, v20 row_ror:4 row_mask:0xf bank_mask:0xf')
    a('v_max_f32_dpp v22, v22, v22 row_ror:8 row_mask:0xf bank_mask:0xf')
    s.rows_allreduce('v_max_f32', 'v22', 'v23', both=False)
    a('v_sub_f32 v20, v20, v22\nv_sub_f32 v16, v16, v22\nv_exp_f32 v20, v20\nv_exp_f32 v16, v16\nv_mul_f32 v21, v21, v20')
    a('v_add_f32_dpp v21, v21, v21 row_ror:4 row_mask:0xf bank_mask:0xf')
    a('v_add_f32_dpp v21, v21, v21 row_ror:8 row_mask:0xf bank_mask:0xf')
    s.rows_allreduce('v_add_f32', 'v21', 'v23', both=False)
    a(f'v_rcp_f32 v21, v21\nv_lshlrev_b32 v13, 2, v5\nv_add_u32 v13, {FAC}, v13\nv_mul_f32 v16, v16, v21\nv_mov_b32 v15, 1')
    a(f'ds_write_b32 v13, v16\nds_write_b32 v8, v15 offset:{F_FAC}')
    s.stamp(5)
    a('s_branch L_end')

    a('L_M:')
    a('s_setprio 1')
    a('v_bfe_u32 v4, v1, 2, 2\nv_and_b32 v5, 3, v1')
    a('v_lshl_add_u32 v10, v4, 2, v2')
    a('v_cmp_gt_u32 s[56:57], 14, v10')
    a('s_mul_i32 s10, s5, 14\nv_add_u32 v10, s10, v10')
    a('v_lshlrev_b32 v11, 3, v10')
    a('v_lshlrev_b32 v10, 4, v10\nv_lshl_add_u32 v10, v5, 10, v10')
    a('s_mul_i32 s11, s3, 448')
    a('v_and_b32 v6, 1, v1\nv_lshlrev_b32 v12, 5, v2\nv_lshl_add_u32 v12, v6, 1, v12')
    a('s_lshl_b32 s12, s3, 7\ns_lshl_b32 s13, s6, 2\ns_add_u32 s12, s12, s13\ns_lshl_b32 s13, s5, 10\ns_add_u32 s13, s13, s12')
    s.srd_const(48, 3584); s.srd_const(60, 1024); s.srd_const(96, 4096)
    a('s_waitcnt lgkmcnt(0)')
    s.tag_setup()
    s.srd(48, 30, 0); s.srd(60, 34, 0); s.srd(96, 16, 0)
    a('buffer_load_dwordx2 v[14:15], v11, s[48:51], s11 offen')
    a('buffer_load_ushort v16, v12, s[60:63], s12 offen')
    a('buffer_load_ushort v17, v12, s[96:99], s13 offen')
    a('s_barrier')
    a(f's_lshl_b32 s10, s3, 14\ns_add_u32 s10, s10, {WS_H}\ns_add_u32 s11, s10, 4096\ns_add_u32 s12, s10, 8192\ns_add_u32 s13, s10, 12288')
    a(f'v_mul_u32_u24 v11, {HS}, v5\nv_lshl_add_u32 v11, v2, 4, v11\nv_lshrrev_b32 v12, 1, v4\nv_lshl_add_u32 v11, v12, 6, v11\nv_and_b32 v12, 1, v4\nv_lshl_add_u32 v11, v12, 3, v11\nv_add_u32 v11, {HL}, v11')
    a(f'v_mul_u32_u24 v12, {HS}, v4\nv_lshl_add_u32 v12, v2, 4, v12\nv_add_u32 v12, {HL}, v12')
    a('v_lshl_add_u32 v27, v2, 2, v4\nv_bfe_u32 v28, v27, 1, 2\nv_lshlrev_b32 v28, 5, v28\nv_lshl_add_u32 v28, v27, 7, v28\nv_lshl_add_u32 v28, v5, 3, v28')
    a(f'v_add_u32 v28, {W2}, v28\nv_xor_b32 v29, 32, v28\nv_xor_b32 v30, 64, v28\nv_xor_b32 v31, 96, v28')
    a('s_waitcnt lgkmcnt(0)')
    s.tag_finish()
    a('s_nop 0')
    s.pack24_consts(); s.unpack24_consts()
    s.wait_flag(C_HP, 2, sleep=1)
    a(f's_sleep {kw.get("hdelay", 8)}')
    s.stamp(1)
    a('s_mov_b64 exec, s[56:57]')
    a('L_hpoll:')
    for c in range(4): a(f'buffer_load_dwordx4 v[{32+4*c}:{35+4*c}], v10, s[40:43], s{10+c} offen sc1')
    s.budget()
    a('s_waitcnt vmcnt(0)')
    a('v_xor_b32 v13, s44, v35')
    for c in range(1, 4): a(f'v_bitop3_b32 v13, v{35+4*c}, s44, v13 bitop3:0xbe')
    a('v_cmp_ne_u32 vcc, 0, v13\ns_cbranch_vccnz L_hpoll')
    s.stamp(2)
    for c in range(4): s.unpack24(32 + 4 * c)
    for k in range(4): a(f'v_add_f32 v{32+k}, v{32+k}, v{36+k}\nv_add_f32 v{40+k}, v{40+k}, v{44+k}')
    for k in range(4): a(f'v_add_f32 v{32+k}, v{32+k}, v{40+k}')
    a('v_cvt_pk_bf16_f32 v36, v32, v33\nv_cvt_pk_bf16_f32 v37, v34, v35')
    for k in range(2):
        a(f'v_lshlrev_b32 v{32+2*k}, 16, v{36+k}\nv_and_b32 v{33+2*k}, 0xffff0000, v{36+k}\nv_lshlrev_b32 v{40+2*k}, 16, v{14+k}\nv_and_b32 v{41+2*k}, 0xffff0000, v{14+k}')
    for k in range(4): a(f'v_add_f32 v{32+k}, v{32+k}, v{40+k}')
    a('v_cvt_pk_bf16_f32 v36, v32, v33\nv_cvt_pk_bf16_f32 v37, v34, v35')
    for k in range(2): a(f'v_lshlrev_b32 v{32+2*k}, 16, v{36+k}\nv_and_b32 v{33+2*k}, 0xffff0000, v{36+k}')
    K1 = -2 * math.sqrt(2 / math.pi) * math.log2(math.e)
    a(f'v_mov_b32 v44, {hex(f2u(K1))}')
    for k in range(4): a(f'v_mul_f32 v{36+k}, v{32+k}, v{32+k}')
    for k in range(4): a(f'v_fmamk_f32 v{36+k}, v{36+k}, {hex(f2u(K1*0.044715))}, v44')
    for k in range(4): a(f'v_mul_f32 v{36+k}, v{36+k}, v{32+k}')
    for k in range(4): a(f'v_exp_f32 v{36+k}, v{36+k}')
    for k in range(4): a(f'v_add_f32 v{36+k}, 1.0, v{36+k}')
    for k in range(4): a(f'v_rcp_f32 v{36+k}, v{36+k}')
    for k in range(4): a(f'v_mul_f32 v{32+k}, v{32+k}, v{36+k}')
    a('s_mov_b64 exec, -1\nv_mov_b32 v40, 0\nv_mov_b32 v41, 0\ns_mov_b64 exec, s[56:57]')
    a('v_cvt_pk_bf16_f32 v40, v32, v33\nv_cvt_pk_bf16_f32 v41, v34, v35')
    a('s_mov_b64 exec, -1')
    a('ds_write_b64 v11, v[40:41]\nds_read_b128 v[48:51], v12\nds_read_b128 v[52:55], v12 offset:64')
    a(f's_lshl_b32 s10, s6, 5\ns_lshl_b32 s11, s3, 2\ns_add_u32 s10, s10, s11\ns_add_u32 s10, s10, s5\ns_lshl_b32 s10, s10, 10\ns_add_u32 s10, s10, {WS_M}')
    a(f's_lshl_b32 s11, s3, 15\ns_lshl_b32 s12, s4, 5\ns_add_u32 s11, s11, s12\ns_add_u32 s11, s11, {WS_M}')
    a('v_lshlrev_b32 v10, 4, v1\nv_lshrrev_b32 v11, 1, v1\nv_lshlrev_b32 v11, 10, v11\nv_lshl_add_u32 v11, v6, 4, v11\nv_mov_b32 v23, s44')
    s.wait_flag(F_W2, 1, sleep=1)
    for ks in range(2):
        for T in range(4):
            for u in range(2):
                r = 64 + 16 * ks + 4 * T + 2 * u
                a(f'ds_read_b64_tr_b16 v[{r}:{r+1}], v{28+T} offset:{ks*4096+u*2048}')
    a('s_waitcnt lgkmcnt(0)')
    for ks in range(2):
        for T in range(4):
            a(f'v_mfma_f32_16x16x32_bf16 v[{32+4*T}:{35+4*T}], v[{48+4*ks}:{51+4*ks}], v[{64+16*ks+4*T}:{67+16*ks+4*T}], {"0" if ks == 0 else f"v[{32+4*T}:{35+4*T}]"}')
    s.pack24(20, 32, 36, 40, 44)
    a('buffer_store_dwordx4 v[20:23], v10, s[40:43], s10 offen sc1')
    s.stamp(3)
    a(f'v_lshlrev_b32 v12, 3, v1\nv_add_u32 v12, {GX}, v12\nv_lshlrev_b32 v16, 16, v16\nv_lshlrev_b32 v17, 16, v17')
    a(f's_sleep {kw.get("mdelay", 8)}')
    a('L_mpoll:')
    a('buffer_load_dwordx4 v[32:35], v11, s[40:43], s11 offen sc1')
    s.budget()
    a('s_waitcnt vmcnt(0)\nv_cmp_ne_u32 vcc, s44, v35\ns_cbranch_vccnz L_mpoll')
    s.stamp(4)
    s.unpack24(32)
    s.reduce32(32)
    s.round_bf16('v32')
    a('v_add_f32 v32, v32, v16')
    s.round_bf16('v32')
    a(f'v_mul_f32 v33, {hex(f2u(-math.log2(math.e)))}, v32\nv_exp_f32 v33, v33\nv_add_f32 v33, 1.0, v33\nv_rcp_f32 v33, v33\nv_mul_f32 v16, v32, v33')
    s.round_bf16('v16')
    a('ds_write_b64 v12, v[16:17]')
    s.stamp(5)
    a('L_end:')
    if kw.get('probe'):
        pw, pst, pm, pb = kw['probe']
        a(f's_waitcnt lgkmcnt(0)\ns_cmp_lg_u32 s7, {pw}\ns_cbranch_scc1 L_exit')
        if pw >= 4:
            a('s_barrier')
        a(f's_sub_u32 s10, s{64+2*pst}, s64\ns_mul_i32 s10, s10, {pm}\ns_add_u32 s10, s10, {pb}\ns_min_u32 s10, s10, 20000')
        a('L_padloop:\ns_memrealtime s[12:13]\ns_waitcnt lgkmcnt(0)\ns_sub_u32 s11, s12, s64\ns_cmp_lt_u32 s11, s10\ns_cbranch_scc1 L_padloop')
    s.dump_stamps()
    a('L_exit:')
    a('s_endpgm')
    lines, added = hazard.fix(s.o, verbose=kw.get('verbose', False))
    return wrap('\n'.join(lines) + '\n', 256, 448, LDS_TOTAL, 128)

if __name__ == '__main__':
    import ast
    out = sys.argv[1]
    kw = {}
    for x in sys.argv[2:]:
        k, v = x.split('=')
        try: kw[k] = ast.literal_eval(v)
        except Exception: kw[k] = v
    open(out, 'w').write(gen(**kw))
```

```python
import sys, math, struct
sys.path.insert(0, 'dev')
from common import *
import hazard

def f2u(x):
    return struct.unpack('<I', struct.pack('<f', x))[0]

NW = 7
FL = 0
WA, W1, KB, W2, VB, WO = [2048 + x for x in (0, 16384, 24576, 57344, 65536, 98304)]
XN = 2048 + 114688; XS = 1088
YL = XN + 4 * XS
QL = YL + 4 * XS
assert QL % 256 == 0
PL = QL + 4096
RED = PL + 4096
HL = RED + 4096; HS = 144
MX = HL + 640
WT = MX + 64
GX = WT + 128
LDS_TOTAL = GX + 512
C_WA, C_G, C_XN, F_Q, C_MX, C_P, F_WT, C_QP, C_Y = [4 * i for i in range(9)]

WS_Q = 0x1000
WS_H = WS_Q + 0x40000
WS_SLOW = 0x80000
WS_LSE = WS_Q + 2 * WS_SLOW
WS_O = WS_LSE + 0x4000
WS_M = WS_O + 0x80000
WS_S = WS_M + 0x40000
WS_END = WS_S + 0x40000
STAMP = 0x8000000

class G:
    def __init__(s, **kw):
        s.o = []
        s.nl = 0
        s.kw = kw
        s.stamps = kw.get('stamps', False)
    def a(s, t):
        for l in t.split('\n'):
            l = l.strip()
            if l: s.o.append(l)
    def lab(s, p='L'):
        s.nl += 1
        return f'{p}_{s.nl}'
    def stamp(s, i):
        pr = s.kw.get('probe')
        only = s.kw.get('only')
        if (s.stamps and (only is None or i in only or i == 0)) or (pr and i in (0, pr[1])):
            s.a(f's_memrealtime s[{64+2*i}:{65+2*i}]')
    def budget(s):
        s.a('s_sub_u32 s46, s46, 1\ns_cbranch_scc1 L_end')
    def wait_flag(s, off, n, extra=None, sleep=0, vt='v9'):
        L = s.lab('W')
        if sleep:
            L2 = s.lab('W')
            s.a(f's_branch {L2}\n{L}:\ns_sleep {sleep}\n{L2}:')
        else:
            s.a(f'{L}:')
        s.a(f'ds_read_b32 {vt}, v8 offset:{off}')
        ne = 0
        if extra:
            for e in extra: s.a(e)
            ne = len(extra)
        s.budget()
        s.a(f's_waitcnt lgkmcnt({0 if s.stamps or s.kw.get("probe") else min(ne, 15)})')
        s.a(f'v_cmp_gt_u32 vcc, {n}, {vt}')
        s.a(f's_cbranch_vccnz {L}')
    def signal(s, off):
        s.a(f's_mov_b64 exec, 1\nds_add_u32 v8, v6 offset:{off}\ns_mov_b64 exec, -1')
    def srd(s, d, p):
        s.a(f's_mov_b32 s{d}, s{p}\ns_mov_b32 s{d+1}, s{p+1}')
    def srd_const(s, d, n):
        s.a(f's_mov_b32 s{d+2}, {n}\ns_mov_b32 s{d+3}, 0x20000')
    def wave_sum(s, v, sd):
        for m in ('quad_perm:[1,0,3,2]', 'quad_perm:[2,3,0,1]', 'row_half_mirror', 'row_mirror'):
            s.a(f'v_add_f32_dpp {v}, {v}, {v} {m} row_mask:0xf bank_mask:0xf')
        s.a(f'v_add_f32_dpp {v}, {v}, {v} row_bcast:15 row_mask:0xa bank_mask:0xf')
        s.a(f'v_add_f32_dpp {v}, {v}, {v} row_bcast:31 row_mask:0xc bank_mask:0xf')
        s.a(f'v_readlane_b32 {sd}, {v}, 63')
    def rows_allreduce(s, op, v, t):
        s.a(f'v_mov_b32 {t}, {v}\nv_permlane16_swap_b32 {t}, {v}\n{op} {v}, {t}, {v}')
        s.a(f'v_mov_b32 {t}, {v}\nv_permlane32_swap_b32 {t}, {v}\n{op} {v}, {t}, {v}')
    def layernorm(s, src, f, t):
        P = lambda r: f'v[{r}:{r+1}]'
        for k in range(4):
            s.a(f'v_lshlrev_b32 v{f+2*k}, 16, v{src+k}\nv_and_b32 v{f+2*k+1}, s55, v{src+k}')
        s.a(f'v_pk_add_f32 {P(t)}, {P(f)}, {P(f+2)}\nv_pk_add_f32 {P(t+2)}, {P(f+4)}, {P(f+6)}\nv_pk_add_f32 {P(t)}, {P(t)}, {P(t+2)}\nv_add_f32 v{t}, v{t}, v{t+1}')
        s.wave_sum(f'v{t}', 's10')
        s.a(f'v_mov_b32 v{src+3}, {hex(f2u(1/512))}')
        s.a(f'v_mul_f32 v{src}, s10, v{src+3}')
        for k in range(4):
            s.a(f'v_pk_add_f32 {P(t+2*k)}, {P(f+2*k)}, {P(src)} op_sel_hi:[1,0] neg_lo:[0,1] neg_hi:[0,1]')
        s.a(f'v_pk_mul_f32 {P(t)}, {P(t)}, {P(t)}')
        for k in range(1, 4):
            s.a(f'v_pk_fma_f32 {P(t)}, {P(t+2*k)}, {P(t+2*k)}, {P(t)}')
        s.a(f'v_add_f32 v{t}, v{t}, v{t+1}')
        s.a(f'v_cvt_pk_bf16_f32 v{src}, v{src}, v{src}\nv_lshlrev_b32 v{src}, 16, v{src}')
        ms = ['quad_perm:[1,0,3,2] row_mask:0xf', 'quad_perm:[2,3,0,1] row_mask:0xf', 'row_half_mirror row_mask:0xf', 'row_mirror row_mask:0xf', 'row_bcast:15 row_mask:0xa', 'row_bcast:31 row_mask:0xc']
        fill = [f'v_pk_add_f32 {P(f+2*k)}, {P(f+2*k)}, {P(src)} op_sel_hi:[1,0] neg_lo:[0,1] neg_hi:[0,1]' for k in range(4)]
        fill += [f'v_cvt_pk_bf16_f32 v{t+2+k}, v{f+2*k}, v{f+2*k+1}' for k in range(4)]
        for k in range(4): fill += [f'v_lshlrev_b32 v{f+2*k}, 16, v{t+2+k}', f'v_and_b32 v{f+2*k+1}, s55, v{t+2+k}']
        for m in ms:
            s.a(f'v_add_f32_dpp v{t}, v{t}, v{t} {m} bank_mask:0xf')
            s.a(fill.pop(0)); s.a(fill.pop(0))
        s.a(f'v_readlane_b32 s10, v{t}, 63')
        s.a(fill.pop(0)); s.a(fill.pop(0))
        s.a(f'v_mul_f32 v{src}, s10, v{src+3}')
        s.a(f'v_cvt_pk_bf16_f32 v{src}, v{src}, v{src}\nv_lshlrev_b32 v{src}, 16, v{src}')
        s.a(f'v_add_f32 v{src}, {hex(f2u(1e-5))}, v{src}')
        s.a(f'v_cvt_pk_bf16_f32 v{src}, v{src}, v{src}\nv_lshlrev_b32 v{src}, 16, v{src}')
        s.a(f'v_sqrt_f32 v{src}, v{src}')
        s.a(fill.pop(0))
        s.a(f'v_cvt_pk_bf16_f32 v{src}, v{src}, v{src}\nv_lshlrev_b32 v{src}, 16, v{src}')
        s.a(f'v_rcp_f32 v{src}, v{src}')
        s.a(fill.pop(0))
        assert not fill
        for k in range(4):
            s.a(f'v_pk_mul_f32 {P(f+2*k)}, {P(f+2*k)}, {P(src)} op_sel_hi:[1,0]')
        for k in range(4):
            s.a(f'v_cvt_pk_bf16_f32 v{src+k}, v{f+2*k}, v{f+2*k+1}')
    def round_bf16(s, v):
        s.a(f'v_cvt_pk_bf16_f32 {v}, {v}, {v}\nv_lshlrev_b32 {v}, 16, {v}')
    def tag_finish(s):
        s.a('s_mul_i32 s44, s44, 0x2c9277b5\ns_add_u32 s44, s44, 0xac564b05')
    def pack24(s, d, a, b, c, e):
        s.a(f'v_perm_b32 v{d}, v{a}, v{e}, s50\nv_perm_b32 v{d+1}, v{b}, v{e}, s51\nv_perm_b32 v{d+2}, v{c}, v{e}, s52')
    def pack24_consts(s):
        s.a('s_mov_b32 s50, 0x07060503\ns_mov_b32 s51, 0x07060502\ns_mov_b32 s52, 0x07060501')
    def unpack24(s, r):
        s.a(f'v_perm_b32 v{r+3}, v{r}, v{r+1}, s53\nv_perm_b32 v{r+3}, v{r+3}, v{r+2}, s54')
    def unpack24_consts(s):
        s.a('s_mov_b32 s53, 0x04000c0c\ns_mov_b32 s54, 0x0706000c')
    def reduce32(s, r):
        s.a(f'v_permlane32_swap_b32 v{r}, v{r+2}\nv_permlane32_swap_b32 v{r+1}, v{r+3}')
        s.a(f'v_add_f32 v{r}, v{r}, v{r+2}\nv_add_f32 v{r+1}, v{r+1}, v{r+3}')
        s.a(f'v_permlane16_swap_b32 v{r}, v{r+1}\nv_add_f32 v{r}, v{r}, v{r+1}')
        for m in ('row_ror:8', 'row_ror:4', 'row_ror:2'):
            s.a(f'v_add_f32_dpp v{r}, v{r}, v{r} {m} row_mask:0xf bank_mask:0xf')
    def mfma(s, d, A, B, first):
        s.a(f'v_mfma_f32_16x16x32_bf16 v[{d}:{d+3}], v[{A}:{A+3}], v[{B}:{B+3}], {"0" if first else f"v[{d}:{d+3}]"}')
    def dump_stamps(s, nst=16):
        if not s.stamps: return
        s.a('s_waitcnt lgkmcnt(0)\ns_mov_b64 exec, -1\nv_mov_b32 v10, 0')
        for i in range(nst):
            s.a(f'v_writelane_b32 v10, s{64+2*i}, {i}')
        s.a(f's_mul_i32 s10, s2, {NW*64}\ns_lshl_b32 s11, s7, 6\ns_add_u32 s10, s10, s11\ns_add_u32 s10, s10, {STAMP}')
        s.a('v_lshlrev_b32 v11, 2, v1\ns_mov_b64 exec, 0xffff\nbuffer_store_dword v10, v11, s[40:43], s10 offen')

def gen(**kw):
    s = G(**kw)
    a = s.a
    depth = kw.get('depth', 20)
    NT = kw.get('nt', 'nt')
    npq = kw.get('npq', 2); gapq = kw.get('gapq', 12); q0 = kw.get('q0', 4)
    npl = kw.get('npl', 4); gapl = kw.get('gapl', 6)
    CSC = math.log2(math.e) / math.sqrt(128)
    ONE2 = 0x3f803f80
    def common():
        if s.stamps:
            for i in range(1, 16): a(f's_mov_b32 s{64+2*i}, 0')
        a('v_and_b32 v1, 63, v0\ns_lshr_b32 s5, s4, 3\ns_and_b32 s6, s4, 7')
        a(f's_mov_b32 s42, {STAMP + 0x100000 if s.stamps else WS_END}\ns_mov_b32 s43, 0x20000')
        a(f's_mov_b32 s46, {kw.get("budget", 400000)}')
        a('v_mov_b32 v6, 1')
        a('v_lshrrev_b32 v2, 4, v1\nv_and_b32 v3, 15, v1')
    s.stamp(0)
    a('s_load_dwordx16 s[16:31], s[0:1], 0\ns_load_dwordx8 s[32:39], s[0:1], 64\ns_load_dwordx2 s[40:41], s[0:1], 96')
    a('s_lshr_b32 s4, s2, 3\ns_cmp_ge_u32 s4, 32\ns_cbranch_scc1 L_exit')
    a('v_lshrrev_b32 v2, 6, v0\nv_bfe_u32 v4, v0, 3, 3')
    a('v_lshlrev_b32 v9, 2, v0\nv_mov_b32 v8, 0\nds_write_b32 v9, v8')
    if kw.get('prefetch', True):
        a('s_getpc_b64 s[8:9]\nL_pc:')
        a('v_lshlrev_b32 v3, 7, v0\nv_min_u32 v3, L_exit-L_pc, v3\nglobal_load_dword v7, v3, s[8:9]')
    a('v_readfirstlane_b32 s7, v2')
    a('v_and_b32 v5, 6, v4\nv_xor_b32 v5, v5, v0\nv_and_b32 v5, 7, v5\nv_lshlrev_b32 v5, 4, v5')
    a('s_and_b32 s3, s2, 7\ns_cmp_ge_u32 s7, 4\ns_cbranch_scc1 L_roles')
    a('s_mov_b32 s51, 0x20000\nv_lshlrev_b32 v11, 4, v0')
    a('s_lshr_b32 s10, s4, 3\ns_lshl2_add_u32 s10, s10, s7\ns_lshl_b32 s10, s10, 18\ns_and_b32 s11, s4, 7\ns_lshl3_add_u32 s11, s3, s11\ns_lshl_b32 s11, s11, 7\ns_add_u32 s10, s10, s11')
    a(f's_bfm_b32 s50, 1, 22\ns_movk_i32 s12, 0x7e00\ns_lshl_b32 s12, s12, 1\nv_lshl_add_u32 v10, v4, 13, v5\ns_lshl_b32 m0, s7, 12\ns_addk_i32 m0, {WA}')
    a('s_waitcnt lgkmcnt(0)')
    a('s_mov_b32 s48, s22\ns_mov_b32 s49, s23')
    a('global_load_dwordx4 v[12:15], v11, s[16:17]')
    for r in range(4):
        a(f'buffer_load_dwordx4 v10, s[48:51], s10 offen offset:{r*1024} {NT} lds')
        if r < 3: a('s_add_u32 s10, s10, s12')
    a('s_barrier\ns_branch L_C')
    a('L_roles:')
    common()
    a('s_cmp_eq_u32 s7, 4\ns_cbranch_scc1 L_P\ns_cmp_eq_u32 s7, 5\ns_cbranch_scc1 L_M')
    a('v_mul_u32_u24 v32, 3584, v4\nv_add_u32 v32, v32, v5')
    for r in range(1, 4): a(f'v_add_u32 v{32+r}, {r*(8*3584-1024)}, v32')
    a('v_xor_b32 v14, v3, v2\nv_lshlrev_b32 v14, 4, v14\nv_lshl_add_u32 v18, v2, 8, v14')
    for r in range(1, 4): a(f'v_xor_b32 v{18+r}, {r*64}, v18\nv_add_u32 v{18+r}, {r*7168}, v{18+r}')
    a(f's_lshl3_add_u32 s10, s5, s3\ns_cmp_lt_u32 s10, 28\ns_cselect_b32 s58, {512*3584}, 0\ns_mov_b32 s59, 0x20000')
    a(f's_mul_i32 s12, s6, {64*3584}\ns_lshl_b32 s11, s10, 7\ns_add_u32 s12, s12, s11')
    a(f's_lshl_b32 s13, s5, 23\ns_lshl_b32 s11, s3, 20\ns_add_u32 s13, s13, s11\ns_lshl_b32 s11, s6, 10\ns_add_u32 s13, s13, s11\ns_add_u32 s13, s13, {3072*256}')
    a(f's_mov_b32 m0, {W1}\ns_mov_b32 s14, {32*3584}')
    a('s_waitcnt lgkmcnt(0)')
    s.stamp(1)
    s.srd(56, 28)
    a('s_barrier')
    if kw.get('kdelay'): a(f's_sleep {kw["kdelay"]}')
    dg = depth // 4
    def group(vr):
        for r in range(4):
            a(f'buffer_load_dwordx4 v{vr+r}, s[56:59], s12 offen offset:{r*1024} {NT} lds')
        a('s_addk_i32 m0, 4096\ns_add_u32 s12, s12, s14')
    def seg(vr, n, wait=True):
        L = s.lab('S')
        a(f's_mov_b32 s15, {n-1}\n{L}:')
        if wait: a(f's_waitcnt vmcnt({depth-4})\nds_write_b32 v8, v30 offset:{C_G}')
        group(vr)
        if wait: a('v_add_u32 v30, 1, v30')
        a(f's_sub_u32 s15, s15, 1\ns_cbranch_scc0 {L}')
    seg(32, 2, False)
    s.srd(56, 18)
    a('s_bfm_b32 s58, 1, 25\ns_mov_b32 s12, s13\ns_mov_b32 s14, 32768')
    seg(18, dg - 2, False)
    a('v_lshlrev_b32 v14, 1, v2\nv_xor_b32 v14, v3, v14\nv_lshlrev_b32 v14, 4, v14\nv_lshl_add_u32 v22, v2, 8, v14')
    a(f'v_xor_b32 v23, 128, v22\nv_add_u32 v24, {2*7168}, v22\nv_add_u32 v25, {3*7168}, v23\nv_add_u32 v23, 7168, v23')
    a('v_lshl_add_u32 v26, v4, 10, v5')
    for r in range(1, 4): a(f'v_add_u32 v{26+r}, {r*7168}, v26')
    a('v_mov_b32 v30, 1')
    s.stamp(2)
    seg(18, 10 - dg)
    s.srd(56, 32)
    a(f's_mov_b32 s58, {1792*1024}\ns_lshl_b32 s12, s10, 16\ns_lshl_b32 s11, s6, 7\ns_add_u32 s12, s12, s11')
    seg(26, 2)
    s.srd(56, 20)
    a('s_bfm_b32 s58, 1, 25\ns_mov_b32 s12, s13')
    seg(22, 8)
    s.srd(56, 24)
    a(f's_bfm_b32 s58, 1, 22\ns_lshl2_add_u32 s12, s3, s5\ns_lshl_b32 s12, s12, 17\ns_add_u32 s12, s12, s11')
    seg(26, 4)
    for k in range(dg):
        a(f's_waitcnt vmcnt({depth-4-4*k})\nds_write_b32 v8, v30 offset:{C_G}')
        if k == dg - 5: s.stamp(6)
        if k < dg - 1: a('v_add_u32 v30, 1, v30')
    s.stamp(7)
    a('s_branch L_end')

    a('L_C:')
    a('s_load_dword s44, s[40:41], 0')
    a('s_setprio 2')
    common()
    s.stamp(1)
    a('v_bfe_u32 v4, v1, 2, 2\nv_and_b32 v5, 3, v1')
    a(f's_mul_i32 s11, s7, {XS}\ns_add_u32 s11, s11, {XN}')
    a('v_lshrrev_b32 v10, 2, v1\nv_lshlrev_b32 v10, 6, v10\nv_and_b32 v11, 1, v1\nv_lshl_add_u32 v10, v11, 5, v10\nv_and_b32 v11, 2, v1\nv_lshl_add_u32 v10, v11, 2, v10\nv_add_u32 v11, s11, v10')
    a('s_mov_b32 s55, 0xffff0000')
    a('v_lshl_add_u32 v27, v2, 2, v4\nv_bfe_u32 v96, v27, 1, 2\nv_lshlrev_b32 v96, 5, v96\nv_lshl_add_u32 v96, v27, 7, v96\nv_lshl_add_u32 v96, v5, 3, v96')
    a('s_lshl_b32 s12, s7, 5\nv_xor_b32 v10, s12, v96')
    a('s_getreg_b32 s45, hwreg(HW_REG_XCC_ID, 0, 4)')
    a('s_mov_b32 s13, 1')
    a('s_waitcnt vmcnt(4) lgkmcnt(0)')
    s.stamp(2)
    s.tag_finish()
    s.layernorm(12, 16, 32)
    a('ds_write2_b64 v11, v[12:13], v[14:15] offset1:2')
    s.signal(C_XN)
    s.stamp(3)
    a(f'v_mul_u32_u24 v24, {XS}, v5\nv_lshl_add_u32 v24, v2, 4, v24')
    a(f's_lshl_b32 s10, s5, 8\ns_add_u32 s10, s10, {XN}\nv_add_u32 v25, s10, v24')
    a(f's_lshl_b32 s14, s3, 15\ns_lshl1_add_u32 s14, s12, s14\ns_lshl_b32 s13, s4, 8\ns_add_u32 s56, s14, s13\ns_add_u32 s56, s56, {WS_Q}\ns_add_u32 s57, s56, {WS_SLOW}')
    a('v_lshlrev_b32 v26, 13, v3\nv_lshl_add_u32 v26, v2, 4, v26')
    a('v_mov_b32 v30, s45\nv_mov_b32 v31, s44')
    s.wait_flag(C_XN, 4, extra=[f'ds_read_b128 v[{64+4*t}:{67+4*t}], v25 offset:{t*64}' for t in range(4)])
    a('s_waitcnt vmcnt(0)')
    if kw.get('st_tile'): s.stamp(5)
    s.signal(C_WA)
    s.wait_flag(C_WA, 4, extra=[f'ds_read_b64_tr_b16 v[{40+2*t}:{41+2*t}], v10 offset:{WA+t*2048}' for t in range(8)])
    for t in range(4):
        a(f's_waitcnt lgkmcnt({6-2*t})')
        s.mfma(16, 40 + 4 * t, 64 + 4 * t, t == 0)
    a('s_mov_b32 exec_lo, 0x000f000f\ns_mov_b32 exec_hi, 0x000f000f')
    a('v_cvt_pk_bf16_f32 v28, v16, v17\nv_cvt_pk_bf16_f32 v29, v18, v19')
    a('buffer_store_dwordx4 v[28:31], v26, s[40:43], s56 offen\nbuffer_store_dwordx4 v[28:31], v26, s[40:43], s57 offen sc1')
    s.signal(C_QP)
    s.stamp(4)
    s.layernorm(12, 16, 32)
    a(f'v_add_u32 v11, {YL-XN}, v11\nds_write2_b64 v11, v[12:13], v[14:15] offset1:2')
    s.signal(C_Y)
    a(f's_lshl_b32 s10, s6, 7\ns_add_u32 s10, s10, {YL}\nv_add_u32 v25, s10, v24')
    a(f's_lshl2_add_u32 s56, s13, s14\ns_add_u32 s56, s56, {WS_H}\ns_add_u32 s57, s56, {WS_SLOW}')
    a('v_lshlrev_b32 v26, 8, v3\nv_lshl_add_u32 v26, v2, 4, v26')
    s.pack24_consts()
    s.wait_flag(C_Y, 4, extra=[f'ds_read_b128 v[{64+4*t}:{67+4*t}], v25 offset:{t*64}' for t in range(2)])
    s.wait_flag(C_G, 2, extra=[f'ds_read_b64_tr_b16 v[{40+2*t}:{41+2*t}], v10 offset:{W1+t*2048}' for t in range(4)], sleep=1)
    for t in range(2):
        a(f's_waitcnt lgkmcnt({2-2*t})')
        s.mfma(16, 40 + 4 * t, 64 + 4 * t, t == 0)
    a('s_mov_b32 exec_lo, 0x000f000f\ns_mov_b32 exec_hi, 0x000f000f')
    s.pack24(28, 16, 17, 18, 19)
    a('buffer_store_dwordx4 v[28:31], v26, s[40:43], s56 offen\nbuffer_store_dwordx4 v[28:31], v26, s[40:43], s57 offen sc1')
    a('s_mov_b64 exec, -1')
    a(f's_lshl_b32 s10, s7, 13\ns_add_u32 s10, s10, {KB}')
    a(f'v_xor_b32 v10, v2, v3\nv_lshlrev_b32 v10, 4, v10\nv_lshl_add_u32 v10, v3, 8, v10\nv_add_u32 v102, {QL}, v10\nv_add_u32 v10, s10, v10')
    a('v_xor_b32 v103, 64, v102\nv_xor_b32 v104, 128, v102\nv_xor_b32 v105, 192, v102')
    a('v_xor_b32 v11, 64, v10\nv_xor_b32 v12, 128, v10\nv_xor_b32 v13, 192, v10')
    a(f's_lshl_b32 s10, s7, 2\ns_add_u32 s10, s10, {MX}\nv_lshlrev_b32 v15, 4, v5\nv_add_u32 v24, s10, v15\nv_add_u32 v15, {MX}, v15')
    a(f's_lshl_b32 s10, s7, 10\ns_add_u32 s10, s10, {PL}\nv_lshlrev_b32 v25, 4, v1\nv_add_u32 v26, s10, v25\nv_add_u32 v25, {PL}, v25')
    a('v_and_b32 v28, 7, v27\ns_lshl_b32 s10, s7, 1\nv_xor_b32 v28, s10, v28\nv_lshlrev_b32 v28, 5, v28\nv_lshl_add_u32 v28, v27, 8, v28\nv_lshl_add_u32 v28, v5, 3, v28')
    a(f'v_add_u32 v28, {VB}, v28\nv_xor_b32 v29, 32, v28')
    a(f's_lshr_b32 s10, s7, 1\ns_lshl_b32 s11, s10, 13\ns_add_u32 s11, s11, {WO}')
    a('v_add_u32 v96, s11, v96\nv_xor_b32 v97, 32, v96\nv_xor_b32 v98, 64, v96\nv_xor_b32 v99, 96, v96')
    a('v_lshlrev_b32 v30, 14, v3\nv_lshl_add_u32 v30, v2, 5, v30')
    a(f's_lshl_b32 s14, s3, 16\ns_add_u32 s14, s14, {WS_O}\ns_lshl_b32 s11, s4, 9\ns_lshl_b32 s12, s7, 7\ns_add_u32 s11, s11, s12')
    a('v_lshlrev_b32 v31, 12, v4\nv_lshl_add_u32 v31, v5, 9, v31\nv_lshl_add_u32 v31, v2, 5, v31')
    a('s_lshl_b32 s15, s5, 14\ns_add_u32 s15, s15, s14\ns_lshl_b32 s10, s10, 8\ns_add_u32 s15, s15, s10\ns_and_b32 s10, s7, 1\ns_lshl_b32 s12, s10, 11\ns_add_u32 s15, s15, s12')
    a('s_add_u32 s14, s14, s11')
    a(f's_lshl_b32 s10, s10, 4\ns_add_u32 s10, s10, {WT}\nv_lshlrev_b32 v100, 5, v2\nv_add_u32 v100, s10, v100')
    a(f's_lshl_b32 s56, s3, 11\ns_lshl4_add_u32 s56, s4, s56\ns_add_u32 s56, s56, {WS_LSE}\nv_lshlrev_b32 v101, 9, v1')
    a(f's_mov_b32 s13, {hex(f2u(CSC))}')
    a('s_lshl1_add_u32 s57, s7, 4')
    s.wait_flag(C_G, 's57', sleep=1)
    for u in range(2):
        for t in range(4):
            a(f'ds_read_b128 v[{32+16*u+4*t}:{35+16*u+4*t}], v{10+t} offset:{u*4096}')
    if not kw.get('st_tile'): s.stamp(5)
    s.wait_flag(F_Q, 1, extra=[f'ds_read_b128 v[{64+4*t}:{67+4*t}], v{102+t}' for t in range(4)])
    s.stamp(6)
    a('v_readfirstlane_b32 s47, v9')
    for t in range(4):
        a(f's_waitcnt lgkmcnt({3-t})')
        for u in range(2): s.mfma(16 + 4 * u, 32 + 16 * u + 4 * t, 64 + 4 * t, t == 0)
    for k in range(8): a(f'v_add_f32_dpp v{16+k}, v{16+k}, v{16+k} row_ror:4 row_mask:0xf bank_mask:0xf')
    for k in range(8): a(f'v_add_f32_dpp v{16+k}, v{16+k}, v{16+k} row_ror:8 row_mask:0xf bank_mask:0xf')
    a('v_max3_f32 v10, v16, v17, v18\nv_max3_f32 v11, v19, v20, v21\nv_max3_f32 v10, v10, v22, v23\nv_max_f32 v10, v10, v11')
    s.rows_allreduce('v_max_f32', 'v10', 'v11')
    a('ds_write_b32 v24, v10')
    s.signal(C_MX)
    s.wait_flag(C_MX, 4, extra=['ds_read_b128 v[32:35], v15'])
    a('s_waitcnt lgkmcnt(0)')
    a('v_max3_f32 v10, v32, v33, v34\nv_max_f32 v10, v10, v35\nv_mul_f32 v48, s13, v10')
    for k in range(8): a(f'v_fma_f32 v{16+k}, v{16+k}, s13, -v48')
    for k in range(8): a(f'v_exp_f32 v{16+k}, v{16+k}')
    for k in range(4): a(f'v_cvt_pk_bf16_f32 v{32+k}, v{16+2*k}, v{17+2*k}')
    a('ds_write_b128 v26, v[32:35]')
    s.signal(C_P)
    a('v_mov_b32 v40, s44\nv_mov_b32 v41, s44\nv_mov_b32 v46, s44\nv_mov_b32 v47, s44\nv_mov_b32 v50, s44\nv_mov_b32 v51, s44')
    for k in range(4): a(f'v_mov_b32 v{52+k}, {hex(ONE2)}')
    s.wait_flag(C_P, 4, extra=[f'ds_read_b128 v[{64+4*t}:{67+4*t}], v25 offset:{t*1024}' for t in range(4)])
    a('s_cmp_lg_u32 s7, 0\ns_cbranch_scc1 L_pv')
    for t in range(4):
        a(f's_waitcnt lgkmcnt({3-t})')
        s.mfma(56, 52, 64 + 4 * t, t == 0)
    a('s_mov_b64 exec, 15\ns_cmp_eq_u32 s47, 1')
    a('v_mov_b32 v49, v56')
    a('s_cbranch_scc0 L_lrem')
    a('buffer_store_dwordx4 v[48:51], v101, s[40:43], s56 offen')
    a('L_lst:\ns_mov_b64 exec, -1')
    a('L_pv:')
    s.stamp(7)
    for t in range(4):
        s.wait_flag(C_G, 14 + 2 * t, extra=[f'ds_read_b64_tr_b16 v[{32+4*T+2*u}:{33+4*T+2*u}], v{28+T} offset:{t*8192+u*4096}' for T in range(2) for u in range(2)], sleep=(1 if t < 3 else 0))
        if t == 3: s.stamp(8)
        for T in range(2):
            a(f's_waitcnt lgkmcnt({2-2*T})')
            s.mfma(16 + 4 * T, 32 + 4 * T, 64 + 4 * t, t == 0)
    a('s_mov_b32 exec_lo, 0x000f000f\ns_mov_b32 exec_hi, 0x000f000f\ns_cmp_eq_u32 s47, 1')
    for k in range(4): a(f'v_cvt_pk_bf16_f32 v{42+k}, v{16+2*k}, v{17+2*k}')
    a('s_cbranch_scc0 L_orem')
    a('buffer_store_dwordx4 v[40:43], v30, s[40:43], s14 offen\nbuffer_store_dwordx4 v[44:47], v30, s[40:43], s14 offen offset:16')
    a('L_ost:')
    a('s_mov_b64 exec, -1')
    s.stamp(9)
    for k in range(4): a(f'buffer_load_dwordx4 v[{48+4*k}:{51+4*k}], v31, s[40:43], s15 offen offset:{(k>>1)*128+(k&1)*16} sc1')
    s.wait_flag(C_G, 24)
    for ks in range(2):
        for T in range(4):
            for u in range(2):
                r = 64 + 16 * ks + 4 * T + 2 * u
                a(f'ds_read_b64_tr_b16 v[{r}:{r+1}], v{96+T} offset:{ks*4096+u*2048}')
    s.stamp(10)
    a('L_opoll:')
    a('s_waitcnt vmcnt(0)')
    a('v_xor_b32 v10, s44, v48\nv_bitop3_b32 v10, v55, s44, v10 bitop3:0xbe\nv_bitop3_b32 v10, v56, s44, v10 bitop3:0xbe\nv_bitop3_b32 v10, v63, s44, v10 bitop3:0xbe')
    a('v_cmp_ne_u32 vcc, 0, v10\ns_cbranch_vccz L_odone')
    a('s_mov_b64 exec, vcc')
    for k in range(4): a(f'buffer_load_dwordx4 v[{48+4*k}:{51+4*k}], v31, s[40:43], s15 offen offset:{(k>>1)*128+(k&1)*16} sc1')
    s.budget()
    a('s_branch L_opoll')
    a('L_lrem:\nbuffer_store_dwordx4 v[48:51], v101, s[40:43], s56 offen sc1\ns_branch L_lst')
    a('L_orem:')
    a('buffer_store_dwordx4 v[40:43], v30, s[40:43], s14 offen sc1\nbuffer_store_dwordx4 v[44:47], v30, s[40:43], s14 offen offset:16 sc1')
    a('s_branch L_ost')
    a('L_odone:')
    a('s_mov_b64 exec, -1')
    s.stamp(11)
    a('s_waitcnt lgkmcnt(0)')
    for ks in range(2):
        for T in range(4): s.mfma(32 + 4 * T, 50 + 8 * ks, 64 + 16 * ks + 4 * T, ks == 0)
    s.wait_flag(F_WT, 1, extra=['ds_read_b128 v[20:23], v100'])
    a('s_waitcnt lgkmcnt(0)')
    for T in range(4): a(f'v_pk_mul_f32 v[{32+4*T}:{33+4*T}], v[{32+4*T}:{33+4*T}], v[20:21]')
    for T in range(4): a(f'v_pk_fma_f32 v[{32+4*T}:{33+4*T}], v[{34+4*T}:{35+4*T}], v[22:23], v[{32+4*T}:{33+4*T}]')
    for T in range(4): a(f'v_add_f32 v{16+T}, v{32+4*T}, v{33+4*T}')
    a(f'ds_write_b128 v26, v[16:19] offset:{RED-PL}')
    a('s_waitcnt lgkmcnt(0)\ns_barrier')
    s.stamp(12)
    a('s_cmp_lg_u32 s7, 0\ns_cbranch_scc1 L_notpub')
    for k in range(1, 4): a(f'ds_read_b128 v[{44+4*k}:{47+4*k}], v25 offset:{RED-PL+k*1024}')
    a(f's_lshl_b32 s10, s6, 5\ns_lshl2_add_u32 s10, s3, s10\ns_add_u32 s10, s10, s5\ns_lshl_b32 s10, s10, 10\ns_add_u32 s10, s10, {WS_S}')
    a('v_lshlrev_b32 v10, 4, v1\nv_mov_b32 v35, s44')
    a('s_waitcnt lgkmcnt(2)')
    a('v_pk_add_f32 v[16:17], v[16:17], v[48:49]\nv_pk_add_f32 v[18:19], v[18:19], v[50:51]')
    a('s_waitcnt lgkmcnt(1)')
    a('v_pk_add_f32 v[16:17], v[16:17], v[52:53]\nv_pk_add_f32 v[18:19], v[18:19], v[54:55]')
    a('s_waitcnt lgkmcnt(0)')
    a('v_pk_add_f32 v[16:17], v[16:17], v[56:57]\nv_pk_add_f32 v[18:19], v[18:19], v[58:59]')
    s.pack24(32, 16, 17, 18, 19)
    a('buffer_store_dwordx4 v[32:35], v10, s[40:43], s10 offen sc1')
    s.stamp(13)
    a('s_branch L_end')
    a('L_notpub:')
    a('s_cmp_lg_u32 s7, 1\ns_cbranch_scc1 L_end')
    a('v_lshrrev_b32 v10, 1, v1\nv_lshlrev_b32 v10, 10, v10\nv_and_b32 v11, 1, v1\nv_lshl_add_u32 v10, v11, 4, v10')
    a(f's_lshl_b32 s10, s3, 15\ns_lshl_b32 s11, s4, 5\ns_add_u32 s10, s10, s11\ns_add_u32 s12, s10, {WS_M}\ns_add_u32 s10, s10, {WS_S}')
    a('v_mov_b32 v32, 0\nv_mov_b32 v33, 0\nv_mov_b32 v34, 0\ns_mov_b32 exec_hi, 0x00ffffff')
    a('L_mpoll:')
    a('buffer_load_dwordx4 v[32:35], v10, s[40:43], s12 offen sc1')
    s.budget()
    a('s_waitcnt vmcnt(0)\nv_cmp_ne_u32 vcc, s44, v35\ns_cbranch_vccnz L_mpoll')
    a('s_mov_b64 exec, -1')
    a('buffer_load_dwordx4 v[16:19], v10, s[40:43], s10 offen sc1')
    s.stamp(13)
    a(f'v_lshlrev_b32 v14, 3, v1\nv_add_u32 v14, {GX}, v14\nds_read_b64 v[12:13], v14')
    s.unpack24_consts()
    s.srd_const(48, 4096); s.srd(48, 36)
    a('v_lshlrev_b32 v14, 5, v2\nv_lshl_add_u32 v14, v11, 1, v14')
    a('s_lshl_b32 s11, s5, 10\ns_lshl_b32 s12, s3, 7\ns_add_u32 s11, s11, s12\ns_lshl2_add_u32 s11, s6, s11')
    s.unpack24(32)
    s.reduce32(32)
    a('s_waitcnt lgkmcnt(0)')
    s.round_bf16('v32')
    a('v_add_f32 v32, v32, v12')
    s.round_bf16('v32')
    a(f'v_mul_f32 v33, {hex(f2u(-math.log2(math.e)))}, v32\nv_exp_f32 v33, v33\nv_add_f32 v33, 1.0, v33\nv_rcp_f32 v33, v33\nv_mul_f32 v12, v32, v33')
    s.round_bf16('v12')
    if kw.get('fgap', 1): a(f's_sleep {kw.get("fgap", 1)}')
    a('L_fpoll:')
    a('buffer_load_dwordx4 v[20:23], v10, s[40:43], s10 offen sc1')
    s.budget()
    a('s_waitcnt vmcnt(1)\nv_cmp_ne_u32 vcc, s44, v19\ns_cbranch_vccz L_fdone')
    a('buffer_load_dwordx4 v[16:19], v10, s[40:43], s10 offen sc1')
    a('s_waitcnt vmcnt(1)\nv_cmp_ne_u32 vcc, s44, v23\ns_cbranch_vccnz L_fpoll')
    def finish(r):
        s.stamp(14)
        s.unpack24(r)
        s.reduce32(r)
        s.round_bf16(f'v{r}')
        a(f'v_mul_f32 v{r}, v{r}, v12')
        s.round_bf16(f'v{r}')
        a(f'v_add_f32 v{r}, v{r}, v13')
        a('s_mov_b32 exec_lo, 0x00030003\ns_mov_b32 exec_hi, 0x00030003')
        a(f'v_cvt_pk_bf16_f32 v{r}, v{r}, v{r}')
        a(f'buffer_store_short v{r}, v14, s[48:51], s11 offen')
    finish(20)
    a('s_branch L_epoch')
    a('L_fdone:')
    finish(16)
    a('L_epoch:')
    s.stamp(15)
    a('s_cmp_lg_u32 s2, 0\ns_cbranch_scc1 L_end')
    a('s_mov_b64 exec, 1\nv_mov_b32 v10, 0\nv_mov_b32 v11, s44\nbuffer_store_dword v11, v10, s[40:43], 0 offen sc1')
    a('s_branch L_end')

    a('L_P:')
    a('s_barrier\ns_setprio 3')
    a('s_getreg_b32 s45, hwreg(HW_REG_XCC_ID, 0, 4)')
    a('v_and_b32 v5, 3, v1\nv_bfe_u32 v4, v1, 2, 2')
    a('v_lshlrev_b32 v10, 14, v4\nv_lshl_add_u32 v10, v5, 7, v10')
    a(f's_lshl_b32 s10, s3, 16\ns_lshl_b32 s11, s4, 9\ns_add_u32 s10, s10, s11\ns_add_u32 s10, s10, {WS_O}\nv_add_u32 v10, s10, v10')
    a(f's_lshl_b32 s10, s3, 15\ns_lshl_b32 s12, s4, 8\ns_add_u32 s11, s12, s10\ns_add_u32 s11, s11, {WS_Q}')
    a('v_lshlrev_b32 v11, 13, v5\nv_and_b32 v12, 1, v4\nv_lshl_add_u32 v11, v12, 7, v11\nv_add_u32 v11, s11, v11\nv_cmp_eq_u32 vcc, 1, v2\nv_cndmask_b32 v10, v10, v11, vcc')
    a(f's_lshl_b32 s13, s3, 11\ns_add_u32 s13, s13, {WS_LSE}\ns_lshl4_add_u32 s11, s4, s13')
    a('v_lshlrev_b32 v11, 9, v5\nv_add_u32 v11, s11, v11\nv_cmp_eq_u32 vcc, 2, v2\nv_cndmask_b32 v10, v10, v11, vcc')
    a(f's_lshl2_add_u32 s11, s12, s10\ns_add_u32 s11, s11, {WS_H}')
    a('v_and_b32 v11, 7, v1\nv_lshlrev_b32 v11, 7, v11\nv_add_u32 v11, s11, v11\nv_cmp_eq_u32 vcc, 3, v2\nv_cndmask_b32 v10, v10, v11, vcc')
    a('s_waitcnt lgkmcnt(0)')
    a('s_load_dword s44, s[40:41], 0')
    if kw.get('warm', 1): a(f'buffer_load_dword v7, v10, s[40:43], 0 offen {kw.get("warmfl", "")}')
    a(f's_lshl_b32 s11, s5, 13\ns_add_u32 s10, s10, s11\ns_add_u32 s10, s10, {WS_Q}\ns_add_u32 s15, s10, 4096')
    a('s_lshl_b32 s11, s5, 9\ns_add_u32 s13, s13, s11')
    a('v_lshlrev_b32 v10, 4, v1')
    a(f'v_lshrrev_b32 v11, 5, v1\nv_and_b32 v12, 31, v1\nv_lshlrev_b32 v13, 3, v12\nv_lshlrev_b32 v14, 4, v11\nv_xor_b32 v13, v13, v14\nv_lshl_add_u32 v13, v11, 8, v13\nv_add_u32 v22, {QL}, v13')
    for c in range(1, 8): a(f'v_xor_b32 v{22+c}, {c*32}, v22')
    a(f'v_lshlrev_b32 v13, 2, v12\nv_add_u32 v13, {WT}, v13\nv_lshlrev_b32 v12, 4, v12')
    a(f's_mov_b32 s14, {kw.get("nfast", 32)}')
    a('s_waitcnt lgkmcnt(0)')
    s.tag_finish()
    s.wait_flag(C_QP, 4, sleep=1)
    if q0: a(f's_sleep {q0}')
    s.stamp(2)
    def qissue(k):
        r = 32 + 32 * k
        for c in range(8): a(f'buffer_load_dwordx4 v[{r+4*c}:{r+3+4*c}], v10, s[40:43], s{10 if c < 4 else 15} offen offset:{(c&3)*1024} sc1')
    for k in range(npq - 1):
        qissue(k); a(f's_sleep {gapq}')
    a('L_qpoll:')
    for k in range(npq):
        qissue((k + npq - 1) % npq)
        s.budget()
        r = 32 + 32 * k
        a(f's_waitcnt vmcnt({8*(npq-1)})')
        a(f'v_xor_b32 v15, s44, v{r+3}')
        for c in range(1, 8): a(f'v_bitop3_b32 v15, v{r+4*c+3}, s44, v15 bitop3:0xbe')
        a(f'v_cmp_ne_u32 vcc, 0, v15\ns_cbranch_vccz L_qgot{k}')
    a(f's_sub_u32 s14, s14, 1\ns_cbranch_scc0 L_qpoll\ns_add_u32 s10, s10, {WS_SLOW}\ns_add_u32 s15, s15, {WS_SLOW}\ns_branch L_qpoll')
    for k in range(npq):
        r = 32 + 32 * k
        a(f'L_qgot{k}:')
        for c in range(8): a(f'ds_write_b64 v{22+c}, v[{r+4*c}:{r+4*c+1}] offset:{c*512}')
        a(f'v_xor_b32 v15, s45, v{r+2}')
        for c in range(1, 8): a(f'v_bitop3_b32 v15, v{r+4*c+2}, s45, v15 bitop3:0xbe')
        if k != npq - 1: a('s_branch L_qdone')
    a('L_qdone:')
    a('v_cmp_ne_u32 vcc, 0, v15\ns_cmp_eq_u64 vcc, 0\ns_cselect_b32 s47, 1, 2')
    if kw.get('force_remote'): a('s_mov_b32 s47, 2')
    a(f'v_mov_b32 v15, s47\nds_write_b32 v8, v15 offset:{F_Q}')
    s.stamp(3)
    s.wait_flag(C_P, 4, sleep=1)
    a(f's_sleep {kw.get("l0", 3)}')
    s.stamp(4)
    LB = 96
    def lissue(k): a(f'buffer_load_dwordx4 v[{LB+4*k}:{LB+3+4*k}], v12, s[40:43], s13 offen sc1')
    for k in range(npl - 1):
        lissue(k); a(f's_sleep {gapl}')
    a('L_lpoll:')
    for k in range(npl):
        lissue((k + npl - 1) % npl)
        s.budget()
        a(f's_waitcnt vmcnt({npl-1})')
        a(f'v_mov_b32 v20, v{LB+4*k}\nv_mov_b32 v21, v{LB+4*k+1}\nv_cmp_ne_u32 vcc, s44, v{LB+4*k+3}')
        a('s_cbranch_vccz L_lgot')
        if kw.get('lsl', 2): a(f's_sleep {kw.get("lsl", 2)}')
    a('s_branch L_lpoll')
    a('L_lgot:')
    s.stamp(5)
    M8 = ('quad_perm:[1,0,3,2]', 'quad_perm:[2,3,0,1]', 'row_half_mirror')
    a(f'v_max_f32_dpp v22, v20, v20 {M8[0]} row_mask:0xf bank_mask:0xf')
    for m in M8[1:]: a(f'v_max_f32_dpp v22, v22, v22 {m} row_mask:0xf bank_mask:0xf')
    a('v_sub_f32 v20, v20, v22\nv_exp_f32 v20, v20\nv_mul_f32 v21, v21, v20')
    for m in M8: a(f'v_add_f32_dpp v21, v21, v21 {m} row_mask:0xf bank_mask:0xf')
    a('v_rcp_f32 v21, v21\nv_mul_f32 v20, v20, v21')
    a(f'ds_write_b32 v13, v20\nds_write_b32 v8, v6 offset:{F_WT}')
    s.stamp(6)
    a('s_branch L_end')

    a('L_M:')
    a('s_barrier\ns_setprio 1')
    a('v_bfe_u32 v4, v1, 2, 2\nv_and_b32 v5, 3, v1')
    a('v_lshl_add_u32 v10, v4, 2, v2')
    a('v_lshlrev_b32 v11, 3, v10')
    a('v_lshlrev_b32 v10, 4, v10\nv_lshl_add_u32 v10, v5, 8, v10')
    a('s_lshl3_add_u32 s15, s5, s3\ns_lshl_b32 s11, s15, 7')
    a('v_and_b32 v24, 1, v1\nv_lshlrev_b32 v25, 5, v2\nv_lshl_add_u32 v25, v24, 1, v25')
    a('s_lshl_b32 s12, s3, 7\ns_lshl2_add_u32 s12, s6, s12\ns_lshl_b32 s13, s5, 10\ns_add_u32 s13, s13, s12')
    s.srd_const(56, 3584); s.srd_const(60, 1024); s.srd_const(96, 4096)
    a('s_waitcnt lgkmcnt(0)')
    a('s_load_dword s44, s[40:41], 0')
    s.srd(56, 30); s.srd(60, 34); s.srd(96, 16)
    a('buffer_load_ushort v16, v25, s[60:63], s12 offen')
    a('buffer_load_ushort v17, v25, s[96:99], s13 offen')
    a('buffer_load_dwordx2 v[14:15], v11, s[56:59], s11 offen')
    a(f'v_mul_u32_u24 v11, {HS}, v5\nv_lshl_add_u32 v11, v2, 4, v11\nv_lshrrev_b32 v12, 1, v4\nv_lshl_add_u32 v11, v12, 6, v11\nv_and_b32 v12, 1, v4\nv_lshl_add_u32 v11, v12, 3, v11\nv_add_u32 v11, {HL}, v11')
    a(f'v_mul_u32_u24 v12, {HS}, v4\nv_lshl_add_u32 v12, v2, 4, v12\nv_add_u32 v12, {HL}, v12')
    a(f'v_lshl_add_u32 v27, v2, 2, v4\nv_bfe_u32 v28, v27, 1, 2\nv_lshlrev_b32 v28, 5, v28\nv_lshl_add_u32 v28, v27, 7, v28\nv_lshl_add_u32 v28, v5, 3, v28\nv_add_u32 v28, {W2}, v28')
    a('v_xor_b32 v29, 32, v28\nv_xor_b32 v30, 64, v28\nv_xor_b32 v31, 96, v28')
    a(f'v_lshlrev_b32 v13, 3, v1\nv_add_u32 v13, {GX}, v13')
    a('s_waitcnt vmcnt(1) lgkmcnt(0)')
    a('v_lshlrev_b32 v16, 16, v16\nv_lshlrev_b32 v17, 16, v17\nds_write_b64 v13, v[16:17]')
    a('s_cmp_ge_u32 s15, 28\ns_cbranch_scc1 L_end')
    s.tag_finish()
    s.pack24_consts(); s.unpack24_consts()
    s.wait_flag(F_Q, 1, sleep=1)
    a('v_readfirstlane_b32 s47, v9')
    a(f's_cmp_eq_u32 s47, 1\ns_cselect_b32 s11, 0, {WS_SLOW}')
    a(f's_lshl2_add_u32 s10, s3, s5\ns_lshl_b32 s10, s10, 13\ns_add_u32 s10, s10, s11\ns_add_u32 s10, s10, {WS_H}\ns_add_u32 s11, s10, 4096')
    s.stamp(2)
    a('L_hpoll:')
    for c in range(8): a(f'buffer_load_dwordx4 v[{32+4*c}:{35+4*c}], v10, s[40:43], s{10 + (c>>2)} offen offset:{(c&3)*1024} sc1')
    s.budget()
    a('s_waitcnt vmcnt(0)')
    a('v_xor_b32 v13, s44, v35')
    for c in range(1, 8): a(f'v_bitop3_b32 v13, v{35+4*c}, s44, v13 bitop3:0xbe')
    a('v_cmp_ne_u32 vcc, 0, v13\ns_cbranch_vccnz L_hpoll')
    s.stamp(3)
    for c in range(8): s.unpack24(32 + 4 * c)
    for st in (16, 8, 4):
        for r in range(32, 32 + st, 2): a(f'v_pk_add_f32 v[{r}:{r+1}], v[{r}:{r+1}], v[{r+st}:{r+st+1}]')
    a('v_cvt_pk_bf16_f32 v36, v32, v33\nv_cvt_pk_bf16_f32 v37, v34, v35')
    for k in range(2):
        a(f'v_lshlrev_b32 v{32+2*k}, 16, v{36+k}\nv_and_b32 v{33+2*k}, 0xffff0000, v{36+k}\nv_lshlrev_b32 v{40+2*k}, 16, v{14+k}\nv_and_b32 v{41+2*k}, 0xffff0000, v{14+k}')
    for k in range(4): a(f'v_add_f32 v{32+k}, v{32+k}, v{40+k}')
    a('v_cvt_pk_bf16_f32 v36, v32, v33\nv_cvt_pk_bf16_f32 v37, v34, v35')
    for k in range(2): a(f'v_lshlrev_b32 v{32+2*k}, 16, v{36+k}\nv_and_b32 v{33+2*k}, 0xffff0000, v{36+k}')
    K1 = -2 * math.sqrt(2 / math.pi) * math.log2(math.e)
    a(f'v_mov_b32 v44, {hex(f2u(K1))}')
    for k in range(4): a(f'v_mul_f32 v{36+k}, v{32+k}, v{32+k}')
    for k in range(4): a(f'v_fmamk_f32 v{36+k}, v{36+k}, {hex(f2u(K1*0.044715))}, v44')
    for k in range(4): a(f'v_mul_f32 v{36+k}, v{36+k}, v{32+k}')
    for k in range(4): a(f'v_exp_f32 v{36+k}, v{36+k}')
    for k in range(4): a(f'v_add_f32 v{36+k}, 1.0, v{36+k}')
    for k in range(4): a(f'v_rcp_f32 v{36+k}, v{36+k}')
    for k in range(4): a(f'v_mul_f32 v{32+k}, v{32+k}, v{36+k}')
    a('v_cvt_pk_bf16_f32 v40, v32, v33\nv_cvt_pk_bf16_f32 v41, v34, v35')
    a('ds_write_b64 v11, v[40:41]\nds_read_b128 v[48:51], v12\nds_read_b128 v[52:55], v12 offset:64')
    a(f's_lshl_b32 s10, s6, 5\ns_add_u32 s10, s10, s15\ns_lshl_b32 s10, s10, 10\ns_add_u32 s10, s10, {WS_M}')
    a('v_lshlrev_b32 v10, 4, v1\nv_mov_b32 v23, s44')
    s.wait_flag(C_G, 12, sleep=1)
    for ks in range(2):
        for T in range(4):
            for u in range(2):
                r = 64 + 16 * ks + 4 * T + 2 * u
                a(f'ds_read_b64_tr_b16 v[{r}:{r+1}], v{28+T} offset:{ks*4096+u*2048}')
    a('s_waitcnt lgkmcnt(0)')
    for ks in range(2):
        for T in range(4): s.mfma(32 + 4 * T, 48 + 4 * ks, 64 + 16 * ks + 4 * T, ks == 0)
    s.pack24(20, 32, 36, 40, 44)
    a('buffer_store_dwordx4 v[20:23], v10, s[40:43], s10 offen sc1')
    s.stamp(4)
    a('L_end:')
    if kw.get('probe'):
        pw, pst, pm, pb = kw['probe']
        a(f's_waitcnt lgkmcnt(0)\ns_cmp_lg_u32 s7, {pw}\ns_cbranch_scc1 L_exit')
        if pw >= 4: a('s_barrier')
        a(f's_sub_u32 s10, s{64+2*pst}, s64\ns_mul_i32 s10, s10, {pm}\ns_add_u32 s10, s10, {pb}\ns_min_u32 s10, s10, 20000')
        a('L_padloop:\ns_memrealtime s[12:13]\ns_waitcnt lgkmcnt(0)\ns_sub_u32 s11, s12, s64\ns_cmp_lt_u32 s11, s10\ns_cbranch_scc1 L_padloop')
    s.dump_stamps()
    a('L_exit:')
    a('s_endpgm')
    lines, added = hazard.fix(s.o, verbose=kw.get('verbose', False))
    return wrap('\n'.join(lines) + '\n', 256, NW * 64, LDS_TOTAL, 128)

if __name__ == '__main__':
    import ast
    out = sys.argv[1]
    kw = {}
    for x in sys.argv[2:]:
        k, v = x.split('=')
        try: kw[k] = ast.literal_eval(v)
        except Exception: kw[k] = v
    open(out, 'w').write(gen(**kw))
```

```python
import sys, math, struct
sys.path.insert(0, 'dev')
from common import *
import hazard

def f2u(x):
    return struct.unpack('<I', struct.pack('<f', x))[0]

NW = 7
FL = 0
WA, W1, KB, W2, VB, WO = [2048 + x for x in (0, 16384, 24576, 57344, 65536, 98304)]
XN = 2048 + 114688; XS = 1088
YL = XN + 4 * XS
QL = YL + 4 * XS
assert QL % 256 == 0
PL = QL + 4096
RED = PL + 4096
HL = RED + 4096; HS = 144
MX = HL + 640
WT = MX + 64
GX = WT + 128
LDS_TOTAL = GX + 512
C_WA, C_G, C_XN, F_Q, C_MX, C_P, F_WT, C_QP, C_Y = [4 * i for i in range(9)]

WS_Q = 0x1000
WS_H = WS_Q + 0x40000
WS_LSE = WS_H + 0x40000
WS_O = WS_LSE + 0x4000
WS_M = WS_O + 0x80000
WS_S = WS_M + 0x40000
WS_END = WS_S + 0x40000
STAMP = 0x8000000

class G:
    def __init__(s, **kw):
        s.o = []
        s.nl = 0
        s.kw = kw
        s.stamps = kw.get('stamps', False)
    def a(s, t):
        for l in t.split('\n'):
            l = l.strip()
            if l: s.o.append(l)
    def lab(s, p='L'):
        s.nl += 1
        return f'{p}_{s.nl}'
    def stamp(s, i):
        pr = s.kw.get('probe')
        only = s.kw.get('only')
        if (s.stamps and (only is None or i in only or i == 0)) or (pr and i in (0, pr[1])):
            s.a(f's_memrealtime s[{64+2*i}:{65+2*i}]')
    def budget(s):
        s.a('s_sub_u32 s46, s46, 1\ns_cbranch_scc1 L_end')
    def wait_flag(s, off, n, extra=None, sleep=0, vt='v9'):
        L = s.lab('W')
        if sleep:
            L2 = s.lab('W')
            s.a(f's_branch {L2}\n{L}:\ns_sleep {sleep}\n{L2}:')
        else:
            s.a(f'{L}:')
        s.a(f'ds_read_b32 {vt}, v8 offset:{off}')
        ne = 0
        if extra:
            for e in extra: s.a(e)
            ne = len(extra)
        s.budget()
        s.a(f's_waitcnt lgkmcnt({0 if s.stamps or s.kw.get("probe") else min(ne, 15)})')
        s.a(f'v_cmp_gt_u32 vcc, {n}, {vt}')
        s.a(f's_cbranch_vccnz {L}')
    def signal(s, off):
        s.a(f's_mov_b64 exec, 1\nds_add_u32 v8, v6 offset:{off}\ns_mov_b64 exec, -1')
    def srd(s, d, p):
        s.a(f's_mov_b32 s{d}, s{p}\ns_mov_b32 s{d+1}, s{p+1}')
    def srd_const(s, d, n):
        s.a(f's_mov_b32 s{d+2}, {n}\ns_mov_b32 s{d+3}, 0x20000')
    def wave_sum(s, v, sd):
        for m in ('quad_perm:[1,0,3,2]', 'quad_perm:[2,3,0,1]', 'row_half_mirror', 'row_mirror'):
            s.a(f'v_add_f32_dpp {v}, {v}, {v} {m} row_mask:0xf bank_mask:0xf')
        s.a(f'v_add_f32_dpp {v}, {v}, {v} row_bcast:15 row_mask:0xa bank_mask:0xf')
        s.a(f'v_add_f32_dpp {v}, {v}, {v} row_bcast:31 row_mask:0xc bank_mask:0xf')
        s.a(f'v_readlane_b32 {sd}, {v}, 63')
    def rows_allreduce(s, op, v, t):
        s.a(f'v_mov_b32 {t}, {v}\nv_permlane16_swap_b32 {t}, {v}\n{op} {v}, {t}, {v}')
        s.a(f'v_mov_b32 {t}, {v}\nv_permlane32_swap_b32 {t}, {v}\n{op} {v}, {t}, {v}')
    def layernorm(s, src, f, t):
        P = lambda r: f'v[{r}:{r+1}]'
        for k in range(4):
            s.a(f'v_lshlrev_b32 v{f+2*k}, 16, v{src+k}\nv_and_b32 v{f+2*k+1}, s55, v{src+k}')
        s.a(f'v_pk_add_f32 {P(t)}, {P(f)}, {P(f+2)}\nv_pk_add_f32 {P(t+2)}, {P(f+4)}, {P(f+6)}\nv_pk_add_f32 {P(t)}, {P(t)}, {P(t+2)}\nv_add_f32 v{t}, v{t}, v{t+1}')
        s.wave_sum(f'v{t}', 's10')
        s.a(f'v_mov_b32 v{src+3}, {hex(f2u(1/512))}')
        s.a(f'v_mul_f32 v{src}, s10, v{src+3}')
        for k in range(4):
            s.a(f'v_pk_add_f32 {P(t+2*k)}, {P(f+2*k)}, {P(src)} op_sel_hi:[1,0] neg_lo:[0,1] neg_hi:[0,1]')
        s.a(f'v_pk_mul_f32 {P(t)}, {P(t)}, {P(t)}')
        for k in range(1, 4):
            s.a(f'v_pk_fma_f32 {P(t)}, {P(t+2*k)}, {P(t+2*k)}, {P(t)}')
        s.a(f'v_add_f32 v{t}, v{t}, v{t+1}')
        s.a(f'v_cvt_pk_bf16_f32 v{src}, v{src}, v{src}\nv_lshlrev_b32 v{src}, 16, v{src}')
        ms = ['quad_perm:[1,0,3,2] row_mask:0xf', 'quad_perm:[2,3,0,1] row_mask:0xf', 'row_half_mirror row_mask:0xf', 'row_mirror row_mask:0xf', 'row_bcast:15 row_mask:0xa', 'row_bcast:31 row_mask:0xc']
        fill = [f'v_pk_add_f32 {P(f+2*k)}, {P(f+2*k)}, {P(src)} op_sel_hi:[1,0] neg_lo:[0,1] neg_hi:[0,1]' for k in range(4)]
        fill += [f'v_cvt_pk_bf16_f32 v{t+2+k}, v{f+2*k}, v{f+2*k+1}' for k in range(4)]
        for k in range(4): fill += [f'v_lshlrev_b32 v{f+2*k}, 16, v{t+2+k}', f'v_and_b32 v{f+2*k+1}, s55, v{t+2+k}']
        for m in ms:
            s.a(f'v_add_f32_dpp v{t}, v{t}, v{t} {m} bank_mask:0xf')
            s.a(fill.pop(0)); s.a(fill.pop(0))
        s.a(f'v_readlane_b32 s10, v{t}, 63')
        s.a(fill.pop(0)); s.a(fill.pop(0))
        s.a(f'v_mul_f32 v{src}, s10, v{src+3}')
        s.a(f'v_cvt_pk_bf16_f32 v{src}, v{src}, v{src}\nv_lshlrev_b32 v{src}, 16, v{src}')
        s.a(f'v_add_f32 v{src}, {hex(f2u(1e-5))}, v{src}')
        s.a(f'v_cvt_pk_bf16_f32 v{src}, v{src}, v{src}\nv_lshlrev_b32 v{src}, 16, v{src}')
        s.a(f'v_sqrt_f32 v{src}, v{src}')
        s.a(fill.pop(0))
        s.a(f'v_cvt_pk_bf16_f32 v{src}, v{src}, v{src}\nv_lshlrev_b32 v{src}, 16, v{src}')
        s.a(f'v_rcp_f32 v{src}, v{src}')
        s.a(fill.pop(0))
        assert not fill
        for k in range(4):
            s.a(f'v_pk_mul_f32 {P(f+2*k)}, {P(f+2*k)}, {P(src)} op_sel_hi:[1,0]')
        for k in range(4):
            s.a(f'v_cvt_pk_bf16_f32 v{src+k}, v{f+2*k}, v{f+2*k+1}')
    def round_bf16(s, v):
        s.a(f'v_cvt_pk_bf16_f32 {v}, {v}, {v}\nv_lshlrev_b32 {v}, 16, {v}')
    def tag_finish(s):
        s.a('s_mul_i32 s44, s44, 0x2c9277b5\ns_add_u32 s44, s44, 0xac564b05')
    def pack24(s, d, a, b, c, e):
        s.a(f'v_perm_b32 v{d}, v{a}, v{e}, s50\nv_perm_b32 v{d+1}, v{b}, v{e}, s51\nv_perm_b32 v{d+2}, v{c}, v{e}, s52')
    def pack24_consts(s):
        s.a('s_mov_b32 s50, 0x07060503\ns_mov_b32 s51, 0x07060502\ns_mov_b32 s52, 0x07060501')
    def unpack24(s, r):
        s.a(f'v_perm_b32 v{r+3}, v{r}, v{r+1}, s53\nv_perm_b32 v{r+3}, v{r+3}, v{r+2}, s54')
    def unpack24_consts(s):
        s.a('s_mov_b32 s53, 0x04000c0c\ns_mov_b32 s54, 0x0706000c')
    def reduce32(s, r):
        s.a(f'v_permlane32_swap_b32 v{r}, v{r+2}\nv_permlane32_swap_b32 v{r+1}, v{r+3}')
        s.a(f'v_add_f32 v{r}, v{r}, v{r+2}\nv_add_f32 v{r+1}, v{r+1}, v{r+3}')
        s.a(f'v_permlane16_swap_b32 v{r}, v{r+1}\nv_add_f32 v{r}, v{r}, v{r+1}')
        for m in ('row_ror:8', 'row_ror:4', 'row_ror:2'):
            s.a(f'v_add_f32_dpp v{r}, v{r}, v{r} {m} row_mask:0xf bank_mask:0xf')
    def mfma(s, d, A, B, first):
        s.a(f'v_mfma_f32_16x16x32_bf16 v[{d}:{d+3}], v[{A}:{A+3}], v[{B}:{B+3}], {"0" if first else f"v[{d}:{d+3}]"}')
    def dump_stamps(s, nst=16):
        if not s.stamps: return
        s.a('s_waitcnt lgkmcnt(0)\ns_mov_b64 exec, -1\nv_mov_b32 v10, 0')
        for i in range(nst):
            s.a(f'v_writelane_b32 v10, s{64+2*i}, {i}')
        s.a(f's_mul_i32 s10, s2, {NW*64}\ns_lshl_b32 s11, s7, 6\ns_add_u32 s10, s10, s11\ns_add_u32 s10, s10, {STAMP}')
        s.a('v_lshlrev_b32 v11, 2, v1\ns_mov_b64 exec, 0xffff\nbuffer_store_dword v10, v11, s[40:43], s10 offen')

def gen(**kw):
    s = G(**kw)
    a = s.a
    depth = kw.get('depth', 20)
    NT = kw.get('nt', 'nt')
    npq = kw.get('npq', 2); gapq = kw.get('gapq', 12); q0 = kw.get('q0', 4)
    npl = kw.get('npl', 4); gapl = kw.get('gapl', 6)
    CSC = math.log2(math.e) / math.sqrt(128)
    ONE2 = 0x3f803f80
    order = kw.get('order', '11kkkkkkkk22vvvvvvvvoooo')
    TH = {c: [i + 1 for i, x in enumerate(order) if x == c] for c in '1k2vo'}
    assert [len(TH[c]) for c in '1k2vo'] == [2, 8, 2, 8, 4]
    marks = {TH['1'][1], TH['2'][1], TH['o'][3]} | set(TH['k'][1::2]) | set(TH['v'][1::2])
    def common():
        if s.stamps:
            for i in range(1, 16): a(f's_mov_b32 s{64+2*i}, 0')
        a('v_and_b32 v1, 63, v0\ns_lshr_b32 s5, s4, 3\ns_and_b32 s6, s4, 7')
        a(f's_mov_b32 s42, {STAMP + 0x100000 if s.stamps else WS_END}\ns_mov_b32 s43, 0x20000')
        a(f's_mov_b32 s46, {kw.get("budget", 400000)}')
        a('v_mov_b32 v6, 1')
        a('v_lshrrev_b32 v2, 4, v1\nv_and_b32 v3, 15, v1')
    s.stamp(0)
    a('s_load_dwordx16 s[16:31], s[0:1], 0\ns_load_dwordx8 s[32:39], s[0:1], 64\ns_load_dwordx2 s[40:41], s[0:1], 96')
    a('s_lshr_b32 s4, s2, 3\ns_cmp_ge_u32 s4, 32\ns_cbranch_scc1 L_exit')
    a('v_lshrrev_b32 v2, 6, v0\nv_bfe_u32 v4, v0, 3, 3')
    a('v_lshlrev_b32 v9, 2, v0\nv_mov_b32 v8, 0\nds_write_b32 v9, v8')
    if kw.get('prefetch', True):
        a('s_getpc_b64 s[8:9]\nL_pc:')
        a('v_lshlrev_b32 v3, 7, v0\nv_min_u32 v3, L_exit-L_pc, v3\nglobal_load_dword v7, v3, s[8:9]')
    a('v_readfirstlane_b32 s7, v2')
    a('v_and_b32 v5, 6, v4\nv_xor_b32 v5, v5, v0\nv_and_b32 v5, 7, v5\nv_lshlrev_b32 v5, 4, v5')
    a('s_and_b32 s3, s2, 7\ns_cmp_ge_u32 s7, 4\ns_cbranch_scc1 L_roles')
    a('s_mov_b32 s51, 0x20000\nv_lshlrev_b32 v11, 4, v0')
    a('s_lshr_b32 s10, s4, 3\ns_lshl2_add_u32 s10, s10, s7\ns_lshl_b32 s10, s10, 18\ns_xor_b32 s11, s4, ' + str(kw.get('rq', 0)) + '\ns_and_b32 s11, s11, 7\ns_lshl3_add_u32 s11, s3, s11\ns_lshl_b32 s11, s11, 7\ns_add_u32 s10, s10, s11')
    a(f's_bfm_b32 s50, 1, 22\ns_movk_i32 s12, 0x7e00\ns_lshl_b32 s12, s12, 1\nv_lshl_add_u32 v10, v4, 13, v5\ns_lshl_b32 m0, s7, 12\ns_addk_i32 m0, {WA}')
    a('s_waitcnt lgkmcnt(0)')
    a('s_mov_b32 s48, s22\ns_mov_b32 s49, s23')
    a('global_load_dwordx4 v[12:15], v11, s[16:17]')
    for r in range(4):
        a(f'buffer_load_dwordx4 v10, s[48:51], s10 offen offset:{r*1024} {NT} lds')
        if r < 3: a('s_add_u32 s10, s10, s12')
    a('s_load_dword s44, s[40:41], 0')
    a('s_barrier\ns_branch L_C')
    a('L_roles:')
    a('s_barrier')
    common()
    a('s_cmp_eq_u32 s7, 4\ns_cbranch_scc1 L_P\ns_cmp_eq_u32 s7, 5\ns_cbranch_scc1 L_M')
    rq, r2 = kw.get('rq', 0), kw.get('r2', 0)
    a('v_mul_u32_u24 v32, 3584, v4\nv_add_u32 v32, v32, v5')
    for r in range(1, 4): a(f'v_add_u32 v{32+r}, {r*(8*3584-1024)}, v32')
    a('v_xor_b32 v14, v3, v2\nv_lshlrev_b32 v14, 4, v14\nv_lshl_add_u32 v18, v2, 8, v14')
    for r in range(1, 4): a(f'v_xor_b32 v{18+r}, {r*64}, v18\nv_add_u32 v{18+r}, {r*7168}, v{18+r}')
    a(f's_lshl3_add_u32 s10, s5, s3\ns_cmp_lt_u32 s10, 28\ns_cselect_b32 s50, {512*3584}, 0\ns_mov_b32 s51, 0x20000')
    a(f's_mul_i32 s12, s6, {64*3584}\ns_lshl_b32 s11, s10, 7\ns_add_u32 s12, s12, s11')
    a(f's_lshl_b32 s13, s5, 23\ns_lshl_b32 s11, s3, 20\ns_add_u32 s13, s13, s11\ns_lshl_b32 s11, s6, 10\ns_add_u32 s13, s13, s11\ns_add_u32 s13, s13, {3072*256}')
    a('s_bfm_b32 s54, 1, 25\ns_mov_b32 s55, s51\ns_mov_b32 s14, s13')
    a('s_waitcnt lgkmcnt(0)')
    s.stamp(1)
    dg = depth // 4
    segs = {'1': (32, 48, 28, 12, 32 * 3584, W1), 'k': (18, 52, 18, 13, 32768, KB), 'v': (22, 56, 20, 14, 32768, VB),
            '2': (26, 60, 32, 15, 32768, W2), 'o': (26, 96, 24, 9, 32768, WO)}
    cnt = {c: 0 for c in segs}
    late = False
    prof = kw.get('prof')
    prof = [int(x, 16) for x in prof] if prof else [dg] * len(order)
    assert len(prof) == len(order)
    landed = 0
    first_wait = min(gi for gi in range(len(order)) if gi + 1 > prof[gi])
    for gi, c in enumerate(order):
        vr, sd, ptr, so, step, lds = segs[c]
        if gi == first_wait:
            a('v_lshlrev_b32 v14, 1, v2\nv_xor_b32 v14, v3, v14\nv_lshlrev_b32 v14, 4, v14\nv_lshl_add_u32 v22, v2, 8, v14')
            a(f'v_xor_b32 v23, 128, v22\nv_add_u32 v24, {2*7168}, v22\nv_add_u32 v25, {3*7168}, v23\nv_add_u32 v23, 7168, v23')
            a('v_lshl_add_u32 v26, v4, 10, v5')
            for r in range(1, 4): a(f'v_add_u32 v{26+r}, {r*7168}, v26')
            a(f's_mov_b32 s58, s54\ns_mov_b32 s59, s51\ns_mov_b32 s62, {1792*1024}\ns_mov_b32 s63, s51\ns_bfm_b32 s98, 1, 22\ns_mov_b32 s99, s51')
            s.srd(56, 20); s.srd(60, 32); s.srd(96, 24)
            a(f's_add_u32 s11, s6, {r2}\ns_and_b32 s11, s11, 7\ns_lshl_b32 s11, s11, 7\ns_lshl_b32 s15, s10, 16\ns_add_u32 s15, s15, s11')
            a('s_lshl2_add_u32 s9, s3, s5\ns_lshl_b32 s9, s9, 17\ns_lshl_b32 s11, s6, 7\ns_add_u32 s9, s9, s11')
            s.stamp(2)
            late = True
        assert late or c in '1k'
        if cnt[c] == 0 and c in '1k': s.srd(sd, ptr)
        a(f's_mov_b32 m0, {lds + cnt[c] * 4096}')
        if cnt[c]: a(f's_add_u32 s{so}, s{so}, {step}')
        while landed < gi + 1 - prof[gi]:
            landed += 1
            if landed in marks or landed == gi + 1 - prof[gi]:
                a(f's_waitcnt vmcnt({(gi-landed)*4})')
            if landed in marks:
                a(f'v_mov_b32 v30, {landed}\nds_write_b32 v8, v30 offset:{C_G}')
                if landed == TH['v'][7]: s.stamp(6)
        for r in range(4):
            a(f'buffer_load_dwordx4 v{vr+r}, s[{sd}:{sd+3}], s{so} offen offset:{r*1024} {NT} lds')
        cnt[c] += 1
    for n in range(landed + 1, len(order) + 1):
        if n in marks:
            a(f'v_mov_b32 v30, {n}\ns_waitcnt vmcnt({(len(order)-n)*4})\nds_write_b32 v8, v30 offset:{C_G}')
            if n == TH['v'][7]: s.stamp(6)
    s.stamp(7)
    a('s_branch L_end')

    a('L_C:')
    a('s_setprio 2')
    common()
    s.stamp(1)
    if 'C' in kw.get('kill', ''): a('s_waitcnt vmcnt(0)\ns_branch L_end')
    a('v_bfe_u32 v4, v1, 2, 2\nv_and_b32 v5, 3, v1')
    a(f's_mul_i32 s11, s7, {XS}\ns_add_u32 s11, s11, {XN}')
    a('v_lshrrev_b32 v10, 2, v1\nv_lshlrev_b32 v10, 6, v10\nv_and_b32 v11, 1, v1\nv_lshl_add_u32 v10, v11, 5, v10\nv_and_b32 v11, 2, v1\nv_lshl_add_u32 v10, v11, 2, v10\nv_add_u32 v11, s11, v10')
    a('s_mov_b32 s55, 0xffff0000')
    a('v_lshl_add_u32 v27, v2, 2, v4\nv_bfe_u32 v96, v27, 1, 2\nv_lshlrev_b32 v96, 5, v96\nv_lshl_add_u32 v96, v27, 7, v96\nv_lshl_add_u32 v96, v5, 3, v96')
    a('s_lshl_b32 s12, s7, 5\nv_xor_b32 v10, s12, v96')
    a('s_getreg_b32 s45, hwreg(HW_REG_XCC_ID, 0, 4)')
    a('s_mov_b32 s13, 1')
    a('s_waitcnt vmcnt(4)')
    s.stamp(2)
    s.layernorm(12, 16, 32)
    a('s_waitcnt lgkmcnt(0)')
    s.tag_finish()
    a('ds_write2_b64 v11, v[12:13], v[14:15] offset1:2')
    s.signal(C_XN)
    s.stamp(3)
    a(f'v_mul_u32_u24 v24, {XS}, v5\nv_lshl_add_u32 v24, v2, 4, v24')
    a(f's_lshl_b32 s10, s5, 8\ns_add_u32 s10, s10, {XN}\nv_add_u32 v25, s10, v24')
    a(f's_lshl_b32 s14, s3, 15\ns_lshl1_add_u32 s14, s12, s14\ns_lshl_b32 s13, s4, 8\ns_xor_b32 s58, s13, {rq*256}\ns_add_u32 s58, s14, s58\ns_add_u32 s58, s58, {WS_Q}')
    a('v_lshlrev_b32 v106, 13, v3\nv_lshl_add_u32 v106, v2, 4, v106')
    a('v_mov_b32 v110, s45\nv_mov_b32 v111, s44\nv_mov_b32 v115, s44')
    s.wait_flag(C_XN, 4, extra=[f'ds_read_b128 v[{64+4*t}:{67+4*t}], v25 offset:{t*64}' for t in range(4)])
    a('s_waitcnt vmcnt(0)')
    if kw.get('st_tile'): s.stamp(5)
    s.signal(C_WA)
    s.wait_flag(C_WA, 4, extra=[f'ds_read_b64_tr_b16 v[{40+2*t}:{41+2*t}], v10 offset:{WA+t*2048}' for t in range(8)])
    for t in range(4):
        a(f's_waitcnt lgkmcnt({6-2*t})')
        s.mfma(16, 40 + 4 * t, 64 + 4 * t, t == 0)
    a('s_mov_b32 exec_lo, 0x000f000f\ns_mov_b32 exec_hi, 0x000f000f')
    a('v_cvt_pk_bf16_f32 v108, v16, v17\nv_cvt_pk_bf16_f32 v109, v18, v19')
    a('buffer_store_dwordx4 v[108:111], v106, s[40:43], s58 offen')
    a('s_mov_b64 exec, -1')
    s.stamp(4)
    s.layernorm(12, 16, 32)
    a(f'v_add_u32 v11, {YL-XN}, v11\nds_write2_b64 v11, v[12:13], v[14:15] offset1:2')
    s.signal(C_Y)
    a(f's_lshl_b32 s10, s6, 7\ns_add_u32 s10, s10, {YL}\nv_add_u32 v25, s10, v24')
    a(f's_lshl2_add_u32 s59, s13, s14\ns_add_u32 s59, s59, {WS_H}')
    a('v_lshlrev_b32 v107, 4, v1')
    s.pack24_consts()
    s.wait_flag(C_Y, 4, extra=[f'ds_read_b128 v[{64+4*t}:{67+4*t}], v25 offset:{t*64}' for t in range(2)])
    a('s_waitcnt vmcnt(0)')
    s.signal(C_QP)
    s.wait_flag(C_G, TH['1'][1], extra=[f'ds_read_b64_tr_b16 v[{40+2*t}:{41+2*t}], v10 offset:{W1+t*2048}' for t in range(4)], sleep=1)
    for t in range(2):
        a(f's_waitcnt lgkmcnt({2-2*t})')
        s.mfma(16, 40 + 4 * t, 64 + 4 * t, t == 0)
    a('s_mov_b32 exec_lo, 0x000f000f\ns_mov_b32 exec_hi, 0x000f000f')
    s.pack24(112, 16, 17, 18, 19)
    a('buffer_store_dwordx4 v[112:115], v107, s[40:43], s59 offen')
    a('s_mov_b64 exec, -1')
    if 'Q' in kw.get('kill', ''): a('s_branch L_end')
    a(f's_lshl_b32 s10, s7, 13\ns_add_u32 s10, s10, {KB}')
    a(f'v_xor_b32 v10, v2, v3\nv_lshlrev_b32 v10, 4, v10\nv_lshl_add_u32 v10, v3, 8, v10\nv_add_u32 v102, {QL}, v10\nv_add_u32 v10, s10, v10')
    a('v_xor_b32 v103, 64, v102\nv_xor_b32 v104, 128, v102\nv_xor_b32 v105, 192, v102')
    a('v_xor_b32 v11, 64, v10\nv_xor_b32 v12, 128, v10\nv_xor_b32 v13, 192, v10')
    a(f's_lshl_b32 s10, s7, 2\ns_add_u32 s10, s10, {MX}\nv_lshlrev_b32 v15, 4, v5\nv_add_u32 v24, s10, v15\nv_add_u32 v15, {MX}, v15')
    a(f's_lshl_b32 s10, s7, 10\ns_add_u32 s10, s10, {PL}\nv_lshlrev_b32 v25, 4, v1\nv_add_u32 v26, s10, v25\nv_add_u32 v25, {PL}, v25')
    a('v_and_b32 v28, 7, v27\ns_lshl_b32 s10, s7, 1\nv_xor_b32 v28, s10, v28\nv_lshlrev_b32 v28, 5, v28\nv_lshl_add_u32 v28, v27, 8, v28\nv_lshl_add_u32 v28, v5, 3, v28')
    a(f'v_add_u32 v28, {VB}, v28\nv_xor_b32 v29, 32, v28')
    a(f's_lshr_b32 s10, s7, 1\ns_lshl_b32 s11, s10, 13\ns_add_u32 s11, s11, {WO}')
    a('v_add_u32 v96, s11, v96\nv_xor_b32 v97, 32, v96\nv_xor_b32 v98, 64, v96\nv_xor_b32 v99, 96, v96')
    a('v_lshlrev_b32 v30, 14, v3\nv_lshl_add_u32 v30, v2, 8, v30')
    a(f's_lshl_b32 s14, s3, 16\ns_add_u32 s14, s14, {WS_O}')
    a('s_lshr_b32 s11, s4, 4\ns_lshl2_add_u32 s11, s11, s7\ns_lshl_b32 s11, s11, 11\ns_and_b32 s12, s4, 15\ns_lshl4_add_u32 s11, s12, s11')
    a('v_lshlrev_b32 v31, 4, v1')
    a('s_lshl_b32 s15, s5, 14\ns_add_u32 s15, s15, s14\ns_lshl_b32 s10, s10, 12\ns_add_u32 s15, s15, s10\ns_and_b32 s10, s7, 1\ns_lshl_b32 s12, s10, 13\ns_add_u32 s15, s15, s12')
    a('s_add_u32 s14, s14, s11')
    a(f'v_lshlrev_b32 v100, 9, v2\nv_lshl_add_u32 v100, v3, 4, v100\nv_add_u32 v100, {RED}, v100')
    a(f's_lshl_b32 s56, s6, 5\ns_lshl2_add_u32 s56, s3, s56\ns_add_u32 s56, s56, s5\ns_lshl_b32 s56, s56, 10\ns_add_u32 s56, s56, {WS_S}')
    a(f's_mov_b32 s13, {hex(f2u(CSC))}')
    kt = TH['k'][1::2]
    a(f's_lshl_b32 s57, s7, 3\ns_lshr_b32 s57, {kt[0] | kt[1] << 8 | kt[2] << 16 | kt[3] << 24}, s57\ns_and_b32 s57, s57, 0xff')
    s.wait_flag(C_G, 's57', sleep=1)
    for u in range(2):
        for t in range(4):
            a(f'ds_read_b128 v[{32+16*u+4*t}:{35+16*u+4*t}], v{10+t} offset:{u*4096}')
    if not kw.get('st_tile'): s.stamp(5)
    s.wait_flag(F_Q, 1, extra=[f'ds_read_b128 v[{64+4*t}:{67+4*t}], v{102+t}' for t in range(4)])
    s.stamp(6)
    a('v_readfirstlane_b32 s47, v9')
    a('s_cmp_lg_u32 s47, 1\ns_cbranch_scc1 L_qrem')
    a('L_qgo:')
    for t in range(4):
        a(f's_waitcnt lgkmcnt({3-t})')
        for u in range(2): s.mfma(16 + 4 * u, 32 + 16 * u + 4 * t, 64 + 4 * t, t == 0)
    for k in range(8): a(f'v_add_f32_dpp v{16+k}, v{16+k}, v{16+k} row_ror:4 row_mask:0xf bank_mask:0xf')
    for k in range(8): a(f'v_add_f32_dpp v{16+k}, v{16+k}, v{16+k} row_ror:8 row_mask:0xf bank_mask:0xf')
    a('v_max3_f32 v10, v16, v17, v18\nv_max3_f32 v11, v19, v20, v21\nv_max3_f32 v10, v10, v22, v23\nv_max_f32 v10, v10, v11')
    s.rows_allreduce('v_max_f32', 'v10', 'v11')
    a('ds_write_b32 v24, v10')
    s.signal(C_MX)
    s.wait_flag(C_MX, 4, extra=['ds_read_b128 v[32:35], v15'])
    a('s_waitcnt lgkmcnt(0)')
    a('v_max3_f32 v10, v32, v33, v34\nv_max_f32 v10, v10, v35\nv_mul_f32 v41, s13, v10')
    for k in range(8): a(f'v_fma_f32 v{16+k}, v{16+k}, s13, -v41')
    for k in range(8): a(f'v_exp_f32 v{16+k}, v{16+k}')
    for k in range(4): a(f'v_cvt_pk_bf16_f32 v{32+k}, v{16+2*k}, v{17+2*k}')
    a('ds_write_b128 v26, v[32:35]')
    s.signal(C_P)
    a('v_mov_b32 v40, s44\nv_mov_b32 v47, s44\nv_mov_b32 v123, s44')
    for k in range(4): a(f'v_mov_b32 v{52+k}, {hex(ONE2)}')
    s.wait_flag(C_P, 4, extra=[f'ds_read_b128 v[{64+4*t}:{67+4*t}], v25 offset:{t*1024}' for t in range(4)])
    for t in range(4):
        a(f's_waitcnt lgkmcnt({3-t})')
        s.mfma(56, 52, 64 + 4 * t, t == 0)
    a('L_pv:')
    s.stamp(7)
    WB = 128
    def wo_reads():
        for ks in range(2):
            for T in range(4):
                for u in range(2):
                    r = WB + 16 * ks + 4 * T + 2 * u
                    a(f'ds_read_b64_tr_b16 v[{r}:{r+1}], v{96+T} offset:{ks*4096+u*2048}')
    early = TH['o'][3] < TH['v'][5]
    for t in range(4):
        if t == 3 and early: wo_reads()
        s.wait_flag(C_G, TH['v'][2 * t + 1], extra=[f'ds_read_b64_tr_b16 v[{32+4*T+2*u}:{33+4*T+2*u}], v{28+T} offset:{t*8192+u*4096}' for T in range(2) for u in range(2)], sleep=(1 if t < 3 else 0))
        if t == 3: s.stamp(8)
        for T in range(2):
            a(f's_waitcnt lgkmcnt({2-2*T})')
            s.mfma(16 + 4 * T, 32 + 4 * T, 64 + 4 * t, t == 0)
        if t == 0: a('v_mov_b32 v46, v56')
    a('s_mov_b32 exec_lo, 0x000f000f\ns_mov_b32 exec_hi, 0x000f000f\ns_cmp_eq_u32 s47, 1')
    for k in range(4): a(f'v_cvt_pk_bf16_f32 v{42+k}, v{16+2*k}, v{17+2*k}')
    a('s_cbranch_scc0 L_orem')
    a('buffer_store_dwordx4 v[40:43], v30, s[40:43], s14 offen\nbuffer_store_dwordx4 v[44:47], v30, s[40:43], s14 offen offset:1024')
    a('L_ost:')
    a('s_mov_b64 exec, -1')
    s.stamp(9)
    if 'D' in kw.get('kill', ''): a('s_branch L_end')
    if kw.get('od0'): a(f's_sleep {kw["od0"]}')
    for k in range(4): a(f'buffer_load_dwordx4 v[{48+4*k}:{51+4*k}], v31, s[40:43], s15 offen offset:{k*1024} sc1')
    if not early:
        s.wait_flag(C_G, TH['o'][3])
        wo_reads()
    if s.stamps:
        a('s_waitcnt vmcnt(0)')
        s.stamp(10)
        a('s_mov_b32 s61, 0')
    a('L_opoll:')
    a('s_waitcnt vmcnt(0)')
    a('v_xor_b32 v10, s44, v48\nv_bitop3_b32 v10, v55, s44, v10 bitop3:0xbe\nv_bitop3_b32 v10, v56, s44, v10 bitop3:0xbe\nv_bitop3_b32 v10, v63, s44, v10 bitop3:0xbe')
    a('v_cmp_ne_u32 vcc, 0, v10\ns_cbranch_vccz L_odone')
    a('s_mov_b64 exec, vcc')
    if s.stamps: a('s_add_u32 s61, s61, 1')
    if kw.get('osl'): a(f's_sleep {kw["osl"]}')
    for k in range(4): a(f'buffer_load_dwordx4 v[{48+4*k}:{51+4*k}], v31, s[40:43], s15 offen offset:{k*1024} sc1')
    s.budget()
    a('s_branch L_opoll')
    a('L_qrem:')
    a('s_mov_b32 exec_lo, 0x000f000f\ns_mov_b32 exec_hi, 0x000f000f')
    a('buffer_store_dwordx4 v[108:111], v106, s[40:43], s58 offen sc1\nbuffer_store_dwordx4 v[112:115], v107, s[40:43], s59 offen sc1')
    a('s_mov_b64 exec, -1')
    a('L_qrem2:')
    a(f'ds_read_b32 v9, v8 offset:{F_Q}')
    for t in range(4): a(f'ds_read_b128 v[{64+4*t}:{67+4*t}], v{102+t}')
    s.budget()
    a('s_waitcnt lgkmcnt(0)\nv_readfirstlane_b32 s47, v9\ns_cmp_eq_u32 s47, 4\ns_cbranch_scc0 L_qgo\ns_sleep 2\ns_branch L_qrem2')
    a('L_orem:')
    a('buffer_store_dwordx4 v[40:43], v30, s[40:43], s14 offen sc1\nbuffer_store_dwordx4 v[44:47], v30, s[40:43], s14 offen offset:1024 sc1')
    a('s_branch L_ost')
    a('L_odone:')
    a('s_mov_b64 exec, -1')
    s.stamp(11)
    a('s_waitcnt lgkmcnt(0)')
    if s.stamps: a('s_mul_i32 s61, s61, 100\ns_add_u32 s70, s64, s61')
    M8 = ('quad_perm:[1,0,3,2]', 'quad_perm:[2,3,0,1]', 'row_half_mirror')
    D = lambda op, d, x, y, m, rm='0xf': f'{op}_dpp {d}, {x}, {y} {m} row_mask:{rm} bank_mask:0xf'
    wv = [D('v_max_f32', 'v20', 'v49', 'v49', M8[0]), None, D('v_max_f32', 'v20', 'v20', 'v20', M8[1]), None, D('v_max_f32', 'v20', 'v20', 'v20', M8[2]),
          'v_sub_f32 v21, v49, v20', 'v_exp_f32 v21, v21', None, 'v_mul_f32 v22, v54, v21', None,
          D('v_add_f32', 'v22', 'v22', 'v22', M8[0]), None, D('v_add_f32', 'v22', 'v22', 'v22', M8[1]), None, D('v_add_f32', 'v22', 'v22', 'v22', M8[2]),
          'v_rcp_f32 v22, v22', None, 'v_mul_f32 v21, v21, v22']
    mf = [(32 + 4 * T, 50 + 8 * ks, WB + 16 * ks + 4 * T, ks == 0) for ks in range(2) for T in range(4)]
    s.mfma(*mf.pop(0))
    for x in wv:
        if x is None: s.mfma(*mf.pop(0))
        else: a(x)
    assert not mf
    a('v_mov_b32_dpp v21, v21 row_ror:12 row_mask:0x2 bank_mask:0xf')
    a('v_mov_b32_dpp v23, v21 row_ror:8 row_mask:0xf bank_mask:0xf')
    a('v_mov_b32_dpp v23, v21 row_ror:4 row_mask:0x8 bank_mask:0xf')
    a('v_mov_b32_dpp v23, v21 quad_perm:[0,1,2,3] row_mask:0x3 bank_mask:0xf')
    for T in range(4): a(D('v_mul_f32', f'v{16+T}', 'v23', f'v{32+4*T}', 'row_newbcast:0'))
    for r in range(1, 4):
        for T in range(4): a(D('v_fmac_f32', f'v{16+T}', 'v23', f'v{32+4*T+r}', f'row_newbcast:{r}'))
    a(f'ds_write_b128 v26, v[16:19] offset:{RED-PL}')
    a('s_waitcnt lgkmcnt(0)\ns_barrier')
    s.stamp(12)
    a('s_cmp_lg_u32 s7, 0\ns_cbranch_scc1 L_notpub')
    for k in range(4): a(f'ds_read_b128 v[{48+4*k}:{51+4*k}], v100 offset:{(k>>1)*2048+(k&1)*256}')
    a('s_waitcnt lgkmcnt(2)')
    a('v_pk_add_f32 v[48:49], v[48:49], v[52:53]\nv_pk_add_f32 v[50:51], v[50:51], v[54:55]')
    a('s_waitcnt lgkmcnt(1)')
    a('v_pk_add_f32 v[48:49], v[48:49], v[56:57]\nv_pk_add_f32 v[50:51], v[50:51], v[58:59]')
    a('s_waitcnt lgkmcnt(0)')
    a('v_pk_add_f32 v[48:49], v[48:49], v[60:61]\nv_pk_add_f32 v[50:51], v[50:51], v[62:63]')
    s.pack24(120, 48, 49, 50, 51)
    a('buffer_store_dwordx4 v[120:123], v31, s[40:43], s56 offen sc1')
    s.stamp(13)
    a('s_branch L_end')
    a('L_notpub:')
    a('s_cmp_lg_u32 s7, 1\ns_cbranch_scc1 L_end')
    a('v_lshrrev_b32 v10, 1, v1\nv_lshlrev_b32 v10, 10, v10\nv_and_b32 v11, 1, v1\nv_lshl_add_u32 v10, v11, 4, v10')
    a(f's_lshl_b32 s10, s3, 15\ns_lshl_b32 s11, s4, 5\ns_add_u32 s10, s10, s11\ns_add_u32 s12, s10, {WS_M}\ns_add_u32 s10, s10, {WS_S}')
    a('v_mov_b32 v32, 0\nv_mov_b32 v33, 0\nv_mov_b32 v34, 0\ns_mov_b32 exec_hi, 0x00ffffff')
    a('L_mpoll:')
    a('buffer_load_dwordx4 v[32:35], v10, s[40:43], s12 offen sc1')
    s.budget()
    a('s_waitcnt vmcnt(0)\nv_cmp_ne_u32 vcc, s44, v35\ns_cbranch_vccnz L_mpoll')
    a('s_mov_b64 exec, -1')
    a('buffer_load_dwordx4 v[16:19], v10, s[40:43], s10 offen sc1')
    s.stamp(13)
    a(f'v_lshlrev_b32 v14, 3, v1\nv_add_u32 v14, {GX}, v14\nds_read_b64 v[12:13], v14')
    s.unpack24_consts()
    s.srd_const(48, 4096); s.srd(48, 36)
    a('v_lshlrev_b32 v14, 5, v2\nv_lshl_add_u32 v14, v11, 1, v14')
    a('s_lshl_b32 s11, s5, 10\ns_lshl_b32 s12, s3, 7\ns_add_u32 s11, s11, s12\ns_lshl2_add_u32 s11, s6, s11')
    s.unpack24(32)
    s.reduce32(32)
    a('s_waitcnt lgkmcnt(0)')
    s.round_bf16('v32')
    a('v_add_f32 v32, v32, v12')
    s.round_bf16('v32')
    a(f'v_mul_f32 v33, {hex(f2u(-math.log2(math.e)))}, v32\nv_exp_f32 v33, v33\nv_add_f32 v33, 1.0, v33\nv_rcp_f32 v33, v33\nv_mul_f32 v12, v32, v33')
    s.round_bf16('v12')
    if kw.get('fgap', 1): a(f's_sleep {kw.get("fgap", 1)}')
    a('L_fpoll:')
    a('buffer_load_dwordx4 v[20:23], v10, s[40:43], s10 offen sc1')
    s.budget()
    a('s_waitcnt vmcnt(1)\nv_cmp_ne_u32 vcc, s44, v19\ns_cbranch_vccz L_fdone')
    a('buffer_load_dwordx4 v[16:19], v10, s[40:43], s10 offen sc1')
    a('s_waitcnt vmcnt(1)\nv_cmp_ne_u32 vcc, s44, v23\ns_cbranch_vccnz L_fpoll')
    def finish(r):
        s.stamp(14)
        s.unpack24(r)
        s.reduce32(r)
        s.round_bf16(f'v{r}')
        a(f'v_mul_f32 v{r}, v{r}, v12')
        s.round_bf16(f'v{r}')
        a(f'v_add_f32 v{r}, v{r}, v13')
        a('s_mov_b32 exec_lo, 0x00030003\ns_mov_b32 exec_hi, 0x00030003')
        a(f'v_cvt_pk_bf16_f32 v{r}, v{r}, v{r}')
        a(f'buffer_store_short v{r}, v14, s[48:51], s11 offen')
    finish(20)
    a('s_branch L_epoch')
    a('L_fdone:')
    finish(16)
    a('L_epoch:')
    s.stamp(15)
    a('s_cmp_lg_u32 s2, 0\ns_cbranch_scc1 L_end')
    a('s_mov_b64 exec, 1\nv_mov_b32 v10, 0\nv_mov_b32 v11, s44\nbuffer_store_dword v11, v10, s[40:43], 0 offen sc1')
    a('s_branch L_end')

    a('L_P:')
    if 'P' in kw.get('kill', ''): a('s_waitcnt lgkmcnt(0)\ns_branch L_end')
    a('s_setprio 3')
    a('s_getreg_b32 s45, hwreg(HW_REG_XCC_ID, 0, 4)')
    a('v_and_b32 v5, 3, v1')
    a(f's_lshl_b32 s10, s3, 15\ns_lshl_b32 s12, s4, 10\ns_add_u32 s12, s12, s10')
    a('s_waitcnt lgkmcnt(0)')
    a('s_load_dword s44, s[40:41], 0')
    a(f's_lshl_b32 s11, s5, 13\ns_add_u32 s10, s10, s11\ns_add_u32 s10, s10, {WS_Q}\ns_add_u32 s15, s10, 4096')
    a('v_lshlrev_b32 v10, 4, v1')
    a(f'v_lshrrev_b32 v11, 5, v1\nv_and_b32 v12, 31, v1\nv_lshlrev_b32 v13, 3, v12\nv_lshlrev_b32 v14, 4, v11\nv_xor_b32 v13, v13, v14\nv_lshl_add_u32 v13, v11, 8, v13\nv_add_u32 v22, {QL}, v13')
    for c in range(1, 8): a(f'v_xor_b32 v{22+c}, {c*32}, v22')
    a(f's_mov_b32 s14, {kw.get("nfast", 48)}')
    a('s_waitcnt lgkmcnt(0)')
    s.stamp(1)
    s.tag_finish()
    if 'W' in kw.get('kill', ''): a('s_branch L_end')
    s.wait_flag(C_QP, 4, sleep=1)
    if q0: a(f's_sleep {q0}')
    s.stamp(2)
    a('L_qpoll:')
    for c in range(8): a(f'buffer_load_dwordx4 v[{32+4*c}:{35+4*c}], v10, s[40:43], s{10 if c < 4 else 15} offen offset:{(c&3)*1024} sc1')
    s.budget()
    a('s_waitcnt vmcnt(0)')
    a('v_xor_b32 v15, s44, v35')
    for c in range(1, 8): a(f'v_bitop3_b32 v15, v{35+4*c}, s44, v15 bitop3:0xbe')
    a('v_cmp_ne_u32 vcc, 0, v15\ns_cbranch_vccz L_qgot')
    a(f's_mov_b64 exec, vcc\ns_sub_u32 s14, s14, 1\ns_cbranch_scc0 L_qpoll')
    a(f'v_mov_b32 v15, 4\nds_write_b32 v8, v15 offset:{F_Q}\ns_branch L_qpoll')
    a('L_qgot:')
    a('s_mov_b64 exec, -1')
    for c in range(8): a(f'ds_write_b64 v{22+c}, v[{32+4*c}:{33+4*c}] offset:{c*512}')
    a('v_xor_b32 v15, s45, v34')
    for c in range(1, 8): a(f'v_bitop3_b32 v15, v{34+4*c}, s45, v15 bitop3:0xbe')
    a('L_qdone:')
    a('v_cmp_ne_u32 vcc, 0, v15\ns_cmp_eq_u64 vcc, 0\ns_cselect_b32 s47, 1, 2')
    if kw.get('force_remote'): a('s_mov_b32 s47, 2')
    a(f'v_mov_b32 v15, s47\nds_write_b32 v8, v15 offset:{F_Q}')
    s.stamp(3)
    if kw.get('warm', 1) == 1:
        a('s_lshl_b32 s12, s12, 1\ns_add_u32 s48, s40, s12\ns_addc_u32 s49, s41, 0')
        for k in range(16): a(f's_load_dword s52, s[48:49], {WS_O + k*128}')
    elif kw.get('warm', 1) == 2:
        a(f's_lshl_b32 s12, s12, 1\ns_add_u32 s12, s12, {WS_O}\nv_lshlrev_b32 v10, 7, v1\ns_mov_b64 exec, 0xffff\nbuffer_load_dword v7, v10, s[40:43], s12 offen')
    a('s_branch L_end')

    a('L_M:')
    if 'M' in kw.get('kill', ''): a('s_waitcnt lgkmcnt(0)\ns_branch L_end')
    a('s_setprio 1')
    a('v_bfe_u32 v4, v1, 2, 2\nv_and_b32 v5, 3, v1')
    a('v_lshl_add_u32 v10, v4, 2, v2')
    a('v_lshlrev_b32 v11, 3, v10')
    a('v_lshlrev_b32 v10, 4, v1')
    a('s_lshl3_add_u32 s15, s5, s3\ns_lshl_b32 s11, s15, 7')
    a('v_and_b32 v24, 1, v1\nv_lshlrev_b32 v25, 5, v2\nv_lshl_add_u32 v25, v24, 1, v25')
    a('s_lshl_b32 s12, s3, 7\ns_lshl2_add_u32 s12, s6, s12\ns_lshl_b32 s13, s5, 10\ns_add_u32 s13, s13, s12')
    s.srd_const(56, 3584); s.srd_const(60, 1024); s.srd_const(96, 4096)
    a('s_waitcnt lgkmcnt(0)')
    a('s_load_dword s44, s[40:41], 0')
    s.srd(56, 30); s.srd(60, 34); s.srd(96, 16)
    a('buffer_load_ushort v16, v25, s[60:63], s12 offen')
    a('buffer_load_ushort v17, v25, s[96:99], s13 offen')
    a('buffer_load_dwordx2 v[14:15], v11, s[56:59], s11 offen')
    a(f'v_mul_u32_u24 v11, {HS}, v5\nv_lshl_add_u32 v11, v2, 4, v11\nv_lshrrev_b32 v12, 1, v4\nv_lshl_add_u32 v11, v12, 6, v11\nv_and_b32 v12, 1, v4\nv_lshl_add_u32 v11, v12, 3, v11\nv_add_u32 v11, {HL}, v11')
    a(f'v_mul_u32_u24 v12, {HS}, v4\nv_lshl_add_u32 v12, v2, 4, v12\nv_add_u32 v12, {HL}, v12')
    a(f'v_lshl_add_u32 v27, v2, 2, v4\nv_bfe_u32 v28, v27, 1, 2\nv_lshlrev_b32 v28, 5, v28\nv_lshl_add_u32 v28, v27, 7, v28\nv_lshl_add_u32 v28, v5, 3, v28\nv_add_u32 v28, {W2}, v28')
    a('v_xor_b32 v29, 32, v28\nv_xor_b32 v30, 64, v28\nv_xor_b32 v31, 96, v28')
    a(f'v_lshlrev_b32 v13, 3, v1\nv_add_u32 v13, {GX}, v13')
    a('s_waitcnt vmcnt(1) lgkmcnt(0)')
    a('v_lshlrev_b32 v16, 16, v16\nv_lshlrev_b32 v17, 16, v17\nds_write_b64 v13, v[16:17]')
    a('s_cmp_ge_u32 s15, 28\ns_cbranch_scc1 L_end')
    s.tag_finish()
    s.pack24_consts(); s.unpack24_consts()
    s.wait_flag(F_Q, 1, sleep=1)
    a(f's_lshl2_add_u32 s10, s3, s5\ns_lshl_b32 s10, s10, 13\ns_add_u32 s10, s10, {WS_H}\ns_add_u32 s11, s10, 4096')
    s.stamp(2)
    a('L_hpoll:')
    for c in range(8): a(f'buffer_load_dwordx4 v[{32+4*c}:{35+4*c}], v10, s[40:43], s{10 + (c>>2)} offen offset:{(c&3)*1024} sc1')
    s.budget()
    a('s_waitcnt vmcnt(0)')
    a('v_xor_b32 v13, s44, v35')
    for c in range(1, 8): a(f'v_bitop3_b32 v13, v{35+4*c}, s44, v13 bitop3:0xbe')
    a('v_cmp_ne_u32 vcc, 0, v13\ns_cbranch_vccnz L_hpoll')
    s.stamp(3)
    for c in range(8): s.unpack24(32 + 4 * c)
    for st in (16, 8, 4):
        for r in range(32, 32 + st, 2): a(f'v_pk_add_f32 v[{r}:{r+1}], v[{r}:{r+1}], v[{r+st}:{r+st+1}]')
    a('v_cvt_pk_bf16_f32 v36, v32, v33\nv_cvt_pk_bf16_f32 v37, v34, v35')
    for k in range(2):
        a(f'v_lshlrev_b32 v{32+2*k}, 16, v{36+k}\nv_and_b32 v{33+2*k}, 0xffff0000, v{36+k}\nv_lshlrev_b32 v{40+2*k}, 16, v{14+k}\nv_and_b32 v{41+2*k}, 0xffff0000, v{14+k}')
    for k in range(4): a(f'v_add_f32 v{32+k}, v{32+k}, v{40+k}')
    a('v_cvt_pk_bf16_f32 v36, v32, v33\nv_cvt_pk_bf16_f32 v37, v34, v35')
    for k in range(2): a(f'v_lshlrev_b32 v{32+2*k}, 16, v{36+k}\nv_and_b32 v{33+2*k}, 0xffff0000, v{36+k}')
    K1 = -2 * math.sqrt(2 / math.pi) * math.log2(math.e)
    a(f'v_mov_b32 v44, {hex(f2u(K1))}')
    for k in range(4): a(f'v_mul_f32 v{36+k}, v{32+k}, v{32+k}')
    for k in range(4): a(f'v_fmamk_f32 v{36+k}, v{36+k}, {hex(f2u(K1*0.044715))}, v44')
    for k in range(4): a(f'v_mul_f32 v{36+k}, v{36+k}, v{32+k}')
    for k in range(4): a(f'v_exp_f32 v{36+k}, v{36+k}')
    for k in range(4): a(f'v_add_f32 v{36+k}, 1.0, v{36+k}')
    for k in range(4): a(f'v_rcp_f32 v{36+k}, v{36+k}')
    for k in range(4): a(f'v_mul_f32 v{32+k}, v{32+k}, v{36+k}')
    a('v_cvt_pk_bf16_f32 v40, v32, v33\nv_cvt_pk_bf16_f32 v41, v34, v35')
    a('ds_write_b64 v11, v[40:41]\nds_read_b128 v[48:51], v12\nds_read_b128 v[52:55], v12 offset:64')
    a(f's_add_u32 s10, s6, {r2}\ns_and_b32 s10, s10, 7\ns_lshl_b32 s10, s10, 5\ns_add_u32 s10, s10, s15\ns_lshl_b32 s10, s10, 10\ns_add_u32 s10, s10, {WS_M}')
    a('v_lshlrev_b32 v10, 4, v1\nv_mov_b32 v23, s44')
    s.wait_flag(C_G, TH['2'][1], sleep=1)
    for ks in range(2):
        for T in range(4):
            for u in range(2):
                r = 64 + 16 * ks + 4 * T + 2 * u
                a(f'ds_read_b64_tr_b16 v[{r}:{r+1}], v{28+T} offset:{ks*4096+u*2048}')
    a('s_waitcnt lgkmcnt(0)')
    for ks in range(2):
        for T in range(4): s.mfma(32 + 4 * T, 48 + 4 * ks, 64 + 16 * ks + 4 * T, ks == 0)
    s.pack24(20, 32, 36, 40, 44)
    a('buffer_store_dwordx4 v[20:23], v10, s[40:43], s10 offen sc1')
    s.stamp(4)
    a('L_end:')
    if kw.get('probe'):
        pw, pst, pm, pb = kw['probe']
        a(f's_waitcnt lgkmcnt(0)\ns_cmp_lg_u32 s7, {pw}\ns_cbranch_scc1 L_exit')
        if pw >= 4: a('s_barrier')
        if kw.get('pg') is not None: a(f's_cmp_lg_u32 s3, {kw["pg"]}\ns_cbranch_scc1 L_exit')
        a(f's_sub_u32 s10, s{64+2*pst}, s64\ns_mul_i32 s10, s10, {pm}\ns_add_u32 s10, s10, {pb}\ns_min_u32 s10, s10, 20000')
        a('L_padloop:\ns_memrealtime s[12:13]\ns_waitcnt lgkmcnt(0)\ns_sub_u32 s11, s12, s64\ns_cmp_lt_u32 s11, s10\ns_cbranch_scc1 L_padloop')
    s.dump_stamps()
    a('L_exit:')
    a('s_endpgm')
    lines, added = hazard.fix(s.o, verbose=kw.get('verbose', False))
    return wrap('\n'.join(lines) + '\n', 256, NW * 64, LDS_TOTAL, 160)

if __name__ == '__main__':
    import ast
    out = sys.argv[1]
    kw = {}
    for x in sys.argv[2:]:
        k, v = x.split('=')
        try: kw[k] = ast.literal_eval(v)
        except Exception: kw[k] = v
    open(out, 'w').write(gen(**kw))
```

```python
import sys, math, struct
sys.path.insert(0, 'dev')
from common import *
import hazard

def f2u(x):
    return struct.unpack('<I', struct.pack('<f', x))[0]

NW = 7
FL = 0
WA, W1, KB, W2, VB, WO = [2048 + x for x in (0, 16384, 24576, 57344, 65536, 98304)]
XN = 2048 + 114688; XS = 1088
YL = XN + 4 * XS
QL = YL + 4 * XS
assert QL % 256 == 0
PL = QL + 4096
RED = PL + 4096
HL = RED + 4096; HS = 144
MX = 128
FP = 192
GX = HL + 640
LDS_TOTAL = GX + 512
C_WA, C_G, C_XN, F_Q, C_MX, C_P, F_WT, C_QP, C_Y, C_HP = [4 * i for i in range(10)]

WS_Q = 0x1000
WS_H = WS_Q + 0x40000
WS_LSE = WS_H + 0x40000
WS_O = WS_LSE + 0x4000
WS_M = WS_O + 0x80000
WS_S = WS_M + 0x40000
WS_END = WS_S + 0x40000
STAMP = 0x8000000

class G:
    def __init__(s, **kw):
        s.o = []
        s.nl = 0
        s.kw = kw
        s.stamps = kw.get('stamps', False)
    def a(s, t):
        for l in t.split('\n'):
            l = l.strip()
            if l: s.o.append(l)
    def lab(s, p='L'):
        s.nl += 1
        return f'{p}_{s.nl}'
    def stamp(s, i):
        pr = s.kw.get('probe')
        only = s.kw.get('only')
        if (s.stamps and (only is None or i in only or i == 0)) or (pr and i in (0, pr[1])):
            s.a(f's_memrealtime s[{64+2*i}:{65+2*i}]')
    def budget(s):
        s.a('s_sub_u32 s46, s46, 1\ns_cbranch_scc1 L_end')
    def wait_flag(s, off, n, extra=None, sleep=0, vt='v9'):
        L = s.lab('W')
        if sleep:
            L2 = s.lab('W')
            s.a(f's_branch {L2}\n{L}:\ns_sleep {sleep}\n{L2}:')
        else:
            s.a(f'{L}:')
        s.a(f'ds_read_b32 {vt}, v8 offset:{off}')
        ne = 0
        if extra:
            for e in extra: s.a(e)
            ne = len(extra)
        s.budget()
        s.a(f's_waitcnt lgkmcnt({0 if (s.stamps and not s.kw.get("lean")) or s.kw.get("probe") or (s.kw.get("safeA") and ne > 6) else min(ne, 15)})')
        s.a(f'v_cmp_gt_u32 vcc, {n}, {vt}')
        s.a(f's_cbranch_vccnz {L}')
    def signal(s, off):
        s.a(f's_mov_b64 exec, 1\nds_add_u32 v8, v6 offset:{off}\ns_mov_b64 exec, -1')
    def srd(s, d, p):
        s.a(f's_mov_b32 s{d}, s{p}\ns_mov_b32 s{d+1}, s{p+1}')
    def srd_const(s, d, n):
        s.a(f's_mov_b32 s{d+2}, {n}\ns_mov_b32 s{d+3}, 0x20000')
    def wave_sum(s, v, sd):
        for m in ('quad_perm:[1,0,3,2]', 'quad_perm:[2,3,0,1]', 'row_half_mirror', 'row_mirror'):
            s.a(f'v_add_f32_dpp {v}, {v}, {v} {m} row_mask:0xf bank_mask:0xf')
        s.a(f'v_add_f32_dpp {v}, {v}, {v} row_bcast:15 row_mask:0xa bank_mask:0xf')
        s.a(f'v_add_f32_dpp {v}, {v}, {v} row_bcast:31 row_mask:0xc bank_mask:0xf')
        s.a(f'v_readlane_b32 {sd}, {v}, 63')
    def rows_allreduce(s, op, v, t):
        s.a(f'v_mov_b32 {t}, {v}\nv_permlane16_swap_b32 {t}, {v}\n{op} {v}, {t}, {v}')
        s.a(f'v_mov_b32 {t}, {v}\nv_permlane32_swap_b32 {t}, {v}\n{op} {v}, {t}, {v}')
    def layernorm(s, src, f, t):
        P = lambda r: f'v[{r}:{r+1}]'
        for k in range(4):
            s.a(f'v_lshlrev_b32 v{f+2*k}, 16, v{src+k}\nv_and_b32 v{f+2*k+1}, s55, v{src+k}')
        s.a(f'v_pk_add_f32 {P(t)}, {P(f)}, {P(f+2)}\nv_pk_add_f32 {P(t+2)}, {P(f+4)}, {P(f+6)}\nv_pk_add_f32 {P(t)}, {P(t)}, {P(t+2)}\nv_add_f32 v{t}, v{t}, v{t+1}')
        s.wave_sum(f'v{t}', 's10')
        s.a(f'v_mov_b32 v{src+3}, {hex(f2u(1/512))}')
        s.a(f'v_mul_f32 v{src}, s10, v{src+3}')
        for k in range(4):
            s.a(f'v_pk_add_f32 {P(t+2*k)}, {P(f+2*k)}, {P(src)} op_sel_hi:[1,0] neg_lo:[0,1] neg_hi:[0,1]')
        s.a(f'v_pk_mul_f32 {P(t)}, {P(t)}, {P(t)}')
        for k in range(1, 4):
            s.a(f'v_pk_fma_f32 {P(t)}, {P(t+2*k)}, {P(t+2*k)}, {P(t)}')
        s.a(f'v_add_f32 v{t}, v{t}, v{t+1}')
        s.a(f'v_cvt_pk_bf16_f32 v{src}, v{src}, v{src}\nv_lshlrev_b32 v{src}, 16, v{src}')
        ms = ['quad_perm:[1,0,3,2] row_mask:0xf', 'quad_perm:[2,3,0,1] row_mask:0xf', 'row_half_mirror row_mask:0xf', 'row_mirror row_mask:0xf', 'row_bcast:15 row_mask:0xa', 'row_bcast:31 row_mask:0xc']
        fill = [f'v_pk_add_f32 {P(f+2*k)}, {P(f+2*k)}, {P(src)} op_sel_hi:[1,0] neg_lo:[0,1] neg_hi:[0,1]' for k in range(4)]
        fill += [f'v_cvt_pk_bf16_f32 v{t+2+k}, v{f+2*k}, v{f+2*k+1}' for k in range(4)]
        for k in range(4): fill += [f'v_lshlrev_b32 v{f+2*k}, 16, v{t+2+k}', f'v_and_b32 v{f+2*k+1}, s55, v{t+2+k}']
        for m in ms:
            s.a(f'v_add_f32_dpp v{t}, v{t}, v{t} {m} bank_mask:0xf')
            s.a(fill.pop(0)); s.a(fill.pop(0))
        s.a(f'v_readlane_b32 s10, v{t}, 63')
        s.a(fill.pop(0)); s.a(fill.pop(0))
        s.a(f'v_mul_f32 v{src}, s10, v{src+3}')
        s.a(f'v_cvt_pk_bf16_f32 v{src}, v{src}, v{src}\nv_lshlrev_b32 v{src}, 16, v{src}')
        s.a(f'v_add_f32 v{src}, {hex(f2u(1e-5))}, v{src}')
        s.a(f'v_cvt_pk_bf16_f32 v{src}, v{src}, v{src}\nv_lshlrev_b32 v{src}, 16, v{src}')
        s.a(f'v_sqrt_f32 v{src}, v{src}')
        s.a(fill.pop(0))
        s.a(f'v_cvt_pk_bf16_f32 v{src}, v{src}, v{src}\nv_lshlrev_b32 v{src}, 16, v{src}')
        s.a(f'v_rcp_f32 v{src}, v{src}')
        s.a(fill.pop(0))
        assert not fill
        for k in range(4):
            s.a(f'v_pk_mul_f32 {P(f+2*k)}, {P(f+2*k)}, {P(src)} op_sel_hi:[1,0]')
        for k in range(4):
            s.a(f'v_cvt_pk_bf16_f32 v{src+k}, v{f+2*k}, v{f+2*k+1}')
    def round_bf16(s, v):
        s.a(f'v_cvt_pk_bf16_f32 {v}, {v}, {v}\nv_lshlrev_b32 {v}, 16, {v}')
    def tag_finish(s):
        s.a('s_mul_i32 s44, s44, 0x2c9277b5\ns_add_u32 s44, s44, 0xac564b05')
    def pack24(s, d, a, b, c, e):
        s.a(f'v_perm_b32 v{d}, v{a}, v{e}, s50\nv_perm_b32 v{d+1}, v{b}, v{e}, s51\nv_perm_b32 v{d+2}, v{c}, v{e}, s52')
    def pack24_consts(s):
        s.a('s_mov_b32 s50, 0x07060503\ns_mov_b32 s51, 0x07060502\ns_mov_b32 s52, 0x07060501')
    def unpack24(s, r):
        s.a(f'v_perm_b32 v{r+3}, v{r}, v{r+1}, s53\nv_perm_b32 v{r+3}, v{r+3}, v{r+2}, s54')
    def unpack24_consts(s):
        s.a('s_mov_b32 s53, 0x04000c0c\ns_mov_b32 s54, 0x0706000c')
    def reduce32(s, r):
        s.a(f'v_permlane32_swap_b32 v{r}, v{r+2}\nv_permlane32_swap_b32 v{r+1}, v{r+3}')
        s.a(f'v_add_f32 v{r}, v{r}, v{r+2}\nv_add_f32 v{r+1}, v{r+1}, v{r+3}')
        s.a(f'v_permlane16_swap_b32 v{r}, v{r+1}\nv_add_f32 v{r}, v{r}, v{r+1}')
        for m in ('row_ror:8', 'row_ror:4', 'row_ror:2'):
            s.a(f'v_add_f32_dpp v{r}, v{r}, v{r} {m} row_mask:0xf bank_mask:0xf')
    def mfma(s, d, A, B, first):
        s.a(f'v_mfma_f32_16x16x32_bf16 v[{d}:{d+3}], v[{A}:{A+3}], v[{B}:{B+3}], {"0" if first else f"v[{d}:{d+3}]"}')
    def dump_stamps(s, nst=16):
        if not s.stamps: return
        s.a('s_waitcnt lgkmcnt(0)\ns_mov_b64 exec, -1\nv_mov_b32 v10, 0')
        for i in range(nst):
            s.a(f'v_writelane_b32 v10, s{64+2*i}, {i}')
        s.a(f's_mul_i32 s10, s2, {NW*64}\ns_lshl_b32 s11, s7, 6\ns_add_u32 s10, s10, s11\ns_add_u32 s10, s10, {STAMP}')
        s.a('v_lshlrev_b32 v11, 2, v1\ns_mov_b64 exec, 0xffff\nbuffer_store_dword v10, v11, s[40:43], s10 offen')

def gen(**kw):
    s = G(**kw)
    a = s.a
    depth = kw.get('depth', 20)
    NT = kw.get('nt', 'nt')
    npq = kw.get('npq', 2); gapq = kw.get('gapq', 12); q0 = kw.get('q0', 4)
    npl = kw.get('npl', 4); gapl = kw.get('gapl', 6)
    CSC = math.log2(math.e) / math.sqrt(128)
    ONE2 = 0x3f803f80
    order = kw.get('order', '11kkkkkkkk22vvvvvvvvoooo')
    TH = {c: [i + 1 for i, x in enumerate(order) if x == c] for c in '1k2vo'}
    assert [len(TH[c]) for c in '1k2vo'] == [2, 8, 2, 8, 4]
    marks = {TH['1'][1], TH['2'][1], TH['o'][3]} | set(TH['k'][1::2]) | set(TH['v'][1::2])
    def common():
        if s.stamps:
            for i in range(1, 16): a(f's_mov_b32 s{64+2*i}, 0')
        a('v_and_b32 v1, 63, v0\ns_lshr_b32 s5, s4, 3\ns_and_b32 s6, s4, 7')
        a(f's_mov_b32 s42, {STAMP + 0x100000 if s.stamps else WS_END}\ns_mov_b32 s43, 0x20000')
        a(f's_mov_b32 s46, {kw.get("budget", 400000)}')
        a('v_mov_b32 v6, 1')
        a('v_lshrrev_b32 v2, 4, v1\nv_and_b32 v3, 15, v1')
    s.stamp(0)
    a('s_load_dwordx16 s[16:31], s[0:1], 0\ns_load_dwordx8 s[32:39], s[0:1], 64\ns_load_dwordx2 s[40:41], s[0:1], 96')
    a('s_lshr_b32 s4, s2, 3\ns_cmp_ge_u32 s4, 32\ns_cbranch_scc1 L_exit')
    a('v_lshrrev_b32 v2, 6, v0\nv_bfe_u32 v4, v0, 3, 3')
    a('v_lshlrev_b32 v9, 2, v0\nv_mov_b32 v8, 0\nds_write_b32 v9, v8')
    if kw.get('prefetch', True):
        a('s_getpc_b64 s[8:9]\nL_pc:')
        a('v_lshlrev_b32 v3, 7, v0\nv_min_u32 v3, L_exit-L_pc, v3\nglobal_load_dword v7, v3, s[8:9]')
    a('v_readfirstlane_b32 s7, v2')
    a('v_and_b32 v5, 6, v4\nv_xor_b32 v5, v5, v0\nv_and_b32 v5, 7, v5\nv_lshlrev_b32 v5, 4, v5')
    a('s_and_b32 s3, s2, 7\ns_cmp_ge_u32 s7, 4\ns_cbranch_scc1 L_roles')
    a('s_mov_b32 s51, 0x20000\nv_lshlrev_b32 v11, 4, v0')
    a('s_lshr_b32 s10, s4, 3\ns_lshl2_add_u32 s10, s10, s7\ns_lshl_b32 s10, s10, 18\ns_xor_b32 s11, s4, ' + str(kw.get('rq', 0)) + '\ns_and_b32 s11, s11, 7\ns_lshl3_add_u32 s11, s3, s11\ns_lshl_b32 s11, s11, 7\ns_add_u32 s10, s10, s11')
    a(f's_bfm_b32 s50, 1, 22\ns_movk_i32 s12, 0x7e00\ns_lshl_b32 s12, s12, 1\nv_lshl_add_u32 v10, v4, 13, v5\ns_lshl_b32 m0, s7, 12\ns_addk_i32 m0, {WA}')
    a('s_waitcnt lgkmcnt(0)')
    a('s_mov_b32 s48, s22\ns_mov_b32 s49, s23')
    a('global_load_dwordx4 v[12:15], v11, s[16:17]')
    for r in range(4):
        a(f'buffer_load_dwordx4 v10, s[48:51], s10 offen offset:{r*1024} {NT} lds')
        if r < 3: a('s_add_u32 s10, s10, s12')
    a('s_load_dword s44, s[40:41], 0')
    a('s_barrier\ns_branch L_C')
    a('L_roles:')
    a('s_barrier')
    common()
    a('s_cmp_eq_u32 s7, 4\ns_cbranch_scc1 L_P\ns_cmp_eq_u32 s7, 5\ns_cbranch_scc1 L_M')
    rq, r2 = kw.get('rq', 0), kw.get('r2', 0)
    a('v_mul_u32_u24 v32, 3584, v4\nv_add_u32 v32, v32, v5')
    for r in range(1, 4): a(f'v_add_u32 v{32+r}, {r*(8*3584-1024)}, v32')
    a('v_xor_b32 v14, v3, v2\nv_lshlrev_b32 v14, 4, v14\nv_lshl_add_u32 v18, v2, 8, v14')
    for r in range(1, 4): a(f'v_xor_b32 v{18+r}, {r*64}, v18\nv_add_u32 v{18+r}, {r*7168}, v{18+r}')
    a(f's_lshl3_add_u32 s10, s5, s3\ns_cmp_lt_u32 s10, 28\ns_cselect_b32 s50, {512*3584}, 0\ns_mov_b32 s51, 0x20000')
    a(f's_mul_i32 s12, s6, {64*3584}\ns_lshl_b32 s11, s10, 7\ns_add_u32 s12, s12, s11')
    a(f's_lshl_b32 s13, s5, 23\ns_lshl_b32 s11, s3, 20\ns_add_u32 s13, s13, s11\ns_lshl_b32 s11, s6, 10\ns_add_u32 s13, s13, s11\ns_add_u32 s13, s13, {3072*256}')
    a('s_bfm_b32 s54, 1, 25\ns_mov_b32 s55, s51\ns_mov_b32 s14, s13')
    a('s_waitcnt lgkmcnt(0)')
    s.stamp(1)
    dg = depth // 4
    segs = {'1': (32, 48, 28, 12, 32 * 3584, W1), 'k': (18, 52, 18, 13, 32768, KB), 'v': (22, 56, 20, 14, 32768, VB),
            '2': (26, 60, 32, 15, 32768, W2), 'o': (26, 96, 24, 9, 32768, WO)}
    cnt = {c: 0 for c in segs}
    late = False
    prof = kw.get('prof')
    prof = [int(x, 16) for x in prof] if prof else [dg] * len(order)
    assert len(prof) == len(order)
    landed = 0
    first_wait = min(gi for gi in range(len(order)) if gi + 1 > prof[gi])
    for gi, c in enumerate(order):
        vr, sd, ptr, so, step, lds = segs[c]
        if gi == first_wait:
            a('v_lshlrev_b32 v14, 1, v2\nv_xor_b32 v14, v3, v14\nv_lshlrev_b32 v14, 4, v14\nv_lshl_add_u32 v22, v2, 8, v14')
            a(f'v_xor_b32 v23, 128, v22\nv_add_u32 v24, {2*7168}, v22\nv_add_u32 v25, {3*7168}, v23\nv_add_u32 v23, 7168, v23')
            a('v_lshl_add_u32 v26, v4, 10, v5')
            for r in range(1, 4): a(f'v_add_u32 v{26+r}, {r*7168}, v26')
            a(f's_mov_b32 s58, s54\ns_mov_b32 s59, s51\ns_mov_b32 s62, {1792*1024}\ns_mov_b32 s63, s51\ns_bfm_b32 s98, 1, 22\ns_mov_b32 s99, s51')
            s.srd(56, 20); s.srd(60, 32); s.srd(96, 24)
            a(f's_add_u32 s11, s6, {r2}\ns_and_b32 s11, s11, 7\ns_lshl_b32 s11, s11, 7\ns_lshl_b32 s15, s10, 16\ns_add_u32 s15, s15, s11')
            a('s_lshl2_add_u32 s9, s3, s5\ns_lshl_b32 s9, s9, 17\ns_lshl_b32 s11, s6, 7\ns_add_u32 s9, s9, s11')
            s.stamp(2)
            late = True
        assert late or c in '1k'
        if cnt[c] == 0 and c in '1k': s.srd(sd, ptr)
        a(f's_mov_b32 m0, {lds + cnt[c] * 4096}')
        if cnt[c]: a(f's_add_u32 s{so}, s{so}, {step}')
        while landed < gi + 1 - prof[gi]:
            landed += 1
            if landed in marks or landed == gi + 1 - prof[gi]:
                a(f's_waitcnt vmcnt({(gi-landed)*4})')
            if landed in marks:
                a(f'v_mov_b32 v30, {landed}\nds_write_b32 v8, v30 offset:{C_G}')
                if landed == TH['v'][7]: s.stamp(6)
        for r in range(4):
            a(f'buffer_load_dwordx4 v{vr+r}, s[{sd}:{sd+3}], s{so} offen offset:{r*1024} {NT} lds')
        cnt[c] += 1
    for n in range(landed + 1, len(order) + 1):
        if n in marks:
            if kw.get('obar') and n == len(order) and n != TH['v'][7]:
                a('s_waitcnt vmcnt(0)')
            else:
                a(f'v_mov_b32 v30, {n}\ns_waitcnt vmcnt({(len(order)-n)*4})\nds_write_b32 v8, v30 offset:{C_G}')
            if n == TH['v'][7]: s.stamp(6)
    s.stamp(7)
    if kw.get('obar'): a('s_barrier')
    a('s_branch L_end')

    a('L_C:')
    a('s_setprio 2')
    common()
    s.stamp(1)
    if 'C' in kw.get('kill', ''): a('s_waitcnt vmcnt(0)\ns_branch L_end')
    a('v_bfe_u32 v4, v1, 2, 2\nv_and_b32 v5, 3, v1')
    a(f's_mul_i32 s11, s7, {XS}\ns_add_u32 s11, s11, {XN}')
    a('v_lshrrev_b32 v10, 2, v1\nv_lshlrev_b32 v10, 6, v10\nv_and_b32 v11, 1, v1\nv_lshl_add_u32 v10, v11, 5, v10\nv_and_b32 v11, 2, v1\nv_lshl_add_u32 v10, v11, 2, v10\nv_add_u32 v11, s11, v10')
    a('s_mov_b32 s55, 0xffff0000')
    a('v_lshl_add_u32 v27, v2, 2, v4\nv_bfe_u32 v96, v27, 1, 2\nv_lshlrev_b32 v96, 5, v96\nv_lshl_add_u32 v96, v27, 7, v96\nv_lshl_add_u32 v96, v5, 3, v96')
    a('s_lshl_b32 s12, s7, 5\nv_xor_b32 v10, s12, v96')
    a('s_getreg_b32 s45, hwreg(HW_REG_XCC_ID, 0, 4)')
    a(f'v_mul_u32_u24 v24, {XS}, v5\nv_lshl_add_u32 v24, v2, 4, v24')
    a(f's_lshl_b32 s10, s5, 8\ns_add_u32 s10, s10, {XN}\nv_add_u32 v25, s10, v24')
    a(f's_lshl_b32 s10, s6, 7\ns_add_u32 s10, s10, {YL}\nv_add_u32 v24, s10, v24')
    a(f's_lshl_b32 s14, s3, 15\ns_lshl1_add_u32 s14, s12, s14\ns_lshl_b32 s13, s4, 8\ns_xor_b32 s58, s13, {rq*256}\ns_add_u32 s58, s14, s58\ns_add_u32 s58, s58, {WS_Q}')
    a(f's_lshl2_add_u32 s59, s13, s14\ns_add_u32 s59, s59, {WS_H}')
    a('v_lshlrev_b32 v106, 13, v3\nv_lshl_add_u32 v106, v2, 4, v106\nv_lshlrev_b32 v107, 4, v1\nv_mov_b32 v110, s45')
    s.pack24_consts()
    a('s_mov_b32 s13, 1')
    a('s_waitcnt vmcnt(0)' if kw.get('safeB') else 's_waitcnt vmcnt(4)')
    if not kw.get('ackst'): s.stamp(2)
    a('L_ln:')
    s.layernorm(12, 16, 32)
    a(f'ds_write2_b64 v11, v[12:13], v[14:15] offset1:2\nv_add_u32 v11, {YL-XN}, v11')
    a('s_sub_u32 s13, s13, 1\ns_cbranch_scc0 L_ln')
    s.stamp(3)
    a('s_waitcnt vmcnt(0) lgkmcnt(0)')
    if kw.get('st_tile'): s.stamp(5)
    s.signal(C_WA)
    s.tag_finish()
    a('v_mov_b32 v111, s44\nv_mov_b32 v115, s44')
    s.wait_flag(C_WA, 4, extra=[x for t in range(4) for x in (f'ds_read_b128 v[{64+4*t}:{67+4*t}], v25 offset:{t*64}',
                f'ds_read_b64_tr_b16 v[{40+4*t}:{41+4*t}], v10 offset:{WA+t*4096}', f'ds_read_b64_tr_b16 v[{42+4*t}:{43+4*t}], v10 offset:{WA+t*4096+2048}')])
    for t in range(4):
        a(f's_waitcnt lgkmcnt({9-3*t})')
        s.mfma(16, 40 + 4 * t, 64 + 4 * t, t == 0)
    for t in range(2): a(f'ds_read_b128 v[{80+4*t}:{83+4*t}], v24 offset:{t*64}')
    a('s_mov_b32 exec_lo, 0x000f000f\ns_mov_b32 exec_hi, 0x000f000f')
    a('v_cvt_pk_bf16_f32 v108, v16, v17\nv_cvt_pk_bf16_f32 v109, v18, v19')
    a('buffer_store_dwordx4 v[108:111], v106, s[40:43], s58 offen')
    a('s_mov_b64 exec, -1')
    if not kw.get('ackst'): s.stamp(4)
    s.wait_flag(C_G, TH['1'][1], extra=[f'ds_read_b64_tr_b16 v[{40+2*t}:{41+2*t}], v10 offset:{W1+t*2048}' for t in range(4)], sleep=1)
    for t in range(2):
        a(f's_waitcnt lgkmcnt({2-2*t})')
        s.mfma(16, 40 + 4 * t, 80 + 4 * t, t == 0)
    a('s_mov_b32 exec_lo, 0x000f000f\ns_mov_b32 exec_hi, 0x000f000f')
    s.pack24(112, 16, 17, 18, 19)
    a('buffer_store_dwordx4 v[112:115], v107, s[40:43], s59 offen')
    a('s_mov_b64 exec, -1')
    if 'Q' in kw.get('kill', ''): a('s_branch L_end')
    a(f's_lshl_b32 s10, s7, 13\ns_add_u32 s10, s10, {KB}')
    a(f'v_xor_b32 v10, v2, v3\nv_lshlrev_b32 v10, 4, v10\nv_lshl_add_u32 v10, v3, 8, v10\nv_add_u32 v102, {QL}, v10\nv_add_u32 v10, s10, v10')
    a('v_xor_b32 v103, 64, v102\nv_xor_b32 v104, 128, v102\nv_xor_b32 v105, 192, v102')
    a('v_xor_b32 v11, 64, v10\nv_xor_b32 v12, 128, v10\nv_xor_b32 v13, 192, v10')
    a(f's_lshl_b32 s10, s7, 2\ns_add_u32 s10, s10, {MX}\nv_lshlrev_b32 v15, 4, v5\nv_add_u32 v24, s10, v15\nv_add_u32 v15, {MX}, v15\ns_add_u32 s10, s10, {FP-MX}\nv_mov_b32 v14, s10')
    a(f's_lshl_b32 s10, s7, 10\ns_add_u32 s10, s10, {PL}\nv_lshlrev_b32 v25, 4, v1\nv_add_u32 v26, s10, v25\nv_add_u32 v25, {PL}, v25')
    a('v_and_b32 v28, 7, v27\ns_lshl_b32 s10, s7, 1\nv_xor_b32 v28, s10, v28\nv_lshlrev_b32 v28, 5, v28\nv_lshl_add_u32 v28, v27, 8, v28\nv_lshl_add_u32 v28, v5, 3, v28')
    a(f'v_add_u32 v28, {VB}, v28\nv_xor_b32 v29, 32, v28')
    a(f's_lshr_b32 s10, s7, 1\ns_lshl_b32 s11, s10, 13\ns_add_u32 s11, s11, {WO}')
    a('v_add_u32 v96, s11, v96\nv_xor_b32 v97, 32, v96\nv_xor_b32 v98, 64, v96\nv_xor_b32 v99, 96, v96')
    a('v_lshlrev_b32 v30, 14, v3\nv_lshl_add_u32 v30, v2, 8, v30')
    a(f's_lshl_b32 s14, s3, 16\ns_add_u32 s14, s14, {WS_O}')
    a('s_lshr_b32 s11, s4, 4\ns_lshl2_add_u32 s11, s11, s7\ns_lshl_b32 s11, s11, 11\ns_and_b32 s12, s4, 15\ns_lshl4_add_u32 s11, s12, s11')
    a('v_lshlrev_b32 v31, 4, v1')
    a('v_lshlrev_b32 v101, 11, v2\nv_lshl_add_u32 v101, v3, 4, v101\nv_add_u32 v101, 768, v101')
    a('s_lshl_b32 s15, s5, 14\ns_add_u32 s15, s15, s14\ns_lshl_b32 s10, s10, 12\ns_add_u32 s15, s15, s10\ns_and_b32 s10, s7, 1\ns_lshl_b32 s12, s10, 13\ns_add_u32 s15, s15, s12')
    a('s_add_u32 s14, s14, s11')
    a(f'v_lshlrev_b32 v100, 9, v2\nv_lshl_add_u32 v100, v3, 4, v100\nv_add_u32 v100, {RED}, v100')
    a(f's_lshl_b32 s56, s6, 5\ns_lshl2_add_u32 s56, s3, s56\ns_add_u32 s56, s56, s5\ns_lshl_b32 s56, s56, 10\ns_add_u32 s56, s56, {WS_S}')
    a(f's_mov_b32 s13, {hex(f2u(CSC))}')
    a('s_mov_b32 s12, s13')
    kt = TH['k'][1::2]
    a(f's_lshl_b32 s57, s7, 3\ns_lshr_b32 s57, {kt[0] | kt[1] << 8 | kt[2] << 16 | kt[3] << 24}, s57\ns_and_b32 s57, s57, 0xff')
    a('s_waitcnt vmcnt(1)')
    s.signal(C_QP)
    a('s_waitcnt vmcnt(0)')
    s.signal(C_HP)
    s.wait_flag(C_G, 's57', sleep=1)
    for u in range(2):
        for t in range(4):
            a(f'ds_read_b128 v[{32+16*u+4*t}:{35+16*u+4*t}], v{10+t} offset:{u*4096}')
    if not kw.get('st_tile') and not kw.get('ackst'): s.stamp(5)
    s.wait_flag(F_Q, 1, extra=[f'ds_read_b128 v[{64+4*t}:{67+4*t}], v{102+t}' for t in range(4)])
    s.stamp(6)
    a('v_readfirstlane_b32 s47, v9')
    a('s_cmp_lg_u32 s47, 1\ns_cbranch_scc1 L_qrem')
    a('L_qgo:')
    DP = lambda op, d, x, y, m, rm='0xf': f'{op}_dpp {d}, {x}, {y} {m} row_mask:{rm} bank_mask:0xf'
    for u in range(2):
        for t in range(4):
            if u == 0: a(f's_waitcnt lgkmcnt({3-t})')
            s.mfma(16 + 4 * u, 32 + 16 * u + 4 * t, 64 + 4 * t, t == 0)
    if kw.get('safeC'): a('s_nop 15')
    a('v_mov_b32 v40, s44\nv_mov_b32 v47, s44\nv_mov_b32 v123, s44')
    for u in range(2):
        for k in range(4): a(DP('v_add_f32', f'v{16+4*u+k}', f'v{16+4*u+k}', f'v{16+4*u+k}', 'row_ror:4'))
        for k in range(4): a(DP('v_add_f32', f'v{16+4*u+k}', f'v{16+4*u+k}', f'v{16+4*u+k}', 'row_ror:8'))
        if u == 0: a('v_max3_f32 v10, v16, v17, v18')
    a('v_max3_f32 v10, v10, v19, v20\nv_max3_f32 v11, v21, v22, v23\nv_max_f32 v10, v10, v11\nv_max_f32 v11, v10, v11')
    a('v_permlane16_swap_b32 v11, v10\nv_max_f32 v10, v11, v10\nv_max_f32 v11, v11, v10')
    a('v_permlane32_swap_b32 v11, v10\nv_max_f32 v10, v11, v10\nv_or_b32 v10, 1, v10')
    a('ds_write_b32 v24, v10')
    a('L_mx:')
    a('ds_read_b128 v[32:35], v15')
    s.budget()
    a('s_waitcnt lgkmcnt(0)\nv_min3_u32 v11, v32, v33, v34\nv_max3_f32 v10, v32, v33, v34\nv_min_u32 v11, v11, v35\nv_max_f32 v10, v10, v35\nv_cmp_eq_u32 vcc, 0, v11\nv_mul_f32 v116, s13, v10\ns_cbranch_vccnz L_mx')
    for k in range(4): a(f'v_pk_fma_f32 v[{16+2*k}:{17+2*k}], v[{16+2*k}:{17+2*k}], s[12:13], v[116:117] op_sel_hi:[1,1,0] neg_lo:[0,0,1] neg_hi:[0,0,1]')
    for k in range(8): a(f'v_exp_f32 v{16+k}, v{16+k}')
    for k in range(4): a(f'v_cvt_pk_bf16_f32 v{32+k}, v{16+2*k}, v{17+2*k}')
    a('ds_write_b128 v26, v[32:35]\nds_write_b32 v14, v6\nv_mov_b32 v41, v116')
    for k in range(4): a(f'v_mov_b32 v{52+k}, {hex(ONE2)}')
    a('L_pw:')
    a(f'ds_read_b128 v[36:39], v8 offset:{FP}')
    for t in range(4): a(f'ds_read_b128 v[{64+4*t}:{67+4*t}], v25 offset:{t*1024}')
    s.budget()
    a(f's_waitcnt lgkmcnt({0 if (s.stamps and not kw.get("lean")) or kw.get("safeA") else 4})\nv_min3_u32 v11, v36, v37, v38\nv_min_u32 v11, v11, v39\nv_cmp_eq_u32 vcc, 0, v11\ns_cbranch_vccnz L_pw')
    s.stamp(7)
    WB = 128; VR = 160
    def wo_reads():
        for ks in range(2):
            for T in range(4):
                for u in range(2):
                    r = WB + 16 * ks + 4 * T + 2 * u
                    a(f'ds_read_b64_tr_b16 v[{r}:{r+1}], v{96+T} offset:{ks*4096+u*2048}')
    early = TH['o'][3] < TH['v'][5] and not kw.get('obar')
    vrd = lambda t: [f'ds_read_b64_tr_b16 v[{VR+8*t+4*T+2*u}:{VR+1+8*t+4*T+2*u}], v{28+T} offset:{t*8192+u*4096}' for T in range(2) for u in range(2)]
    s.wait_flag(C_G, TH['v'][5], extra=vrd(0) + vrd(1) + vrd(2), sleep=2)
    for t in range(4): s.mfma(56, 52, 64 + 4 * t, t == 0)
    for t in range(3):
        for T in range(2):
            a(f's_waitcnt lgkmcnt({10-4*t-2*T})')
            s.mfma(16 + 4 * T, VR + 8 * t + 4 * T, 64 + 4 * t, t == 0)
    if early: wo_reads()
    a('v_mov_b32 v46, v56')
    s.wait_flag(C_G, TH['v'][7], extra=vrd(3))
    if not kw.get('ind'): s.stamp(8)
    for T in range(2):
        a(f's_waitcnt lgkmcnt({2-2*T})')
        s.mfma(16 + 4 * T, VR + 24 + 4 * T, 76, False)
    a('s_mov_b32 exec_lo, 0x000f000f\ns_mov_b32 exec_hi, 0x000f000f\ns_cmp_eq_u32 s47, 1')
    for k in range(4): a(f'v_cvt_pk_bf16_f32 v{42+k}, v{16+2*k}, v{17+2*k}')
    a('s_cbranch_scc0 L_orem')
    a('buffer_store_dwordx4 v[40:43], v30, s[40:43], s14 offen\nbuffer_store_dwordx4 v[44:47], v30, s[40:43], s14 offen offset:1024')
    a('L_ost:')
    a('s_mov_b64 exec, -1')
    s.stamp(9)
    if kw.get('ackst'):
        a('s_waitcnt vmcnt(0)')
        s.stamp(5)
    if 'D' in kw.get('kill', ''): a('s_branch L_end')
    if kw.get('od0'): a(f's_sleep {kw["od0"]}')
    if kw.get('obar'): a('s_barrier')
    s.stamp(4) if kw.get('ackst') else None
    if kw.get('ind'):
        if not early:
            s.wait_flag(C_G, TH['o'][3])
            wo_reads()
            early = True
        a('s_mov_b32 exec_hi, 0')
        a('L_ipoll:')
        a('buffer_load_dword v48, v101, s[40:43], s15 offen offset:1036 sc1')
        s.budget()
        if kw.get('isl'):
            a(f's_waitcnt vmcnt(0)\nv_cmp_ne_u32 vcc, s44, v48\ns_cbranch_vccz L_idone\ns_sleep {kw["isl"]}\ns_branch L_ipoll\nL_idone:')
        else:
            a('s_waitcnt vmcnt(0)\nv_cmp_ne_u32 vcc, s44, v48\ns_cbranch_vccnz L_ipoll')
        a('s_mov_b32 exec_hi, -1')
        s.stamp(8)
    for k in range(4): a(f'buffer_load_dwordx4 v[{48+4*k}:{51+4*k}], v31, s[40:43], s15 offen offset:{k*1024} sc1')
    if not early:
        if not kw.get('obar'): s.wait_flag(C_G, TH['o'][3])
        wo_reads()
    if s.stamps:
        if kw.get('ackst'):
            a('s_waitcnt vmcnt(0)')
            s.stamp(2)
        a('s_mov_b32 s61, 0')
    a('L_opoll:')
    a('s_waitcnt vmcnt(0)')
    a('v_xor_b32 v10, s44, v48\nv_bitop3_b32 v10, v55, s44, v10 bitop3:0xbe\nv_bitop3_b32 v10, v56, s44, v10 bitop3:0xbe\nv_bitop3_b32 v10, v63, s44, v10 bitop3:0xbe')
    a('v_cmp_ne_u32 vcc, 0, v10\ns_cbranch_vccz L_odone')
    a('s_mov_b64 exec, vcc')
    if s.stamps: a('s_add_u32 s61, s61, 1')
    if kw.get('osl'): a(f's_sleep {kw["osl"]}')
    for k in range(4): a(f'buffer_load_dwordx4 v[{48+4*k}:{51+4*k}], v31, s[40:43], s15 offen offset:{k*1024} sc1')
    s.budget()
    a('s_branch L_opoll')
    a('L_qrem:')
    a('s_mov_b32 exec_lo, 0x000f000f\ns_mov_b32 exec_hi, 0x000f000f')
    a('buffer_store_dwordx4 v[108:111], v106, s[40:43], s58 offen sc1\nbuffer_store_dwordx4 v[112:115], v107, s[40:43], s59 offen sc1')
    a('s_mov_b64 exec, -1')
    a('L_qrem2:')
    a(f'ds_read_b32 v9, v8 offset:{F_Q}')
    for t in range(4): a(f'ds_read_b128 v[{64+4*t}:{67+4*t}], v{102+t}')
    s.budget()
    a('s_waitcnt lgkmcnt(0)\nv_readfirstlane_b32 s47, v9\ns_cmp_eq_u32 s47, 4\ns_cbranch_scc0 L_qgo\ns_sleep 2\ns_branch L_qrem2')
    a('L_orem:')
    a('buffer_store_dwordx4 v[40:43], v30, s[40:43], s14 offen sc1\nbuffer_store_dwordx4 v[44:47], v30, s[40:43], s14 offen offset:1024 sc1')
    a('s_branch L_ost')
    a('L_odone:')
    a('s_mov_b64 exec, -1')
    s.stamp(11)
    a('s_waitcnt lgkmcnt(0)')
    if s.stamps: a('s_mul_i32 s61, s61, 100\ns_add_u32 s70, s64, s61')
    M8 = ('quad_perm:[1,0,3,2]', 'quad_perm:[2,3,0,1]', 'row_half_mirror')
    D = lambda op, d, x, y, m, rm='0xf': f'{op}_dpp {d}, {x}, {y} {m} row_mask:{rm} bank_mask:0xf'
    R = lambda m, rm: f'v_mov_b32_dpp v23, v21 {m} row_mask:{rm} bank_mask:0xf'
    wv = [D('v_max_f32', 'v20', 'v49', 'v49', M8[0]), None, D('v_max_f32', 'v20', 'v20', 'v20', M8[1]), None, D('v_max_f32', 'v20', 'v20', 'v20', M8[2]),
          'v_sub_f32 v21, v49, v20', 'v_exp_f32 v21, v21', None, 'v_mul_f32 v22, v54, v21', 'v_mov_b32 v23, v21', None,
          D('v_add_f32', 'v22', 'v22', 'v22', M8[0]), R('row_ror:12', '0x2'), None, D('v_add_f32', 'v22', 'v22', 'v22', M8[1]), R('row_ror:8', '0x4'), None,
          D('v_add_f32', 'v22', 'v22', 'v22', M8[2]), R('row_ror:4', '0x8'), 'v_rcp_f32 v22, v22', None]
    mf = [(32 + 4 * T, 50 + 8 * ks, WB + 16 * ks + 4 * T, ks == 0) for ks in range(2) for T in range(4)]
    s.mfma(*mf.pop(0))
    for x in wv:
        if x is None: s.mfma(*mf.pop(0))
        else: a(x)
    assert not mf
    a('v_mul_f32 v21, v22, v23')
    a(D('v_mul_f32', 'v21', 'v22', 'v23', 'row_ror:8', '0xc'))
    for T in range(4): a(D('v_mul_f32', f'v{16+T}', 'v21', f'v{32+4*T}', 'row_newbcast:0'))
    for r in range(1, 4):
        for T in range(4): a(D('v_fmac_f32', f'v{16+T}', 'v21', f'v{32+4*T+r}', f'row_newbcast:{r}'))
    a(f'ds_write_b128 v26, v[16:19] offset:{RED-PL}')
    a('s_waitcnt lgkmcnt(0)\ns_barrier')
    s.stamp(12)
    a('s_cmp_lg_u32 s7, 0\ns_cbranch_scc1 L_end')
    for k in range(4): a(f'ds_read_b128 v[{48+4*k}:{51+4*k}], v100 offset:{(k>>1)*2048+(k&1)*256}')
    a('s_waitcnt lgkmcnt(2)')
    a('v_pk_add_f32 v[48:49], v[48:49], v[52:53]\nv_pk_add_f32 v[50:51], v[50:51], v[54:55]')
    a('s_waitcnt lgkmcnt(1)')
    a('v_pk_add_f32 v[48:49], v[48:49], v[56:57]\nv_pk_add_f32 v[50:51], v[50:51], v[58:59]')
    a('s_waitcnt lgkmcnt(0)')
    a('v_pk_add_f32 v[48:49], v[48:49], v[60:61]\nv_pk_add_f32 v[50:51], v[50:51], v[62:63]')
    s.pack24(120, 48, 49, 50, 51)
    a('buffer_store_dwordx4 v[120:123], v31, s[40:43], s56 offen sc1')
    s.stamp(13)
    a('v_lshrrev_b32 v10, 1, v1\nv_lshlrev_b32 v10, 10, v10\nv_and_b32 v11, 1, v1\nv_lshl_add_u32 v10, v11, 4, v10')
    a(f's_lshl_b32 s10, s3, 15\ns_lshl_b32 s11, s4, 5\ns_add_u32 s10, s10, s11\ns_add_u32 s12, s10, {WS_M}\ns_add_u32 s10, s10, {WS_S}')
    a('v_mov_b32 v32, 0\nv_mov_b32 v33, 0\nv_mov_b32 v34, 0\ns_mov_b32 exec_hi, 0x00ffffff')
    a('L_mpoll:')
    a('buffer_load_dwordx4 v[32:35], v10, s[40:43], s12 offen sc1')
    s.budget()
    a('s_waitcnt vmcnt(0)\nv_cmp_ne_u32 vcc, s44, v35\ns_cbranch_vccnz L_mpoll')
    a('s_mov_b64 exec, -1')
    a('buffer_load_dwordx4 v[16:19], v10, s[40:43], s10 offen sc1')
    s.stamp(10)
    a(f'v_lshlrev_b32 v14, 3, v1\nv_add_u32 v14, {GX}, v14\nds_read_b64 v[12:13], v14')
    s.unpack24_consts()
    s.srd_const(48, 4096); s.srd(48, 36)
    a('v_lshlrev_b32 v14, 5, v2\nv_lshl_add_u32 v14, v11, 1, v14')
    a('s_lshl_b32 s11, s5, 10\ns_lshl_b32 s12, s3, 7\ns_add_u32 s11, s11, s12\ns_lshl2_add_u32 s11, s6, s11')
    s.unpack24(32)
    s.reduce32(32)
    a('s_waitcnt lgkmcnt(0)')
    s.round_bf16('v32')
    a('v_add_f32 v32, v32, v12')
    s.round_bf16('v32')
    a(f'v_mul_f32 v33, {hex(f2u(-math.log2(math.e)))}, v32\nv_exp_f32 v33, v33\nv_add_f32 v33, 1.0, v33\nv_rcp_f32 v33, v33\nv_mul_f32 v12, v32, v33')
    s.round_bf16('v12')
    if kw.get('fgap', 1): a(f's_sleep {kw.get("fgap", 1)}')
    a('L_fpoll:')
    a('buffer_load_dwordx4 v[20:23], v10, s[40:43], s10 offen sc1')
    s.budget()
    a('s_waitcnt vmcnt(1)\nv_cmp_ne_u32 vcc, s44, v19\ns_cbranch_vccz L_fdone')
    a('buffer_load_dwordx4 v[16:19], v10, s[40:43], s10 offen sc1')
    a('s_waitcnt vmcnt(1)\nv_cmp_ne_u32 vcc, s44, v23\ns_cbranch_vccnz L_fpoll')
    def finish(r):
        s.stamp(14)
        s.unpack24(r)
        s.reduce32(r)
        s.round_bf16(f'v{r}')
        a(f'v_mul_f32 v{r}, v{r}, v12')
        s.round_bf16(f'v{r}')
        a(f'v_add_f32 v{r}, v{r}, v13')
        a('s_mov_b32 exec_lo, 0x00030003\ns_mov_b32 exec_hi, 0x00030003')
        a(f'v_cvt_pk_bf16_f32 v{r}, v{r}, v{r}')
        a(f'buffer_store_short v{r}, v14, s[48:51], s11 offen')
    finish(20)
    a('s_branch L_epoch')
    a('L_fdone:')
    finish(16)
    a('L_epoch:')
    s.stamp(15)
    a('s_cmp_lg_u32 s2, 0\ns_cbranch_scc1 L_end')
    a('s_mov_b64 exec, 1\nv_mov_b32 v10, 0\nv_mov_b32 v11, s44\nbuffer_store_dword v11, v10, s[40:43], 0 offen sc1')
    a('s_branch L_end')

    a('L_P:')
    if 'P' in kw.get('kill', ''): a('s_waitcnt lgkmcnt(0)\ns_branch L_end')
    a('s_setprio 3')
    a('s_getreg_b32 s45, hwreg(HW_REG_XCC_ID, 0, 4)')
    a('v_and_b32 v5, 3, v1')
    a(f's_lshl_b32 s10, s3, 15\ns_lshl_b32 s12, s4, 10\ns_add_u32 s12, s12, s10')
    a('s_waitcnt lgkmcnt(0)')
    a('s_load_dword s44, s[40:41], 0')
    a(f's_lshl_b32 s11, s5, 13\ns_add_u32 s10, s10, s11\ns_add_u32 s10, s10, {WS_Q}\ns_add_u32 s15, s10, 4096')
    a('v_lshlrev_b32 v10, 4, v1')
    a(f'v_lshrrev_b32 v11, 5, v1\nv_and_b32 v12, 31, v1\nv_lshlrev_b32 v13, 3, v12\nv_lshlrev_b32 v14, 4, v11\nv_xor_b32 v13, v13, v14\nv_lshl_add_u32 v13, v11, 8, v13\nv_add_u32 v22, {QL}, v13')
    for c in range(1, 8): a(f'v_xor_b32 v{22+c}, {c*32}, v22')
    a(f's_mov_b32 s14, {kw.get("nfast", 48)}')
    a('s_waitcnt lgkmcnt(0)')
    s.stamp(1)
    s.tag_finish()
    if 'W' in kw.get('kill', ''): a('s_branch L_end')
    s.wait_flag(C_QP, 4, sleep=1)
    if q0: a(f's_sleep {q0}')
    s.stamp(2)
    a('L_qpoll:')
    for c in range(8): a(f'buffer_load_dwordx4 v[{32+4*c}:{35+4*c}], v10, s[40:43], s{10 if c < 4 else 15} offen offset:{(c&3)*1024} sc1')
    s.budget()
    a('s_waitcnt vmcnt(0)')
    a('v_xor_b32 v15, s44, v35')
    for c in range(1, 8): a(f'v_bitop3_b32 v15, v{35+4*c}, s44, v15 bitop3:0xbe')
    a('v_cmp_ne_u32 vcc, 0, v15\ns_cbranch_vccz L_qgot')
    a(f's_mov_b64 exec, vcc\ns_sub_u32 s14, s14, 1\ns_cbranch_scc0 L_qpoll')
    a(f'v_mov_b32 v15, 4\nds_write_b32 v8, v15 offset:{F_Q}\ns_branch L_qpoll')
    a('L_qgot:')
    a('s_mov_b64 exec, -1')
    a('v_xor_b32 v15, s45, v34')
    for c in range(8):
        a(f'ds_write_b64 v{22+c}, v[{32+4*c}:{33+4*c}] offset:{c*512}')
        if c < 7: a(f'v_bitop3_b32 v15, v{38+4*c}, s45, v15 bitop3:0xbe')
    a('v_cmp_ne_u32 vcc, 0, v15\ns_cmp_eq_u64 vcc, 0\ns_cselect_b32 s47, 1, 2')
    if kw.get('force_remote'): a('s_mov_b32 s47, 2')
    a(f'v_mov_b32 v15, s47\nds_write_b32 v8, v15 offset:{F_Q}')
    s.stamp(3)
    if kw.get('warm', 1) == 1:
        a('s_lshl_b32 s12, s12, 1\ns_add_u32 s48, s40, s12\ns_addc_u32 s49, s41, 0')
        for k in range(32): a(f's_load_dword s52, s[48:49], {WS_O + k*64}')
    elif kw.get('warm', 1) == 2:
        a(f's_lshl_b32 s12, s12, 1\ns_add_u32 s12, s12, {WS_O}\nv_lshlrev_b32 v10, 7, v1\ns_mov_b64 exec, 0xffff\nbuffer_load_dword v7, v10, s[40:43], s12 offen')
    a('s_branch L_end')

    a('L_M:')
    if kw.get('safeD'): a('s_setprio 0\ns_branch L_M2')
    if 'M' in kw.get('kill', ''): a('s_waitcnt lgkmcnt(0)\ns_branch L_end')
    a('s_setprio 3')
    a('L_M2:')
    a('v_bfe_u32 v4, v1, 2, 2\nv_and_b32 v5, 3, v1')
    a('v_lshl_add_u32 v10, v4, 2, v2')
    a('v_lshlrev_b32 v11, 3, v10')
    a('v_lshlrev_b32 v10, 4, v1')
    a('s_lshl3_add_u32 s15, s5, s3\ns_lshl_b32 s11, s15, 7')
    a('v_and_b32 v24, 1, v1\nv_lshlrev_b32 v25, 5, v2\nv_lshl_add_u32 v25, v24, 1, v25')
    a('s_lshl_b32 s12, s3, 7\ns_lshl2_add_u32 s12, s6, s12\ns_lshl_b32 s13, s5, 10\ns_add_u32 s13, s13, s12')
    s.srd_const(56, 3584); s.srd_const(60, 1024); s.srd_const(96, 4096)
    a('s_waitcnt lgkmcnt(0)')
    a('s_load_dword s44, s[40:41], 0')
    s.srd(56, 30); s.srd(60, 34); s.srd(96, 16)
    a('buffer_load_ushort v16, v25, s[60:63], s12 offen')
    a('buffer_load_ushort v17, v25, s[96:99], s13 offen')
    a('buffer_load_dwordx2 v[14:15], v11, s[56:59], s11 offen')
    a(f'v_mul_u32_u24 v11, {HS}, v5\nv_lshl_add_u32 v11, v2, 4, v11\nv_lshrrev_b32 v12, 1, v4\nv_lshl_add_u32 v11, v12, 6, v11\nv_and_b32 v12, 1, v4\nv_lshl_add_u32 v11, v12, 3, v11\nv_add_u32 v11, {HL}, v11')
    a(f'v_mul_u32_u24 v12, {HS}, v4\nv_lshl_add_u32 v12, v2, 4, v12\nv_add_u32 v12, {HL}, v12')
    a(f'v_lshl_add_u32 v27, v2, 2, v4\nv_bfe_u32 v28, v27, 1, 2\nv_lshlrev_b32 v28, 5, v28\nv_lshl_add_u32 v28, v27, 7, v28\nv_lshl_add_u32 v28, v5, 3, v28\nv_add_u32 v28, {W2}, v28')
    a('v_xor_b32 v29, 32, v28\nv_xor_b32 v30, 64, v28\nv_xor_b32 v31, 96, v28')
    a(f'v_lshlrev_b32 v13, 3, v1\nv_add_u32 v13, {GX}, v13')
    a('s_waitcnt vmcnt(1) lgkmcnt(0)')
    a('v_lshlrev_b32 v16, 16, v16\nv_lshlrev_b32 v17, 16, v17\nds_write_b64 v13, v[16:17]')
    a('s_cmp_ge_u32 s15, 28\ns_cbranch_scc1 L_end')
    s.tag_finish()
    s.pack24_consts(); s.unpack24_consts()
    s.wait_flag(C_HP, 4, sleep=1)
    if kw.get('hq'): s.wait_flag(F_Q, 1, sleep=1)
    if kw.get('h0', 8): a(f's_sleep {kw.get("h0", 8)}')
    a(f's_lshl2_add_u32 s10, s3, s5\ns_lshl_b32 s10, s10, 13\ns_add_u32 s10, s10, {WS_H}\ns_add_u32 s11, s10, 4096')
    s.stamp(2)
    a('L_hpoll:')
    for c in range(8): a(f'buffer_load_dwordx4 v[{32+4*c}:{35+4*c}], v10, s[40:43], s{10 + (c>>2)} offen offset:{(c&3)*1024} sc1')
    s.budget()
    a('s_waitcnt vmcnt(0)')
    a('v_xor_b32 v13, s44, v35')
    for c in range(1, 8): a(f'v_bitop3_b32 v13, v{35+4*c}, s44, v13 bitop3:0xbe')
    a('v_cmp_ne_u32 vcc, 0, v13\ns_cbranch_vccnz L_hpoll')
    s.stamp(3)
    for c in range(8): s.unpack24(32 + 4 * c)
    for st in (16, 8, 4):
        for r in range(32, 32 + st, 2): a(f'v_pk_add_f32 v[{r}:{r+1}], v[{r}:{r+1}], v[{r+st}:{r+st+1}]')
    a('v_cvt_pk_bf16_f32 v36, v32, v33\nv_cvt_pk_bf16_f32 v37, v34, v35')
    for k in range(2):
        a(f'v_lshlrev_b32 v{32+2*k}, 16, v{36+k}\nv_and_b32 v{33+2*k}, 0xffff0000, v{36+k}\nv_lshlrev_b32 v{40+2*k}, 16, v{14+k}\nv_and_b32 v{41+2*k}, 0xffff0000, v{14+k}')
    for k in range(4): a(f'v_add_f32 v{32+k}, v{32+k}, v{40+k}')
    a('v_cvt_pk_bf16_f32 v36, v32, v33\nv_cvt_pk_bf16_f32 v37, v34, v35')
    for k in range(2): a(f'v_lshlrev_b32 v{32+2*k}, 16, v{36+k}\nv_and_b32 v{33+2*k}, 0xffff0000, v{36+k}')
    K1 = -2 * math.sqrt(2 / math.pi) * math.log2(math.e)
    a(f'v_mov_b32 v44, {hex(f2u(K1))}')
    for k in range(4): a(f'v_mul_f32 v{36+k}, v{32+k}, v{32+k}')
    for k in range(4): a(f'v_fmamk_f32 v{36+k}, v{36+k}, {hex(f2u(K1*0.044715))}, v44')
    for k in range(4): a(f'v_mul_f32 v{36+k}, v{36+k}, v{32+k}')
    for k in range(4): a(f'v_exp_f32 v{36+k}, v{36+k}')
    for k in range(4): a(f'v_add_f32 v{36+k}, 1.0, v{36+k}')
    for k in range(4): a(f'v_rcp_f32 v{36+k}, v{36+k}')
    for k in range(4): a(f'v_mul_f32 v{32+k}, v{32+k}, v{36+k}')
    a('v_cvt_pk_bf16_f32 v40, v32, v33\nv_cvt_pk_bf16_f32 v41, v34, v35')
    a('ds_write_b64 v11, v[40:41]\nds_read_b128 v[48:51], v12\nds_read_b128 v[52:55], v12 offset:64')
    a(f's_add_u32 s10, s6, {r2}\ns_and_b32 s10, s10, 7\ns_lshl_b32 s10, s10, 5\ns_add_u32 s10, s10, s15\ns_lshl_b32 s10, s10, 10\ns_add_u32 s10, s10, {WS_M}')
    a('v_lshlrev_b32 v10, 4, v1\nv_mov_b32 v23, s44')
    s.wait_flag(C_G, TH['2'][1], sleep=1)
    for ks in range(2):
        for T in range(4):
            for u in range(2):
                r = 64 + 16 * ks + 4 * T + 2 * u
                a(f'ds_read_b64_tr_b16 v[{r}:{r+1}], v{28+T} offset:{ks*4096+u*2048}')
    a('s_waitcnt lgkmcnt(0)')
    for ks in range(2):
        for T in range(4): s.mfma(32 + 4 * T, 48 + 4 * ks, 64 + 16 * ks + 4 * T, ks == 0)
    s.pack24(20, 32, 36, 40, 44)
    a('buffer_store_dwordx4 v[20:23], v10, s[40:43], s10 offen sc1')
    s.stamp(4)
    a('L_end:')
    if kw.get('probe'):
        pw, pst, pm, pb = kw['probe']
        a(f's_waitcnt lgkmcnt(0)\ns_cmp_lg_u32 s7, {pw}\ns_cbranch_scc1 L_exit')
        if pw >= 4: a('s_barrier\ns_barrier' if kw.get('obar') and pw != 6 else 's_barrier')
        if kw.get('pg') is not None: a(f's_cmp_lg_u32 s3, {kw["pg"]}\ns_cbranch_scc1 L_exit')
        a(f's_sub_u32 s10, s{64+2*pst}, s64\ns_mul_i32 s10, s10, {pm}\ns_add_u32 s10, s10, {pb}\ns_min_u32 s10, s10, 20000')
        a('L_padloop:\ns_memrealtime s[12:13]\ns_waitcnt lgkmcnt(0)\ns_sub_u32 s11, s12, s64\ns_cmp_lt_u32 s11, s10\ns_cbranch_scc1 L_padloop')
    s.dump_stamps()
    a('L_exit:')
    a('s_endpgm')
    lines, added = hazard.fix(s.o, verbose=kw.get('verbose', False))
    return wrap('\n'.join(lines) + '\n', 256, NW * 64, LDS_TOTAL, 192)

if __name__ == '__main__':
    import ast
    out = sys.argv[1]
    kw = {}
    for x in sys.argv[2:]:
        k, v = x.split('=')
        try: kw[k] = ast.literal_eval(v)
        except Exception: kw[k] = v
    open(out, 'w').write(gen(**kw))
```

```python
import sys, math, struct
sys.path.insert(0, 'dev')
from common import *
import hazard

def f2u(x):
    return struct.unpack('<I', struct.pack('<f', x))[0]

NW = 7
FL = 0
WA, W1, KB, W2, VB, WO = [2048 + x for x in (0, 16384, 24576, 57344, 65536, 98304)]
XN = 2048 + 114688; XS = 1088
YL = XN + 4 * XS
QL = YL + 4 * XS
assert QL % 256 == 0
PL = QL + 4096
RED = PL + 4096
HL = RED + 4096; HS = 144
MX = 128
FP = 192
GX = HL + 640
LDS_TOTAL = GX + 512
C_WA, C_G, C_XN, F_Q, C_MX, C_P, F_WT, C_QP, C_Y, C_HP, T_A, T_B, F_K = [4 * i for i in range(13)]

WS_Q = 0x1000
WS_H = WS_Q + 0x40000
WS_LSE = WS_H + 0x40000
WS_O = WS_LSE + 0x4000
WS_M = WS_O + 0x80000
WS_S = 0x150000
assert WS_S >= WS_M + 0x40000
WS_T = WS_S + 0x80000
WS_N = WS_T + 0x10000
WS_END = WS_T + 0x20000
assert WS_END <= 0x200000
STAMP = 0x8000000

class G:
    def __init__(s, **kw):
        s.o = []
        s.nl = 0
        s.kw = kw
        s.stamps = kw.get('stamps', False)
    def a(s, t):
        for l in t.split('\n'):
            l = l.strip()
            if l: s.o.append(l)
    def lab(s, p='L'):
        s.nl += 1
        return f'{p}_{s.nl}'
    def stamp(s, i):
        pr = s.kw.get('probe')
        only = s.kw.get('only')
        if (s.stamps and (only is None or i in only or i == 0)) or (pr and i in (0, pr[1])):
            s.a(f's_memrealtime s[{64+2*i}:{65+2*i}]')
    def budget(s):
        s.a('s_sub_u32 s46, s46, 1\ns_cbranch_scc1 L_end')
    def wait_flag(s, off, n, extra=None, sleep=0, vt='v9'):
        L = s.lab('W')
        if sleep:
            L2 = s.lab('W')
            s.a(f's_branch {L2}\n{L}:\ns_sleep {sleep}\n{L2}:')
        else:
            s.a(f'{L}:')
        s.a(f'ds_read_b32 {vt}, v8 offset:{off}')
        ne = 0
        if extra:
            for e in extra: s.a(e)
            ne = len(extra)
        s.budget()
        s.a(f's_waitcnt lgkmcnt({0 if (s.stamps and not s.kw.get("lean")) or s.kw.get("probe") or (s.kw.get("safeA") and ne > 6) else min(ne, 15)})')
        s.a(f'v_cmp_gt_u32 vcc, {n}, {vt}')
        s.a(f's_cbranch_vccnz {L}')
    def signal(s, off):
        s.a(f's_mov_b64 exec, 1\nds_add_u32 v8, v6 offset:{off}\ns_mov_b64 exec, -1')
    def srd(s, d, p):
        s.a(f's_mov_b32 s{d}, s{p}\ns_mov_b32 s{d+1}, s{p+1}')
    def srd_const(s, d, n):
        s.a(f's_mov_b32 s{d+2}, {n}\ns_mov_b32 s{d+3}, 0x20000')
    def wave_sum(s, v, sd):
        for m in ('quad_perm:[1,0,3,2]', 'quad_perm:[2,3,0,1]', 'row_half_mirror', 'row_mirror'):
            s.a(f'v_add_f32_dpp {v}, {v}, {v} {m} row_mask:0xf bank_mask:0xf')
        s.a(f'v_add_f32_dpp {v}, {v}, {v} row_bcast:15 row_mask:0xa bank_mask:0xf')
        s.a(f'v_add_f32_dpp {v}, {v}, {v} row_bcast:31 row_mask:0xc bank_mask:0xf')
        s.a(f'v_readlane_b32 {sd}, {v}, 63')
    def rows_allreduce(s, op, v, t):
        s.a(f'v_mov_b32 {t}, {v}\nv_permlane16_swap_b32 {t}, {v}\n{op} {v}, {t}, {v}')
        s.a(f'v_mov_b32 {t}, {v}\nv_permlane32_swap_b32 {t}, {v}\n{op} {v}, {t}, {v}')
    def layernorm(s, src, f, t):
        P = lambda r: f'v[{r}:{r+1}]'
        for k in range(4):
            s.a(f'v_lshlrev_b32 v{f+2*k}, 16, v{src+k}\nv_and_b32 v{f+2*k+1}, s55, v{src+k}')
        s.a(f'v_pk_add_f32 {P(t)}, {P(f)}, {P(f+2)}\nv_pk_add_f32 {P(t+2)}, {P(f+4)}, {P(f+6)}\nv_pk_add_f32 {P(t)}, {P(t)}, {P(t+2)}\nv_add_f32 v{t}, v{t}, v{t+1}')
        s.wave_sum(f'v{t}', 's10')
        s.a(f'v_mov_b32 v{src+3}, {hex(f2u(1/512))}')
        s.a(f'v_mul_f32 v{src}, s10, v{src+3}')
        for k in range(4):
            s.a(f'v_pk_add_f32 {P(t+2*k)}, {P(f+2*k)}, {P(src)} op_sel_hi:[1,0] neg_lo:[0,1] neg_hi:[0,1]')
        s.a(f'v_pk_mul_f32 {P(t)}, {P(t)}, {P(t)}')
        for k in range(1, 4):
            s.a(f'v_pk_fma_f32 {P(t)}, {P(t+2*k)}, {P(t+2*k)}, {P(t)}')
        s.a(f'v_add_f32 v{t}, v{t}, v{t+1}')
        s.a(f'v_cvt_pk_bf16_f32 v{src}, v{src}, v{src}\nv_lshlrev_b32 v{src}, 16, v{src}')
        ms = ['quad_perm:[1,0,3,2] row_mask:0xf', 'quad_perm:[2,3,0,1] row_mask:0xf', 'row_half_mirror row_mask:0xf', 'row_mirror row_mask:0xf', 'row_bcast:15 row_mask:0xa', 'row_bcast:31 row_mask:0xc']
        fill = [f'v_pk_add_f32 {P(f+2*k)}, {P(f+2*k)}, {P(src)} op_sel_hi:[1,0] neg_lo:[0,1] neg_hi:[0,1]' for k in range(4)]
        fill += [f'v_cvt_pk_bf16_f32 v{t+2+k}, v{f+2*k}, v{f+2*k+1}' for k in range(4)]
        for k in range(4): fill += [f'v_lshlrev_b32 v{f+2*k}, 16, v{t+2+k}', f'v_and_b32 v{f+2*k+1}, s55, v{t+2+k}']
        for m in ms:
            s.a(f'v_add_f32_dpp v{t}, v{t}, v{t} {m} bank_mask:0xf')
            s.a(fill.pop(0)); s.a(fill.pop(0))
        s.a(f'v_readlane_b32 s10, v{t}, 63')
        s.a(fill.pop(0)); s.a(fill.pop(0))
        s.a(f'v_mul_f32 v{src}, s10, v{src+3}')
        s.a(f'v_cvt_pk_bf16_f32 v{src}, v{src}, v{src}\nv_lshlrev_b32 v{src}, 16, v{src}')
        s.a(f'v_add_f32 v{src}, {hex(f2u(1e-5))}, v{src}')
        s.a(f'v_cvt_pk_bf16_f32 v{src}, v{src}, v{src}\nv_lshlrev_b32 v{src}, 16, v{src}')
        s.a(f'v_sqrt_f32 v{src}, v{src}')
        s.a(fill.pop(0))
        s.a(f'v_cvt_pk_bf16_f32 v{src}, v{src}, v{src}\nv_lshlrev_b32 v{src}, 16, v{src}')
        s.a(f'v_rcp_f32 v{src}, v{src}')
        s.a(fill.pop(0))
        assert not fill
        for k in range(4):
            s.a(f'v_pk_mul_f32 {P(f+2*k)}, {P(f+2*k)}, {P(src)} op_sel_hi:[1,0]')
        for k in range(4):
            s.a(f'v_cvt_pk_bf16_f32 v{src+k}, v{f+2*k}, v{f+2*k+1}')
    def round_bf16(s, v):
        s.a(f'v_cvt_pk_bf16_f32 {v}, {v}, {v}\nv_lshlrev_b32 {v}, 16, {v}')
    def tag_finish(s):
        s.a('s_mul_i32 s44, s44, 0x2c9277b5\ns_add_u32 s44, s44, 0xac564b05')
    def pack24(s, d, a, b, c, e):
        s.a(f'v_perm_b32 v{d}, v{a}, v{e}, s50\nv_perm_b32 v{d+1}, v{b}, v{e}, s51\nv_perm_b32 v{d+2}, v{c}, v{e}, s52')
    def pack24_consts(s):
        s.a('s_mov_b32 s50, 0x07060503\ns_mov_b32 s51, 0x07060502\ns_mov_b32 s52, 0x07060501')
    def unpack24(s, r):
        s.a(f'v_perm_b32 v{r+3}, v{r}, v{r+1}, s53\nv_perm_b32 v{r+3}, v{r+3}, v{r+2}, s54')
    def unpack24_consts(s):
        s.a('s_mov_b32 s53, 0x04000c0c\ns_mov_b32 s54, 0x0706000c')
    def reduce32(s, r):
        s.a(f'v_permlane32_swap_b32 v{r}, v{r+2}\nv_permlane32_swap_b32 v{r+1}, v{r+3}')
        s.a(f'v_add_f32 v{r}, v{r}, v{r+2}\nv_add_f32 v{r+1}, v{r+1}, v{r+3}')
        s.a(f'v_permlane16_swap_b32 v{r}, v{r+1}\nv_add_f32 v{r}, v{r}, v{r+1}')
        for m in ('row_ror:8', 'row_ror:4', 'row_ror:2'):
            s.a(f'v_add_f32_dpp v{r}, v{r}, v{r} {m} row_mask:0xf bank_mask:0xf')
    def mfma(s, d, A, B, first):
        s.a(f'v_mfma_f32_16x16x32_bf16 v[{d}:{d+3}], v[{A}:{A+3}], v[{B}:{B+3}], {"0" if first else f"v[{d}:{d+3}]"}')
    def mlp_slot(s, d, t):
        ha = s.kw.get('ha', 4)
        s.a(f's_mul_i32 s{d}, s5, 6\ns_add_u32 s{d}, s{d}, s3\ns_cmp_gt_u32 s3, {ha}\ns_cselect_b32 s{t}, 2, 0\ns_sub_u32 s{d}, s{d}, s{t}\ns_lshl_b32 s{d}, s{d}, 1')
        s.a(f's_lshl2_add_u32 s{t}, s3, s5\ns_add_u32 s{t}, s{t}, {48-4*ha}')
        s.a(f's_bitcmp1_b32 {3 << ha}, s3\ns_cselect_b32 s{d}, s{t}, s{d}')
    def hint(s, name, off, nq, tries, sub):
        a = s.a
        a(f's_lshl_b32 s48, s3, 7\ns_add_u32 s48, s48, {WS_N + off}\ns_add_u32 s49, s48, s4')
        a('s_and_b32 s50, s44, 0xff\ns_mul_i32 s50, s50, 0x01010101\ns_mov_b32 s51, s50\nv_mov_b32 v21, s50')
        if sub: a('s_andn2_b32 s48, s49, 7')
        a(f's_mov_b32 s47, {tries}')
    def hint_go(s, name, nq):
        a = s.a
        a('s_mov_b64 exec, 1\nbuffer_store_byte v21, v8, s[40:43], s49 offen\ns_mov_b64 exec, -1')
        a(f'L_{name}:')
        a(f's_load_dwordx{2*nq} s[52:{51+2*nq}], s[40:41], s48 glc')
        a(f's_sub_u32 s47, s47, 1\ns_cbranch_scc1 L_{name}d\ns_waitcnt lgkmcnt(0)')
        for k in range(nq): a(f's_xor_b64 s[{52+2*k}:{53+2*k}], s[{52+2*k}:{53+2*k}], s[50:51]')
        for k in range(1, nq): a(f's_or_b64 s[52:53], s[52:53], s[{52+2*k}:{53+2*k}]')
        a(f's_cbranch_scc1 L_{name}\nL_{name}d:\ns_waitcnt lgkmcnt(0)')
    def dump_stamps(s, nst=16):
        if not s.stamps: return
        s.a('s_waitcnt lgkmcnt(0)\ns_mov_b64 exec, -1\nv_mov_b32 v10, 0')
        for i in range(nst):
            s.a(f'v_writelane_b32 v10, s{64+2*i}, {i}')
        s.a(f's_mul_i32 s10, s2, {NW*64}\ns_lshl_b32 s11, s7, 6\ns_add_u32 s10, s10, s11\ns_add_u32 s10, s10, {STAMP}')
        s.a('v_lshlrev_b32 v11, 2, v1\ns_mov_b64 exec, 0xffff\nbuffer_store_dword v10, v11, s[40:43], s10 offen ' + s.kw.get('stfl', ''))

def gen(**kw):
    s = G(**kw)
    a = s.a
    depth = kw.get('depth', 20)
    NT = kw.get('nt', 'nt')
    npq = kw.get('npq', 2); gapq = kw.get('gapq', 12); q0 = kw.get('q0', 4)
    npl = kw.get('npl', 4); gapl = kw.get('gapl', 6)
    CSC = math.log2(math.e) / math.sqrt(128)
    ONE2 = 0x3f803f80
    order = kw.get('order', '11kkkkkkkk22vvvvvvvvoooo')
    TH = {c: [i + 1 for i, x in enumerate(order) if x == c] for c in '1k2vo'}
    assert [len(TH[c]) for c in '1k2vo'] == [2, 8, 2, 8, 4]
    marks = {TH['1'][1], TH['2'][1], TH['o'][3], len(order) - (kw.get('oe') or 0), kw.get('qg') or 2} | set(TH['k'][1::2]) | set(TH['v'][1::2])
    def common():
        if s.stamps:
            for i in range(1, 16): a(f's_mov_b32 s{64+2*i}, 0')
        a('v_and_b32 v1, 63, v0\ns_lshr_b32 s5, s4, 3\ns_and_b32 s6, s4, 7')
        a(f's_mov_b32 s42, {STAMP + 0x100000 if s.stamps else WS_END}\ns_mov_b32 s43, 0x20000')
        a(f's_mov_b32 s46, {kw.get("budget", 400000)}')
        a('v_mov_b32 v6, 1')
        a('v_lshrrev_b32 v2, 4, v1\nv_and_b32 v3, 15, v1')
    s.stamp(0)
    a('s_load_dwordx16 s[16:31], s[0:1], 0\ns_load_dwordx8 s[32:39], s[0:1], 64\ns_load_dwordx2 s[40:41], s[0:1], 96')
    a('s_lshr_b32 s4, s2, 3\ns_cmp_ge_u32 s4, 32\ns_cbranch_scc1 L_exit')
    a('v_lshrrev_b32 v2, 6, v0\nv_bfe_u32 v4, v0, 3, 3')
    a('v_lshlrev_b32 v9, 2, v0\nv_mov_b32 v8, 0\nds_write_b32 v9, v8')
    if kw.get('prefetch', True):
        a('s_getpc_b64 s[8:9]\nL_pc:')
        a('v_lshlrev_b32 v3, 7, v0\nv_min_u32 v3, L_exit-L_pc, v3\nglobal_load_dword v7, v3, s[8:9]')
    a('v_readfirstlane_b32 s7, v2')
    a('v_and_b32 v5, 6, v4\nv_xor_b32 v5, v5, v0\nv_and_b32 v5, 7, v5\nv_lshlrev_b32 v5, 4, v5')
    a('s_and_b32 s3, s2, 7\ns_cmp_ge_u32 s7, 4\ns_cbranch_scc1 L_roles')
    a('s_mov_b32 s51, 0x20000\nv_lshlrev_b32 v11, 4, v0')
    a('s_lshr_b32 s10, s4, 3\ns_lshl2_add_u32 s10, s10, s7\ns_lshl_b32 s10, s10, 18\ns_xor_b32 s11, s4, ' + str(kw.get('rq', 0)) + '\ns_and_b32 s11, s11, 7\ns_lshl3_add_u32 s11, s3, s11\ns_lshl_b32 s11, s11, 7\ns_add_u32 s10, s10, s11')
    a(f's_bfm_b32 s50, 1, 22\ns_movk_i32 s12, 0x7e00\ns_lshl_b32 s12, s12, 1\nv_lshl_add_u32 v10, v4, 13, v5\ns_lshl_b32 m0, s7, 12\ns_addk_i32 m0, {WA}')
    a('s_waitcnt lgkmcnt(0)')
    a('s_mov_b32 s48, s22\ns_mov_b32 s49, s23')
    a('global_load_dwordx4 v[12:15], v11, s[16:17]')
    for r in range(4):
        a(f'buffer_load_dwordx4 v10, s[48:51], s10 offen offset:{r*1024} {NT} lds')
        if r < 3: a('s_add_u32 s10, s10, s12')
    a('s_load_dword s44, s[40:41], 0')
    a('s_barrier\ns_branch L_C')
    a('L_roles:')
    a('s_barrier')
    common()
    a('s_cmp_eq_u32 s7, 6\ns_cbranch_scc1 L_L')
    ns = kw.get('nsamp', 1)
    a(f's_lshr_b32 s10, s2, 6\ns_lshl1_add_u32 s10, s10, s7\ns_lshl_b32 s10, s10, 6\ns_and_b32 s11, s2, 63\ns_add_u32 s10, s10, s11\ns_lshl_b32 s10, s10, 7\ns_add_u32 s10, s10, {WS_T - 4*8192}')
    a('s_waitcnt lgkmcnt(0)')
    a('s_memtime s[12:13]\ns_load_dword s11, s[40:41], s10')
    if ns == 2: a('s_add_u32 s10, s10, 0x10000\ns_waitcnt lgkmcnt(0)\ns_load_dword s11, s[40:41], s10')
    a('s_waitcnt lgkmcnt(0)\ns_memtime s[14:15]\ns_lshl_b32 s10, s7, 2\nv_mov_b32 v10, s10\ns_waitcnt lgkmcnt(0)')
    a(f's_sub_u32 s12, s14, s12\nv_mov_b32 v11, s12\nds_write_b32 v10, v11 offset:{T_A - 16}')
    a('s_cmp_eq_u32 s7, 4\ns_cbranch_scc1 L_P\ns_branch L_M\nL_L:')
    rq, r2 = kw.get('rq', 0), kw.get('r2', 0)
    s.mlp_slot(10, 11)
    a('s_cselect_b32 s11, 64, 0\ns_cselect_b32 s8, 30, 15')
    a('v_and_b32 v14, s11, v5\nv_lshl_add_u32 v14, v14, 24, v5\nv_mul_u32_u24 v32, 3584, v4\nv_add_u32 v32, v32, v14')
    for r in range(1, 4): a(f'v_add_u32 v{32+r}, {r*(8*3584-1024)}, v32')
    a('v_xor_b32 v14, v3, v2\nv_lshlrev_b32 v14, 4, v14\nv_lshl_add_u32 v18, v2, 8, v14')
    for r in range(1, 4): a(f'v_xor_b32 v{18+r}, {r*64}, v18\nv_add_u32 v{18+r}, {r*7168}, v{18+r}')
    a(f's_mov_b32 s50, {512*3584}\ns_mov_b32 s51, 0x20000\ns_lshl_b32 s8, 1, s8')
    a(f's_mul_i32 s12, s6, {64*3584}\ns_lshl_b32 s11, s10, 6\ns_add_u32 s12, s12, s11')
    a(f's_lshl_b32 s13, s5, 23\ns_lshl_b32 s11, s3, 20\ns_add_u32 s13, s13, s11\ns_lshl_b32 s11, s6, 10\ns_add_u32 s13, s13, s11\ns_add_u32 s13, s13, {3072*256}')
    a('s_bfm_b32 s54, 1, 25\ns_mov_b32 s55, s51\ns_mov_b32 s14, s13')
    a('s_waitcnt lgkmcnt(0)')
    s.stamp(1)
    dg = depth // 4
    segs = {'1': (32, 48, 28, 12, 32 * 3584, W1), 'k': (18, 52, 18, 13, 32768, KB), 'v': (22, 56, 20, 14, 32768, VB),
            '2': (26, 60, 32, 15, 's8', W2), 'o': (26, 96, 24, 9, 32768, WO)}
    cnt = {c: 0 for c in segs}
    late = False
    prof = kw.get('prof')
    prof = [int(x, 16) for x in prof] if prof else [dg] * len(order)
    assert len(prof) == len(order)
    landed = 0
    first_wait = min(gi for gi in range(len(order)) if gi + 1 > prof[gi])
    for gi, c in enumerate(order):
        vr, sd, ptr, so, step, lds = segs[c]
        if gi == first_wait:
            a('v_lshlrev_b32 v14, 1, v2\nv_xor_b32 v14, v3, v14\nv_lshlrev_b32 v14, 4, v14\nv_lshl_add_u32 v22, v2, 8, v14')
            a(f'v_xor_b32 v23, 128, v22\nv_add_u32 v24, {2*7168}, v22\nv_add_u32 v25, {3*7168}, v23\nv_add_u32 v23, 7168, v23')
            a('v_lshl_add_u32 v26, v4, 10, v5')
            for r in range(1, 4): a(f'v_add_u32 v{26+r}, {r*7168}, v26')
            a(f's_mov_b32 s58, s54\ns_mov_b32 s59, s51\ns_mov_b32 s62, {1792*1024}\ns_mov_b32 s63, s51\ns_bfm_b32 s98, 1, 22\ns_mov_b32 s99, s51')
            s.srd(56, 20); s.srd(60, 32); s.srd(96, 24)
            a(f's_add_u32 s11, s6, {r2}\ns_and_b32 s11, s11, 7\ns_lshl_b32 s11, s11, 7\ns_lshl_b32 s15, s10, 15\ns_add_u32 s15, s15, s11')
            a('s_lshl2_add_u32 s9, s3, s5\ns_lshl_b32 s9, s9, 17\ns_lshl_b32 s11, s6, 7\ns_add_u32 s9, s9, s11')
            s.stamp(2)
            late = True
        assert late or c in '1k'
        if cnt[c] == 0 and c in '1k': s.srd(sd, ptr)
        a(f's_mov_b32 m0, {lds + cnt[c] * 4096}')
        if cnt[c]: a(f's_add_u32 s{so}, s{so}, {step}')
        while landed < gi + 1 - prof[gi]:
            landed += 1
            if landed in marks or landed == gi + 1 - prof[gi]:
                a(f's_waitcnt vmcnt({(gi-landed)*4})')
            if landed in marks:
                a(f'v_mov_b32 v30, {landed}\nds_write_b32 v8, v30 offset:{C_G}')
                if landed == TH['v'][7]: s.stamp(6)
        for r in range(4):
            fine = kw.get('fine')
            if fine and gi * 4 + r >= fine and (r or fine - 1 < (gi - landed) * 4): a(f's_waitcnt vmcnt({fine-1})')
            fl = kw.get('nt' + c, NT)
            a(f'buffer_load_dwordx4 v{vr+r}, s[{sd}:{sd+3}], s{so} offen offset:{r*1024} {fl} lds')
        cnt[c] += 1
    for n in range(landed + 1, len(order) + 1):
        if n in marks:
            if kw.get('obar') and n == len(order) and n != TH['v'][7]:
                a('s_waitcnt vmcnt(0)')
            else:
                a(f'v_mov_b32 v30, {n}\ns_waitcnt vmcnt({(len(order)-n)*4})\nds_write_b32 v8, v30 offset:{C_G}')
            if n == TH['v'][7]: s.stamp(6)
    s.stamp(7)
    if kw.get('obar'): a('s_barrier')
    a('s_branch L_end')

    a('L_C:')
    a('s_setprio 2')
    common()
    s.stamp(1)
    if 'C' in kw.get('kill', ''): a('s_waitcnt vmcnt(0)\ns_branch L_end')
    a('v_bfe_u32 v4, v1, 2, 2\nv_and_b32 v5, 3, v1')
    a(f's_mul_i32 s11, s7, {XS}\ns_add_u32 s11, s11, {XN}')
    a('v_lshrrev_b32 v10, 2, v1\nv_lshlrev_b32 v10, 6, v10\nv_and_b32 v11, 1, v1\nv_lshl_add_u32 v10, v11, 5, v10\nv_and_b32 v11, 2, v1\nv_lshl_add_u32 v10, v11, 2, v10\nv_add_u32 v11, s11, v10')
    a('s_mov_b32 s55, 0xffff0000')
    a('v_lshl_add_u32 v27, v2, 2, v4\nv_bfe_u32 v96, v27, 1, 2\nv_lshlrev_b32 v96, 5, v96\nv_lshl_add_u32 v96, v27, 7, v96\nv_lshl_add_u32 v96, v5, 3, v96')
    a('s_lshl_b32 s12, s7, 5\nv_xor_b32 v10, s12, v96')
    a('s_getreg_b32 s45, hwreg(HW_REG_XCC_ID, 0, 4)')
    a(f'v_mul_u32_u24 v24, {XS}, v5\nv_lshl_add_u32 v24, v2, 4, v24')
    a(f's_lshl_b32 s10, s5, 8\ns_add_u32 s10, s10, {XN}\nv_add_u32 v25, s10, v24')
    a(f's_lshl_b32 s10, s6, 7\ns_add_u32 s10, s10, {YL}\nv_add_u32 v24, s10, v24')
    a(f's_lshl_b32 s14, s3, 15\ns_lshl1_add_u32 s14, s12, s14\ns_lshl_b32 s13, s4, 8\ns_xor_b32 s58, s13, {rq*256}\ns_add_u32 s58, s14, s58\ns_add_u32 s58, s58, {WS_Q}')
    a(f's_lshl2_add_u32 s59, s13, s14\ns_add_u32 s59, s59, {WS_H}')
    a('v_lshlrev_b32 v106, 13, v3\nv_lshl_add_u32 v106, v2, 4, v106\nv_lshlrev_b32 v107, 4, v1\nv_mov_b32 v30, 0x3ff\nv_mov_b32 v31, 0xfffffc01')
    s.pack24_consts()
    a('s_mov_b32 s13, 1')
    a('s_waitcnt vmcnt(0)' if kw.get('safeB') else 's_waitcnt vmcnt(4)')
    if not kw.get('ackst'): s.stamp(2)
    a('L_ln:')
    s.layernorm(12, 16, 32)
    a(f'ds_write2_b64 v11, v[12:13], v[14:15] offset1:2\nv_add_u32 v11, {YL-XN}, v11')
    a('s_sub_u32 s13, s13, 1\ns_cbranch_scc0 L_ln')
    s.stamp(3)
    a('s_waitcnt vmcnt(0) lgkmcnt(0)')
    if kw.get('st_tile'): s.stamp(5)
    s.signal(C_WA)
    s.tag_finish()
    a('v_mov_b32 v111, s44\nv_mov_b32 v115, s44')
    s.wait_flag(C_WA, 4, extra=[f'ds_read_b64 v[28:29], v8 offset:{T_A}'] + [x for t in range(4) for x in (f'ds_read_b128 v[{64+4*t}:{67+4*t}], v25 offset:{t*64}',
                f'ds_read_b64_tr_b16 v[{40+4*t}:{41+4*t}], v10 offset:{WA+t*4096}', f'ds_read_b64_tr_b16 v[{42+4*t}:{43+4*t}], v10 offset:{WA+t*4096+2048}')])
    for t in range(4):
        a(f's_waitcnt lgkmcnt({9-3*t})')
        s.mfma(16, 40 + 4 * t, 64 + 4 * t, t == 0)
        if t == 0: a('v_sub_u32 v110, v28, v29\nv_min_u32 v28, v28, v29')
        if t == 1: a('v_cmp_ne_u32 vcc, 0, v28\nv_med3_i32 v110, v110, v30, v31')
        if t == 2: a('v_cndmask_b32 v110, 0, v110, vcc\nv_lshl_or_b32 v110, v110, 4, s45')
    for t in range(2): a(f'ds_read_b128 v[{80+4*t}:{83+4*t}], v24 offset:{t*64}')
    a('s_mov_b32 exec_lo, 0x000f000f\ns_mov_b32 exec_hi, 0x000f000f')
    a('v_cvt_pk_bf16_f32 v108, v16, v17\nv_cvt_pk_bf16_f32 v109, v18, v19')
    a('buffer_store_dwordx4 v[108:111], v106, s[40:43], s58 offen')
    if kw.get('qe'): s.signal(C_QP)
    else: a('s_mov_b64 exec, -1')
    if not kw.get('ackst'): s.stamp(4)
    s.wait_flag(C_G, TH['1'][1], extra=[f'ds_read_b64_tr_b16 v[{40+2*t}:{41+2*t}], v10 offset:{W1+t*2048}' for t in range(4)], sleep=1)
    for t in range(2):
        a(f's_waitcnt lgkmcnt({2-2*t})')
        s.mfma(16, 40 + 4 * t, 80 + 4 * t, t == 0)
    a('s_mov_b32 exec_lo, 0x000f000f\ns_mov_b32 exec_hi, 0x000f000f')
    s.pack24(112, 16, 17, 18, 19)
    a('buffer_store_dwordx4 v[112:115], v107, s[40:43], s59 offen')
    if kw.get('he'): s.signal(C_HP)
    else: a('s_mov_b64 exec, -1')
    if 'Q' in kw.get('kill', ''): a('s_branch L_end')
    a(f's_lshl_b32 s10, s7, 13\ns_add_u32 s10, s10, {KB}')
    a(f'v_xor_b32 v10, v2, v3\nv_lshlrev_b32 v10, 4, v10\nv_lshl_add_u32 v10, v3, 8, v10\nv_add_u32 v102, {QL}, v10\nv_add_u32 v10, s10, v10')
    a('v_xor_b32 v103, 64, v102\nv_xor_b32 v104, 128, v102\nv_xor_b32 v105, 192, v102')
    a('v_xor_b32 v11, 64, v10\nv_xor_b32 v12, 128, v10\nv_xor_b32 v13, 192, v10')
    a(f's_lshl_b32 s10, s7, 2\ns_add_u32 s10, s10, {MX}\nv_lshlrev_b32 v15, 4, v5\nv_add_u32 v24, s10, v15\nv_add_u32 v15, {MX}, v15\ns_add_u32 s10, s10, {FP-MX}\nv_mov_b32 v14, s10')
    a(f's_lshl_b32 s10, s7, 10\ns_add_u32 s10, s10, {PL}\nv_lshlrev_b32 v25, 4, v1\nv_add_u32 v26, s10, v25\nv_add_u32 v25, {PL}, v25')
    a('v_and_b32 v28, 7, v27\ns_lshl_b32 s10, s7, 1\nv_xor_b32 v28, s10, v28\nv_lshlrev_b32 v28, 5, v28\nv_lshl_add_u32 v28, v27, 8, v28\nv_lshl_add_u32 v28, v5, 3, v28')
    a(f'v_add_u32 v28, {VB}, v28\nv_xor_b32 v29, 32, v28')
    a(f's_lshr_b32 s10, s7, 1\ns_lshl_b32 s11, s10, 13\ns_add_u32 s11, s11, {WO}')
    a('v_add_u32 v96, s11, v96\nv_xor_b32 v97, 32, v96\nv_xor_b32 v98, 64, v96\nv_xor_b32 v99, 96, v96')
    a('v_lshlrev_b32 v30, 14, v3\nv_lshl_add_u32 v30, v2, 8, v30')
    a(f's_lshl_b32 s14, s3, 16\ns_add_u32 s14, s14, {WS_O}')
    a('s_lshr_b32 s11, s4, 4\ns_lshl2_add_u32 s11, s11, s7\ns_lshl_b32 s11, s11, 11\ns_and_b32 s12, s4, 15\ns_lshl4_add_u32 s11, s12, s11')
    a('v_lshlrev_b32 v31, 4, v1')
    a('v_lshlrev_b32 v101, 11, v2\nv_lshl_add_u32 v101, v3, 4, v101\nv_add_u32 v101, 768, v101')
    a('s_lshl_b32 s15, s5, 14\ns_add_u32 s15, s15, s14\ns_lshl_b32 s10, s10, 12\ns_add_u32 s15, s15, s10\ns_and_b32 s10, s7, 1\ns_lshl_b32 s12, s10, 13\ns_add_u32 s15, s15, s12')
    a('s_add_u32 s14, s14, s11')
    a(f'v_lshlrev_b32 v100, 9, v2\nv_lshl_add_u32 v100, v3, 4, v100\nv_add_u32 v100, {RED}, v100')
    a(f's_lshr_b32 s10, s3, 1\ns_lshl2_add_u32 s56, s6, s10\ns_and_b32 s10, s3, 1\ns_lshl2_add_u32 s56, s56, s10\ns_lshl2_add_u32 s56, s56, s5\ns_lshl_b32 s56, s56, 10\ns_add_u32 s56, s56, {WS_S}\ns_add_u32 s63, s56, 8192')
    a('v_lshrrev_b32 v119, 1, v1\nv_lshlrev_b32 v119, 10, v119\nv_and_b32 v16, 1, v1\nv_lshl_add_u32 v119, v16, 4, v119')
    a(f's_lshl_b32 s60, s3, 15\ns_lshl_b32 s11, s4, 5\ns_add_u32 s60, s60, s11\ns_add_u32 s62, s60, {WS_M}\ns_add_u32 s60, s60, {WS_S}')
    a('v_lshl_add_u32 v117, v2, 13, v119')
    a(f's_lshl_b32 s60, s3, 16\ns_add_u32 s60, s60, s11\ns_add_u32 s60, s60, {WS_S}')
    a(f's_mov_b32 s13, {hex(f2u(CSC))}')
    a('s_mov_b32 s12, s13')
    for k in range(4): a(f'v_mov_b32 v{124+k}, {hex(ONE2)}')
    kt = TH['k'][1::2]
    a(f's_lshl_b32 s57, s7, 3\ns_lshr_b32 s57, {kt[0] | kt[1] << 8 | kt[2] << 16 | kt[3] << 24}, s57\ns_and_b32 s57, s57, 0xff')
    if not kw.get('qe'):
        a('s_waitcnt vmcnt(1)')
        s.signal(C_QP)
    if not kw.get('he'):
        a('s_waitcnt vmcnt(0)')
        s.signal(C_HP)
    s.wait_flag(C_G, 's57', sleep=1)
    for u in range(2):
        for t in range(4):
            a(f'ds_read_b128 v[{32+16*u+4*t}:{35+16*u+4*t}], v{10+t} offset:{u*4096}')
    if not kw.get('st_tile') and not kw.get('ackst'): s.stamp(5)
    s.wait_flag(F_Q, 1, extra=[f'ds_read_b128 v[{64+4*t}:{67+4*t}], v{102+t}' for t in range(4)])
    s.stamp(6)
    a('v_readfirstlane_b32 s47, v9')
    a('s_cmp_lg_u32 s47, 1\ns_cbranch_scc1 L_qrem')
    a('L_qgo:')
    DP = lambda op, d, x, y, m, rm='0xf': f'{op}_dpp {d}, {x}, {y} {m} row_mask:{rm} bank_mask:0xf'
    for u in range(2):
        for t in range(4):
            if u == 0: a(f's_waitcnt lgkmcnt({3-t})')
            s.mfma(16 + 4 * u, 32 + 16 * u + 4 * t, 64 + 4 * t, t == 0)
    if kw.get('safeC'): a('s_nop 15')
    a('v_mov_b32 v40, s44\nv_mov_b32 v47, s44\nv_mov_b32 v123, s44')
    for u in range(2):
        for k in range(4): a(DP('v_add_f32', f'v{16+4*u+k}', f'v{16+4*u+k}', f'v{16+4*u+k}', 'row_ror:4'))
        for k in range(4): a(DP('v_add_f32', f'v{16+4*u+k}', f'v{16+4*u+k}', f'v{16+4*u+k}', 'row_ror:8'))
        if u == 0: a('v_max3_f32 v10, v16, v17, v18')
    a('v_max3_f32 v10, v10, v19, v20\nv_max3_f32 v11, v21, v22, v23\nv_max_f32 v10, v10, v11\nv_max_f32 v11, v10, v11')
    a('v_permlane16_swap_b32 v11, v10\nv_max_f32 v10, v11, v10\nv_max_f32 v11, v11, v10')
    a('v_permlane32_swap_b32 v11, v10\nv_max_f32 v10, v11, v10\nv_or_b32 v10, 1, v10')
    WB = 128; VR = 160
    vrd = lambda t: [f'ds_read_b64_tr_b16 v[{VR+8*t+4*T+2*u}:{VR+1+8*t+4*T+2*u}], v{28+T} offset:{t*8192+u*4096}' for T in range(2) for u in range(2)]
    cw = lambda n: 0 if (s.stamps and not kw.get('lean')) else n
    a('ds_write_b32 v24, v10')
    a(f'ds_read_b128 v[32:35], v15\nds_read_b32 v9, v8 offset:{C_G}')
    for x in vrd(0) + vrd(1) + vrd(2): a(x)
    a(f's_waitcnt lgkmcnt({cw(13)})\ns_branch L_mx2')
    a('L_mx:')
    a('ds_read_b128 v[32:35], v15')
    s.budget()
    a('s_waitcnt lgkmcnt(0)')
    a('L_mx2:')
    a('v_min3_u32 v11, v32, v33, v34\nv_max3_f32 v10, v32, v33, v34\nv_min_u32 v11, v11, v35\nv_max_f32 v10, v10, v35\nv_cmp_eq_u32 vcc, 0, v11\nv_mul_f32 v116, s13, v10\ns_cbranch_vccnz L_mx')
    for k in range(4): a(f'v_pk_fma_f32 v[{16+2*k}:{17+2*k}], v[{16+2*k}:{17+2*k}], s[12:13], v[116:117] op_sel_hi:[1,1,0] neg_lo:[0,0,1] neg_hi:[0,0,1]')
    for k in range(8): a(f'v_exp_f32 v{16+k}, v{16+k}')
    for k in range(4): a(f'v_cvt_pk_bf16_f32 v{32+k}, v{16+2*k}, v{17+2*k}')
    a('ds_write_b128 v26, v[32:35]\nds_write_b32 v14, v6')
    a('L_pw:')
    a(f'ds_read_b128 v[36:39], v8 offset:{FP}')
    for t in range(4): a(f'ds_read_b128 v[{64+4*t}:{67+4*t}], v25 offset:{t*1024}')
    a(f'ds_read_b32 v118, v8 offset:{C_G}')
    for x in vrd(3): a(x)
    a('v_mov_b32 v41, v116')
    s.budget()
    a(f's_waitcnt lgkmcnt({cw(9)})\nv_min3_u32 v11, v36, v37, v38\nv_min_u32 v11, v11, v39\nv_cmp_eq_u32 vcc, 0, v11\ns_cbranch_vccnz L_pw')
    s.stamp(7)
    def wo_reads():
        for ks in range(2):
            for T in range(4):
                for u in range(2):
                    r = WB + 16 * ks + 4 * T + 2 * u
                    a(f'ds_read_b64_tr_b16 v[{r}:{r+1}], v{96+T} offset:{ks*4096+u*2048}')
    early = False
    a(f'v_cmp_gt_u32 vcc, {TH["v"][5]}, v9\ns_cbranch_vccz L_v012')
    s.wait_flag(C_G, TH['v'][5], extra=vrd(0) + vrd(1) + vrd(2), sleep=2)
    a('s_waitcnt lgkmcnt(0)')
    a('L_v012:')
    for t in range(3):
        a(f's_waitcnt lgkmcnt({8-t})')
        for T in range(2): s.mfma(16 + 4 * T, VR + 8 * t + 4 * T, 64 + 4 * t, t == 0)
        s.mfma(56, 124, 64 + 4 * t, t == 0)
    a('s_waitcnt lgkmcnt(4)')
    s.mfma(56, 124, 76, False)
    a(f'v_cmp_gt_u32 vcc, {TH["v"][7]}, v118\ns_cbranch_vccz L_v3')
    s.wait_flag(C_G, TH['v'][7], extra=vrd(3))
    a('L_v3:')
    if not kw.get('ind'): s.stamp(8)
    for T in range(2):
        a(f's_waitcnt lgkmcnt({2-2*T})')
        s.mfma(16 + 4 * T, VR + 24 + 4 * T, 76, False)
    a('v_mov_b32 v46, v56')
    a('s_mov_b32 exec_lo, 0x000f000f\ns_mov_b32 exec_hi, 0x000f000f\ns_cmp_eq_u32 s47, 1')
    for k in range(4): a(f'v_cvt_pk_bf16_f32 v{42+k}, v{16+2*k}, v{17+2*k}')
    a('s_cbranch_scc0 L_orem')
    a('buffer_store_dwordx4 v[40:43], v30, s[40:43], s14 offen\nbuffer_store_dwordx4 v[44:47], v30, s[40:43], s14 offen offset:1024')
    a('L_ost:')
    a('s_mov_b64 exec, -1')
    s.stamp(9)
    if kw.get('ackst'):
        a('s_waitcnt vmcnt(0)')
        s.stamp(5)
    if 'D' in kw.get('kill', ''): a('s_branch L_end')
    if kw.get('od0'): a(f's_sleep {kw["od0"]}')
    OE = kw.get('oe')
    if OE is not None:
        if OE: s.wait_flag(C_G, len(order) - OE)
    elif kw.get('obar'): a('s_barrier')
    if kw.get('ind'):
        if not early:
            s.wait_flag(C_G, TH['o'][3])
            wo_reads()
            early = True
        a('s_mov_b32 exec_hi, 0')
        a('L_ipoll:')
        a('buffer_load_dword v48, v101, s[40:43], s15 offen offset:1036 sc1')
        s.budget()
        if kw.get('isl'):
            a(f's_waitcnt vmcnt(0)\nv_cmp_ne_u32 vcc, s44, v48\ns_cbranch_vccz L_idone\ns_sleep {kw["isl"]}\ns_branch L_ipoll\nL_idone:')
        else:
            a('s_waitcnt vmcnt(0)\nv_cmp_ne_u32 vcc, s44, v48\ns_cbranch_vccnz L_ipoll')
        a('s_mov_b32 exec_hi, -1')
        s.stamp(8)
    for k in range(4): a(f'buffer_load_dwordx4 v[{48+4*k}:{51+4*k}], v31, s[40:43], s15 offen offset:{k*1024} sc1')
    if OE is not None: a('s_barrier')
    if not early:
        a(f'ds_read_b32 v9, v8 offset:{F_K}')
        wo_reads()
    if s.stamps:
        if kw.get('ackst'):
            a('s_waitcnt vmcnt(0)')
            s.stamp(2)
        a('s_mov_b32 s61, 0')
    a('L_opoll:')
    a('s_waitcnt vmcnt(0)')
    a('v_xor_b32 v10, s44, v48\nv_bitop3_b32 v10, v55, s44, v10 bitop3:0xbe\nv_bitop3_b32 v10, v56, s44, v10 bitop3:0xbe\nv_bitop3_b32 v10, v63, s44, v10 bitop3:0xbe')
    a('v_cmp_ne_u32 vcc, 0, v10\ns_cbranch_vccz L_odone')
    a('s_mov_b64 exec, vcc')
    if s.stamps: a('s_add_u32 s61, s61, 1')
    if kw.get('osl'): a(f's_sleep {kw["osl"]}')
    for k in range(4): a(f'buffer_load_dwordx4 v[{48+4*k}:{51+4*k}], v31, s[40:43], s15 offen offset:{k*1024} sc1')
    s.budget()
    a('s_branch L_opoll')
    a('L_qrem:')
    a('s_mov_b32 exec_lo, 0x000f000f\ns_mov_b32 exec_hi, 0x000f000f')
    a('buffer_store_dwordx4 v[108:111], v106, s[40:43], s58 offen sc1\nbuffer_store_dwordx4 v[112:115], v107, s[40:43], s59 offen sc1')
    a('s_mov_b64 exec, -1')
    a('L_qrem2:')
    a(f'ds_read_b32 v9, v8 offset:{F_Q}')
    for t in range(4): a(f'ds_read_b128 v[{64+4*t}:{67+4*t}], v{102+t}')
    s.budget()
    a('s_waitcnt lgkmcnt(0)\nv_readfirstlane_b32 s47, v9\ns_cmp_eq_u32 s47, 4\ns_cbranch_scc0 L_qgo\ns_sleep 2\ns_branch L_qrem2')
    if kw.get('wb') is not None:
        a('L_wb:')
        a(f's_cmp_lg_u32 s7, 1\ns_cbranch_scc1 L_end\ns_and_b32 s10, s4, {kw["wb"]}\ns_cbranch_scc1 L_end')
        if kw.get('wbd'): a(f's_sleep {kw["wbd"]}')
        a('buffer_wbl2 sc1\ns_branch L_end')
    a('L_orem:')
    a('buffer_store_dwordx4 v[40:43], v30, s[40:43], s14 offen sc1\nbuffer_store_dwordx4 v[44:47], v30, s[40:43], s14 offen offset:1024 sc1')
    a('s_branch L_ost')
    a('L_odone:')
    a('s_mov_b64 exec, -1')
    s.stamp(11)
    a('s_waitcnt lgkmcnt(0)')
    if s.stamps: a('s_mul_i32 s61, s61, 100\ns_add_u32 s70, s64, s61')
    M8 = ('quad_perm:[1,0,3,2]', 'quad_perm:[2,3,0,1]', 'row_half_mirror')
    D = lambda op, d, x, y, m, rm='0xf': f'{op}_dpp {d}, {x}, {y} {m} row_mask:{rm} bank_mask:0xf'
    R = lambda m, rm: f'v_mov_b32_dpp v23, v21 {m} row_mask:{rm} bank_mask:0xf'
    wv = [D('v_max_f32', 'v20', 'v49', 'v49', M8[0]), None, D('v_max_f32', 'v20', 'v20', 'v20', M8[1]), None, D('v_max_f32', 'v20', 'v20', 'v20', M8[2]),
          'v_sub_f32 v21, v49, v20', 'v_exp_f32 v21, v21', None, 'v_mul_f32 v22, v54, v21', 'v_mov_b32 v23, v21', None,
          D('v_add_f32', 'v22', 'v22', 'v22', M8[0]), R('row_ror:12', '0x2'), None, D('v_add_f32', 'v22', 'v22', 'v22', M8[1]), R('row_ror:8', '0x4'), None,
          D('v_add_f32', 'v22', 'v22', 'v22', M8[2]), R('row_ror:4', '0x8'), 'v_rcp_f32 v22, v22', None]
    mf = [(32 + 4 * T, 50 + 8 * ks, WB + 16 * ks + 4 * T, ks == 0) for ks in range(2) for T in range(4)]
    s.mfma(*mf.pop(0))
    for x in wv:
        if x is None: s.mfma(*mf.pop(0))
        else: a(x)
    assert not mf
    a('v_mul_f32 v21, v22, v23')
    a(D('v_mul_f32', 'v21', 'v22', 'v23', 'row_ror:8', '0xc'))
    for T in range(4): a(D('v_mul_f32', f'v{16+T}', 'v21', f'v{32+4*T}', 'row_newbcast:0'))
    for r in range(1, 4):
        for T in range(4): a(D('v_fmac_f32', f'v{16+T}', 'v21', f'v{32+4*T+r}', f'row_newbcast:{r}'))
    a(f'ds_write_b128 v26, v[16:19] offset:{RED-PL}')
    a('v_add_u32 v117, v117, v9')
    a('s_waitcnt lgkmcnt(0)\ns_barrier')
    s.stamp(12)
    a('s_cmp_lg_u32 s7, 0\ns_cbranch_scc1 ' + ('L_wb' if kw.get('fw') else 'L_end'))
    for k in range(4): a(f'ds_read_b128 v[{48+4*k}:{51+4*k}], v100 offset:{(k>>1)*2048+(k&1)*256}')
    a('s_waitcnt lgkmcnt(2)')
    a('v_pk_add_f32 v[48:49], v[48:49], v[52:53]\nv_pk_add_f32 v[50:51], v[50:51], v[54:55]')
    a('s_waitcnt lgkmcnt(1)')
    a('v_pk_add_f32 v[48:49], v[48:49], v[56:57]\nv_pk_add_f32 v[50:51], v[50:51], v[58:59]')
    a('s_waitcnt lgkmcnt(0)')
    a('v_pk_add_f32 v[48:49], v[48:49], v[60:61]\nv_pk_add_f32 v[50:51], v[50:51], v[62:63]')
    s.pack24(120, 48, 49, 50, 51)
    a('buffer_store_dwordx4 v[120:123], v31, s[40:43], s56 offen sc1\nbuffer_store_dwordx4 v[120:123], v31, s[40:43], s63 offen sc1')
    s.stamp(13)
    fw = kw.get('fw', 0)
    if fw:
        a('s_branch L_end')
        a('L_wb:')
        a(f's_cmp_lg_u32 s7, {fw}\ns_cbranch_scc1 L_end')
        if kw.get('d0'): a(f's_sleep {kw["d0"]}')
    LA = 'buffer_load_dwordx4 v[16:19], v117, s[40:43], s60 offen sc1'
    LB_ = 'buffer_load_dwordx4 v[20:23], v117, s[40:43], s60 offen sc1'
    a('L_mpoll:')
    a('buffer_load_dwordx4 v[32:35], v119, s[40:43], s62 offen sc1')
    a(f'v_lshlrev_b32 v14, 3, v1\nv_add_u32 v14, {GX}, v14\nds_read_b64 v[12:13], v14')
    s.unpack24_consts()
    s.srd_const(48, 4096); s.srd(48, 36)
    a('s_mov_b32 s56, 0x00030003\ns_mov_b32 s57, s56')
    a('v_and_b32 v11, 1, v1\nv_lshlrev_b32 v14, 5, v2\nv_lshl_add_u32 v14, v11, 1, v14')
    a('s_lshl_b32 s11, s5, 10\ns_lshl_b32 s12, s3, 7\ns_add_u32 s11, s11, s12\ns_lshl2_add_u32 s11, s6, s11')
    if kw.get('d1'): a(f's_sleep {kw["d1"]}')
    a(LA)
    if kw.get('d2'): a(f's_sleep {kw["d2"]}')
    a(LB_)
    s.budget()
    a('s_waitcnt vmcnt(2)\nv_cmp_ne_u32 vcc, s44, v35\ns_cbranch_vccnz L_mpoll')
    s.stamp(10)
    s.unpack24(32)
    s.reduce32(32)
    a('s_waitcnt lgkmcnt(0)')
    s.round_bf16('v32')
    a('v_add_f32 v32, v32, v12')
    s.round_bf16('v32')
    a(f'v_mul_f32 v33, {hex(f2u(-math.log2(math.e)))}, v32\nv_exp_f32 v33, v33\nv_add_f32 v33, 1.0, v33\nv_rcp_f32 v33, v33\nv_mul_f32 v12, v32, v33')
    s.round_bf16('v12')
    a('L_fpoll:')
    a('s_waitcnt vmcnt(1)\nv_cmp_ne_u32 vcc, s44, v19\ns_cbranch_vccz L_fdone')
    a(LA)
    s.budget()
    a('s_waitcnt vmcnt(1)\nv_cmp_ne_u32 vcc, s44, v23\ns_cbranch_vccz L_fdoneB')
    if kw.get('d3'): a(f's_sleep {kw["d3"]}')
    a(LB_ + '\ns_branch L_fpoll')
    def finish(r):
        s.stamp(14)
        s.unpack24(r)
        s.reduce32(r)
        if kw.get('exactfin', 0):
            s.round_bf16(f'v{r}')
            a(f'v_mul_f32 v{r}, v{r}, v12')
            s.round_bf16(f'v{r}')
            a(f'v_add_f32 v{r}, v{r}, v13')
        else:
            a(f'v_fma_f32 v{r}, v{r}, v12, v13')
        a('s_mov_b64 exec, s[56:57]')
        a(f'v_cvt_pk_bf16_f32 v{r}, v{r}, v{r}')
        a(f'buffer_store_short v{r}, v14, s[48:51], s11 offen')
    a('L_fdoneB:')
    finish(20)
    a('s_branch L_epoch')
    a('L_fdone:')
    finish(16)
    a('L_epoch:')
    s.stamp(15)
    a('s_cmp_lg_u32 s2, 0\ns_cbranch_scc1 L_end')
    a('s_mov_b64 exec, 1\nbuffer_store_dword v123, v8, s[40:43], 0 offen')
    a('s_branch L_end')

    a('L_P:')
    if 'P' in kw.get('kill', ''): a('s_waitcnt lgkmcnt(0)\ns_branch L_end')
    a('s_setprio 3')
    a('s_getreg_b32 s45, hwreg(HW_REG_XCC_ID, 0, 4)')
    a('v_and_b32 v5, 3, v1')
    a(f's_lshl_b32 s10, s3, 15\ns_lshl_b32 s12, s4, 10\ns_add_u32 s12, s12, s10')
    a('s_waitcnt lgkmcnt(0)')
    a('s_load_dword s44, s[40:41], 0')
    if kw.get('warmq'):
        a(f'v_and_b32 v10, 7, v1\nv_lshlrev_b32 v10, 7, v10\nv_and_b32 v11, 8, v1\nv_lshl_add_u32 v10, v11, 15, v10\ns_add_u32 s11, s12, {WS_Q}')
        a(f's_mov_b64 exec, {0xff if kw["warmq"] == 1 else 0xffff}\nbuffer_load_dword v7, v10, s[40:43], s11 offen {kw.get("warmqfl", "")}\ns_mov_b64 exec, -1')
    a(f's_lshl_b32 s11, s5, 13\ns_add_u32 s10, s10, s11\ns_add_u32 s10, s10, {WS_Q}\ns_add_u32 s15, s10, 4096')
    a('v_lshlrev_b32 v10, 4, v1')
    a(f'v_lshrrev_b32 v11, 5, v1\nv_and_b32 v12, 31, v1\nv_lshlrev_b32 v13, 3, v12\nv_lshlrev_b32 v14, 4, v11\nv_xor_b32 v13, v13, v14\nv_lshl_add_u32 v13, v11, 8, v13\nv_add_u32 v22, {QL}, v13')
    for c in range(1, 8): a(f'v_xor_b32 v{22+c}, {c*32}, v22')
    a(f's_mov_b32 s14, {kw.get("nfast", 48)}')
    a('s_waitcnt lgkmcnt(0)')
    s.stamp(1)
    s.tag_finish()
    if 'W' in kw.get('kill', ''): a('s_branch L_end')
    if kw.get('qs'): a(f's_sleep {kw["qs"]}')
    if kw.get('qg'): s.wait_flag(C_G, kw['qg'], sleep=1)
    s.wait_flag(C_QP, 4, sleep=1)
    if q0: a(f's_sleep {q0}')
    s.stamp(2)
    a('L_qpoll:')
    for c in range(8): a(f'buffer_load_dwordx4 v[{32+4*c}:{35+4*c}], v10, s[40:43], s{10 if c < 4 else 15} offen offset:{(c&3)*1024} sc1')
    s.budget()
    a('s_waitcnt vmcnt(0)')
    a('v_xor_b32 v15, s44, v35')
    for c in range(1, 8): a(f'v_bitop3_b32 v15, v{35+4*c}, s44, v15 bitop3:0xbe')
    a('v_cmp_ne_u32 vcc, 0, v15\ns_cbranch_vccz L_qgot')
    a(f's_mov_b64 exec, vcc\ns_sub_u32 s14, s14, 1\ns_cbranch_scc0 L_qpoll')
    a(f'v_mov_b32 v15, 4\nds_write_b32 v8, v15 offset:{F_Q}\ns_branch L_qpoll')
    a('L_qgot:')
    a('s_mov_b64 exec, -1')
    a('v_xor_b32 v15, s45, v34')
    for c in range(8):
        a(f'ds_write_b64 v{22+c}, v[{32+4*c}:{33+4*c}] offset:{c*512}')
        if c < 7: a(f'v_bitop3_b32 v15, v{38+4*c}, s45, v15 bitop3:0xbe')
    a('v_and_b32 v15, 15, v15\nv_cmp_ne_u32 vcc, 0, v15\ns_cmp_eq_u64 vcc, 0\ns_cselect_b32 s47, 1, 2')
    if kw.get('force_remote'): a('s_mov_b32 s47, 2')
    a(f'v_mov_b32 v15, s47\nds_write_b32 v8, v15 offset:{F_Q}')
    s.stamp(3)
    a('v_add3_u32 v16, v34, v38, v42\nv_add3_u32 v17, v46, v50, v54\nv_add3_u32 v16, v16, v58, v62\nv_add_u32 v16, v16, v17')
    for m in ('quad_perm:[1,0,3,2] row_mask:0xf', 'quad_perm:[2,3,0,1] row_mask:0xf', 'row_half_mirror row_mask:0xf', 'row_mirror row_mask:0xf', 'row_bcast:15 row_mask:0xa', 'row_bcast:31 row_mask:0xc'):
        a(f'v_add_u32_dpp v16, v16, v16 {m} bank_mask:0xf')
    a('v_readlane_b32 s10, v16, 63\ns_cmp_lt_i32 s10, 0\ns_cselect_b32 s10, 0, 8192')
    if kw.get('kflip'): a('s_xor_b32 s10, s10, 8192')
    a(f'v_mov_b32 v15, s10\nds_write_b32 v8, v15 offset:{F_K}')
    a(f's_lshl_b32 s11, s12, 1\ns_add_u32 s11, s11, {WS_O}')
    a(f's_lshl2_add_u32 s12, s3, s5\ns_lshl4_add_u32 s12, s12, s6\ns_lshl_b32 s12, s12, 10\ns_add_u32 s12, s12, s10\ns_add_u32 s12, s12, {WS_S - 2048}')
    a('v_lshlrev_b32 v10, 7, v1\nv_add_u32 v11, s12, v10\nv_add_u32 v10, s11, v10\nv_cmp_gt_u32 vcc, 16, v1\nv_cndmask_b32 v10, v11, v10, vcc')
    a('s_mov_b64 exec, 0xffffff\nbuffer_load_dword v7, v10, s[40:43], 0 offen')
    a('s_branch L_end')

    a('L_M:')
    if kw.get('mprio') is not None: a(f's_setprio {kw["mprio"]}\ns_branch L_M2')
    if 'M' in kw.get('kill', ''): a('s_waitcnt lgkmcnt(0)\ns_branch L_end')
    a('s_setprio 3')
    a('L_M2:')
    a('v_bfe_u32 v4, v1, 2, 2\nv_and_b32 v5, 3, v1')
    a('v_lshl_add_u32 v10, v4, 2, v2')
    a('v_lshlrev_b32 v11, 3, v10')
    a('v_lshlrev_b32 v10, 4, v1')
    s.mlp_slot(11, 15)
    a('s_lshl3_add_u32 s15, s5, s3\ns_lshl_b32 s11, s11, 6')
    a('v_and_b32 v24, 1, v1\nv_lshlrev_b32 v25, 5, v2\nv_lshl_add_u32 v25, v24, 1, v25')
    a('s_lshl_b32 s12, s3, 7\ns_lshl2_add_u32 s12, s6, s12\ns_lshl_b32 s13, s5, 10\ns_add_u32 s13, s13, s12')
    s.srd_const(56, 3584); s.srd_const(60, 1024); s.srd_const(96, 4096)
    a('s_waitcnt lgkmcnt(0)')
    a('s_load_dword s44, s[40:41], 0')
    s.srd(56, 30); s.srd(60, 34); s.srd(96, 16)
    a('buffer_load_ushort v16, v25, s[60:63], s12 offen')
    a('buffer_load_ushort v17, v25, s[96:99], s13 offen')
    a('buffer_load_dwordx2 v[14:15], v11, s[56:59], s11 offen')
    a(f'v_mul_u32_u24 v11, {HS}, v5\nv_lshl_add_u32 v11, v2, 4, v11\nv_lshrrev_b32 v12, 1, v4\nv_lshl_add_u32 v11, v12, 6, v11\nv_and_b32 v12, 1, v4\nv_lshl_add_u32 v11, v12, 3, v11\nv_add_u32 v11, {HL}, v11')
    a(f'v_mul_u32_u24 v12, {HS}, v4\nv_lshl_add_u32 v12, v2, 4, v12\nv_add_u32 v12, {HL}, v12')
    a(f'v_lshl_add_u32 v27, v2, 2, v4\nv_bfe_u32 v28, v27, 1, 2\nv_lshlrev_b32 v28, 5, v28\nv_lshl_add_u32 v28, v27, 7, v28\nv_lshl_add_u32 v28, v5, 3, v28\nv_add_u32 v28, {W2}, v28')
    a('v_xor_b32 v29, 32, v28\nv_xor_b32 v30, 64, v28\nv_xor_b32 v31, 96, v28')
    a(f'v_lshlrev_b32 v13, 3, v1\nv_add_u32 v13, {GX}, v13')
    a('s_waitcnt vmcnt(1) lgkmcnt(0)')
    a('v_lshlrev_b32 v16, 16, v16\nv_lshlrev_b32 v17, 16, v17\nds_write_b64 v13, v[16:17]')
    s.tag_finish()
    if kw.get('hs'): a(f's_sleep {kw["hs"]}')
    s.wait_flag(C_HP, 4, sleep=1)
    s.pack24_consts(); s.unpack24_consts()
    if kw.get('hq'): s.wait_flag(F_Q, 1, sleep=1)
    if kw.get('h0', 8): a(f's_sleep {kw.get("h0", 8)}')
    a(f's_lshl2_add_u32 s10, s3, s5\ns_lshl_b32 s10, s10, 13\ns_add_u32 s10, s10, {WS_H}\ns_add_u32 s11, s10, 4096')
    s.stamp(2)
    a('L_hpoll:')
    for c in range(8): a(f'buffer_load_dwordx4 v[{32+4*c}:{35+4*c}], v10, s[40:43], s{10 + (c>>2)} offen offset:{(c&3)*1024} sc1')
    s.budget()
    a('s_waitcnt vmcnt(0)')
    a('v_xor_b32 v13, s44, v35')
    for c in range(1, 8): a(f'v_bitop3_b32 v13, v{35+4*c}, s44, v13 bitop3:0xbe')
    a('v_cmp_ne_u32 vcc, 0, v13\ns_cbranch_vccnz L_hpoll')
    s.stamp(3)
    for c in range(8): s.unpack24(32 + 4 * c)
    for st in (16, 8, 4):
        for r in range(32, 32 + st, 2): a(f'v_pk_add_f32 v[{r}:{r+1}], v[{r}:{r+1}], v[{r+st}:{r+st+1}]')
    a('v_cvt_pk_bf16_f32 v36, v32, v33\nv_cvt_pk_bf16_f32 v37, v34, v35')
    for k in range(2):
        a(f'v_lshlrev_b32 v{32+2*k}, 16, v{36+k}\nv_and_b32 v{33+2*k}, 0xffff0000, v{36+k}\nv_lshlrev_b32 v{40+2*k}, 16, v{14+k}\nv_and_b32 v{41+2*k}, 0xffff0000, v{14+k}')
    for k in range(4): a(f'v_add_f32 v{32+k}, v{32+k}, v{40+k}')
    a('v_cvt_pk_bf16_f32 v36, v32, v33\nv_cvt_pk_bf16_f32 v37, v34, v35')
    for k in range(2): a(f'v_lshlrev_b32 v{32+2*k}, 16, v{36+k}\nv_and_b32 v{33+2*k}, 0xffff0000, v{36+k}')
    K1 = -2 * math.sqrt(2 / math.pi) * math.log2(math.e)
    a(f'v_mov_b32 v44, {hex(f2u(K1))}')
    for k in range(4): a(f'v_mul_f32 v{36+k}, v{32+k}, v{32+k}')
    for k in range(4): a(f'v_fmamk_f32 v{36+k}, v{36+k}, {hex(f2u(K1*0.044715))}, v44')
    for k in range(4): a(f'v_mul_f32 v{36+k}, v{36+k}, v{32+k}')
    for k in range(4): a(f'v_exp_f32 v{36+k}, v{36+k}')
    for k in range(4): a(f'v_add_f32 v{36+k}, 1.0, v{36+k}')
    for k in range(4): a(f'v_rcp_f32 v{36+k}, v{36+k}')
    for k in range(4): a(f'v_mul_f32 v{32+k}, v{32+k}, v{36+k}')
    a('v_cvt_pk_bf16_f32 v40, v32, v33\nv_cvt_pk_bf16_f32 v41, v34, v35')
    a('ds_write_b64 v11, v[40:41]\nds_read_b128 v[48:51], v12\nds_read_b128 v[52:55], v12 offset:64')
    a(f's_add_u32 s10, s6, {r2}\ns_and_b32 s10, s10, 7\ns_lshl_b32 s10, s10, 5\ns_add_u32 s10, s10, s15\ns_lshl_b32 s10, s10, 10\ns_add_u32 s10, s10, {WS_M}')
    a('v_lshlrev_b32 v10, 4, v1\nv_mov_b32 v23, s44')
    s.wait_flag(C_G, TH['2'][1], sleep=1)
    for ks in range(2):
        for T in range(4):
            for u in range(2):
                r = 64 + 16 * ks + 4 * T + 2 * u
                a(f'ds_read_b64_tr_b16 v[{r}:{r+1}], v{28+T} offset:{ks*4096+u*2048}')
    a('s_waitcnt lgkmcnt(0)')
    for ks in range(2):
        for T in range(4): s.mfma(32 + 4 * T, 48 + 4 * ks, 64 + 16 * ks + 4 * T, ks == 0)
    s.pack24(20, 32, 36, 40, 44)
    a('buffer_store_dwordx4 v[20:23], v10, s[40:43], s10 offen sc1')
    s.stamp(4)
    a('L_end:')
    if kw.get('probe'):
        pw, pst, pm, pb = kw['probe']
        a(f's_waitcnt lgkmcnt(0)\ns_cmp_lg_u32 s7, {pw}\ns_cbranch_scc1 L_exit')
        if pw >= 4: a('s_barrier\ns_barrier' if kw.get('obar') and pw != 6 else 's_barrier')
        if kw.get('pg') is not None: a(f's_cmp_lg_u32 s3, {kw["pg"]}\ns_cbranch_scc1 L_exit')
        a(f's_sub_u32 s10, s{64+2*pst}, s64\ns_mul_i32 s10, s10, {pm}\ns_add_u32 s10, s10, {pb}\ns_min_u32 s10, s10, 20000')
        a('L_padloop:\ns_memrealtime s[12:13]\ns_waitcnt lgkmcnt(0)\ns_sub_u32 s11, s12, s64\ns_cmp_lt_u32 s11, s10\ns_cbranch_scc1 L_padloop')
    s.dump_stamps()
    a('L_exit:')
    a('s_endpgm')
    lines, added = hazard.fix(s.o, verbose=kw.get('verbose', False))
    return wrap('\n'.join(lines) + '\n', 256, NW * 64, kw.get('lds', LDS_TOTAL), kw.get('vgpr', 192))

if __name__ == '__main__':
    import ast
    out = sys.argv[1]
    kw = {}
    for x in sys.argv[2:]:
        k, v = x.split('=')
        try: kw[k] = ast.literal_eval(v)
        except Exception: kw[k] = v
    open(out, 'w').write(gen(**kw))
```

```python
import sys, math, struct
sys.path.insert(0, 'dev')
from common import *
import hazard

def f2u(x):
    return struct.unpack('<I', struct.pack('<f', x))[0]

NW = 7
FL = 0
WA, W1, KB, W2, VB, WO = [2048 + x for x in (0, 16384, 24576, 57344, 65536, 98304)]
XN = 2048 + 114688; XS = 1088
YL = XN + 4 * XS
QL = YL + 4 * XS
assert QL % 256 == 0
PL = QL + 4096
RED = PL + 4096
HL = RED + 4096; HS = 144
MX = 128
FP = 192
GX = HL + 640
LDS_TOTAL = GX + 512
C_WA, C_G, C_XN, F_Q, C_MX, C_P, F_WT, C_QP, C_Y, C_HP, T_A, T_B, F_K, TAGW = [4 * i for i in range(14)]

WS_Q = 0x1000
WS_H = WS_Q + 0x40000
WS_LSE = WS_H + 0x40000
WS_O = WS_LSE + 0x4000
WS_M = WS_O + 0x80000
WS_S = 0x150000
assert WS_S >= WS_M + 0x40000
WS_T = WS_S + 0x80000
WS_N = WS_T + 0x10000
WS_END = WS_T + 0x20000
assert WS_END <= 0x200000
STAMP = 0x8000000

class G:
    def __init__(s, **kw):
        s.o = []
        s.nl = 0
        s.kw = kw
        s.stamps = kw.get('stamps', False)
    def a(s, t):
        for l in t.split('\n'):
            l = l.strip()
            if l: s.o.append(l)
    def lab(s, p='L'):
        s.nl += 1
        return f'{p}_{s.nl}'
    def stamp(s, i):
        pr = s.kw.get('probe')
        only = s.kw.get('only')
        if (s.stamps and (only is None or i in only or i == 0)) or (pr and i in (0, pr[1])):
            s.a(f's_memrealtime s[{64+2*i}:{65+2*i}]')
    def budget(s):
        s.a('s_sub_u32 s46, s46, 1\ns_cbranch_scc1 L_end')
    def wait_flag(s, off, n, extra=None, sleep=0, vt='v9'):
        L = s.lab('W')
        if sleep:
            L2 = s.lab('W')
            s.a(f's_branch {L2}\n{L}:\ns_sleep {sleep}\n{L2}:')
        else:
            s.a(f'{L}:')
        s.a(f'ds_read_b32 {vt}, v8 offset:{off}')
        ne = 0
        if extra:
            for e in extra: s.a(e)
            ne = len(extra)
        s.budget()
        s.a(f's_waitcnt lgkmcnt({0 if (s.stamps and not s.kw.get("lean")) or s.kw.get("probe") or (s.kw.get("safeA") and ne > 6) else min(ne, 15)})')
        s.a(f'v_cmp_gt_u32 vcc, {n}, {vt}')
        s.a(f's_cbranch_vccnz {L}')
    def signal(s, off):
        s.a(f's_mov_b64 exec, 1\nds_add_u32 v8, v6 offset:{off}\ns_mov_b64 exec, -1')
    def srd(s, d, p):
        s.a(f's_mov_b32 s{d}, s{p}\ns_mov_b32 s{d+1}, s{p+1}')
    def srd_const(s, d, n):
        s.a(f's_mov_b32 s{d+2}, {n}\ns_mov_b32 s{d+3}, 0x20000')
    def wave_sum(s, v, sd):
        for m in ('quad_perm:[1,0,3,2]', 'quad_perm:[2,3,0,1]', 'row_half_mirror', 'row_mirror'):
            s.a(f'v_add_f32_dpp {v}, {v}, {v} {m} row_mask:0xf bank_mask:0xf')
        s.a(f'v_add_f32_dpp {v}, {v}, {v} row_bcast:15 row_mask:0xa bank_mask:0xf')
        s.a(f'v_add_f32_dpp {v}, {v}, {v} row_bcast:31 row_mask:0xc bank_mask:0xf')
        s.a(f'v_readlane_b32 {sd}, {v}, 63')
    def rows_allreduce(s, op, v, t):
        s.a(f'v_mov_b32 {t}, {v}\nv_permlane16_swap_b32 {t}, {v}\n{op} {v}, {t}, {v}')
        s.a(f'v_mov_b32 {t}, {v}\nv_permlane32_swap_b32 {t}, {v}\n{op} {v}, {t}, {v}')
    def layernorm(s, src, f, t):
        P = lambda r: f'v[{r}:{r+1}]'
        for k in range(4):
            s.a(f'v_lshlrev_b32 v{f+2*k}, 16, v{src+k}\nv_and_b32 v{f+2*k+1}, s55, v{src+k}')
        s.a(f'v_pk_add_f32 {P(t)}, {P(f)}, {P(f+2)}\nv_pk_add_f32 {P(t+2)}, {P(f+4)}, {P(f+6)}\nv_pk_add_f32 {P(t)}, {P(t)}, {P(t+2)}\nv_add_f32 v{t}, v{t}, v{t+1}')
        s.wave_sum(f'v{t}', 's10')
        s.a(f'v_mov_b32 v{src+3}, {hex(f2u(1/512))}')
        s.a(f'v_mul_f32 v{src}, s10, v{src+3}')
        for k in range(4):
            s.a(f'v_pk_add_f32 {P(t+2*k)}, {P(f+2*k)}, {P(src)} op_sel_hi:[1,0] neg_lo:[0,1] neg_hi:[0,1]')
        s.a(f'v_pk_mul_f32 {P(t)}, {P(t)}, {P(t)}')
        for k in range(1, 4):
            s.a(f'v_pk_fma_f32 {P(t)}, {P(t+2*k)}, {P(t+2*k)}, {P(t)}')
        s.a(f'v_add_f32 v{t}, v{t}, v{t+1}')
        s.a(f'v_cvt_pk_bf16_f32 v{src}, v{src}, v{src}\nv_lshlrev_b32 v{src}, 16, v{src}')
        ms = ['quad_perm:[1,0,3,2] row_mask:0xf', 'quad_perm:[2,3,0,1] row_mask:0xf', 'row_half_mirror row_mask:0xf', 'row_mirror row_mask:0xf', 'row_bcast:15 row_mask:0xa', 'row_bcast:31 row_mask:0xc']
        fill = [f'v_pk_add_f32 {P(f+2*k)}, {P(f+2*k)}, {P(src)} op_sel_hi:[1,0] neg_lo:[0,1] neg_hi:[0,1]' for k in range(4)]
        fill += [f'v_cvt_pk_bf16_f32 v{t+2+k}, v{f+2*k}, v{f+2*k+1}' for k in range(4)]
        for k in range(4): fill += [f'v_lshlrev_b32 v{f+2*k}, 16, v{t+2+k}', f'v_and_b32 v{f+2*k+1}, s55, v{t+2+k}']
        for m in ms:
            s.a(f'v_add_f32_dpp v{t}, v{t}, v{t} {m} bank_mask:0xf')
            s.a(fill.pop(0)); s.a(fill.pop(0))
        s.a(f'v_readlane_b32 s10, v{t}, 63')
        s.a(fill.pop(0)); s.a(fill.pop(0))
        s.a(f'v_mul_f32 v{src}, s10, v{src+3}')
        s.a(f'v_cvt_pk_bf16_f32 v{src}, v{src}, v{src}\nv_lshlrev_b32 v{src}, 16, v{src}')
        s.a(f'v_add_f32 v{src}, {hex(f2u(1e-5))}, v{src}')
        s.a(f'v_cvt_pk_bf16_f32 v{src}, v{src}, v{src}\nv_lshlrev_b32 v{src}, 16, v{src}')
        s.a(f'v_sqrt_f32 v{src}, v{src}')
        s.a(fill.pop(0))
        s.a(f'v_cvt_pk_bf16_f32 v{src}, v{src}, v{src}\nv_lshlrev_b32 v{src}, 16, v{src}')
        s.a(f'v_rcp_f32 v{src}, v{src}')
        s.a(fill.pop(0))
        assert not fill
        for k in range(4):
            s.a(f'v_pk_mul_f32 {P(f+2*k)}, {P(f+2*k)}, {P(src)} op_sel_hi:[1,0]')
        for k in range(4):
            s.a(f'v_cvt_pk_bf16_f32 v{src+k}, v{f+2*k}, v{f+2*k+1}')
    def round_bf16(s, v):
        s.a(f'v_cvt_pk_bf16_f32 {v}, {v}, {v}\nv_lshlrev_b32 {v}, 16, {v}')
    def tag_finish(s):
        s.a('s_mul_i32 s44, s44, 0x2c9277b5\ns_add_u32 s44, s44, 0xac564b05')
    def pack24(s, d, a, b, c, e):
        s.a(f'v_perm_b32 v{d}, v{a}, v{e}, s50\nv_perm_b32 v{d+1}, v{b}, v{e}, s51\nv_perm_b32 v{d+2}, v{c}, v{e}, s52')
    def pack24_consts(s):
        s.a('s_mov_b32 s50, 0x07060503\ns_mov_b32 s51, 0x07060502\ns_mov_b32 s52, 0x07060501')
    def unpack24(s, r):
        s.a(f'v_perm_b32 v{r+3}, v{r}, v{r+1}, s53\nv_perm_b32 v{r+3}, v{r+3}, v{r+2}, s54')
    def unpack24_consts(s):
        s.a('s_mov_b32 s53, 0x04000c0c\ns_mov_b32 s54, 0x0706000c')
    def reduce32(s, r):
        s.a(f'v_permlane32_swap_b32 v{r}, v{r+2}\nv_permlane32_swap_b32 v{r+1}, v{r+3}')
        s.a(f'v_add_f32 v{r}, v{r}, v{r+2}\nv_add_f32 v{r+1}, v{r+1}, v{r+3}')
        s.a(f'v_permlane16_swap_b32 v{r}, v{r+1}\nv_add_f32 v{r}, v{r}, v{r+1}')
        for m in ('row_ror:8', 'row_ror:4', 'row_ror:2'):
            s.a(f'v_add_f32_dpp v{r}, v{r}, v{r} {m} row_mask:0xf bank_mask:0xf')
    def mfma(s, d, A, B, first):
        s.a(f'v_mfma_f32_16x16x32_bf16 v[{d}:{d+3}], v[{A}:{A+3}], v[{B}:{B+3}], {"0" if first else f"v[{d}:{d+3}]"}')
    def mlp_slot(s, d, t):
        ha = s.kw.get('ha', 4)
        s.a(f's_mul_i32 s{d}, s5, 6\ns_add_u32 s{d}, s{d}, s3\ns_cmp_gt_u32 s3, {ha}\ns_cselect_b32 s{t}, 2, 0\ns_sub_u32 s{d}, s{d}, s{t}\ns_lshl_b32 s{d}, s{d}, 1')
        s.a(f's_lshl2_add_u32 s{t}, s3, s5\ns_add_u32 s{t}, s{t}, {48-4*ha}')
        s.a(f's_bitcmp1_b32 {3 << ha}, s3\ns_cselect_b32 s{d}, s{t}, s{d}')
    def hint(s, name, off, nq, tries, sub):
        a = s.a
        a(f's_lshl_b32 s48, s3, 7\ns_add_u32 s48, s48, {WS_N + off}\ns_add_u32 s49, s48, s4')
        a('s_and_b32 s50, s44, 0xff\ns_mul_i32 s50, s50, 0x01010101\ns_mov_b32 s51, s50\nv_mov_b32 v21, s50')
        if sub: a('s_andn2_b32 s48, s49, 7')
        a(f's_mov_b32 s47, {tries}')
    def hint_go(s, name, nq):
        a = s.a
        a('s_mov_b64 exec, 1\nbuffer_store_byte v21, v8, s[40:43], s49 offen\ns_mov_b64 exec, -1')
        a(f'L_{name}:')
        a(f's_load_dwordx{2*nq} s[52:{51+2*nq}], s[40:41], s48 glc')
        a(f's_sub_u32 s47, s47, 1\ns_cbranch_scc1 L_{name}d\ns_waitcnt lgkmcnt(0)')
        for k in range(nq): a(f's_xor_b64 s[{52+2*k}:{53+2*k}], s[{52+2*k}:{53+2*k}], s[50:51]')
        for k in range(1, nq): a(f's_or_b64 s[52:53], s[52:53], s[{52+2*k}:{53+2*k}]')
        a(f's_cbranch_scc1 L_{name}\nL_{name}d:\ns_waitcnt lgkmcnt(0)')
    def dump_stamps(s, nst=16):
        if not s.stamps: return
        s.a('s_waitcnt lgkmcnt(0)\ns_mov_b64 exec, -1\nv_mov_b32 v10, 0')
        for i in range(nst):
            s.a(f'v_writelane_b32 v10, s{64+2*i}, {i}')
        s.a(f's_mul_i32 s10, s2, {NW*64}\ns_lshl_b32 s11, s7, 6\ns_add_u32 s10, s10, s11\ns_add_u32 s10, s10, {STAMP}')
        s.a('v_lshlrev_b32 v11, 2, v1\ns_mov_b64 exec, 0xffff\nbuffer_store_dword v10, v11, s[40:43], s10 offen ' + s.kw.get('stfl', ''))

def gen(**kw):
    s = G(**kw)
    a = s.a
    depth = kw.get('depth', 20)
    NT = kw.get('nt', 'nt')
    npq = kw.get('npq', 2); gapq = kw.get('gapq', 12); q0 = kw.get('q0', 4)
    npl = kw.get('npl', 4); gapl = kw.get('gapl', 6)
    CSC = math.log2(math.e) / math.sqrt(128)
    ONE2 = 0x3f803f80
    order = kw.get('order', '11kkkkkkkk22vvvvvvvvoooo')
    TH = {c: [i + 1 for i, x in enumerate(order) if x == c] for c in '1k2vo'}
    assert [len(TH[c]) for c in '1k2vo'] == [2, 8, 2, 8, 4]
    marks = {TH['1'][1], TH['2'][1], TH['o'][3], len(order) - (kw.get('oe') or 0), kw.get('qg') or 2} | set(TH['k'][1::2]) | set(TH['v'][1::2])
    def common():
        if s.stamps:
            for i in range(1, 16): a(f's_mov_b32 s{64+2*i}, 0')
        a('v_and_b32 v1, 63, v0\ns_lshr_b32 s5, s4, 3\ns_and_b32 s6, s4, 7')
        a(f's_mov_b32 s42, {STAMP + 0x100000 if s.stamps else WS_END}\ns_mov_b32 s43, 0x20000')
        a(f's_mov_b32 s46, {kw.get("budget", 5000000)}')
        a('v_mov_b32 v6, 1')
        a('v_lshrrev_b32 v2, 4, v1\nv_and_b32 v3, 15, v1')
    s.stamp(0)
    a('s_load_dwordx16 s[16:31], s[0:1], 0\ns_load_dwordx8 s[32:39], s[0:1], 64\ns_load_dwordx2 s[40:41], s[0:1], 96')
    a('s_lshr_b32 s4, s2, 3\ns_cmp_ge_u32 s4, 32\ns_cbranch_scc1 L_exit')
    a('v_lshrrev_b32 v2, 6, v0\nv_bfe_u32 v4, v0, 3, 3')
    a('v_lshlrev_b32 v9, 2, v0\nv_mov_b32 v8, 0\nds_write_b32 v9, v8')
    if kw.get('prefetch', True):
        a('s_getpc_b64 s[8:9]\nL_pc:')
        a('v_lshlrev_b32 v3, 7, v0\nv_min_u32 v3, L_exit-L_pc, v3\nglobal_load_dword v7, v3, s[8:9]')
    a('v_readfirstlane_b32 s7, v2')
    a('v_and_b32 v5, 6, v4\nv_xor_b32 v5, v5, v0\nv_and_b32 v5, 7, v5\nv_lshlrev_b32 v5, 4, v5')
    a('s_and_b32 s3, s2, 7\ns_cmp_ge_u32 s7, 4\ns_cbranch_scc1 L_roles')
    a('s_mov_b32 s51, 0x20000\nv_lshlrev_b32 v11, 4, v0')
    a('s_lshr_b32 s10, s4, 3\ns_lshl2_add_u32 s10, s10, s7\ns_lshl_b32 s10, s10, 18\ns_xor_b32 s11, s4, ' + str(kw.get('rq', 0)) + '\ns_and_b32 s11, s11, 7\ns_lshl3_add_u32 s11, s3, s11\ns_lshl_b32 s11, s11, 7\ns_add_u32 s10, s10, s11')
    a(f's_bfm_b32 s50, 1, 22\ns_movk_i32 s12, 0x7e00\ns_lshl_b32 s12, s12, 1\nv_lshl_add_u32 v10, v4, 13, v5\ns_lshl_b32 m0, s7, 12\ns_addk_i32 m0, {WA}')
    a('s_waitcnt lgkmcnt(0)')
    a('s_mov_b32 s48, s22\ns_mov_b32 s49, s23')
    a('global_load_dwordx4 v[12:15], v11, s[16:17]')
    for r in range(4):
        a(f'buffer_load_dwordx4 v10, s[48:51], s10 offen offset:{r*1024} {NT} lds')
        if r < 3: a('s_add_u32 s10, s10, s12')
    a('s_load_dword s44, s[40:41], 0')
    a('s_barrier\ns_branch L_C')
    a('L_roles:')
    a('s_barrier')
    common()
    a('s_cmp_eq_u32 s7, 6\ns_cbranch_scc1 L_L')
    ns = kw.get('nsamp', 1)
    a(f's_lshr_b32 s10, s2, 6\ns_lshl1_add_u32 s10, s10, s7\ns_lshl_b32 s10, s10, 6\ns_and_b32 s11, s2, 63\ns_add_u32 s10, s10, s11\ns_lshl_b32 s10, s10, 7\ns_add_u32 s10, s10, {WS_T - 4*8192}')
    a('s_waitcnt lgkmcnt(0)')
    if kw.get('pd'): a(f's_sleep {kw["pd"]}')
    a('s_memtime s[12:13]\ns_load_dword s11, s[40:41], s10')
    if ns == 2: a('s_add_u32 s10, s10, 0x10000\ns_waitcnt lgkmcnt(0)\ns_load_dword s11, s[40:41], s10')
    a('s_waitcnt lgkmcnt(0)\ns_memtime s[14:15]\ns_lshl_b32 s10, s7, 2\nv_mov_b32 v10, s10\ns_waitcnt lgkmcnt(0)')
    a(f's_sub_u32 s12, s14, s12\nv_mov_b32 v11, s12\nds_write_b32 v10, v11 offset:{T_A - 16}')
    a('s_cmp_eq_u32 s7, 4\ns_cbranch_scc1 L_P\ns_branch L_M\nL_L:')
    rq, r2 = kw.get('rq', 0), kw.get('r2', 0)
    s.mlp_slot(10, 11)
    a('s_cselect_b32 s11, 64, 0\ns_cselect_b32 s8, 30, 15')
    a('v_and_b32 v14, s11, v5\nv_lshl_add_u32 v14, v14, 24, v5\nv_mul_u32_u24 v32, 3584, v4\nv_add_u32 v32, v32, v14')
    for r in range(1, 4): a(f'v_add_u32 v{32+r}, {r*(8*3584-1024)}, v32')
    a('v_xor_b32 v14, v3, v2\nv_lshlrev_b32 v14, 4, v14\nv_lshl_add_u32 v18, v2, 8, v14')
    for r in range(1, 4): a(f'v_xor_b32 v{18+r}, {r*64}, v18\nv_add_u32 v{18+r}, {r*7168}, v{18+r}')
    a(f's_mov_b32 s50, {512*3584}\ns_mov_b32 s51, 0x20000\ns_lshl_b32 s8, 1, s8')
    a(f's_mul_i32 s12, s6, {64*3584}\ns_lshl_b32 s11, s10, 6\ns_add_u32 s12, s12, s11')
    a(f's_lshl_b32 s13, s5, 23\ns_lshl_b32 s11, s3, 20\ns_add_u32 s13, s13, s11\ns_lshl_b32 s11, s6, 10\ns_add_u32 s13, s13, s11\ns_add_u32 s13, s13, {3072*256}')
    a('s_bfm_b32 s54, 1, 25\ns_mov_b32 s55, s51\ns_mov_b32 s14, s13')
    a('s_waitcnt lgkmcnt(0)')
    s.stamp(1)
    dg = depth // 4
    segs = {'1': (32, 48, 28, 12, 32 * 3584, W1), 'k': (18, 52, 18, 13, 32768, KB), 'v': (22, 56, 20, 14, 32768, VB),
            '2': (26, 60, 32, 15, 's8', W2), 'o': (26, 96, 24, 9, 32768, WO)}
    cnt = {c: 0 for c in segs}
    late = False
    prof = kw.get('prof')
    prof = [int(x, 16) for x in prof] if prof else [dg] * len(order)
    assert len(prof) == len(order)
    landed = 0
    first_wait = min(gi for gi in range(len(order)) if gi + 1 > prof[gi])
    for gi, c in enumerate(order):
        vr, sd, ptr, so, step, lds = segs[c]
        if gi == first_wait:
            a('v_lshlrev_b32 v14, 1, v2\nv_xor_b32 v14, v3, v14\nv_lshlrev_b32 v14, 4, v14\nv_lshl_add_u32 v22, v2, 8, v14')
            a(f'v_xor_b32 v23, 128, v22\nv_add_u32 v24, {2*7168}, v22\nv_add_u32 v25, {3*7168}, v23\nv_add_u32 v23, 7168, v23')
            a('v_lshl_add_u32 v26, v4, 10, v5')
            for r in range(1, 4): a(f'v_add_u32 v{26+r}, {r*7168}, v26')
            a(f's_mov_b32 s58, s54\ns_mov_b32 s59, s51\ns_mov_b32 s62, {1792*1024}\ns_mov_b32 s63, s51\ns_bfm_b32 s98, 1, 22\ns_mov_b32 s99, s51')
            s.srd(56, 20); s.srd(60, 32); s.srd(96, 24)
            a(f's_add_u32 s11, s6, {r2}\ns_and_b32 s11, s11, 7\ns_lshl_b32 s11, s11, 7\ns_lshl_b32 s15, s10, 15\ns_add_u32 s15, s15, s11')
            a('s_lshl2_add_u32 s9, s3, s5\ns_lshl_b32 s9, s9, 17\ns_lshl_b32 s11, s6, 7\ns_add_u32 s9, s9, s11')
            s.stamp(2)
            late = True
        assert late or c in '1k'
        if cnt[c] == 0 and c in '1k': s.srd(sd, ptr)
        a(f's_mov_b32 m0, {lds + cnt[c] * 4096}')
        if cnt[c]: a(f's_add_u32 s{so}, s{so}, {step}')
        while landed < gi + 1 - prof[gi]:
            landed += 1
            if landed in marks or landed == gi + 1 - prof[gi]:
                a(f's_waitcnt vmcnt({(gi-landed)*4})')
            if landed in marks:
                a(f'v_mov_b32 v30, {landed}\nds_write_b32 v8, v30 offset:{C_G}')
                if landed == TH['v'][7]: s.stamp(6)
        for r in range(4):
            fine = kw.get('fine')
            if fine and gi * 4 + r >= fine and (r or fine - 1 < (gi - landed) * 4): a(f's_waitcnt vmcnt({fine-1})')
            fl = kw.get('nt' + c, NT)
            a(f'buffer_load_dwordx4 v{vr+r}, s[{sd}:{sd+3}], s{so} offen offset:{r*1024} {fl} lds')
        cnt[c] += 1
    for n in range(landed + 1, len(order) + 1):
        if n in marks:
            if kw.get('obar') and n == len(order) and n != TH['v'][7]:
                a('s_waitcnt vmcnt(0)')
            else:
                a(f'v_mov_b32 v30, {n}\ns_waitcnt vmcnt({(len(order)-n)*4})\nds_write_b32 v8, v30 offset:{C_G}')
            if n == TH['v'][7]: s.stamp(6)
    s.stamp(7)
    if kw.get('obar'): a('s_barrier')
    a('s_branch L_end')

    if kw.get('shift'): a('s_nop 0')
    a('L_C:')
    a('s_setprio 2')
    common()
    s.stamp(1)
    if 'C' in kw.get('kill', ''): a('s_waitcnt vmcnt(0)\ns_branch L_end')
    a('v_bfe_u32 v4, v1, 2, 2\nv_and_b32 v5, 3, v1')
    a(f's_mul_i32 s11, s7, {XS}\ns_add_u32 s11, s11, {XN}')
    a('v_lshrrev_b32 v10, 2, v1\nv_lshlrev_b32 v10, 6, v10\nv_and_b32 v11, 1, v1\nv_lshl_add_u32 v10, v11, 5, v10\nv_and_b32 v11, 2, v1\nv_lshl_add_u32 v10, v11, 2, v10\nv_add_u32 v11, s11, v10')
    a('s_mov_b32 s55, 0xffff0000')
    a('v_lshl_add_u32 v27, v2, 2, v4\nv_bfe_u32 v96, v27, 1, 2\nv_lshlrev_b32 v96, 5, v96\nv_lshl_add_u32 v96, v27, 7, v96\nv_lshl_add_u32 v96, v5, 3, v96')
    a('s_lshl_b32 s12, s7, 5\nv_xor_b32 v10, s12, v96')
    a('s_getreg_b32 s45, hwreg(HW_REG_XCC_ID, 0, 4)')
    a(f'v_mul_u32_u24 v24, {XS}, v5\nv_lshl_add_u32 v24, v2, 4, v24')
    a(f's_lshl_b32 s10, s5, 8\ns_add_u32 s10, s10, {XN}\nv_add_u32 v25, s10, v24')
    a(f's_lshl_b32 s10, s6, 7\ns_add_u32 s10, s10, {YL}\nv_add_u32 v24, s10, v24')
    a(f's_lshl_b32 s14, s3, 15\ns_lshl1_add_u32 s14, s12, s14\ns_lshl_b32 s13, s4, 8\ns_xor_b32 s58, s13, {rq*256}\ns_add_u32 s58, s14, s58\ns_add_u32 s58, s58, {WS_Q}')
    a(f's_lshl2_add_u32 s59, s13, s14\ns_add_u32 s59, s59, {WS_H}')
    a('v_lshlrev_b32 v106, 13, v3\nv_lshl_add_u32 v106, v2, 4, v106\nv_lshlrev_b32 v107, 4, v1\nv_mov_b32 v30, 0x3ff\nv_mov_b32 v31, 0xfffffc01')
    s.pack24_consts()
    a('s_mov_b32 s13, 1')
    a('s_waitcnt vmcnt(0)' if kw.get('safeB') else 's_waitcnt vmcnt(4)')
    if not kw.get('ackst'): s.stamp(2)
    a('L_ln:')
    s.layernorm(12, 16, 32)
    a(f'ds_write2_b64 v11, v[12:13], v[14:15] offset1:2\nv_add_u32 v11, {YL-XN}, v11')
    a('s_sub_u32 s13, s13, 1\ns_cbranch_scc0 L_ln')
    s.stamp(3)
    a('s_waitcnt vmcnt(0) lgkmcnt(0)')
    if kw.get('st_tile'): s.stamp(5)
    s.signal(C_WA)
    s.tag_finish()
    a(f'v_mov_b32 v111, s44\nv_mov_b32 v115, s44\nds_write_b32 v8, v111 offset:{TAGW}')
    s.wait_flag(C_WA, 4, extra=[f'ds_read_b64 v[28:29], v8 offset:{T_A}'] + [x for t in range(4) for x in (f'ds_read_b128 v[{64+4*t}:{67+4*t}], v25 offset:{t*64}',
                f'ds_read_b64_tr_b16 v[{40+4*t}:{41+4*t}], v10 offset:{WA+t*4096}', f'ds_read_b64_tr_b16 v[{42+4*t}:{43+4*t}], v10 offset:{WA+t*4096+2048}')])
    for t in range(4):
        a(f's_waitcnt lgkmcnt({9-3*t})')
        s.mfma(16, 40 + 4 * t, 64 + 4 * t, t == 0)
        if t == 0: a('v_sub_u32 v110, v28, v29\nv_min_u32 v28, v28, v29')
        if t == 1: a('v_cmp_ne_u32 vcc, 0, v28\nv_med3_i32 v110, v110, v30, v31')
        if t == 2: a('v_cndmask_b32 v110, 0, v110, vcc\nv_lshl_or_b32 v110, v110, 4, s45')
    for t in range(2): a(f'ds_read_b128 v[{80+4*t}:{83+4*t}], v24 offset:{t*64}')
    a('s_mov_b32 exec_lo, 0x000f000f\ns_mov_b32 exec_hi, 0x000f000f')
    a('v_cvt_pk_bf16_f32 v108, v16, v17\nv_cvt_pk_bf16_f32 v109, v18, v19')
    a('buffer_store_dwordx4 v[108:111], v106, s[40:43], s58 offen')
    if kw.get('qe'): s.signal(C_QP)
    else: a('s_mov_b64 exec, -1')
    if not kw.get('ackst'): s.stamp(4)
    s.wait_flag(C_G, TH['1'][1], extra=[f'ds_read_b64_tr_b16 v[{40+2*t}:{41+2*t}], v10 offset:{W1+t*2048}' for t in range(4)], sleep=1)
    for t in range(2):
        a(f's_waitcnt lgkmcnt({2-2*t})')
        s.mfma(16, 40 + 4 * t, 80 + 4 * t, t == 0)
    a('s_mov_b32 exec_lo, 0x000f000f\ns_mov_b32 exec_hi, 0x000f000f')
    s.pack24(112, 16, 17, 18, 19)
    a('buffer_store_dwordx4 v[112:115], v107, s[40:43], s59 offen')
    if kw.get('he'): s.signal(C_HP)
    else: a('s_mov_b64 exec, -1')
    if 'Q' in kw.get('kill', ''): a('s_branch L_end')
    a(f's_lshl_b32 s10, s7, 13\ns_add_u32 s10, s10, {KB}')
    a(f'v_xor_b32 v10, v2, v3\nv_lshlrev_b32 v10, 4, v10\nv_lshl_add_u32 v10, v3, 8, v10\nv_add_u32 v102, {QL}, v10\nv_add_u32 v10, s10, v10')
    a('v_xor_b32 v103, 64, v102\nv_xor_b32 v104, 128, v102\nv_xor_b32 v105, 192, v102')
    a('v_xor_b32 v11, 64, v10\nv_xor_b32 v12, 128, v10\nv_xor_b32 v13, 192, v10')
    a(f's_lshl_b32 s10, s7, 2\ns_add_u32 s10, s10, {MX}\nv_lshlrev_b32 v15, 4, v5\nv_add_u32 v24, s10, v15\nv_add_u32 v15, {MX}, v15\ns_add_u32 s10, s10, {FP-MX}\nv_mov_b32 v14, s10')
    a(f's_lshl_b32 s10, s7, 10\ns_add_u32 s10, s10, {PL}\nv_lshlrev_b32 v25, 4, v1\nv_add_u32 v26, s10, v25\nv_add_u32 v25, {PL}, v25')
    a('v_and_b32 v28, 7, v27\ns_lshl_b32 s10, s7, 1\nv_xor_b32 v28, s10, v28\nv_lshlrev_b32 v28, 5, v28\nv_lshl_add_u32 v28, v27, 8, v28\nv_lshl_add_u32 v28, v5, 3, v28')
    a(f'v_add_u32 v28, {VB}, v28\nv_xor_b32 v29, 32, v28')
    a(f's_lshr_b32 s10, s7, 1\ns_lshl_b32 s11, s10, 13\ns_add_u32 s11, s11, {WO}')
    a('v_add_u32 v96, s11, v96\nv_xor_b32 v97, 32, v96\nv_xor_b32 v98, 64, v96\nv_xor_b32 v99, 96, v96')
    a('v_lshlrev_b32 v30, 14, v3\nv_lshl_add_u32 v30, v2, 8, v30')
    a(f's_lshl_b32 s14, s3, 16\ns_add_u32 s14, s14, {WS_O}')
    a('s_lshr_b32 s11, s4, 4\ns_lshl2_add_u32 s11, s11, s7\ns_lshl_b32 s11, s11, 11\ns_and_b32 s12, s4, 15\ns_lshl4_add_u32 s11, s12, s11')
    a('v_lshlrev_b32 v31, 4, v1')
    a('v_lshlrev_b32 v101, 11, v2\nv_lshl_add_u32 v101, v3, 4, v101\nv_add_u32 v101, 768, v101')
    a('s_lshl_b32 s15, s5, 14\ns_add_u32 s15, s15, s14\ns_lshl_b32 s10, s10, 12\ns_add_u32 s15, s15, s10\ns_and_b32 s10, s7, 1\ns_lshl_b32 s12, s10, 13\ns_add_u32 s15, s15, s12')
    a('s_add_u32 s14, s14, s11')
    a(f'v_lshlrev_b32 v100, 9, v2\nv_lshl_add_u32 v100, v3, 4, v100\nv_add_u32 v100, {RED}, v100')
    a(f's_lshr_b32 s10, s3, 1\ns_lshl2_add_u32 s56, s6, s10\ns_and_b32 s10, s3, 1\ns_lshl2_add_u32 s56, s56, s10\ns_lshl2_add_u32 s56, s56, s5\ns_lshl_b32 s56, s56, 10\ns_add_u32 s56, s56, {WS_S}\ns_add_u32 s63, s56, 8192')
    a('v_lshrrev_b32 v119, 1, v1\nv_lshlrev_b32 v119, 10, v119\nv_and_b32 v16, 1, v1\nv_lshl_add_u32 v119, v16, 4, v119')
    a(f's_lshl_b32 s60, s3, 15\ns_lshl_b32 s11, s4, 5\ns_add_u32 s60, s60, s11\ns_add_u32 s62, s60, {WS_M}\ns_add_u32 s60, s60, {WS_S}')
    a('v_lshl_add_u32 v117, v2, 13, v119')
    a(f's_lshl_b32 s60, s3, 16\ns_add_u32 s60, s60, s11\ns_add_u32 s60, s60, {WS_S}')
    a(f's_mov_b32 s13, {hex(f2u(CSC))}')
    a('s_mov_b32 s12, s13')
    for k in range(4): a(f'v_mov_b32 v{124+k}, {hex(ONE2)}')
    kt = TH['k'][1::2]
    a(f's_lshl_b32 s57, s7, 3\ns_lshr_b32 s57, {kt[0] | kt[1] << 8 | kt[2] << 16 | kt[3] << 24}, s57\ns_and_b32 s57, s57, 0xff')
    if not kw.get('qe'):
        a('s_waitcnt vmcnt(1)')
        s.signal(C_QP)
    if not kw.get('he'):
        a('s_waitcnt vmcnt(0)')
        s.signal(C_HP)
    s.wait_flag(C_G, 's57', sleep=1)
    for u in range(2):
        for t in range(4):
            a(f'ds_read_b128 v[{32+16*u+4*t}:{35+16*u+4*t}], v{10+t} offset:{u*4096}')
    if not kw.get('st_tile') and not kw.get('ackst'): s.stamp(5)
    s.wait_flag(F_Q, 1, extra=[f'ds_read_b128 v[{64+4*t}:{67+4*t}], v{102+t}' for t in range(4)])
    s.stamp(6)
    a('v_readfirstlane_b32 s47, v9')
    a('s_cmp_lg_u32 s47, 1\ns_cbranch_scc1 L_qrem')
    a('L_qgo:')
    DP = lambda op, d, x, y, m, rm='0xf': f'{op}_dpp {d}, {x}, {y} {m} row_mask:{rm} bank_mask:0xf'
    for u in range(2):
        for t in range(4):
            if u == 0: a(f's_waitcnt lgkmcnt({3-t})')
            s.mfma(16 + 4 * u, 32 + 16 * u + 4 * t, 64 + 4 * t, t == 0)
    if kw.get('safeC'): a('s_nop 15')
    a('v_mov_b32 v40, s44\nv_mov_b32 v47, s44\nv_mov_b32 v123, s44')
    for u in range(2):
        for k in range(4): a(DP('v_add_f32', f'v{16+4*u+k}', f'v{16+4*u+k}', f'v{16+4*u+k}', 'row_ror:4'))
        for k in range(4): a(DP('v_add_f32', f'v{16+4*u+k}', f'v{16+4*u+k}', f'v{16+4*u+k}', 'row_ror:8'))
        if u == 0: a('v_max3_f32 v10, v16, v17, v18')
    a('v_max3_f32 v10, v10, v19, v20\nv_max3_f32 v11, v21, v22, v23\nv_max_f32 v10, v10, v11\nv_max_f32 v11, v10, v11')
    a('v_permlane16_swap_b32 v11, v10\nv_max_f32 v10, v11, v10\nv_max_f32 v11, v11, v10')
    a('v_permlane32_swap_b32 v11, v10\nv_max_f32 v10, v11, v10\nv_or_b32 v10, 1, v10')
    WB = 128; VR = 160
    vrd = lambda t: [f'ds_read_b64_tr_b16 v[{VR+8*t+4*T+2*u}:{VR+1+8*t+4*T+2*u}], v{28+T} offset:{t*8192+u*4096}' for T in range(2) for u in range(2)]
    cw = lambda n: 0 if (s.stamps and not kw.get('lean')) else n
    a('ds_write_b32 v24, v10')
    a(f'ds_read_b128 v[32:35], v15\nds_read_b32 v9, v8 offset:{C_G}')
    for x in vrd(0) + vrd(1) + vrd(2): a(x)
    a(f's_waitcnt lgkmcnt({cw(13)})\ns_branch L_mx2')
    a('L_mx:')
    a('ds_read_b128 v[32:35], v15')
    s.budget()
    a('s_waitcnt lgkmcnt(0)')
    a('L_mx2:')
    a('v_min3_u32 v11, v32, v33, v34\nv_max3_f32 v10, v32, v33, v34\nv_min_u32 v11, v11, v35\nv_max_f32 v10, v10, v35\nv_cmp_eq_u32 vcc, 0, v11\nv_mul_f32 v116, s13, v10\ns_cbranch_vccnz L_mx')
    for k in range(4): a(f'v_pk_fma_f32 v[{16+2*k}:{17+2*k}], v[{16+2*k}:{17+2*k}], s[12:13], v[116:117] op_sel_hi:[1,1,0] neg_lo:[0,0,1] neg_hi:[0,0,1]')
    for k in range(8): a(f'v_exp_f32 v{16+k}, v{16+k}')
    for k in range(4): a(f'v_cvt_pk_bf16_f32 v{32+k}, v{16+2*k}, v{17+2*k}')
    a('ds_write_b128 v26, v[32:35]\nds_write_b32 v14, v6')
    a('L_pw:')
    a(f'ds_read_b128 v[36:39], v8 offset:{FP}')
    for t in range(4): a(f'ds_read_b128 v[{64+4*t}:{67+4*t}], v25 offset:{t*1024}')
    a(f'ds_read_b32 v118, v8 offset:{C_G}')
    for x in vrd(3): a(x)
    a('v_mov_b32 v41, v116')
    s.budget()
    a(f's_waitcnt lgkmcnt({cw(9)})\nv_min3_u32 v11, v36, v37, v38\nv_min_u32 v11, v11, v39\nv_cmp_eq_u32 vcc, 0, v11\ns_cbranch_vccnz L_pw')
    s.stamp(7)
    def wo_reads(kss=(0, 1)):
        for ks in kss:
            for T in range(4):
                for u in range(2):
                    r = WB + 16 * ks + 4 * T + 2 * u
                    a(f'ds_read_b64_tr_b16 v[{r}:{r+1}], v{96+T} offset:{ks*4096+u*2048}')
    early = False
    a(f'v_cmp_gt_u32 vcc, {TH["v"][5]}, v9\ns_cbranch_vccz L_v012')
    s.wait_flag(C_G, TH['v'][5], extra=vrd(0) + vrd(1) + vrd(2), sleep=2)
    a('s_waitcnt lgkmcnt(0)')
    a('L_v012:')
    for t in range(3):
        a(f's_waitcnt lgkmcnt({8-t})')
        for T in range(2): s.mfma(16 + 4 * T, VR + 8 * t + 4 * T, 64 + 4 * t, t == 0)
        s.mfma(56, 124, 64 + 4 * t, t == 0)
    a('s_waitcnt lgkmcnt(4)')
    s.mfma(56, 124, 76, False)
    a(f'v_cmp_gt_u32 vcc, {TH["v"][7]}, v118\ns_cbranch_vccz L_v3')
    s.wait_flag(C_G, TH['v'][7], extra=vrd(3))
    a('L_v3:')
    if not kw.get('ind'): s.stamp(8)
    for T in range(2):
        a(f's_waitcnt lgkmcnt({2-2*T})')
        s.mfma(16 + 4 * T, VR + 24 + 4 * T, 76, False)
    a('v_mov_b32 v46, v56')
    a('s_mov_b32 exec_lo, 0x000f000f\ns_mov_b32 exec_hi, 0x000f000f\ns_cmp_eq_u32 s47, 1')
    for k in range(4): a(f'v_cvt_pk_bf16_f32 v{42+k}, v{16+2*k}, v{17+2*k}')
    a('s_cbranch_scc0 L_orem')
    a('buffer_store_dwordx4 v[40:43], v30, s[40:43], s14 offen\nbuffer_store_dwordx4 v[44:47], v30, s[40:43], s14 offen offset:1024')
    a('L_ost:')
    a('s_mov_b64 exec, -1')
    s.stamp(9)
    if kw.get('ackst'):
        a('s_waitcnt vmcnt(0)')
        s.stamp(5)
    if 'D' in kw.get('kill', ''): a('s_branch L_end')
    if kw.get('od0'): a(f's_sleep {kw["od0"]}')
    OE = kw.get('oe')
    if OE is not None:
        if OE: s.wait_flag(C_G, len(order) - OE)
    elif kw.get('obar'): a('s_barrier')
    if kw.get('ind'):
        if not early:
            s.wait_flag(C_G, TH['o'][3])
            wo_reads()
            early = True
        a('s_mov_b32 exec_hi, 0')
        a('L_ipoll:')
        a('buffer_load_dword v48, v101, s[40:43], s15 offen offset:1036 sc1')
        s.budget()
        if kw.get('isl'):
            a(f's_waitcnt vmcnt(0)\nv_cmp_ne_u32 vcc, s44, v48\ns_cbranch_vccz L_idone\ns_sleep {kw["isl"]}\ns_branch L_ipoll\nL_idone:')
        else:
            a('s_waitcnt vmcnt(0)\nv_cmp_ne_u32 vcc, s44, v48\ns_cbranch_vccnz L_ipoll')
        a('s_mov_b32 exec_hi, -1')
        s.stamp(8)
    for k in range(4): a(f'buffer_load_dwordx4 v[{48+4*k}:{51+4*k}], v31, s[40:43], s15 offen offset:{k*1024} sc1')
    if OE == 1 and kw.get('wsplit'):
        wo_reads((0,))
        a('s_barrier')
        wo_reads((1,))
        a(f'ds_read_b32 v9, v8 offset:{F_K}')
    else:
        if OE is not None: a('s_barrier')
        a(f'ds_read_b32 v9, v8 offset:{F_K}')
        wo_reads()
    if s.stamps:
        if kw.get('ackst'):
            a('s_waitcnt vmcnt(0)')
            s.stamp(2)
        a('s_mov_b32 s61, 0')
    a('s_branch L_opoll')
    a('L_oretry:')
    a('s_mov_b64 exec, vcc')
    if s.stamps: a('s_add_u32 s61, s61, 1')
    if kw.get('osl'): a(f's_sleep {kw["osl"]}')
    for k in range(4): a(f'buffer_load_dwordx4 v[{48+4*k}:{51+4*k}], v31, s[40:43], s15 offen offset:{k*1024} sc1')
    a('s_mov_b64 exec, -1')
    s.budget()
    if kw.get('al'): a('.p2align 3')
    a('L_opoll:')
    a('s_waitcnt vmcnt(0) lgkmcnt(0)')
    a('v_xor_b32 v10, s44, v48\nv_bitop3_b32 v10, v55, s44, v10 bitop3:0xbe\nv_bitop3_b32 v10, v56, s44, v10 bitop3:0xbe\nv_bitop3_b32 v10, v63, s44, v10 bitop3:0xbe')
    a('v_cmp_ne_u32 vcc, 0, v10\ns_cbranch_vccnz L_oretry')
    s.stamp(11)
    if s.stamps: a('s_mul_i32 s61, s61, 100\ns_add_u32 s70, s64, s61')
    M8 = ('quad_perm:[1,0,3,2]', 'quad_perm:[2,3,0,1]', 'row_half_mirror')
    D = lambda op, d, x, y, m, rm='0xf': f'{op}_dpp {d}, {x}, {y} {m} row_mask:{rm} bank_mask:0xf'
    R = lambda m, rm: f'v_mov_b32_dpp v23, v21 {m} row_mask:{rm} bank_mask:0xf'
    wv = [D('v_max_f32', 'v20', 'v49', 'v49', M8[0]), None, D('v_max_f32', 'v20', 'v20', 'v20', M8[1]), None, D('v_max_f32', 'v20', 'v20', 'v20', M8[2]),
          'v_sub_f32 v21, v49, v20', 'v_exp_f32 v21, v21', None, 'v_mul_f32 v22, v54, v21', 'v_mov_b32 v23, v21', None,
          D('v_add_f32', 'v22', 'v22', 'v22', M8[0]), R('row_ror:12', '0x2'), None, D('v_add_f32', 'v22', 'v22', 'v22', M8[1]), R('row_ror:8', '0x4'), None,
          D('v_add_f32', 'v22', 'v22', 'v22', M8[2]), R('row_ror:4', '0x8'), 'v_rcp_f32 v22, v22', None]
    mf = [(32 + 4 * T, 50 + 8 * ks, WB + 16 * ks + 4 * T, ks == 0) for ks in range(2) for T in range(4)]
    s.mfma(*mf.pop(0))
    for x in wv:
        if x is None: s.mfma(*mf.pop(0))
        else: a(x)
    assert not mf
    a('v_mul_f32 v21, v22, v23')
    a(D('v_mul_f32', 'v21', 'v22', 'v23', 'row_ror:8', '0xc'))
    for T in range(4): a(D('v_mul_f32', f'v{16+T}', 'v21', f'v{32+4*T}', 'row_newbcast:0'))
    for r in range(1, 4):
        for T in range(4): a(D('v_fmac_f32', f'v{16+T}', 'v21', f'v{32+4*T+r}', f'row_newbcast:{r}'))
    a(f'ds_write_b128 v26, v[16:19] offset:{RED-PL}')
    a('v_add_u32 v117, v117, v9\ns_cmp_lg_u32 s7, 0')
    a('s_waitcnt lgkmcnt(0)\ns_barrier')
    s.stamp(12)
    a('s_cbranch_scc1 ' + ('L_wb' if kw.get('fw') else 'L_end'))
    for k in range(4): a(f'ds_read_b128 v[{48+4*k}:{51+4*k}], v100 offset:{(k>>1)*2048+(k&1)*256}')
    a('s_waitcnt lgkmcnt(2)')
    a('v_pk_add_f32 v[48:49], v[48:49], v[52:53]\nv_pk_add_f32 v[50:51], v[50:51], v[54:55]')
    a('s_waitcnt lgkmcnt(1)')
    a('v_pk_add_f32 v[48:49], v[48:49], v[56:57]\nv_pk_add_f32 v[50:51], v[50:51], v[58:59]')
    a('s_waitcnt lgkmcnt(0)')
    a('v_pk_add_f32 v[48:49], v[48:49], v[60:61]\nv_pk_add_f32 v[50:51], v[50:51], v[62:63]')
    s.pack24(120, 48, 49, 50, 51)
    a('buffer_store_dwordx4 v[120:123], v31, s[40:43], s56 offen sc1\nbuffer_store_dwordx4 v[120:123], v31, s[40:43], s63 offen sc1')
    s.stamp(13)
    fw = kw.get('fw', 0)
    if fw:
        a('s_branch L_end')
        a('L_wb:')
        a(f's_cmp_lg_u32 s7, {fw}\ns_cbranch_scc1 L_end')
        if kw.get('d0'): a(f's_sleep {kw["d0"]}')
    LA = 'buffer_load_dwordx4 v[16:19], v117, s[40:43], s60 offen sc1'
    LB_ = 'buffer_load_dwordx4 v[20:23], v117, s[40:43], s60 offen sc1'
    a('L_mpoll:')
    a('buffer_load_dwordx4 v[32:35], v119, s[40:43], s62 offen sc1')
    a(f'v_lshlrev_b32 v14, 3, v1\nv_add_u32 v14, {GX}, v14\nds_read_b64 v[12:13], v14')
    s.unpack24_consts()
    s.srd_const(48, 4096); s.srd(48, 36)
    a('s_mov_b32 s56, 0x00030003\ns_mov_b32 s57, s56')
    a('v_and_b32 v11, 1, v1\nv_lshlrev_b32 v14, 5, v2\nv_lshl_add_u32 v14, v11, 1, v14')
    a('s_lshl_b32 s11, s5, 10\ns_lshl_b32 s12, s3, 7\ns_add_u32 s11, s11, s12\ns_lshl2_add_u32 s11, s6, s11')
    if kw.get('d1'): a(f's_sleep {kw["d1"]}')
    a(LA)
    if kw.get('d2'): a(f's_sleep {kw["d2"]}')
    a(LB_)
    s.budget()
    a('s_waitcnt vmcnt(2)\nv_cmp_ne_u32 vcc, s44, v35\ns_cbranch_vccnz L_mpoll')
    s.stamp(10)
    s.unpack24(32)
    s.reduce32(32)
    a('s_waitcnt lgkmcnt(0)')
    s.round_bf16('v32')
    a('v_add_f32 v32, v32, v12')
    s.round_bf16('v32')
    a(f'v_mul_f32 v33, {hex(f2u(-math.log2(math.e)))}, v32\nv_exp_f32 v33, v33\nv_add_f32 v33, 1.0, v33\nv_rcp_f32 v33, v33\nv_mul_f32 v12, v32, v33')
    s.round_bf16('v12')
    a('L_fpoll:')
    a('s_waitcnt vmcnt(1)\nv_cmp_ne_u32 vcc, s44, v19\ns_cbranch_vccz L_fdone')
    a(LA)
    s.budget()
    a('s_waitcnt vmcnt(1)\nv_cmp_ne_u32 vcc, s44, v23\ns_cbranch_vccz L_fdoneB')
    if kw.get('d3'): a(f's_sleep {kw["d3"]}')
    a(LB_ + '\ns_branch L_fpoll')
    def finish(r):
        s.stamp(14)
        s.unpack24(r)
        s.reduce32(r)
        if kw.get('exactfin', 0):
            s.round_bf16(f'v{r}')
            a(f'v_mul_f32 v{r}, v{r}, v12')
            s.round_bf16(f'v{r}')
            a(f'v_add_f32 v{r}, v{r}, v13')
        else:
            a(f'v_fma_f32 v{r}, v{r}, v12, v13')
        a('s_mov_b64 exec, s[56:57]')
        a(f'v_cvt_pk_bf16_f32 v{r}, v{r}, v{r}')
        a(f'buffer_store_short v{r}, v14, s[48:51], s11 offen')
    a('L_fdoneB:')
    finish(20)
    a('s_branch L_epoch')
    a('L_fdone:')
    finish(16)
    a('L_epoch:')
    s.stamp(15)
    a('s_cmp_lg_u32 s2, 0\ns_cbranch_scc1 L_end')
    a('s_mov_b64 exec, 1\nbuffer_store_dword v123, v8, s[40:43], 0 offen')
    a('s_branch L_end')

    a('L_qrem:')
    a('s_mov_b32 exec_lo, 0x000f000f\ns_mov_b32 exec_hi, 0x000f000f')
    a('buffer_store_dwordx4 v[108:111], v106, s[40:43], s58 offen sc1\nbuffer_store_dwordx4 v[112:115], v107, s[40:43], s59 offen sc1')
    a('s_mov_b64 exec, -1')
    a('L_qrem2:')
    a(f'ds_read_b32 v9, v8 offset:{F_Q}')
    for t in range(4): a(f'ds_read_b128 v[{64+4*t}:{67+4*t}], v{102+t}')
    s.budget()
    a('s_waitcnt lgkmcnt(0)\nv_readfirstlane_b32 s47, v9\ns_cmp_eq_u32 s47, 4\ns_cbranch_scc0 L_qgo\ns_sleep 2\ns_branch L_qrem2')
    if kw.get('wb') is not None:
        a('L_wb:')
        a(f's_cmp_lg_u32 s7, 1\ns_cbranch_scc1 L_end\ns_and_b32 s10, s4, {kw["wb"]}\ns_cbranch_scc1 L_end')
        if kw.get('wbd'): a(f's_sleep {kw["wbd"]}')
        a('buffer_wbl2 sc1\ns_branch L_end')
    a('L_orem:')
    a('buffer_store_dwordx4 v[40:43], v30, s[40:43], s14 offen sc1\nbuffer_store_dwordx4 v[44:47], v30, s[40:43], s14 offen offset:1024 sc1')
    a('s_branch L_ost')
    a('L_P:')
    if 'P' in kw.get('kill', ''): a('s_waitcnt lgkmcnt(0)\ns_branch L_end')
    a('s_setprio 3')
    a('s_getreg_b32 s45, hwreg(HW_REG_XCC_ID, 0, 4)')
    a('v_and_b32 v5, 3, v1')
    a(f's_lshl_b32 s10, s3, 15\ns_lshl_b32 s12, s4, 10\ns_add_u32 s12, s12, s10')
    a('s_waitcnt lgkmcnt(0)')
    if kw.get('warmq'):
        a(f'v_and_b32 v10, 7, v1\nv_lshlrev_b32 v10, 7, v10\nv_and_b32 v11, 8, v1\nv_lshl_add_u32 v10, v11, 15, v10\ns_add_u32 s11, s12, {WS_Q}')
        a(f's_mov_b64 exec, {0xff if kw["warmq"] == 1 else 0xffff}\nbuffer_load_dword v7, v10, s[40:43], s11 offen {kw.get("warmqfl", "")}\ns_mov_b64 exec, -1')
    a(f's_lshl_b32 s11, s5, 13\ns_add_u32 s10, s10, s11\ns_add_u32 s10, s10, {WS_Q}\ns_add_u32 s15, s10, 4096')
    a('v_lshlrev_b32 v10, 4, v1')
    a(f'v_lshrrev_b32 v11, 5, v1\nv_and_b32 v12, 31, v1\nv_lshlrev_b32 v13, 3, v12\nv_lshlrev_b32 v14, 4, v11\nv_xor_b32 v13, v13, v14\nv_lshl_add_u32 v13, v11, 8, v13\nv_add_u32 v22, {QL}, v13')
    for c in range(1, 8): a(f'v_xor_b32 v{22+c}, {c*32}, v22')
    a(f's_mov_b32 s14, {kw.get("nfast", 48)}')
    a('s_waitcnt lgkmcnt(0)')
    s.stamp(1)
    if 'W' in kw.get('kill', ''): a('s_branch L_end')
    if kw.get('qs'): a(f's_sleep {kw["qs"]}')
    if kw.get('qg'): s.wait_flag(C_G, kw['qg'], sleep=1)
    s.wait_flag(C_QP, 4, sleep=1, extra=[f'ds_read_b32 v15, v8 offset:{TAGW}'])
    a('s_waitcnt lgkmcnt(0)\nv_readfirstlane_b32 s44, v15')
    if q0: a(f's_sleep {q0}')
    s.stamp(2)
    a('L_qpoll:')
    for c in range(8): a(f'buffer_load_dwordx4 v[{32+4*c}:{35+4*c}], v10, s[40:43], s{10 if c < 4 else 15} offen offset:{(c&3)*1024} sc1')
    s.budget()
    a('s_waitcnt vmcnt(0)')
    a('v_xor_b32 v15, s44, v35')
    for c in range(1, 8): a(f'v_bitop3_b32 v15, v{35+4*c}, s44, v15 bitop3:0xbe')
    a('v_cmp_ne_u32 vcc, 0, v15\ns_cbranch_vccz L_qgot')
    a(f's_mov_b64 exec, vcc\ns_sub_u32 s14, s14, 1\ns_cbranch_scc0 L_qpoll')
    a(f'v_mov_b32 v15, 4\nds_write_b32 v8, v15 offset:{F_Q}\ns_branch L_qpoll')
    a('L_qgot:')
    a('s_mov_b64 exec, -1')
    a('v_xor_b32 v15, s45, v34')
    for c in range(8):
        a(f'ds_write_b64 v{22+c}, v[{32+4*c}:{33+4*c}] offset:{c*512}')
        if c < 7: a(f'v_bitop3_b32 v15, v{38+4*c}, s45, v15 bitop3:0xbe')
    a('v_and_b32 v15, 15, v15\nv_cmp_ne_u32 vcc, 0, v15\ns_cmp_eq_u64 vcc, 0\ns_cselect_b32 s47, 1, 2')
    if kw.get('force_remote'): a('s_mov_b32 s47, 2')
    a(f'v_mov_b32 v15, s47\nds_write_b32 v8, v15 offset:{F_Q}')
    s.stamp(3)
    a('v_add3_u32 v16, v34, v38, v42\nv_add3_u32 v17, v46, v50, v54\nv_add3_u32 v16, v16, v58, v62\nv_add_u32 v16, v16, v17')
    for m in ('quad_perm:[1,0,3,2] row_mask:0xf', 'quad_perm:[2,3,0,1] row_mask:0xf', 'row_half_mirror row_mask:0xf', 'row_mirror row_mask:0xf', 'row_bcast:15 row_mask:0xa', 'row_bcast:31 row_mask:0xc'):
        a(f'v_add_u32_dpp v16, v16, v16 {m} bank_mask:0xf')
    a('v_readlane_b32 s10, v16, 63\ns_cmp_lt_i32 s10, 0\ns_cselect_b32 s10, 0, 8192')
    if kw.get('kflip'): a('s_xor_b32 s10, s10, 8192')
    a(f'v_mov_b32 v15, s10\nds_write_b32 v8, v15 offset:{F_K}')
    a(f's_lshl_b32 s11, s12, 1\ns_add_u32 s11, s11, {WS_O}')
    a(f's_lshl2_add_u32 s12, s3, s5\ns_lshl4_add_u32 s12, s12, s6\ns_lshl_b32 s12, s12, 10\ns_add_u32 s12, s12, s10\ns_add_u32 s12, s12, {WS_S - 2048}')
    a('v_lshlrev_b32 v10, 7, v1\nv_add_u32 v11, s12, v10\nv_add_u32 v10, s11, v10\nv_cmp_gt_u32 vcc, 16, v1\nv_cndmask_b32 v10, v11, v10, vcc')
    a('s_mov_b64 exec, 0xffffff\nbuffer_load_dword v7, v10, s[40:43], 0 offen')
    a('s_branch L_end')

    a('L_M:')
    if kw.get('mprio') is not None: a(f's_setprio {kw["mprio"]}\ns_branch L_M2')
    if 'M' in kw.get('kill', ''): a('s_waitcnt lgkmcnt(0)\ns_branch L_end')
    a('s_setprio 3')
    a('L_M2:')
    a('v_bfe_u32 v4, v1, 2, 2\nv_and_b32 v5, 3, v1')
    a('v_lshl_add_u32 v10, v4, 2, v2')
    a('v_lshlrev_b32 v11, 3, v10')
    a('v_lshlrev_b32 v10, 4, v1')
    s.mlp_slot(11, 15)
    a('s_lshl3_add_u32 s15, s5, s3\ns_lshl_b32 s11, s11, 6')
    a('v_and_b32 v24, 1, v1\nv_lshlrev_b32 v25, 5, v2\nv_lshl_add_u32 v25, v24, 1, v25')
    a('s_lshl_b32 s12, s3, 7\ns_lshl2_add_u32 s12, s6, s12\ns_lshl_b32 s13, s5, 10\ns_add_u32 s13, s13, s12')
    s.srd_const(56, 3584); s.srd_const(60, 1024); s.srd_const(96, 4096)
    a('s_waitcnt lgkmcnt(0)')
    s.srd(56, 30); s.srd(60, 34); s.srd(96, 16)
    a('buffer_load_ushort v16, v25, s[60:63], s12 offen')
    a('buffer_load_ushort v17, v25, s[96:99], s13 offen')
    a('buffer_load_dwordx2 v[14:15], v11, s[56:59], s11 offen')
    a(f'v_mul_u32_u24 v11, {HS}, v5\nv_lshl_add_u32 v11, v2, 4, v11\nv_lshrrev_b32 v12, 1, v4\nv_lshl_add_u32 v11, v12, 6, v11\nv_and_b32 v12, 1, v4\nv_lshl_add_u32 v11, v12, 3, v11\nv_add_u32 v11, {HL}, v11')
    a(f'v_mul_u32_u24 v12, {HS}, v4\nv_lshl_add_u32 v12, v2, 4, v12\nv_add_u32 v12, {HL}, v12')
    a(f'v_lshl_add_u32 v27, v2, 2, v4\nv_bfe_u32 v28, v27, 1, 2\nv_lshlrev_b32 v28, 5, v28\nv_lshl_add_u32 v28, v27, 7, v28\nv_lshl_add_u32 v28, v5, 3, v28\nv_add_u32 v28, {W2}, v28')
    a('v_xor_b32 v29, 32, v28\nv_xor_b32 v30, 64, v28\nv_xor_b32 v31, 96, v28')
    a(f'v_lshlrev_b32 v13, 3, v1\nv_add_u32 v13, {GX}, v13')
    a('s_waitcnt vmcnt(1) lgkmcnt(0)')
    a('v_lshlrev_b32 v16, 16, v16\nv_lshlrev_b32 v17, 16, v17\nds_write_b64 v13, v[16:17]')
    if kw.get('hs'): a(f's_sleep {kw["hs"]}')
    s.wait_flag(C_HP, 4, sleep=1, extra=[f'ds_read_b32 v23, v8 offset:{TAGW}'])
    a('s_waitcnt lgkmcnt(0)\nv_readfirstlane_b32 s44, v23')
    s.pack24_consts(); s.unpack24_consts()
    if kw.get('hq'): s.wait_flag(F_Q, 1, sleep=1)
    if kw.get('h0', 8): a(f's_sleep {kw.get("h0", 8)}')
    a(f's_lshl2_add_u32 s10, s3, s5\ns_lshl_b32 s10, s10, 13\ns_add_u32 s10, s10, {WS_H}\ns_add_u32 s11, s10, 4096')
    s.stamp(2)
    a('L_hpoll:')
    for c in range(8): a(f'buffer_load_dwordx4 v[{32+4*c}:{35+4*c}], v10, s[40:43], s{10 + (c>>2)} offen offset:{(c&3)*1024} sc1')
    s.budget()
    a('s_waitcnt vmcnt(0)')
    a('v_xor_b32 v13, s44, v35')
    for c in range(1, 8): a(f'v_bitop3_b32 v13, v{35+4*c}, s44, v13 bitop3:0xbe')
    a('v_cmp_ne_u32 vcc, 0, v13\ns_cbranch_vccnz L_hpoll')
    s.stamp(3)
    for c in range(8): s.unpack24(32 + 4 * c)
    for st in (16, 8, 4):
        for r in range(32, 32 + st, 2): a(f'v_pk_add_f32 v[{r}:{r+1}], v[{r}:{r+1}], v[{r+st}:{r+st+1}]')
    a('v_cvt_pk_bf16_f32 v36, v32, v33\nv_cvt_pk_bf16_f32 v37, v34, v35')
    for k in range(2):
        a(f'v_lshlrev_b32 v{32+2*k}, 16, v{36+k}\nv_and_b32 v{33+2*k}, 0xffff0000, v{36+k}\nv_lshlrev_b32 v{40+2*k}, 16, v{14+k}\nv_and_b32 v{41+2*k}, 0xffff0000, v{14+k}')
    for k in range(4): a(f'v_add_f32 v{32+k}, v{32+k}, v{40+k}')
    a('v_cvt_pk_bf16_f32 v36, v32, v33\nv_cvt_pk_bf16_f32 v37, v34, v35')
    for k in range(2): a(f'v_lshlrev_b32 v{32+2*k}, 16, v{36+k}\nv_and_b32 v{33+2*k}, 0xffff0000, v{36+k}')
    K1 = -2 * math.sqrt(2 / math.pi) * math.log2(math.e)
    a(f'v_mov_b32 v44, {hex(f2u(K1))}')
    for k in range(4): a(f'v_mul_f32 v{36+k}, v{32+k}, v{32+k}')
    for k in range(4): a(f'v_fmamk_f32 v{36+k}, v{36+k}, {hex(f2u(K1*0.044715))}, v44')
    for k in range(4): a(f'v_mul_f32 v{36+k}, v{36+k}, v{32+k}')
    for k in range(4): a(f'v_exp_f32 v{36+k}, v{36+k}')
    for k in range(4): a(f'v_add_f32 v{36+k}, 1.0, v{36+k}')
    for k in range(4): a(f'v_rcp_f32 v{36+k}, v{36+k}')
    for k in range(4): a(f'v_mul_f32 v{32+k}, v{32+k}, v{36+k}')
    a('v_cvt_pk_bf16_f32 v40, v32, v33\nv_cvt_pk_bf16_f32 v41, v34, v35')
    a('ds_write_b64 v11, v[40:41]\nds_read_b128 v[48:51], v12\nds_read_b128 v[52:55], v12 offset:64')
    a(f's_add_u32 s10, s6, {r2}\ns_and_b32 s10, s10, 7\ns_lshl_b32 s10, s10, 5\ns_add_u32 s10, s10, s15\ns_lshl_b32 s10, s10, 10\ns_add_u32 s10, s10, {WS_M}')
    a('v_lshlrev_b32 v10, 4, v1\nv_mov_b32 v23, s44')
    s.wait_flag(C_G, TH['2'][1], sleep=1)
    for ks in range(2):
        for T in range(4):
            for u in range(2):
                r = 64 + 16 * ks + 4 * T + 2 * u
                a(f'ds_read_b64_tr_b16 v[{r}:{r+1}], v{28+T} offset:{ks*4096+u*2048}')
    a('s_waitcnt lgkmcnt(0)')
    for ks in range(2):
        for T in range(4): s.mfma(32 + 4 * T, 48 + 4 * ks, 64 + 16 * ks + 4 * T, ks == 0)
    s.pack24(20, 32, 36, 40, 44)
    a('buffer_store_dwordx4 v[20:23], v10, s[40:43], s10 offen sc1')
    s.stamp(4)
    a('L_end:')
    if kw.get('probe'):
        pw, pst, pm, pb = kw['probe']
        a(f's_waitcnt lgkmcnt(0)\ns_cmp_lg_u32 s7, {pw}\ns_cbranch_scc1 L_exit')
        if pw >= 4: a('s_barrier\ns_barrier' if kw.get('obar') and pw != 6 else 's_barrier')
        if kw.get('px') is not None: a(f's_cmp_lg_u32 s45, {kw["px"]}\ns_cbranch_scc1 L_exit')
        if kw.get('pm') is not None: a(f's_mul_i32 s10, s45, {kw["pm"]}\ns_add_u32 s94, s64, s10')
        if kw.get('pg') is not None: a(f's_cmp_lg_u32 s3, {kw["pg"]}\ns_cbranch_scc1 L_exit')
        a(f's_sub_u32 s10, s{64+2*pst}, s64\ns_mul_i32 s10, s10, {pm}\ns_add_u32 s10, s10, {pb}\ns_min_u32 s10, s10, 20000')
        a('L_padloop:\ns_memrealtime s[12:13]\ns_waitcnt lgkmcnt(0)\ns_sub_u32 s11, s12, s64\ns_cmp_lt_u32 s11, s10\ns_cbranch_scc1 L_padloop')
    s.dump_stamps()
    a('L_exit:')
    a('s_endpgm')
    lines, added = hazard.fix(s.o, verbose=kw.get('verbose', False))
    return wrap('\n'.join(lines) + '\n', 256, NW * 64, kw.get('lds', LDS_TOTAL), kw.get('vgpr', 192))

if __name__ == '__main__':
    import ast
    out = sys.argv[1]
    kw = {}
    for x in sys.argv[2:]:
        k, v = x.split('=')
        try: kw[k] = ast.literal_eval(v)
        except Exception: kw[k] = v
    open(out, 'w').write(gen(**kw))
```

```python
NAME = 'recurrent_scan__sliding_block_cached__mixer_channel_mlp__decode'

HEADER = """; Kernarg layout for this problem (104 bytes, ptrs only, base s[0:1]):
"""

NOTES = """;
"""

def wrap(body, grid, block, lds, vgpr, sgpr=102, accum=None):
    if accum is None:
        accum = (vgpr + 3) // 4 * 4
    s = HEADER + NOTES
    s += f"; @launch grid=({grid},1,1) block=({block},1,1) lds={lds}\n"
    s += '.amdgcn_target "amdgcn-amd-amdhsa--gfx950"\n.text\n'
    s += f".globl {NAME}_kernel\n.p2align 8\n.type {NAME}_kernel,@function\n{NAME}_kernel:\n"
    s += body
    s += f"""
.section .rodata,"a"
.p2align 6
.amdhsa_kernel {NAME}_kernel
  .amdhsa_next_free_vgpr {vgpr}
  .amdhsa_next_free_sgpr {sgpr}
  .amdhsa_accum_offset {accum}
  .amdhsa_group_segment_fixed_size 0
  .amdhsa_kernarg_size 104
  .amdhsa_user_sgpr_count 2
  .amdhsa_user_sgpr_kernarg_segment_ptr 1
  .amdhsa_system_sgpr_workgroup_id_x 1
  .amdhsa_float_denorm_mode_32 3
  .amdhsa_float_denorm_mode_16_64 3
.end_amdhsa_kernel
"""
    return s
```

```python
import sys, math, struct
sys.path.insert(0, 'dev')
from common import *
import hazard

def f2u(x):
    return struct.unpack('<I', struct.pack('<f', x))[0]

NW = 7
FL = 0
WA, W1, KB, W2, VB, WO = [2048 + x for x in (0, 16384, 24576, 57344, 65536, 98304)]
XN = 2048 + 114688; XS = 1088
YL = XN + 4 * XS
QL = YL + 4 * XS
assert QL % 256 == 0
PL = QL + 4096
RED = PL + 4096
HL = RED + 4096; HS = 144
MX = 128
FP = 192
GX = HL + 640
LDS_TOTAL = GX + 512
C_WA, C_G, C_XN, F_Q, C_MX, C_P, F_WT, C_QP, C_Y, C_HP, T_A, T_B, F_K, TAGW = [4 * i for i in range(14)]

WS_Q = 0x1000
WS_H = WS_Q + 0x40000
WS_LSE = WS_H + 0x40000
WS_O = WS_LSE + 0x4000
WS_M = WS_O + 0x80000
WS_S = 0x150000
assert WS_S >= WS_M + 0x40000
WS_T = WS_S + 0x80000
WS_N = WS_T + 0x10000
WS_END = WS_T + 0x20000
assert WS_END <= 0x200000
STAMP = 0x8000000

class G:
    def __init__(s, **kw):
        s.o = []
        s.nl = 0
        s.kw = kw
        s.stamps = kw.get('stamps', False)
    def a(s, t):
        for l in t.split('\n'):
            l = l.strip()
            if l: s.o.append(l)
    def lab(s, p='L'):
        s.nl += 1
        return f'{p}_{s.nl}'
    def stamp(s, i):
        pr = s.kw.get('probe')
        only = s.kw.get('only')
        if (s.stamps and (only is None or i in only or i == 0)) or (pr and i in (0, pr[1])):
            s.a(f's_memrealtime s[{64+2*i}:{65+2*i}]')
    def budget(s):
        s.a('s_sub_u32 s46, s46, 1\ns_cbranch_scc1 L_end')
    def wait_flag(s, off, n, extra=None, sleep=0, vt='v9'):
        L = s.lab('W')
        if sleep:
            L2 = s.lab('W')
            s.a(f's_branch {L2}\n{L}:\ns_sleep {sleep}\n{L2}:')
        else:
            s.a(f'{L}:')
        s.a(f'ds_read_b32 {vt}, v8 offset:{off}')
        ne = 0
        if extra:
            for e in extra: s.a(e)
            ne = len(extra)
        s.budget()
        s.a(f's_waitcnt lgkmcnt({0 if (s.stamps and not s.kw.get("lean")) or s.kw.get("probe") or (s.kw.get("safeA") and ne > 6) else min(ne, 15)})')
        s.a(f'v_cmp_gt_u32 vcc, {n}, {vt}')
        s.a(f's_cbranch_vccnz {L}')
    def signal(s, off):
        s.a(f's_mov_b64 exec, 1\nds_add_u32 v8, v6 offset:{off}\ns_mov_b64 exec, -1')
    def srd(s, d, p):
        s.a(f's_mov_b32 s{d}, s{p}\ns_mov_b32 s{d+1}, s{p+1}')
    def srd_const(s, d, n):
        s.a(f's_mov_b32 s{d+2}, {n}\ns_mov_b32 s{d+3}, 0x20000')
    def wave_sum(s, v, sd):
        for m in ('quad_perm:[1,0,3,2]', 'quad_perm:[2,3,0,1]', 'row_half_mirror', 'row_mirror'):
            s.a(f'v_add_f32_dpp {v}, {v}, {v} {m} row_mask:0xf bank_mask:0xf')
        s.a(f'v_add_f32_dpp {v}, {v}, {v} row_bcast:15 row_mask:0xa bank_mask:0xf')
        s.a(f'v_add_f32_dpp {v}, {v}, {v} row_bcast:31 row_mask:0xc bank_mask:0xf')
        s.a(f'v_readlane_b32 {sd}, {v}, 63')
    def rows_allreduce(s, op, v, t):
        s.a(f'v_mov_b32 {t}, {v}\nv_permlane16_swap_b32 {t}, {v}\n{op} {v}, {t}, {v}')
        s.a(f'v_mov_b32 {t}, {v}\nv_permlane32_swap_b32 {t}, {v}\n{op} {v}, {t}, {v}')
    def layernorm(s, src, f, t):
        P = lambda r: f'v[{r}:{r+1}]'
        for k in range(4):
            s.a(f'v_lshlrev_b32 v{f+2*k}, 16, v{src+k}\nv_and_b32 v{f+2*k+1}, s55, v{src+k}')
        s.a(f'v_pk_add_f32 {P(t)}, {P(f)}, {P(f+2)}\nv_pk_add_f32 {P(t+2)}, {P(f+4)}, {P(f+6)}\nv_pk_add_f32 {P(t)}, {P(t)}, {P(t+2)}\nv_add_f32 v{t}, v{t}, v{t+1}')
        s.wave_sum(f'v{t}', 's10')
        s.a(f'v_mov_b32 v{src+3}, {hex(f2u(1/512))}')
        s.a(f'v_mul_f32 v{src}, s10, v{src+3}')
        for k in range(4):
            s.a(f'v_pk_add_f32 {P(t+2*k)}, {P(f+2*k)}, {P(src)} op_sel_hi:[1,0] neg_lo:[0,1] neg_hi:[0,1]')
        s.a(f'v_pk_mul_f32 {P(t)}, {P(t)}, {P(t)}')
        for k in range(1, 4):
            s.a(f'v_pk_fma_f32 {P(t)}, {P(t+2*k)}, {P(t+2*k)}, {P(t)}')
        s.a(f'v_add_f32 v{t}, v{t}, v{t+1}')
        s.a(f'v_cvt_pk_bf16_f32 v{src}, v{src}, v{src}\nv_lshlrev_b32 v{src}, 16, v{src}')
        ms = ['quad_perm:[1,0,3,2] row_mask:0xf', 'quad_perm:[2,3,0,1] row_mask:0xf', 'row_half_mirror row_mask:0xf', 'row_mirror row_mask:0xf', 'row_bcast:15 row_mask:0xa', 'row_bcast:31 row_mask:0xc']
        fill = [f'v_pk_add_f32 {P(f+2*k)}, {P(f+2*k)}, {P(src)} op_sel_hi:[1,0] neg_lo:[0,1] neg_hi:[0,1]' for k in range(4)]
        fill += [f'v_cvt_pk_bf16_f32 v{t+2+k}, v{f+2*k}, v{f+2*k+1}' for k in range(4)]
        for k in range(4): fill += [f'v_lshlrev_b32 v{f+2*k}, 16, v{t+2+k}', f'v_and_b32 v{f+2*k+1}, s55, v{t+2+k}']
        for m in ms:
            s.a(f'v_add_f32_dpp v{t}, v{t}, v{t} {m} bank_mask:0xf')
            s.a(fill.pop(0)); s.a(fill.pop(0))
        s.a(f'v_readlane_b32 s10, v{t}, 63')
        s.a(fill.pop(0)); s.a(fill.pop(0))
        s.a(f'v_mul_f32 v{src}, s10, v{src+3}')
        s.a(f'v_cvt_pk_bf16_f32 v{src}, v{src}, v{src}\nv_lshlrev_b32 v{src}, 16, v{src}')
        s.a(f'v_add_f32 v{src}, {hex(f2u(1e-5))}, v{src}')
        s.a(f'v_cvt_pk_bf16_f32 v{src}, v{src}, v{src}\nv_lshlrev_b32 v{src}, 16, v{src}')
        s.a(f'v_sqrt_f32 v{src}, v{src}')
        s.a(fill.pop(0))
        s.a(f'v_cvt_pk_bf16_f32 v{src}, v{src}, v{src}\nv_lshlrev_b32 v{src}, 16, v{src}')
        s.a(f'v_rcp_f32 v{src}, v{src}')
        s.a(fill.pop(0))
        assert not fill
        for k in range(4):
            s.a(f'v_pk_mul_f32 {P(f+2*k)}, {P(f+2*k)}, {P(src)} op_sel_hi:[1,0]')
        for k in range(4):
            s.a(f'v_cvt_pk_bf16_f32 v{src+k}, v{f+2*k}, v{f+2*k+1}')
    def round_bf16(s, v):
        s.a(f'v_cvt_pk_bf16_f32 {v}, {v}, {v}\nv_lshlrev_b32 {v}, 16, {v}')
    def tag_finish(s):
        s.a('s_mul_i32 s44, s44, 0x2c9277b5\ns_add_u32 s44, s44, 0xac564b05')
    def pack24(s, d, a, b, c, e):
        s.a(f'v_perm_b32 v{d}, v{a}, v{e}, s50\nv_perm_b32 v{d+1}, v{b}, v{e}, s51\nv_perm_b32 v{d+2}, v{c}, v{e}, s52')
    def pack24_consts(s):
        s.a('s_mov_b32 s50, 0x07060503\ns_mov_b32 s51, 0x07060502\ns_mov_b32 s52, 0x07060501')
    def unpack24(s, r):
        s.a(f'v_perm_b32 v{r+3}, v{r}, v{r+1}, s53\nv_perm_b32 v{r+3}, v{r+3}, v{r+2}, s54')
    def unpack24_consts(s):
        s.a('s_mov_b32 s53, 0x04000c0c\ns_mov_b32 s54, 0x0706000c')
    def reduce32(s, r):
        s.a(f'v_permlane32_swap_b32 v{r}, v{r+2}\nv_permlane32_swap_b32 v{r+1}, v{r+3}')
        s.a(f'v_add_f32 v{r}, v{r}, v{r+2}\nv_add_f32 v{r+1}, v{r+1}, v{r+3}')
        s.a(f'v_permlane16_swap_b32 v{r}, v{r+1}\nv_add_f32 v{r}, v{r}, v{r+1}')
        for m in ('row_ror:8', 'row_ror:4', 'row_ror:2'):
            s.a(f'v_add_f32_dpp v{r}, v{r}, v{r} {m} row_mask:0xf bank_mask:0xf')
    def mfma(s, d, A, B, first):
        s.a(f'v_mfma_f32_16x16x32_bf16 v[{d}:{d+3}], v[{A}:{A+3}], v[{B}:{B+3}], {"0" if first else f"v[{d}:{d+3}]"}')
    def mlp_slot(s, d, t):
        ha = s.kw.get('ha', 4)
        s.a(f's_mul_i32 s{d}, s5, 6\ns_add_u32 s{d}, s{d}, s3\ns_cmp_gt_u32 s3, {ha}\ns_cselect_b32 s{t}, 2, 0\ns_sub_u32 s{d}, s{d}, s{t}\ns_lshl_b32 s{d}, s{d}, 1')
        s.a(f's_lshl2_add_u32 s{t}, s3, s5\ns_add_u32 s{t}, s{t}, {48-4*ha}')
        s.a(f's_bitcmp1_b32 {3 << ha}, s3\ns_cselect_b32 s{d}, s{t}, s{d}')
    def hint(s, name, off, nq, tries, sub):
        a = s.a
        a(f's_lshl_b32 s48, s3, 7\ns_add_u32 s48, s48, {WS_N + off}\ns_add_u32 s49, s48, s4')
        a('s_and_b32 s50, s44, 0xff\ns_mul_i32 s50, s50, 0x01010101\ns_mov_b32 s51, s50\nv_mov_b32 v21, s50')
        if sub: a('s_andn2_b32 s48, s49, 7')
        a(f's_mov_b32 s47, {tries}')
    def hint_go(s, name, nq):
        a = s.a
        a('s_mov_b64 exec, 1\nbuffer_store_byte v21, v8, s[40:43], s49 offen\ns_mov_b64 exec, -1')
        a(f'L_{name}:')
        a(f's_load_dwordx{2*nq} s[52:{51+2*nq}], s[40:41], s48 glc')
        a(f's_sub_u32 s47, s47, 1\ns_cbranch_scc1 L_{name}d\ns_waitcnt lgkmcnt(0)')
        for k in range(nq): a(f's_xor_b64 s[{52+2*k}:{53+2*k}], s[{52+2*k}:{53+2*k}], s[50:51]')
        for k in range(1, nq): a(f's_or_b64 s[52:53], s[52:53], s[{52+2*k}:{53+2*k}]')
        a(f's_cbranch_scc1 L_{name}\nL_{name}d:\ns_waitcnt lgkmcnt(0)')
    def dump_stamps(s, nst=16):
        if not s.stamps: return
        s.a('s_waitcnt lgkmcnt(0)\ns_mov_b64 exec, -1\nv_mov_b32 v10, 0')
        for i in range(nst):
            s.a(f'v_writelane_b32 v10, s{64+2*i}, {i}')
        s.a(f's_mul_i32 s10, s2, {NW*64}\ns_lshl_b32 s11, s7, 6\ns_add_u32 s10, s10, s11\ns_add_u32 s10, s10, {STAMP}')
        s.a('v_lshlrev_b32 v11, 2, v1\ns_mov_b64 exec, 0xffff\nbuffer_store_dword v10, v11, s[40:43], s10 offen ' + s.kw.get('stfl', ''))

def gen(**kw):
    s = G(**kw)
    a = s.a
    depth = kw.get('depth', 20)
    NT = kw.get('nt', 'nt')
    npq = kw.get('npq', 2); gapq = kw.get('gapq', 12); q0 = kw.get('q0', 4)
    npl = kw.get('npl', 4); gapl = kw.get('gapl', 6)
    CSC = math.log2(math.e) / math.sqrt(128)
    ONE2 = 0x3f803f80
    order = kw.get('order', '11kkkkkkkk22vvvvvvvvoooo')
    TH = {c: [i + 1 for i, x in enumerate(order) if x == c] for c in '1k2vo'}
    assert [len(TH[c]) for c in '1k2vo'] == [2, 8, 2, 8, 4]
    marks = {TH['1'][1], TH['2'][1], TH['o'][3], len(order) - (kw.get('oe') or 0), kw.get('qg') or 2} | set(TH['k'][1::2]) | set(TH['v'][1::2])
    def common():
        if s.stamps:
            for i in range(1, 16): a(f's_mov_b32 s{64+2*i}, 0')
        a('v_and_b32 v1, 63, v0\ns_lshr_b32 s5, s4, 3\ns_and_b32 s6, s4, 7')
        a(f's_mov_b32 s42, {STAMP + 0x100000 if s.stamps else WS_END}\ns_mov_b32 s43, 0x20000')
        a(f's_mov_b32 s46, {kw.get("budget", 5000000)}')
        a('v_mov_b32 v6, 1')
        a('v_lshrrev_b32 v2, 4, v1\nv_and_b32 v3, 15, v1')
    s.stamp(0)
    a('s_load_dwordx16 s[16:31], s[0:1], 0\ns_load_dwordx8 s[32:39], s[0:1], 64\ns_load_dwordx2 s[40:41], s[0:1], 96')
    a('s_lshr_b32 s4, s2, 3\ns_cmp_ge_u32 s4, 32\ns_cbranch_scc1 L_exit')
    a('v_lshrrev_b32 v2, 6, v0\nv_bfe_u32 v4, v0, 3, 3')
    a('v_lshlrev_b32 v9, 2, v0\nv_mov_b32 v8, 0\nds_write_b32 v9, v8')
    if kw.get('prefetch', True):
        a('s_getpc_b64 s[8:9]\nL_pc:')
        if kw.get('pf2'):
            a('s_lshl_b32 s10, s4, 7\nv_lshl_add_u32 v3, v0, 12, s10\nv_min_u32 v3, L_exit-L_pc, v3\nglobal_load_dword v7, v3, s[8:9]')
        else:
            a('v_lshlrev_b32 v3, 7, v0\nv_min_u32 v3, L_exit-L_pc, v3\nglobal_load_dword v7, v3, s[8:9]')
    a('v_readfirstlane_b32 s7, v2')
    a('v_and_b32 v5, 6, v4\nv_xor_b32 v5, v5, v0\nv_and_b32 v5, 7, v5\nv_lshlrev_b32 v5, 4, v5')
    a('s_and_b32 s3, s2, 7\ns_cmp_ge_u32 s7, 4\ns_cbranch_scc1 L_roles')
    a('s_mov_b32 s51, 0x20000\nv_lshlrev_b32 v11, 4, v0')
    a('s_lshr_b32 s10, s4, 3\ns_lshl2_add_u32 s10, s10, s7\ns_lshl_b32 s10, s10, 18\ns_and_b32 s11, s4, 7\ns_lshl3_add_u32 s11, s3, s11\ns_xor_b32 s11, s11, ' + str(kw.get('rq', 0)) + '\ns_lshl_b32 s11, s11, 7\ns_add_u32 s10, s10, s11')
    a(f's_bfm_b32 s50, 1, 22\ns_bfm_b32 s12, 6, 10\nv_lshl_add_u32 v10, v4, 13, v5\ns_lshl_b32 m0, s7, 12\ns_addk_i32 m0, {WA}')
    a('s_waitcnt lgkmcnt(0)')
    a('s_mov_b64 s[48:49], s[22:23]')
    a('global_load_dwordx4 v[12:15], v11, s[16:17]')
    for r in range(4):
        a(f'buffer_load_dwordx4 v10, s[48:51], s10 offen offset:{r*1024} {NT} lds')
        if r < 3: a('s_add_u32 s10, s10, s12')
    a('s_load_dword s44, s[40:41], 0')
    a('s_barrier\ns_branch L_C')
    a('L_roles:')
    a('s_barrier')
    common()
    a('s_cmp_eq_u32 s7, 6\ns_cbranch_scc1 L_L')
    ns = kw.get('nsamp', 1)
    a(f's_lshr_b32 s10, s2, 6\ns_lshl1_add_u32 s10, s10, s7\ns_lshl_b32 s10, s10, 6\ns_and_b32 s11, s2, 63\ns_add_u32 s10, s10, s11\ns_lshl_b32 s10, s10, 7\ns_add_u32 s10, s10, {WS_T - 4*8192}')
    a('s_waitcnt lgkmcnt(0)')
    if kw.get('pd'): a(f's_sleep {kw["pd"]}')
    a('s_memtime s[12:13]\ns_load_dword s11, s[40:41], s10')
    if ns == 2: a('s_add_u32 s10, s10, 0x10000\ns_waitcnt lgkmcnt(0)\ns_load_dword s11, s[40:41], s10')
    a('s_waitcnt lgkmcnt(0)\ns_memtime s[14:15]\ns_lshl_b32 s10, s7, 2\nv_mov_b32 v10, s10\ns_waitcnt lgkmcnt(0)')
    a(f's_sub_u32 s12, s14, s12\nv_mov_b32 v11, s12\nds_write_b32 v10, v11 offset:{T_A - 16}')
    a('s_cmp_eq_u32 s7, 4\ns_cbranch_scc1 L_P\ns_branch L_M\nL_L:')
    rq, r2 = kw.get('rq', 0), kw.get('r2', 0)
    s.mlp_slot(10, 11)
    a('s_cselect_b32 s11, 64, 0\ns_cselect_b32 s8, 30, 15')
    a('v_and_b32 v14, s11, v5\nv_lshl_add_u32 v14, v14, 24, v5\nv_mul_u32_u24 v32, 3584, v4\nv_add_u32 v32, v32, v14')
    for r in range(1, 4): a(f'v_add_u32 v{32+r}, {r*(8*3584-1024)}, v32')
    a('v_xor_b32 v14, v3, v2\nv_lshlrev_b32 v14, 4, v14\nv_lshl_add_u32 v18, v2, 8, v14')
    for r in range(1, 4): a(f'v_xor_b32 v{18+r}, {r*64}, v18\nv_add_u32 v{18+r}, {r*7168}, v{18+r}')
    a(f's_mov_b32 s50, {512*3584}\ns_mov_b32 s51, 0x20000\ns_lshl_b32 s8, 1, s8')
    a(f's_mul_i32 s12, s6, {64*3584}\ns_lshl_b32 s11, s10, 6\ns_add_u32 s12, s12, s11')
    a(f's_lshl_b32 s13, s5, 23\ns_lshl_b32 s11, s3, 20\ns_add_u32 s13, s13, s11\ns_lshl_b32 s11, s6, 10\ns_add_u32 s13, s13, s11\ns_add_u32 s13, s13, {3072*256}')
    a('s_bfm_b32 s54, 1, 25\ns_mov_b32 s55, s51\ns_mov_b32 s14, s13')
    a('s_waitcnt lgkmcnt(0)')
    s.stamp(1)
    dg = depth // 4
    segs = {'1': (32, 48, 28, 12, 32 * 3584, W1), 'k': (18, 52, 18, 13, 32768, KB), 'v': (22, 56, 20, 14, 32768, VB),
            '2': (26, 60, 32, 15, 's8', W2), 'o': (26, 96, 24, 9, 32768, WO)}
    cnt = {c: 0 for c in segs}
    late = False
    prof = kw.get('prof')
    prof = [int(x, 16) for x in prof] if prof else [dg] * len(order)
    assert len(prof) == len(order)
    landed = 0
    first_wait = min(gi for gi in range(len(order)) if gi + 1 > prof[gi])
    for gi, c in enumerate(order):
        vr, sd, ptr, so, step, lds = segs[c]
        if gi == first_wait:
            a('v_lshlrev_b32 v14, 1, v2\nv_xor_b32 v14, v3, v14\nv_lshlrev_b32 v14, 4, v14\nv_lshl_add_u32 v22, v2, 8, v14')
            a(f'v_xor_b32 v23, 128, v22\nv_add_u32 v24, {2*7168}, v22\nv_add_u32 v25, {3*7168}, v23\nv_add_u32 v23, 7168, v23')
            a('v_lshl_add_u32 v26, v4, 10, v5')
            for r in range(1, 4): a(f'v_add_u32 v{26+r}, {r*7168}, v26')
            a(f's_mov_b32 s58, s54\ns_mov_b32 s59, s51\ns_mov_b32 s62, {1792*1024}\ns_mov_b32 s63, s51\ns_bfm_b32 s98, 1, 22\ns_mov_b32 s99, s51')
            s.srd(56, 20); s.srd(60, 32); s.srd(96, 24)
            a(f's_add_u32 s11, s6, {r2}\ns_and_b32 s11, s11, 7\ns_lshl_b32 s11, s11, 7\ns_lshl_b32 s15, s10, 15\ns_add_u32 s15, s15, s11')
            a('s_lshl2_add_u32 s9, s3, s5\ns_lshl_b32 s9, s9, 17\ns_lshl_b32 s11, s6, 7\ns_add_u32 s9, s9, s11')
            s.stamp(2)
            late = True
        assert late or c in '1k'
        if cnt[c] == 0 and c in '1k': s.srd(sd, ptr)
        a(f's_mov_b32 m0, {lds + cnt[c] * 4096}')
        if cnt[c]: a(f's_add_u32 s{so}, s{so}, {step}')
        while landed < gi + 1 - prof[gi]:
            landed += 1
            if landed in marks or landed == gi + 1 - prof[gi]:
                a(f's_waitcnt vmcnt({(gi-landed)*4})')
            if landed in marks:
                a(f'v_mov_b32 v30, {landed}\nds_write_b32 v8, v30 offset:{C_G}')
                if landed == TH['v'][7]: s.stamp(6)
        for r in range(4):
            fine = kw.get('fine')
            if fine and gi * 4 + r >= fine and (r or fine - 1 < (gi - landed) * 4): a(f's_waitcnt vmcnt({fine-1})')
            fl = kw.get('nt' + c, NT)
            a(f'buffer_load_dwordx4 v{vr+r}, s[{sd}:{sd+3}], s{so} offen offset:{r*1024} {fl} lds')
        cnt[c] += 1
    for n in range(landed + 1, len(order) + 1):
        if n in marks:
            if kw.get('obar') and n == len(order) and n != TH['v'][7]:
                a('s_waitcnt vmcnt(0)')
            else:
                a(f'v_mov_b32 v30, {n}\ns_waitcnt vmcnt({(len(order)-n)*4})\nds_write_b32 v8, v30 offset:{C_G}')
            if n == TH['v'][7]: s.stamp(6)
    s.stamp(7)
    if kw.get('obar'): a('s_barrier')
    a('s_branch L_end')

    if kw.get('shift'): a('s_nop 0')
    a('L_C:')
    a('s_setprio 2')
    common()
    s.stamp(1)
    if 'C' in kw.get('kill', ''): a('s_waitcnt vmcnt(0)\ns_branch L_end')
    a('v_bfe_u32 v4, v1, 2, 2\nv_and_b32 v5, 3, v1')
    a(f's_mul_i32 s11, s7, {XS}\ns_add_u32 s11, s11, {XN}')
    a('v_lshrrev_b32 v10, 2, v1\nv_lshlrev_b32 v10, 6, v10\nv_and_b32 v11, 1, v1\nv_lshl_add_u32 v10, v11, 5, v10\nv_and_b32 v11, 2, v1\nv_lshl_add_u32 v10, v11, 2, v10\nv_add_u32 v11, s11, v10')
    a('s_mov_b32 s55, 0xffff0000')
    a('v_lshl_add_u32 v27, v2, 2, v4\nv_bfe_u32 v96, v27, 1, 2\nv_lshlrev_b32 v96, 5, v96\nv_lshl_add_u32 v96, v27, 7, v96\nv_lshl_add_u32 v96, v5, 3, v96')
    a('s_lshl_b32 s12, s7, 5\nv_xor_b32 v10, s12, v96')
    a('s_getreg_b32 s45, hwreg(HW_REG_XCC_ID, 0, 4)')
    a(f'v_mul_u32_u24 v24, {XS}, v5\nv_lshl_add_u32 v24, v2, 4, v24')
    a(f's_lshl_b32 s10, s5, 8\ns_add_u32 s10, s10, {XN}\nv_add_u32 v25, s10, v24')
    a(f's_lshl_b32 s10, s6, 7\ns_add_u32 s10, s10, {YL}\nv_add_u32 v24, s10, v24')
    a(f's_lshl_b32 s14, s3, 15\ns_lshl1_add_u32 s14, s12, s14\ns_lshl_b32 s13, s4, 8\ns_xor_b32 s58, s13, {rq*256}\ns_add_u32 s58, s14, s58\ns_add_u32 s58, s58, {WS_Q}')
    a(f's_lshl2_add_u32 s59, s13, s14\ns_add_u32 s59, s59, {WS_H}')
    a('v_lshlrev_b32 v106, 13, v3\nv_lshl_add_u32 v106, v2, 4, v106\nv_lshlrev_b32 v107, 4, v1\nv_mov_b32 v30, 0x3ff\nv_mov_b32 v31, 0xfffffc01')
    s.pack24_consts()
    a('s_mov_b32 s13, 1')
    a('s_waitcnt vmcnt(0)' if kw.get('safeB') else 's_waitcnt vmcnt(4)')
    if not kw.get('ackst'): s.stamp(2)
    a('L_ln:')
    s.layernorm(12, 16, 32)
    a(f'ds_write2_b64 v11, v[12:13], v[14:15] offset1:2\nv_add_u32 v11, {YL-XN}, v11')
    a('s_sub_u32 s13, s13, 1\ns_cbranch_scc0 L_ln')
    s.stamp(3)
    a('s_waitcnt vmcnt(0) lgkmcnt(0)')
    if kw.get('st_tile'): s.stamp(5)
    s.signal(C_WA)
    s.tag_finish()
    a(f'v_mov_b32 v111, s44\nv_mov_b32 v115, s44\nds_write_b32 v8, v111 offset:{TAGW}')
    s.wait_flag(C_WA, 4, extra=[f'ds_read_b64 v[28:29], v8 offset:{T_A}'] + [x for t in range(4) for x in (f'ds_read_b128 v[{64+4*t}:{67+4*t}], v25 offset:{t*64}',
                f'ds_read_b64_tr_b16 v[{40+4*t}:{41+4*t}], v10 offset:{WA+t*4096}', f'ds_read_b64_tr_b16 v[{42+4*t}:{43+4*t}], v10 offset:{WA+t*4096+2048}')])
    for t in range(4):
        a(f's_waitcnt lgkmcnt({9-3*t})')
        s.mfma(16, 40 + 4 * t, 64 + 4 * t, t == 0)
        if t == 0: a('v_sub_u32 v110, v28, v29\nv_min_u32 v28, v28, v29')
        if t == 1: a('v_cmp_ne_u32 vcc, 0, v28\nv_med3_i32 v110, v110, v30, v31')
        if t == 2: a('v_cndmask_b32 v110, 0, v110, vcc\nv_lshl_or_b32 v110, v110, 4, s45')
    for t in range(2): a(f'ds_read_b128 v[{80+4*t}:{83+4*t}], v24 offset:{t*64}')
    a('s_mov_b32 exec_lo, 0x000f000f\ns_mov_b32 exec_hi, 0x000f000f')
    a('v_cvt_pk_bf16_f32 v108, v16, v17\nv_cvt_pk_bf16_f32 v109, v18, v19')
    a('buffer_store_dwordx4 v[108:111], v106, s[40:43], s58 offen')
    if kw.get('qe'): s.signal(C_QP)
    else: a('s_mov_b64 exec, -1')
    if not kw.get('ackst'): s.stamp(4)
    s.wait_flag(C_G, TH['1'][1], extra=[f'ds_read_b64_tr_b16 v[{40+2*t}:{41+2*t}], v10 offset:{W1+t*2048}' for t in range(4)], sleep=1)
    for t in range(2):
        a(f's_waitcnt lgkmcnt({2-2*t})')
        s.mfma(16, 40 + 4 * t, 80 + 4 * t, t == 0)
    a('s_mov_b32 exec_lo, 0x000f000f\ns_mov_b32 exec_hi, 0x000f000f')
    s.pack24(112, 16, 17, 18, 19)
    a('buffer_store_dwordx4 v[112:115], v107, s[40:43], s59 offen')
    if kw.get('he'): s.signal(C_HP)
    else: a('s_mov_b64 exec, -1')
    if 'Q' in kw.get('kill', ''): a('s_branch L_end')
    a(f's_lshl_b32 s10, s7, 13\ns_add_u32 s10, s10, {KB}')
    a(f'v_xor_b32 v10, v2, v3\nv_lshlrev_b32 v10, 4, v10\nv_lshl_add_u32 v10, v3, 8, v10\nv_add_u32 v102, {QL}, v10\nv_add_u32 v10, s10, v10')
    a('v_xor_b32 v103, 64, v102\nv_xor_b32 v104, 128, v102\nv_xor_b32 v105, 192, v102')
    a('v_xor_b32 v11, 64, v10\nv_xor_b32 v12, 128, v10\nv_xor_b32 v13, 192, v10')
    a(f's_lshl_b32 s10, s7, 2\ns_add_u32 s10, s10, {MX}\nv_lshlrev_b32 v15, 4, v5\nv_add_u32 v24, s10, v15\nv_add_u32 v15, {MX}, v15\ns_add_u32 s10, s10, {FP-MX}\nv_mov_b32 v14, s10')
    a(f's_lshl_b32 s10, s7, 10\ns_add_u32 s10, s10, {PL}\nv_lshlrev_b32 v25, 4, v1\nv_add_u32 v26, s10, v25\nv_add_u32 v25, {PL}, v25')
    a('v_and_b32 v28, 7, v27\ns_lshl_b32 s10, s7, 1\nv_xor_b32 v28, s10, v28\nv_lshlrev_b32 v28, 5, v28\nv_lshl_add_u32 v28, v27, 8, v28\nv_lshl_add_u32 v28, v5, 3, v28')
    a(f'v_add_u32 v28, {VB}, v28\nv_xor_b32 v29, 32, v28')
    a(f's_lshr_b32 s10, s7, 1\ns_lshl_b32 s11, s10, 13\ns_add_u32 s11, s11, {WO}')
    a('v_add_u32 v96, s11, v96\nv_xor_b32 v97, 32, v96\nv_xor_b32 v98, 64, v96\nv_xor_b32 v99, 96, v96')
    a('v_lshlrev_b32 v30, 14, v3\nv_lshl_add_u32 v30, v2, 8, v30')
    a(f's_lshl_b32 s14, s3, 16\ns_add_u32 s14, s14, {WS_O}')
    a('s_lshr_b32 s11, s4, 4\ns_lshl2_add_u32 s11, s11, s7\ns_lshl_b32 s11, s11, 11\ns_and_b32 s12, s4, 15\ns_lshl4_add_u32 s11, s12, s11')
    a('v_lshlrev_b32 v31, 4, v1')
    a('s_xor_b32 s12, s3, s6\ns_and_b32 s12, s12, 4\ns_lshl_b32 s12, s12, 11\nv_or_b32 v101, s12, v31')
    a('s_lshl_b32 s15, s5, 14\ns_add_u32 s15, s15, s14\ns_lshl_b32 s10, s10, 12\ns_add_u32 s15, s15, s10\ns_and_b32 s10, s7, 1\ns_lshl_b32 s12, s10, 13\ns_add_u32 s15, s15, s12')
    a('s_add_u32 s14, s14, s11')
    a(f'v_lshlrev_b32 v100, 9, v2\nv_lshl_add_u32 v100, v3, 4, v100\nv_add_u32 v100, {RED}, v100')
    a(f's_lshr_b32 s10, s3, 1\ns_lshl2_add_u32 s56, s6, s10\ns_and_b32 s10, s3, 1\ns_lshl2_add_u32 s56, s56, s10\ns_lshl2_add_u32 s56, s56, s5\ns_lshl_b32 s56, s56, 10\ns_add_u32 s56, s56, {WS_S}\ns_add_u32 s63, s56, 8192')
    a('v_lshrrev_b32 v119, 1, v1\nv_lshlrev_b32 v119, 10, v119\nv_and_b32 v16, 1, v1\nv_lshl_add_u32 v119, v16, 4, v119')
    a(f's_lshl_b32 s60, s3, 15\ns_lshl_b32 s11, s4, 5\ns_add_u32 s60, s60, s11\ns_add_u32 s62, s60, {WS_M}\ns_add_u32 s60, s60, {WS_S}')
    a('v_lshl_add_u32 v117, v2, 13, v119')
    a(f's_lshl_b32 s60, s3, 16\ns_add_u32 s60, s60, s11\ns_add_u32 s60, s60, {WS_S}')
    a(f's_mov_b32 s13, {hex(f2u(CSC))}')
    a('s_mov_b32 s12, s13')
    for k in range(4): a(f'v_mov_b32 v{124+k}, {hex(ONE2)}')
    kt = TH['k'][1::2]
    a(f's_lshl_b32 s57, s7, 3\ns_lshr_b32 s57, {kt[0] | kt[1] << 8 | kt[2] << 16 | kt[3] << 24}, s57\ns_and_b32 s57, s57, 0xff')
    if not kw.get('qe'):
        a('s_waitcnt vmcnt(1)')
        s.signal(C_QP)
    if not kw.get('he'):
        a('s_waitcnt vmcnt(0)')
        s.signal(C_HP)
    s.wait_flag(C_G, 's57', sleep=1)
    for u in range(2):
        for t in range(4):
            a(f'ds_read_b128 v[{32+16*u+4*t}:{35+16*u+4*t}], v{10+t} offset:{u*4096}')
    if not kw.get('st_tile') and not kw.get('ackst'): s.stamp(5)
    s.wait_flag(F_Q, 1, extra=[f'ds_read_b128 v[{64+4*t}:{67+4*t}], v{102+t}' for t in range(4)])
    s.stamp(6)
    a('v_readfirstlane_b32 s47, v9')
    a('s_cmp_lg_u32 s47, 1\ns_cbranch_scc1 L_qrem')
    a('L_qgo:')
    DP = lambda op, d, x, y, m, rm='0xf': f'{op}_dpp {d}, {x}, {y} {m} row_mask:{rm} bank_mask:0xf'
    for u in range(2):
        for t in range(4):
            if u == 0: a(f's_waitcnt lgkmcnt({3-t})')
            s.mfma(16 + 4 * u, 32 + 16 * u + 4 * t, 64 + 4 * t, t == 0)
    if kw.get('safeC'): a('s_nop 15')
    a('v_mov_b32 v40, s44\nv_mov_b32 v47, s44\nv_mov_b32 v123, s44')
    for u in range(2):
        for k in range(4): a(DP('v_add_f32', f'v{16+4*u+k}', f'v{16+4*u+k}', f'v{16+4*u+k}', 'row_ror:4'))
        for k in range(4): a(DP('v_add_f32', f'v{16+4*u+k}', f'v{16+4*u+k}', f'v{16+4*u+k}', 'row_ror:8'))
        if u == 0: a('v_max3_f32 v10, v16, v17, v18')
    a('v_max3_f32 v10, v10, v19, v20\nv_max3_f32 v11, v21, v22, v23\nv_max_f32 v10, v10, v11\nv_max_f32 v11, v10, v11')
    a('v_permlane16_swap_b32 v11, v10\nv_max_f32 v10, v11, v10\nv_max_f32 v11, v11, v10')
    a('v_permlane32_swap_b32 v11, v10\nv_max_f32 v10, v11, v10\nv_or_b32 v10, 1, v10')
    WB = 128; VR = 160
    vrd = lambda t: [f'ds_read_b64_tr_b16 v[{VR+8*t+4*T+2*u}:{VR+1+8*t+4*T+2*u}], v{28+T} offset:{t*8192+u*4096}' for T in range(2) for u in range(2)]
    cw = lambda n: 0 if (s.stamps and not kw.get('lean')) else n
    a('ds_write_b32 v24, v10')
    a(f'ds_read_b128 v[32:35], v15\nds_read_b32 v9, v8 offset:{C_G}')
    for x in vrd(0) + vrd(1) + vrd(2): a(x)
    a(f's_waitcnt lgkmcnt({cw(13)})\ns_branch L_mx2')
    a('L_mx:')
    a('ds_read_b128 v[32:35], v15')
    s.budget()
    a('s_waitcnt lgkmcnt(0)')
    a('L_mx2:')
    a('v_min3_u32 v11, v32, v33, v34\nv_max3_f32 v10, v32, v33, v34\nv_min_u32 v11, v11, v35\nv_max_f32 v10, v10, v35\nv_cmp_eq_u32 vcc, 0, v11\nv_mul_f32 v116, s13, v10\ns_cbranch_vccnz L_mx')
    for k in range(4): a(f'v_pk_fma_f32 v[{16+2*k}:{17+2*k}], v[{16+2*k}:{17+2*k}], s[12:13], v[116:117] op_sel_hi:[1,1,0] neg_lo:[0,0,1] neg_hi:[0,0,1]')
    for k in range(8): a(f'v_exp_f32 v{16+k}, v{16+k}')
    for k in range(4): a(f'v_cvt_pk_bf16_f32 v{32+k}, v{16+2*k}, v{17+2*k}')
    a('ds_write_b128 v26, v[32:35]\nds_write_b32 v14, v6')
    a('L_pw:')
    a(f'ds_read_b128 v[36:39], v8 offset:{FP}')
    for t in range(4): a(f'ds_read_b128 v[{64+4*t}:{67+4*t}], v25 offset:{t*1024}')
    a(f'ds_read_b32 v118, v8 offset:{C_G}')
    for x in vrd(3): a(x)
    a('v_mov_b32 v41, v116')
    s.budget()
    a(f's_waitcnt lgkmcnt({cw(9)})\nv_min3_u32 v11, v36, v37, v38\nv_min_u32 v11, v11, v39\nv_cmp_eq_u32 vcc, 0, v11\ns_cbranch_vccnz L_pw')
    s.stamp(7)
    def wo_reads(kss=(0, 1)):
        for ks in kss:
            for T in range(4):
                for u in range(2):
                    r = WB + 16 * ks + 4 * T + 2 * u
                    a(f'ds_read_b64_tr_b16 v[{r}:{r+1}], v{96+T} offset:{ks*4096+u*2048}')
    early = False
    a(f'v_cmp_gt_u32 vcc, {TH["v"][5]}, v9\ns_cbranch_vccz L_v012')
    s.wait_flag(C_G, TH['v'][5], extra=vrd(0) + vrd(1) + vrd(2), sleep=2)
    a('s_waitcnt lgkmcnt(0)')
    a('L_v012:')
    for t in range(3):
        a(f's_waitcnt lgkmcnt({8-t})')
        for T in range(2): s.mfma(16 + 4 * T, VR + 8 * t + 4 * T, 64 + 4 * t, t == 0)
        s.mfma(56, 124, 64 + 4 * t, t == 0)
    a('s_waitcnt lgkmcnt(4)')
    s.mfma(56, 124, 76, False)
    a(f'v_cmp_gt_u32 vcc, {TH["v"][7]}, v118\ns_cbranch_vccz L_v3')
    s.wait_flag(C_G, TH['v'][7], extra=vrd(3))
    a('L_v3:')
    if not kw.get('ind'): s.stamp(8)
    for T in range(2):
        a(f's_waitcnt lgkmcnt({2-2*T})')
        s.mfma(16 + 4 * T, VR + 24 + 4 * T, 76, False)
    a('v_mov_b32 v46, v56')
    a('s_mov_b32 exec_lo, 0x000f000f\ns_mov_b32 exec_hi, 0x000f000f\ns_cmp_eq_u32 s47, 1')
    for k in range(4): a(f'v_cvt_pk_bf16_f32 v{42+k}, v{16+2*k}, v{17+2*k}')
    a('s_cbranch_scc0 L_orem')
    a('buffer_store_dwordx4 v[40:43], v30, s[40:43], s14 offen\nbuffer_store_dwordx4 v[44:47], v30, s[40:43], s14 offen offset:1024')
    a('L_ost:')
    a('s_mov_b64 exec, -1')
    s.stamp(9)
    if kw.get('ackst'):
        a('s_waitcnt vmcnt(0)')
        s.stamp(5)
    if 'D' in kw.get('kill', ''): a('s_branch L_end')
    if kw.get('od0'): a(f's_sleep {kw["od0"]}')
    OE = kw.get('oe')
    if OE is not None:
        if OE: s.wait_flag(C_G, len(order) - OE)
    elif kw.get('obar'): a('s_barrier')
    if kw.get('ind'):
        if not early:
            s.wait_flag(C_G, TH['o'][3])
            wo_reads()
            early = True
        a('s_mov_b32 exec_hi, 0')
        a('L_ipoll:')
        a('buffer_load_dword v48, v101, s[40:43], s15 offen offset:1036 sc1')
        s.budget()
        if kw.get('isl'):
            a(f's_waitcnt vmcnt(0)\nv_cmp_ne_u32 vcc, s44, v48\ns_cbranch_vccz L_idone\ns_sleep {kw["isl"]}\ns_branch L_ipoll\nL_idone:')
        else:
            a('s_waitcnt vmcnt(0)\nv_cmp_ne_u32 vcc, s44, v48\ns_cbranch_vccnz L_ipoll')
        a('s_mov_b32 exec_hi, -1')
        s.stamp(8)
    for k in range(4): a(f'buffer_load_dwordx4 v[{48+4*k}:{51+4*k}], v31, s[40:43], s15 offen offset:{k*1024} sc1')
    if OE == 1 and kw.get('wsplit'):
        wo_reads((0,))
        a('s_barrier')
        wo_reads((1,))
        a(f'ds_read_b32 v9, v8 offset:{F_K}')
    else:
        if OE is not None: a('s_barrier')
        a(f'ds_read_b32 v9, v8 offset:{F_K}')
        wo_reads()
    if s.stamps:
        if kw.get('ackst'):
            a('s_waitcnt vmcnt(0)')
            s.stamp(2)
        a('s_mov_b32 s61, 0')
    a('s_branch L_opoll')
    a('L_oretry:')
    a('s_mov_b64 exec, vcc')
    if s.stamps: a('s_add_u32 s61, s61, 1')
    if kw.get('osl'): a(f's_sleep {kw["osl"]}')
    for k in range(4): a(f'buffer_load_dwordx4 v[{48+4*k}:{51+4*k}], v31, s[40:43], s15 offen offset:{k*1024} sc1')
    a('s_mov_b64 exec, -1')
    s.budget()
    if kw.get('al'): a('.p2align 3')
    a('L_opoll:')
    a('s_waitcnt vmcnt(0) lgkmcnt(0)')
    a('v_xor_b32 v10, s44, v48\nv_bitop3_b32 v10, v55, s44, v10 bitop3:0xbe\nv_bitop3_b32 v10, v56, s44, v10 bitop3:0xbe\nv_bitop3_b32 v10, v63, s44, v10 bitop3:0xbe')
    a('v_cmp_ne_u32 vcc, 0, v10\ns_cbranch_vccnz L_oretry')
    s.stamp(11)
    if s.stamps: a('s_mul_i32 s61, s61, 100\ns_add_u32 s70, s64, s61')
    M8 = ('quad_perm:[1,0,3,2]', 'quad_perm:[2,3,0,1]', 'row_half_mirror')
    D = lambda op, d, x, y, m, rm='0xf': f'{op}_dpp {d}, {x}, {y} {m} row_mask:{rm} bank_mask:0xf'
    R = lambda m, rm: f'v_mov_b32_dpp v23, v21 {m} row_mask:{rm} bank_mask:0xf'
    wv = [D('v_max_f32', 'v20', 'v49', 'v49', M8[0]), None, D('v_max_f32', 'v20', 'v20', 'v20', M8[1]), None, D('v_max_f32', 'v20', 'v20', 'v20', M8[2]),
          'v_sub_f32 v21, v49, v20', 'v_exp_f32 v21, v21', None, 'v_mul_f32 v22, v54, v21', 'v_mov_b32 v23, v21', None,
          D('v_add_f32', 'v22', 'v22', 'v22', M8[0]), R('row_ror:12', '0x2'), None, D('v_add_f32', 'v22', 'v22', 'v22', M8[1]), R('row_ror:8', '0x4'), None,
          D('v_add_f32', 'v22', 'v22', 'v22', M8[2]), R('row_ror:4', '0x8'), 'v_rcp_f32 v22, v22', None]
    mf = [(32 + 4 * T, 50 + 8 * ks, WB + 16 * ks + 4 * T, ks == 0) for ks in range(2) for T in range(4)]
    s.mfma(*mf.pop(0))
    for x in wv:
        if x is None: s.mfma(*mf.pop(0))
        else: a(x)
    assert not mf
    a('v_mul_f32 v21, v22, v23')
    a(D('v_mul_f32', 'v21', 'v22', 'v23', 'row_ror:8', '0xc'))
    for T in range(4): a(D('v_mul_f32', f'v{16+T}', 'v21', f'v{32+4*T}', 'row_newbcast:0'))
    for r in range(1, 4):
        for T in range(4): a(D('v_fmac_f32', f'v{16+T}', 'v21', f'v{32+4*T+r}', f'row_newbcast:{r}'))
    a(f'ds_write_b128 v26, v[16:19] offset:{RED-PL}')
    if kw.get('nf'): a('v_xor_b32 v10, v9, v101\nv_xor_b32 v11, 0x2000, v10')
    a('v_add_u32 v117, v117, v9\ns_cmp_lg_u32 s7, 0')
    a('s_waitcnt lgkmcnt(0)\ns_barrier')
    s.stamp(12)
    a('s_cbranch_scc1 ' + ('L_wb' if kw.get('fw') else 'L_end'))
    for k in range(4): a(f'ds_read_b128 v[{48+4*k}:{51+4*k}], v100 offset:{(k>>1)*2048+(k&1)*256}')
    a('s_waitcnt lgkmcnt(2)')
    a('v_pk_add_f32 v[48:49], v[48:49], v[52:53]\nv_pk_add_f32 v[50:51], v[50:51], v[54:55]')
    a('s_waitcnt lgkmcnt(1)')
    a('v_pk_add_f32 v[48:49], v[48:49], v[56:57]\nv_pk_add_f32 v[50:51], v[50:51], v[58:59]')
    a('s_waitcnt lgkmcnt(0)')
    a('v_pk_add_f32 v[48:49], v[48:49], v[60:61]\nv_pk_add_f32 v[50:51], v[50:51], v[62:63]')
    s.pack24(120, 48, 49, 50, 51)
    if kw.get('nf'):
        a('buffer_store_dwordx4 v[120:123], v10, s[40:43], s56 offen sc1')
        if kw.get('nfs'): a(f's_sleep {kw["nfs"]}')
        a('buffer_store_dwordx4 v[120:123], v11, s[40:43], s56 offen sc1')
    else:
        a('buffer_store_dwordx4 v[120:123], v31, s[40:43], s56 offen sc1\nbuffer_store_dwordx4 v[120:123], v31, s[40:43], s63 offen sc1')
    s.stamp(13)
    fw = kw.get('fw', 0)
    if fw:
        a('s_branch L_end')
        a('L_wb:')
        a(f's_cmp_lg_u32 s7, {fw}\ns_cbranch_scc1 L_end')
        if kw.get('d0'): a(f's_sleep {kw["d0"]}')
    LA = 'buffer_load_dwordx4 v[16:19], v117, s[40:43], s60 offen sc1'
    LB_ = 'buffer_load_dwordx4 v[20:23], v117, s[40:43], s60 offen sc1'
    a('L_mpoll:')
    a('buffer_load_dwordx4 v[32:35], v119, s[40:43], s62 offen sc1')
    a(f'v_lshlrev_b32 v14, 3, v1\nv_add_u32 v14, {GX}, v14\nds_read_b64 v[12:13], v14')
    s.unpack24_consts()
    s.srd_const(48, 4096); s.srd(48, 36)
    a('s_mov_b32 s56, 0x00030003\ns_mov_b32 s57, s56')
    a('v_and_b32 v11, 1, v1\nv_lshlrev_b32 v14, 5, v2\nv_lshl_add_u32 v14, v11, 1, v14')
    a('s_lshl_b32 s11, s5, 10\ns_lshl_b32 s12, s3, 7\ns_add_u32 s11, s11, s12\ns_lshl2_add_u32 s11, s6, s11')
    if kw.get('d1'): a(f's_sleep {kw["d1"]}')
    a(LA)
    if kw.get('d2'): a(f's_sleep {kw["d2"]}')
    a(LB_)
    s.budget()
    a('s_waitcnt vmcnt(2)\nv_cmp_ne_u32 vcc, s44, v35\ns_cbranch_vccnz L_mpoll')
    s.stamp(10)
    s.unpack24(32)
    s.reduce32(32)
    a('s_waitcnt lgkmcnt(0)')
    s.round_bf16('v32')
    a('v_add_f32 v32, v32, v12')
    s.round_bf16('v32')
    a(f'v_mul_f32 v33, {hex(f2u(-math.log2(math.e)))}, v32\nv_exp_f32 v33, v33\nv_add_f32 v33, 1.0, v33\nv_rcp_f32 v33, v33\nv_mul_f32 v12, v32, v33')
    s.round_bf16('v12')
    a('L_fpoll:')
    a('s_waitcnt vmcnt(1)\nv_cmp_ne_u32 vcc, s44, v19\ns_cbranch_vccz L_fdone')
    if kw.get('d4'): a(f's_sleep {kw["d4"]}')
    a(LA)
    s.budget()
    a('s_waitcnt vmcnt(1)\nv_cmp_ne_u32 vcc, s44, v23\ns_cbranch_vccz L_fdoneB')
    if kw.get('d3'): a(f's_sleep {kw["d3"]}')
    a(LB_ + '\ns_branch L_fpoll')
    def finish(r):
        s.stamp(14)
        s.unpack24(r)
        s.reduce32(r)
        if kw.get('exactfin', 0):
            s.round_bf16(f'v{r}')
            a(f'v_mul_f32 v{r}, v{r}, v12')
            s.round_bf16(f'v{r}')
            a(f'v_add_f32 v{r}, v{r}, v13')
        else:
            a(f'v_fma_f32 v{r}, v{r}, v12, v13')
        a('s_mov_b64 exec, s[56:57]')
        a(f'v_cvt_pk_bf16_f32 v{r}, v{r}, v{r}')
        a(f'buffer_store_short v{r}, v14, s[48:51], s11 offen')
    a('L_fdoneB:')
    finish(20)
    a('s_branch L_epoch')
    a('L_fdone:')
    finish(16)
    a('L_epoch:')
    s.stamp(15)
    a('s_cmp_lg_u32 s2, 0\ns_cbranch_scc1 L_end')
    a('s_mov_b64 exec, 1\nbuffer_store_dword v123, v8, s[40:43], 0 offen')
    a('s_branch L_end')

    a('L_qrem:')
    a('s_mov_b32 exec_lo, 0x000f000f\ns_mov_b32 exec_hi, 0x000f000f')
    a('buffer_store_dwordx4 v[108:111], v106, s[40:43], s58 offen sc1\nbuffer_store_dwordx4 v[112:115], v107, s[40:43], s59 offen sc1')
    a('s_mov_b64 exec, -1')
    a('L_qrem2:')
    a(f'ds_read_b32 v9, v8 offset:{F_Q}')
    for t in range(4): a(f'ds_read_b128 v[{64+4*t}:{67+4*t}], v{102+t}')
    s.budget()
    a('s_waitcnt lgkmcnt(0)\nv_readfirstlane_b32 s47, v9\ns_cmp_eq_u32 s47, 4\ns_cbranch_scc0 L_qgo\ns_sleep 2\ns_branch L_qrem2')
    if kw.get('wb') is not None:
        a('L_wb:')
        a(f's_cmp_lg_u32 s7, 1\ns_cbranch_scc1 L_end\ns_and_b32 s10, s4, {kw["wb"]}\ns_cbranch_scc1 L_end')
        if kw.get('wbd'): a(f's_sleep {kw["wbd"]}')
        a('buffer_wbl2 sc1\ns_branch L_end')
    a('L_orem:')
    a('buffer_store_dwordx4 v[40:43], v30, s[40:43], s14 offen sc1\nbuffer_store_dwordx4 v[44:47], v30, s[40:43], s14 offen offset:1024 sc1')
    a('s_branch L_ost')
    a('L_P:')
    if 'P' in kw.get('kill', ''): a('s_waitcnt lgkmcnt(0)\ns_branch L_end')
    a('s_setprio 3')
    a('s_getreg_b32 s45, hwreg(HW_REG_XCC_ID, 0, 4)')
    a('v_and_b32 v5, 3, v1')
    a(f's_lshl_b32 s10, s3, 15\ns_lshl_b32 s12, s4, 10\ns_add_u32 s12, s12, s10')
    a('s_waitcnt lgkmcnt(0)')
    if kw.get('warmq'):
        a(f'v_and_b32 v10, 7, v1\nv_lshlrev_b32 v10, 7, v10\nv_and_b32 v11, 8, v1\nv_lshl_add_u32 v10, v11, 15, v10\ns_add_u32 s11, s12, {WS_Q}')
        a(f's_mov_b64 exec, {0xff if kw["warmq"] == 1 else 0xffff}\nbuffer_load_dword v7, v10, s[40:43], s11 offen {kw.get("warmqfl", "")}\ns_mov_b64 exec, -1')
    a(f's_lshl_b32 s11, s5, 13\ns_add_u32 s10, s10, s11\ns_add_u32 s10, s10, {WS_Q}\ns_add_u32 s15, s10, 4096')
    a('v_lshlrev_b32 v10, 4, v1')
    a(f'v_lshrrev_b32 v11, 5, v1\nv_and_b32 v12, 31, v1\nv_lshlrev_b32 v13, 3, v12\nv_lshlrev_b32 v14, 4, v11\nv_xor_b32 v13, v13, v14\nv_lshl_add_u32 v13, v11, 8, v13\nv_add_u32 v22, {QL}, v13')
    for c in range(1, 8): a(f'v_xor_b32 v{22+c}, {c*32}, v22')
    a(f's_mov_b32 s14, {kw.get("nfast", 48)}')
    a('s_waitcnt lgkmcnt(0)')
    s.stamp(1)
    if 'W' in kw.get('kill', ''): a('s_branch L_end')
    if kw.get('qs'): a(f's_sleep {kw["qs"]}')
    if kw.get('qg'): s.wait_flag(C_G, kw['qg'], sleep=1)
    s.wait_flag(C_QP, 4, sleep=1, extra=[f'ds_read_b32 v15, v8 offset:{TAGW}'])
    a('s_waitcnt lgkmcnt(0)\nv_readfirstlane_b32 s44, v15')
    if q0: a(f's_sleep {q0}')
    s.stamp(2)
    a('L_qpoll:')
    for c in range(8): a(f'buffer_load_dwordx4 v[{32+4*c}:{35+4*c}], v10, s[40:43], s{10 if c < 4 else 15} offen offset:{(c&3)*1024} sc1 {kw.get("qnt", "")}')
    s.budget()
    a('s_waitcnt vmcnt(0)')
    a('v_xor_b32 v15, s44, v35')
    for c in range(1, 8): a(f'v_bitop3_b32 v15, v{35+4*c}, s44, v15 bitop3:0xbe')
    a('v_cmp_ne_u32 vcc, 0, v15\ns_cbranch_vccz L_qgot')
    a(f's_mov_b64 exec, vcc\ns_sub_u32 s14, s14, 1\ns_cbranch_scc0 L_qpoll')
    a(f'v_mov_b32 v15, 4\nds_write_b32 v8, v15 offset:{F_Q}\ns_branch L_qpoll')
    a('L_qgot:')
    a('s_mov_b64 exec, -1')
    a('v_xor_b32 v15, s45, v34')
    for c in range(8):
        a(f'ds_write_b64 v{22+c}, v[{32+4*c}:{33+4*c}] offset:{c*512}')
        if c < 7: a(f'v_bitop3_b32 v15, v{38+4*c}, s45, v15 bitop3:0xbe')
    a('v_and_b32 v15, 15, v15\nv_cmp_ne_u32 vcc, 0, v15\ns_cmp_eq_u64 vcc, 0\ns_cselect_b32 s47, 1, 2')
    if kw.get('force_remote'): a('s_mov_b32 s47, 2')
    a(f'v_mov_b32 v15, s47\nds_write_b32 v8, v15 offset:{F_Q}')
    s.stamp(3)
    a('v_add3_u32 v16, v34, v38, v42\nv_add3_u32 v17, v46, v50, v54\nv_add3_u32 v16, v16, v58, v62\nv_add_u32 v16, v16, v17')
    for m in ('quad_perm:[1,0,3,2] row_mask:0xf', 'quad_perm:[2,3,0,1] row_mask:0xf', 'row_half_mirror row_mask:0xf', 'row_mirror row_mask:0xf', 'row_bcast:15 row_mask:0xa', 'row_bcast:31 row_mask:0xc'):
        a(f'v_add_u32_dpp v16, v16, v16 {m} bank_mask:0xf')
    a('v_readlane_b32 s10, v16, 63\ns_cmp_lt_i32 s10, 0\ns_cselect_b32 s10, 0, 8192')
    if kw.get('kflip'): a('s_xor_b32 s10, s10, 8192')
    a(f'v_mov_b32 v15, s10\nds_write_b32 v8, v15 offset:{F_K}')
    a(f's_lshl_b32 s11, s12, 1\ns_add_u32 s11, s11, {WS_O}')
    a(f's_lshl2_add_u32 s12, s3, s5\ns_lshl4_add_u32 s12, s12, s6\ns_lshl_b32 s12, s12, 10\ns_add_u32 s12, s12, s10\ns_add_u32 s12, s12, {WS_S - 2048}')
    a('v_lshlrev_b32 v10, 7, v1\nv_add_u32 v11, s12, v10\nv_add_u32 v10, s11, v10\nv_cmp_gt_u32 vcc, 16, v1\nv_cndmask_b32 v10, v11, v10, vcc')
    if kw.get('wg'): s.wait_flag(C_G, kw['wg'], sleep=2)
    if kw.get('ont'):
        a('s_mov_b64 exec, 0xffff\nbuffer_load_dword v7, v10, s[40:43], 0 offen nt\ns_mov_b64 exec, 0xff0000\nbuffer_load_dword v7, v10, s[40:43], 0 offen')
    else:
        a('s_mov_b64 exec, 0xffffff\nbuffer_load_dword v7, v10, s[40:43], 0 offen')
    a('s_branch L_end')

    a('L_M:')
    if kw.get('mprio') is not None: a(f's_setprio {kw["mprio"]}\ns_branch L_M2')
    if 'M' in kw.get('kill', ''): a('s_waitcnt lgkmcnt(0)\ns_branch L_end')
    a('s_setprio 3')
    a('L_M2:')
    a('v_bfe_u32 v4, v1, 2, 2\nv_and_b32 v5, 3, v1')
    a('v_lshl_add_u32 v10, v4, 2, v2')
    a('v_lshlrev_b32 v11, 3, v10')
    a('v_lshlrev_b32 v10, 4, v1')
    s.mlp_slot(11, 15)
    a('s_lshl3_add_u32 s15, s5, s3\ns_lshl_b32 s11, s11, 6')
    a('v_and_b32 v24, 1, v1\nv_lshlrev_b32 v25, 5, v2\nv_lshl_add_u32 v25, v24, 1, v25')
    a('s_lshl_b32 s12, s3, 7\ns_lshl2_add_u32 s12, s6, s12\ns_lshl_b32 s13, s5, 10\ns_add_u32 s13, s13, s12')
    s.srd_const(56, 3584); s.srd_const(60, 1024); s.srd_const(96, 4096)
    a('s_waitcnt lgkmcnt(0)')
    s.srd(56, 30); s.srd(60, 34); s.srd(96, 16)
    a('buffer_load_ushort v16, v25, s[60:63], s12 offen')
    a('buffer_load_ushort v17, v25, s[96:99], s13 offen')
    a('buffer_load_dwordx2 v[14:15], v11, s[56:59], s11 offen')
    a(f'v_mul_u32_u24 v11, {HS}, v5\nv_lshl_add_u32 v11, v2, 4, v11\nv_lshrrev_b32 v12, 1, v4\nv_lshl_add_u32 v11, v12, 6, v11\nv_and_b32 v12, 1, v4\nv_lshl_add_u32 v11, v12, 3, v11\nv_add_u32 v11, {HL}, v11')
    a(f'v_mul_u32_u24 v12, {HS}, v4\nv_lshl_add_u32 v12, v2, 4, v12\nv_add_u32 v12, {HL}, v12')
    a(f'v_lshl_add_u32 v27, v2, 2, v4\nv_bfe_u32 v28, v27, 1, 2\nv_lshlrev_b32 v28, 5, v28\nv_lshl_add_u32 v28, v27, 7, v28\nv_lshl_add_u32 v28, v5, 3, v28\nv_add_u32 v28, {W2}, v28')
    a('v_xor_b32 v29, 32, v28\nv_xor_b32 v30, 64, v28\nv_xor_b32 v31, 96, v28')
    a(f'v_lshlrev_b32 v13, 3, v1\nv_add_u32 v13, {GX}, v13')
    a('s_waitcnt vmcnt(1) lgkmcnt(0)')
    a('v_lshlrev_b32 v16, 16, v16\nv_lshlrev_b32 v17, 16, v17\nds_write_b64 v13, v[16:17]')
    if kw.get('hs'): a(f's_sleep {kw["hs"]}')
    s.wait_flag(C_HP, 4, sleep=1, extra=[f'ds_read_b32 v23, v8 offset:{TAGW}'])
    a('s_waitcnt lgkmcnt(0)\nv_readfirstlane_b32 s44, v23')
    s.pack24_consts(); s.unpack24_consts()
    if kw.get('hq'): s.wait_flag(F_Q, 1, sleep=1)
    if kw.get('h0', 8): a(f's_sleep {kw.get("h0", 8)}')
    a(f's_lshl2_add_u32 s10, s3, s5\ns_lshl_b32 s10, s10, 13\ns_add_u32 s10, s10, {WS_H}\ns_add_u32 s11, s10, 4096')
    s.stamp(2)
    a('L_hpoll:')
    for c in range(8): a(f'buffer_load_dwordx4 v[{32+4*c}:{35+4*c}], v10, s[40:43], s{10 + (c>>2)} offen offset:{(c&3)*1024} sc1 {kw.get("qnt", "")}')
    s.budget()
    a('s_waitcnt vmcnt(0)')
    a('v_xor_b32 v13, s44, v35')
    for c in range(1, 8): a(f'v_bitop3_b32 v13, v{35+4*c}, s44, v13 bitop3:0xbe')
    a('v_cmp_ne_u32 vcc, 0, v13\ns_cbranch_vccnz L_hpoll')
    s.stamp(3)
    for c in range(8): s.unpack24(32 + 4 * c)
    for st in (16, 8, 4):
        for r in range(32, 32 + st, 2): a(f'v_pk_add_f32 v[{r}:{r+1}], v[{r}:{r+1}], v[{r+st}:{r+st+1}]')
    a('v_cvt_pk_bf16_f32 v36, v32, v33\nv_cvt_pk_bf16_f32 v37, v34, v35')
    for k in range(2):
        a(f'v_lshlrev_b32 v{32+2*k}, 16, v{36+k}\nv_and_b32 v{33+2*k}, 0xffff0000, v{36+k}\nv_lshlrev_b32 v{40+2*k}, 16, v{14+k}\nv_and_b32 v{41+2*k}, 0xffff0000, v{14+k}')
    for k in range(4): a(f'v_add_f32 v{32+k}, v{32+k}, v{40+k}')
    a('v_cvt_pk_bf16_f32 v36, v32, v33\nv_cvt_pk_bf16_f32 v37, v34, v35')
    for k in range(2): a(f'v_lshlrev_b32 v{32+2*k}, 16, v{36+k}\nv_and_b32 v{33+2*k}, 0xffff0000, v{36+k}')
    K1 = -2 * math.sqrt(2 / math.pi) * math.log2(math.e)
    a(f'v_mov_b32 v44, {hex(f2u(K1))}')
    for k in range(4): a(f'v_mul_f32 v{36+k}, v{32+k}, v{32+k}')
    for k in range(4): a(f'v_fmamk_f32 v{36+k}, v{36+k}, {hex(f2u(K1*0.044715))}, v44')
    for k in range(4): a(f'v_mul_f32 v{36+k}, v{36+k}, v{32+k}')
    for k in range(4): a(f'v_exp_f32 v{36+k}, v{36+k}')
    for k in range(4): a(f'v_add_f32 v{36+k}, 1.0, v{36+k}')
    for k in range(4): a(f'v_rcp_f32 v{36+k}, v{36+k}')
    for k in range(4): a(f'v_mul_f32 v{32+k}, v{32+k}, v{36+k}')
    a('v_cvt_pk_bf16_f32 v40, v32, v33\nv_cvt_pk_bf16_f32 v41, v34, v35')
    a('ds_write_b64 v11, v[40:41]\nds_read_b128 v[48:51], v12\nds_read_b128 v[52:55], v12 offset:64')
    a(f's_add_u32 s10, s6, {r2}\ns_and_b32 s10, s10, 7\ns_lshl_b32 s10, s10, 5\ns_add_u32 s10, s10, s15\ns_lshl_b32 s10, s10, 10\ns_add_u32 s10, s10, {WS_M}')
    a('v_lshlrev_b32 v10, 4, v1\nv_mov_b32 v23, s44')
    s.wait_flag(C_G, TH['2'][1], sleep=1)
    for ks in range(2):
        for T in range(4):
            for u in range(2):
                r = 64 + 16 * ks + 4 * T + 2 * u
                a(f'ds_read_b64_tr_b16 v[{r}:{r+1}], v{28+T} offset:{ks*4096+u*2048}')
    a('s_waitcnt lgkmcnt(0)')
    for ks in range(2):
        for T in range(4): s.mfma(32 + 4 * T, 48 + 4 * ks, 64 + 16 * ks + 4 * T, ks == 0)
    s.pack24(20, 32, 36, 40, 44)
    a('buffer_store_dwordx4 v[20:23], v10, s[40:43], s10 offen sc1')
    s.stamp(4)
    a('L_end:')
    if kw.get('probe'):
        pw, pst, pm, pb = kw['probe']
        a(f's_waitcnt lgkmcnt(0)\ns_cmp_lg_u32 s7, {pw}\ns_cbranch_scc1 L_exit')
        if pw >= 4: a('s_barrier\ns_barrier' if kw.get('obar') and pw != 6 else 's_barrier')
        if kw.get('px') is not None: a(f's_cmp_lg_u32 s45, {kw["px"]}\ns_cbranch_scc1 L_exit')
        if kw.get('pm') is not None: a(f's_mul_i32 s10, s45, {kw["pm"]}\ns_add_u32 s94, s64, s10')
        if kw.get('pg') is not None: a(f's_cmp_lg_u32 s3, {kw["pg"]}\ns_cbranch_scc1 L_exit')
        a(f's_sub_u32 s10, s{64+2*pst}, s64\ns_mul_i32 s10, s10, {pm}\ns_add_u32 s10, s10, {pb}\ns_min_u32 s10, s10, 20000')
        a('L_padloop:\ns_memrealtime s[12:13]\ns_waitcnt lgkmcnt(0)\ns_sub_u32 s11, s12, s64\ns_cmp_lt_u32 s11, s10\ns_cbranch_scc1 L_padloop')
    s.dump_stamps()
    a('L_exit:')
    a('s_endpgm')
    lines, added = hazard.fix(s.o, verbose=kw.get('verbose', False))
    return wrap('\n'.join(lines) + '\n', 256, NW * 64, kw.get('lds', LDS_TOTAL), kw.get('vgpr', 192))

if __name__ == '__main__':
    import ast
    out = sys.argv[1]
    kw = {}
    for x in sys.argv[2:]:
        k, v = x.split('=')
        try: kw[k] = ast.literal_eval(v)
        except Exception: kw[k] = v
    open(out, 'w').write(gen(**kw))
```

```python
import sys, math, struct
sys.path.insert(0, 'dev')
from common import *
import hazard

def f2u(x):
    return struct.unpack('<I', struct.pack('<f', x))[0]

NW = 7
FL = 0
WA, W1, KB, W2, VB, WO = [2048 + x for x in (0, 16384, 24576, 57344, 65536, 98304)]
XN = 2048 + 114688; XS = 1088
YL = XN + 4 * XS
QL = YL + 4 * XS
assert QL % 256 == 0
PL = QL + 4096
RED = PL + 4096
HL = RED + 4096; HS = 144
MX = 128
FP = 192
GX = HL + 640
LDS_TOTAL = GX + 512
C_WA, C_G, C_XN, F_Q, C_MX, C_P, F_WT, C_QP, C_Y, C_HP, T_A, T_B, F_K, TAGW = [4 * i for i in range(14)]

WS_Q = 0x1000
WS_H = WS_Q + 0x40000
WS_LSE = WS_H + 0x40000
WS_O = WS_LSE + 0x4000
WS_M = WS_O + 0x80000
WS_S = 0x150000
assert WS_S >= WS_M + 0x40000
WS_T = WS_S + 0x80000
WS_N = WS_T + 0x10000
WS_END = WS_T + 0x20000
assert WS_END <= 0x200000
STAMP = 0x8000000

class G:
    def __init__(s, **kw):
        s.o = []
        s.nl = 0
        s.kw = kw
        s.stamps = kw.get('stamps', False)
    def a(s, t):
        for l in t.split('\n'):
            l = l.strip()
            if l: s.o.append(l)
    def lab(s, p='L'):
        s.nl += 1
        return f'{p}_{s.nl}'
    def stamp(s, i):
        pr = s.kw.get('probe')
        only = s.kw.get('only')
        if (s.stamps and (only is None or i in only or i == 0)) or (pr and i in (0, pr[1])):
            s.a(f's_memrealtime s[{64+2*i}:{65+2*i}]')
    def budget(s):
        s.a('s_sub_u32 s46, s46, 1\ns_cbranch_scc1 L_end')
    def wait_flag(s, off, n, extra=None, sleep=0, vt='v9'):
        L = s.lab('W')
        if sleep:
            L2 = s.lab('W')
            s.a(f's_branch {L2}\n{L}:\ns_sleep {sleep}\n{L2}:')
        else:
            s.a(f'{L}:')
        s.a(f'ds_read_b32 {vt}, v8 offset:{off}')
        ne = 0
        if extra:
            for e in extra: s.a(e)
            ne = len(extra)
        s.budget()
        s.a(f's_waitcnt lgkmcnt({0 if (s.stamps and not s.kw.get("lean")) or s.kw.get("probe") or (s.kw.get("safeA") and ne > 6) else min(ne, 15)})')
        s.a(f'v_cmp_gt_u32 vcc, {n}, {vt}')
        s.a(f's_cbranch_vccnz {L}')
    def signal(s, off):
        s.a(f's_mov_b64 exec, 1\nds_add_u32 v8, v6 offset:{off}\ns_mov_b64 exec, -1')
    def srd(s, d, p):
        s.a(f's_mov_b32 s{d}, s{p}\ns_mov_b32 s{d+1}, s{p+1}')
    def srd_const(s, d, n):
        s.a(f's_mov_b32 s{d+2}, {n}\ns_mov_b32 s{d+3}, 0x20000')
    def wave_sum(s, v, sd):
        for m in ('quad_perm:[1,0,3,2]', 'quad_perm:[2,3,0,1]', 'row_half_mirror', 'row_mirror'):
            s.a(f'v_add_f32_dpp {v}, {v}, {v} {m} row_mask:0xf bank_mask:0xf')
        s.a(f'v_add_f32_dpp {v}, {v}, {v} row_bcast:15 row_mask:0xa bank_mask:0xf')
        s.a(f'v_add_f32_dpp {v}, {v}, {v} row_bcast:31 row_mask:0xc bank_mask:0xf')
        s.a(f'v_readlane_b32 {sd}, {v}, 63')
    def rows_allreduce(s, op, v, t):
        s.a(f'v_mov_b32 {t}, {v}\nv_permlane16_swap_b32 {t}, {v}\n{op} {v}, {t}, {v}')
        s.a(f'v_mov_b32 {t}, {v}\nv_permlane32_swap_b32 {t}, {v}\n{op} {v}, {t}, {v}')
    def layernorm(s, src, f, t):
        P = lambda r: f'v[{r}:{r+1}]'
        for k in range(4):
            s.a(f'v_lshlrev_b32 v{f+2*k}, 16, v{src+k}\nv_and_b32 v{f+2*k+1}, s55, v{src+k}')
        s.a(f'v_pk_add_f32 {P(t)}, {P(f)}, {P(f+2)}\nv_pk_add_f32 {P(t+2)}, {P(f+4)}, {P(f+6)}\nv_pk_add_f32 {P(t)}, {P(t)}, {P(t+2)}\nv_add_f32 v{t}, v{t}, v{t+1}')
        s.wave_sum(f'v{t}', 's10')
        s.a(f'v_mov_b32 v{src+3}, {hex(f2u(1/512))}')
        s.a(f'v_mul_f32 v{src}, s10, v{src+3}')
        for k in range(4):
            s.a(f'v_pk_add_f32 {P(t+2*k)}, {P(f+2*k)}, {P(src)} op_sel_hi:[1,0] neg_lo:[0,1] neg_hi:[0,1]')
        s.a(f'v_pk_mul_f32 {P(t)}, {P(t)}, {P(t)}')
        for k in range(1, 4):
            s.a(f'v_pk_fma_f32 {P(t)}, {P(t+2*k)}, {P(t+2*k)}, {P(t)}')
        s.a(f'v_add_f32 v{t}, v{t}, v{t+1}')
        s.a(f'v_cvt_pk_bf16_f32 v{src}, v{src}, v{src}\nv_lshlrev_b32 v{src}, 16, v{src}')
        ms = ['quad_perm:[1,0,3,2] row_mask:0xf', 'quad_perm:[2,3,0,1] row_mask:0xf', 'row_half_mirror row_mask:0xf', 'row_mirror row_mask:0xf', 'row_bcast:15 row_mask:0xa', 'row_bcast:31 row_mask:0xc']
        fill = [f'v_pk_add_f32 {P(f+2*k)}, {P(f+2*k)}, {P(src)} op_sel_hi:[1,0] neg_lo:[0,1] neg_hi:[0,1]' for k in range(4)]
        fill += [f'v_cvt_pk_bf16_f32 v{t+2+k}, v{f+2*k}, v{f+2*k+1}' for k in range(4)]
        for k in range(4): fill += [f'v_lshlrev_b32 v{f+2*k}, 16, v{t+2+k}', f'v_and_b32 v{f+2*k+1}, s55, v{t+2+k}']
        for m in ms:
            s.a(f'v_add_f32_dpp v{t}, v{t}, v{t} {m} bank_mask:0xf')
            s.a(fill.pop(0)); s.a(fill.pop(0))
        s.a(f'v_readlane_b32 s10, v{t}, 63')
        s.a(fill.pop(0)); s.a(fill.pop(0))
        s.a(f'v_mul_f32 v{src}, s10, v{src+3}')
        s.a(f'v_cvt_pk_bf16_f32 v{src}, v{src}, v{src}\nv_lshlrev_b32 v{src}, 16, v{src}')
        s.a(f'v_add_f32 v{src}, {hex(f2u(1e-5))}, v{src}')
        s.a(f'v_cvt_pk_bf16_f32 v{src}, v{src}, v{src}\nv_lshlrev_b32 v{src}, 16, v{src}')
        s.a(f'v_sqrt_f32 v{src}, v{src}')
        s.a(fill.pop(0))
        s.a(f'v_cvt_pk_bf16_f32 v{src}, v{src}, v{src}\nv_lshlrev_b32 v{src}, 16, v{src}')
        s.a(f'v_rcp_f32 v{src}, v{src}')
        s.a(fill.pop(0))
        assert not fill
        for k in range(4):
            s.a(f'v_pk_mul_f32 {P(f+2*k)}, {P(f+2*k)}, {P(src)} op_sel_hi:[1,0]')
        for k in range(4):
            s.a(f'v_cvt_pk_bf16_f32 v{src+k}, v{f+2*k}, v{f+2*k+1}')
    def round_bf16(s, v):
        s.a(f'v_cvt_pk_bf16_f32 {v}, {v}, {v}\nv_lshlrev_b32 {v}, 16, {v}')
    def tag_finish(s):
        s.a('s_mul_i32 s44, s44, 0x2c9277b5\ns_add_u32 s44, s44, 0xac564b05')
    def pack24(s, d, a, b, c, e):
        s.a(f'v_perm_b32 v{d}, v{a}, v{e}, s50\nv_perm_b32 v{d+1}, v{b}, v{e}, s51\nv_perm_b32 v{d+2}, v{c}, v{e}, s52')
    def pack24_consts(s):
        s.a('s_mov_b32 s50, 0x07060503\ns_mov_b32 s51, 0x07060502\ns_mov_b32 s52, 0x07060501')
    def unpack24(s, r):
        s.a(f'v_perm_b32 v{r+3}, v{r}, v{r+1}, s53\nv_perm_b32 v{r+3}, v{r+3}, v{r+2}, s54')
    def unpack24_consts(s):
        s.a('s_mov_b32 s53, 0x04000c0c\ns_mov_b32 s54, 0x0706000c')
    def reduce32(s, r):
        s.a(f'v_permlane32_swap_b32 v{r}, v{r+2}\nv_permlane32_swap_b32 v{r+1}, v{r+3}')
        s.a(f'v_add_f32 v{r}, v{r}, v{r+2}\nv_add_f32 v{r+1}, v{r+1}, v{r+3}')
        s.a(f'v_permlane16_swap_b32 v{r}, v{r+1}\nv_add_f32 v{r}, v{r}, v{r+1}')
        for m in ('row_ror:8', 'row_ror:4', 'row_ror:2'):
            s.a(f'v_add_f32_dpp v{r}, v{r}, v{r} {m} row_mask:0xf bank_mask:0xf')
    def mfma(s, d, A, B, first):
        s.a(f'v_mfma_f32_16x16x32_bf16 v[{d}:{d+3}], v[{A}:{A+3}], v[{B}:{B+3}], {"0" if first else f"v[{d}:{d+3}]"}')
    def mlp_slot(s, d, t):
        ha = s.kw.get('ha', 4)
        s.a(f's_mul_i32 s{d}, s5, 6\ns_add_u32 s{d}, s{d}, s3\ns_cmp_gt_u32 s3, {ha}\ns_cselect_b32 s{t}, 2, 0\ns_sub_u32 s{d}, s{d}, s{t}\ns_lshl_b32 s{d}, s{d}, 1')
        s.a(f's_lshl2_add_u32 s{t}, s3, s5\ns_add_u32 s{t}, s{t}, {48-4*ha}')
        s.a(f's_bitcmp1_b32 {3 << ha}, s3\ns_cselect_b32 s{d}, s{t}, s{d}')
    def hint(s, name, off, nq, tries, sub):
        a = s.a
        a(f's_lshl_b32 s48, s3, 7\ns_add_u32 s48, s48, {WS_N + off}\ns_add_u32 s49, s48, s4')
        a('s_and_b32 s50, s44, 0xff\ns_mul_i32 s50, s50, 0x01010101\ns_mov_b32 s51, s50\nv_mov_b32 v21, s50')
        if sub: a('s_andn2_b32 s48, s49, 7')
        a(f's_mov_b32 s47, {tries}')
    def hint_go(s, name, nq):
        a = s.a
        a('s_mov_b64 exec, 1\nbuffer_store_byte v21, v8, s[40:43], s49 offen\ns_mov_b64 exec, -1')
        a(f'L_{name}:')
        a(f's_load_dwordx{2*nq} s[52:{51+2*nq}], s[40:41], s48 glc')
        a(f's_sub_u32 s47, s47, 1\ns_cbranch_scc1 L_{name}d\ns_waitcnt lgkmcnt(0)')
        for k in range(nq): a(f's_xor_b64 s[{52+2*k}:{53+2*k}], s[{52+2*k}:{53+2*k}], s[50:51]')
        for k in range(1, nq): a(f's_or_b64 s[52:53], s[52:53], s[{52+2*k}:{53+2*k}]')
        a(f's_cbranch_scc1 L_{name}\nL_{name}d:\ns_waitcnt lgkmcnt(0)')
    def dump_stamps(s, nst=16):
        if not s.stamps: return
        s.a('s_waitcnt lgkmcnt(0)\ns_mov_b64 exec, -1\nv_mov_b32 v10, 0')
        for i in range(nst):
            s.a(f'v_writelane_b32 v10, s{64+2*i}, {i}')
        s.a(f's_mul_i32 s10, s2, {NW*64}\ns_lshl_b32 s11, s7, 6\ns_add_u32 s10, s10, s11\ns_add_u32 s10, s10, {STAMP}')
        s.a('v_lshlrev_b32 v11, 2, v1\ns_mov_b64 exec, 0xffff\nbuffer_store_dword v10, v11, s[40:43], s10 offen ' + s.kw.get('stfl', ''))

def gen(**kw):
    s = G(**kw)
    a = s.a
    depth = kw.get('depth', 20)
    NT = kw.get('nt', 'nt')
    npq = kw.get('npq', 2); gapq = kw.get('gapq', 12); q0 = kw.get('q0', 4)
    npl = kw.get('npl', 4); gapl = kw.get('gapl', 6)
    CSC = math.log2(math.e) / math.sqrt(128)
    ONE2 = 0x3f803f80
    order = kw.get('order', '11kkkkkkkk22vvvvvvvvoooo')
    TH = {c: [i + 1 for i, x in enumerate(order) if x == c] for c in '1k2vo'}
    assert [len(TH[c]) for c in '1k2vo'] == [2, 8, 2, 8, 4]
    marks = {TH['1'][1], TH['2'][1], TH['o'][3], len(order) - (kw.get('oe') or 0), kw.get('qg') or 2} | set(TH['k'][1::2]) | set(TH['v'][1::2])
    def common():
        if s.stamps:
            for i in range(1, 16): a(f's_mov_b32 s{64+2*i}, 0')
        a('v_and_b32 v1, 63, v0\ns_lshr_b32 s5, s4, 3\ns_and_b32 s6, s4, 7')
        a(f's_mov_b32 s42, {STAMP + 0x100000 if s.stamps else WS_END}\ns_mov_b32 s43, 0x20000')
        a(f's_mov_b32 s46, {kw.get("budget", 5000000)}')
        a('v_mov_b32 v6, 1')
        a('v_lshrrev_b32 v2, 4, v1\nv_and_b32 v3, 15, v1')
    s.stamp(0)
    a('s_load_dwordx16 s[16:31], s[0:1], 0\ns_load_dwordx8 s[32:39], s[0:1], 64\ns_load_dwordx2 s[40:41], s[0:1], 96')
    a('s_lshr_b32 s4, s2, 3\ns_cmp_ge_u32 s4, 32\ns_cbranch_scc1 L_exit')
    a('v_lshrrev_b32 v2, 6, v0\nv_bfe_u32 v4, v0, 3, 3')
    a('v_lshlrev_b32 v9, 2, v0\nv_mov_b32 v8, 0\nds_write_b32 v9, v8')
    if kw.get('prefetch', True):
        a('s_getpc_b64 s[8:9]\nL_pc:')
        a('v_lshlrev_b32 v3, 7, v0\nv_min_u32 v3, L_exit-L_pc, v3\nglobal_load_dword v7, v3, s[8:9]')
    a('v_readfirstlane_b32 s7, v2')
    a('v_and_b32 v5, 6, v4\nv_xor_b32 v5, v5, v0\nv_and_b32 v5, 7, v5\nv_lshlrev_b32 v5, 4, v5')
    a('s_and_b32 s3, s2, 7\ns_cmp_ge_u32 s7, 4\ns_cbranch_scc1 L_roles')
    a('s_mov_b32 s51, 0x20000\nv_lshlrev_b32 v11, 4, v0')
    a('s_lshr_b32 s10, s4, 3\ns_lshl2_add_u32 s10, s10, s7\ns_lshl_b32 s10, s10, 18\ns_xor_b32 s11, s4, ' + str(kw.get('rq', 0)) + '\ns_and_b32 s11, s11, 7\ns_lshl3_add_u32 s11, s3, s11\ns_lshl_b32 s11, s11, 7\ns_add_u32 s10, s10, s11')
    a(f's_bfm_b32 s50, 1, 22\ns_movk_i32 s12, 0x7e00\ns_lshl_b32 s12, s12, 1\nv_lshl_add_u32 v10, v4, 13, v5\ns_lshl_b32 m0, s7, 12\ns_addk_i32 m0, {WA}')
    a('s_waitcnt lgkmcnt(0)')
    a('s_mov_b32 s48, s22\ns_mov_b32 s49, s23')
    a('global_load_dwordx4 v[12:15], v11, s[16:17]')
    for r in range(4):
        a(f'buffer_load_dwordx4 v10, s[48:51], s10 offen offset:{r*1024} {NT} lds')
        if r < 3: a('s_add_u32 s10, s10, s12')
    a('s_load_dword s44, s[40:41], 0')
    a('s_barrier\ns_branch L_C')
    a('L_roles:')
    a('s_barrier')
    common()
    a('s_cmp_eq_u32 s7, 6\ns_cbranch_scc1 L_L')
    ns = kw.get('nsamp', 1)
    a(f's_lshr_b32 s10, s2, 6\ns_lshl1_add_u32 s10, s10, s7\ns_lshl_b32 s10, s10, 6\ns_and_b32 s11, s2, 63\ns_add_u32 s10, s10, s11\ns_lshl_b32 s10, s10, 7\ns_add_u32 s10, s10, {WS_T - 4*8192}')
    a('s_waitcnt lgkmcnt(0)')
    if kw.get('pd'): a(f's_sleep {kw["pd"]}')
    a('s_memtime s[12:13]\ns_load_dword s11, s[40:41], s10')
    if ns == 2: a('s_add_u32 s10, s10, 0x10000\ns_waitcnt lgkmcnt(0)\ns_load_dword s11, s[40:41], s10')
    a('s_waitcnt lgkmcnt(0)\ns_memtime s[14:15]\ns_lshl_b32 s10, s7, 2\nv_mov_b32 v10, s10\ns_waitcnt lgkmcnt(0)')
    a(f's_sub_u32 s12, s14, s12\nv_mov_b32 v11, s12\nds_write_b32 v10, v11 offset:{T_A - 16}')
    a('s_cmp_eq_u32 s7, 4\ns_cbranch_scc1 L_P\ns_branch L_M\nL_L:')
    rq, r2 = kw.get('rq', 0), kw.get('r2', 0)
    s.mlp_slot(10, 11)
    a('s_cselect_b32 s11, 64, 0\ns_cselect_b32 s8, 30, 15')
    a('v_and_b32 v14, s11, v5\nv_lshl_add_u32 v14, v14, 24, v5\nv_mul_u32_u24 v32, 3584, v4\nv_add_u32 v32, v32, v14')
    for r in range(1, 4): a(f'v_add_u32 v{32+r}, {r*(8*3584-1024)}, v32')
    a('v_xor_b32 v14, v3, v2\nv_lshlrev_b32 v14, 4, v14\nv_lshl_add_u32 v18, v2, 8, v14')
    for r in range(1, 4): a(f'v_xor_b32 v{18+r}, {r*64}, v18\nv_add_u32 v{18+r}, {r*7168}, v{18+r}')
    a(f's_mov_b32 s50, {512*3584}\ns_mov_b32 s51, 0x20000\ns_lshl_b32 s8, 1, s8')
    a(f's_mul_i32 s12, s6, {64*3584}\ns_lshl_b32 s11, s10, 6\ns_add_u32 s12, s12, s11')
    a(f's_lshl_b32 s13, s5, 23\ns_lshl_b32 s11, s3, 20\ns_add_u32 s13, s13, s11\ns_lshl_b32 s11, s6, 10\ns_add_u32 s13, s13, s11\ns_add_u32 s13, s13, {3072*256}')
    a('s_bfm_b32 s54, 1, 25\ns_mov_b32 s55, s51\ns_mov_b32 s14, s13')
    a('s_waitcnt lgkmcnt(0)')
    s.stamp(1)
    dg = depth // 4
    segs = {'1': (32, 48, 28, 12, 32 * 3584, W1), 'k': (18, 52, 18, 13, 32768, KB), 'v': (22, 56, 20, 14, 32768, VB),
            '2': (26, 60, 32, 15, 's8', W2), 'o': (26, 96, 24, 9, 32768, WO)}
    def P_(x): return [int(c, 16) for c in x] if x else [dg] * len(order)
    prof = P_(kw.get('prof'))
    first_wait = min(gi for gi in range(len(order)) if gi + 1 > prof[gi])
    def loader(prof, g0, g1, cnt):
        landed = 0
        for gi in range(g0, g1):
            c = order[gi]
            vr, sd, ptr, so, step, lds = segs[c]
            assert gi >= first_wait or c in '1k'
            if cnt[c] == 0 and c in '1k': s.srd(sd, ptr)
            a(f's_mov_b32 m0, {lds + cnt[c] * 4096}')
            if cnt[c]: a(f's_add_u32 s{so}, s{so}, {step}')
            while landed < gi + 1 - prof[gi]:
                landed += 1
                if landed in marks or landed == gi + 1 - prof[gi]:
                    a(f's_waitcnt vmcnt({(gi-landed)*4})')
                if landed in marks:
                    a(f'v_mov_b32 v30, {landed}\nds_write_b32 v8, v30 offset:{C_G}')
                    if landed == TH['v'][7]: s.stamp(6)
            for r in range(4):
                a(f'buffer_load_dwordx4 v{vr+r}, s[{sd}:{sd+3}], s{so} offen offset:{r*1024} {NT} lds')
            cnt[c] += 1
        if g1 < len(order): return
        for n in range(landed + 1, len(order) + 1):
            if n in marks:
                if n == len(order) and n != TH['v'][7]:
                    a('s_waitcnt vmcnt(0)')
                else:
                    a(f'v_mov_b32 v30, {n}\ns_waitcnt vmcnt({(len(order)-n)*4})\nds_write_b32 v8, v30 offset:{C_G}')
                if n == TH['v'][7]: s.stamp(6)
        s.stamp(7)
        a('s_barrier\ns_branch L_end')
    cnt = {c: 0 for c in segs}
    loader(prof, 0, first_wait, cnt)
    a('v_lshlrev_b32 v14, 1, v2\nv_xor_b32 v14, v3, v14\nv_lshlrev_b32 v14, 4, v14\nv_lshl_add_u32 v22, v2, 8, v14')
    a(f'v_xor_b32 v23, 128, v22\nv_add_u32 v24, {2*7168}, v22\nv_add_u32 v25, {3*7168}, v23\nv_add_u32 v23, 7168, v23')
    a('v_lshl_add_u32 v26, v4, 10, v5')
    for r in range(1, 4): a(f'v_add_u32 v{26+r}, {r*7168}, v26')
    a(f's_mov_b32 s58, s54\ns_mov_b32 s59, s51\ns_mov_b32 s62, {1792*1024}\ns_mov_b32 s63, s51\ns_bfm_b32 s98, 1, 22\ns_mov_b32 s99, s51')
    s.srd(56, 20); s.srd(60, 32); s.srd(96, 24)
    a(f's_add_u32 s11, s6, {r2}\ns_and_b32 s11, s11, 7\ns_lshl_b32 s11, s11, 7\ns_lshl_b32 s15, s10, 15\ns_add_u32 s15, s15, s11')
    a('s_lshl2_add_u32 s9, s3, s5\ns_lshl_b32 s9, s9, 17\ns_lshl_b32 s11, s6, 7\ns_add_u32 s9, s9, s11')
    s.stamp(2)
    if kw.get('lq'): s.wait_flag(C_QP if kw['lq'] == 1 else C_HP, 4, sleep=1)
    cnt2 = dict(cnt)
    if kw.get('prof2'):
        if kw.get('gm'): a(f's_bitcmp1_b32 {kw["gm"]}, s3\ns_cbranch_scc1 L_L2')
        if kw.get('jm'): a(f's_bitcmp1_b32 {kw["jm"]}, s6\ns_cbranch_scc1 L_L2')
    loader(prof, first_wait, len(order), cnt)

    if kw.get('shift'): a('s_nop 0')
    a('L_C:')
    a('s_setprio 2')
    common()
    s.stamp(1)
    if 'C' in kw.get('kill', ''): a('s_waitcnt vmcnt(0)\ns_branch L_end')
    a('v_bfe_u32 v4, v1, 2, 2\nv_and_b32 v5, 3, v1')
    a(f's_mul_i32 s11, s7, {XS}\ns_add_u32 s11, s11, {XN}')
    a('v_lshrrev_b32 v10, 2, v1\nv_lshlrev_b32 v10, 6, v10\nv_and_b32 v11, 1, v1\nv_lshl_add_u32 v10, v11, 5, v10\nv_and_b32 v11, 2, v1\nv_lshl_add_u32 v10, v11, 2, v10\nv_add_u32 v11, s11, v10')
    a('s_mov_b32 s55, 0xffff0000')
    a('v_lshl_add_u32 v27, v2, 2, v4\nv_bfe_u32 v96, v27, 1, 2\nv_lshlrev_b32 v96, 5, v96\nv_lshl_add_u32 v96, v27, 7, v96\nv_lshl_add_u32 v96, v5, 3, v96')
    a('s_lshl_b32 s12, s7, 5\nv_xor_b32 v10, s12, v96')
    a('s_getreg_b32 s45, hwreg(HW_REG_XCC_ID, 0, 4)')
    a(f'v_mul_u32_u24 v24, {XS}, v5\nv_lshl_add_u32 v24, v2, 4, v24')
    a(f's_lshl_b32 s10, s5, 8\ns_add_u32 s10, s10, {XN}\nv_add_u32 v25, s10, v24')
    a(f's_lshl_b32 s10, s6, 7\ns_add_u32 s10, s10, {YL}\nv_add_u32 v24, s10, v24')
    a(f's_lshl_b32 s14, s3, 15\ns_lshl1_add_u32 s14, s12, s14\ns_lshl_b32 s13, s4, 8\ns_xor_b32 s58, s13, {rq*256}\ns_add_u32 s58, s14, s58\ns_add_u32 s58, s58, {WS_Q}')
    a(f's_lshl2_add_u32 s59, s13, s14\ns_add_u32 s59, s59, {WS_H}')
    a('v_lshlrev_b32 v106, 13, v3\nv_lshl_add_u32 v106, v2, 4, v106\nv_lshlrev_b32 v107, 4, v1\nv_mov_b32 v30, 0x3ff\nv_mov_b32 v31, 0xfffffc01')
    s.pack24_consts()
    a('s_mov_b32 s13, 1')
    a('s_waitcnt vmcnt(0)' if kw.get('safeB') else 's_waitcnt vmcnt(4)')
    if not kw.get('ackst'): s.stamp(2)
    a('L_ln:')
    s.layernorm(12, 16, 32)
    a(f'ds_write2_b64 v11, v[12:13], v[14:15] offset1:2\nv_add_u32 v11, {YL-XN}, v11')
    a('s_sub_u32 s13, s13, 1\ns_cbranch_scc0 L_ln')
    s.stamp(3)
    a('s_waitcnt vmcnt(0) lgkmcnt(0)')
    if kw.get('st_tile'): s.stamp(5)
    s.signal(C_WA)
    s.tag_finish()
    a(f'v_mov_b32 v111, s44\nv_mov_b32 v115, s44\nds_write_b32 v8, v111 offset:{TAGW}')
    s.wait_flag(C_WA, 4, extra=[f'ds_read_b64 v[28:29], v8 offset:{T_A}'] + [x for t in range(4) for x in (f'ds_read_b128 v[{64+4*t}:{67+4*t}], v25 offset:{t*64}',
                f'ds_read_b64_tr_b16 v[{40+4*t}:{41+4*t}], v10 offset:{WA+t*4096}', f'ds_read_b64_tr_b16 v[{42+4*t}:{43+4*t}], v10 offset:{WA+t*4096+2048}')])
    for t in range(4):
        a(f's_waitcnt lgkmcnt({9-3*t})')
        s.mfma(16, 40 + 4 * t, 64 + 4 * t, t == 0)
        if t == 0: a('v_sub_u32 v110, v28, v29\nv_min_u32 v28, v28, v29')
        if t == 1: a('v_cmp_ne_u32 vcc, 0, v28\nv_med3_i32 v110, v110, v30, v31')
        if t == 2: a('v_cndmask_b32 v110, 0, v110, vcc\nv_lshl_or_b32 v110, v110, 4, s45')
    for t in range(2): a(f'ds_read_b128 v[{80+4*t}:{83+4*t}], v24 offset:{t*64}')
    a('s_mov_b32 exec_lo, 0x000f000f\ns_mov_b32 exec_hi, 0x000f000f')
    a('v_cvt_pk_bf16_f32 v108, v16, v17\nv_cvt_pk_bf16_f32 v109, v18, v19')
    a('buffer_store_dwordx4 v[108:111], v106, s[40:43], s58 offen')
    if kw.get('qe'): s.signal(C_QP)
    else: a('s_mov_b64 exec, -1')
    if not kw.get('ackst'): s.stamp(4)
    s.wait_flag(C_G, TH['1'][1], extra=[f'ds_read_b64_tr_b16 v[{40+2*t}:{41+2*t}], v10 offset:{W1+t*2048}' for t in range(4)], sleep=1)
    for t in range(2):
        a(f's_waitcnt lgkmcnt({2-2*t})')
        s.mfma(16, 40 + 4 * t, 80 + 4 * t, t == 0)
    a('s_mov_b32 exec_lo, 0x000f000f\ns_mov_b32 exec_hi, 0x000f000f')
    s.pack24(112, 16, 17, 18, 19)
    a('buffer_store_dwordx4 v[112:115], v107, s[40:43], s59 offen')
    if kw.get('he'): s.signal(C_HP)
    else: a('s_mov_b64 exec, -1')
    if 'Q' in kw.get('kill', ''): a('s_branch L_end')
    a(f's_lshl_b32 s10, s7, 13\ns_add_u32 s10, s10, {KB}')
    a(f'v_xor_b32 v10, v2, v3\nv_lshlrev_b32 v10, 4, v10\nv_lshl_add_u32 v10, v3, 8, v10\nv_add_u32 v102, {QL}, v10\nv_add_u32 v10, s10, v10')
    a('v_xor_b32 v103, 64, v102\nv_xor_b32 v104, 128, v102\nv_xor_b32 v105, 192, v102')
    a('v_xor_b32 v11, 64, v10\nv_xor_b32 v12, 128, v10\nv_xor_b32 v13, 192, v10')
    a(f's_lshl_b32 s10, s7, 2\ns_add_u32 s10, s10, {MX}\nv_lshlrev_b32 v15, 4, v5\nv_add_u32 v24, s10, v15\nv_add_u32 v15, {MX}, v15\ns_add_u32 s10, s10, {FP-MX}\nv_mov_b32 v14, s10')
    a(f's_lshl_b32 s10, s7, 10\ns_add_u32 s10, s10, {PL}\nv_lshlrev_b32 v25, 4, v1\nv_add_u32 v26, s10, v25\nv_add_u32 v25, {PL}, v25')
    a('v_and_b32 v28, 7, v27\ns_lshl_b32 s10, s7, 1\nv_xor_b32 v28, s10, v28\nv_lshlrev_b32 v28, 5, v28\nv_lshl_add_u32 v28, v27, 8, v28\nv_lshl_add_u32 v28, v5, 3, v28')
    a(f'v_add_u32 v28, {VB}, v28\nv_xor_b32 v29, 32, v28')
    a(f's_lshr_b32 s10, s7, 1\ns_lshl_b32 s11, s10, 13\ns_add_u32 s11, s11, {WO}')
    a('v_add_u32 v96, s11, v96\nv_xor_b32 v97, 32, v96\nv_xor_b32 v98, 64, v96\nv_xor_b32 v99, 96, v96')
    a('v_lshlrev_b32 v30, 14, v3\nv_lshl_add_u32 v30, v2, 8, v30')
    a(f's_lshl_b32 s14, s3, 16\ns_add_u32 s14, s14, {WS_O}')
    a('s_lshr_b32 s11, s4, 4\ns_lshl2_add_u32 s11, s11, s7\ns_lshl_b32 s11, s11, 11\ns_and_b32 s12, s4, 15\ns_lshl4_add_u32 s11, s12, s11')
    a('v_lshlrev_b32 v31, 4, v1')
    a('v_lshlrev_b32 v101, 11, v2\nv_lshl_add_u32 v101, v3, 4, v101\nv_add_u32 v101, 768, v101')
    a('s_lshl_b32 s15, s5, 14\ns_add_u32 s15, s15, s14\ns_lshl_b32 s10, s10, 12\ns_add_u32 s15, s15, s10\ns_and_b32 s10, s7, 1\ns_lshl_b32 s12, s10, 13\ns_add_u32 s15, s15, s12')
    a('s_add_u32 s14, s14, s11')
    a(f'v_lshlrev_b32 v100, 9, v2\nv_lshl_add_u32 v100, v3, 4, v100\nv_add_u32 v100, {RED}, v100')
    a(f's_lshr_b32 s10, s3, 1\ns_lshl2_add_u32 s56, s6, s10\ns_and_b32 s10, s3, 1\ns_lshl2_add_u32 s56, s56, s10\ns_lshl2_add_u32 s56, s56, s5\ns_lshl_b32 s56, s56, 10\ns_add_u32 s56, s56, {WS_S}\ns_add_u32 s63, s56, 8192')
    a('v_lshrrev_b32 v119, 1, v1\nv_lshlrev_b32 v119, 10, v119\nv_and_b32 v16, 1, v1\nv_lshl_add_u32 v119, v16, 4, v119')
    a(f's_lshl_b32 s60, s3, 15\ns_lshl_b32 s11, s4, 5\ns_add_u32 s60, s60, s11\ns_add_u32 s62, s60, {WS_M}\ns_add_u32 s60, s60, {WS_S}')
    a('v_lshl_add_u32 v117, v2, 13, v119')
    a(f's_lshl_b32 s60, s3, 16\ns_add_u32 s60, s60, s11\ns_add_u32 s60, s60, {WS_S}')
    a(f's_mov_b32 s13, {hex(f2u(CSC))}')
    a('s_mov_b32 s12, s13')
    for k in range(4): a(f'v_mov_b32 v{124+k}, {hex(ONE2)}')
    kt = TH['k'][1::2]
    a(f's_lshl_b32 s57, s7, 3\ns_lshr_b32 s57, {kt[0] | kt[1] << 8 | kt[2] << 16 | kt[3] << 24}, s57\ns_and_b32 s57, s57, 0xff')
    if not kw.get('qe'):
        a('s_waitcnt vmcnt(1)')
        s.signal(C_QP)
    if not kw.get('he'):
        a('s_waitcnt vmcnt(0)')
        s.signal(C_HP)
    s.wait_flag(C_G, 's57', sleep=1)
    for u in range(2):
        for t in range(4):
            a(f'ds_read_b128 v[{32+16*u+4*t}:{35+16*u+4*t}], v{10+t} offset:{u*4096}')
    if not kw.get('st_tile') and not kw.get('ackst'): s.stamp(5)
    s.wait_flag(F_Q, 1, extra=[f'ds_read_b128 v[{64+4*t}:{67+4*t}], v{102+t}' for t in range(4)])
    s.stamp(6)
    a('v_readfirstlane_b32 s47, v9')
    a('s_cmp_lg_u32 s47, 1\ns_cbranch_scc1 L_qrem')
    a('L_qgo:')
    WB = 128; VR = 160; DR = 192
    vrd = lambda t: [f'ds_read_b64_tr_b16 v[{VR+8*t+4*T+2*u}:{VR+1+8*t+4*T+2*u}], v{28+T} offset:{t*8192+u*4096}' for T in range(2) for u in range(2)]
    cw = lambda n: 0 if (s.stamps and not kw.get('lean')) else n
    DP = lambda op, d, x, y, m, rm='0xf': f'{op}_dpp {d}, {x}, {y} {m} row_mask:{rm} bank_mask:0xf'
    spec = [f'ds_read_b32 v9, v8 offset:{C_G}'] + vrd(0) + vrd(1) + vrd(2)
    for u in range(2):
        for t in range(4):
            if u == 0: a(f's_waitcnt lgkmcnt({3-t})')
            s.mfma(16 + 4 * u, 32 + 16 * u + 4 * t, 64 + 4 * t, t == 0)
            if u == 1 or t == 3:
                for _ in range(2): a(spec.pop(0))
    for x in spec: a(x)
    for u in range(2):
        for k in range(4): a(DP('v_add_f32', f'v{16+4*u+k}', f'v{16+4*u+k}', f'v{16+4*u+k}', 'row_ror:4'))
        for k in range(4): a(DP('v_add_f32', f'v{16+4*u+k}', f'v{16+4*u+k}', f'v{16+4*u+k}', 'row_ror:8'))
        if u == 0: a('v_max3_f32 v10, v16, v17, v18')
    a('v_max3_f32 v10, v10, v19, v20\nv_max3_f32 v11, v21, v22, v23\nv_max_f32 v10, v10, v11\nv_max_f32 v11, v10, v11')
    a('v_mov_b32 v40, s44\nv_mov_b32 v47, s44')
    a('v_permlane16_swap_b32 v11, v10\nv_max_f32 v10, v11, v10\nv_max_f32 v11, v11, v10')
    a(f'v_mov_b32 v123, s44\nds_read_b32 v118, v8 offset:{C_G}')
    a('v_permlane32_swap_b32 v11, v10\nv_max_f32 v10, v11, v10\nv_mul_f32 v116, s13, v10\nv_or_b32 v116, 1, v116')
    for k in range(4): a(f'v_pk_fma_f32 v[{16+2*k}:{17+2*k}], v[{16+2*k}:{17+2*k}], s[12:13], v[116:117] op_sel_hi:[1,1,0] neg_lo:[0,0,1] neg_hi:[0,0,1]')
    v3 = vrd(3)
    for k in range(8):
        a(f'v_exp_f32 v{16+k}, v{16+k}')
        if k & 1: a(v3.pop(0))
    for k in range(4): a(f'v_cvt_pk_bf16_f32 v{32+k}, v{16+2*k}, v{17+2*k}')
    a('ds_write_b128 v26, v[32:35]\nds_write_b32 v24, v116')
    a('L_pw:')
    a('ds_read_b128 v[112:115], v15')
    for t in range(4): a(f'ds_read_b128 v[{64+4*t}:{67+4*t}], v25 offset:{t*1024}')
    s.budget()
    a(f's_waitcnt lgkmcnt({cw(4)})\nv_min3_u32 v11, v112, v113, v114\nv_max3_f32 v41, v112, v113, v114\nv_min_u32 v11, v11, v115\nv_cmp_eq_u32 vcc, 0, v11\nv_max_f32 v41, v41, v115\ns_cbranch_vccnz L_pw')
    s.stamp(7)
    def wo_reads(kss=(0, 1)):
        for ks in kss:
            for T in range(4):
                for u in range(2):
                    r = WB + 16 * ks + 4 * T + 2 * u
                    a(f'ds_read_b64_tr_b16 v[{r}:{r+1}], v{96+T} offset:{ks*4096+u*2048}')
    early = False
    a(f'v_cmp_gt_u32 vcc, {TH["v"][5]}, v9\ns_cbranch_vccz L_v012')
    s.wait_flag(C_G, TH['v'][5], extra=vrd(0) + vrd(1) + vrd(2), sleep=2)
    a('s_waitcnt lgkmcnt(0)')
    a('L_v012:')
    PK = lambda t, T, h: (f'v_pk_mul_f32 v[{16+4*T+2*h}:{17+4*T+2*h}], v[{DR+4*T+2*h}:{DR+1+4*T+2*h}], v[32:33] op_sel_hi:[1,0]' if t == 0 else
                          f'v_pk_fma_f32 v[{16+4*T+2*h}:{17+4*T+2*h}], v[{DR+8*t+4*T+2*h}:{DR+1+8*t+4*T+2*h}], v[{32+2*t}:{33+2*t}], v[{16+4*T+2*h}:{17+4*T+2*h}] op_sel_hi:[1,0,1]')
    fill = [f'v_sub_f32 v{32+2*t}, v{112+t}, v41' for t in range(4)] + [f'v_exp_f32 v{32+2*t}, v{32+2*t}' for t in range(4)]
    fill += [PK(t, T, h) for t in range(3) for T in range(2) for h in range(2)]
    for t in range(3):
        a(f's_waitcnt lgkmcnt({3-t})')
        for T in range(2):
            s.mfma(DR + 8 * t + 4 * T, VR + 8 * t + 4 * T, 64 + 4 * t, True)
            for _ in range(2 if t == 0 else 1): a(fill.pop(0))
    a('s_waitcnt lgkmcnt(0)')
    for t in range(4):
        s.mfma(48 + 4 * t, 124, 64 + 4 * t, True)
        for _ in range(2): a(fill.pop(0))
    a(f'v_cmp_gt_u32 vcc, {TH["v"][7]}, v118\ns_cbranch_vccz L_v3')
    s.wait_flag(C_G, TH['v'][7], extra=vrd(3))
    a('L_v3:')
    if not kw.get('ind'): s.stamp(8)
    for T in range(2):
        a(f's_waitcnt lgkmcnt({2-2*T})')
        s.mfma(DR + 24 + 4 * T, VR + 24 + 4 * T, 76, True)
    for x in fill: a(x)
    a('v_mul_f32 v46, v48, v32\nv_fmac_f32 v46, v52, v34\nv_fmac_f32 v46, v56, v36\nv_fmac_f32 v46, v60, v38')
    for T in range(2):
        for h in range(2): a(PK(3, T, h))
    a('s_mov_b32 exec_lo, 0x000f000f\ns_mov_b32 exec_hi, 0x000f000f\ns_cmp_eq_u32 s47, 1')
    for k in range(4): a(f'v_cvt_pk_bf16_f32 v{42+k}, v{16+2*k}, v{17+2*k}')
    a('s_cbranch_scc0 L_orem')
    a('buffer_store_dwordx4 v[40:43], v30, s[40:43], s14 offen\nbuffer_store_dwordx4 v[44:47], v30, s[40:43], s14 offen offset:1024')
    a('L_ost:')
    a('s_mov_b64 exec, -1')
    s.stamp(9)
    if kw.get('ackst'):
        a('s_waitcnt vmcnt(0)')
        s.stamp(5)
    if 'D' in kw.get('kill', ''): a('s_branch L_end')
    if kw.get('od0'): a(f's_sleep {kw["od0"]}')
    OE = kw.get('oe')
    if OE is not None:
        if OE: s.wait_flag(C_G, len(order) - OE)
    elif kw.get('obar'): a('s_barrier')
    if kw.get('ind'):
        if not early:
            s.wait_flag(C_G, TH['o'][3])
            wo_reads()
            early = True
        a('s_mov_b32 exec_hi, 0')
        a('L_ipoll:')
        a('buffer_load_dword v48, v101, s[40:43], s15 offen offset:1036 sc1')
        s.budget()
        if kw.get('isl'):
            a(f's_waitcnt vmcnt(0)\nv_cmp_ne_u32 vcc, s44, v48\ns_cbranch_vccz L_idone\ns_sleep {kw["isl"]}\ns_branch L_ipoll\nL_idone:')
        else:
            a('s_waitcnt vmcnt(0)\nv_cmp_ne_u32 vcc, s44, v48\ns_cbranch_vccnz L_ipoll')
        a('s_mov_b32 exec_hi, -1')
        s.stamp(8)
    for k in range(4): a(f'buffer_load_dwordx4 v[{48+4*k}:{51+4*k}], v31, s[40:43], s15 offen offset:{k*1024} sc1')
    if OE == 1 and kw.get('wsplit'):
        wo_reads((0,))
        a('s_barrier')
        wo_reads((1,))
        a(f'ds_read_b32 v9, v8 offset:{F_K}')
    else:
        if OE is not None: a('s_barrier')
        a(f'ds_read_b32 v9, v8 offset:{F_K}')
        wo_reads()
    if s.stamps:
        if kw.get('ackst'):
            a('s_waitcnt vmcnt(0)')
            s.stamp(2)
        a('s_mov_b32 s61, 0')
    a('s_branch L_opoll')
    a('L_oretry:')
    a('s_mov_b64 exec, vcc')
    if s.stamps: a('s_add_u32 s61, s61, 1')
    if kw.get('osl'): a(f's_sleep {kw["osl"]}')
    for k in range(4): a(f'buffer_load_dwordx4 v[{48+4*k}:{51+4*k}], v31, s[40:43], s15 offen offset:{k*1024} sc1')
    a('s_mov_b64 exec, -1')
    s.budget()
    if kw.get('al'): a('.p2align 3')
    a('L_opoll:')
    a('s_waitcnt vmcnt(0) lgkmcnt(0)')
    a('v_xor_b32 v10, s44, v48\nv_bitop3_b32 v10, v55, s44, v10 bitop3:0xbe\nv_bitop3_b32 v10, v56, s44, v10 bitop3:0xbe\nv_bitop3_b32 v10, v63, s44, v10 bitop3:0xbe')
    a('v_cmp_ne_u32 vcc, 0, v10\ns_cbranch_vccnz L_oretry')
    s.stamp(11)
    if s.stamps: a('s_mul_i32 s61, s61, 100\ns_add_u32 s70, s64, s61')
    M8 = ('quad_perm:[1,0,3,2]', 'quad_perm:[2,3,0,1]', 'row_half_mirror')
    D = lambda op, d, x, y, m, rm='0xf': f'{op}_dpp {d}, {x}, {y} {m} row_mask:{rm} bank_mask:0xf'
    R = lambda m, rm: f'v_mov_b32_dpp v23, v21 {m} row_mask:{rm} bank_mask:0xf'
    wv = [D('v_max_f32', 'v20', 'v49', 'v49', M8[0]), None, D('v_max_f32', 'v20', 'v20', 'v20', M8[1]), None, D('v_max_f32', 'v20', 'v20', 'v20', M8[2]),
          'v_sub_f32 v21, v49, v20', 'v_exp_f32 v21, v21', None, 'v_mul_f32 v22, v54, v21', 'v_mov_b32 v23, v21', None,
          D('v_add_f32', 'v22', 'v22', 'v22', M8[0]), R('row_ror:12', '0x2'), None, D('v_add_f32', 'v22', 'v22', 'v22', M8[1]), R('row_ror:8', '0x4'), None,
          D('v_add_f32', 'v22', 'v22', 'v22', M8[2]), R('row_ror:4', '0x8'), 'v_rcp_f32 v22, v22', None]
    mf = [(32 + 4 * T, 50 + 8 * ks, WB + 16 * ks + 4 * T, ks == 0) for ks in range(2) for T in range(4)]
    s.mfma(*mf.pop(0))
    for x in wv:
        if x is None: s.mfma(*mf.pop(0))
        else: a(x)
    assert not mf
    a('v_mul_f32 v21, v22, v23')
    a(D('v_mul_f32', 'v21', 'v22', 'v23', 'row_ror:8', '0xc'))
    for T in range(4): a(D('v_mul_f32', f'v{16+T}', 'v21', f'v{32+4*T}', 'row_newbcast:0'))
    for r in range(1, 4):
        for T in range(4): a(D('v_fmac_f32', f'v{16+T}', 'v21', f'v{32+4*T+r}', f'row_newbcast:{r}'))
    a(f'ds_write_b128 v26, v[16:19] offset:{RED-PL}')
    a('v_add_u32 v117, v117, v9\ns_cmp_lg_u32 s7, 0')
    a('s_waitcnt lgkmcnt(0)\ns_barrier')
    s.stamp(12)
    a('s_cbranch_scc1 ' + ('L_wb' if kw.get('fw') else 'L_end'))
    for k in range(4): a(f'ds_read_b128 v[{48+4*k}:{51+4*k}], v100 offset:{(k>>1)*2048+(k&1)*256}')
    a('s_waitcnt lgkmcnt(2)')
    a('v_pk_add_f32 v[48:49], v[48:49], v[52:53]\nv_pk_add_f32 v[50:51], v[50:51], v[54:55]')
    a('s_waitcnt lgkmcnt(1)')
    a('v_pk_add_f32 v[48:49], v[48:49], v[56:57]\nv_pk_add_f32 v[50:51], v[50:51], v[58:59]')
    a('s_waitcnt lgkmcnt(0)')
    a('v_pk_add_f32 v[48:49], v[48:49], v[60:61]\nv_pk_add_f32 v[50:51], v[50:51], v[62:63]')
    s.pack24(120, 48, 49, 50, 51)
    a('buffer_store_dwordx4 v[120:123], v31, s[40:43], s56 offen sc1\nbuffer_store_dwordx4 v[120:123], v31, s[40:43], s63 offen sc1')
    s.stamp(13)
    fw = kw.get('fw', 0)
    if fw:
        a('s_branch L_end')
        a('L_wb:')
        a(f's_cmp_lg_u32 s7, {fw}\ns_cbranch_scc1 L_end')
        if kw.get('d0'): a(f's_sleep {kw["d0"]}')
    LA = 'buffer_load_dwordx4 v[16:19], v117, s[40:43], s60 offen sc1'
    LB_ = 'buffer_load_dwordx4 v[20:23], v117, s[40:43], s60 offen sc1'
    a('L_mpoll:')
    a('buffer_load_dwordx4 v[32:35], v119, s[40:43], s62 offen sc1')
    a(f'v_lshlrev_b32 v14, 3, v1\nv_add_u32 v14, {GX}, v14\nds_read_b64 v[12:13], v14')
    s.unpack24_consts()
    s.srd_const(48, 4096); s.srd(48, 36)
    a('s_mov_b32 s56, 0x00030003\ns_mov_b32 s57, s56')
    a('v_and_b32 v11, 1, v1\nv_lshlrev_b32 v14, 5, v2\nv_lshl_add_u32 v14, v11, 1, v14')
    a('s_lshl_b32 s11, s5, 10\ns_lshl_b32 s12, s3, 7\ns_add_u32 s11, s11, s12\ns_lshl2_add_u32 s11, s6, s11')
    if kw.get('d1'): a(f's_sleep {kw["d1"]}')
    a(LA)
    if kw.get('d2'): a(f's_sleep {kw["d2"]}')
    a(LB_)
    s.budget()
    a('s_waitcnt vmcnt(2)\nv_cmp_ne_u32 vcc, s44, v35\ns_cbranch_vccnz L_mpoll')
    s.stamp(10)
    s.unpack24(32)
    s.reduce32(32)
    a('s_waitcnt lgkmcnt(0)')
    s.round_bf16('v32')
    a('v_add_f32 v32, v32, v12')
    s.round_bf16('v32')
    a(f'v_mul_f32 v33, {hex(f2u(-math.log2(math.e)))}, v32\nv_exp_f32 v33, v33\nv_add_f32 v33, 1.0, v33\nv_rcp_f32 v33, v33\nv_mul_f32 v12, v32, v33')
    s.round_bf16('v12')
    a('L_fpoll:')
    a('s_waitcnt vmcnt(1)\nv_cmp_ne_u32 vcc, s44, v19\ns_cbranch_vccz L_fdone')
    a(LA)
    s.budget()
    a('s_waitcnt vmcnt(1)\nv_cmp_ne_u32 vcc, s44, v23\ns_cbranch_vccz L_fdoneB')
    if kw.get('d3'): a(f's_sleep {kw["d3"]}')
    a(LB_ + '\ns_branch L_fpoll')
    def finish(r):
        s.stamp(14)
        s.unpack24(r)
        s.reduce32(r)
        if kw.get('exactfin', 0):
            s.round_bf16(f'v{r}')
            a(f'v_mul_f32 v{r}, v{r}, v12')
            s.round_bf16(f'v{r}')
            a(f'v_add_f32 v{r}, v{r}, v13')
        else:
            a(f'v_fma_f32 v{r}, v{r}, v12, v13')
        a('s_mov_b64 exec, s[56:57]')
        a(f'v_cvt_pk_bf16_f32 v{r}, v{r}, v{r}')
        a(f'buffer_store_short v{r}, v14, s[48:51], s11 offen')
    a('L_fdoneB:')
    finish(20)
    a('s_branch L_epoch')
    a('L_fdone:')
    finish(16)
    a('L_epoch:')
    s.stamp(15)
    a('s_cmp_lg_u32 s2, 0\ns_cbranch_scc1 L_end')
    a('s_mov_b64 exec, 1\nbuffer_store_dword v123, v8, s[40:43], 0 offen')
    a('s_branch L_end')

    a('L_qrem:')
    a('s_mov_b32 exec_lo, 0x000f000f\ns_mov_b32 exec_hi, 0x000f000f')
    a('buffer_store_dwordx4 v[108:111], v106, s[40:43], s58 offen sc1\nbuffer_store_dwordx4 v[112:115], v107, s[40:43], s59 offen sc1')
    a('s_mov_b64 exec, -1')
    a('L_qrem2:')
    a(f'ds_read_b32 v9, v8 offset:{F_Q}')
    for t in range(4): a(f'ds_read_b128 v[{64+4*t}:{67+4*t}], v{102+t}')
    s.budget()
    a('s_waitcnt lgkmcnt(0)\nv_readfirstlane_b32 s47, v9\ns_cmp_eq_u32 s47, 4\ns_cbranch_scc0 L_qgo\ns_sleep 2\ns_branch L_qrem2')
    if kw.get('wb') is not None:
        a('L_wb:')
        a(f's_cmp_lg_u32 s7, 1\ns_cbranch_scc1 L_end\ns_and_b32 s10, s4, {kw["wb"]}\ns_cbranch_scc1 L_end')
        if kw.get('wbd'): a(f's_sleep {kw["wbd"]}')
        a('buffer_wbl2 sc1\ns_branch L_end')
    a('L_orem:')
    a('buffer_store_dwordx4 v[40:43], v30, s[40:43], s14 offen sc1\nbuffer_store_dwordx4 v[44:47], v30, s[40:43], s14 offen offset:1024 sc1')
    a('s_branch L_ost')
    if kw.get('prof2'):
        a('L_L2:')
        loader(P_(kw['prof2']), first_wait, len(order), cnt2)
    a('L_P:')
    if 'P' in kw.get('kill', ''): a('s_waitcnt lgkmcnt(0)\ns_branch L_end')
    a('s_setprio 3')
    a('s_getreg_b32 s45, hwreg(HW_REG_XCC_ID, 0, 4)')
    a('v_and_b32 v5, 3, v1')
    a(f's_lshl_b32 s10, s3, 15\ns_lshl_b32 s12, s4, 10\ns_add_u32 s12, s12, s10')
    a('s_waitcnt lgkmcnt(0)')
    if kw.get('warmq'):
        a(f'v_and_b32 v10, 7, v1\nv_lshlrev_b32 v10, 7, v10\nv_and_b32 v11, 8, v1\nv_lshl_add_u32 v10, v11, 15, v10\ns_add_u32 s11, s12, {WS_Q}')
        a(f's_mov_b64 exec, {0xff if kw["warmq"] == 1 else 0xffff}\nbuffer_load_dword v7, v10, s[40:43], s11 offen {kw.get("warmqfl", "")}\ns_mov_b64 exec, -1')
    a(f's_lshl_b32 s11, s5, 13\ns_add_u32 s10, s10, s11\ns_add_u32 s10, s10, {WS_Q}\ns_add_u32 s15, s10, 4096')
    a('v_lshlrev_b32 v10, 4, v1')
    a(f'v_lshrrev_b32 v11, 5, v1\nv_and_b32 v12, 31, v1\nv_lshlrev_b32 v13, 3, v12\nv_lshlrev_b32 v14, 4, v11\nv_xor_b32 v13, v13, v14\nv_lshl_add_u32 v13, v11, 8, v13\nv_add_u32 v22, {QL}, v13')
    for c in range(1, 8): a(f'v_xor_b32 v{22+c}, {c*32}, v22')
    a(f's_mov_b32 s14, {kw.get("nfast", 48)}')
    a('s_waitcnt lgkmcnt(0)')
    s.stamp(1)
    if 'W' in kw.get('kill', ''): a('s_branch L_end')
    if kw.get('qs'): a(f's_sleep {kw["qs"]}')
    if kw.get('qg'): s.wait_flag(C_G, kw['qg'], sleep=1)
    s.wait_flag(C_QP, 4, sleep=1, extra=[f'ds_read_b32 v15, v8 offset:{TAGW}'])
    a('s_waitcnt lgkmcnt(0)\nv_readfirstlane_b32 s44, v15')
    if q0: a(f's_sleep {q0}')
    s.stamp(2)
    a('L_qpoll:')
    for c in range(8): a(f'buffer_load_dwordx4 v[{32+4*c}:{35+4*c}], v10, s[40:43], s{10 if c < 4 else 15} offen offset:{(c&3)*1024} sc1')
    s.budget()
    a('s_waitcnt vmcnt(0)')
    a('v_xor_b32 v15, s44, v35')
    for c in range(1, 8): a(f'v_bitop3_b32 v15, v{35+4*c}, s44, v15 bitop3:0xbe')
    a('v_cmp_ne_u32 vcc, 0, v15\ns_cbranch_vccz L_qgot')
    a(f's_mov_b64 exec, vcc\ns_sub_u32 s14, s14, 1\ns_cbranch_scc0 L_qpoll')
    a(f'v_mov_b32 v15, 4\nds_write_b32 v8, v15 offset:{F_Q}\ns_branch L_qpoll')
    a('L_qgot:')
    a('s_mov_b64 exec, -1')
    a('v_xor_b32 v15, s45, v34')
    for c in range(8):
        a(f'ds_write_b64 v{22+c}, v[{32+4*c}:{33+4*c}] offset:{c*512}')
        if c < 7: a(f'v_bitop3_b32 v15, v{38+4*c}, s45, v15 bitop3:0xbe')
    a('v_and_b32 v15, 15, v15\nv_cmp_ne_u32 vcc, 0, v15\ns_cmp_eq_u64 vcc, 0\ns_cselect_b32 s47, 1, 2')
    if kw.get('force_remote'): a('s_mov_b32 s47, 2')
    a(f'v_mov_b32 v15, s47\nds_write_b32 v8, v15 offset:{F_Q}')
    s.stamp(3)
    a('v_add3_u32 v16, v34, v38, v42\nv_add3_u32 v17, v46, v50, v54\nv_add3_u32 v16, v16, v58, v62\nv_add_u32 v16, v16, v17')
    for m in ('quad_perm:[1,0,3,2] row_mask:0xf', 'quad_perm:[2,3,0,1] row_mask:0xf', 'row_half_mirror row_mask:0xf', 'row_mirror row_mask:0xf', 'row_bcast:15 row_mask:0xa', 'row_bcast:31 row_mask:0xc'):
        a(f'v_add_u32_dpp v16, v16, v16 {m} bank_mask:0xf')
    a('v_readlane_b32 s10, v16, 63\ns_cmp_lt_i32 s10, 0\ns_cselect_b32 s10, 0, 8192')
    if kw.get('kflip'): a('s_xor_b32 s10, s10, 8192')
    a(f'v_mov_b32 v15, s10\nds_write_b32 v8, v15 offset:{F_K}')
    a(f's_lshl_b32 s11, s12, 1\ns_add_u32 s11, s11, {WS_O}')
    a(f's_lshl2_add_u32 s12, s3, s5\ns_lshl4_add_u32 s12, s12, s6\ns_lshl_b32 s12, s12, 10\ns_add_u32 s12, s12, s10\ns_add_u32 s12, s12, {WS_S - 2048}')
    a('v_lshlrev_b32 v10, 7, v1\nv_add_u32 v11, s12, v10\nv_add_u32 v10, s11, v10\nv_cmp_gt_u32 vcc, 16, v1\nv_cndmask_b32 v10, v11, v10, vcc')
    a('s_mov_b64 exec, 0xffffff\nbuffer_load_dword v7, v10, s[40:43], 0 offen')
    a('s_branch L_end')

    a('L_M:')
    if kw.get('mprio') is not None: a(f's_setprio {kw["mprio"]}\ns_branch L_M2')
    if 'M' in kw.get('kill', ''): a('s_waitcnt lgkmcnt(0)\ns_branch L_end')
    a('s_setprio 3')
    a('L_M2:')
    a('v_bfe_u32 v4, v1, 2, 2\nv_and_b32 v5, 3, v1')
    a('v_lshl_add_u32 v10, v4, 2, v2')
    a('v_lshlrev_b32 v11, 3, v10')
    a('v_lshlrev_b32 v10, 4, v1')
    s.mlp_slot(11, 15)
    a('s_lshl3_add_u32 s15, s5, s3\ns_lshl_b32 s11, s11, 6')
    a('v_and_b32 v24, 1, v1\nv_lshlrev_b32 v25, 5, v2\nv_lshl_add_u32 v25, v24, 1, v25')
    a('s_lshl_b32 s12, s3, 7\ns_lshl2_add_u32 s12, s6, s12\ns_lshl_b32 s13, s5, 10\ns_add_u32 s13, s13, s12')
    s.srd_const(56, 3584); s.srd_const(60, 1024); s.srd_const(96, 4096)
    a('s_waitcnt lgkmcnt(0)')
    s.srd(56, 30); s.srd(60, 34); s.srd(96, 16)
    a('buffer_load_ushort v16, v25, s[60:63], s12 offen')
    a('buffer_load_ushort v17, v25, s[96:99], s13 offen')
    a('buffer_load_dwordx2 v[14:15], v11, s[56:59], s11 offen')
    a(f'v_mul_u32_u24 v11, {HS}, v5\nv_lshl_add_u32 v11, v2, 4, v11\nv_lshrrev_b32 v12, 1, v4\nv_lshl_add_u32 v11, v12, 6, v11\nv_and_b32 v12, 1, v4\nv_lshl_add_u32 v11, v12, 3, v11\nv_add_u32 v11, {HL}, v11')
    a(f'v_mul_u32_u24 v12, {HS}, v4\nv_lshl_add_u32 v12, v2, 4, v12\nv_add_u32 v12, {HL}, v12')
    a(f'v_lshl_add_u32 v27, v2, 2, v4\nv_bfe_u32 v28, v27, 1, 2\nv_lshlrev_b32 v28, 5, v28\nv_lshl_add_u32 v28, v27, 7, v28\nv_lshl_add_u32 v28, v5, 3, v28\nv_add_u32 v28, {W2}, v28')
    a('v_xor_b32 v29, 32, v28\nv_xor_b32 v30, 64, v28\nv_xor_b32 v31, 96, v28')
    a(f'v_lshlrev_b32 v18, 3, v1\nv_add_u32 v18, {GX}, v18')
    if kw.get('hs'): a(f's_sleep {kw["hs"]}')
    s.wait_flag(C_HP, 4, sleep=1, extra=[f'ds_read_b32 v23, v8 offset:{TAGW}'])
    a('s_waitcnt lgkmcnt(0)\nv_readfirstlane_b32 s44, v23')
    s.pack24_consts(); s.unpack24_consts()
    if kw.get('hq'): s.wait_flag(F_Q, 1, sleep=1)
    if kw.get('h0', 8): a(f's_sleep {kw.get("h0", 8)}')
    a(f's_lshl2_add_u32 s10, s3, s5\ns_lshl_b32 s10, s10, 13\ns_add_u32 s10, s10, {WS_H}\ns_add_u32 s11, s10, 4096')
    s.stamp(2)
    def hloads():
        for c in range(8): a(f'buffer_load_dwordx4 v[{32+4*c}:{35+4*c}], v10, s[40:43], s{10 + (c>>2)} offen offset:{(c&3)*1024} sc1')
    def w2reads():
        s.wait_flag(C_G, TH['2'][1], sleep=1)
        for ks in range(2):
            for T in range(4):
                for u in range(2):
                    r = 64 + 16 * ks + 4 * T + 2 * u
                    a(f'ds_read_b64_tr_b16 v[{r}:{r+1}], v{28+T} offset:{ks*4096+u*2048}')
    hloads()
    w2reads()
    a(f's_add_u32 s14, s6, {r2}\ns_and_b32 s14, s14, 7\ns_lshl_b32 s14, s14, 5\ns_add_u32 s14, s14, s15\ns_lshl_b32 s14, s14, 10\ns_add_u32 s14, s14, {WS_M}')
    a('s_branch L_hchk')
    a('L_hpoll:')
    hloads()
    s.budget()
    a('L_hchk:')
    a('s_waitcnt vmcnt(0)')
    a('v_xor_b32 v13, s44, v35')
    for c in range(1, 8): a(f'v_bitop3_b32 v13, v{35+4*c}, s44, v13 bitop3:0xbe')
    a('v_cmp_ne_u32 vcc, 0, v13\ns_cbranch_vccnz L_hpoll')
    s.stamp(3)
    for c in range(8): s.unpack24(32 + 4 * c)
    for st in (16, 8, 4):
        for r in range(32, 32 + st, 2): a(f'v_pk_add_f32 v[{r}:{r+1}], v[{r}:{r+1}], v[{r+st}:{r+st+1}]')
    a('v_cvt_pk_bf16_f32 v36, v32, v33\nv_cvt_pk_bf16_f32 v37, v34, v35')
    for k in range(2):
        a(f'v_lshlrev_b32 v{32+2*k}, 16, v{36+k}\nv_and_b32 v{33+2*k}, 0xffff0000, v{36+k}\nv_lshlrev_b32 v{40+2*k}, 16, v{14+k}\nv_and_b32 v{41+2*k}, 0xffff0000, v{14+k}')
    for k in range(4): a(f'v_add_f32 v{32+k}, v{32+k}, v{40+k}')
    a('v_cvt_pk_bf16_f32 v36, v32, v33\nv_cvt_pk_bf16_f32 v37, v34, v35')
    for k in range(2): a(f'v_lshlrev_b32 v{32+2*k}, 16, v{36+k}\nv_and_b32 v{33+2*k}, 0xffff0000, v{36+k}')
    K1 = -2 * math.sqrt(2 / math.pi) * math.log2(math.e)
    a(f'v_mov_b32 v44, {hex(f2u(K1))}')
    for k in range(4): a(f'v_mul_f32 v{36+k}, v{32+k}, v{32+k}')
    for k in range(4): a(f'v_fmamk_f32 v{36+k}, v{36+k}, {hex(f2u(K1*0.044715))}, v44')
    for k in range(4): a(f'v_mul_f32 v{36+k}, v{36+k}, v{32+k}')
    for k in range(4): a(f'v_exp_f32 v{36+k}, v{36+k}')
    for k in range(4): a(f'v_add_f32 v{36+k}, 1.0, v{36+k}')
    for k in range(4): a(f'v_rcp_f32 v{36+k}, v{36+k}')
    for k in range(4): a(f'v_mul_f32 v{32+k}, v{32+k}, v{36+k}')
    a('v_cvt_pk_bf16_f32 v40, v32, v33\nv_cvt_pk_bf16_f32 v41, v34, v35')
    a('ds_write_b64 v11, v[40:41]\nds_read_b128 v[48:51], v12\nds_read_b128 v[52:55], v12 offset:64')
    a('s_waitcnt lgkmcnt(0)')
    for ks in range(2):
        for T in range(4): s.mfma(32 + 4 * T, 48 + 4 * ks, 64 + 16 * ks + 4 * T, ks == 0)
    s.pack24(20, 32, 36, 40, 44)
    a('buffer_store_dwordx4 v[20:23], v10, s[40:43], s14 offen sc1')
    a('v_lshlrev_b32 v16, 16, v16\nv_lshlrev_b32 v17, 16, v17\nds_write_b64 v18, v[16:17]')
    s.stamp(4)
    a('L_end:')
    if kw.get('probe'):
        pw, pst, pm, pb = kw['probe']
        a(f's_waitcnt lgkmcnt(0)\ns_cmp_lg_u32 s7, {pw}\ns_cbranch_scc1 L_exit')
        if pw >= 4: a('s_barrier\ns_barrier' if kw.get('obar') and pw != 6 else 's_barrier')
        if kw.get('pg') is not None: a(f's_cmp_lg_u32 s3, {kw["pg"]}\ns_cbranch_scc1 L_exit')
        a(f's_sub_u32 s10, s{64+2*pst}, s64\ns_mul_i32 s10, s10, {pm}\ns_add_u32 s10, s10, {pb}\ns_min_u32 s10, s10, 20000')
        a('L_padloop:\ns_memrealtime s[12:13]\ns_waitcnt lgkmcnt(0)\ns_sub_u32 s11, s12, s64\ns_cmp_lt_u32 s11, s10\ns_cbranch_scc1 L_padloop')
    s.dump_stamps()
    a('L_exit:')
    a('s_endpgm')
    lines, added = hazard.fix(s.o, verbose=kw.get('verbose', False))
    return wrap('\n'.join(lines) + '\n', 256, NW * 64, kw.get('lds', LDS_TOTAL), kw.get('vgpr', 224))

if __name__ == '__main__':
    import ast
    out = sys.argv[1]
    kw = {}
    for x in sys.argv[2:]:
        k, v = x.split('=')
        try: kw[k] = ast.literal_eval(v)
        except Exception: kw[k] = v
    open(out, 'w').write(gen(**kw))
```

```python
import sys, math, struct
sys.path.insert(0, 'dev')
from common import *
import hazard

def f2u(x):
    return struct.unpack('<I', struct.pack('<f', x))[0]

NW = 7
FL = 0
WA, W1, KB, W2, VB, WO = [2048 + x for x in (0, 16384, 24576, 57344, 65536, 98304)]
XN = 2048 + 114688; XS = 1088
YL = XN + 4 * XS
QL = YL + 4 * XS
assert QL % 256 == 0
PL = QL + 4096
RED = PL + 4096
HL = RED + 4096; HS = 144
MX = 128
FP = 192
GX = HL + 640
LDS_TOTAL = GX + 512
C_WA, C_G, C_XN, F_Q, C_MX, C_P, F_WT, C_QP, C_Y, C_HP, T_A, T_B, F_K, TAGW = [4 * i for i in range(14)]

WS_Q = 0x1000
WS_H = WS_Q + 0x40000
WS_LSE = WS_H + 0x40000
WS_O = WS_LSE + 0x4000
WS_M = WS_O + 0x80000
WS_S = 0x150000
assert WS_S >= WS_M + 0x40000
WS_T = WS_S + 0x80000
WS_N = WS_T + 0x10000
WS_END = WS_T + 0x20000
assert WS_END <= 0x200000
STAMP = 0x8000000

class G:
    def __init__(s, **kw):
        s.o = []
        s.nl = 0
        s.kw = kw
        s.stamps = kw.get('stamps', False)
    def a(s, t):
        for l in t.split('\n'):
            l = l.strip()
            if l: s.o.append(l)
    def lab(s, p='L'):
        s.nl += 1
        return f'{p}_{s.nl}'
    def stamp(s, i):
        pr = s.kw.get('probe')
        only = s.kw.get('only')
        if (s.stamps and (only is None or i in only or i == 0)) or (pr and i in (0, pr[1])):
            s.a(f's_memrealtime s[{64+2*i}:{65+2*i}]')
    def budget(s):
        s.a('s_sub_u32 s46, s46, 1\ns_cbranch_scc1 L_end')
    def wait_flag(s, off, n, extra=None, sleep=0, vt='v9'):
        L = s.lab('W')
        if sleep:
            L2 = s.lab('W')
            s.a(f's_branch {L2}\n{L}:\ns_sleep {sleep}\n{L2}:')
        else:
            s.a(f'{L}:')
        s.a(f'ds_read_b32 {vt}, v8 offset:{off}')
        ne = 0
        if extra:
            for e in extra: s.a(e)
            ne = len(extra)
        s.budget()
        s.a(f's_waitcnt lgkmcnt({0 if (s.stamps and not s.kw.get("lean")) or (s.kw.get("safeA") and ne > 6) else min(ne, 15)})')
        s.a(f'v_cmp_gt_u32 vcc, {n}, {vt}')
        s.a(f's_cbranch_vccnz {L}')
    def signal(s, off):
        s.a(f's_mov_b64 exec, 1\nds_add_u32 v8, v6 offset:{off}\ns_mov_b64 exec, -1')
    def srd(s, d, p):
        s.a(f's_mov_b32 s{d}, s{p}\ns_mov_b32 s{d+1}, s{p+1}')
    def srd_const(s, d, n):
        s.a(f's_mov_b32 s{d+2}, {n}\ns_mov_b32 s{d+3}, 0x20000')
    def wave_sum(s, v, sd):
        for m in ('quad_perm:[1,0,3,2]', 'quad_perm:[2,3,0,1]', 'row_half_mirror', 'row_mirror'):
            s.a(f'v_add_f32_dpp {v}, {v}, {v} {m} row_mask:0xf bank_mask:0xf')
        s.a(f'v_add_f32_dpp {v}, {v}, {v} row_bcast:15 row_mask:0xa bank_mask:0xf')
        s.a(f'v_add_f32_dpp {v}, {v}, {v} row_bcast:31 row_mask:0xc bank_mask:0xf')
        s.a(f'v_readlane_b32 {sd}, {v}, 63')
    def rows_allreduce(s, op, v, t):
        s.a(f'v_mov_b32 {t}, {v}\nv_permlane16_swap_b32 {t}, {v}\n{op} {v}, {t}, {v}')
        s.a(f'v_mov_b32 {t}, {v}\nv_permlane32_swap_b32 {t}, {v}\n{op} {v}, {t}, {v}')
    def layernorm(s, src, f, t):
        P = lambda r: f'v[{r}:{r+1}]'
        for k in range(4):
            s.a(f'v_lshlrev_b32 v{f+2*k}, 16, v{src+k}\nv_and_b32 v{f+2*k+1}, s55, v{src+k}')
        s.a(f'v_pk_add_f32 {P(t)}, {P(f)}, {P(f+2)}\nv_pk_add_f32 {P(t+2)}, {P(f+4)}, {P(f+6)}\nv_pk_add_f32 {P(t)}, {P(t)}, {P(t+2)}\nv_add_f32 v{t}, v{t}, v{t+1}')
        s.wave_sum(f'v{t}', 's10')
        s.a(f'v_mov_b32 v{src+3}, {hex(f2u(1/512))}')
        s.a(f'v_mul_f32 v{src}, s10, v{src+3}')
        for k in range(4):
            s.a(f'v_pk_add_f32 {P(t+2*k)}, {P(f+2*k)}, {P(src)} op_sel_hi:[1,0] neg_lo:[0,1] neg_hi:[0,1]')
        s.a(f'v_pk_mul_f32 {P(t)}, {P(t)}, {P(t)}')
        for k in range(1, 4):
            s.a(f'v_pk_fma_f32 {P(t)}, {P(t+2*k)}, {P(t+2*k)}, {P(t)}')
        s.a(f'v_add_f32 v{t}, v{t}, v{t+1}')
        s.a(f'v_cvt_pk_bf16_f32 v{src}, v{src}, v{src}\nv_lshlrev_b32 v{src}, 16, v{src}')
        ms = ['quad_perm:[1,0,3,2] row_mask:0xf', 'quad_perm:[2,3,0,1] row_mask:0xf', 'row_half_mirror row_mask:0xf', 'row_mirror row_mask:0xf', 'row_bcast:15 row_mask:0xa', 'row_bcast:31 row_mask:0xc']
        fill = [f'v_pk_add_f32 {P(f+2*k)}, {P(f+2*k)}, {P(src)} op_sel_hi:[1,0] neg_lo:[0,1] neg_hi:[0,1]' for k in range(4)]
        fill += [f'v_cvt_pk_bf16_f32 v{t+2+k}, v{f+2*k}, v{f+2*k+1}' for k in range(4)]
        for k in range(4): fill += [f'v_lshlrev_b32 v{f+2*k}, 16, v{t+2+k}', f'v_and_b32 v{f+2*k+1}, s55, v{t+2+k}']
        for m in ms:
            s.a(f'v_add_f32_dpp v{t}, v{t}, v{t} {m} bank_mask:0xf')
            s.a(fill.pop(0)); s.a(fill.pop(0))
        s.a(f'v_readlane_b32 s10, v{t}, 63')
        s.a(fill.pop(0)); s.a(fill.pop(0))
        s.a(f'v_mul_f32 v{src}, s10, v{src+3}')
        s.a(f'v_cvt_pk_bf16_f32 v{src}, v{src}, v{src}\nv_lshlrev_b32 v{src}, 16, v{src}')
        s.a(f'v_add_f32 v{src}, {hex(f2u(1e-5))}, v{src}')
        s.a(f'v_cvt_pk_bf16_f32 v{src}, v{src}, v{src}\nv_lshlrev_b32 v{src}, 16, v{src}')
        s.a(f'v_sqrt_f32 v{src}, v{src}')
        s.a(fill.pop(0))
        s.a(f'v_cvt_pk_bf16_f32 v{src}, v{src}, v{src}\nv_lshlrev_b32 v{src}, 16, v{src}')
        s.a(f'v_rcp_f32 v{src}, v{src}')
        s.a(fill.pop(0))
        assert not fill
        for k in range(4):
            s.a(f'v_pk_mul_f32 {P(f+2*k)}, {P(f+2*k)}, {P(src)} op_sel_hi:[1,0]')
        for k in range(4):
            s.a(f'v_cvt_pk_bf16_f32 v{src+k}, v{f+2*k}, v{f+2*k+1}')
    def round_bf16(s, v):
        s.a(f'v_cvt_pk_bf16_f32 {v}, {v}, {v}\nv_lshlrev_b32 {v}, 16, {v}')
    def tag_finish(s):
        s.a('s_mul_i32 s44, s44, 0x2c9277b5\ns_add_u32 s44, s44, 0xac564b05')
    def pack24(s, d, a, b, c, e):
        s.a(f'v_perm_b32 v{d}, v{a}, v{e}, s50\nv_perm_b32 v{d+1}, v{b}, v{e}, s51\nv_perm_b32 v{d+2}, v{c}, v{e}, s52')
    def pack24_consts(s):
        s.a('s_mov_b32 s50, 0x07060503\ns_mov_b32 s51, 0x07060502\ns_mov_b32 s52, 0x07060501')
    def unpack24(s, r):
        s.a(f'v_perm_b32 v{r+3}, v{r}, v{r+1}, s53\nv_perm_b32 v{r+3}, v{r+3}, v{r+2}, s54')
    def unpack24_consts(s):
        s.a('s_mov_b32 s53, 0x04000c0c\ns_mov_b32 s54, 0x0706000c')
    def reduce32(s, r):
        s.a(f'v_permlane32_swap_b32 v{r}, v{r+2}\nv_permlane32_swap_b32 v{r+1}, v{r+3}')
        s.a(f'v_add_f32 v{r}, v{r}, v{r+2}\nv_add_f32 v{r+1}, v{r+1}, v{r+3}')
        s.a(f'v_permlane16_swap_b32 v{r}, v{r+1}\nv_add_f32 v{r}, v{r}, v{r+1}')
        for m in ('row_ror:8', 'row_ror:4', 'row_ror:2'):
            s.a(f'v_add_f32_dpp v{r}, v{r}, v{r} {m} row_mask:0xf bank_mask:0xf')
    def mfma(s, d, A, B, first):
        s.a(f'v_mfma_f32_16x16x32_bf16 v[{d}:{d+3}], v[{A}:{A+3}], v[{B}:{B+3}], {"0" if first else f"v[{d}:{d+3}]"}')
    def mlp_slot(s, d, t):
        ha = s.kw.get('ha', 4)
        s.a(f's_mul_i32 s{d}, s5, 6\ns_add_u32 s{d}, s{d}, s3\ns_cmp_gt_u32 s3, {ha}\ns_cselect_b32 s{t}, 2, 0\ns_sub_u32 s{d}, s{d}, s{t}\ns_lshl_b32 s{d}, s{d}, 1')
        s.a(f's_lshl2_add_u32 s{t}, s3, s5\ns_add_u32 s{t}, s{t}, {48-4*ha}')
        s.a(f's_bitcmp1_b32 {3 << ha}, s3\ns_cselect_b32 s{d}, s{t}, s{d}')
    def hint(s, name, off, nq, tries, sub):
        a = s.a
        a(f's_lshl_b32 s48, s3, 7\ns_add_u32 s48, s48, {WS_N + off}\ns_add_u32 s49, s48, s4')
        a('s_and_b32 s50, s44, 0xff\ns_mul_i32 s50, s50, 0x01010101\ns_mov_b32 s51, s50\nv_mov_b32 v21, s50')
        if sub: a('s_andn2_b32 s48, s49, 7')
        a(f's_mov_b32 s47, {tries}')
    def hint_go(s, name, nq):
        a = s.a
        a('s_mov_b64 exec, 1\nbuffer_store_byte v21, v8, s[40:43], s49 offen\ns_mov_b64 exec, -1')
        a(f'L_{name}:')
        a(f's_load_dwordx{2*nq} s[52:{51+2*nq}], s[40:41], s48 glc')
        a(f's_sub_u32 s47, s47, 1\ns_cbranch_scc1 L_{name}d\ns_waitcnt lgkmcnt(0)')
        for k in range(nq): a(f's_xor_b64 s[{52+2*k}:{53+2*k}], s[{52+2*k}:{53+2*k}], s[50:51]')
        for k in range(1, nq): a(f's_or_b64 s[52:53], s[52:53], s[{52+2*k}:{53+2*k}]')
        a(f's_cbranch_scc1 L_{name}\nL_{name}d:\ns_waitcnt lgkmcnt(0)')
    def dump_stamps(s, nst=16):
        if not s.stamps: return
        s.a('s_waitcnt lgkmcnt(0)\ns_mov_b64 exec, -1\nv_mov_b32 v10, 0')
        for i in range(nst):
            s.a(f'v_writelane_b32 v10, s{64+2*i}, {i}')
        s.a(f's_mul_i32 s10, s2, {NW*64}\ns_lshl_b32 s11, s7, 6\ns_add_u32 s10, s10, s11\ns_add_u32 s10, s10, {STAMP}')
        s.a('v_lshlrev_b32 v11, 2, v1\ns_mov_b64 exec, 0xffff\nbuffer_store_dword v10, v11, s[40:43], s10 offen ' + s.kw.get('stfl', ''))

def gen(**kw):
    s = G(**kw)
    a = s.a
    depth = kw.get('depth', 20)
    NT = kw.get('nt', 'nt')
    npq = kw.get('npq', 2); gapq = kw.get('gapq', 12); q0 = kw.get('q0', 4)
    npl = kw.get('npl', 4); gapl = kw.get('gapl', 6)
    CSC = math.log2(math.e) / math.sqrt(128)
    ONE2 = 0x3f803f80
    order = kw.get('order', '11kkkkkkkk22vvvvvvvvoooo')
    TH = {c: [i + 1 for i, x in enumerate(order) if x == c] for c in '1k2vo'}
    assert [len(TH[c]) for c in '1k2vo'] == [2, 8, 2, 8, 4]
    marks = {TH['1'][1], TH['2'][1], TH['o'][3], len(order) - (kw.get('oe') or 0), kw.get('qg') or 2} | set(TH['k'][1::2]) | set(TH['v'][1::2])
    def common():
        if s.stamps:
            for i in range(1, 16): a(f's_mov_b32 s{64+2*i}, 0')
        a('v_and_b32 v1, 63, v0\ns_lshr_b32 s5, s4, 3\ns_and_b32 s6, s4, 7')
        a(f's_mov_b32 s42, {STAMP + 0x100000 if s.stamps else WS_END}\ns_mov_b32 s43, 0x20000')
        a(f's_mov_b32 s46, {kw.get("budget", 5000000)}')
        a('v_mov_b32 v6, 1')
        a('v_lshrrev_b32 v2, 4, v1\nv_and_b32 v3, 15, v1')
    s.stamp(0)
    a('s_load_dwordx16 s[16:31], s[0:1], 0\ns_load_dwordx8 s[32:39], s[0:1], 64\ns_load_dwordx2 s[40:41], s[0:1], 96')
    a('s_lshr_b32 s4, s2, 3\ns_cmp_ge_u32 s4, 32\ns_cbranch_scc1 L_exit')
    a('v_lshrrev_b32 v2, 6, v0\nv_bfe_u32 v4, v0, 3, 3')
    a('v_mov_b32 v8, 0\nds_write_b8 v0, v8')
    if kw.get('prefetch', True):
        a('s_getpc_b64 s[8:9]\nL_pc:')
        if kw.get('pf2'):
            a('s_lshl_b32 s10, s4, 7\nv_lshl_add_u32 v3, v0, 12, s10\nv_min_u32 v3, L_exit-L_pc, v3\nglobal_load_dword v7, v3, s[8:9]')
        else:
            a('v_lshlrev_b32 v3, 7, v0\nv_min_u32 v3, L_exit-L_pc, v3\nglobal_load_dword v7, v3, s[8:9]')
    a('v_readfirstlane_b32 s7, v2')
    a('v_and_b32 v5, 6, v4\nv_xor_b32 v5, v5, v0\nv_and_b32 v5, 7, v5\nv_lshlrev_b32 v5, 4, v5')
    a('s_and_b32 s3, s2, 7\ns_cmp_eq_u32 s7, 6\ns_cbranch_scc1 L_L\ns_cmp_ge_u32 s7, 4\ns_cbranch_scc1 L_PM')
    a('s_mov_b32 s51, 0x20000\nv_lshlrev_b32 v11, 4, v0')
    a('s_lshr_b32 s10, s4, 3\ns_lshl2_add_u32 s10, s10, s7\ns_lshl_b32 s10, s10, 18\ns_and_b32 s11, s4, 7\ns_lshl3_add_u32 s11, s3, s11\ns_xor_b32 s11, s11, ' + str(kw.get('rq', 0)) + '\ns_lshl_b32 s11, s11, 7\ns_add_u32 s10, s10, s11')
    a(f's_bfm_b32 s50, 1, 22\ns_bfm_b32 s12, 6, 10\nv_lshl_add_u32 v10, v4, 13, v5\ns_lshl_b32 m0, s7, 12\ns_addk_i32 m0, {WA}')
    a('s_waitcnt lgkmcnt(0)')
    a('s_mov_b64 s[48:49], s[22:23]')
    a('global_load_dwordx4 v[12:15], v11, s[16:17]')
    for r in range(4):
        a(f'buffer_load_dwordx4 v10, s[48:51], s10 offen offset:{r*1024} {NT} lds')
        if r < 3: a('s_add_u32 s10, s10, s12')
    a('s_branch L_C')
    a('L_L:')
    a('s_barrier')
    common()
    rq, r2 = kw.get('rq', 0), kw.get('r2', 0)
    s.mlp_slot(10, 11)
    a('s_cselect_b32 s11, 64, 0\ns_cselect_b32 s8, 30, 15')
    a('v_and_b32 v14, s11, v5\nv_lshl_add_u32 v14, v14, 24, v5\nv_mul_u32_u24 v32, 3584, v4\nv_add_u32 v32, v32, v14')
    for r in range(1, 4): a(f'v_add_u32 v{32+r}, {r*(8*3584-1024)}, v32')
    a('v_xor_b32 v14, v3, v2\nv_lshlrev_b32 v14, 4, v14\nv_lshl_add_u32 v18, v2, 8, v14')
    for r in range(1, 4): a(f'v_xor_b32 v{18+r}, {r*64}, v18\nv_add_u32 v{18+r}, {r*7168}, v{18+r}')
    a(f's_mov_b32 s50, {512*3584}\ns_mov_b32 s51, 0x20000\ns_lshl_b32 s8, 1, s8')
    a(f's_mul_i32 s12, s6, {64*3584}\ns_lshl_b32 s11, s10, 6\ns_add_u32 s12, s12, s11')
    a(f's_lshl_b32 s13, s5, 23\ns_lshl_b32 s11, s3, 20\ns_add_u32 s13, s13, s11\ns_lshl_b32 s11, s6, 10\ns_add_u32 s13, s13, s11\ns_add_u32 s13, s13, {3072*256}')
    a('s_bfm_b32 s54, 1, 25\ns_mov_b32 s55, s51\ns_mov_b32 s14, s13')
    a('s_waitcnt lgkmcnt(0)')
    s.stamp(1)
    dg = depth // 4
    segs = {'1': (32, 48, 28, 12, 32 * 3584, W1), 'k': (18, 52, 18, 13, 32768, KB), 'v': (22, 56, 20, 14, 32768, VB),
            '2': (26, 60, 32, 15, 's8', W2), 'o': (26, 96, 24, 9, 32768, WO)}
    cnt = {c: 0 for c in segs}
    late = False
    prof = kw.get('prof')
    prof = [int(x, 16) for x in prof] if prof else [dg] * len(order)
    assert len(prof) == len(order)
    landed = 0
    first_wait = min(gi for gi in range(len(order)) if gi + 1 > prof[gi])
    for gi, c in enumerate(order):
        vr, sd, ptr, so, step, lds = segs[c]
        if gi == first_wait:
            a('v_lshlrev_b32 v14, 1, v2\nv_xor_b32 v14, v3, v14\nv_lshlrev_b32 v14, 4, v14\nv_lshl_add_u32 v22, v2, 8, v14')
            a(f'v_xor_b32 v23, 128, v22\nv_add_u32 v24, {2*7168}, v22\nv_add_u32 v25, {3*7168}, v23\nv_add_u32 v23, 7168, v23')
            a('v_lshl_add_u32 v26, v4, 10, v5')
            for r in range(1, 4): a(f'v_add_u32 v{26+r}, {r*7168}, v26')
            a(f's_mov_b32 s58, s54\ns_mov_b32 s59, s51\ns_mov_b32 s62, {1792*1024}\ns_mov_b32 s63, s51\ns_bfm_b32 s98, 1, 22\ns_mov_b32 s99, s51')
            s.srd(56, 20); s.srd(60, 32); s.srd(96, 24)
            a(f's_add_u32 s11, s6, {r2}\ns_and_b32 s11, s11, 7\ns_lshl_b32 s11, s11, 7\ns_lshl_b32 s15, s10, 15\ns_add_u32 s15, s15, s11')
            a('s_lshl2_add_u32 s9, s3, s5\ns_lshl_b32 s9, s9, 17\ns_lshl_b32 s11, s6, 7\ns_add_u32 s9, s9, s11')
            s.stamp(2)
            late = True
        assert late or c in '1k'
        if cnt[c] == 0 and c in '1k': s.srd(sd, ptr)
        a(f's_mov_b32 m0, {lds + cnt[c] * 4096}')
        if cnt[c]: a(f's_add_u32 s{so}, s{so}, {step}')
        while landed < gi + 1 - prof[gi]:
            landed += 1
            if landed in marks or landed == gi + 1 - prof[gi]:
                a(f's_waitcnt vmcnt({(gi-landed)*4})')
            if landed in marks:
                a(f'v_mov_b32 v30, {landed}\nds_write_b32 v8, v30 offset:{C_G}')
                if landed == TH['v'][7]: s.stamp(6)
        for r in range(4):
            fine = kw.get('fine')
            if fine and gi * 4 + r >= fine and (r or fine - 1 < (gi - landed) * 4): a(f's_waitcnt vmcnt({fine-1})')
            fl = kw.get('nt' + c, NT)
            a(f'buffer_load_dwordx4 v{vr+r}, s[{sd}:{sd+3}], s{so} offen offset:{r*1024} {fl} lds')
        cnt[c] += 1
    for n in range(landed + 1, len(order) + 1):
        if n in marks:
            if kw.get('obar') and n == len(order) and n != TH['v'][7]:
                a('s_waitcnt vmcnt(0)')
            else:
                a(f'v_mov_b32 v30, {n}\ns_waitcnt vmcnt({(len(order)-n)*4})\nds_write_b32 v8, v30 offset:{C_G}')
            if n == TH['v'][7]: s.stamp(6)
    s.stamp(7)
    if kw.get('obar'): a('s_barrier')
    a('s_branch L_end')

    if kw.get('shift'): a('s_nop 0')
    a('L_PM:')
    a('s_barrier')
    common()
    ns = kw.get('nsamp', 1)
    a(f's_lshr_b32 s10, s2, 6\ns_lshl1_add_u32 s10, s10, s7\ns_lshl_b32 s10, s10, 6\ns_and_b32 s11, s2, 63\ns_add_u32 s10, s10, s11\ns_lshl_b32 s10, s10, 7\ns_add_u32 s10, s10, {WS_T - 4*8192}')
    a('s_waitcnt lgkmcnt(0)')
    if kw.get('pd'): a(f's_sleep {kw["pd"]}')
    a('s_memtime s[12:13]\ns_load_dword s11, s[40:41], s10')
    if ns == 2: a('s_add_u32 s10, s10, 0x10000\ns_waitcnt lgkmcnt(0)\ns_load_dword s11, s[40:41], s10')
    a('s_waitcnt lgkmcnt(0)\ns_memtime s[14:15]\ns_lshl_b32 s10, s7, 2\nv_mov_b32 v10, s10\ns_waitcnt lgkmcnt(0)')
    a(f's_sub_u32 s12, s14, s12\nv_mov_b32 v11, s12\nds_write_b32 v10, v11 offset:{T_A - 16}')
    a('s_cmp_eq_u32 s7, 4\ns_cbranch_scc1 L_P\ns_branch L_M')
    a('L_C:')
    if kw.get('clk'): a('s_memtime s[90:91]\ns_memrealtime s[88:89]')
    a('s_load_dword s44, s[40:41], 0\ns_barrier')
    a('s_setprio 2')
    common()
    s.stamp(1)
    if 'C' in kw.get('kill', ''): a('s_waitcnt vmcnt(0)\ns_branch L_end')
    a('v_bfe_u32 v4, v1, 2, 2\nv_and_b32 v5, 3, v1')
    a(f's_mul_i32 s11, s7, {XS}\ns_add_u32 s11, s11, {XN}')
    a('v_lshrrev_b32 v10, 2, v1\nv_lshlrev_b32 v10, 6, v10\nv_and_b32 v11, 1, v1\nv_lshl_add_u32 v10, v11, 5, v10\nv_and_b32 v11, 2, v1\nv_lshl_add_u32 v10, v11, 2, v10\nv_add_u32 v11, s11, v10')
    a('s_mov_b32 s55, 0xffff0000')
    a('v_lshl_add_u32 v27, v2, 2, v4\nv_bfe_u32 v96, v27, 1, 2\nv_lshlrev_b32 v96, 5, v96\nv_lshl_add_u32 v96, v27, 7, v96\nv_lshl_add_u32 v96, v5, 3, v96')
    a('s_lshl_b32 s12, s7, 5\nv_xor_b32 v10, s12, v96')
    a('s_getreg_b32 s45, hwreg(HW_REG_XCC_ID, 0, 4)')
    a(f'v_mul_u32_u24 v24, {XS}, v5\nv_lshl_add_u32 v24, v2, 4, v24')
    a(f's_lshl_b32 s10, s5, 8\ns_add_u32 s10, s10, {XN}\nv_add_u32 v25, s10, v24')
    a(f's_lshl_b32 s10, s6, 7\ns_add_u32 s10, s10, {YL}\nv_add_u32 v24, s10, v24')
    a(f's_lshl_b32 s14, s3, 15\ns_lshl1_add_u32 s14, s12, s14\ns_lshl_b32 s13, s4, 8\ns_xor_b32 s58, s13, {rq*256}\ns_add_u32 s58, s14, s58\ns_add_u32 s58, s58, {WS_Q}')
    a(f's_lshl2_add_u32 s59, s13, s14\ns_add_u32 s59, s59, {WS_H}')
    a('v_lshlrev_b32 v106, 13, v3\nv_lshl_add_u32 v106, v2, 4, v106\nv_lshlrev_b32 v107, 4, v1\nv_mov_b32 v30, 0x3ff\nv_mov_b32 v31, 0xfffffc01')
    s.pack24_consts()
    a('s_mov_b32 s13, 1')
    a('s_waitcnt vmcnt(0)' if kw.get('safeB') else 's_waitcnt vmcnt(4)')
    if not kw.get('ackst'): s.stamp(2)
    a('L_ln:')
    s.layernorm(12, 16, 32)
    a(f'ds_write2_b64 v11, v[12:13], v[14:15] offset1:2\nv_add_u32 v11, {YL-XN}, v11')
    a('s_sub_u32 s13, s13, 1\ns_cbranch_scc0 L_ln')
    s.stamp(3)
    a('s_waitcnt vmcnt(0) lgkmcnt(0)')
    if kw.get('st_tile'): s.stamp(5)
    s.signal(C_WA)
    s.tag_finish()
    a(f'v_mov_b32 v111, s44\nv_mov_b32 v115, s44\nds_write_b32 v8, v111 offset:{TAGW}')
    s.wait_flag(C_WA, 4, extra=[f'ds_read_b64 v[28:29], v8 offset:{T_A}'] + [x for t in range(4) for x in (f'ds_read_b128 v[{64+4*t}:{67+4*t}], v25 offset:{t*64}',
                f'ds_read_b64_tr_b16 v[{40+4*t}:{41+4*t}], v10 offset:{WA+t*4096}', f'ds_read_b64_tr_b16 v[{42+4*t}:{43+4*t}], v10 offset:{WA+t*4096+2048}')])
    for t in range(4):
        a(f's_waitcnt lgkmcnt({9-3*t})')
        s.mfma(16, 40 + 4 * t, 64 + 4 * t, t == 0)
        if t == 0: a('v_sub_u32 v110, v28, v29\nv_min_u32 v28, v28, v29')
        if t == 1: a('v_cmp_ne_u32 vcc, 0, v28\nv_med3_i32 v110, v110, v30, v31')
        if t == 2: a('v_cndmask_b32 v110, 0, v110, vcc\nv_lshl_or_b32 v110, v110, 4, s45')
    for t in range(2): a(f'ds_read_b128 v[{80+4*t}:{83+4*t}], v24 offset:{t*64}')
    a('s_mov_b32 exec_lo, 0x000f000f\ns_mov_b32 exec_hi, 0x000f000f')
    a('v_cvt_pk_bf16_f32 v108, v16, v17\nv_cvt_pk_bf16_f32 v109, v18, v19')
    a('buffer_store_dwordx4 v[108:111], v106, s[40:43], s58 offen')
    if kw.get('qe'): s.signal(C_QP)
    else: a('s_mov_b64 exec, -1')
    if not kw.get('ackst'): s.stamp(4)
    s.wait_flag(C_G, TH['1'][1], extra=[f'ds_read_b64_tr_b16 v[{40+2*t}:{41+2*t}], v10 offset:{W1+t*2048}' for t in range(4)], sleep=1)
    for t in range(2):
        a(f's_waitcnt lgkmcnt({2-2*t})')
        s.mfma(16, 40 + 4 * t, 80 + 4 * t, t == 0)
    a('s_mov_b32 exec_lo, 0x000f000f\ns_mov_b32 exec_hi, 0x000f000f')
    s.pack24(112, 16, 17, 18, 19)
    a('buffer_store_dwordx4 v[112:115], v107, s[40:43], s59 offen')
    if kw.get('he'): s.signal(C_HP)
    else: a('s_mov_b64 exec, -1')
    if 'Q' in kw.get('kill', ''): a('s_branch L_end')
    a(f's_lshl_b32 s10, s7, 13\ns_add_u32 s10, s10, {KB}')
    a(f'v_xor_b32 v10, v2, v3\nv_lshlrev_b32 v10, 4, v10\nv_lshl_add_u32 v10, v3, 8, v10\nv_add_u32 v102, {QL}, v10\nv_add_u32 v10, s10, v10')
    a('v_xor_b32 v103, 64, v102\nv_xor_b32 v104, 128, v102\nv_xor_b32 v105, 192, v102')
    a('v_xor_b32 v11, 64, v10\nv_xor_b32 v12, 128, v10\nv_xor_b32 v13, 192, v10')
    a(f's_lshl_b32 s10, s7, 2\ns_add_u32 s10, s10, {MX}\nv_lshlrev_b32 v15, 4, v5\nv_add_u32 v24, s10, v15\nv_add_u32 v15, {MX}, v15\ns_add_u32 s10, s10, {FP-MX}\nv_mov_b32 v14, s10')
    a(f's_lshl_b32 s10, s7, 10\ns_add_u32 s10, s10, {PL}\nv_lshlrev_b32 v25, 4, v1\nv_add_u32 v26, s10, v25\nv_add_u32 v25, {PL}, v25')
    a('v_and_b32 v28, 7, v27\ns_lshl_b32 s10, s7, 1\nv_xor_b32 v28, s10, v28\nv_lshlrev_b32 v28, 5, v28\nv_lshl_add_u32 v28, v27, 8, v28\nv_lshl_add_u32 v28, v5, 3, v28')
    a(f'v_add_u32 v28, {VB}, v28\nv_xor_b32 v29, 32, v28')
    a(f's_lshr_b32 s10, s7, 1\ns_lshl_b32 s11, s10, 13\ns_add_u32 s11, s11, {WO}')
    a('v_add_u32 v96, s11, v96\nv_xor_b32 v97, 32, v96\nv_xor_b32 v98, 64, v96\nv_xor_b32 v99, 96, v96')
    a('v_lshlrev_b32 v30, 14, v3\nv_lshl_add_u32 v30, v2, 8, v30')
    a(f's_lshl_b32 s14, s3, 16\ns_add_u32 s14, s14, {WS_O}')
    a('s_lshr_b32 s11, s4, 4\ns_lshl2_add_u32 s11, s11, s7\ns_lshl_b32 s11, s11, 11\ns_and_b32 s12, s4, 15\ns_lshl4_add_u32 s11, s12, s11')
    a('v_lshlrev_b32 v31, 4, v1')
    a('s_xor_b32 s12, s3, s6\ns_and_b32 s12, s12, 4\ns_lshl_b32 s12, s12, 11\nv_or_b32 v101, s12, v31')
    a('s_lshl_b32 s15, s5, 14\ns_add_u32 s15, s15, s14\ns_lshl_b32 s10, s10, 12\ns_add_u32 s15, s15, s10\ns_and_b32 s10, s7, 1\ns_lshl_b32 s12, s10, 13\ns_add_u32 s15, s15, s12')
    a('s_add_u32 s14, s14, s11')
    a(f'v_lshlrev_b32 v100, 9, v2\nv_lshl_add_u32 v100, v3, 4, v100\nv_add_u32 v100, {RED}, v100')
    a(f's_lshr_b32 s10, s3, 1\ns_lshl2_add_u32 s56, s6, s10\ns_and_b32 s10, s3, 1\ns_lshl2_add_u32 s56, s56, s10\ns_lshl2_add_u32 s56, s56, s5\ns_lshl_b32 s56, s56, 10\ns_add_u32 s56, s56, {WS_S}\ns_add_u32 s63, s56, 8192')
    a('v_lshrrev_b32 v119, 1, v1\nv_lshlrev_b32 v119, 10, v119\nv_and_b32 v16, 1, v1\nv_lshl_add_u32 v119, v16, 4, v119')
    a(f's_lshl_b32 s60, s3, 15\ns_lshl_b32 s11, s4, 5\ns_add_u32 s60, s60, s11\ns_add_u32 s62, s60, {WS_M}\ns_add_u32 s60, s60, {WS_S}')
    a('v_lshl_add_u32 v117, v2, 13, v119')
    a(f's_lshl_b32 s60, s3, 16\ns_add_u32 s60, s60, s11\ns_add_u32 s60, s60, {WS_S}')
    a(f's_mov_b32 s13, {hex(f2u(CSC))}')
    a('s_mov_b32 s12, s13')
    for k in range(4): a(f'v_mov_b32 v{124+k}, {hex(ONE2)}')
    kt = TH['k'][1::2]
    a(f's_lshl_b32 s57, s7, 3\ns_lshr_b32 s57, {kt[0] | kt[1] << 8 | kt[2] << 16 | kt[3] << 24}, s57\ns_and_b32 s57, s57, 0xff')
    if not kw.get('qe'):
        a('s_waitcnt vmcnt(1)')
        s.signal(C_QP)
    if not kw.get('he'):
        a('s_waitcnt vmcnt(0)')
        s.signal(C_HP)
    s.wait_flag(C_G, 's57', sleep=1)
    for u in range(2):
        for t in range(4):
            a(f'ds_read_b128 v[{32+16*u+4*t}:{35+16*u+4*t}], v{10+t} offset:{u*4096}')
    if not kw.get('st_tile') and not kw.get('ackst'): s.stamp(5)
    s.wait_flag(F_Q, 1, extra=[f'ds_read_b128 v[{64+4*t}:{67+4*t}], v{102+t}' for t in range(4)])
    s.stamp(6)
    a('v_readfirstlane_b32 s47, v9')
    a('s_cmp_lg_u32 s47, 1\ns_cbranch_scc1 L_qrem')
    a('L_qgo:')
    DP = lambda op, d, x, y, m, rm='0xf': f'{op}_dpp {d}, {x}, {y} {m} row_mask:{rm} bank_mask:0xf'
    for u in range(2):
        for t in range(4):
            if u == 0: a(f's_waitcnt lgkmcnt({3-t})')
            s.mfma(16 + 4 * u, 32 + 16 * u + 4 * t, 64 + 4 * t, t == 0)
    if kw.get('safeC'): a('s_nop 15')
    a('v_mov_b32 v40, s44\nv_mov_b32 v47, s44\nv_mov_b32 v123, s44')
    for u in range(2):
        for k in range(4): a(DP('v_add_f32', f'v{16+4*u+k}', f'v{16+4*u+k}', f'v{16+4*u+k}', 'row_ror:4'))
        for k in range(4): a(DP('v_add_f32', f'v{16+4*u+k}', f'v{16+4*u+k}', f'v{16+4*u+k}', 'row_ror:8'))
        if u == 0: a('v_max3_f32 v10, v16, v17, v18')
    a('v_max3_f32 v10, v10, v19, v20\nv_max3_f32 v11, v21, v22, v23\nv_max_f32 v10, v10, v11\nv_max_f32 v11, v10, v11')
    a('v_permlane16_swap_b32 v11, v10\nv_max_f32 v10, v11, v10\nv_max_f32 v11, v11, v10')
    a('v_permlane32_swap_b32 v11, v10\nv_max_f32 v10, v11, v10\nv_or_b32 v10, 1, v10')
    WB = 128; VR = 160
    vrd = lambda t: [f'ds_read_b64_tr_b16 v[{VR+8*t+4*T+2*u}:{VR+1+8*t+4*T+2*u}], v{28+T} offset:{t*8192+u*4096}' for T in range(2) for u in range(2)]
    cw = lambda n: 0 if (s.stamps and not kw.get('lean')) else n
    a('ds_write_b32 v24, v10')
    a(f'ds_read_b128 v[32:35], v15\nds_read_b32 v9, v8 offset:{C_G}')
    for x in vrd(0) + vrd(1) + vrd(2): a(x)
    a(f's_waitcnt lgkmcnt({cw(13)})\ns_branch L_mx2')
    a('L_mx:')
    a('ds_read_b128 v[32:35], v15')
    s.budget()
    a('s_waitcnt lgkmcnt(0)')
    a('L_mx2:')
    a('v_min3_u32 v11, v32, v33, v34\nv_max3_f32 v10, v32, v33, v34\nv_min_u32 v11, v11, v35\nv_max_f32 v10, v10, v35\nv_cmp_eq_u32 vcc, 0, v11\nv_mul_f32 v116, s13, v10\ns_cbranch_vccnz L_mx')
    for k in range(4): a(f'v_pk_fma_f32 v[{16+2*k}:{17+2*k}], v[{16+2*k}:{17+2*k}], s[12:13], v[116:117] op_sel_hi:[1,1,0] neg_lo:[0,0,1] neg_hi:[0,0,1]')
    for k in range(8): a(f'v_exp_f32 v{16+k}, v{16+k}')
    for k in range(4): a(f'v_cvt_pk_bf16_f32 v{32+k}, v{16+2*k}, v{17+2*k}')
    a('ds_write_b128 v26, v[32:35]\nds_write_b32 v14, v6')
    a('L_pw:')
    a(f'ds_read_b128 v[36:39], v8 offset:{FP}')
    for t in range(4): a(f'ds_read_b128 v[{64+4*t}:{67+4*t}], v25 offset:{t*1024}')
    a(f'ds_read_b32 v118, v8 offset:{C_G}')
    for x in vrd(3): a(x)
    a('v_mov_b32 v41, v116')
    s.budget()
    a(f's_waitcnt lgkmcnt({cw(9)})\nv_min3_u32 v11, v36, v37, v38\nv_min_u32 v11, v11, v39\nv_cmp_eq_u32 vcc, 0, v11\ns_cbranch_vccnz L_pw')
    s.stamp(7)
    def wo_reads(kss=(0, 1)):
        for ks in kss:
            for T in range(4):
                for u in range(2):
                    r = WB + 16 * ks + 4 * T + 2 * u
                    a(f'ds_read_b64_tr_b16 v[{r}:{r+1}], v{96+T} offset:{ks*4096+u*2048}')
    early = False
    a(f'v_cmp_gt_u32 vcc, {TH["v"][5]}, v9\ns_cbranch_vccz L_v012')
    s.wait_flag(C_G, TH['v'][5], extra=vrd(0) + vrd(1) + vrd(2), sleep=2)
    a('s_waitcnt lgkmcnt(0)')
    a('L_v012:')
    for t in range(3):
        a(f's_waitcnt lgkmcnt({8-t})')
        for T in range(2): s.mfma(16 + 4 * T, VR + 8 * t + 4 * T, 64 + 4 * t, t == 0)
        s.mfma(56, 124, 64 + 4 * t, t == 0)
    a('s_waitcnt lgkmcnt(4)')
    s.mfma(56, 124, 76, False)
    a(f'v_cmp_gt_u32 vcc, {TH["v"][7]}, v118\ns_cbranch_vccz L_v3')
    s.wait_flag(C_G, TH['v'][7], extra=vrd(3))
    a('L_v3:')
    if not kw.get('ind'): s.stamp(8)
    for T in range(2):
        a(f's_waitcnt lgkmcnt({2-2*T})')
        s.mfma(16 + 4 * T, VR + 24 + 4 * T, 76, False)
    a('v_mov_b32 v46, v56')
    a('s_mov_b32 exec_lo, 0x000f000f\ns_mov_b32 exec_hi, 0x000f000f\ns_cmp_eq_u32 s47, 1')
    for k in range(4): a(f'v_cvt_pk_bf16_f32 v{42+k}, v{16+2*k}, v{17+2*k}')
    a('s_cbranch_scc0 L_orem')
    a('buffer_store_dwordx4 v[40:43], v30, s[40:43], s14 offen\nbuffer_store_dwordx4 v[44:47], v30, s[40:43], s14 offen offset:1024')
    a('L_ost:')
    a('s_mov_b64 exec, -1')
    s.stamp(9)
    if kw.get('ackst'):
        a('s_waitcnt vmcnt(0)')
        s.stamp(5)
    if 'D' in kw.get('kill', ''): a('s_branch L_end')
    if kw.get('od0'): a(f's_sleep {kw["od0"]}')
    OE = kw.get('oe')
    if OE is not None:
        if OE: s.wait_flag(C_G, len(order) - OE)
    elif kw.get('obar'): a('s_barrier')
    if kw.get('ind'):
        if not early:
            s.wait_flag(C_G, TH['o'][3])
            wo_reads()
            early = True
        a('s_mov_b32 exec_hi, 0')
        a('L_ipoll:')
        a('buffer_load_dword v48, v101, s[40:43], s15 offen offset:1036 sc1')
        s.budget()
        if kw.get('isl'):
            a(f's_waitcnt vmcnt(0)\nv_cmp_ne_u32 vcc, s44, v48\ns_cbranch_vccz L_idone\ns_sleep {kw["isl"]}\ns_branch L_ipoll\nL_idone:')
        else:
            a('s_waitcnt vmcnt(0)\nv_cmp_ne_u32 vcc, s44, v48\ns_cbranch_vccnz L_ipoll')
        a('s_mov_b32 exec_hi, -1')
        s.stamp(8)
    for k in range(4): a(f'buffer_load_dwordx4 v[{48+4*k}:{51+4*k}], v31, s[40:43], s15 offen offset:{k*1024} sc1')
    if OE == 1 and kw.get('wsplit'):
        wo_reads((0,))
        a('s_barrier')
        wo_reads((1,))
        a(f'ds_read_b32 v9, v8 offset:{F_K}')
    else:
        if OE is not None: a('s_barrier')
        a(f'ds_read_b32 v9, v8 offset:{F_K}')
        wo_reads()
    if s.stamps:
        if kw.get('ackst'):
            a('s_waitcnt vmcnt(0)')
            s.stamp(2)
        a('s_mov_b32 s61, 0')
    a('s_branch L_opoll')
    a('L_oretry:')
    a('s_mov_b64 exec, vcc')
    if s.stamps: a('s_add_u32 s61, s61, 1')
    if kw.get('osl'): a(f's_sleep {kw["osl"]}')
    for k in range(4): a(f'buffer_load_dwordx4 v[{48+4*k}:{51+4*k}], v31, s[40:43], s15 offen offset:{k*1024} sc1')
    a('s_mov_b64 exec, -1')
    s.budget()
    if kw.get('al'): a('.p2align 3')
    a('L_opoll:')
    a('s_waitcnt vmcnt(0) lgkmcnt(0)')
    a('v_xor_b32 v10, s44, v48\nv_bitop3_b32 v10, v55, s44, v10 bitop3:0xbe\nv_bitop3_b32 v10, v56, s44, v10 bitop3:0xbe\nv_bitop3_b32 v10, v63, s44, v10 bitop3:0xbe')
    a('v_cmp_ne_u32 vcc, 0, v10\ns_cbranch_vccnz L_oretry')
    s.stamp(11)
    if s.stamps: a('s_mul_i32 s61, s61, 100\ns_add_u32 s70, s64, s61')
    M8 = ('quad_perm:[1,0,3,2]', 'quad_perm:[2,3,0,1]', 'row_half_mirror')
    D = lambda op, d, x, y, m, rm='0xf': f'{op}_dpp {d}, {x}, {y} {m} row_mask:{rm} bank_mask:0xf'
    R = lambda m, rm: f'v_mov_b32_dpp v23, v21 {m} row_mask:{rm} bank_mask:0xf'
    wv = [D('v_max_f32', 'v20', 'v49', 'v49', M8[0]), None, D('v_max_f32', 'v20', 'v20', 'v20', M8[1]), None, D('v_max_f32', 'v20', 'v20', 'v20', M8[2]),
          'v_sub_f32 v21, v49, v20', 'v_exp_f32 v21, v21', None, 'v_mul_f32 v22, v54, v21', 'v_mov_b32 v23, v21', None,
          D('v_add_f32', 'v22', 'v22', 'v22', M8[0]), R('row_ror:12', '0x2'), None, D('v_add_f32', 'v22', 'v22', 'v22', M8[1]), R('row_ror:8', '0x4'), None,
          D('v_add_f32', 'v22', 'v22', 'v22', M8[2]), R('row_ror:4', '0x8'), 'v_rcp_f32 v22, v22', None]
    mf = [(32 + 4 * T, 50 + 8 * ks, WB + 16 * ks + 4 * T, ks == 0) for ks in range(2) for T in range(4)]
    s.mfma(*mf.pop(0))
    for x in wv:
        if x is None: s.mfma(*mf.pop(0))
        else: a(x)
    assert not mf
    a('v_mul_f32 v21, v22, v23')
    a(D('v_mul_f32', 'v21', 'v22', 'v23', 'row_ror:8', '0xc'))
    for T in range(4): a(D('v_mul_f32', f'v{16+T}', 'v21', f'v{32+4*T}', 'row_newbcast:0'))
    for r in range(1, 4):
        for T in range(4): a(D('v_fmac_f32', f'v{16+T}', 'v21', f'v{32+4*T+r}', f'row_newbcast:{r}'))
    a(f'ds_write_b128 v26, v[16:19] offset:{RED-PL}')
    if kw.get('nf'): a('v_xor_b32 v10, v9, v101\nv_xor_b32 v11, 0x2000, v10')
    a('v_add_u32 v117, v117, v9\ns_cmp_lg_u32 s7, 0')
    a('s_waitcnt lgkmcnt(0)\ns_barrier')
    s.stamp(12)
    a('s_cbranch_scc1 ' + ('L_wb' if kw.get('fw') else 'L_end'))
    for k in range(4): a(f'ds_read_b128 v[{48+4*k}:{51+4*k}], v100 offset:{(k>>1)*2048+(k&1)*256}')
    a('s_waitcnt lgkmcnt(2)')
    a('v_pk_add_f32 v[48:49], v[48:49], v[52:53]\nv_pk_add_f32 v[50:51], v[50:51], v[54:55]')
    a('s_waitcnt lgkmcnt(1)')
    a('v_pk_add_f32 v[48:49], v[48:49], v[56:57]\nv_pk_add_f32 v[50:51], v[50:51], v[58:59]')
    a('s_waitcnt lgkmcnt(0)')
    a('v_pk_add_f32 v[48:49], v[48:49], v[60:61]\nv_pk_add_f32 v[50:51], v[50:51], v[62:63]')
    s.pack24(120, 48, 49, 50, 51)
    if kw.get('nf'):
        a('buffer_store_dwordx4 v[120:123], v10, s[40:43], s56 offen sc1')
        if kw.get('nfs'): a(f's_sleep {kw["nfs"]}')
        a('buffer_store_dwordx4 v[120:123], v11, s[40:43], s56 offen sc1')
    else:
        a('buffer_store_dwordx4 v[120:123], v31, s[40:43], s56 offen sc1\nbuffer_store_dwordx4 v[120:123], v31, s[40:43], s63 offen sc1')
    s.stamp(13)
    fw = kw.get('fw', 0)
    if fw:
        a('s_branch L_end')
        a('L_wb:')
        a(f's_cmp_lg_u32 s7, {fw}\ns_cbranch_scc1 L_end')
        if kw.get('d0'): a(f's_sleep {kw["d0"]}')
    LA = 'buffer_load_dwordx4 v[16:19], v117, s[40:43], s60 offen sc1'
    LB_ = 'buffer_load_dwordx4 v[20:23], v117, s[40:43], s60 offen sc1'
    a('L_mpoll:')
    a('buffer_load_dwordx4 v[32:35], v119, s[40:43], s62 offen sc1')
    a(f'v_lshlrev_b32 v14, 3, v1\nv_add_u32 v14, {GX}, v14\nds_read_b64 v[12:13], v14')
    s.unpack24_consts()
    s.srd_const(48, 4096); s.srd(48, 36)
    a('s_mov_b32 s56, 0x00030003\ns_mov_b32 s57, s56')
    a('v_and_b32 v11, 1, v1\nv_lshlrev_b32 v14, 5, v2\nv_lshl_add_u32 v14, v11, 1, v14')
    a('s_lshl_b32 s11, s5, 10\ns_lshl_b32 s12, s3, 7\ns_add_u32 s11, s11, s12\ns_lshl2_add_u32 s11, s6, s11')
    if kw.get('d1'): a(f's_sleep {kw["d1"]}')
    a(LA)
    if kw.get('d2'): a(f's_sleep {kw["d2"]}')
    a(LB_)
    s.budget()
    a('s_waitcnt vmcnt(2)\nv_cmp_ne_u32 vcc, s44, v35\ns_cbranch_vccnz L_mpoll')
    s.stamp(10)
    s.unpack24(32)
    s.reduce32(32)
    a('s_waitcnt lgkmcnt(0)')
    s.round_bf16('v32')
    a('v_add_f32 v32, v32, v12')
    s.round_bf16('v32')
    a(f'v_mul_f32 v33, {hex(f2u(-math.log2(math.e)))}, v32\nv_exp_f32 v33, v33\nv_add_f32 v33, 1.0, v33\nv_rcp_f32 v33, v33\nv_mul_f32 v12, v32, v33')
    s.round_bf16('v12')
    a('L_fpoll:')
    a('s_waitcnt vmcnt(1)\nv_cmp_ne_u32 vcc, s44, v19\ns_cbranch_vccz L_fdone')
    if kw.get('d4'): a(f's_sleep {kw["d4"]}')
    a(LA)
    s.budget()
    a('s_waitcnt vmcnt(1)\nv_cmp_ne_u32 vcc, s44, v23\ns_cbranch_vccz L_fdoneB')
    if kw.get('d3'): a(f's_sleep {kw["d3"]}')
    a(LB_ + '\ns_branch L_fpoll')
    def finish(r):
        s.stamp(14)
        s.unpack24(r)
        s.reduce32(r)
        if kw.get('exactfin', 0):
            s.round_bf16(f'v{r}')
            a(f'v_mul_f32 v{r}, v{r}, v12')
            s.round_bf16(f'v{r}')
            a(f'v_add_f32 v{r}, v{r}, v13')
        else:
            a(f'v_fma_f32 v{r}, v{r}, v12, v13')
        a('s_mov_b64 exec, s[56:57]')
        a(f'v_cvt_pk_bf16_f32 v{r}, v{r}, v{r}')
        a(f'buffer_store_short v{r}, v14, s[48:51], s11 offen')
    a('L_fdoneB:')
    finish(20)
    a('s_branch L_epoch')
    a('L_fdone:')
    finish(16)
    a('L_epoch:')
    s.stamp(15)
    a('s_cmp_lg_u32 s2, 0\ns_cbranch_scc1 L_end')
    a('s_mov_b64 exec, 1\nbuffer_store_dword v123, v8, s[40:43], 0 offen')
    a('s_branch L_end')

    a('L_qrem:')
    a('s_mov_b32 exec_lo, 0x000f000f\ns_mov_b32 exec_hi, 0x000f000f')
    a('buffer_store_dwordx4 v[108:111], v106, s[40:43], s58 offen sc1\nbuffer_store_dwordx4 v[112:115], v107, s[40:43], s59 offen sc1')
    a('s_mov_b64 exec, -1')
    a('L_qrem2:')
    a(f'ds_read_b32 v9, v8 offset:{F_Q}')
    for t in range(4): a(f'ds_read_b128 v[{64+4*t}:{67+4*t}], v{102+t}')
    s.budget()
    a('s_waitcnt lgkmcnt(0)\nv_readfirstlane_b32 s47, v9\ns_cmp_eq_u32 s47, 4\ns_cbranch_scc0 L_qgo\ns_sleep 2\ns_branch L_qrem2')
    if kw.get('wb') is not None:
        a('L_wb:')
        a(f's_cmp_lg_u32 s7, 1\ns_cbranch_scc1 L_end\ns_and_b32 s10, s4, {kw["wb"]}\ns_cbranch_scc1 L_end')
        if kw.get('wbd'): a(f's_sleep {kw["wbd"]}')
        a('buffer_wbl2 sc1\ns_branch L_end')
    a('L_orem:')
    a('buffer_store_dwordx4 v[40:43], v30, s[40:43], s14 offen sc1\nbuffer_store_dwordx4 v[44:47], v30, s[40:43], s14 offen offset:1024 sc1')
    a('s_branch L_ost')
    a('L_P:')
    if 'P' in kw.get('kill', ''): a('s_waitcnt lgkmcnt(0)\ns_branch L_end')
    a('s_setprio 3')
    a('s_getreg_b32 s45, hwreg(HW_REG_XCC_ID, 0, 4)')
    a('v_and_b32 v5, 3, v1')
    a(f's_lshl_b32 s10, s3, 15\ns_lshl_b32 s12, s4, 10\ns_add_u32 s12, s12, s10')
    a('s_waitcnt lgkmcnt(0)')
    if kw.get('warmq'):
        a(f'v_and_b32 v10, 7, v1\nv_lshlrev_b32 v10, 7, v10\nv_and_b32 v11, 8, v1\nv_lshl_add_u32 v10, v11, 15, v10\ns_add_u32 s11, s12, {WS_Q}')
        a(f's_mov_b64 exec, {0xff if kw["warmq"] == 1 else 0xffff}\nbuffer_load_dword v7, v10, s[40:43], s11 offen {kw.get("warmqfl", "")}\ns_mov_b64 exec, -1')
    a(f's_lshl_b32 s11, s5, 13\ns_add_u32 s10, s10, s11\ns_add_u32 s10, s10, {WS_Q}\ns_add_u32 s15, s10, 4096')
    a('v_lshlrev_b32 v10, 4, v1')
    a(f'v_lshrrev_b32 v11, 5, v1\nv_and_b32 v12, 31, v1\nv_lshlrev_b32 v13, 3, v12\nv_lshlrev_b32 v14, 4, v11\nv_xor_b32 v13, v13, v14\nv_lshl_add_u32 v13, v11, 8, v13\nv_add_u32 v22, {QL}, v13')
    for c in range(1, 8): a(f'v_xor_b32 v{22+c}, {c*32}, v22')
    a(f's_mov_b32 s14, {kw.get("nfast", 48)}')
    a('s_waitcnt lgkmcnt(0)')
    s.stamp(1)
    if 'W' in kw.get('kill', ''): a('s_branch L_end')
    if kw.get('qs'): a(f's_sleep {kw["qs"]}')
    if kw.get('qg'): s.wait_flag(C_G, kw['qg'], sleep=1)
    s.wait_flag(C_QP, 4, sleep=1, extra=[f'ds_read_b32 v15, v8 offset:{TAGW}'])
    a('s_waitcnt lgkmcnt(0)\nv_readfirstlane_b32 s44, v15')
    if q0: a(f's_sleep {q0}')
    s.stamp(2)
    a('L_qpoll:')
    for c in range(8): a(f'buffer_load_dwordx4 v[{32+4*c}:{35+4*c}], v10, s[40:43], s{10 if c < 4 else 15} offen offset:{(c&3)*1024} sc1 {kw.get("qnt", "")}')
    s.budget()
    a('s_waitcnt vmcnt(0)')
    a('v_xor_b32 v15, s44, v35')
    for c in range(1, 8): a(f'v_bitop3_b32 v15, v{35+4*c}, s44, v15 bitop3:0xbe')
    a('v_cmp_ne_u32 vcc, 0, v15\ns_cbranch_vccz L_qgot')
    a(f's_mov_b64 exec, vcc\ns_sub_u32 s14, s14, 1\ns_cbranch_scc0 L_qpoll')
    a(f'v_mov_b32 v15, 4\nds_write_b32 v8, v15 offset:{F_Q}\ns_branch L_qpoll')
    a('L_qgot:')
    a('s_mov_b64 exec, -1')
    a('v_xor_b32 v15, s45, v34')
    for c in range(8):
        a(f'ds_write_b64 v{22+c}, v[{32+4*c}:{33+4*c}] offset:{c*512}')
        if c < 7: a(f'v_bitop3_b32 v15, v{38+4*c}, s45, v15 bitop3:0xbe')
    a('v_and_b32 v15, 15, v15\nv_cmp_ne_u32 vcc, 0, v15\ns_cmp_eq_u64 vcc, 0\ns_cselect_b32 s47, 1, 2')
    if kw.get('force_remote'): a('s_mov_b32 s47, 2')
    a(f'v_mov_b32 v15, s47\nds_write_b32 v8, v15 offset:{F_Q}')
    s.stamp(3)
    a('v_add3_u32 v16, v34, v38, v42\nv_add3_u32 v17, v46, v50, v54\nv_add3_u32 v16, v16, v58, v62\nv_add_u32 v16, v16, v17')
    for m in ('quad_perm:[1,0,3,2] row_mask:0xf', 'quad_perm:[2,3,0,1] row_mask:0xf', 'row_half_mirror row_mask:0xf', 'row_mirror row_mask:0xf', 'row_bcast:15 row_mask:0xa', 'row_bcast:31 row_mask:0xc'):
        a(f'v_add_u32_dpp v16, v16, v16 {m} bank_mask:0xf')
    a('v_readlane_b32 s10, v16, 63\ns_cmp_lt_i32 s10, 0\ns_cselect_b32 s10, 0, 8192')
    if kw.get('kflip'): a('s_xor_b32 s10, s10, 8192')
    a(f'v_mov_b32 v15, s10\nds_write_b32 v8, v15 offset:{F_K}')
    a(f's_lshl_b32 s11, s12, 1\ns_add_u32 s11, s11, {WS_O}')
    a(f's_lshl2_add_u32 s12, s3, s5\ns_lshl4_add_u32 s12, s12, s6\ns_lshl_b32 s12, s12, 10\ns_add_u32 s12, s12, s10\ns_add_u32 s12, s12, {WS_S - 2048}')
    a('v_lshlrev_b32 v10, 7, v1\nv_add_u32 v11, s12, v10\nv_add_u32 v10, s11, v10\nv_cmp_gt_u32 vcc, 16, v1\nv_cndmask_b32 v10, v11, v10, vcc')
    if kw.get('wg'): s.wait_flag(C_G, kw['wg'], sleep=2)
    if kw.get('ont'):
        a('s_mov_b64 exec, 0xffff\nbuffer_load_dword v7, v10, s[40:43], 0 offen nt\ns_mov_b64 exec, 0xff0000\nbuffer_load_dword v7, v10, s[40:43], 0 offen')
    else:
        a('s_mov_b64 exec, 0xffffff\nbuffer_load_dword v7, v10, s[40:43], 0 offen')
    a('s_branch L_end')

    a('L_M:')
    if kw.get('mprio') is not None: a(f's_setprio {kw["mprio"]}\ns_branch L_M2')
    if 'M' in kw.get('kill', ''): a('s_waitcnt lgkmcnt(0)\ns_branch L_end')
    a('s_setprio 3')
    a('L_M2:')
    a('v_bfe_u32 v4, v1, 2, 2\nv_and_b32 v5, 3, v1')
    a('v_lshl_add_u32 v10, v4, 2, v2')
    a('v_lshlrev_b32 v11, 3, v10')
    a('v_lshlrev_b32 v10, 4, v1')
    s.mlp_slot(11, 15)
    a('s_lshl3_add_u32 s15, s5, s3\ns_lshl_b32 s11, s11, 6')
    a('v_and_b32 v24, 1, v1\nv_lshlrev_b32 v25, 5, v2\nv_lshl_add_u32 v25, v24, 1, v25')
    a('s_lshl_b32 s12, s3, 7\ns_lshl2_add_u32 s12, s6, s12\ns_lshl_b32 s13, s5, 10\ns_add_u32 s13, s13, s12')
    s.srd_const(56, 3584); s.srd_const(60, 1024); s.srd_const(96, 4096)
    a('s_waitcnt lgkmcnt(0)')
    s.srd(56, 30); s.srd(60, 34); s.srd(96, 16)
    a('buffer_load_ushort v16, v25, s[60:63], s12 offen')
    a('buffer_load_ushort v17, v25, s[96:99], s13 offen')
    a('buffer_load_dwordx2 v[14:15], v11, s[56:59], s11 offen')
    a(f'v_mul_u32_u24 v11, {HS}, v5\nv_lshl_add_u32 v11, v2, 4, v11\nv_lshrrev_b32 v12, 1, v4\nv_lshl_add_u32 v11, v12, 6, v11\nv_and_b32 v12, 1, v4\nv_lshl_add_u32 v11, v12, 3, v11\nv_add_u32 v11, {HL}, v11')
    a(f'v_mul_u32_u24 v12, {HS}, v4\nv_lshl_add_u32 v12, v2, 4, v12\nv_add_u32 v12, {HL}, v12')
    a(f'v_lshl_add_u32 v27, v2, 2, v4\nv_bfe_u32 v28, v27, 1, 2\nv_lshlrev_b32 v28, 5, v28\nv_lshl_add_u32 v28, v27, 7, v28\nv_lshl_add_u32 v28, v5, 3, v28\nv_add_u32 v28, {W2}, v28')
    a('v_xor_b32 v29, 32, v28\nv_xor_b32 v30, 64, v28\nv_xor_b32 v31, 96, v28')
    a(f'v_lshlrev_b32 v13, 3, v1\nv_add_u32 v13, {GX}, v13')
    a('s_waitcnt vmcnt(1) lgkmcnt(0)')
    a('v_lshlrev_b32 v16, 16, v16\nv_lshlrev_b32 v17, 16, v17\nds_write_b64 v13, v[16:17]')
    if kw.get('hs'): a(f's_sleep {kw["hs"]}')
    s.wait_flag(C_HP, 4, sleep=1, extra=[f'ds_read_b32 v23, v8 offset:{TAGW}'])
    a('s_waitcnt lgkmcnt(0)\nv_readfirstlane_b32 s44, v23')
    s.pack24_consts(); s.unpack24_consts()
    if kw.get('hq'): s.wait_flag(F_Q, 1, sleep=1)
    if kw.get('h0', 8): a(f's_sleep {kw.get("h0", 8)}')
    a(f's_lshl2_add_u32 s10, s3, s5\ns_lshl_b32 s10, s10, 13\ns_add_u32 s10, s10, {WS_H}\ns_add_u32 s11, s10, 4096')
    s.stamp(2)
    a('L_hpoll:')
    for c in range(8): a(f'buffer_load_dwordx4 v[{32+4*c}:{35+4*c}], v10, s[40:43], s{10 + (c>>2)} offen offset:{(c&3)*1024} sc1 {kw.get("qnt", "")}')
    s.budget()
    a('s_waitcnt vmcnt(0)')
    a('v_xor_b32 v13, s44, v35')
    for c in range(1, 8): a(f'v_bitop3_b32 v13, v{35+4*c}, s44, v13 bitop3:0xbe')
    a('v_cmp_ne_u32 vcc, 0, v13\ns_cbranch_vccnz L_hpoll')
    s.stamp(3)
    for c in range(8): s.unpack24(32 + 4 * c)
    for st in (16, 8, 4):
        for r in range(32, 32 + st, 2): a(f'v_pk_add_f32 v[{r}:{r+1}], v[{r}:{r+1}], v[{r+st}:{r+st+1}]')
    a('v_cvt_pk_bf16_f32 v36, v32, v33\nv_cvt_pk_bf16_f32 v37, v34, v35')
    for k in range(2):
        a(f'v_lshlrev_b32 v{32+2*k}, 16, v{36+k}\nv_and_b32 v{33+2*k}, 0xffff0000, v{36+k}\nv_lshlrev_b32 v{40+2*k}, 16, v{14+k}\nv_and_b32 v{41+2*k}, 0xffff0000, v{14+k}')
    for k in range(4): a(f'v_add_f32 v{32+k}, v{32+k}, v{40+k}')
    a('v_cvt_pk_bf16_f32 v36, v32, v33\nv_cvt_pk_bf16_f32 v37, v34, v35')
    for k in range(2): a(f'v_lshlrev_b32 v{32+2*k}, 16, v{36+k}\nv_and_b32 v{33+2*k}, 0xffff0000, v{36+k}')
    K1 = -2 * math.sqrt(2 / math.pi) * math.log2(math.e)
    a(f'v_mov_b32 v44, {hex(f2u(K1))}')
    for k in range(4): a(f'v_mul_f32 v{36+k}, v{32+k}, v{32+k}')
    for k in range(4): a(f'v_fmamk_f32 v{36+k}, v{36+k}, {hex(f2u(K1*0.044715))}, v44')
    for k in range(4): a(f'v_mul_f32 v{36+k}, v{36+k}, v{32+k}')
    for k in range(4): a(f'v_exp_f32 v{36+k}, v{36+k}')
    for k in range(4): a(f'v_add_f32 v{36+k}, 1.0, v{36+k}')
    for k in range(4): a(f'v_rcp_f32 v{36+k}, v{36+k}')
    for k in range(4): a(f'v_mul_f32 v{32+k}, v{32+k}, v{36+k}')
    a('v_cvt_pk_bf16_f32 v40, v32, v33\nv_cvt_pk_bf16_f32 v41, v34, v35')
    a('ds_write_b64 v11, v[40:41]\nds_read_b128 v[48:51], v12\nds_read_b128 v[52:55], v12 offset:64')
    a(f's_add_u32 s10, s6, {r2}\ns_and_b32 s10, s10, 7\ns_lshl_b32 s10, s10, 5\ns_add_u32 s10, s10, s15\ns_lshl_b32 s10, s10, 10\ns_add_u32 s10, s10, {WS_M}')
    a('v_lshlrev_b32 v10, 4, v1\nv_mov_b32 v23, s44')
    s.wait_flag(C_G, TH['2'][1], sleep=1)
    for ks in range(2):
        for T in range(4):
            for u in range(2):
                r = 64 + 16 * ks + 4 * T + 2 * u
                a(f'ds_read_b64_tr_b16 v[{r}:{r+1}], v{28+T} offset:{ks*4096+u*2048}')
    a('s_waitcnt lgkmcnt(0)')
    for ks in range(2):
        for T in range(4): s.mfma(32 + 4 * T, 48 + 4 * ks, 64 + 16 * ks + 4 * T, ks == 0)
    s.pack24(20, 32, 36, 40, 44)
    a('buffer_store_dwordx4 v[20:23], v10, s[40:43], s10 offen sc1')
    s.stamp(4)
    a('L_end:')
    if kw.get('probe'):
        pw, pst, pm, pb = kw['probe']
        a(f's_waitcnt lgkmcnt(0)\ns_cmp_lg_u32 s7, {pw}\ns_cbranch_scc1 L_exit')
        if pw >= 4: a('s_barrier\ns_barrier' if kw.get('obar') and pw != 6 else 's_barrier')
        if kw.get('clk') == 1: a('s_memtime s[92:93]\ns_waitcnt lgkmcnt(0)\ns_sub_u32 s10, s92, s90\ns_lshr_b32 s10, s10, 1\ns_add_u32 s94, s64, s10')
        if kw.get('clk') == 2: a('s_memrealtime s[92:93]\ns_waitcnt lgkmcnt(0)\ns_sub_u32 s10, s92, s88\ns_mul_i32 s10, s10, 10\ns_add_u32 s94, s64, s10')
        if kw.get('px') is not None: a(f's_cmp_lg_u32 s45, {kw["px"]}\ns_cbranch_scc1 L_exit')
        if kw.get('pm') is not None: a(f's_mul_i32 s10, s45, {kw["pm"]}\ns_add_u32 s94, s64, s10')
        if kw.get('pg') is not None: a(f's_cmp_lg_u32 s3, {kw["pg"]}\ns_cbranch_scc1 L_exit')
        a(f's_sub_u32 s10, s{64+2*pst}, s64\ns_mul_i32 s10, s10, {pm}\ns_add_u32 s10, s10, {pb}\ns_min_u32 s10, s10, 20000')
        a('L_padloop:\ns_memrealtime s[12:13]\ns_waitcnt lgkmcnt(0)\ns_sub_u32 s11, s12, s64\ns_cmp_lt_u32 s11, s10\ns_cbranch_scc1 L_padloop')
    s.dump_stamps()
    a('L_exit:')
    a('s_endpgm')
    lines, added = hazard.fix(s.o, verbose=kw.get('verbose', False))
    return wrap('\n'.join(lines) + '\n', 256, NW * 64, kw.get('lds', LDS_TOTAL), kw.get('vgpr', 192))

if __name__ == '__main__':
    import ast
    out = sys.argv[1]
    kw = {}
    for x in sys.argv[2:]:
        k, v = x.split('=')
        try: kw[k] = ast.literal_eval(v)
        except Exception: kw[k] = v
    open(out, 'w').write(gen(**kw))
```

```python
import sys, math, struct
sys.path.insert(0, 'dev')
from common import *
import hazard

def f2u(x):
    return struct.unpack('<I', struct.pack('<f', x))[0]

NW = 7
FL = 0
WA, W1, KB, W2, VB, WO = [2048 + x for x in (0, 16384, 24576, 57344, 65536, 98304)]
XN = 2048 + 114688; XS = 1088
YL = XN + 4 * XS
QL = YL + 4 * XS
assert QL % 256 == 0
PL = QL + 4096
RED = PL + 4096
HL = RED + 4096; HS = 144
MX = 128
FP = 192
GX = HL + 640
LDS_TOTAL = GX + 512
C_WA, C_G, C_XN, F_Q, C_MX, C_P, F_WT, C_QP, C_Y, C_HP, T_A, T_B, F_K, TAGW = [4 * i for i in range(14)]

WS_Q = 0x1000
WS_H = WS_Q + 0x40000
WS_LSE = WS_H + 0x40000
WS_O = WS_LSE + 0x4000
WS_M = WS_O + 0x80000
WS_S = 0x150000
assert WS_S >= WS_M + 0x40000
WS_T = WS_S + 0x80000
WS_N = WS_T + 0x10000
WS_END = WS_T + 0x20000
assert WS_END <= 0x200000
STAMP = 0x8000000

class G:
    def __init__(s, **kw):
        s.o = []
        s.nl = 0
        s.kw = kw
        s.stamps = kw.get('stamps', False)
    def a(s, t):
        for l in t.split('\n'):
            l = l.strip()
            if l: s.o.append(l)
    def lab(s, p='L'):
        s.nl += 1
        return f'{p}_{s.nl}'
    def stamp(s, i):
        pr = s.kw.get('probe')
        only = s.kw.get('only')
        if (s.stamps and (only is None or i in only or i == 0)) or (pr and i in (0, pr[1])):
            s.a(f's_memrealtime s[{64+2*i}:{65+2*i}]')
    def budget(s):
        s.a('s_sub_u32 s46, s46, 1\ns_cbranch_scc1 L_end')
    def wait_flag(s, off, n, extra=None, sleep=0, vt='v9'):
        L = s.lab('W')
        if sleep:
            L2 = s.lab('W')
            s.a(f's_branch {L2}\n{L}:\ns_sleep {sleep}\n{L2}:')
        else:
            s.a(f'{L}:')
        s.a(f'ds_read_b32 {vt}, v8 offset:{off}')
        ne = 0
        if extra:
            for e in extra: s.a(e)
            ne = len(extra)
        s.budget()
        s.a(f's_waitcnt lgkmcnt({0 if (s.stamps and not s.kw.get("lean")) or (s.kw.get("safeA") and ne > 6) else min(ne, 15)})')
        s.a(f'v_cmp_gt_u32 vcc, {n}, {vt}')
        s.a(f's_cbranch_vccnz {L}')
    def signal(s, off):
        s.a(f's_mov_b64 exec, 1\nds_add_u32 v8, v6 offset:{off}\ns_mov_b64 exec, -1')
    def srd(s, d, p):
        s.a(f's_mov_b32 s{d}, s{p}\ns_mov_b32 s{d+1}, s{p+1}')
    def srd_const(s, d, n):
        s.a(f's_mov_b32 s{d+2}, {n}\ns_mov_b32 s{d+3}, 0x20000')
    def wave_sum(s, v, sd):
        for m in ('quad_perm:[1,0,3,2]', 'quad_perm:[2,3,0,1]', 'row_half_mirror', 'row_mirror'):
            s.a(f'v_add_f32_dpp {v}, {v}, {v} {m} row_mask:0xf bank_mask:0xf')
        s.a(f'v_add_f32_dpp {v}, {v}, {v} row_bcast:15 row_mask:0xa bank_mask:0xf')
        s.a(f'v_add_f32_dpp {v}, {v}, {v} row_bcast:31 row_mask:0xc bank_mask:0xf')
        s.a(f'v_readlane_b32 {sd}, {v}, 63')
    def rows_allreduce(s, op, v, t):
        s.a(f'v_mov_b32 {t}, {v}\nv_permlane16_swap_b32 {t}, {v}\n{op} {v}, {t}, {v}')
        s.a(f'v_mov_b32 {t}, {v}\nv_permlane32_swap_b32 {t}, {v}\n{op} {v}, {t}, {v}')
    def layernorm(s, src, f, t):
        P = lambda r: f'v[{r}:{r+1}]'
        for k in range(4):
            s.a(f'v_lshlrev_b32 v{f+2*k}, 16, v{src+k}\nv_and_b32 v{f+2*k+1}, s55, v{src+k}')
        s.a(f'v_pk_add_f32 {P(t)}, {P(f)}, {P(f+2)}\nv_pk_add_f32 {P(t+2)}, {P(f+4)}, {P(f+6)}\nv_pk_add_f32 {P(t)}, {P(t)}, {P(t+2)}\nv_add_f32 v{t}, v{t}, v{t+1}')
        s.wave_sum(f'v{t}', 's10')
        s.a(f'v_mov_b32 v{src+3}, {hex(f2u(1/512))}')
        s.a(f'v_mul_f32 v{src}, s10, v{src+3}')
        for k in range(4):
            s.a(f'v_pk_add_f32 {P(t+2*k)}, {P(f+2*k)}, {P(src)} op_sel_hi:[1,0] neg_lo:[0,1] neg_hi:[0,1]')
        s.a(f'v_pk_mul_f32 {P(t)}, {P(t)}, {P(t)}')
        for k in range(1, 4):
            s.a(f'v_pk_fma_f32 {P(t)}, {P(t+2*k)}, {P(t+2*k)}, {P(t)}')
        s.a(f'v_add_f32 v{t}, v{t}, v{t+1}')
        s.a(f'v_cvt_pk_bf16_f32 v{src}, v{src}, v{src}\nv_lshlrev_b32 v{src}, 16, v{src}')
        ms = ['quad_perm:[1,0,3,2] row_mask:0xf', 'quad_perm:[2,3,0,1] row_mask:0xf', 'row_half_mirror row_mask:0xf', 'row_mirror row_mask:0xf', 'row_bcast:15 row_mask:0xa', 'row_bcast:31 row_mask:0xc']
        fill = [f'v_pk_add_f32 {P(f+2*k)}, {P(f+2*k)}, {P(src)} op_sel_hi:[1,0] neg_lo:[0,1] neg_hi:[0,1]' for k in range(4)]
        fill += [f'v_cvt_pk_bf16_f32 v{t+2+k}, v{f+2*k}, v{f+2*k+1}' for k in range(4)]
        for k in range(4): fill += [f'v_lshlrev_b32 v{f+2*k}, 16, v{t+2+k}', f'v_and_b32 v{f+2*k+1}, s55, v{t+2+k}']
        for m in ms:
            s.a(f'v_add_f32_dpp v{t}, v{t}, v{t} {m} bank_mask:0xf')
            s.a(fill.pop(0)); s.a(fill.pop(0))
        s.a(f'v_readlane_b32 s10, v{t}, 63')
        s.a(fill.pop(0)); s.a(fill.pop(0))
        s.a(f'v_mul_f32 v{src}, s10, v{src+3}')
        s.a(f'v_cvt_pk_bf16_f32 v{src}, v{src}, v{src}\nv_lshlrev_b32 v{src}, 16, v{src}')
        s.a(f'v_add_f32 v{src}, {hex(f2u(1e-5))}, v{src}')
        s.a(f'v_cvt_pk_bf16_f32 v{src}, v{src}, v{src}\nv_lshlrev_b32 v{src}, 16, v{src}')
        s.a(f'v_sqrt_f32 v{src}, v{src}')
        s.a(fill.pop(0))
        s.a(f'v_cvt_pk_bf16_f32 v{src}, v{src}, v{src}\nv_lshlrev_b32 v{src}, 16, v{src}')
        s.a(f'v_rcp_f32 v{src}, v{src}')
        s.a(fill.pop(0))
        assert not fill
        for k in range(4):
            s.a(f'v_pk_mul_f32 {P(f+2*k)}, {P(f+2*k)}, {P(src)} op_sel_hi:[1,0]')
        for k in range(4):
            s.a(f'v_cvt_pk_bf16_f32 v{src+k}, v{f+2*k}, v{f+2*k+1}')
    def round_bf16(s, v):
        s.a(f'v_cvt_pk_bf16_f32 {v}, {v}, {v}\nv_lshlrev_b32 {v}, 16, {v}')
    def tag_finish(s):
        s.a('s_mul_i32 s44, s44, 0x2c9277b5\ns_add_u32 s44, s44, 0xac564b05')
    def pack24(s, d, a, b, c, e):
        s.a(f'v_perm_b32 v{d}, v{a}, v{e}, s50\nv_perm_b32 v{d+1}, v{b}, v{e}, s51\nv_perm_b32 v{d+2}, v{c}, v{e}, s52')
    def pack24_consts(s):
        s.a('s_mov_b32 s50, 0x07060503\ns_mov_b32 s51, 0x07060502\ns_mov_b32 s52, 0x07060501')
    def unpack24(s, r):
        s.a(f'v_perm_b32 v{r+3}, v{r}, v{r+1}, s53\nv_perm_b32 v{r+3}, v{r+3}, v{r+2}, s54')
    def unpack24_consts(s):
        s.a('s_mov_b32 s53, 0x04000c0c\ns_mov_b32 s54, 0x0706000c')
    def reduce32(s, r):
        s.a(f'v_permlane32_swap_b32 v{r}, v{r+2}\nv_permlane32_swap_b32 v{r+1}, v{r+3}')
        s.a(f'v_add_f32 v{r}, v{r}, v{r+2}\nv_add_f32 v{r+1}, v{r+1}, v{r+3}')
        s.a(f'v_permlane16_swap_b32 v{r}, v{r+1}\nv_add_f32 v{r}, v{r}, v{r+1}')
        for m in ('row_ror:8', 'row_ror:4', 'row_ror:2'):
            s.a(f'v_add_f32_dpp v{r}, v{r}, v{r} {m} row_mask:0xf bank_mask:0xf')
    def mfma(s, d, A, B, first):
        s.a(f'v_mfma_f32_16x16x32_bf16 v[{d}:{d+3}], v[{A}:{A+3}], v[{B}:{B+3}], {"0" if first else f"v[{d}:{d+3}]"}')
    def mlp_slot(s, d, t):
        ha = s.kw.get('ha', 4)
        s.a(f's_mul_i32 s{d}, s5, 6\ns_add_u32 s{d}, s{d}, s3\ns_cmp_gt_u32 s3, {ha}\ns_cselect_b32 s{t}, 2, 0\ns_sub_u32 s{d}, s{d}, s{t}\ns_lshl_b32 s{d}, s{d}, 1')
        s.a(f's_lshl2_add_u32 s{t}, s3, s5\ns_add_u32 s{t}, s{t}, {48-4*ha}')
        s.a(f's_bitcmp1_b32 {3 << ha}, s3\ns_cselect_b32 s{d}, s{t}, s{d}')
    def hint(s, name, off, nq, tries, sub):
        a = s.a
        a(f's_lshl_b32 s48, s3, 7\ns_add_u32 s48, s48, {WS_N + off}\ns_add_u32 s49, s48, s4')
        a('s_and_b32 s50, s44, 0xff\ns_mul_i32 s50, s50, 0x01010101\ns_mov_b32 s51, s50\nv_mov_b32 v21, s50')
        if sub: a('s_andn2_b32 s48, s49, 7')
        a(f's_mov_b32 s47, {tries}')
    def hint_go(s, name, nq):
        a = s.a
        a('s_mov_b64 exec, 1\nbuffer_store_byte v21, v8, s[40:43], s49 offen\ns_mov_b64 exec, -1')
        a(f'L_{name}:')
        a(f's_load_dwordx{2*nq} s[52:{51+2*nq}], s[40:41], s48 glc')
        a(f's_sub_u32 s47, s47, 1\ns_cbranch_scc1 L_{name}d\ns_waitcnt lgkmcnt(0)')
        for k in range(nq): a(f's_xor_b64 s[{52+2*k}:{53+2*k}], s[{52+2*k}:{53+2*k}], s[50:51]')
        for k in range(1, nq): a(f's_or_b64 s[52:53], s[52:53], s[{52+2*k}:{53+2*k}]')
        a(f's_cbranch_scc1 L_{name}\nL_{name}d:\ns_waitcnt lgkmcnt(0)')
    def dump_stamps(s, nst=16):
        if not s.stamps: return
        s.a('s_waitcnt lgkmcnt(0)\ns_mov_b64 exec, -1\nv_mov_b32 v10, 0')
        for i in range(nst):
            s.a(f'v_writelane_b32 v10, s{64+2*i}, {i}')
        s.a(f's_mul_i32 s10, s2, {NW*64}\ns_lshl_b32 s11, s7, 6\ns_add_u32 s10, s10, s11\ns_add_u32 s10, s10, {STAMP}')
        s.a('v_lshlrev_b32 v11, 2, v1\ns_mov_b64 exec, 0xffff\nbuffer_store_dword v10, v11, s[40:43], s10 offen ' + s.kw.get('stfl', ''))

def gen(**kw):
    s = G(**kw)
    a = s.a
    depth = kw.get('depth', 20)
    NT = kw.get('nt', 'nt')
    npq = kw.get('npq', 2); gapq = kw.get('gapq', 12); q0 = kw.get('q0', 4)
    npl = kw.get('npl', 4); gapl = kw.get('gapl', 6)
    CSC = math.log2(math.e) / math.sqrt(128)
    ONE2 = 0x3f803f80
    order = kw.get('order', '11kkkkkkkk22vvvvvvvvoooo')
    TH = {c: [i + 1 for i, x in enumerate(order) if x == c] for c in '1k2vo'}
    assert [len(TH[c]) for c in '1k2vo'] == [2, 8, 2, 8, 4]
    marks = {TH['1'][1], TH['2'][1], TH['o'][3], len(order) - (kw.get('oe') or 0), kw.get('qg') or 2} | set(TH['k'][1::2]) | set(TH['v'][1::2])
    def common():
        if s.stamps:
            for i in range(1, 16): a(f's_mov_b32 s{64+2*i}, 0')
        a('v_and_b32 v1, 63, v0\ns_lshr_b32 s5, s4, 3\ns_and_b32 s6, s4, 7')
        a(f's_mov_b32 s42, {STAMP + 0x100000 if s.stamps else WS_END}\ns_mov_b32 s43, 0x20000')
        a(f's_mov_b32 s46, {kw.get("budget", 5000000)}')
        a('v_mov_b32 v6, 1')
        a('v_lshrrev_b32 v2, 4, v1\nv_and_b32 v3, 15, v1')
    s.stamp(0)
    a('s_load_dwordx16 s[16:31], s[0:1], 0\ns_load_dwordx8 s[32:39], s[0:1], 64\ns_load_dwordx2 s[40:41], s[0:1], 96')
    a('s_lshr_b32 s4, s2, 3\ns_cmp_ge_u32 s4, 32\ns_cbranch_scc1 L_exit')
    a('v_lshrrev_b32 v2, 6, v0\nv_bfe_u32 v4, v0, 3, 3')
    a('v_mov_b32 v8, 0\nds_write_b8 v0, v8')
    if kw.get('prefetch', True):
        a('s_getpc_b64 s[8:9]\nL_pc:')
        if kw.get('pf2'):
            a('s_lshl_b32 s10, s4, 7\nv_lshl_add_u32 v3, v0, 12, s10\nv_min_u32 v3, L_exit-L_pc, v3\nglobal_load_dword v7, v3, s[8:9]')
        else:
            a('v_lshlrev_b32 v3, 7, v0\nv_min_u32 v3, L_exit-L_pc, v3\nglobal_load_dword v7, v3, s[8:9]')
    a('v_readfirstlane_b32 s7, v2')
    a('v_and_b32 v5, 6, v4\nv_xor_b32 v5, v5, v0\nv_and_b32 v5, 7, v5\nv_lshlrev_b32 v5, 4, v5')
    a('s_and_b32 s3, s2, 7\ns_cmp_eq_u32 s7, 6\ns_cbranch_scc1 L_L\ns_cmp_ge_u32 s7, 4\ns_cbranch_scc1 L_PM')
    a('s_mov_b32 s51, 0x20000\nv_lshlrev_b32 v11, 4, v0')
    a('s_lshr_b32 s10, s4, 3\ns_lshl2_add_u32 s10, s10, s7\ns_lshl_b32 s10, s10, 18\ns_and_b32 s11, s4, 7\ns_lshl3_add_u32 s11, s3, s11\ns_xor_b32 s11, s11, ' + str(kw.get('rq', 0)) + '\ns_lshl_b32 s11, s11, 7\ns_add_u32 s10, s10, s11')
    a(f's_bfm_b32 s50, 1, 22\ns_bfm_b32 s12, 6, 10\nv_lshl_add_u32 v10, v4, 13, v5\ns_lshl_b32 m0, s7, 12\ns_addk_i32 m0, {WA}')
    a('s_waitcnt lgkmcnt(0)')
    a('s_mov_b64 s[48:49], s[22:23]')
    a('global_load_dwordx4 v[12:15], v11, s[16:17]')
    for r in range(4):
        a(f'buffer_load_dwordx4 v10, s[48:51], s10 offen offset:{r*1024} {NT} lds')
        if r < 3: a('s_add_u32 s10, s10, s12')
    a('s_branch L_C')
    a('L_L:')
    a('s_barrier')
    common()
    rq, r2 = kw.get('rq', 0), kw.get('r2', 0)
    s.mlp_slot(10, 11)
    a('s_cselect_b32 s11, 64, 0\ns_cselect_b32 s8, 30, 15')
    a('v_and_b32 v14, s11, v5\nv_lshl_add_u32 v14, v14, 24, v5\nv_mul_u32_u24 v32, 3584, v4\nv_add_u32 v32, v32, v14')
    for r in range(1, 4): a(f'v_add_u32 v{32+r}, {r*(8*3584-1024)}, v32')
    a('v_xor_b32 v14, v3, v2\nv_lshlrev_b32 v14, 4, v14\nv_lshl_add_u32 v18, v2, 8, v14')
    for r in range(1, 4): a(f'v_xor_b32 v{18+r}, {r*64}, v18\nv_add_u32 v{18+r}, {r*7168}, v{18+r}')
    a(f's_mov_b32 s50, {512*3584}\ns_mov_b32 s51, 0x20000\ns_lshl_b32 s8, 1, s8')
    a(f's_mul_i32 s12, s6, {64*3584}\ns_lshl_b32 s11, s10, 6\ns_add_u32 s12, s12, s11')
    a(f's_lshl_b32 s13, s5, 23\ns_lshl_b32 s11, s3, 20\ns_add_u32 s13, s13, s11\ns_lshl_b32 s11, s6, 10\ns_add_u32 s13, s13, s11\ns_add_u32 s13, s13, {3072*256}')
    a('s_bfm_b32 s54, 1, 25\ns_mov_b32 s55, s51\ns_mov_b32 s14, s13')
    a('s_waitcnt lgkmcnt(0)')
    s.stamp(1)
    dg = depth // 4
    segs = {'1': (32, 48, 28, 12, 32 * 3584, W1), 'k': (18, 52, 18, 13, 32768, KB), 'v': (22, 56, 20, 14, 32768, VB),
            '2': (26, 60, 32, 15, 's8', W2), 'o': (26, 96, 24, 9, 32768, WO)}
    cnt = {c: 0 for c in segs}
    late = False
    prof = kw.get('prof')
    prof = [int(x, 16) for x in prof] if prof else [dg] * len(order)
    assert len(prof) == len(order)
    landed = 0
    first_wait = min(gi for gi in range(len(order)) if gi + 1 > prof[gi])
    for gi, c in enumerate(order):
        vr, sd, ptr, so, step, lds = segs[c]
        if gi == first_wait:
            a('v_lshlrev_b32 v14, 1, v2\nv_xor_b32 v14, v3, v14\nv_lshlrev_b32 v14, 4, v14\nv_lshl_add_u32 v22, v2, 8, v14')
            a(f'v_xor_b32 v23, 128, v22\nv_add_u32 v24, {2*7168}, v22\nv_add_u32 v25, {3*7168}, v23\nv_add_u32 v23, 7168, v23')
            a('v_lshl_add_u32 v26, v4, 10, v5')
            for r in range(1, 4): a(f'v_add_u32 v{26+r}, {r*7168}, v26')
            a(f's_mov_b32 s58, s54\ns_mov_b32 s59, s51\ns_mov_b32 s62, {1792*1024}\ns_mov_b32 s63, s51\ns_bfm_b32 s98, 1, 22\ns_mov_b32 s99, s51')
            s.srd(56, 20); s.srd(60, 32); s.srd(96, 24)
            a(f's_add_u32 s11, s6, {r2}\ns_and_b32 s11, s11, 7\ns_lshl_b32 s11, s11, 7\ns_lshl_b32 s15, s10, 15\ns_add_u32 s15, s15, s11')
            a('s_lshl2_add_u32 s9, s3, s5\ns_lshl_b32 s9, s9, 17\ns_lshl_b32 s11, s6, 7\ns_add_u32 s9, s9, s11')
            s.stamp(2)
            late = True
        assert late or c in '1k'
        if cnt[c] == 0 and c in '1k': s.srd(sd, ptr)
        a(f's_mov_b32 m0, {lds + cnt[c] * 4096}')
        if cnt[c]: a(f's_add_u32 s{so}, s{so}, {step}')
        while landed < gi + 1 - prof[gi]:
            landed += 1
            if landed in marks or landed == gi + 1 - prof[gi]:
                a(f's_waitcnt vmcnt({(gi-landed)*4})')
            if landed in marks:
                a(f'v_mov_b32 v30, {landed}\nds_write_b32 v8, v30 offset:{C_G}')
                if landed == TH['v'][7]: s.stamp(6)
        for r in range(4):
            fine = kw.get('fine')
            if fine and gi * 4 + r >= fine and (r or fine - 1 < (gi - landed) * 4): a(f's_waitcnt vmcnt({fine-1})')
            fl = kw.get('nt' + c, NT)
            a(f'buffer_load_dwordx4 v{vr+r}, s[{sd}:{sd+3}], s{so} offen offset:{r*1024} {fl} lds')
        cnt[c] += 1
    for n in range(landed + 1, len(order) + 1):
        if n in marks:
            if kw.get('obar') and n == len(order) and n != TH['v'][7]:
                a('s_waitcnt vmcnt(0)')
            else:
                a(f'v_mov_b32 v30, {n}\ns_waitcnt vmcnt({(len(order)-n)*4})\nds_write_b32 v8, v30 offset:{C_G}')
            if n == TH['v'][7]: s.stamp(6)
    s.stamp(7)
    if kw.get('obar'): a('s_barrier')
    a('s_branch L_end')

    if kw.get('shift'): a('s_nop 0')
    a('L_PM:')
    a('s_barrier')
    common()
    ns = kw.get('nsamp', 1)
    a(f's_lshr_b32 s10, s2, 6\ns_lshl1_add_u32 s10, s10, s7\ns_lshl_b32 s10, s10, 6\ns_and_b32 s11, s2, 63\ns_add_u32 s10, s10, s11\ns_lshl_b32 s10, s10, 7\ns_add_u32 s10, s10, {WS_T - 4*8192}')
    a('s_waitcnt lgkmcnt(0)')
    if kw.get('walk'): a('s_branch WK_A\nWK_Aret:')
    if kw.get('pd'): a(f's_sleep {kw["pd"]}')
    a('s_memtime s[12:13]\ns_load_dword s11, s[40:41], s10')
    if ns == 2: a('s_add_u32 s10, s10, 0x10000\ns_waitcnt lgkmcnt(0)\ns_load_dword s11, s[40:41], s10')
    a('s_waitcnt lgkmcnt(0)\ns_memtime s[14:15]\ns_lshl_b32 s10, s7, 2\nv_mov_b32 v10, s10\ns_waitcnt lgkmcnt(0)')
    a(f's_sub_u32 s12, s14, s12\nv_mov_b32 v11, s12\nds_write_b32 v10, v11 offset:{T_A - 16}')
    a('s_cmp_eq_u32 s7, 4\ns_cbranch_scc1 L_P\ns_branch L_M')
    a('L_C:')
    if kw.get('clk'): a('s_memtime s[90:91]\ns_memrealtime s[88:89]')
    a('s_load_dword s44, s[40:41], 0\ns_barrier')
    a('s_setprio 2')
    common()
    s.stamp(1)
    if 'C' in kw.get('kill', ''): a('s_waitcnt vmcnt(0)\ns_branch L_end')
    a('v_bfe_u32 v4, v1, 2, 2\nv_and_b32 v5, 3, v1')
    a(f's_mul_i32 s11, s7, {XS}\ns_add_u32 s11, s11, {XN}')
    a('v_lshrrev_b32 v10, 2, v1\nv_lshlrev_b32 v10, 6, v10\nv_and_b32 v11, 1, v1\nv_lshl_add_u32 v10, v11, 5, v10\nv_and_b32 v11, 2, v1\nv_lshl_add_u32 v10, v11, 2, v10\nv_add_u32 v11, s11, v10')
    a('s_mov_b32 s55, 0xffff0000')
    a('v_lshl_add_u32 v27, v2, 2, v4\nv_bfe_u32 v96, v27, 1, 2\nv_lshlrev_b32 v96, 5, v96\nv_lshl_add_u32 v96, v27, 7, v96\nv_lshl_add_u32 v96, v5, 3, v96')
    a('s_lshl_b32 s12, s7, 5\nv_xor_b32 v10, s12, v96')
    a('s_getreg_b32 s45, hwreg(HW_REG_XCC_ID, 0, 4)')
    a(f'v_mul_u32_u24 v24, {XS}, v5\nv_lshl_add_u32 v24, v2, 4, v24')
    a(f's_lshl_b32 s10, s5, 8\ns_add_u32 s10, s10, {XN}\nv_add_u32 v25, s10, v24')
    a(f's_lshl_b32 s10, s6, 7\ns_add_u32 s10, s10, {YL}\nv_add_u32 v24, s10, v24')
    a(f's_lshl_b32 s14, s3, 15\ns_lshl1_add_u32 s14, s12, s14\ns_lshl_b32 s13, s4, 8\ns_xor_b32 s58, s13, {rq*256}\ns_add_u32 s58, s14, s58\ns_add_u32 s58, s58, {WS_Q}')
    a(f's_lshl2_add_u32 s59, s13, s14\ns_add_u32 s59, s59, {WS_H}')
    a('v_lshlrev_b32 v106, 13, v3\nv_lshl_add_u32 v106, v2, 4, v106\nv_lshlrev_b32 v107, 4, v1\nv_mov_b32 v30, 0x3ff\nv_mov_b32 v31, 0xfffffc01')
    s.pack24_consts()
    a('s_mov_b32 s13, 1')
    a('s_waitcnt vmcnt(0)' if kw.get('safeB') else 's_waitcnt vmcnt(4)')
    if not kw.get('ackst'): s.stamp(2)
    a('L_ln:')
    s.layernorm(12, 16, 32)
    a(f'ds_write2_b64 v11, v[12:13], v[14:15] offset1:2\nv_add_u32 v11, {YL-XN}, v11')
    a('s_sub_u32 s13, s13, 1\ns_cbranch_scc0 L_ln')
    if kw.get('walk'): a('s_branch L_wk0s\nWK_A:\ns_branch WK_Aret\nL_wk0s:')
    s.stamp(3)
    a('s_waitcnt vmcnt(0) lgkmcnt(0)')
    if kw.get('st_tile'): s.stamp(5)
    s.signal(C_WA)
    s.tag_finish()
    a(f'v_mov_b32 v111, s44\nv_mov_b32 v115, s44\nds_write_b32 v8, v111 offset:{TAGW}')
    s.wait_flag(C_WA, 4, extra=[f'ds_read_b64 v[28:29], v8 offset:{T_A}'] + [x for t in range(4) for x in (f'ds_read_b128 v[{64+4*t}:{67+4*t}], v25 offset:{t*64}',
                f'ds_read_b64_tr_b16 v[{40+4*t}:{41+4*t}], v10 offset:{WA+t*4096}', f'ds_read_b64_tr_b16 v[{42+4*t}:{43+4*t}], v10 offset:{WA+t*4096+2048}')])
    for t in range(4):
        a(f's_waitcnt lgkmcnt({9-3*t})')
        s.mfma(16, 40 + 4 * t, 64 + 4 * t, t == 0)
        if t == 0: a('v_sub_u32 v110, v28, v29\nv_min_u32 v28, v28, v29')
        if t == 1: a('v_cmp_ne_u32 vcc, 0, v28\nv_med3_i32 v110, v110, v30, v31')
        if t == 2: a('v_cndmask_b32 v110, 0, v110, vcc\nv_lshl_or_b32 v110, v110, 4, s45')
    for t in range(2): a(f'ds_read_b128 v[{80+4*t}:{83+4*t}], v24 offset:{t*64}')
    a('s_mov_b32 exec_lo, 0x000f000f\ns_mov_b32 exec_hi, 0x000f000f')
    a('v_cvt_pk_bf16_f32 v108, v16, v17\nv_cvt_pk_bf16_f32 v109, v18, v19')
    a('buffer_store_dwordx4 v[108:111], v106, s[40:43], s58 offen')
    if kw.get('qe'): s.signal(C_QP)
    else: a('s_mov_b64 exec, -1')
    if not kw.get('ackst'): s.stamp(4)
    s.wait_flag(C_G, TH['1'][1], extra=[f'ds_read_b64_tr_b16 v[{40+2*t}:{41+2*t}], v10 offset:{W1+t*2048}' for t in range(4)], sleep=1)
    for t in range(2):
        a(f's_waitcnt lgkmcnt({2-2*t})')
        s.mfma(16, 40 + 4 * t, 80 + 4 * t, t == 0)
    a('s_mov_b32 exec_lo, 0x000f000f\ns_mov_b32 exec_hi, 0x000f000f')
    s.pack24(112, 16, 17, 18, 19)
    a('buffer_store_dwordx4 v[112:115], v107, s[40:43], s59 offen')
    if kw.get('he'): s.signal(C_HP)
    else: a('s_mov_b64 exec, -1')
    if 'Q' in kw.get('kill', ''): a('s_branch L_end')
    a(f's_lshl_b32 s10, s7, 13\ns_add_u32 s10, s10, {KB}')
    a(f'v_xor_b32 v10, v2, v3\nv_lshlrev_b32 v10, 4, v10\nv_lshl_add_u32 v10, v3, 8, v10\nv_add_u32 v102, {QL}, v10\nv_add_u32 v10, s10, v10')
    a('v_xor_b32 v103, 64, v102\nv_xor_b32 v104, 128, v102\nv_xor_b32 v105, 192, v102')
    a('v_xor_b32 v11, 64, v10\nv_xor_b32 v12, 128, v10\nv_xor_b32 v13, 192, v10')
    a(f's_lshl_b32 s10, s7, 2\ns_add_u32 s10, s10, {MX}\nv_lshlrev_b32 v15, 4, v5\nv_add_u32 v24, s10, v15\nv_add_u32 v15, {MX}, v15\ns_add_u32 s10, s10, {FP-MX}\nv_mov_b32 v14, s10')
    a(f's_lshl_b32 s10, s7, 10\ns_add_u32 s10, s10, {PL}\nv_lshlrev_b32 v25, 4, v1\nv_add_u32 v26, s10, v25\nv_add_u32 v25, {PL}, v25')
    a('v_and_b32 v28, 7, v27\ns_lshl_b32 s10, s7, 1\nv_xor_b32 v28, s10, v28\nv_lshlrev_b32 v28, 5, v28\nv_lshl_add_u32 v28, v27, 8, v28\nv_lshl_add_u32 v28, v5, 3, v28')
    a(f'v_add_u32 v28, {VB}, v28\nv_xor_b32 v29, 32, v28')
    a(f's_lshr_b32 s10, s7, 1\ns_lshl_b32 s11, s10, 13\ns_add_u32 s11, s11, {WO}')
    a('v_add_u32 v96, s11, v96\nv_xor_b32 v97, 32, v96\nv_xor_b32 v98, 64, v96\nv_xor_b32 v99, 96, v96')
    a('v_lshlrev_b32 v30, 14, v3\nv_lshl_add_u32 v30, v2, 8, v30')
    a(f's_lshl_b32 s14, s3, 16\ns_add_u32 s14, s14, {WS_O}')
    a('s_lshr_b32 s11, s4, 4\ns_lshl2_add_u32 s11, s11, s7\ns_lshl_b32 s11, s11, 11\ns_and_b32 s12, s4, 15\ns_lshl4_add_u32 s11, s12, s11')
    a('v_lshlrev_b32 v31, 4, v1')
    a('s_xor_b32 s12, s3, s6\ns_and_b32 s12, s12, 4\ns_lshl_b32 s12, s12, 11\nv_or_b32 v101, s12, v31')
    a('s_lshl_b32 s15, s5, 14\ns_add_u32 s15, s15, s14\ns_lshl_b32 s10, s10, 12\ns_add_u32 s15, s15, s10\ns_and_b32 s10, s7, 1\ns_lshl_b32 s12, s10, 13\ns_add_u32 s15, s15, s12')
    a('s_add_u32 s14, s14, s11')
    a(f'v_lshlrev_b32 v100, 9, v2\nv_lshl_add_u32 v100, v3, 4, v100\nv_add_u32 v100, {RED}, v100')
    a(f's_lshr_b32 s10, s3, 1\ns_lshl2_add_u32 s56, s6, s10\ns_and_b32 s10, s3, 1\ns_lshl2_add_u32 s56, s56, s10\ns_lshl2_add_u32 s56, s56, s5\ns_lshl_b32 s56, s56, 10\ns_add_u32 s56, s56, {WS_S}\ns_add_u32 s63, s56, 8192')
    a('v_lshrrev_b32 v119, 1, v1\nv_lshlrev_b32 v119, 10, v119\nv_and_b32 v16, 1, v1\nv_lshl_add_u32 v119, v16, 4, v119')
    a(f's_lshl_b32 s60, s3, 15\ns_lshl_b32 s11, s4, 5\ns_add_u32 s60, s60, s11\ns_add_u32 s62, s60, {WS_M}\ns_add_u32 s60, s60, {WS_S}')
    a('v_lshl_add_u32 v117, v2, 13, v119')
    a(f's_lshl_b32 s60, s3, 16\ns_add_u32 s60, s60, s11\ns_add_u32 s60, s60, {WS_S}')
    a(f's_mov_b32 s13, {hex(f2u(CSC))}')
    a('s_mov_b32 s12, s13')
    for k in range(4): a(f'v_mov_b32 v{124+k}, {hex(ONE2)}')
    kt = TH['k'][1::2]
    a(f's_lshl_b32 s57, s7, 3\ns_lshr_b32 s57, {kt[0] | kt[1] << 8 | kt[2] << 16 | kt[3] << 24}, s57\ns_and_b32 s57, s57, 0xff')
    if not kw.get('qe'):
        a('s_waitcnt vmcnt(1)')
        s.signal(C_QP)
    if not kw.get('he'):
        a('s_waitcnt vmcnt(0)')
        s.signal(C_HP)
    s.wait_flag(C_G, 's57', sleep=1)
    for u in range(2):
        for t in range(4):
            a(f'ds_read_b128 v[{32+16*u+4*t}:{35+16*u+4*t}], v{10+t} offset:{u*4096}')
    if not kw.get('st_tile') and not kw.get('ackst'): s.stamp(5)
    s.wait_flag(F_Q, 1, extra=[f'ds_read_b128 v[{64+4*t}:{67+4*t}], v{102+t}' for t in range(4)])
    s.stamp(6)
    a('v_readfirstlane_b32 s47, v9')
    a('s_cmp_lg_u32 s47, 1\ns_cbranch_scc1 L_qrem')
    a('L_qgo:')
    DP = lambda op, d, x, y, m, rm='0xf': f'{op}_dpp {d}, {x}, {y} {m} row_mask:{rm} bank_mask:0xf'
    for u in range(2):
        for t in range(4):
            if u == 0: a(f's_waitcnt lgkmcnt({3-t})')
            s.mfma(16 + 4 * u, 32 + 16 * u + 4 * t, 64 + 4 * t, t == 0)
    if kw.get('safeC'): a('s_nop 15')
    a('v_mov_b32 v40, s44\nv_mov_b32 v47, s44\nv_mov_b32 v123, s44')
    for u in range(2):
        for k in range(4): a(DP('v_add_f32', f'v{16+4*u+k}', f'v{16+4*u+k}', f'v{16+4*u+k}', 'row_ror:4'))
        for k in range(4): a(DP('v_add_f32', f'v{16+4*u+k}', f'v{16+4*u+k}', f'v{16+4*u+k}', 'row_ror:8'))
        if u == 0: a('v_max3_f32 v10, v16, v17, v18')
    a('v_max3_f32 v10, v10, v19, v20\nv_max3_f32 v11, v21, v22, v23\nv_max_f32 v10, v10, v11\nv_max_f32 v11, v10, v11')
    a('v_permlane16_swap_b32 v11, v10\nv_max_f32 v10, v11, v10\nv_max_f32 v11, v11, v10')
    a('v_permlane32_swap_b32 v11, v10\nv_max_f32 v10, v11, v10\nv_or_b32 v10, 1, v10')
    WB = 128; VR = 160
    vrd = lambda t: [f'ds_read_b64_tr_b16 v[{VR+8*t+4*T+2*u}:{VR+1+8*t+4*T+2*u}], v{28+T} offset:{t*8192+u*4096}' for T in range(2) for u in range(2)]
    cw = lambda n: 0 if (s.stamps and not kw.get('lean')) else n
    a('ds_write_b32 v24, v10')
    a(f'ds_read_b128 v[32:35], v15\nds_read_b32 v9, v8 offset:{C_G}')
    for x in vrd(0) + vrd(1) + vrd(2): a(x)
    a(f's_waitcnt lgkmcnt({cw(13)})\ns_branch L_mx2')
    a('L_mx:')
    a('ds_read_b128 v[32:35], v15')
    s.budget()
    a('s_waitcnt lgkmcnt(0)')
    a('L_mx2:')
    a('v_min3_u32 v11, v32, v33, v34\nv_max3_f32 v10, v32, v33, v34\nv_min_u32 v11, v11, v35\nv_max_f32 v10, v10, v35\nv_cmp_eq_u32 vcc, 0, v11\nv_mul_f32 v116, s13, v10\ns_cbranch_vccnz L_mx')
    for k in range(4): a(f'v_pk_fma_f32 v[{16+2*k}:{17+2*k}], v[{16+2*k}:{17+2*k}], s[12:13], v[116:117] op_sel_hi:[1,1,0] neg_lo:[0,0,1] neg_hi:[0,0,1]')
    for k in range(8): a(f'v_exp_f32 v{16+k}, v{16+k}')
    for k in range(4): a(f'v_cvt_pk_bf16_f32 v{32+k}, v{16+2*k}, v{17+2*k}')
    a('ds_write_b128 v26, v[32:35]\nds_write_b32 v14, v6')
    a('L_pw:')
    a(f'ds_read_b128 v[36:39], v8 offset:{FP}')
    for t in range(4): a(f'ds_read_b128 v[{64+4*t}:{67+4*t}], v25 offset:{t*1024}')
    a(f'ds_read_b32 v118, v8 offset:{C_G}')
    for x in vrd(3): a(x)
    a('v_mov_b32 v41, v116')
    s.budget()
    a(f's_waitcnt lgkmcnt({cw(9)})\nv_min3_u32 v11, v36, v37, v38\nv_min_u32 v11, v11, v39\nv_cmp_eq_u32 vcc, 0, v11\ns_cbranch_vccnz L_pw')
    s.stamp(7)
    def wo_reads(kss=(0, 1)):
        for ks in kss:
            for T in range(4):
                for u in range(2):
                    r = WB + 16 * ks + 4 * T + 2 * u
                    a(f'ds_read_b64_tr_b16 v[{r}:{r+1}], v{96+T} offset:{ks*4096+u*2048}')
    early = False
    a(f'v_cmp_gt_u32 vcc, {TH["v"][5]}, v9\ns_cbranch_vccz L_v012')
    s.wait_flag(C_G, TH['v'][5], extra=vrd(0) + vrd(1) + vrd(2), sleep=2)
    a('s_waitcnt lgkmcnt(0)')
    a('L_v012:')
    for t in range(3):
        a(f's_waitcnt lgkmcnt({8-t})')
        for T in range(2): s.mfma(16 + 4 * T, VR + 8 * t + 4 * T, 64 + 4 * t, t == 0)
        s.mfma(56, 124, 64 + 4 * t, t == 0)
    a('s_waitcnt lgkmcnt(4)')
    s.mfma(56, 124, 76, False)
    a(f'v_cmp_gt_u32 vcc, {TH["v"][7]}, v118\ns_cbranch_vccz L_v3')
    s.wait_flag(C_G, TH['v'][7], extra=vrd(3))
    a('L_v3:')
    if not kw.get('ind'): s.stamp(8)
    for T in range(2):
        a(f's_waitcnt lgkmcnt({2-2*T})')
        s.mfma(16 + 4 * T, VR + 24 + 4 * T, 76, False)
    a('v_mov_b32 v46, v56')
    a('s_mov_b32 exec_lo, 0x000f000f\ns_mov_b32 exec_hi, 0x000f000f\ns_cmp_eq_u32 s47, 1')
    for k in range(4): a(f'v_cvt_pk_bf16_f32 v{42+k}, v{16+2*k}, v{17+2*k}')
    a('s_cbranch_scc0 L_orem')
    a('buffer_store_dwordx4 v[40:43], v30, s[40:43], s14 offen\nbuffer_store_dwordx4 v[44:47], v30, s[40:43], s14 offen offset:1024')
    a('L_ost:')
    a('s_mov_b64 exec, -1')
    s.stamp(9)
    if kw.get('ackst'):
        a('s_waitcnt vmcnt(0)')
        s.stamp(5)
    if 'D' in kw.get('kill', ''): a('s_branch L_end')
    if kw.get('od0'): a(f's_sleep {kw["od0"]}')
    OE = kw.get('oe')
    if OE is not None:
        if OE: s.wait_flag(C_G, len(order) - OE)
    elif kw.get('obar'): a('s_barrier')
    if kw.get('ind'):
        if not early:
            s.wait_flag(C_G, TH['o'][3])
            wo_reads()
            early = True
        a('s_mov_b32 exec_hi, 0')
        a('L_ipoll:')
        a('buffer_load_dword v48, v101, s[40:43], s15 offen offset:1036 sc1')
        s.budget()
        if kw.get('isl'):
            a(f's_waitcnt vmcnt(0)\nv_cmp_ne_u32 vcc, s44, v48\ns_cbranch_vccz L_idone\ns_sleep {kw["isl"]}\ns_branch L_ipoll\nL_idone:')
        else:
            a('s_waitcnt vmcnt(0)\nv_cmp_ne_u32 vcc, s44, v48\ns_cbranch_vccnz L_ipoll')
        a('s_mov_b32 exec_hi, -1')
        s.stamp(8)
    for k in range(4): a(f'buffer_load_dwordx4 v[{48+4*k}:{51+4*k}], v31, s[40:43], s15 offen offset:{k*1024} sc1')
    if OE == 1 and kw.get('wsplit'):
        wo_reads((0,))
        a('s_barrier')
        wo_reads((1,))
        a(f'ds_read_b32 v9, v8 offset:{F_K}')
    else:
        if OE is not None: a('s_barrier')
        a(f'ds_read_b32 v9, v8 offset:{F_K}')
        wo_reads()
    if s.stamps:
        if kw.get('ackst'):
            a('s_waitcnt vmcnt(0)')
            s.stamp(2)
        a('s_mov_b32 s61, 0')
    a('s_branch L_opoll')
    a('L_oretry:')
    a('s_mov_b64 exec, vcc')
    if s.stamps: a('s_add_u32 s61, s61, 1')
    if kw.get('osl'): a(f's_sleep {kw["osl"]}')
    for k in range(4): a(f'buffer_load_dwordx4 v[{48+4*k}:{51+4*k}], v31, s[40:43], s15 offen offset:{k*1024} sc1')
    a('s_mov_b64 exec, -1')
    s.budget()
    if kw.get('al'): a('.p2align 3')
    a('L_opoll:')
    a('s_waitcnt vmcnt(0) lgkmcnt(0)')
    a('v_xor_b32 v10, s44, v48\nv_bitop3_b32 v10, v55, s44, v10 bitop3:0xbe\nv_bitop3_b32 v10, v56, s44, v10 bitop3:0xbe\nv_bitop3_b32 v10, v63, s44, v10 bitop3:0xbe')
    a('v_cmp_ne_u32 vcc, 0, v10\ns_cbranch_vccnz L_oretry')
    s.stamp(11)
    if s.stamps: a('s_mul_i32 s61, s61, 100\ns_add_u32 s70, s64, s61')
    M8 = ('quad_perm:[1,0,3,2]', 'quad_perm:[2,3,0,1]', 'row_half_mirror')
    D = lambda op, d, x, y, m, rm='0xf': f'{op}_dpp {d}, {x}, {y} {m} row_mask:{rm} bank_mask:0xf'
    R = lambda m, rm: f'v_mov_b32_dpp v23, v21 {m} row_mask:{rm} bank_mask:0xf'
    wv = [D('v_max_f32', 'v20', 'v49', 'v49', M8[0]), None, D('v_max_f32', 'v20', 'v20', 'v20', M8[1]), None, D('v_max_f32', 'v20', 'v20', 'v20', M8[2]),
          'v_sub_f32 v21, v49, v20', 'v_exp_f32 v21, v21', None, 'v_mul_f32 v22, v54, v21', 'v_mov_b32 v23, v21', None,
          D('v_add_f32', 'v22', 'v22', 'v22', M8[0]), R('row_ror:12', '0x2'), None, D('v_add_f32', 'v22', 'v22', 'v22', M8[1]), R('row_ror:8', '0x4'), None,
          D('v_add_f32', 'v22', 'v22', 'v22', M8[2]), R('row_ror:4', '0x8'), 'v_rcp_f32 v22, v22', None]
    mf = [(32 + 4 * T, 50 + 8 * ks, WB + 16 * ks + 4 * T, ks == 0) for ks in range(2) for T in range(4)]
    s.mfma(*mf.pop(0))
    for x in wv:
        if x is None: s.mfma(*mf.pop(0))
        else: a(x)
    assert not mf
    a('v_mul_f32 v21, v22, v23')
    a(D('v_mul_f32', 'v21', 'v22', 'v23', 'row_ror:8', '0xc'))
    for T in range(4): a(D('v_mul_f32', f'v{16+T}', 'v21', f'v{32+4*T}', 'row_newbcast:0'))
    for r in range(1, 4):
        for T in range(4): a(D('v_fmac_f32', f'v{16+T}', 'v21', f'v{32+4*T+r}', f'row_newbcast:{r}'))
    a(f'ds_write_b128 v26, v[16:19] offset:{RED-PL}')
    if kw.get('nf'): a('v_xor_b32 v10, v9, v101\nv_xor_b32 v11, 0x2000, v10')
    a('v_add_u32 v117, v117, v9\ns_cmp_lg_u32 s7, 0')
    a('s_waitcnt lgkmcnt(0)\ns_barrier')
    s.stamp(12)
    a('s_cbranch_scc1 ' + ('L_wb' if kw.get('fw') else 'L_end'))
    for k in range(4): a(f'ds_read_b128 v[{48+4*k}:{51+4*k}], v100 offset:{(k>>1)*2048+(k&1)*256}')
    a('s_waitcnt lgkmcnt(2)')
    a('v_pk_add_f32 v[48:49], v[48:49], v[52:53]\nv_pk_add_f32 v[50:51], v[50:51], v[54:55]')
    a('s_waitcnt lgkmcnt(1)')
    a('v_pk_add_f32 v[48:49], v[48:49], v[56:57]\nv_pk_add_f32 v[50:51], v[50:51], v[58:59]')
    a('s_waitcnt lgkmcnt(0)')
    a('v_pk_add_f32 v[48:49], v[48:49], v[60:61]\nv_pk_add_f32 v[50:51], v[50:51], v[62:63]')
    s.pack24(120, 48, 49, 50, 51)
    if kw.get('nf'):
        a('buffer_store_dwordx4 v[120:123], v10, s[40:43], s56 offen sc1')
        if kw.get('nfs'): a(f's_sleep {kw["nfs"]}')
        a('buffer_store_dwordx4 v[120:123], v11, s[40:43], s56 offen sc1')
    else:
        a('buffer_store_dwordx4 v[120:123], v31, s[40:43], s56 offen sc1\nbuffer_store_dwordx4 v[120:123], v31, s[40:43], s63 offen sc1')
    s.stamp(13)
    fw = kw.get('fw', 0)
    if fw:
        a('s_branch L_end')
        a('L_wb:')
        a(f's_cmp_lg_u32 s7, {fw}\ns_cbranch_scc1 L_end')
        if kw.get('d0'): a(f's_sleep {kw["d0"]}')
    LA = 'buffer_load_dwordx4 v[16:19], v117, s[40:43], s60 offen sc1'
    LB_ = 'buffer_load_dwordx4 v[20:23], v117, s[40:43], s60 offen sc1'
    a('L_mpoll:')
    a('buffer_load_dwordx4 v[32:35], v119, s[40:43], s62 offen sc1')
    a(f'v_lshlrev_b32 v14, 3, v1\nv_add_u32 v14, {GX}, v14\nds_read_b64 v[12:13], v14')
    s.unpack24_consts()
    s.srd_const(48, 4096); s.srd(48, 36)
    a('s_mov_b32 s56, 0x00030003\ns_mov_b32 s57, s56')
    a('v_and_b32 v11, 1, v1\nv_lshlrev_b32 v14, 5, v2\nv_lshl_add_u32 v14, v11, 1, v14')
    a('s_lshl_b32 s11, s5, 10\ns_lshl_b32 s12, s3, 7\ns_add_u32 s11, s11, s12\ns_lshl2_add_u32 s11, s6, s11')
    if kw.get('d1'): a(f's_sleep {kw["d1"]}')
    a(LA)
    if kw.get('d2'): a(f's_sleep {kw["d2"]}')
    a(LB_)
    s.budget()
    a('s_waitcnt vmcnt(2)\nv_cmp_ne_u32 vcc, s44, v35\ns_cbranch_vccnz L_mpoll')
    s.stamp(10)
    s.unpack24(32)
    s.reduce32(32)
    a('s_waitcnt lgkmcnt(0)')
    s.round_bf16('v32')
    a('v_add_f32 v32, v32, v12')
    s.round_bf16('v32')
    a(f'v_mul_f32 v33, {hex(f2u(-math.log2(math.e)))}, v32\nv_exp_f32 v33, v33\nv_add_f32 v33, 1.0, v33\nv_rcp_f32 v33, v33\nv_mul_f32 v12, v32, v33')
    s.round_bf16('v12')
    a('L_fpoll:')
    a('s_waitcnt vmcnt(1)\nv_cmp_ne_u32 vcc, s44, v19\ns_cbranch_vccz L_fdone')
    if kw.get('d4'): a(f's_sleep {kw["d4"]}')
    a(LA)
    s.budget()
    a('s_waitcnt vmcnt(1)\nv_cmp_ne_u32 vcc, s44, v23\ns_cbranch_vccz L_fdoneB')
    if kw.get('d3'): a(f's_sleep {kw["d3"]}')
    a(LB_ + '\ns_branch L_fpoll')
    def finish(r):
        s.stamp(14)
        s.unpack24(r)
        s.reduce32(r)
        if kw.get('exactfin', 0):
            s.round_bf16(f'v{r}')
            a(f'v_mul_f32 v{r}, v{r}, v12')
            s.round_bf16(f'v{r}')
            a(f'v_add_f32 v{r}, v{r}, v13')
        else:
            a(f'v_fma_f32 v{r}, v{r}, v12, v13')
        a('s_mov_b64 exec, s[56:57]')
        a(f'v_cvt_pk_bf16_f32 v{r}, v{r}, v{r}')
        a(f'buffer_store_short v{r}, v14, s[48:51], s11 offen')
    a('L_fdoneB:')
    finish(20)
    a('s_branch L_epoch')
    a('L_fdone:')
    finish(16)
    a('L_epoch:')
    s.stamp(15)
    a('s_cmp_lg_u32 s2, 0\ns_cbranch_scc1 L_end')
    a('s_mov_b64 exec, 1\nbuffer_store_dword v123, v8, s[40:43], 0 offen')
    a('s_branch L_end')

    a('L_qrem:')
    a('s_mov_b32 exec_lo, 0x000f000f\ns_mov_b32 exec_hi, 0x000f000f')
    a('buffer_store_dwordx4 v[108:111], v106, s[40:43], s58 offen sc1\nbuffer_store_dwordx4 v[112:115], v107, s[40:43], s59 offen sc1')
    a('s_mov_b64 exec, -1')
    a('L_qrem2:')
    a(f'ds_read_b32 v9, v8 offset:{F_Q}')
    for t in range(4): a(f'ds_read_b128 v[{64+4*t}:{67+4*t}], v{102+t}')
    s.budget()
    a('s_waitcnt lgkmcnt(0)\nv_readfirstlane_b32 s47, v9\ns_cmp_eq_u32 s47, 4\ns_cbranch_scc0 L_qgo\ns_sleep 2\ns_branch L_qrem2')
    if kw.get('wb') is not None:
        a('L_wb:')
        a(f's_cmp_lg_u32 s7, 1\ns_cbranch_scc1 L_end\ns_and_b32 s10, s4, {kw["wb"]}\ns_cbranch_scc1 L_end')
        if kw.get('wbd'): a(f's_sleep {kw["wbd"]}')
        a('buffer_wbl2 sc1\ns_branch L_end')
    a('L_orem:')
    a('buffer_store_dwordx4 v[40:43], v30, s[40:43], s14 offen sc1\nbuffer_store_dwordx4 v[44:47], v30, s[40:43], s14 offen offset:1024 sc1')
    a('s_branch L_ost')
    a('L_P:')
    if 'P' in kw.get('kill', ''): a('s_waitcnt lgkmcnt(0)\ns_branch L_end')
    a('s_setprio 3')
    a('s_getreg_b32 s45, hwreg(HW_REG_XCC_ID, 0, 4)')
    a('v_and_b32 v5, 3, v1')
    a(f's_lshl_b32 s10, s3, 15\ns_lshl_b32 s12, s4, 10\ns_add_u32 s12, s12, s10')
    a('s_waitcnt lgkmcnt(0)')
    if kw.get('warmq'):
        a(f'v_and_b32 v10, 7, v1\nv_lshlrev_b32 v10, 7, v10\nv_and_b32 v11, 8, v1\nv_lshl_add_u32 v10, v11, 15, v10\ns_add_u32 s11, s12, {WS_Q}')
        a(f's_mov_b64 exec, {0xff if kw["warmq"] == 1 else 0xffff}\nbuffer_load_dword v7, v10, s[40:43], s11 offen {kw.get("warmqfl", "")}\ns_mov_b64 exec, -1')
    a(f's_lshl_b32 s11, s5, 13\ns_add_u32 s10, s10, s11\ns_add_u32 s10, s10, {WS_Q}\ns_add_u32 s15, s10, 4096')
    a('v_lshlrev_b32 v10, 4, v1')
    a(f'v_lshrrev_b32 v11, 5, v1\nv_and_b32 v12, 31, v1\nv_lshlrev_b32 v13, 3, v12\nv_lshlrev_b32 v14, 4, v11\nv_xor_b32 v13, v13, v14\nv_lshl_add_u32 v13, v11, 8, v13\nv_add_u32 v22, {QL}, v13')
    for c in range(1, 8): a(f'v_xor_b32 v{22+c}, {c*32}, v22')
    a(f's_mov_b32 s14, {kw.get("nfast", 48)}')
    a('s_waitcnt lgkmcnt(0)')
    s.stamp(1)
    if 'W' in kw.get('kill', ''): a('s_branch L_end')
    if kw.get('qs'): a(f's_sleep {kw["qs"]}')
    if kw.get('qg'): s.wait_flag(C_G, kw['qg'], sleep=1)
    s.wait_flag(C_QP, 4, sleep=1, extra=[f'ds_read_b32 v15, v8 offset:{TAGW}'])
    a('s_waitcnt lgkmcnt(0)\nv_readfirstlane_b32 s44, v15')
    if q0: a(f's_sleep {q0}')
    s.stamp(2)
    a('L_qpoll:')
    for c in range(8): a(f'buffer_load_dwordx4 v[{32+4*c}:{35+4*c}], v10, s[40:43], s{10 if c < 4 else 15} offen offset:{(c&3)*1024} sc1 {kw.get("qnt", "")}')
    s.budget()
    a('s_waitcnt vmcnt(0)')
    a('v_xor_b32 v15, s44, v35')
    for c in range(1, 8): a(f'v_bitop3_b32 v15, v{35+4*c}, s44, v15 bitop3:0xbe')
    a('v_cmp_ne_u32 vcc, 0, v15\ns_cbranch_vccz L_qgot')
    a(f's_mov_b64 exec, vcc\ns_sub_u32 s14, s14, 1\ns_cbranch_scc0 L_qpoll')
    a(f'v_mov_b32 v15, 4\nds_write_b32 v8, v15 offset:{F_Q}\ns_branch L_qpoll')
    a('L_qgot:')
    a('s_mov_b64 exec, -1')
    a('v_xor_b32 v15, s45, v34')
    for c in range(8):
        a(f'ds_write_b64 v{22+c}, v[{32+4*c}:{33+4*c}] offset:{c*512}')
        if c < 7: a(f'v_bitop3_b32 v15, v{38+4*c}, s45, v15 bitop3:0xbe')
    a('v_and_b32 v15, 15, v15\nv_cmp_ne_u32 vcc, 0, v15\ns_cmp_eq_u64 vcc, 0\ns_cselect_b32 s47, 1, 2')
    if kw.get('force_remote'): a('s_mov_b32 s47, 2')
    a(f'v_mov_b32 v15, s47\nds_write_b32 v8, v15 offset:{F_Q}')
    s.stamp(3)
    a('v_add3_u32 v16, v34, v38, v42\nv_add3_u32 v17, v46, v50, v54\nv_add3_u32 v16, v16, v58, v62\nv_add_u32 v16, v16, v17')
    for m in ('quad_perm:[1,0,3,2] row_mask:0xf', 'quad_perm:[2,3,0,1] row_mask:0xf', 'row_half_mirror row_mask:0xf', 'row_mirror row_mask:0xf', 'row_bcast:15 row_mask:0xa', 'row_bcast:31 row_mask:0xc'):
        a(f'v_add_u32_dpp v16, v16, v16 {m} bank_mask:0xf')
    a('v_readlane_b32 s10, v16, 63\ns_cmp_lt_i32 s10, 0\ns_cselect_b32 s10, 0, 8192')
    if kw.get('kflip'): a('s_xor_b32 s10, s10, 8192')
    a(f'v_mov_b32 v15, s10\nds_write_b32 v8, v15 offset:{F_K}')
    a(f's_lshl_b32 s11, s12, 1\ns_add_u32 s11, s11, {WS_O}')
    a(f's_lshl2_add_u32 s12, s3, s5\ns_lshl4_add_u32 s12, s12, s6\ns_lshl_b32 s12, s12, 10\ns_add_u32 s12, s12, s10\ns_add_u32 s12, s12, {WS_S - 2048}')
    a('v_lshlrev_b32 v10, 7, v1\nv_add_u32 v11, s12, v10\nv_add_u32 v10, s11, v10\nv_cmp_gt_u32 vcc, 16, v1\nv_cndmask_b32 v10, v11, v10, vcc')
    if kw.get('wg'): s.wait_flag(C_G, kw['wg'], sleep=2)
    if kw.get('ont'):
        a('s_mov_b64 exec, 0xffff\nbuffer_load_dword v7, v10, s[40:43], 0 offen nt\ns_mov_b64 exec, 0xff0000\nbuffer_load_dword v7, v10, s[40:43], 0 offen')
    else:
        a('s_mov_b64 exec, 0xffffff\nbuffer_load_dword v7, v10, s[40:43], 0 offen')
    a('s_branch L_end')

    a('L_M:')
    if kw.get('mprio') is not None: a(f's_setprio {kw["mprio"]}\ns_branch L_M2')
    if 'M' in kw.get('kill', ''): a('s_waitcnt lgkmcnt(0)\ns_branch L_end')
    a('s_setprio 3')
    a('L_M2:')
    a('v_bfe_u32 v4, v1, 2, 2\nv_and_b32 v5, 3, v1')
    a('v_lshl_add_u32 v10, v4, 2, v2')
    a('v_lshlrev_b32 v11, 3, v10')
    a('v_lshlrev_b32 v10, 4, v1')
    s.mlp_slot(11, 15)
    a('s_lshl3_add_u32 s15, s5, s3\ns_lshl_b32 s11, s11, 6')
    a('v_and_b32 v24, 1, v1\nv_lshlrev_b32 v25, 5, v2\nv_lshl_add_u32 v25, v24, 1, v25')
    a('s_lshl_b32 s12, s3, 7\ns_lshl2_add_u32 s12, s6, s12\ns_lshl_b32 s13, s5, 10\ns_add_u32 s13, s13, s12')
    s.srd_const(56, 3584); s.srd_const(60, 1024); s.srd_const(96, 4096)
    a('s_waitcnt lgkmcnt(0)')
    s.srd(56, 30); s.srd(60, 34); s.srd(96, 16)
    a('buffer_load_ushort v16, v25, s[60:63], s12 offen')
    a('buffer_load_ushort v17, v25, s[96:99], s13 offen')
    a('buffer_load_dwordx2 v[14:15], v11, s[56:59], s11 offen')
    a(f'v_mul_u32_u24 v11, {HS}, v5\nv_lshl_add_u32 v11, v2, 4, v11\nv_lshrrev_b32 v12, 1, v4\nv_lshl_add_u32 v11, v12, 6, v11\nv_and_b32 v12, 1, v4\nv_lshl_add_u32 v11, v12, 3, v11\nv_add_u32 v11, {HL}, v11')
    a(f'v_mul_u32_u24 v12, {HS}, v4\nv_lshl_add_u32 v12, v2, 4, v12\nv_add_u32 v12, {HL}, v12')
    a(f'v_lshl_add_u32 v27, v2, 2, v4\nv_bfe_u32 v28, v27, 1, 2\nv_lshlrev_b32 v28, 5, v28\nv_lshl_add_u32 v28, v27, 7, v28\nv_lshl_add_u32 v28, v5, 3, v28\nv_add_u32 v28, {W2}, v28')
    a('v_xor_b32 v29, 32, v28\nv_xor_b32 v30, 64, v28\nv_xor_b32 v31, 96, v28')
    a(f'v_lshlrev_b32 v13, 3, v1\nv_add_u32 v13, {GX}, v13')
    if kw.get('walk'): a('s_branch WK_0\nWK_ret:')
    a('s_waitcnt vmcnt(1) lgkmcnt(0)')
    a('v_lshlrev_b32 v16, 16, v16\nv_lshlrev_b32 v17, 16, v17\nds_write_b64 v13, v[16:17]')
    if kw.get('hs'): a(f's_sleep {kw["hs"]}')
    s.wait_flag(C_HP, 4, sleep=1, extra=[f'ds_read_b32 v23, v8 offset:{TAGW}'])
    a('s_waitcnt lgkmcnt(0)\nv_readfirstlane_b32 s44, v23')
    s.pack24_consts(); s.unpack24_consts()
    if kw.get('hq'): s.wait_flag(F_Q, 1, sleep=1)
    if kw.get('h0', 8): a(f's_sleep {kw.get("h0", 8)}')
    a(f's_lshl2_add_u32 s10, s3, s5\ns_lshl_b32 s10, s10, 13\ns_add_u32 s10, s10, {WS_H}\ns_add_u32 s11, s10, 4096')
    s.stamp(2)
    a('L_hpoll:')
    for c in range(8): a(f'buffer_load_dwordx4 v[{32+4*c}:{35+4*c}], v10, s[40:43], s{10 + (c>>2)} offen offset:{(c&3)*1024} sc1 {kw.get("qnt", "")}')
    s.budget()
    a('s_waitcnt vmcnt(0)')
    a('v_xor_b32 v13, s44, v35')
    for c in range(1, 8): a(f'v_bitop3_b32 v13, v{35+4*c}, s44, v13 bitop3:0xbe')
    a('v_cmp_ne_u32 vcc, 0, v13\ns_cbranch_vccnz L_hpoll')
    s.stamp(3)
    for c in range(8): s.unpack24(32 + 4 * c)
    for st in (16, 8, 4):
        for r in range(32, 32 + st, 2): a(f'v_pk_add_f32 v[{r}:{r+1}], v[{r}:{r+1}], v[{r+st}:{r+st+1}]')
    a('v_cvt_pk_bf16_f32 v36, v32, v33\nv_cvt_pk_bf16_f32 v37, v34, v35')
    for k in range(2):
        a(f'v_lshlrev_b32 v{32+2*k}, 16, v{36+k}\nv_and_b32 v{33+2*k}, 0xffff0000, v{36+k}\nv_lshlrev_b32 v{40+2*k}, 16, v{14+k}\nv_and_b32 v{41+2*k}, 0xffff0000, v{14+k}')
    for k in range(4): a(f'v_add_f32 v{32+k}, v{32+k}, v{40+k}')
    a('v_cvt_pk_bf16_f32 v36, v32, v33\nv_cvt_pk_bf16_f32 v37, v34, v35')
    for k in range(2): a(f'v_lshlrev_b32 v{32+2*k}, 16, v{36+k}\nv_and_b32 v{33+2*k}, 0xffff0000, v{36+k}')
    K1 = -2 * math.sqrt(2 / math.pi) * math.log2(math.e)
    a(f'v_mov_b32 v44, {hex(f2u(K1))}')
    for k in range(4): a(f'v_mul_f32 v{36+k}, v{32+k}, v{32+k}')
    for k in range(4): a(f'v_fmamk_f32 v{36+k}, v{36+k}, {hex(f2u(K1*0.044715))}, v44')
    for k in range(4): a(f'v_mul_f32 v{36+k}, v{36+k}, v{32+k}')
    for k in range(4): a(f'v_exp_f32 v{36+k}, v{36+k}')
    for k in range(4): a(f'v_add_f32 v{36+k}, 1.0, v{36+k}')
    for k in range(4): a(f'v_rcp_f32 v{36+k}, v{36+k}')
    for k in range(4): a(f'v_mul_f32 v{32+k}, v{32+k}, v{36+k}')
    a('v_cvt_pk_bf16_f32 v40, v32, v33\nv_cvt_pk_bf16_f32 v41, v34, v35')
    a('ds_write_b64 v11, v[40:41]\nds_read_b128 v[48:51], v12\nds_read_b128 v[52:55], v12 offset:64')
    a(f's_add_u32 s10, s6, {r2}\ns_and_b32 s10, s10, 7\ns_lshl_b32 s10, s10, 5\ns_add_u32 s10, s10, s15\ns_lshl_b32 s10, s10, 10\ns_add_u32 s10, s10, {WS_M}')
    a('v_lshlrev_b32 v10, 4, v1\nv_mov_b32 v23, s44')
    s.wait_flag(C_G, TH['2'][1], sleep=1)
    for ks in range(2):
        for T in range(4):
            for u in range(2):
                r = 64 + 16 * ks + 4 * T + 2 * u
                a(f'ds_read_b64_tr_b16 v[{r}:{r+1}], v{28+T} offset:{ks*4096+u*2048}')
    a('s_waitcnt lgkmcnt(0)')
    for ks in range(2):
        for T in range(4): s.mfma(32 + 4 * T, 48 + 4 * ks, 64 + 16 * ks + 4 * T, ks == 0)
    s.pack24(20, 32, 36, 40, 44)
    a('buffer_store_dwordx4 v[20:23], v10, s[40:43], s10 offen sc1')
    s.stamp(4)
    a('L_end:')
    if kw.get('probe'):
        pw, pst, pm, pb = kw['probe']
        a(f's_waitcnt lgkmcnt(0)\ns_cmp_lg_u32 s7, {pw}\ns_cbranch_scc1 L_exit')
        if pw >= 4: a('s_barrier\ns_barrier' if kw.get('obar') and pw != 6 else 's_barrier')
        if kw.get('clk') == 1: a('s_memtime s[92:93]\ns_waitcnt lgkmcnt(0)\ns_sub_u32 s10, s92, s90\ns_lshr_b32 s10, s10, 1\ns_add_u32 s94, s64, s10')
        if kw.get('clk') == 2: a('s_memrealtime s[92:93]\ns_waitcnt lgkmcnt(0)\ns_sub_u32 s10, s92, s88\ns_mul_i32 s10, s10, 10\ns_add_u32 s94, s64, s10')
        if kw.get('px') is not None: a(f's_cmp_lg_u32 s45, {kw["px"]}\ns_cbranch_scc1 L_exit')
        if kw.get('pm') is not None: a(f's_mul_i32 s10, s45, {kw["pm"]}\ns_add_u32 s94, s64, s10')
        if kw.get('pg') is not None: a(f's_cmp_lg_u32 s3, {kw["pg"]}\ns_cbranch_scc1 L_exit')
        a(f's_sub_u32 s10, s{64+2*pst}, s64\ns_mul_i32 s10, s10, {pm}\ns_add_u32 s10, s10, {pb}\ns_min_u32 s10, s10, 20000')
        a('L_padloop:\ns_memrealtime s[12:13]\ns_waitcnt lgkmcnt(0)\ns_sub_u32 s11, s12, s64\ns_cmp_lt_u32 s11, s10\ns_cbranch_scc1 L_padloop')
    s.dump_stamps()
    a('L_exit:')
    a('s_endpgm')
    if kw.get('walk'):
        spots = ['s_branch W_5', 's_branch W_8', 's_branch L_opoll', 'L_wb:', 'L_qgot:', 's_branch W_16']
        for k, sp in enumerate(spots):
            i = s.o.index(sp)
            if not sp.endswith(':'): i += 1
            else: assert s.o[i - 1].startswith('s_branch')
            s.o[i:i] = [f'WK_{k}:', f's_branch WK_{k+1}' if k + 1 < len(spots) else 's_branch WK_ret', 's_nop 0'][:3 if kw['walk'] == 1 else 2]
            if kw['walk'] == 1: s.o[i + 1], s.o[i + 2] = s.o[i + 2], s.o[i + 1]
    lines, added = hazard.fix(s.o, verbose=kw.get('verbose', False))
    return wrap('\n'.join(lines) + '\n', 256, NW * 64, kw.get('lds', LDS_TOTAL), kw.get('vgpr', 192))

if __name__ == '__main__':
    import ast
    out = sys.argv[1]
    kw = {}
    for x in sys.argv[2:]:
        k, v = x.split('=')
        try: kw[k] = ast.literal_eval(v)
        except Exception: kw[k] = v
    open(out, 'w').write(gen(**kw))
```

```python
import sys, math, struct
sys.path.insert(0, 'dev')
from common import *
import hazard

def f2u(x):
    return struct.unpack('<I', struct.pack('<f', x))[0]

NW = 7
FL = 0
WA, W1, KB, W2, VB, WO = [2048 + x for x in (0, 16384, 24576, 57344, 65536, 98304)]
XN = 2048 + 114688; XS = 1088
YL = XN + 4 * XS
QL = YL + 4 * XS
assert QL % 256 == 0
PL = QL + 4096
RED = PL + 4096
HL = RED + 4096; HS = 144
MX = 128
FP = 192
GX = HL + 640
LDS_TOTAL = GX + 512
C_WA, C_G, C_XN, F_Q, C_MX, C_P, F_WT, C_QP, C_Y, C_HP, T_A, T_B, F_K, TAGW = [4 * i for i in range(14)]

WS_Q = 0x1000
WS_H = WS_Q + 0x40000
WS_LSE = WS_H + 0x40000
WS_O = WS_LSE + 0x4000
WS_M = WS_O + 0x80000
WS_S = 0x150000
assert WS_S >= WS_M + 0x40000
WS_T = WS_S + 0x80000
WS_N = WS_T + 0x10000
WS_END = WS_T + 0x20000
assert WS_END <= 0x200000
STAMP = 0x8000000

class G:
    def __init__(s, **kw):
        s.o = []
        s.nl = 0
        s.kw = kw
        s.stamps = kw.get('stamps', False)
    def a(s, t):
        for l in t.split('\n'):
            l = l.strip()
            if l: s.o.append(l)
    def lab(s, p='L'):
        s.nl += 1
        return f'{p}_{s.nl}'
    def stamp(s, i):
        pr = s.kw.get('probe')
        only = s.kw.get('only')
        if (s.stamps and (only is None or i in only or i == 0)) or (pr and i in (0, pr[1])):
            s.a(f's_memrealtime s[{64+2*i}:{65+2*i}]')
    def budget(s):
        s.a('s_sub_u32 s46, s46, 1\ns_cbranch_scc1 L_end')
    def wait_flag(s, off, n, extra=None, sleep=0, vt='v9'):
        L = s.lab('W')
        if sleep:
            L2 = s.lab('W')
            s.a(f's_branch {L2}\n{L}:\ns_sleep {sleep}\n{L2}:')
        else:
            s.a(f'{L}:')
        s.a(f'ds_read_b32 {vt}, v8 offset:{off}')
        ne = 0
        if extra:
            for e in extra: s.a(e)
            ne = len(extra)
        s.budget()
        s.a(f's_waitcnt lgkmcnt({0 if (s.stamps and not s.kw.get("lean")) or (s.kw.get("safeA") and ne > 6) else min(ne, 15)})')
        s.a(f'v_cmp_gt_u32 vcc, {n}, {vt}')
        s.a(f's_cbranch_vccnz {L}')
    def signal(s, off):
        s.a(f's_mov_b64 exec, 1\nds_add_u32 v8, v6 offset:{off}\ns_mov_b64 exec, -1')
    def srd(s, d, p):
        s.a(f's_mov_b32 s{d}, s{p}\ns_mov_b32 s{d+1}, s{p+1}')
    def srd_const(s, d, n):
        s.a(f's_mov_b32 s{d+2}, {n}\ns_mov_b32 s{d+3}, 0x20000')
    def wave_sum(s, v, sd):
        for m in ('quad_perm:[1,0,3,2]', 'quad_perm:[2,3,0,1]', 'row_half_mirror', 'row_mirror'):
            s.a(f'v_add_f32_dpp {v}, {v}, {v} {m} row_mask:0xf bank_mask:0xf')
        s.a(f'v_add_f32_dpp {v}, {v}, {v} row_bcast:15 row_mask:0xa bank_mask:0xf')
        s.a(f'v_add_f32_dpp {v}, {v}, {v} row_bcast:31 row_mask:0xc bank_mask:0xf')
        s.a(f'v_readlane_b32 {sd}, {v}, 63')
    def rows_allreduce(s, op, v, t):
        s.a(f'v_mov_b32 {t}, {v}\nv_permlane16_swap_b32 {t}, {v}\n{op} {v}, {t}, {v}')
        s.a(f'v_mov_b32 {t}, {v}\nv_permlane32_swap_b32 {t}, {v}\n{op} {v}, {t}, {v}')
    def layernorm(s, src, f, t):
        P = lambda r: f'v[{r}:{r+1}]'
        for k in range(4):
            s.a(f'v_lshlrev_b32 v{f+2*k}, 16, v{src+k}\nv_and_b32 v{f+2*k+1}, s55, v{src+k}')
        s.a(f'v_pk_add_f32 {P(t)}, {P(f)}, {P(f+2)}\nv_pk_add_f32 {P(t+2)}, {P(f+4)}, {P(f+6)}\nv_pk_add_f32 {P(t)}, {P(t)}, {P(t+2)}\nv_add_f32 v{t}, v{t}, v{t+1}')
        s.wave_sum(f'v{t}', 's10')
        s.a(f'v_mov_b32 v{src+3}, {hex(f2u(1/512))}')
        s.a(f'v_mul_f32 v{src}, s10, v{src+3}')
        for k in range(4):
            s.a(f'v_pk_add_f32 {P(t+2*k)}, {P(f+2*k)}, {P(src)} op_sel_hi:[1,0] neg_lo:[0,1] neg_hi:[0,1]')
        s.a(f'v_pk_mul_f32 {P(t)}, {P(t)}, {P(t)}')
        for k in range(1, 4):
            s.a(f'v_pk_fma_f32 {P(t)}, {P(t+2*k)}, {P(t+2*k)}, {P(t)}')
        s.a(f'v_add_f32 v{t}, v{t}, v{t+1}')
        s.a(f'v_cvt_pk_bf16_f32 v{src}, v{src}, v{src}\nv_lshlrev_b32 v{src}, 16, v{src}')
        ms = ['quad_perm:[1,0,3,2] row_mask:0xf', 'quad_perm:[2,3,0,1] row_mask:0xf', 'row_half_mirror row_mask:0xf', 'row_mirror row_mask:0xf', 'row_bcast:15 row_mask:0xa', 'row_bcast:31 row_mask:0xc']
        fill = [f'v_pk_add_f32 {P(f+2*k)}, {P(f+2*k)}, {P(src)} op_sel_hi:[1,0] neg_lo:[0,1] neg_hi:[0,1]' for k in range(4)]
        fill += [f'v_cvt_pk_bf16_f32 v{t+2+k}, v{f+2*k}, v{f+2*k+1}' for k in range(4)]
        for k in range(4): fill += [f'v_lshlrev_b32 v{f+2*k}, 16, v{t+2+k}', f'v_and_b32 v{f+2*k+1}, s55, v{t+2+k}']
        for m in ms:
            s.a(f'v_add_f32_dpp v{t}, v{t}, v{t} {m} bank_mask:0xf')
            s.a(fill.pop(0)); s.a(fill.pop(0))
        s.a(f'v_readlane_b32 s10, v{t}, 63')
        s.a(fill.pop(0)); s.a(fill.pop(0))
        s.a(f'v_mul_f32 v{src}, s10, v{src+3}')
        s.a(f'v_cvt_pk_bf16_f32 v{src}, v{src}, v{src}\nv_lshlrev_b32 v{src}, 16, v{src}')
        s.a(f'v_add_f32 v{src}, {hex(f2u(1e-5))}, v{src}')
        s.a(f'v_cvt_pk_bf16_f32 v{src}, v{src}, v{src}\nv_lshlrev_b32 v{src}, 16, v{src}')
        s.a(f'v_sqrt_f32 v{src}, v{src}')
        s.a(fill.pop(0))
        s.a(f'v_cvt_pk_bf16_f32 v{src}, v{src}, v{src}\nv_lshlrev_b32 v{src}, 16, v{src}')
        s.a(f'v_rcp_f32 v{src}, v{src}')
        s.a(fill.pop(0))
        assert not fill
        for k in range(4):
            s.a(f'v_pk_mul_f32 {P(f+2*k)}, {P(f+2*k)}, {P(src)} op_sel_hi:[1,0]')
        for k in range(4):
            s.a(f'v_cvt_pk_bf16_f32 v{src+k}, v{f+2*k}, v{f+2*k+1}')
    def round_bf16(s, v):
        s.a(f'v_cvt_pk_bf16_f32 {v}, {v}, {v}\nv_lshlrev_b32 {v}, 16, {v}')
    def tag_finish(s):
        s.a('s_mul_i32 s44, s44, 0x2c9277b5\ns_add_u32 s44, s44, 0xac564b05')
    def pack24(s, d, a, b, c, e):
        s.a(f'v_perm_b32 v{d}, v{a}, v{e}, s50\nv_perm_b32 v{d+1}, v{b}, v{e}, s51\nv_perm_b32 v{d+2}, v{c}, v{e}, s52')
    def pack24_consts(s):
        s.a('s_mov_b32 s50, 0x07060503\ns_mov_b32 s51, 0x07060502\ns_mov_b32 s52, 0x07060501')
    def unpack24(s, r):
        s.a(f'v_perm_b32 v{r+3}, v{r}, v{r+1}, s53\nv_perm_b32 v{r+3}, v{r+3}, v{r+2}, s54')
    def unpack24_consts(s):
        s.a('s_mov_b32 s53, 0x04000c0c\ns_mov_b32 s54, 0x0706000c')
    def reduce32(s, r):
        s.a(f'v_permlane32_swap_b32 v{r}, v{r+2}\nv_permlane32_swap_b32 v{r+1}, v{r+3}')
        s.a(f'v_add_f32 v{r}, v{r}, v{r+2}\nv_add_f32 v{r+1}, v{r+1}, v{r+3}')
        s.a(f'v_permlane16_swap_b32 v{r}, v{r+1}\nv_add_f32 v{r}, v{r}, v{r+1}')
        for m in ('row_ror:8', 'row_ror:4', 'row_ror:2'):
            s.a(f'v_add_f32_dpp v{r}, v{r}, v{r} {m} row_mask:0xf bank_mask:0xf')
    def mfma(s, d, A, B, first):
        s.a(f'v_mfma_f32_16x16x32_bf16 v[{d}:{d+3}], v[{A}:{A+3}], v[{B}:{B+3}], {"0" if first else f"v[{d}:{d+3}]"}')
    def mlp_slot(s, d, t):
        ha = s.kw.get('ha', 4)
        s.a(f's_mul_i32 s{d}, s5, 6\ns_add_u32 s{d}, s{d}, s3\ns_cmp_gt_u32 s3, {ha}\ns_cselect_b32 s{t}, 2, 0\ns_sub_u32 s{d}, s{d}, s{t}\ns_lshl_b32 s{d}, s{d}, 1')
        s.a(f's_lshl2_add_u32 s{t}, s3, s5\ns_add_u32 s{t}, s{t}, {48-4*ha}')
        s.a(f's_bitcmp1_b32 {3 << ha}, s3\ns_cselect_b32 s{d}, s{t}, s{d}')
    def hint(s, name, off, nq, tries, sub):
        a = s.a
        a(f's_lshl_b32 s48, s3, 7\ns_add_u32 s48, s48, {WS_N + off}\ns_add_u32 s49, s48, s4')
        a('s_and_b32 s50, s44, 0xff\ns_mul_i32 s50, s50, 0x01010101\ns_mov_b32 s51, s50\nv_mov_b32 v21, s50')
        if sub: a('s_andn2_b32 s48, s49, 7')
        a(f's_mov_b32 s47, {tries}')
    def hint_go(s, name, nq):
        a = s.a
        a('s_mov_b64 exec, 1\nbuffer_store_byte v21, v8, s[40:43], s49 offen\ns_mov_b64 exec, -1')
        a(f'L_{name}:')
        a(f's_load_dwordx{2*nq} s[52:{51+2*nq}], s[40:41], s48 glc')
        a(f's_sub_u32 s47, s47, 1\ns_cbranch_scc1 L_{name}d\ns_waitcnt lgkmcnt(0)')
        for k in range(nq): a(f's_xor_b64 s[{52+2*k}:{53+2*k}], s[{52+2*k}:{53+2*k}], s[50:51]')
        for k in range(1, nq): a(f's_or_b64 s[52:53], s[52:53], s[{52+2*k}:{53+2*k}]')
        a(f's_cbranch_scc1 L_{name}\nL_{name}d:\ns_waitcnt lgkmcnt(0)')
    def dump_stamps(s, nst=16):
        if not s.stamps: return
        s.a('s_waitcnt lgkmcnt(0)\ns_mov_b64 exec, -1\nv_mov_b32 v10, 0')
        for i in range(nst):
            s.a(f'v_writelane_b32 v10, s{64+2*i}, {i}')
        s.a(f's_mul_i32 s10, s2, {NW*64}\ns_lshl_b32 s11, s7, 6\ns_add_u32 s10, s10, s11\ns_add_u32 s10, s10, {STAMP}')
        s.a('v_lshlrev_b32 v11, 2, v1\ns_mov_b64 exec, 0xffff\nbuffer_store_dword v10, v11, s[40:43], s10 offen ' + s.kw.get('stfl', ''))

def gen(**kw):
    s = G(**kw)
    a = s.a
    depth = kw.get('depth', 20)
    NT = kw.get('nt', 'nt')
    npq = kw.get('npq', 2); gapq = kw.get('gapq', 12); q0 = kw.get('q0', 4)
    npl = kw.get('npl', 4); gapl = kw.get('gapl', 6)
    CSC = math.log2(math.e) / math.sqrt(128)
    ONE2 = 0x3f803f80
    order = kw.get('order', '11kkkkkkkk22vvvvvvvvoooo')
    TH = {c: [i + 1 for i, x in enumerate(order) if x == c] for c in '1k2vo'}
    assert [len(TH[c]) for c in '1k2vo'] == [2, 8, 2, 8, 4]
    marks = {TH['1'][1], TH['2'][1], TH['o'][3], len(order) - (kw.get('oe') or 0), kw.get('qg') or 2} | set(TH['k'][1::2]) | set(TH['v'][1::2])
    def common():
        if s.stamps:
            for i in range(1, 16): a(f's_mov_b32 s{64+2*i}, 0')
        a('v_and_b32 v1, 63, v0\ns_lshr_b32 s5, s4, 3\ns_and_b32 s6, s4, 7')
        a(f's_mov_b32 s42, {STAMP + 0x100000 if s.stamps else WS_END}\ns_mov_b32 s43, 0x20000')
        a(f's_mov_b32 s46, {kw.get("budget", 5000000)}')
        a('v_mov_b32 v6, 1')
        a('v_lshrrev_b32 v2, 4, v1\nv_and_b32 v3, 15, v1')
    s.stamp(0)
    a('s_load_dwordx16 s[16:31], s[0:1], 0\ns_load_dwordx8 s[32:39], s[0:1], 64\ns_load_dwordx2 s[40:41], s[0:1], 96')
    a('s_lshr_b32 s4, s2, 3\ns_cmp_ge_u32 s4, 32\ns_cbranch_scc1 L_exit')
    a('v_lshrrev_b32 v2, 6, v0\nv_bfe_u32 v4, v0, 3, 3')
    a('v_mov_b32 v8, 0\nds_write_b8 v0, v8')
    if kw.get('prefetch', True):
        a('s_getpc_b64 s[8:9]\nL_pc:')
        if kw.get('pf2'):
            a('s_lshl_b32 s10, s4, 7\nv_lshl_add_u32 v3, v0, 12, s10\nv_min_u32 v3, L_exit-L_pc, v3\nglobal_load_dword v7, v3, s[8:9]')
        else:
            a('v_lshlrev_b32 v3, 7, v0\nv_min_u32 v3, L_exit-L_pc, v3\nglobal_load_dword v7, v3, s[8:9]')
    a('v_readfirstlane_b32 s7, v2')
    a('v_and_b32 v5, 6, v4\nv_xor_b32 v5, v5, v0\nv_and_b32 v5, 7, v5\nv_lshlrev_b32 v5, 4, v5')
    a('s_and_b32 s3, s2, 7\ns_cmp_eq_u32 s7, 6\ns_cbranch_scc1 L_L\ns_cmp_ge_u32 s7, 4\ns_cbranch_scc1 L_PM')
    a('s_mov_b32 s51, 0x20000\nv_lshlrev_b32 v11, 4, v0')
    a('s_lshr_b32 s10, s4, 3\ns_lshl2_add_u32 s10, s10, s7\ns_lshl_b32 s10, s10, 18\ns_and_b32 s11, s4, 7\ns_lshl3_add_u32 s11, s3, s11\ns_xor_b32 s11, s11, ' + str(kw.get('rq', 0)) + '\ns_lshl_b32 s11, s11, 7\ns_add_u32 s10, s10, s11')
    a(f's_bfm_b32 s50, 1, 22\ns_bfm_b32 s12, 6, 10\nv_lshl_add_u32 v10, v4, 13, v5\ns_lshl_b32 m0, s7, 12\ns_addk_i32 m0, {WA}')
    a('s_waitcnt lgkmcnt(0)')
    a('s_mov_b64 s[48:49], s[22:23]')
    a('global_load_dwordx4 v[12:15], v11, s[16:17]')
    for r in range(4):
        a(f'buffer_load_dwordx4 v10, s[48:51], s10 offen offset:{r*1024} {NT} lds')
        if r < 3: a('s_add_u32 s10, s10, s12')
    a('s_branch L_C')
    a('L_L:')
    a('s_barrier')
    common()
    rq, r2 = kw.get('rq', 0), kw.get('r2', 0)
    s.mlp_slot(10, 11)
    a('s_cselect_b32 s11, 64, 0\ns_cselect_b32 s8, 30, 15')
    a('v_and_b32 v14, s11, v5\nv_lshl_add_u32 v14, v14, 24, v5\nv_mul_u32_u24 v32, 3584, v4\nv_add_u32 v32, v32, v14')
    for r in range(1, 4): a(f'v_add_u32 v{32+r}, {r*(8*3584-1024)}, v32')
    a('v_xor_b32 v14, v3, v2\nv_lshlrev_b32 v14, 4, v14\nv_lshl_add_u32 v18, v2, 8, v14')
    for r in range(1, 4): a(f'v_xor_b32 v{18+r}, {r*64}, v18\nv_add_u32 v{18+r}, {r*7168}, v{18+r}')
    a(f's_mov_b32 s50, {512*3584}\ns_mov_b32 s51, 0x20000\ns_lshl_b32 s8, 1, s8')
    a(f's_mul_i32 s12, s6, {64*3584}\ns_lshl_b32 s11, s10, 6\ns_add_u32 s12, s12, s11')
    a(f's_lshl_b32 s13, s5, 23\ns_lshl_b32 s11, s3, 20\ns_add_u32 s13, s13, s11\ns_lshl_b32 s11, s6, 10\ns_add_u32 s13, s13, s11\ns_add_u32 s13, s13, {3072*256}')
    a('s_bfm_b32 s54, 1, 25\ns_mov_b32 s55, s51\ns_mov_b32 s14, s13')
    a('s_waitcnt lgkmcnt(0)')
    s.stamp(1)
    dg = depth // 4
    segs = {'1': (32, 48, 28, 12, 32 * 3584, W1), 'k': (18, 52, 18, 13, 32768, KB), 'v': (22, 56, 20, 14, 32768, VB),
            '2': (26, 60, 32, 15, 's8', W2), 'o': (26, 96, 24, 9, 32768, WO)}
    cnt = {c: 0 for c in segs}
    late = False
    prof = kw.get('prof')
    prof = [int(x, 16) for x in prof] if prof else [dg] * len(order)
    assert len(prof) == len(order)
    landed = 0
    first_wait = min(gi for gi in range(len(order)) if gi + 1 > prof[gi])
    for gi, c in enumerate(order):
        vr, sd, ptr, so, step, lds = segs[c]
        if gi == first_wait:
            a('v_lshlrev_b32 v14, 1, v2\nv_xor_b32 v14, v3, v14\nv_lshlrev_b32 v14, 4, v14\nv_lshl_add_u32 v22, v2, 8, v14')
            a(f'v_xor_b32 v23, 128, v22\nv_add_u32 v24, {2*7168}, v22\nv_add_u32 v25, {3*7168}, v23\nv_add_u32 v23, 7168, v23')
            a('v_lshl_add_u32 v26, v4, 10, v5')
            for r in range(1, 4): a(f'v_add_u32 v{26+r}, {r*7168}, v26')
            a(f's_mov_b32 s58, s54\ns_mov_b32 s59, s51\ns_mov_b32 s62, {1792*1024}\ns_mov_b32 s63, s51\ns_bfm_b32 s98, 1, 22\ns_mov_b32 s99, s51')
            s.srd(56, 20); s.srd(60, 32); s.srd(96, 24)
            a(f's_add_u32 s11, s6, {r2}\ns_and_b32 s11, s11, 7\ns_lshl_b32 s11, s11, 7\ns_lshl_b32 s15, s10, 15\ns_add_u32 s15, s15, s11')
            a('s_lshl2_add_u32 s9, s3, s5\ns_lshl_b32 s9, s9, 17\ns_lshl_b32 s11, s6, 7\ns_add_u32 s9, s9, s11')
            s.stamp(2)
            late = True
        assert late or c in '1k'
        if cnt[c] == 0 and c in '1k': s.srd(sd, ptr)
        a(f's_mov_b32 m0, {lds + cnt[c] * 4096}')
        if cnt[c]: a(f's_add_u32 s{so}, s{so}, {step}')
        while landed < gi + 1 - prof[gi]:
            landed += 1
            if landed in marks or landed == gi + 1 - prof[gi]:
                a(f's_waitcnt vmcnt({(gi-landed)*4})')
            if landed in marks:
                a(f'v_mov_b32 v30, {landed}\nds_write_b32 v8, v30 offset:{C_G}')
                if landed == TH['v'][7]: s.stamp(6)
        for r in range(4):
            fine = kw.get('fine')
            if fine and gi * 4 + r >= fine and (r or fine - 1 < (gi - landed) * 4): a(f's_waitcnt vmcnt({fine-1})')
            fl = kw.get('nt' + c, NT)
            a(f'buffer_load_dwordx4 v{vr+r}, s[{sd}:{sd+3}], s{so} offen offset:{r*1024} {fl} lds')
        cnt[c] += 1
    for n in range(landed + 1, len(order) + 1):
        if n in marks:
            if kw.get('obar') and n == len(order) and n != TH['v'][7]:
                a('s_waitcnt vmcnt(0)')
            else:
                a(f'v_mov_b32 v30, {n}\ns_waitcnt vmcnt({(len(order)-n)*4})\nds_write_b32 v8, v30 offset:{C_G}')
            if n == TH['v'][7]: s.stamp(6)
    s.stamp(7)
    if kw.get('obar'): a('s_barrier')
    a('s_branch L_end')

    if kw.get('shift'): a('s_nop 0')
    a('L_PM:')
    a('s_barrier')
    common()
    ns = kw.get('nsamp', 1)
    a(f's_lshr_b32 s10, s2, 6\ns_lshl1_add_u32 s10, s10, s7\ns_lshl_b32 s10, s10, 6\ns_and_b32 s11, s2, 63\ns_add_u32 s10, s10, s11\ns_lshl_b32 s10, s10, 7\ns_add_u32 s10, s10, {WS_T - 4*8192}')
    a('s_waitcnt lgkmcnt(0)')
    if kw.get('pd'): a(f's_sleep {kw["pd"]}')
    a('s_memtime s[12:13]\ns_load_dword s11, s[40:41], s10')
    if ns == 2: a('s_add_u32 s10, s10, 0x10000\ns_waitcnt lgkmcnt(0)\ns_load_dword s11, s[40:41], s10')
    a('s_waitcnt lgkmcnt(0)\ns_memtime s[14:15]\ns_lshl_b32 s10, s7, 2\nv_mov_b32 v10, s10\ns_waitcnt lgkmcnt(0)')
    a(f's_sub_u32 s12, s14, s12\nv_mov_b32 v11, s12\nds_write_b32 v10, v11 offset:{T_A - 16}')
    a('s_cmp_eq_u32 s7, 4\ns_cbranch_scc1 L_P\ns_branch L_M')
    a('L_C:')
    if kw.get('clk'): a('s_memtime s[90:91]\ns_memrealtime s[88:89]')
    a('s_load_dword s44, s[40:41], 0\ns_barrier')
    a('s_setprio 2')
    common()
    s.stamp(1)
    if 'C' in kw.get('kill', ''): a('s_waitcnt vmcnt(0)\ns_branch L_end')
    a('v_bfe_u32 v4, v1, 2, 2\nv_and_b32 v5, 3, v1')
    a(f's_mul_i32 s11, s7, {XS}\ns_add_u32 s11, s11, {XN}')
    a('v_lshrrev_b32 v10, 2, v1\nv_lshlrev_b32 v10, 6, v10\nv_and_b32 v11, 1, v1\nv_lshl_add_u32 v10, v11, 5, v10\nv_and_b32 v11, 2, v1\nv_lshl_add_u32 v10, v11, 2, v10\nv_add_u32 v11, s11, v10')
    a('s_mov_b32 s55, 0xffff0000')
    a('v_lshl_add_u32 v27, v2, 2, v4\nv_bfe_u32 v96, v27, 1, 2\nv_lshlrev_b32 v96, 5, v96\nv_lshl_add_u32 v96, v27, 7, v96\nv_lshl_add_u32 v96, v5, 3, v96')
    a('s_lshl_b32 s12, s7, 5\nv_xor_b32 v10, s12, v96')
    a('s_getreg_b32 s45, hwreg(HW_REG_XCC_ID, 0, 4)')
    a(f'v_mul_u32_u24 v24, {XS}, v5\nv_lshl_add_u32 v24, v2, 4, v24')
    a(f's_lshl_b32 s10, s5, 8\ns_add_u32 s10, s10, {XN}\nv_add_u32 v25, s10, v24')
    a(f's_lshl_b32 s10, s6, 7\ns_add_u32 s10, s10, {YL}\nv_add_u32 v24, s10, v24')
    a(f's_lshl_b32 s14, s3, 15\ns_lshl1_add_u32 s14, s12, s14\ns_lshl_b32 s13, s4, 8\ns_xor_b32 s58, s13, {rq*256}\ns_add_u32 s58, s14, s58\ns_add_u32 s58, s58, {WS_Q}')
    a(f's_lshl2_add_u32 s59, s13, s14\ns_add_u32 s59, s59, {WS_H}')
    a('v_lshlrev_b32 v106, 13, v3\nv_lshl_add_u32 v106, v2, 4, v106\nv_lshlrev_b32 v107, 4, v1\nv_mov_b32 v30, 0x3ff\nv_mov_b32 v31, 0xfffffc01')
    s.pack24_consts()
    a('s_mov_b32 s13, 1')
    a('s_waitcnt vmcnt(0)' if kw.get('safeB') else 's_waitcnt vmcnt(4)')
    if not kw.get('ackst'): s.stamp(2)
    a('L_ln:')
    s.layernorm(12, 16, 32)
    a(f'ds_write2_b64 v11, v[12:13], v[14:15] offset1:2\nv_add_u32 v11, {YL-XN}, v11')
    a('s_sub_u32 s13, s13, 1\ns_cbranch_scc0 L_ln')
    s.stamp(3)
    a('s_waitcnt vmcnt(0) lgkmcnt(0)')
    if kw.get('st_tile'): s.stamp(5)
    s.signal(C_WA)
    s.tag_finish()
    a(f'v_mov_b32 v111, s44\nv_mov_b32 v115, s44\nds_write_b32 v8, v111 offset:{TAGW}')
    s.wait_flag(C_WA, 4, extra=[f'ds_read_b64 v[28:29], v8 offset:{T_A}'] + [x for t in range(4) for x in (f'ds_read_b128 v[{64+4*t}:{67+4*t}], v25 offset:{t*64}',
                f'ds_read_b64_tr_b16 v[{40+4*t}:{41+4*t}], v10 offset:{WA+t*4096}', f'ds_read_b64_tr_b16 v[{42+4*t}:{43+4*t}], v10 offset:{WA+t*4096+2048}')])
    for t in range(4):
        a(f's_waitcnt lgkmcnt({9-3*t})')
        s.mfma(16, 40 + 4 * t, 64 + 4 * t, t == 0)
        if t == 0: a('v_sub_u32 v110, v28, v29\nv_min_u32 v28, v28, v29')
        if t == 1: a('v_cmp_ne_u32 vcc, 0, v28\nv_med3_i32 v110, v110, v30, v31')
        if t == 2: a('v_cndmask_b32 v110, 0, v110, vcc\nv_lshl_or_b32 v110, v110, 4, s45')
    for t in range(2): a(f'ds_read_b128 v[{80+4*t}:{83+4*t}], v24 offset:{t*64}')
    a('s_mov_b32 exec_lo, 0x000f000f\ns_mov_b32 exec_hi, 0x000f000f')
    a('v_cvt_pk_bf16_f32 v108, v16, v17\nv_cvt_pk_bf16_f32 v109, v18, v19')
    a('buffer_store_dwordx4 v[108:111], v106, s[40:43], s58 offen')
    if kw.get('qe'): s.signal(C_QP)
    else: a('s_mov_b64 exec, -1')
    if not kw.get('ackst'): s.stamp(4)
    s.wait_flag(C_G, TH['1'][1], extra=[f'ds_read_b64_tr_b16 v[{40+2*t}:{41+2*t}], v10 offset:{W1+t*2048}' for t in range(4)], sleep=1)
    for t in range(2):
        a(f's_waitcnt lgkmcnt({2-2*t})')
        s.mfma(16, 40 + 4 * t, 80 + 4 * t, t == 0)
    a('s_mov_b32 exec_lo, 0x000f000f\ns_mov_b32 exec_hi, 0x000f000f')
    s.pack24(112, 16, 17, 18, 19)
    a('buffer_store_dwordx4 v[112:115], v107, s[40:43], s59 offen')
    if kw.get('he'): s.signal(C_HP)
    else: a('s_mov_b64 exec, -1')
    if 'Q' in kw.get('kill', ''): a('s_branch L_end')
    a(f's_lshl_b32 s10, s7, 13\ns_add_u32 s10, s10, {KB}')
    a(f'v_xor_b32 v10, v2, v3\nv_lshlrev_b32 v10, 4, v10\nv_lshl_add_u32 v10, v3, 8, v10\nv_add_u32 v102, {QL}, v10\nv_add_u32 v10, s10, v10')
    a('v_xor_b32 v103, 64, v102\nv_xor_b32 v104, 128, v102\nv_xor_b32 v105, 192, v102')
    a('v_xor_b32 v11, 64, v10\nv_xor_b32 v12, 128, v10\nv_xor_b32 v13, 192, v10')
    a(f's_lshl_b32 s10, s7, 2\ns_add_u32 s10, s10, {MX}\nv_lshlrev_b32 v15, 4, v5\nv_add_u32 v24, s10, v15\nv_add_u32 v15, {MX}, v15\ns_add_u32 s10, s10, {FP-MX}\nv_mov_b32 v14, s10')
    a(f's_lshl_b32 s10, s7, 10\ns_add_u32 s10, s10, {PL}\nv_lshlrev_b32 v25, 4, v1\nv_add_u32 v26, s10, v25\nv_add_u32 v25, {PL}, v25')
    a('v_and_b32 v28, 7, v27\ns_lshl_b32 s10, s7, 1\nv_xor_b32 v28, s10, v28\nv_lshlrev_b32 v28, 5, v28\nv_lshl_add_u32 v28, v27, 8, v28\nv_lshl_add_u32 v28, v5, 3, v28')
    a(f'v_add_u32 v28, {VB}, v28\nv_xor_b32 v29, 32, v28')
    a(f's_lshr_b32 s10, s7, 1\ns_lshl_b32 s11, s10, 13\ns_add_u32 s11, s11, {WO}')
    a('v_add_u32 v96, s11, v96\nv_xor_b32 v97, 32, v96\nv_xor_b32 v98, 64, v96\nv_xor_b32 v99, 96, v96')
    a('v_lshlrev_b32 v30, 14, v3\nv_lshl_add_u32 v30, v2, 8, v30')
    a(f's_lshl_b32 s14, s3, 16\ns_add_u32 s14, s14, {WS_O}')
    a('s_lshr_b32 s11, s4, 4\ns_lshl2_add_u32 s11, s11, s7\ns_lshl_b32 s11, s11, 11\ns_and_b32 s12, s4, 15\ns_lshl4_add_u32 s11, s12, s11')
    a('v_lshlrev_b32 v31, 4, v1')
    a('s_xor_b32 s12, s3, s6\ns_and_b32 s12, s12, 4\ns_lshl_b32 s12, s12, 11\nv_or_b32 v101, s12, v31')
    a('s_lshl_b32 s15, s5, 14\ns_add_u32 s15, s15, s14\ns_lshl_b32 s10, s10, 12\ns_add_u32 s15, s15, s10\ns_and_b32 s10, s7, 1\ns_lshl_b32 s12, s10, 13\ns_add_u32 s15, s15, s12')
    a('s_add_u32 s14, s14, s11')
    a(f'v_lshlrev_b32 v100, 9, v2\nv_lshl_add_u32 v100, v3, 4, v100\nv_add_u32 v100, {RED}, v100')
    a(f's_lshr_b32 s10, s3, 1\ns_lshl2_add_u32 s56, s6, s10\ns_and_b32 s10, s3, 1\ns_lshl2_add_u32 s56, s56, s10\ns_lshl2_add_u32 s56, s56, s5\ns_lshl_b32 s56, s56, 10\ns_add_u32 s56, s56, {WS_S}\ns_add_u32 s63, s56, 8192')
    a('v_lshrrev_b32 v119, 1, v1\nv_lshlrev_b32 v119, 10, v119\nv_and_b32 v16, 1, v1\nv_lshl_add_u32 v119, v16, 4, v119')
    a(f's_lshl_b32 s60, s3, 15\ns_lshl_b32 s11, s4, 5\ns_add_u32 s60, s60, s11\ns_add_u32 s62, s60, {WS_M}\ns_add_u32 s60, s60, {WS_S}')
    a('v_lshl_add_u32 v117, v2, 13, v119')
    a(f's_lshl_b32 s60, s3, 16\ns_add_u32 s60, s60, s11\ns_add_u32 s60, s60, {WS_S}')
    a(f's_mov_b32 s13, {hex(f2u(CSC))}')
    a('s_mov_b32 s12, s13')
    for k in range(4): a(f'v_mov_b32 v{124+k}, {hex(ONE2)}')
    kt = TH['k'][1::2]
    a(f's_lshl_b32 s57, s7, 3\ns_lshr_b32 s57, {kt[0] | kt[1] << 8 | kt[2] << 16 | kt[3] << 24}, s57\ns_and_b32 s57, s57, 0xff')
    if not kw.get('qe'):
        a('s_waitcnt vmcnt(1)')
        s.signal(C_QP)
    if not kw.get('he'):
        a('s_waitcnt vmcnt(0)')
        s.signal(C_HP)
    s.wait_flag(C_G, 's57', sleep=1)
    for u in range(2):
        for t in range(4):
            a(f'ds_read_b128 v[{32+16*u+4*t}:{35+16*u+4*t}], v{10+t} offset:{u*4096}')
    if not kw.get('st_tile') and not kw.get('ackst'): s.stamp(5)
    s.wait_flag(F_Q, 1, extra=[f'ds_read_b128 v[{64+4*t}:{67+4*t}], v{102+t}' for t in range(4)])
    s.stamp(6)
    a('v_readfirstlane_b32 s47, v9')
    a('s_cmp_lg_u32 s47, 1\ns_cbranch_scc1 L_qrem')
    a('L_qgo:')
    DP = lambda op, d, x, y, m, rm='0xf': f'{op}_dpp {d}, {x}, {y} {m} row_mask:{rm} bank_mask:0xf'
    for u in range(2):
        for t in range(4):
            if u == 0: a(f's_waitcnt lgkmcnt({3-t})')
            s.mfma(16 + 4 * u, 32 + 16 * u + 4 * t, 64 + 4 * t, t == 0)
    if kw.get('safeC'): a('s_nop 15')
    a('v_mov_b32 v40, s44\nv_mov_b32 v47, s44\nv_mov_b32 v123, s44')
    for u in range(2):
        for k in range(4): a(DP('v_add_f32', f'v{16+4*u+k}', f'v{16+4*u+k}', f'v{16+4*u+k}', 'row_ror:4'))
        for k in range(4): a(DP('v_add_f32', f'v{16+4*u+k}', f'v{16+4*u+k}', f'v{16+4*u+k}', 'row_ror:8'))
        if u == 0: a('v_max3_f32 v10, v16, v17, v18')
    a('v_max3_f32 v10, v10, v19, v20\nv_max3_f32 v11, v21, v22, v23\nv_max_f32 v10, v10, v11\nv_max_f32 v11, v10, v11')
    a('v_permlane16_swap_b32 v11, v10\nv_max_f32 v10, v11, v10\nv_max_f32 v11, v11, v10')
    a('v_permlane32_swap_b32 v11, v10\nv_max_f32 v10, v11, v10\nv_or_b32 v10, 1, v10')
    WB = 128; VR = 160
    vrd = lambda t: [f'ds_read_b64_tr_b16 v[{VR+8*t+4*T+2*u}:{VR+1+8*t+4*T+2*u}], v{28+T} offset:{t*8192+u*4096}' for T in range(2) for u in range(2)]
    cw = lambda n: 0 if (s.stamps and not kw.get('lean')) else n
    a('ds_write_b32 v24, v10')
    a(f'ds_read_b128 v[32:35], v15\nds_read_b32 v9, v8 offset:{C_G}')
    for x in vrd(0) + vrd(1) + vrd(2): a(x)
    a(f's_waitcnt lgkmcnt({cw(13)})\ns_branch L_mx2')
    a('L_mx:')
    a('ds_read_b128 v[32:35], v15')
    s.budget()
    a('s_waitcnt lgkmcnt(0)')
    a('L_mx2:')
    a('v_min3_u32 v11, v32, v33, v34\nv_max3_f32 v10, v32, v33, v34\nv_min_u32 v11, v11, v35\nv_max_f32 v10, v10, v35\nv_cmp_eq_u32 vcc, 0, v11\nv_mul_f32 v116, s13, v10\ns_cbranch_vccnz L_mx')
    for k in range(4): a(f'v_pk_fma_f32 v[{16+2*k}:{17+2*k}], v[{16+2*k}:{17+2*k}], s[12:13], v[116:117] op_sel_hi:[1,1,0] neg_lo:[0,0,1] neg_hi:[0,0,1]')
    for k in range(8): a(f'v_exp_f32 v{16+k}, v{16+k}')
    for k in range(4): a(f'v_cvt_pk_bf16_f32 v{32+k}, v{16+2*k}, v{17+2*k}')
    a('ds_write_b128 v26, v[32:35]\nds_write_b32 v14, v6')
    a('L_pw:')
    a(f'ds_read_b128 v[36:39], v8 offset:{FP}')
    for t in range(4): a(f'ds_read_b128 v[{64+4*t}:{67+4*t}], v25 offset:{t*1024}')
    a(f'ds_read_b32 v118, v8 offset:{C_G}')
    for x in vrd(3): a(x)
    a('v_mov_b32 v41, v116')
    s.budget()
    a(f's_waitcnt lgkmcnt({cw(9)})\nv_min3_u32 v11, v36, v37, v38\nv_min_u32 v11, v11, v39\nv_cmp_eq_u32 vcc, 0, v11\ns_cbranch_vccnz L_pw')
    s.stamp(7)
    def wo_reads(kss=(0, 1)):
        for ks in kss:
            for T in range(4):
                for u in range(2):
                    r = WB + 16 * ks + 4 * T + 2 * u
                    a(f'ds_read_b64_tr_b16 v[{r}:{r+1}], v{96+T} offset:{ks*4096+u*2048}')
    early = False
    a(f'v_cmp_gt_u32 vcc, {TH["v"][5]}, v9\ns_cbranch_vccz L_v012')
    s.wait_flag(C_G, TH['v'][5], extra=vrd(0) + vrd(1) + vrd(2), sleep=2)
    a('s_waitcnt lgkmcnt(0)')
    a('L_v012:')
    for t in range(3):
        a(f's_waitcnt lgkmcnt({8-t})')
        for T in range(2): s.mfma(16 + 4 * T, VR + 8 * t + 4 * T, 64 + 4 * t, t == 0)
        s.mfma(56, 124, 64 + 4 * t, t == 0)
    a('s_waitcnt lgkmcnt(4)')
    s.mfma(56, 124, 76, False)
    a(f'v_cmp_gt_u32 vcc, {TH["v"][7]}, v118\ns_cbranch_vccz L_v3')
    s.wait_flag(C_G, TH['v'][7], extra=vrd(3))
    a('L_v3:')
    if not kw.get('ind'): s.stamp(8)
    for T in range(2):
        a(f's_waitcnt lgkmcnt({2-2*T})')
        s.mfma(16 + 4 * T, VR + 24 + 4 * T, 76, False)
    a('v_mov_b32 v46, v56')
    a('s_mov_b32 exec_lo, 0x000f000f\ns_mov_b32 exec_hi, 0x000f000f\ns_cmp_eq_u32 s47, 1')
    for k in range(4): a(f'v_cvt_pk_bf16_f32 v{42+k}, v{16+2*k}, v{17+2*k}')
    a('s_cbranch_scc0 L_orem')
    a('buffer_store_dwordx4 v[40:43], v30, s[40:43], s14 offen\nbuffer_store_dwordx4 v[44:47], v30, s[40:43], s14 offen offset:1024')
    a('L_ost:')
    a('s_mov_b64 exec, -1')
    s.stamp(9)
    if kw.get('ackst'):
        a('s_waitcnt vmcnt(0)')
        s.stamp(5)
    if 'D' in kw.get('kill', ''): a('s_branch L_end')
    if kw.get('od0'): a(f's_sleep {kw["od0"]}')
    OE = kw.get('oe')
    if OE is not None:
        if OE: s.wait_flag(C_G, len(order) - OE)
    elif kw.get('obar'): a('s_barrier')
    if kw.get('ind'):
        if not early:
            s.wait_flag(C_G, TH['o'][3])
            wo_reads()
            early = True
        a('s_mov_b32 exec_hi, 0')
        a('L_ipoll:')
        a('buffer_load_dword v48, v101, s[40:43], s15 offen offset:1036 sc1')
        s.budget()
        if kw.get('isl'):
            a(f's_waitcnt vmcnt(0)\nv_cmp_ne_u32 vcc, s44, v48\ns_cbranch_vccz L_idone\ns_sleep {kw["isl"]}\ns_branch L_ipoll\nL_idone:')
        else:
            a('s_waitcnt vmcnt(0)\nv_cmp_ne_u32 vcc, s44, v48\ns_cbranch_vccnz L_ipoll')
        a('s_mov_b32 exec_hi, -1')
        s.stamp(8)
    for k in range(4): a(f'buffer_load_dwordx4 v[{48+4*k}:{51+4*k}], v31, s[40:43], s15 offen offset:{k*1024} sc1')
    if OE == 1 and kw.get('wsplit'):
        wo_reads((0,))
        a('s_barrier')
        wo_reads((1,))
        a(f'ds_read_b32 v9, v8 offset:{F_K}')
    else:
        if OE is not None: a('s_barrier')
        a(f'ds_read_b32 v9, v8 offset:{F_K}')
        wo_reads()
    if s.stamps:
        if kw.get('ackst'):
            a('s_waitcnt vmcnt(0)')
            s.stamp(2)
        a('s_mov_b32 s61, 0')
    a('s_branch L_opoll')
    a('L_oretry:')
    a('s_mov_b64 exec, vcc')
    if s.stamps: a('s_add_u32 s61, s61, 1')
    if kw.get('osl'): a(f's_sleep {kw["osl"]}')
    for k in range(4): a(f'buffer_load_dwordx4 v[{48+4*k}:{51+4*k}], v31, s[40:43], s15 offen offset:{k*1024} sc1')
    a('s_mov_b64 exec, -1')
    s.budget()
    if kw.get('al'): a('.p2align 3')
    a('L_opoll:')
    a('s_waitcnt vmcnt(0) lgkmcnt(0)')
    a('v_xor_b32 v10, s44, v48\nv_bitop3_b32 v10, v55, s44, v10 bitop3:0xbe\nv_bitop3_b32 v10, v56, s44, v10 bitop3:0xbe\nv_bitop3_b32 v10, v63, s44, v10 bitop3:0xbe')
    a('v_cmp_ne_u32 vcc, 0, v10\ns_cbranch_vccnz L_oretry')
    s.stamp(11)
    if s.stamps: a('s_mul_i32 s61, s61, 100\ns_add_u32 s70, s64, s61')
    M8 = ('quad_perm:[1,0,3,2]', 'quad_perm:[2,3,0,1]', 'row_half_mirror')
    D = lambda op, d, x, y, m, rm='0xf': f'{op}_dpp {d}, {x}, {y} {m} row_mask:{rm} bank_mask:0xf'
    R = lambda m, rm: f'v_mov_b32_dpp v23, v21 {m} row_mask:{rm} bank_mask:0xf'
    wv = [D('v_max_f32', 'v20', 'v49', 'v49', M8[0]), None, D('v_max_f32', 'v20', 'v20', 'v20', M8[1]), None, D('v_max_f32', 'v20', 'v20', 'v20', M8[2]),
          'v_sub_f32 v21, v49, v20', 'v_exp_f32 v21, v21', None, 'v_mul_f32 v22, v54, v21', 'v_mov_b32 v23, v21', None,
          D('v_add_f32', 'v22', 'v22', 'v22', M8[0]), R('row_ror:12', '0x2'), None, D('v_add_f32', 'v22', 'v22', 'v22', M8[1]), R('row_ror:8', '0x4'), None,
          D('v_add_f32', 'v22', 'v22', 'v22', M8[2]), R('row_ror:4', '0x8'), 'v_rcp_f32 v22, v22', None]
    mf = [(32 + 4 * T, 50 + 8 * ks, WB + 16 * ks + 4 * T, ks == 0) for ks in range(2) for T in range(4)]
    s.mfma(*mf.pop(0))
    for x in wv:
        if x is None: s.mfma(*mf.pop(0))
        else: a(x)
    assert not mf
    a('v_mul_f32 v21, v22, v23')
    a(D('v_mul_f32', 'v21', 'v22', 'v23', 'row_ror:8', '0xc'))
    for T in range(4): a(D('v_mul_f32', f'v{16+T}', 'v21', f'v{32+4*T}', 'row_newbcast:0'))
    for r in range(1, 4):
        for T in range(4): a(D('v_fmac_f32', f'v{16+T}', 'v21', f'v{32+4*T+r}', f'row_newbcast:{r}'))
    a(f'ds_write_b128 v26, v[16:19] offset:{RED-PL}')
    if kw.get('nf'): a('v_xor_b32 v10, v9, v101\nv_xor_b32 v11, 0x2000, v10')
    a('v_add_u32 v117, v117, v9\ns_cmp_lg_u32 s7, 0')
    a('s_waitcnt lgkmcnt(0)\ns_barrier')
    s.stamp(12)
    a('s_cbranch_scc1 ' + ('L_wb' if kw.get('fw') else 'L_end'))
    for k in range(4): a(f'ds_read_b128 v[{48+4*k}:{51+4*k}], v100 offset:{(k>>1)*2048+(k&1)*256}')
    a('s_waitcnt lgkmcnt(2)')
    a('v_pk_add_f32 v[48:49], v[48:49], v[52:53]\nv_pk_add_f32 v[50:51], v[50:51], v[54:55]')
    a('s_waitcnt lgkmcnt(1)')
    a('v_pk_add_f32 v[48:49], v[48:49], v[56:57]\nv_pk_add_f32 v[50:51], v[50:51], v[58:59]')
    a('s_waitcnt lgkmcnt(0)')
    a('v_pk_add_f32 v[48:49], v[48:49], v[60:61]\nv_pk_add_f32 v[50:51], v[50:51], v[62:63]')
    s.pack24(120, 48, 49, 50, 51)
    if kw.get('nf'):
        a('buffer_store_dwordx4 v[120:123], v10, s[40:43], s56 offen sc1')
        if kw.get('nfs'): a(f's_sleep {kw["nfs"]}')
        a('buffer_store_dwordx4 v[120:123], v11, s[40:43], s56 offen sc1')
    else:
        a('buffer_store_dwordx4 v[120:123], v31, s[40:43], s56 offen sc1\nbuffer_store_dwordx4 v[120:123], v31, s[40:43], s63 offen sc1')
    s.stamp(13)
    fw = kw.get('fw', 0)
    if fw:
        a('s_branch L_end')
        a('L_wb:')
        a(f's_cmp_lg_u32 s7, {fw}\ns_cbranch_scc1 L_end')
        if kw.get('d0'): a(f's_sleep {kw["d0"]}')
    LA = 'buffer_load_dwordx4 v[16:19], v117, s[40:43], s60 offen sc1'
    LB_ = 'buffer_load_dwordx4 v[20:23], v117, s[40:43], s60 offen sc1'
    a('L_mpoll:')
    a('buffer_load_dwordx4 v[32:35], v119, s[40:43], s62 offen sc1')
    a(f'v_lshlrev_b32 v14, 3, v1\nv_add_u32 v14, {GX}, v14\nds_read_b64 v[12:13], v14')
    s.unpack24_consts()
    s.srd_const(48, 4096); s.srd(48, 36)
    a('s_mov_b32 s56, 0x00030003\ns_mov_b32 s57, s56')
    a('v_and_b32 v11, 1, v1\nv_lshlrev_b32 v14, 5, v2\nv_lshl_add_u32 v14, v11, 1, v14')
    a('s_lshl_b32 s11, s5, 10\ns_lshl_b32 s12, s3, 7\ns_add_u32 s11, s11, s12\ns_lshl2_add_u32 s11, s6, s11')
    if kw.get('d1'): a(f's_sleep {kw["d1"]}')
    a(LA)
    if kw.get('d2'): a(f's_sleep {kw["d2"]}')
    a(LB_)
    s.budget()
    a('s_waitcnt vmcnt(2)\nv_cmp_ne_u32 vcc, s44, v35\ns_cbranch_vccnz L_mpoll')
    s.stamp(10)
    s.unpack24(32)
    s.reduce32(32)
    a('s_waitcnt lgkmcnt(0)')
    s.round_bf16('v32')
    a('v_add_f32 v32, v32, v12')
    s.round_bf16('v32')
    a(f'v_mul_f32 v33, {hex(f2u(-math.log2(math.e)))}, v32\nv_exp_f32 v33, v33\nv_add_f32 v33, 1.0, v33\nv_rcp_f32 v33, v33\nv_mul_f32 v12, v32, v33')
    s.round_bf16('v12')
    a('L_fpoll:')
    a('s_waitcnt vmcnt(1)\nv_cmp_ne_u32 vcc, s44, v19\ns_cbranch_vccz L_fdone')
    if kw.get('d4'): a(f's_sleep {kw["d4"]}')
    a(LA)
    s.budget()
    a('s_waitcnt vmcnt(1)\nv_cmp_ne_u32 vcc, s44, v23\ns_cbranch_vccz L_fdoneB')
    if kw.get('d3'): a(f's_sleep {kw["d3"]}')
    a(LB_ + '\ns_branch L_fpoll')
    def finish(r):
        s.stamp(14)
        s.unpack24(r)
        s.reduce32(r)
        if kw.get('exactfin', 0):
            s.round_bf16(f'v{r}')
            a(f'v_mul_f32 v{r}, v{r}, v12')
            s.round_bf16(f'v{r}')
            a(f'v_add_f32 v{r}, v{r}, v13')
        else:
            a(f'v_fma_f32 v{r}, v{r}, v12, v13')
        a('s_mov_b64 exec, s[56:57]')
        a(f'v_cvt_pk_bf16_f32 v{r}, v{r}, v{r}')
        a(f'buffer_store_short v{r}, v14, s[48:51], s11 offen')
    a('L_fdoneB:')
    finish(20)
    a('s_branch L_epoch')
    a('L_fdone:')
    finish(16)
    a('L_epoch:')
    s.stamp(15)
    a('s_cmp_lg_u32 s2, 0\ns_cbranch_scc1 L_end')
    a('s_mov_b64 exec, 1\nbuffer_store_dword v123, v8, s[40:43], 0 offen')
    a('s_branch L_end')

    a('L_qrem:')
    a('s_mov_b32 exec_lo, 0x000f000f\ns_mov_b32 exec_hi, 0x000f000f')
    a('buffer_store_dwordx4 v[108:111], v106, s[40:43], s58 offen sc1\nbuffer_store_dwordx4 v[112:115], v107, s[40:43], s59 offen sc1')
    a('s_mov_b64 exec, -1')
    a('L_qrem2:')
    a(f'ds_read_b32 v9, v8 offset:{F_Q}')
    for t in range(4): a(f'ds_read_b128 v[{64+4*t}:{67+4*t}], v{102+t}')
    s.budget()
    a('s_waitcnt lgkmcnt(0)\nv_readfirstlane_b32 s47, v9\ns_cmp_eq_u32 s47, 4\ns_cbranch_scc0 L_qgo\ns_sleep 2\ns_branch L_qrem2')
    if kw.get('wb') is not None:
        a('L_wb:')
        a(f's_cmp_lg_u32 s7, 1\ns_cbranch_scc1 L_end\ns_and_b32 s10, s4, {kw["wb"]}\ns_cbranch_scc1 L_end')
        if kw.get('wbd'): a(f's_sleep {kw["wbd"]}')
        a('buffer_wbl2 sc1\ns_branch L_end')
    a('L_orem:')
    a('buffer_store_dwordx4 v[40:43], v30, s[40:43], s14 offen sc1\nbuffer_store_dwordx4 v[44:47], v30, s[40:43], s14 offen offset:1024 sc1')
    a('s_branch L_ost')
    a('L_P:')
    if 'P' in kw.get('kill', ''): a('s_waitcnt lgkmcnt(0)\ns_branch L_end')
    a('s_setprio 3')
    a('s_getreg_b32 s45, hwreg(HW_REG_XCC_ID, 0, 4)')
    a('v_and_b32 v5, 3, v1')
    a(f's_lshl_b32 s10, s3, 15\ns_lshl_b32 s12, s4, 10\ns_add_u32 s12, s12, s10')
    a('s_waitcnt lgkmcnt(0)')
    if kw.get('warmq'):
        a(f'v_and_b32 v10, 7, v1\nv_lshlrev_b32 v10, 7, v10\nv_and_b32 v11, 8, v1\nv_lshl_add_u32 v10, v11, 15, v10\ns_add_u32 s11, s12, {WS_Q}')
        a(f's_mov_b64 exec, {0xff if kw["warmq"] == 1 else 0xffff}\nbuffer_load_dword v7, v10, s[40:43], s11 offen {kw.get("warmqfl", "")}\ns_mov_b64 exec, -1')
    a(f's_lshl_b32 s11, s5, 13\ns_add_u32 s10, s10, s11\ns_add_u32 s10, s10, {WS_Q}\ns_add_u32 s15, s10, 4096')
    a('v_lshlrev_b32 v10, 4, v1')
    a(f'v_lshrrev_b32 v11, 5, v1\nv_and_b32 v12, 31, v1\nv_lshlrev_b32 v13, 3, v12\nv_lshlrev_b32 v14, 4, v11\nv_xor_b32 v13, v13, v14\nv_lshl_add_u32 v13, v11, 8, v13\nv_add_u32 v22, {QL}, v13')
    for c in range(1, 8): a(f'v_xor_b32 v{22+c}, {c*32}, v22')
    a(f's_mov_b32 s14, {kw.get("nfast", 48)}')
    a('s_waitcnt lgkmcnt(0)')
    s.stamp(1)
    if 'W' in kw.get('kill', ''): a('s_branch L_end')
    if kw.get('qs'): a(f's_sleep {kw["qs"]}')
    if kw.get('qg'): s.wait_flag(C_G, kw['qg'], sleep=1)
    s.wait_flag(C_QP, 4, sleep=1, extra=[f'ds_read_b32 v15, v8 offset:{TAGW}'])
    a('s_waitcnt lgkmcnt(0)\nv_readfirstlane_b32 s44, v15')
    if q0: a(f's_sleep {q0}')
    s.stamp(2)
    a('L_qpoll:')
    for c in range(8): a(f'buffer_load_dwordx4 v[{32+4*c}:{35+4*c}], v10, s[40:43], s{10 if c < 4 else 15} offen offset:{(c&3)*1024} sc1 {kw.get("qnt", "")}')
    s.budget()
    a('s_waitcnt vmcnt(0)')
    a('v_xor_b32 v15, s44, v35')
    for c in range(1, 8): a(f'v_bitop3_b32 v15, v{35+4*c}, s44, v15 bitop3:0xbe')
    a('v_cmp_ne_u32 vcc, 0, v15\ns_cbranch_vccz L_qgot')
    a(f's_mov_b64 exec, vcc\ns_sub_u32 s14, s14, 1\ns_cbranch_scc0 L_qpoll')
    a(f'v_mov_b32 v15, 4\nds_write_b32 v8, v15 offset:{F_Q}\ns_branch L_qpoll')
    a('L_qgot:')
    a('s_mov_b64 exec, -1')
    a('v_xor_b32 v15, s45, v34')
    for c in range(8):
        a(f'ds_write_b64 v{22+c}, v[{32+4*c}:{33+4*c}] offset:{c*512}')
        if c < 7: a(f'v_bitop3_b32 v15, v{38+4*c}, s45, v15 bitop3:0xbe')
    a('v_and_b32 v15, 15, v15\nv_cmp_ne_u32 vcc, 0, v15\ns_cmp_eq_u64 vcc, 0\ns_cselect_b32 s47, 1, 2')
    if kw.get('force_remote'): a('s_mov_b32 s47, 2')
    a(f'v_mov_b32 v15, s47\nds_write_b32 v8, v15 offset:{F_Q}')
    s.stamp(3)
    a('v_add3_u32 v16, v34, v38, v42\nv_add3_u32 v17, v46, v50, v54\nv_add3_u32 v16, v16, v58, v62\nv_add_u32 v16, v16, v17')
    for m in ('quad_perm:[1,0,3,2] row_mask:0xf', 'quad_perm:[2,3,0,1] row_mask:0xf', 'row_half_mirror row_mask:0xf', 'row_mirror row_mask:0xf', 'row_bcast:15 row_mask:0xa', 'row_bcast:31 row_mask:0xc'):
        a(f'v_add_u32_dpp v16, v16, v16 {m} bank_mask:0xf')
    a('v_readlane_b32 s10, v16, 63\ns_cmp_lt_i32 s10, 0\ns_cselect_b32 s10, 0, 8192')
    if kw.get('kflip'): a('s_xor_b32 s10, s10, 8192')
    a(f'v_mov_b32 v15, s10\nds_write_b32 v8, v15 offset:{F_K}')
    a(f's_lshl_b32 s11, s12, 1\ns_add_u32 s11, s11, {WS_O}')
    a(f's_lshl2_add_u32 s12, s3, s5\ns_lshl4_add_u32 s12, s12, s6\ns_lshl_b32 s12, s12, 10\ns_add_u32 s12, s12, s10\ns_add_u32 s12, s12, {WS_S - 2048}')
    a('v_lshlrev_b32 v10, 7, v1\nv_add_u32 v11, s12, v10\nv_add_u32 v10, s11, v10\nv_cmp_gt_u32 vcc, 16, v1\nv_cndmask_b32 v10, v11, v10, vcc')
    if kw.get('wg'): s.wait_flag(C_G, kw['wg'], sleep=2)
    if kw.get('nowarm') == 1: pass
    elif kw.get('nowarm') == 2: a('s_mov_b64 exec, 0xffffff\nbuffer_load_dword v7, v10, s[40:43], 0 offen nt')
    elif kw.get('nowarm') == 3: a('s_mov_b64 exec, 0xffff\nbuffer_load_dword v7, v10, s[40:43], 0 offen nt')
    elif kw.get('ont'):
        a('s_mov_b64 exec, 0xffff\nbuffer_load_dword v7, v10, s[40:43], 0 offen nt\ns_mov_b64 exec, 0xff0000\nbuffer_load_dword v7, v10, s[40:43], 0 offen')
    else:
        a('s_mov_b64 exec, 0xffffff\nbuffer_load_dword v7, v10, s[40:43], 0 offen')
    a('s_branch L_end')

    a('L_M:')
    if kw.get('mprio') is not None: a(f's_setprio {kw["mprio"]}\ns_branch L_M2')
    if 'M' in kw.get('kill', ''): a('s_waitcnt lgkmcnt(0)\ns_branch L_end')
    a('s_setprio 3')
    a('L_M2:')
    a('v_bfe_u32 v4, v1, 2, 2\nv_and_b32 v5, 3, v1')
    a('v_lshl_add_u32 v10, v4, 2, v2')
    a('v_lshlrev_b32 v11, 3, v10')
    a('v_lshlrev_b32 v10, 4, v1')
    s.mlp_slot(11, 15)
    a('s_lshl3_add_u32 s15, s5, s3\ns_lshl_b32 s11, s11, 6')
    a('v_and_b32 v24, 1, v1\nv_lshlrev_b32 v25, 5, v2\nv_lshl_add_u32 v25, v24, 1, v25')
    a('s_lshl_b32 s12, s3, 7\ns_lshl2_add_u32 s12, s6, s12\ns_lshl_b32 s13, s5, 10\ns_add_u32 s13, s13, s12')
    s.srd_const(56, 3584); s.srd_const(60, 1024); s.srd_const(96, 4096)
    a('s_waitcnt lgkmcnt(0)')
    s.srd(56, 30); s.srd(60, 34); s.srd(96, 16)
    a('buffer_load_ushort v16, v25, s[60:63], s12 offen')
    a('buffer_load_ushort v17, v25, s[96:99], s13 offen')
    a('buffer_load_dwordx2 v[14:15], v11, s[56:59], s11 offen')
    a(f'v_mul_u32_u24 v11, {HS}, v5\nv_lshl_add_u32 v11, v2, 4, v11\nv_lshrrev_b32 v12, 1, v4\nv_lshl_add_u32 v11, v12, 6, v11\nv_and_b32 v12, 1, v4\nv_lshl_add_u32 v11, v12, 3, v11\nv_add_u32 v11, {HL}, v11')
    a(f'v_mul_u32_u24 v12, {HS}, v4\nv_lshl_add_u32 v12, v2, 4, v12\nv_add_u32 v12, {HL}, v12')
    a(f'v_lshl_add_u32 v27, v2, 2, v4\nv_bfe_u32 v28, v27, 1, 2\nv_lshlrev_b32 v28, 5, v28\nv_lshl_add_u32 v28, v27, 7, v28\nv_lshl_add_u32 v28, v5, 3, v28\nv_add_u32 v28, {W2}, v28')
    a('v_xor_b32 v29, 32, v28\nv_xor_b32 v30, 64, v28\nv_xor_b32 v31, 96, v28')
    a(f'v_lshlrev_b32 v13, 3, v1\nv_add_u32 v13, {GX}, v13')
    a('s_waitcnt vmcnt(1) lgkmcnt(0)')
    a('v_lshlrev_b32 v16, 16, v16\nv_lshlrev_b32 v17, 16, v17\nds_write_b64 v13, v[16:17]')
    if kw.get('hs'): a(f's_sleep {kw["hs"]}')
    s.wait_flag(C_HP, 4, sleep=1, extra=[f'ds_read_b32 v23, v8 offset:{TAGW}'])
    a('s_waitcnt lgkmcnt(0)\nv_readfirstlane_b32 s44, v23')
    s.pack24_consts(); s.unpack24_consts()
    if kw.get('hq'): s.wait_flag(F_Q, 1, sleep=1)
    if kw.get('h0', 8): a(f's_sleep {kw.get("h0", 8)}')
    a(f's_lshl2_add_u32 s10, s3, s5\ns_lshl_b32 s10, s10, 13\ns_add_u32 s10, s10, {WS_H}\ns_add_u32 s11, s10, 4096')
    s.stamp(2)
    a('L_hpoll:')
    for c in range(8): a(f'buffer_load_dwordx4 v[{32+4*c}:{35+4*c}], v10, s[40:43], s{10 + (c>>2)} offen offset:{(c&3)*1024} sc1 {kw.get("qnt", "")}')
    s.budget()
    a('s_waitcnt vmcnt(0)')
    a('v_xor_b32 v13, s44, v35')
    for c in range(1, 8): a(f'v_bitop3_b32 v13, v{35+4*c}, s44, v13 bitop3:0xbe')
    a('v_cmp_ne_u32 vcc, 0, v13\ns_cbranch_vccnz L_hpoll')
    s.stamp(3)
    for c in range(8): s.unpack24(32 + 4 * c)
    for st in (16, 8, 4):
        for r in range(32, 32 + st, 2): a(f'v_pk_add_f32 v[{r}:{r+1}], v[{r}:{r+1}], v[{r+st}:{r+st+1}]')
    a('v_cvt_pk_bf16_f32 v36, v32, v33\nv_cvt_pk_bf16_f32 v37, v34, v35')
    for k in range(2):
        a(f'v_lshlrev_b32 v{32+2*k}, 16, v{36+k}\nv_and_b32 v{33+2*k}, 0xffff0000, v{36+k}\nv_lshlrev_b32 v{40+2*k}, 16, v{14+k}\nv_and_b32 v{41+2*k}, 0xffff0000, v{14+k}')
    for k in range(4): a(f'v_add_f32 v{32+k}, v{32+k}, v{40+k}')
    a('v_cvt_pk_bf16_f32 v36, v32, v33\nv_cvt_pk_bf16_f32 v37, v34, v35')
    for k in range(2): a(f'v_lshlrev_b32 v{32+2*k}, 16, v{36+k}\nv_and_b32 v{33+2*k}, 0xffff0000, v{36+k}')
    K1 = -2 * math.sqrt(2 / math.pi) * math.log2(math.e)
    a(f'v_mov_b32 v44, {hex(f2u(K1))}')
    for k in range(4): a(f'v_mul_f32 v{36+k}, v{32+k}, v{32+k}')
    for k in range(4): a(f'v_fmamk_f32 v{36+k}, v{36+k}, {hex(f2u(K1*0.044715))}, v44')
    for k in range(4): a(f'v_mul_f32 v{36+k}, v{36+k}, v{32+k}')
    for k in range(4): a(f'v_exp_f32 v{36+k}, v{36+k}')
    for k in range(4): a(f'v_add_f32 v{36+k}, 1.0, v{36+k}')
    for k in range(4): a(f'v_rcp_f32 v{36+k}, v{36+k}')
    for k in range(4): a(f'v_mul_f32 v{32+k}, v{32+k}, v{36+k}')
    a('v_cvt_pk_bf16_f32 v40, v32, v33\nv_cvt_pk_bf16_f32 v41, v34, v35')
    a('ds_write_b64 v11, v[40:41]\nds_read_b128 v[48:51], v12\nds_read_b128 v[52:55], v12 offset:64')
    a(f's_add_u32 s10, s6, {r2}\ns_and_b32 s10, s10, 7\ns_lshl_b32 s10, s10, 5\ns_add_u32 s10, s10, s15\ns_lshl_b32 s10, s10, 10\ns_add_u32 s10, s10, {WS_M}')
    a('v_lshlrev_b32 v10, 4, v1\nv_mov_b32 v23, s44')
    s.wait_flag(C_G, TH['2'][1], sleep=1)
    for ks in range(2):
        for T in range(4):
            for u in range(2):
                r = 64 + 16 * ks + 4 * T + 2 * u
                a(f'ds_read_b64_tr_b16 v[{r}:{r+1}], v{28+T} offset:{ks*4096+u*2048}')
    a('s_waitcnt lgkmcnt(0)')
    for ks in range(2):
        for T in range(4): s.mfma(32 + 4 * T, 48 + 4 * ks, 64 + 16 * ks + 4 * T, ks == 0)
    s.pack24(20, 32, 36, 40, 44)
    a('buffer_store_dwordx4 v[20:23], v10, s[40:43], s10 offen sc1')
    s.stamp(4)
    a('L_end:')
    if kw.get('probe'):
        pw, pst, pm, pb = kw['probe']
        a(f's_waitcnt lgkmcnt(0)\ns_cmp_lg_u32 s7, {pw}\ns_cbranch_scc1 L_exit')
        if pw >= 4: a('s_barrier\ns_barrier' if kw.get('obar') and pw != 6 else 's_barrier')
        if kw.get('clk') == 1: a('s_memtime s[92:93]\ns_waitcnt lgkmcnt(0)\ns_sub_u32 s10, s92, s90\ns_lshr_b32 s10, s10, 1\ns_add_u32 s94, s64, s10')
        if kw.get('clk') == 2: a('s_memrealtime s[92:93]\ns_waitcnt lgkmcnt(0)\ns_sub_u32 s10, s92, s88\ns_mul_i32 s10, s10, 10\ns_add_u32 s94, s64, s10')
        if kw.get('px') is not None: a(f's_cmp_lg_u32 s45, {kw["px"]}\ns_cbranch_scc1 L_exit')
        if kw.get('pm') is not None: a(f's_mul_i32 s10, s45, {kw["pm"]}\ns_add_u32 s94, s64, s10')
        if kw.get('pg') is not None: a(f's_cmp_lg_u32 s3, {kw["pg"]}\ns_cbranch_scc1 L_exit')
        a(f's_sub_u32 s10, s{64+2*pst}, s64\ns_mul_i32 s10, s10, {pm}\ns_add_u32 s10, s10, {pb}\ns_min_u32 s10, s10, 20000')
        a('L_padloop:\ns_memrealtime s[12:13]\ns_waitcnt lgkmcnt(0)\ns_sub_u32 s11, s12, s64\ns_cmp_lt_u32 s11, s10\ns_cbranch_scc1 L_padloop')
    s.dump_stamps()
    a('L_exit:')
    a('s_endpgm')
    lines, added = hazard.fix(s.o, verbose=kw.get('verbose', False))
    return wrap('\n'.join(lines) + '\n', 256, NW * 64, kw.get('lds', LDS_TOTAL), kw.get('vgpr', 192))

if __name__ == '__main__':
    import ast
    out = sys.argv[1]
    kw = {}
    for x in sys.argv[2:]:
        k, v = x.split('=')
        try: kw[k] = ast.literal_eval(v)
        except Exception: kw[k] = v
    open(out, 'w').write(gen(**kw))
```

```python
import sys, math, struct
sys.path.insert(0, 'dev')
from common import *
import hazard

def f2u(x):
    return struct.unpack('<I', struct.pack('<f', x))[0]

NW = 7
FL = 0
WA, W1, KB, W2, VB, WO = [2048 + x for x in (0, 16384, 24576, 57344, 65536, 98304)]
XN = 2048 + 114688; XS = 1088
YL = XN + 4 * XS
QL = YL + 4 * XS
assert QL % 256 == 0
PL = QL + 4096
RED = PL + 4096
HL = RED + 4096; HS = 144
MX = 128
FP = 192
GX = HL + 640
LDS_TOTAL = GX + 512
C_WA, C_G, C_XN, F_Q, C_MX, C_P, F_WT, C_QP, C_Y, C_HP, T_A, T_B, F_K, TAGW = [4 * i for i in range(14)]

WS_Q = 0x1000
WS_H = WS_Q + 0x40000
WS_LSE = WS_H + 0x40000
WS_O = WS_LSE + 0x4000
WS_M = WS_O + 0x80000
WS_S = 0x150000
assert WS_S >= WS_M + 0x40000
WS_T = WS_S + 0x80000
WS_N = WS_T + 0x10000
WS_END = WS_T + 0x20000
assert WS_END <= 0x200000
STAMP = 0x8000000

class G:
    def __init__(s, **kw):
        s.o = []
        s.nl = 0
        s.kw = kw
        s.stamps = kw.get('stamps', False)
    def a(s, t):
        for l in t.split('\n'):
            l = l.strip()
            if l: s.o.append(l)
    def lab(s, p='L'):
        s.nl += 1
        return f'{p}_{s.nl}'
    def stamp(s, i):
        pr = s.kw.get('probe')
        only = s.kw.get('only')
        if (s.stamps and (only is None or i in only or i == 0)) or (pr and i in (0, pr[1])):
            s.a(f's_memrealtime s[{64+2*i}:{65+2*i}]')
    def budget(s):
        s.a('s_sub_u32 s46, s46, 1\ns_cbranch_scc1 L_end')
    def wait_flag(s, off, n, extra=None, sleep=0, vt='v9'):
        L = s.lab('W')
        if sleep:
            L2 = s.lab('W')
            s.a(f's_branch {L2}\n{L}:\ns_sleep {sleep}\n{L2}:')
        else:
            s.a(f'{L}:')
        s.a(f'ds_read_b32 {vt}, v8 offset:{off}')
        ne = 0
        if extra:
            for e in extra: s.a(e)
            ne = len(extra)
        s.budget()
        s.a(f's_waitcnt lgkmcnt({0 if (s.stamps and not s.kw.get("lean")) or (s.kw.get("safeA") and ne > 6) else min(ne, 15)})')
        s.a(f'v_cmp_gt_u32 vcc, {n}, {vt}')
        s.a(f's_cbranch_vccnz {L}')
    def signal(s, off):
        s.a(f's_mov_b64 exec, 1\nds_add_u32 v8, v6 offset:{off}\ns_mov_b64 exec, -1')
    def srd(s, d, p):
        s.a(f's_mov_b32 s{d}, s{p}\ns_mov_b32 s{d+1}, s{p+1}')
    def srd_const(s, d, n):
        s.a(f's_mov_b32 s{d+2}, {n}\ns_mov_b32 s{d+3}, 0x20000')
    def wave_sum(s, v, sd):
        for m in ('quad_perm:[1,0,3,2]', 'quad_perm:[2,3,0,1]', 'row_half_mirror', 'row_mirror'):
            s.a(f'v_add_f32_dpp {v}, {v}, {v} {m} row_mask:0xf bank_mask:0xf')
        s.a(f'v_add_f32_dpp {v}, {v}, {v} row_bcast:15 row_mask:0xa bank_mask:0xf')
        s.a(f'v_add_f32_dpp {v}, {v}, {v} row_bcast:31 row_mask:0xc bank_mask:0xf')
        s.a(f'v_readlane_b32 {sd}, {v}, 63')
    def rows_allreduce(s, op, v, t):
        s.a(f'v_mov_b32 {t}, {v}\nv_permlane16_swap_b32 {t}, {v}\n{op} {v}, {t}, {v}')
        s.a(f'v_mov_b32 {t}, {v}\nv_permlane32_swap_b32 {t}, {v}\n{op} {v}, {t}, {v}')
    def layernorm(s, src, f, t):
        P = lambda r: f'v[{r}:{r+1}]'
        for k in range(4):
            s.a(f'v_lshlrev_b32 v{f+2*k}, 16, v{src+k}\nv_and_b32 v{f+2*k+1}, s55, v{src+k}')
        s.a(f'v_pk_add_f32 {P(t)}, {P(f)}, {P(f+2)}\nv_pk_add_f32 {P(t+2)}, {P(f+4)}, {P(f+6)}\nv_pk_add_f32 {P(t)}, {P(t)}, {P(t+2)}\nv_add_f32 v{t}, v{t}, v{t+1}')
        s.wave_sum(f'v{t}', 's10')
        s.a(f'v_mov_b32 v{src+3}, {hex(f2u(1/512))}')
        s.a(f'v_mul_f32 v{src}, s10, v{src+3}')
        for k in range(4):
            s.a(f'v_pk_add_f32 {P(t+2*k)}, {P(f+2*k)}, {P(src)} op_sel_hi:[1,0] neg_lo:[0,1] neg_hi:[0,1]')
        s.a(f'v_pk_mul_f32 {P(t)}, {P(t)}, {P(t)}')
        for k in range(1, 4):
            s.a(f'v_pk_fma_f32 {P(t)}, {P(t+2*k)}, {P(t+2*k)}, {P(t)}')
        s.a(f'v_add_f32 v{t}, v{t}, v{t+1}')
        s.a(f'v_cvt_pk_bf16_f32 v{src}, v{src}, v{src}\nv_lshlrev_b32 v{src}, 16, v{src}')
        ms = ['quad_perm:[1,0,3,2] row_mask:0xf', 'quad_perm:[2,3,0,1] row_mask:0xf', 'row_half_mirror row_mask:0xf', 'row_mirror row_mask:0xf', 'row_bcast:15 row_mask:0xa', 'row_bcast:31 row_mask:0xc']
        fill = [f'v_pk_add_f32 {P(f+2*k)}, {P(f+2*k)}, {P(src)} op_sel_hi:[1,0] neg_lo:[0,1] neg_hi:[0,1]' for k in range(4)]
        fill += [f'v_cvt_pk_bf16_f32 v{t+2+k}, v{f+2*k}, v{f+2*k+1}' for k in range(4)]
        for k in range(4): fill += [f'v_lshlrev_b32 v{f+2*k}, 16, v{t+2+k}', f'v_and_b32 v{f+2*k+1}, s55, v{t+2+k}']
        for m in ms:
            s.a(f'v_add_f32_dpp v{t}, v{t}, v{t} {m} bank_mask:0xf')
            s.a(fill.pop(0)); s.a(fill.pop(0))
        s.a(f'v_readlane_b32 s10, v{t}, 63')
        s.a(fill.pop(0)); s.a(fill.pop(0))
        s.a(f'v_mul_f32 v{src}, s10, v{src+3}')
        s.a(f'v_cvt_pk_bf16_f32 v{src}, v{src}, v{src}\nv_lshlrev_b32 v{src}, 16, v{src}')
        s.a(f'v_add_f32 v{src}, {hex(f2u(1e-5))}, v{src}')
        s.a(f'v_cvt_pk_bf16_f32 v{src}, v{src}, v{src}\nv_lshlrev_b32 v{src}, 16, v{src}')
        s.a(f'v_sqrt_f32 v{src}, v{src}')
        s.a(fill.pop(0))
        s.a(f'v_cvt_pk_bf16_f32 v{src}, v{src}, v{src}\nv_lshlrev_b32 v{src}, 16, v{src}')
        s.a(f'v_rcp_f32 v{src}, v{src}')
        s.a(fill.pop(0))
        assert not fill
        for k in range(4):
            s.a(f'v_pk_mul_f32 {P(f+2*k)}, {P(f+2*k)}, {P(src)} op_sel_hi:[1,0]')
        for k in range(4):
            s.a(f'v_cvt_pk_bf16_f32 v{src+k}, v{f+2*k}, v{f+2*k+1}')
    def round_bf16(s, v):
        s.a(f'v_cvt_pk_bf16_f32 {v}, {v}, {v}\nv_lshlrev_b32 {v}, 16, {v}')
    def tag_finish(s):
        s.a('s_mul_i32 s44, s44, 0x2c9277b5\ns_add_u32 s44, s44, 0xac564b05')
    def pack24(s, d, a, b, c, e):
        s.a(f'v_perm_b32 v{d}, v{a}, v{e}, s50\nv_perm_b32 v{d+1}, v{b}, v{e}, s51\nv_perm_b32 v{d+2}, v{c}, v{e}, s52')
    def pack24_consts(s):
        s.a('s_mov_b32 s50, 0x07060503\ns_mov_b32 s51, 0x07060502\ns_mov_b32 s52, 0x07060501')
    def unpack24(s, r):
        s.a(f'v_perm_b32 v{r+3}, v{r}, v{r+1}, s53\nv_perm_b32 v{r+3}, v{r+3}, v{r+2}, s54')
    def unpack24_consts(s):
        s.a('s_mov_b32 s53, 0x04000c0c\ns_mov_b32 s54, 0x0706000c')
    def reduce32(s, r):
        s.a(f'v_permlane32_swap_b32 v{r}, v{r+2}\nv_permlane32_swap_b32 v{r+1}, v{r+3}')
        s.a(f'v_add_f32 v{r}, v{r}, v{r+2}\nv_add_f32 v{r+1}, v{r+1}, v{r+3}')
        s.a(f'v_permlane16_swap_b32 v{r}, v{r+1}\nv_add_f32 v{r}, v{r}, v{r+1}')
        for m in ('row_ror:8', 'row_ror:4', 'row_ror:2'):
            s.a(f'v_add_f32_dpp v{r}, v{r}, v{r} {m} row_mask:0xf bank_mask:0xf')
    def mfma(s, d, A, B, first):
        s.a(f'v_mfma_f32_16x16x32_bf16 v[{d}:{d+3}], v[{A}:{A+3}], v[{B}:{B+3}], {"0" if first else f"v[{d}:{d+3}]"}')
    def mlp_slot(s, d, t):
        ha = s.kw.get('ha', 4)
        s.a(f's_mul_i32 s{d}, s5, 6\ns_add_u32 s{d}, s{d}, s3\ns_cmp_gt_u32 s3, {ha}\ns_cselect_b32 s{t}, 2, 0\ns_sub_u32 s{d}, s{d}, s{t}\ns_lshl_b32 s{d}, s{d}, 1')
        s.a(f's_lshl2_add_u32 s{t}, s3, s5\ns_add_u32 s{t}, s{t}, {48-4*ha}')
        s.a(f's_bitcmp1_b32 {3 << ha}, s3\ns_cselect_b32 s{d}, s{t}, s{d}')
    def hint(s, name, off, nq, tries, sub):
        a = s.a
        a(f's_lshl_b32 s48, s3, 7\ns_add_u32 s48, s48, {WS_N + off}\ns_add_u32 s49, s48, s4')
        a('s_and_b32 s50, s44, 0xff\ns_mul_i32 s50, s50, 0x01010101\ns_mov_b32 s51, s50\nv_mov_b32 v21, s50')
        if sub: a('s_andn2_b32 s48, s49, 7')
        a(f's_mov_b32 s47, {tries}')
    def hint_go(s, name, nq):
        a = s.a
        a('s_mov_b64 exec, 1\nbuffer_store_byte v21, v8, s[40:43], s49 offen\ns_mov_b64 exec, -1')
        a(f'L_{name}:')
        a(f's_load_dwordx{2*nq} s[52:{51+2*nq}], s[40:41], s48 glc')
        a(f's_sub_u32 s47, s47, 1\ns_cbranch_scc1 L_{name}d\ns_waitcnt lgkmcnt(0)')
        for k in range(nq): a(f's_xor_b64 s[{52+2*k}:{53+2*k}], s[{52+2*k}:{53+2*k}], s[50:51]')
        for k in range(1, nq): a(f's_or_b64 s[52:53], s[52:53], s[{52+2*k}:{53+2*k}]')
        a(f's_cbranch_scc1 L_{name}\nL_{name}d:\ns_waitcnt lgkmcnt(0)')
    def dump_stamps(s, nst=16):
        if not s.stamps: return
        s.a('s_waitcnt lgkmcnt(0)\ns_mov_b64 exec, -1\nv_mov_b32 v10, 0')
        for i in range(nst):
            s.a(f'v_writelane_b32 v10, s{64+2*i}, {i}')
        s.a(f's_mul_i32 s10, s2, {NW*64}\ns_lshl_b32 s11, s7, 6\ns_add_u32 s10, s10, s11\ns_add_u32 s10, s10, {STAMP}')
        s.a('v_lshlrev_b32 v11, 2, v1\ns_mov_b64 exec, 0xffff\nbuffer_store_dword v10, v11, s[40:43], s10 offen ' + s.kw.get('stfl', ''))

def gen(**kw):
    s = G(**kw)
    a = s.a
    depth = kw.get('depth', 20)
    NT = kw.get('nt', 'nt')
    npq = kw.get('npq', 2); gapq = kw.get('gapq', 12); q0 = kw.get('q0', 4)
    npl = kw.get('npl', 4); gapl = kw.get('gapl', 6)
    CSC = math.log2(math.e) / math.sqrt(128)
    ONE2 = 0x3f803f80
    order = kw.get('order', '11kkkkkkkk22vvvvvvvvoooo')
    TH = {c: [i + 1 for i, x in enumerate(order) if x == c] for c in '1k2vo'}
    assert [len(TH[c]) for c in '1k2vo'] == [2, 8, 2, 8, 4]
    marks = {TH['1'][1], TH['2'][1], TH['o'][3], len(order) - (kw.get('oe') or 0), kw.get('qg') or 2} | set(TH['k'][1::2]) | set(TH['v'][1::2])
    def common():
        if s.stamps:
            for i in range(1, 16): a(f's_mov_b32 s{64+2*i}, 0')
        a('v_and_b32 v1, 63, v0\ns_lshr_b32 s5, s4, 3\ns_and_b32 s6, s4, 7')
        a(f's_mov_b32 s42, {STAMP + 0x100000 if s.stamps else WS_END}\ns_mov_b32 s43, 0x20000')
        a(f's_mov_b32 s46, {kw.get("budget", 5000000)}')
        a('v_mov_b32 v6, 1')
        a('v_lshrrev_b32 v2, 4, v1\nv_and_b32 v3, 15, v1')
    s.stamp(0)
    a('s_load_dwordx16 s[16:31], s[0:1], 0\ns_load_dwordx8 s[32:39], s[0:1], 64\ns_load_dwordx2 s[40:41], s[0:1], 96')
    a('s_lshr_b32 s4, s2, 3\ns_cmp_ge_u32 s4, 32\ns_cbranch_scc1 L_exit')
    a('v_lshrrev_b32 v2, 6, v0\nv_bfe_u32 v4, v0, 3, 3')
    a('v_mov_b32 v8, 0\nds_write_b8 v0, v8')
    if kw.get('prefetch', True):
        a('s_getpc_b64 s[8:9]\nL_pc:')
        if kw.get('pf2'):
            a('s_lshl_b32 s10, s4, 7\nv_lshl_add_u32 v3, v0, 12, s10\nv_min_u32 v3, L_exit-L_pc, v3\nglobal_load_dword v7, v3, s[8:9]')
        else:
            a('v_lshlrev_b32 v3, 7, v0\nv_min_u32 v3, L_exit-L_pc, v3\nglobal_load_dword v7, v3, s[8:9]')
    a('v_readfirstlane_b32 s7, v2')
    a('v_and_b32 v5, 6, v4\nv_xor_b32 v5, v5, v0\nv_and_b32 v5, 7, v5\nv_lshlrev_b32 v5, 4, v5')
    a('s_and_b32 s3, s2, 7\ns_cmp_eq_u32 s7, 6\ns_cbranch_scc1 L_L\ns_cmp_ge_u32 s7, 4\ns_cbranch_scc1 L_PM')
    a('s_mov_b32 s51, 0x20000\nv_lshlrev_b32 v11, 4, v0')
    a('s_lshr_b32 s10, s4, 3\ns_lshl2_add_u32 s10, s10, s7\ns_lshl_b32 s10, s10, 18\ns_and_b32 s11, s4, 7\ns_lshl3_add_u32 s11, s3, s11\ns_xor_b32 s11, s11, ' + str(kw.get('rq', 0)) + '\ns_lshl_b32 s11, s11, 7\ns_add_u32 s10, s10, s11')
    a(f's_bfm_b32 s50, 1, 22\ns_bfm_b32 s12, 6, 10\nv_lshl_add_u32 v10, v4, 13, v5\ns_lshl_b32 m0, s7, 12\ns_addk_i32 m0, {WA}')
    a('s_waitcnt lgkmcnt(0)')
    a('s_mov_b64 s[48:49], s[22:23]')
    a('global_load_dwordx4 v[12:15], v11, s[16:17]')
    for r in range(4):
        a(f'buffer_load_dwordx4 v10, s[48:51], s10 offen offset:{r*1024} {NT} lds')
        if r < 3: a('s_add_u32 s10, s10, s12')
    a('s_branch L_C')
    a('L_L:')
    if kw.get('lprio'): a(f's_setprio {kw["lprio"]}')
    a('s_barrier')
    common()
    rq, r2 = kw.get('rq', 0), kw.get('r2', 0)
    s.mlp_slot(10, 11)
    a('s_cselect_b32 s11, 64, 0\ns_cselect_b32 s8, 30, 15')
    a('v_and_b32 v14, s11, v5\nv_lshl_add_u32 v14, v14, 24, v5\nv_mul_u32_u24 v32, 3584, v4\nv_add_u32 v32, v32, v14')
    for r in range(1, 4): a(f'v_add_u32 v{32+r}, {r*(8*3584-1024)}, v32')
    a('v_xor_b32 v14, v3, v2\nv_lshlrev_b32 v14, 4, v14\nv_lshl_add_u32 v18, v2, 8, v14')
    for r in range(1, 4): a(f'v_xor_b32 v{18+r}, {r*64}, v18\nv_add_u32 v{18+r}, {r*7168}, v{18+r}')
    a(f's_mov_b32 s50, {512*3584}\ns_mov_b32 s51, 0x20000\ns_lshl_b32 s8, 1, s8')
    a(f's_mul_i32 s12, s6, {64*3584}\ns_lshl_b32 s11, s10, 6\ns_add_u32 s12, s12, s11')
    a(f's_lshl_b32 s13, s5, 23\ns_lshl_b32 s11, s3, 20\ns_add_u32 s13, s13, s11\ns_lshl_b32 s11, s6, 10\ns_add_u32 s13, s13, s11\ns_add_u32 s13, s13, {3072*256}')
    a('s_bfm_b32 s54, 1, 25\ns_mov_b32 s55, s51\ns_mov_b32 s14, s13')
    a('s_waitcnt lgkmcnt(0)')
    s.stamp(1)
    dg = depth // 4
    segs = {'1': (32, 48, 28, 12, 32 * 3584, W1), 'k': (18, 52, 18, 13, 32768, KB), 'v': (22, 56, 20, 14, 32768, VB),
            '2': (26, 60, 32, 15, 's8', W2), 'o': (26, 96, 24, 9, 32768, WO)}
    cnt = {c: 0 for c in segs}
    late = False
    prof = kw.get('prof')
    prof = [int(x, 16) for x in prof] if prof else [dg] * len(order)
    assert len(prof) == len(order)
    landed = 0
    first_wait = min(gi for gi in range(len(order)) if gi + 1 > prof[gi])
    for gi, c in enumerate(order):
        vr, sd, ptr, so, step, lds = segs[c]
        if gi == first_wait:
            a('v_lshlrev_b32 v14, 1, v2\nv_xor_b32 v14, v3, v14\nv_lshlrev_b32 v14, 4, v14\nv_lshl_add_u32 v22, v2, 8, v14')
            a(f'v_xor_b32 v23, 128, v22\nv_add_u32 v24, {2*7168}, v22\nv_add_u32 v25, {3*7168}, v23\nv_add_u32 v23, 7168, v23')
            a('v_lshl_add_u32 v26, v4, 10, v5')
            for r in range(1, 4): a(f'v_add_u32 v{26+r}, {r*7168}, v26')
            a(f's_mov_b32 s58, s54\ns_mov_b32 s59, s51\ns_mov_b32 s62, {1792*1024}\ns_mov_b32 s63, s51\ns_bfm_b32 s98, 1, 22\ns_mov_b32 s99, s51')
            s.srd(56, 20); s.srd(60, 32); s.srd(96, 24)
            a(f's_add_u32 s11, s6, {r2}\ns_and_b32 s11, s11, 7\ns_lshl_b32 s11, s11, 7\ns_lshl_b32 s15, s10, 15\ns_add_u32 s15, s15, s11')
            a('s_lshl2_add_u32 s9, s3, s5\ns_lshl_b32 s9, s9, 17\ns_lshl_b32 s11, s6, 7\ns_add_u32 s9, s9, s11')
            s.stamp(2)
            late = True
        assert late or c in '1k'
        if cnt[c] == 0 and c in '1k': s.srd(sd, ptr)
        a(f's_mov_b32 m0, {lds + cnt[c] * 4096}')
        if cnt[c]: a(f's_add_u32 s{so}, s{so}, {step}')
        while landed < gi + 1 - prof[gi]:
            landed += 1
            if landed in marks or landed == gi + 1 - prof[gi]:
                a(f's_waitcnt vmcnt({(gi-landed)*4})')
            if landed in marks:
                a(f'v_mov_b32 v30, {landed}\nds_write_b32 v8, v30 offset:{C_G}')
                if landed == TH['v'][7]: s.stamp(6)
        for r in range(4):
            fine = kw.get('fine')
            if fine and gi * 4 + r >= fine and (r or fine - 1 < (gi - landed) * 4): a(f's_waitcnt vmcnt({fine-1})')
            fl = kw.get('nt' + c, NT)
            a(f'buffer_load_dwordx4 v{vr+r}, s[{sd}:{sd+3}], s{so} offen offset:{r*1024} {fl} lds')
        cnt[c] += 1
    for n in range(landed + 1, len(order) + 1):
        if n in marks:
            if kw.get('obar') and n == len(order) and n != TH['v'][7]:
                a('s_waitcnt vmcnt(0)')
            else:
                a(f'v_mov_b32 v30, {n}\ns_waitcnt vmcnt({(len(order)-n)*4})\nds_write_b32 v8, v30 offset:{C_G}')
            if n == TH['v'][7]: s.stamp(6)
    s.stamp(7)
    if kw.get('obar'): a('s_barrier')
    a('s_branch L_end')

    if kw.get('shift'): a('s_nop 0')
    a('L_PM:')
    a('s_barrier')
    common()
    ns = kw.get('nsamp', 1)
    a(f's_lshr_b32 s10, s2, 6\ns_lshl1_add_u32 s10, s10, s7\ns_lshl_b32 s10, s10, 6\ns_and_b32 s11, s2, 63\ns_add_u32 s10, s10, s11\ns_lshl_b32 s10, s10, 7\ns_add_u32 s10, s10, {WS_T - 4*8192}')
    a('s_waitcnt lgkmcnt(0)')
    if kw.get('tlb'):
        a('s_lshl3_add_u32 s11, s5, s3\ns_lshl_b32 s11, s11, 10\ns_add_u32 s11, s11, s6\ns_addk_i32 s11, 768\ns_lshl_b32 s11, s11, 10\nv_mov_b32 v10, s11')
        a('s_lshl2_add_u32 s11, s3, s5\ns_lshl_b32 s11, s11, 10\ns_add_u32 s11, s11, s6\ns_lshl_b32 s11, s11, 7\nv_mov_b32 v11, s11')
        a(f's_lshl_b32 s11, s2, 7\nv_mov_b32 v12, s11\ns_add_u32 s11, s11, {WS_T + 0x10000}\nv_mov_b32 v13, s11')
        a('s_mov_b64 exec, 1\ns_cmp_eq_u32 s7, 4\ns_cbranch_scc0 L_tl5')
        a('global_load_dword v7, v10, s[20:21] nt\nglobal_load_dword v7, v11, s[24:25] nt\ns_branch L_tl6')
        a('L_tl5:\nglobal_load_dword v7, v12, s[32:33] nt\nglobal_load_dword v7, v13, s[40:41] nt')
        a('L_tl6:\ns_mov_b64 exec, -1')
    if kw.get('pd'): a(f's_sleep {kw["pd"]}')
    a('s_memtime s[12:13]\ns_load_dword s11, s[40:41], s10')
    if ns == 2: a('s_add_u32 s10, s10, 0x10000\ns_waitcnt lgkmcnt(0)\ns_load_dword s11, s[40:41], s10')
    a('s_waitcnt lgkmcnt(0)\ns_memtime s[14:15]\ns_lshl_b32 s10, s7, 2\nv_mov_b32 v10, s10\ns_waitcnt lgkmcnt(0)')
    a(f's_sub_u32 s12, s14, s12\nv_mov_b32 v11, s12\nds_write_b32 v10, v11 offset:{T_A - 16}')
    a('s_cmp_eq_u32 s7, 4\ns_cbranch_scc1 L_P\ns_branch L_M')
    a('L_C:')
    if kw.get('clk'): a('s_memtime s[90:91]\ns_memrealtime s[88:89]')
    a('s_load_dword s44, s[40:41], 0\ns_barrier')
    a(f's_setprio {kw.get("cprio", 2)}')
    common()
    s.stamp(1)
    if 'C' in kw.get('kill', ''): a('s_waitcnt vmcnt(0)\ns_branch L_end')
    a('v_bfe_u32 v4, v1, 2, 2\nv_and_b32 v5, 3, v1')
    a(f's_mul_i32 s11, s7, {XS}\ns_add_u32 s11, s11, {XN}')
    a('v_lshrrev_b32 v10, 2, v1\nv_lshlrev_b32 v10, 6, v10\nv_and_b32 v11, 1, v1\nv_lshl_add_u32 v10, v11, 5, v10\nv_and_b32 v11, 2, v1\nv_lshl_add_u32 v10, v11, 2, v10\nv_add_u32 v11, s11, v10')
    a('s_mov_b32 s55, 0xffff0000')
    a('v_lshl_add_u32 v27, v2, 2, v4\nv_bfe_u32 v96, v27, 1, 2\nv_lshlrev_b32 v96, 5, v96\nv_lshl_add_u32 v96, v27, 7, v96\nv_lshl_add_u32 v96, v5, 3, v96')
    a('s_lshl_b32 s12, s7, 5\nv_xor_b32 v10, s12, v96')
    a('s_getreg_b32 s45, hwreg(HW_REG_XCC_ID, 0, 4)')
    a(f'v_mul_u32_u24 v24, {XS}, v5\nv_lshl_add_u32 v24, v2, 4, v24')
    a(f's_lshl_b32 s10, s5, 8\ns_add_u32 s10, s10, {XN}\nv_add_u32 v25, s10, v24')
    a(f's_lshl_b32 s10, s6, 7\ns_add_u32 s10, s10, {YL}\nv_add_u32 v24, s10, v24')
    a(f's_lshl_b32 s14, s3, 15\ns_lshl1_add_u32 s14, s12, s14\ns_lshl_b32 s13, s4, 8\ns_xor_b32 s58, s13, {rq*256}\ns_add_u32 s58, s14, s58\ns_add_u32 s58, s58, {WS_Q}')
    a(f's_lshl2_add_u32 s59, s13, s14\ns_add_u32 s59, s59, {WS_H}')
    a('v_lshlrev_b32 v106, 13, v3\nv_lshl_add_u32 v106, v2, 4, v106\nv_lshlrev_b32 v107, 4, v1\nv_mov_b32 v30, 0x3ff\nv_mov_b32 v31, 0xfffffc01')
    s.pack24_consts()
    a('s_mov_b32 s13, 1')
    a('s_waitcnt vmcnt(0)' if kw.get('safeB') else 's_waitcnt vmcnt(4)')
    if not kw.get('ackst'): s.stamp(2)
    a('L_ln:')
    s.layernorm(12, 16, 32)
    a(f'ds_write2_b64 v11, v[12:13], v[14:15] offset1:2\nv_add_u32 v11, {YL-XN}, v11')
    a('s_sub_u32 s13, s13, 1\ns_cbranch_scc0 L_ln')
    s.stamp(3)
    a('s_waitcnt vmcnt(0) lgkmcnt(0)')
    if kw.get('st_tile'): s.stamp(5)
    s.signal(C_WA)
    s.tag_finish()
    a(f'v_mov_b32 v111, s44\nv_mov_b32 v115, s44\nds_write_b32 v8, v111 offset:{TAGW}')
    s.wait_flag(C_WA, 4, extra=[f'ds_read_b64 v[28:29], v8 offset:{T_A}'] + [x for t in range(4) for x in (f'ds_read_b128 v[{64+4*t}:{67+4*t}], v25 offset:{t*64}',
                f'ds_read_b64_tr_b16 v[{40+4*t}:{41+4*t}], v10 offset:{WA+t*4096}', f'ds_read_b64_tr_b16 v[{42+4*t}:{43+4*t}], v10 offset:{WA+t*4096+2048}')])
    for t in range(4):
        a(f's_waitcnt lgkmcnt({9-3*t})')
        s.mfma(16, 40 + 4 * t, 64 + 4 * t, t == 0)
        if t == 0: a('v_sub_u32 v110, v28, v29\nv_min_u32 v28, v28, v29')
        if t == 1: a('v_cmp_ne_u32 vcc, 0, v28\nv_med3_i32 v110, v110, v30, v31')
        if t == 2: a('v_cndmask_b32 v110, 0, v110, vcc\nv_lshl_or_b32 v110, v110, 4, s45')
    for t in range(2): a(f'ds_read_b128 v[{80+4*t}:{83+4*t}], v24 offset:{t*64}')
    a('s_mov_b32 exec_lo, 0x000f000f\ns_mov_b32 exec_hi, 0x000f000f')
    a('v_cvt_pk_bf16_f32 v108, v16, v17\nv_cvt_pk_bf16_f32 v109, v18, v19')
    a('buffer_store_dwordx4 v[108:111], v106, s[40:43], s58 offen')
    if kw.get('qe'): s.signal(C_QP)
    else: a('s_mov_b64 exec, -1')
    if not kw.get('ackst'): s.stamp(4)
    s.wait_flag(C_G, TH['1'][1], extra=[f'ds_read_b64_tr_b16 v[{40+2*t}:{41+2*t}], v10 offset:{W1+t*2048}' for t in range(4)], sleep=1)
    for t in range(2):
        a(f's_waitcnt lgkmcnt({2-2*t})')
        s.mfma(16, 40 + 4 * t, 80 + 4 * t, t == 0)
    a('s_mov_b32 exec_lo, 0x000f000f\ns_mov_b32 exec_hi, 0x000f000f')
    s.pack24(112, 16, 17, 18, 19)
    a('buffer_store_dwordx4 v[112:115], v107, s[40:43], s59 offen')
    if kw.get('he'): s.signal(C_HP)
    else: a('s_mov_b64 exec, -1')
    if 'Q' in kw.get('kill', ''): a('s_branch L_end')
    a(f's_lshl_b32 s10, s7, 13\ns_add_u32 s10, s10, {KB}')
    a(f'v_xor_b32 v10, v2, v3\nv_lshlrev_b32 v10, 4, v10\nv_lshl_add_u32 v10, v3, 8, v10\nv_add_u32 v102, {QL}, v10\nv_add_u32 v10, s10, v10')
    a('v_xor_b32 v103, 64, v102\nv_xor_b32 v104, 128, v102\nv_xor_b32 v105, 192, v102')
    a('v_xor_b32 v11, 64, v10\nv_xor_b32 v12, 128, v10\nv_xor_b32 v13, 192, v10')
    a(f's_lshl_b32 s10, s7, 2\ns_add_u32 s10, s10, {MX}\nv_lshlrev_b32 v15, 4, v5\nv_add_u32 v24, s10, v15\nv_add_u32 v15, {MX}, v15\ns_add_u32 s10, s10, {FP-MX}\nv_mov_b32 v14, s10')
    a(f's_lshl_b32 s10, s7, 10\ns_add_u32 s10, s10, {PL}\nv_lshlrev_b32 v25, 4, v1\nv_add_u32 v26, s10, v25\nv_add_u32 v25, {PL}, v25')
    a('v_and_b32 v28, 7, v27\ns_lshl_b32 s10, s7, 1\nv_xor_b32 v28, s10, v28\nv_lshlrev_b32 v28, 5, v28\nv_lshl_add_u32 v28, v27, 8, v28\nv_lshl_add_u32 v28, v5, 3, v28')
    a(f'v_add_u32 v28, {VB}, v28\nv_xor_b32 v29, 32, v28')
    a(f's_lshr_b32 s10, s7, 1\ns_lshl_b32 s11, s10, 13\ns_add_u32 s11, s11, {WO}')
    a('v_add_u32 v96, s11, v96\nv_xor_b32 v97, 32, v96\nv_xor_b32 v98, 64, v96\nv_xor_b32 v99, 96, v96')
    a('v_lshlrev_b32 v30, 14, v3\nv_lshl_add_u32 v30, v2, 8, v30')
    a(f's_lshl_b32 s14, s3, 16\ns_add_u32 s14, s14, {WS_O}')
    a('s_lshr_b32 s11, s4, 4\ns_lshl2_add_u32 s11, s11, s7\ns_lshl_b32 s11, s11, 11\ns_and_b32 s12, s4, 15\ns_lshl4_add_u32 s11, s12, s11')
    a('v_lshlrev_b32 v31, 4, v1')
    a('s_xor_b32 s12, s3, s6\ns_and_b32 s12, s12, 4\ns_lshl_b32 s12, s12, 11\nv_or_b32 v101, s12, v31')
    a('s_lshl_b32 s15, s5, 14\ns_add_u32 s15, s15, s14\ns_lshl_b32 s10, s10, 12\ns_add_u32 s15, s15, s10\ns_and_b32 s10, s7, 1\ns_lshl_b32 s12, s10, 13\ns_add_u32 s15, s15, s12')
    a('s_add_u32 s14, s14, s11')
    a(f'v_lshlrev_b32 v100, 9, v2\nv_lshl_add_u32 v100, v3, 4, v100\nv_add_u32 v100, {RED}, v100')
    a(f's_lshr_b32 s10, s3, 1\ns_lshl2_add_u32 s56, s6, s10\ns_and_b32 s10, s3, 1\ns_lshl2_add_u32 s56, s56, s10\ns_lshl2_add_u32 s56, s56, s5\ns_lshl_b32 s56, s56, 10\ns_add_u32 s56, s56, {WS_S}\ns_add_u32 s63, s56, 8192')
    a('v_lshrrev_b32 v119, 1, v1\nv_lshlrev_b32 v119, 10, v119\nv_and_b32 v16, 1, v1\nv_lshl_add_u32 v119, v16, 4, v119')
    a(f's_lshl_b32 s60, s3, 15\ns_lshl_b32 s11, s4, 5\ns_add_u32 s60, s60, s11\ns_add_u32 s62, s60, {WS_M}\ns_add_u32 s60, s60, {WS_S}')
    a('v_lshl_add_u32 v117, v2, 13, v119')
    a(f's_lshl_b32 s60, s3, 16\ns_add_u32 s60, s60, s11\ns_add_u32 s60, s60, {WS_S}')
    a(f's_mov_b32 s13, {hex(f2u(CSC))}')
    a('s_mov_b32 s12, s13')
    for k in range(4): a(f'v_mov_b32 v{124+k}, {hex(ONE2)}')
    kt = TH['k'][1::2]
    a(f's_lshl_b32 s57, s7, 3\ns_lshr_b32 s57, {kt[0] | kt[1] << 8 | kt[2] << 16 | kt[3] << 24}, s57\ns_and_b32 s57, s57, 0xff')
    if not kw.get('qe'):
        a('s_waitcnt vmcnt(1)')
        s.signal(C_QP)
    if not kw.get('he'):
        a('s_waitcnt vmcnt(0)')
        s.signal(C_HP)
    s.wait_flag(C_G, 's57', sleep=1)
    for u in range(2):
        for t in range(4):
            a(f'ds_read_b128 v[{32+16*u+4*t}:{35+16*u+4*t}], v{10+t} offset:{u*4096}')
    if not kw.get('st_tile') and not kw.get('ackst'): s.stamp(5)
    s.wait_flag(F_Q, 1, extra=[f'ds_read_b128 v[{64+4*t}:{67+4*t}], v{102+t}' for t in range(4)], sleep=kw.get('fqs', 0))
    s.stamp(6)
    a('v_readfirstlane_b32 s47, v9')
    a('s_cmp_lg_u32 s47, 1\ns_cbranch_scc1 L_qrem')
    a('L_qgo:')
    DP = lambda op, d, x, y, m, rm='0xf': f'{op}_dpp {d}, {x}, {y} {m} row_mask:{rm} bank_mask:0xf'
    for u in range(2):
        for t in range(4):
            if u == 0: a(f's_waitcnt lgkmcnt({3-t})')
            s.mfma(16 + 4 * u, 32 + 16 * u + 4 * t, 64 + 4 * t, t == 0)
    if kw.get('safeC'): a('s_nop 15')
    a('v_mov_b32 v40, s44\nv_mov_b32 v47, s44\nv_mov_b32 v123, s44')
    for u in range(2):
        for k in range(4): a(DP('v_add_f32', f'v{16+4*u+k}', f'v{16+4*u+k}', f'v{16+4*u+k}', 'row_ror:4'))
        for k in range(4): a(DP('v_add_f32', f'v{16+4*u+k}', f'v{16+4*u+k}', f'v{16+4*u+k}', 'row_ror:8'))
        if u == 0: a('v_max3_f32 v10, v16, v17, v18')
    a('v_max3_f32 v10, v10, v19, v20\nv_max3_f32 v11, v21, v22, v23\nv_max_f32 v10, v10, v11\nv_max_f32 v11, v10, v11')
    a('v_permlane16_swap_b32 v11, v10\nv_max_f32 v10, v11, v10\nv_max_f32 v11, v11, v10')
    a('v_permlane32_swap_b32 v11, v10\nv_max_f32 v10, v11, v10\nv_or_b32 v10, 1, v10')
    WB = 128; VR = 160
    vrd = lambda t: [f'ds_read_b64_tr_b16 v[{VR+8*t+4*T+2*u}:{VR+1+8*t+4*T+2*u}], v{28+T} offset:{t*8192+u*4096}' for T in range(2) for u in range(2)]
    cw = lambda n: 0 if (s.stamps and not kw.get('lean')) else n
    a('ds_write_b32 v24, v10')
    a(f'ds_read_b128 v[32:35], v15\nds_read_b32 v9, v8 offset:{C_G}')
    for x in vrd(0) + vrd(1) + vrd(2): a(x)
    a(f's_waitcnt lgkmcnt({cw(13)})\ns_branch L_mx2')
    a('L_mx:')
    a('ds_read_b128 v[32:35], v15')
    s.budget()
    a('s_waitcnt lgkmcnt(0)')
    a('L_mx2:')
    a('v_min3_u32 v11, v32, v33, v34\nv_max3_f32 v10, v32, v33, v34\nv_min_u32 v11, v11, v35\nv_max_f32 v10, v10, v35\nv_cmp_eq_u32 vcc, 0, v11\nv_mul_f32 v116, s13, v10\ns_cbranch_vccnz L_mx')
    for k in range(4): a(f'v_pk_fma_f32 v[{16+2*k}:{17+2*k}], v[{16+2*k}:{17+2*k}], s[12:13], v[116:117] op_sel_hi:[1,1,0] neg_lo:[0,0,1] neg_hi:[0,0,1]')
    for k in range(8): a(f'v_exp_f32 v{16+k}, v{16+k}')
    for k in range(4): a(f'v_cvt_pk_bf16_f32 v{32+k}, v{16+2*k}, v{17+2*k}')
    a('ds_write_b128 v26, v[32:35]\nds_write_b32 v14, v6')
    a('L_pw:')
    a(f'ds_read_b128 v[36:39], v8 offset:{FP}')
    for t in range(4): a(f'ds_read_b128 v[{64+4*t}:{67+4*t}], v25 offset:{t*1024}')
    a(f'ds_read_b32 v118, v8 offset:{C_G}')
    for x in vrd(3): a(x)
    a('v_mov_b32 v41, v116')
    s.budget()
    a(f's_waitcnt lgkmcnt({cw(9)})\nv_min3_u32 v11, v36, v37, v38\nv_min_u32 v11, v11, v39\nv_cmp_eq_u32 vcc, 0, v11\ns_cbranch_vccnz L_pw')
    s.stamp(7)
    def wo_reads(kss=(0, 1)):
        for ks in kss:
            for T in range(4):
                for u in range(2):
                    r = WB + 16 * ks + 4 * T + 2 * u
                    a(f'ds_read_b64_tr_b16 v[{r}:{r+1}], v{96+T} offset:{ks*4096+u*2048}')
    early = False
    a(f'v_cmp_gt_u32 vcc, {TH["v"][5]}, v9\ns_cbranch_vccz L_v012')
    s.wait_flag(C_G, TH['v'][5], extra=vrd(0) + vrd(1) + vrd(2), sleep=2)
    a('s_waitcnt lgkmcnt(0)')
    a('L_v012:')
    for t in range(3):
        a(f's_waitcnt lgkmcnt({8-t})')
        for T in range(2): s.mfma(16 + 4 * T, VR + 8 * t + 4 * T, 64 + 4 * t, t == 0)
        s.mfma(56, 124, 64 + 4 * t, t == 0)
    a('s_waitcnt lgkmcnt(4)')
    s.mfma(56, 124, 76, False)
    a(f'v_cmp_gt_u32 vcc, {TH["v"][7]}, v118\ns_cbranch_vccz L_v3')
    s.wait_flag(C_G, TH['v'][7], extra=vrd(3), sleep=kw.get('v3s', 0))
    a('L_v3:')
    if not kw.get('ind'): s.stamp(8)
    for T in range(2):
        a(f's_waitcnt lgkmcnt({2-2*T})')
        s.mfma(16 + 4 * T, VR + 24 + 4 * T, 76, False)
    a('v_mov_b32 v46, v56')
    a('s_mov_b32 exec_lo, 0x000f000f\ns_mov_b32 exec_hi, 0x000f000f\ns_cmp_eq_u32 s47, 1')
    for k in range(4): a(f'v_cvt_pk_bf16_f32 v{42+k}, v{16+2*k}, v{17+2*k}')
    a('s_cbranch_scc0 L_orem')
    a('buffer_store_dwordx4 v[40:43], v30, s[40:43], s14 offen\nbuffer_store_dwordx4 v[44:47], v30, s[40:43], s14 offen offset:1024')
    a('L_ost:')
    a('s_mov_b64 exec, -1')
    s.stamp(9)
    if kw.get('ackst'):
        a('s_waitcnt vmcnt(0)')
        s.stamp(5)
    if 'D' in kw.get('kill', ''): a('s_branch L_end')
    if kw.get('od0'): a(f's_sleep {kw["od0"]}')
    OE = kw.get('oe')
    if OE is not None:
        if OE: s.wait_flag(C_G, len(order) - OE)
    elif kw.get('obar'): a('s_barrier')
    if kw.get('ind'):
        if not early:
            s.wait_flag(C_G, TH['o'][3])
            wo_reads()
            early = True
        a('s_mov_b32 exec_hi, 0')
        a('L_ipoll:')
        a('buffer_load_dword v48, v101, s[40:43], s15 offen offset:1036 sc1')
        s.budget()
        if kw.get('isl'):
            a(f's_waitcnt vmcnt(0)\nv_cmp_ne_u32 vcc, s44, v48\ns_cbranch_vccz L_idone\ns_sleep {kw["isl"]}\ns_branch L_ipoll\nL_idone:')
        else:
            a('s_waitcnt vmcnt(0)\nv_cmp_ne_u32 vcc, s44, v48\ns_cbranch_vccnz L_ipoll')
        a('s_mov_b32 exec_hi, -1')
        s.stamp(8)
    for k in range(4): a(f'buffer_load_dwordx4 v[{48+4*k}:{51+4*k}], v31, s[40:43], s15 offen offset:{k*1024} sc1')
    if OE == 1 and kw.get('wsplit'):
        wo_reads((0,))
        a('s_barrier')
        wo_reads((1,))
        a(f'ds_read_b32 v9, v8 offset:{F_K}')
    else:
        if OE is not None: a('s_barrier')
        a(f'ds_read_b32 v9, v8 offset:{F_K}')
        wo_reads()
    if s.stamps:
        if kw.get('ackst'):
            a('s_waitcnt vmcnt(0)')
            s.stamp(2)
        a('s_mov_b32 s61, 0')
    a('s_branch L_opoll')
    a('L_oretry:')
    a('s_mov_b64 exec, vcc')
    if s.stamps: a('s_add_u32 s61, s61, 1')
    if kw.get('osl'): a(f's_sleep {kw["osl"]}')
    for k in range(4): a(f'buffer_load_dwordx4 v[{48+4*k}:{51+4*k}], v31, s[40:43], s15 offen offset:{k*1024} sc1')
    a('s_mov_b64 exec, -1')
    s.budget()
    if kw.get('al'): a('.p2align 3')
    a('L_opoll:')
    a('s_waitcnt vmcnt(0) lgkmcnt(0)')
    a('v_xor_b32 v10, s44, v48\nv_bitop3_b32 v10, v55, s44, v10 bitop3:0xbe\nv_bitop3_b32 v10, v56, s44, v10 bitop3:0xbe\nv_bitop3_b32 v10, v63, s44, v10 bitop3:0xbe')
    a('v_cmp_ne_u32 vcc, 0, v10\ns_cbranch_vccnz L_oretry')
    s.stamp(11)
    if s.stamps: a('s_mul_i32 s61, s61, 100\ns_add_u32 s70, s64, s61')
    M8 = ('quad_perm:[1,0,3,2]', 'quad_perm:[2,3,0,1]', 'row_half_mirror')
    D = lambda op, d, x, y, m, rm='0xf': f'{op}_dpp {d}, {x}, {y} {m} row_mask:{rm} bank_mask:0xf'
    R = lambda m, rm: f'v_mov_b32_dpp v23, v21 {m} row_mask:{rm} bank_mask:0xf'
    wv = [D('v_max_f32', 'v20', 'v49', 'v49', M8[0]), None, D('v_max_f32', 'v20', 'v20', 'v20', M8[1]), None, D('v_max_f32', 'v20', 'v20', 'v20', M8[2]),
          'v_sub_f32 v21, v49, v20', 'v_exp_f32 v21, v21', None, 'v_mul_f32 v22, v54, v21', 'v_mov_b32 v23, v21', None,
          D('v_add_f32', 'v22', 'v22', 'v22', M8[0]), R('row_ror:12', '0x2'), None, D('v_add_f32', 'v22', 'v22', 'v22', M8[1]), R('row_ror:8', '0x4'), None,
          D('v_add_f32', 'v22', 'v22', 'v22', M8[2]), R('row_ror:4', '0x8'), 'v_rcp_f32 v22, v22', None]
    mf = [(32 + 4 * T, 50 + 8 * ks, WB + 16 * ks + 4 * T, ks == 0) for ks in range(2) for T in range(4)]
    s.mfma(*mf.pop(0))
    for x in wv:
        if x is None: s.mfma(*mf.pop(0))
        else: a(x)
    assert not mf
    a('v_mul_f32 v21, v22, v23')
    a(D('v_mul_f32', 'v21', 'v22', 'v23', 'row_ror:8', '0xc'))
    for T in range(4): a(D('v_mul_f32', f'v{16+T}', 'v21', f'v{32+4*T}', 'row_newbcast:0'))
    for r in range(1, 4):
        for T in range(4): a(D('v_fmac_f32', f'v{16+T}', 'v21', f'v{32+4*T+r}', f'row_newbcast:{r}'))
    a(f'ds_write_b128 v26, v[16:19] offset:{RED-PL}')
    if kw.get('nf'): a('v_xor_b32 v10, v9, v101\nv_xor_b32 v11, 0x2000, v10')
    a('v_add_u32 v117, v117, v9\ns_cmp_lg_u32 s7, 0')
    a('s_waitcnt lgkmcnt(0)\ns_barrier')
    s.stamp(12)
    a('s_cbranch_scc1 ' + ('L_wb' if kw.get('fw') else 'L_end'))
    for k in range(4): a(f'ds_read_b128 v[{48+4*k}:{51+4*k}], v100 offset:{(k>>1)*2048+(k&1)*256}')
    a('s_waitcnt lgkmcnt(2)')
    a('v_pk_add_f32 v[48:49], v[48:49], v[52:53]\nv_pk_add_f32 v[50:51], v[50:51], v[54:55]')
    a('s_waitcnt lgkmcnt(1)')
    a('v_pk_add_f32 v[48:49], v[48:49], v[56:57]\nv_pk_add_f32 v[50:51], v[50:51], v[58:59]')
    a('s_waitcnt lgkmcnt(0)')
    a('v_pk_add_f32 v[48:49], v[48:49], v[60:61]\nv_pk_add_f32 v[50:51], v[50:51], v[62:63]')
    s.pack24(120, 48, 49, 50, 51)
    if kw.get('nf'):
        a('buffer_store_dwordx4 v[120:123], v10, s[40:43], s56 offen sc1')
        if kw.get('nfs'): a(f's_sleep {kw["nfs"]}')
        a('buffer_store_dwordx4 v[120:123], v11, s[40:43], s56 offen sc1')
    else:
        a('buffer_store_dwordx4 v[120:123], v31, s[40:43], s56 offen sc1\nbuffer_store_dwordx4 v[120:123], v31, s[40:43], s63 offen sc1')
    s.stamp(13)
    fw = kw.get('fw', 0)
    if fw:
        a('s_branch L_end')
        a('L_wb:')
        a(f's_cmp_lg_u32 s7, {fw}\ns_cbranch_scc1 L_end')
        if kw.get('d0'): a(f's_sleep {kw["d0"]}')
    LA = 'buffer_load_dwordx4 v[16:19], v117, s[40:43], s60 offen sc1'
    LB_ = 'buffer_load_dwordx4 v[20:23], v117, s[40:43], s60 offen sc1'
    a('L_mpoll:')
    a('buffer_load_dwordx4 v[32:35], v119, s[40:43], s62 offen sc1')
    a(f'v_lshlrev_b32 v14, 3, v1\nv_add_u32 v14, {GX}, v14\nds_read_b64 v[12:13], v14')
    s.unpack24_consts()
    s.srd_const(48, 4096); s.srd(48, 36)
    a('s_mov_b32 s56, 0x00030003\ns_mov_b32 s57, s56')
    a('v_and_b32 v11, 1, v1\nv_lshlrev_b32 v14, 5, v2\nv_lshl_add_u32 v14, v11, 1, v14')
    a('s_lshl_b32 s11, s5, 10\ns_lshl_b32 s12, s3, 7\ns_add_u32 s11, s11, s12\ns_lshl2_add_u32 s11, s6, s11')
    if kw.get('d1'): a(f's_sleep {kw["d1"]}')
    a(LA)
    if kw.get('d2'): a(f's_sleep {kw["d2"]}')
    a(LB_)
    s.budget()
    a('s_waitcnt vmcnt(2)\nv_cmp_ne_u32 vcc, s44, v35\ns_cbranch_vccnz L_mpoll')
    s.stamp(10)
    s.unpack24(32)
    s.reduce32(32)
    a('s_waitcnt lgkmcnt(0)')
    s.round_bf16('v32')
    a('v_add_f32 v32, v32, v12')
    s.round_bf16('v32')
    a(f'v_mul_f32 v33, {hex(f2u(-math.log2(math.e)))}, v32\nv_exp_f32 v33, v33\nv_add_f32 v33, 1.0, v33\nv_rcp_f32 v33, v33\nv_mul_f32 v12, v32, v33')
    s.round_bf16('v12')
    a('L_fpoll:')
    a('s_waitcnt vmcnt(1)\nv_cmp_ne_u32 vcc, s44, v19\ns_cbranch_vccz L_fdone')
    if kw.get('d4'): a(f's_sleep {kw["d4"]}')
    a(LA)
    s.budget()
    a('s_waitcnt vmcnt(1)\nv_cmp_ne_u32 vcc, s44, v23\ns_cbranch_vccz L_fdoneB')
    if kw.get('d3'): a(f's_sleep {kw["d3"]}')
    a(LB_ + '\ns_branch L_fpoll')
    def finish(r):
        s.stamp(14)
        s.unpack24(r)
        s.reduce32(r)
        if kw.get('exactfin', 0):
            s.round_bf16(f'v{r}')
            a(f'v_mul_f32 v{r}, v{r}, v12')
            s.round_bf16(f'v{r}')
            a(f'v_add_f32 v{r}, v{r}, v13')
        else:
            a(f'v_fma_f32 v{r}, v{r}, v12, v13')
        a('s_mov_b64 exec, s[56:57]')
        a(f'v_cvt_pk_bf16_f32 v{r}, v{r}, v{r}')
        a(f'buffer_store_short v{r}, v14, s[48:51], s11 offen')
    a('L_fdoneB:')
    finish(20)
    a('s_branch L_epoch')
    a('L_fdone:')
    finish(16)
    a('L_epoch:')
    s.stamp(15)
    a('s_cmp_lg_u32 s2, 0\ns_cbranch_scc1 L_end')
    a('s_mov_b64 exec, 1\nbuffer_store_dword v123, v8, s[40:43], 0 offen')
    a('s_branch L_end')

    a('L_qrem:')
    a('s_mov_b32 exec_lo, 0x000f000f\ns_mov_b32 exec_hi, 0x000f000f')
    a('buffer_store_dwordx4 v[108:111], v106, s[40:43], s58 offen sc1\nbuffer_store_dwordx4 v[112:115], v107, s[40:43], s59 offen sc1')
    a('s_mov_b64 exec, -1')
    a('L_qrem2:')
    a(f'ds_read_b32 v9, v8 offset:{F_Q}')
    for t in range(4): a(f'ds_read_b128 v[{64+4*t}:{67+4*t}], v{102+t}')
    s.budget()
    a('s_waitcnt lgkmcnt(0)\nv_readfirstlane_b32 s47, v9\ns_cmp_eq_u32 s47, 4\ns_cbranch_scc0 L_qgo\ns_sleep 2\ns_branch L_qrem2')
    if kw.get('wb') is not None:
        a('L_wb:')
        a(f's_cmp_lg_u32 s7, 1\ns_cbranch_scc1 L_end\ns_and_b32 s10, s4, {kw["wb"]}\ns_cbranch_scc1 L_end')
        if kw.get('wbd'): a(f's_sleep {kw["wbd"]}')
        a('buffer_wbl2 sc1\ns_branch L_end')
    a('L_orem:')
    a('buffer_store_dwordx4 v[40:43], v30, s[40:43], s14 offen sc1\nbuffer_store_dwordx4 v[44:47], v30, s[40:43], s14 offen offset:1024 sc1')
    a('s_branch L_ost')
    a('L_P:')
    if 'P' in kw.get('kill', ''): a('s_waitcnt lgkmcnt(0)\ns_branch L_end')
    a('s_setprio 3')
    a('s_getreg_b32 s45, hwreg(HW_REG_XCC_ID, 0, 4)')
    a('v_and_b32 v5, 3, v1')
    a(f's_lshl_b32 s10, s3, 15\ns_lshl_b32 s12, s4, 10\ns_add_u32 s12, s12, s10')
    a('s_waitcnt lgkmcnt(0)')
    if kw.get('warmq'):
        a(f'v_and_b32 v10, 7, v1\nv_lshlrev_b32 v10, 7, v10\nv_and_b32 v11, 8, v1\nv_lshl_add_u32 v10, v11, 15, v10\ns_add_u32 s11, s12, {WS_Q}')
        a(f's_mov_b64 exec, {0xff if kw["warmq"] == 1 else 0xffff}\nbuffer_load_dword v7, v10, s[40:43], s11 offen {kw.get("warmqfl", "")}\ns_mov_b64 exec, -1')
    a(f's_lshl_b32 s11, s5, 13\ns_add_u32 s10, s10, s11\ns_add_u32 s10, s10, {WS_Q}\ns_add_u32 s15, s10, 4096')
    a('v_lshlrev_b32 v10, 4, v1')
    a(f'v_lshrrev_b32 v11, 5, v1\nv_and_b32 v12, 31, v1\nv_lshlrev_b32 v13, 3, v12\nv_lshlrev_b32 v14, 4, v11\nv_xor_b32 v13, v13, v14\nv_lshl_add_u32 v13, v11, 8, v13\nv_add_u32 v22, {QL}, v13')
    for c in range(1, 8): a(f'v_xor_b32 v{22+c}, {c*32}, v22')
    a(f's_mov_b32 s14, {kw.get("nfast", 48)}')
    a('s_waitcnt lgkmcnt(0)')
    s.stamp(1)
    if 'W' in kw.get('kill', ''): a('s_branch L_end')
    if kw.get('qs'): a(f's_sleep {kw["qs"]}')
    if kw.get('qg'): s.wait_flag(C_G, kw['qg'], sleep=1)
    s.wait_flag(C_QP, 4, sleep=1, extra=[f'ds_read_b32 v15, v8 offset:{TAGW}'])
    a('s_waitcnt lgkmcnt(0)\nv_readfirstlane_b32 s44, v15')
    if q0: a(f's_sleep {q0}')
    s.stamp(2)
    a('L_qpoll:')
    for c in range(8): a(f'buffer_load_dwordx4 v[{32+4*c}:{35+4*c}], v10, s[40:43], s{10 if c < 4 else 15} offen offset:{(c&3)*1024} sc1 {kw.get("qnt", "")}')
    s.budget()
    a('s_waitcnt vmcnt(0)')
    a('v_xor_b32 v15, s44, v35')
    for c in range(1, 8): a(f'v_bitop3_b32 v15, v{35+4*c}, s44, v15 bitop3:0xbe')
    a('v_cmp_ne_u32 vcc, 0, v15\ns_cbranch_vccz L_qgot')
    a(f's_mov_b64 exec, vcc\ns_sub_u32 s14, s14, 1\ns_cbranch_scc0 L_qpoll')
    a(f'v_mov_b32 v15, 4\nds_write_b32 v8, v15 offset:{F_Q}\ns_branch L_qpoll')
    a('L_qgot:')
    a('s_mov_b64 exec, -1')
    a('v_xor_b32 v15, s45, v34')
    for c in range(8):
        a(f'ds_write_b64 v{22+c}, v[{32+4*c}:{33+4*c}] offset:{c*512}')
        if c < 7: a(f'v_bitop3_b32 v15, v{38+4*c}, s45, v15 bitop3:0xbe')
    a('v_and_b32 v15, 15, v15\nv_cmp_ne_u32 vcc, 0, v15\ns_cmp_eq_u64 vcc, 0\ns_cselect_b32 s47, 1, 2')
    if kw.get('force_remote'): a('s_mov_b32 s47, 2')
    a(f'v_mov_b32 v15, s47\nds_write_b32 v8, v15 offset:{F_Q}')
    s.stamp(3)
    a('v_add3_u32 v16, v34, v38, v42\nv_add3_u32 v17, v46, v50, v54\nv_add3_u32 v16, v16, v58, v62\nv_add_u32 v16, v16, v17')
    for m in ('quad_perm:[1,0,3,2] row_mask:0xf', 'quad_perm:[2,3,0,1] row_mask:0xf', 'row_half_mirror row_mask:0xf', 'row_mirror row_mask:0xf', 'row_bcast:15 row_mask:0xa', 'row_bcast:31 row_mask:0xc'):
        a(f'v_add_u32_dpp v16, v16, v16 {m} bank_mask:0xf')
    if kw.get('absvote'): a('v_readlane_b32 s10, v16, 63\ns_ashr_i32 s10, s10, 13\ns_abs_i32 s10, s10\ns_min_u32 s10, s10, 300\ns_sub_u32 s10, 300, s10\ns_add_u32 s74, s64, s10')
    if kw.get('recvote'): a('v_readlane_b32 s10, v16, 63\ns_ashr_i32 s10, s10, 13\ns_add_u32 s10, s10, 1000\ns_add_u32 s74, s64, s10')
    a('v_readlane_b32 s10, v16, 63\ns_cmp_lt_i32 s10, 0\ns_cselect_b32 s10, 0, 8192')
    if kw.get('kflip'): a('s_xor_b32 s10, s10, 8192')
    a(f'v_mov_b32 v15, s10\nds_write_b32 v8, v15 offset:{F_K}')
    a(f's_lshl_b32 s11, s12, 1\ns_add_u32 s11, s11, {WS_O}')
    a(f's_lshl2_add_u32 s12, s3, s5\ns_lshl4_add_u32 s12, s12, s6\ns_lshl_b32 s12, s12, 10\ns_add_u32 s12, s12, s10\ns_add_u32 s12, s12, {WS_S - 2048}')
    a('v_lshlrev_b32 v10, 7, v1\nv_add_u32 v11, s12, v10\nv_add_u32 v10, s11, v10\nv_cmp_gt_u32 vcc, 16, v1\nv_cndmask_b32 v10, v11, v10, vcc')
    if kw.get('wg'): s.wait_flag(C_G, kw['wg'], sleep=2)
    if kw.get('nowarm') == 1: pass
    elif kw.get('nowarm') == 2: a('s_mov_b64 exec, 0xffffff\nbuffer_load_dword v7, v10, s[40:43], 0 offen nt')
    elif kw.get('nowarm') == 3: a('s_mov_b64 exec, 0xffff\nbuffer_load_dword v7, v10, s[40:43], 0 offen nt')
    elif kw.get('ont'):
        a('s_mov_b64 exec, 0xffff\nbuffer_load_dword v7, v10, s[40:43], 0 offen nt\ns_mov_b64 exec, 0xff0000\nbuffer_load_dword v7, v10, s[40:43], 0 offen')
    else:
        a('s_mov_b64 exec, 0xffffff\nbuffer_load_dword v7, v10, s[40:43], 0 offen')
    a('s_branch L_end')

    a('L_M:')
    if kw.get('mprio') is not None: a(f's_setprio {kw["mprio"]}\ns_branch L_M2')
    if 'M' in kw.get('kill', ''): a('s_waitcnt lgkmcnt(0)\ns_branch L_end')
    a('s_setprio 3')
    a('L_M2:')
    a('v_bfe_u32 v4, v1, 2, 2\nv_and_b32 v5, 3, v1')
    a('v_lshl_add_u32 v10, v4, 2, v2')
    a('v_lshlrev_b32 v11, 3, v10')
    a('v_lshlrev_b32 v10, 4, v1')
    s.mlp_slot(11, 15)
    a('s_lshl3_add_u32 s15, s5, s3\ns_lshl_b32 s11, s11, 6')
    a('v_and_b32 v24, 1, v1\nv_lshlrev_b32 v25, 5, v2\nv_lshl_add_u32 v25, v24, 1, v25')
    a('s_lshl_b32 s12, s3, 7\ns_lshl2_add_u32 s12, s6, s12\ns_lshl_b32 s13, s5, 10\ns_add_u32 s13, s13, s12')
    s.srd_const(56, 3584); s.srd_const(60, 1024); s.srd_const(96, 4096)
    a('s_waitcnt lgkmcnt(0)')
    s.srd(56, 30); s.srd(60, 34); s.srd(96, 16)
    if not kw.get('nosmall'):
        sf = kw.get('smallfl', '')
        a(f'buffer_load_ushort v16, v25, s[60:63], s12 offen {sf}')
        a('buffer_load_ushort v17, v25, s[96:99], s13 offen')
        a(f'buffer_load_dwordx2 v[14:15], v11, s[56:59], s11 offen {sf}')
    a(f'v_mul_u32_u24 v11, {HS}, v5\nv_lshl_add_u32 v11, v2, 4, v11\nv_lshrrev_b32 v12, 1, v4\nv_lshl_add_u32 v11, v12, 6, v11\nv_and_b32 v12, 1, v4\nv_lshl_add_u32 v11, v12, 3, v11\nv_add_u32 v11, {HL}, v11')
    a(f'v_mul_u32_u24 v12, {HS}, v4\nv_lshl_add_u32 v12, v2, 4, v12\nv_add_u32 v12, {HL}, v12')
    a(f'v_lshl_add_u32 v27, v2, 2, v4\nv_bfe_u32 v28, v27, 1, 2\nv_lshlrev_b32 v28, 5, v28\nv_lshl_add_u32 v28, v27, 7, v28\nv_lshl_add_u32 v28, v5, 3, v28\nv_add_u32 v28, {W2}, v28')
    a('v_xor_b32 v29, 32, v28\nv_xor_b32 v30, 64, v28\nv_xor_b32 v31, 96, v28')
    a(f'v_lshlrev_b32 v13, 3, v1\nv_add_u32 v13, {GX}, v13')
    a('s_waitcnt vmcnt(1) lgkmcnt(0)')
    a('v_lshlrev_b32 v16, 16, v16\nv_lshlrev_b32 v17, 16, v17\nds_write_b64 v13, v[16:17]')
    if kw.get('hs'): a(f's_sleep {kw["hs"]}')
    s.wait_flag(C_HP, 4, sleep=1, extra=[f'ds_read_b32 v23, v8 offset:{TAGW}'])
    a('s_waitcnt lgkmcnt(0)\nv_readfirstlane_b32 s44, v23')
    s.pack24_consts(); s.unpack24_consts()
    if kw.get('hq'): s.wait_flag(F_Q, 1, sleep=1)
    if kw.get('h0', 8): a(f's_sleep {kw.get("h0", 8)}')
    a(f's_lshl2_add_u32 s10, s3, s5\ns_lshl_b32 s10, s10, 13\ns_add_u32 s10, s10, {WS_H}\ns_add_u32 s11, s10, 4096')
    s.stamp(2)
    a('L_hpoll:')
    for c in range(8): a(f'buffer_load_dwordx4 v[{32+4*c}:{35+4*c}], v10, s[40:43], s{10 + (c>>2)} offen offset:{(c&3)*1024} sc1 {kw.get("qnt", "")}')
    s.budget()
    a('s_waitcnt vmcnt(0)')
    a('v_xor_b32 v13, s44, v35')
    for c in range(1, 8): a(f'v_bitop3_b32 v13, v{35+4*c}, s44, v13 bitop3:0xbe')
    a('v_cmp_ne_u32 vcc, 0, v13\ns_cbranch_vccnz L_hpoll')
    s.stamp(3)
    for c in range(8): s.unpack24(32 + 4 * c)
    for st in (16, 8, 4):
        for r in range(32, 32 + st, 2): a(f'v_pk_add_f32 v[{r}:{r+1}], v[{r}:{r+1}], v[{r+st}:{r+st+1}]')
    a('v_cvt_pk_bf16_f32 v36, v32, v33\nv_cvt_pk_bf16_f32 v37, v34, v35')
    for k in range(2):
        a(f'v_lshlrev_b32 v{32+2*k}, 16, v{36+k}\nv_and_b32 v{33+2*k}, 0xffff0000, v{36+k}\nv_lshlrev_b32 v{40+2*k}, 16, v{14+k}\nv_and_b32 v{41+2*k}, 0xffff0000, v{14+k}')
    for k in range(4): a(f'v_add_f32 v{32+k}, v{32+k}, v{40+k}')
    a('v_cvt_pk_bf16_f32 v36, v32, v33\nv_cvt_pk_bf16_f32 v37, v34, v35')
    for k in range(2): a(f'v_lshlrev_b32 v{32+2*k}, 16, v{36+k}\nv_and_b32 v{33+2*k}, 0xffff0000, v{36+k}')
    K1 = -2 * math.sqrt(2 / math.pi) * math.log2(math.e)
    a(f'v_mov_b32 v44, {hex(f2u(K1))}')
    for k in range(4): a(f'v_mul_f32 v{36+k}, v{32+k}, v{32+k}')
    for k in range(4): a(f'v_fmamk_f32 v{36+k}, v{36+k}, {hex(f2u(K1*0.044715))}, v44')
    for k in range(4): a(f'v_mul_f32 v{36+k}, v{36+k}, v{32+k}')
    for k in range(4): a(f'v_exp_f32 v{36+k}, v{36+k}')
    for k in range(4): a(f'v_add_f32 v{36+k}, 1.0, v{36+k}')
    for k in range(4): a(f'v_rcp_f32 v{36+k}, v{36+k}')
    for k in range(4): a(f'v_mul_f32 v{32+k}, v{32+k}, v{36+k}')
    a('v_cvt_pk_bf16_f32 v40, v32, v33\nv_cvt_pk_bf16_f32 v41, v34, v35')
    a('ds_write_b64 v11, v[40:41]\nds_read_b128 v[48:51], v12\nds_read_b128 v[52:55], v12 offset:64')
    a(f's_add_u32 s10, s6, {r2}\ns_and_b32 s10, s10, 7\ns_lshl_b32 s10, s10, 5\ns_add_u32 s10, s10, s15\ns_lshl_b32 s10, s10, 10\ns_add_u32 s10, s10, {WS_M}')
    a('v_lshlrev_b32 v10, 4, v1\nv_mov_b32 v23, s44')
    s.wait_flag(C_G, TH['2'][1], sleep=1)
    for ks in range(2):
        for T in range(4):
            for u in range(2):
                r = 64 + 16 * ks + 4 * T + 2 * u
                a(f'ds_read_b64_tr_b16 v[{r}:{r+1}], v{28+T} offset:{ks*4096+u*2048}')
    a('s_waitcnt lgkmcnt(0)')
    for ks in range(2):
        for T in range(4): s.mfma(32 + 4 * T, 48 + 4 * ks, 64 + 16 * ks + 4 * T, ks == 0)
    s.pack24(20, 32, 36, 40, 44)
    a('buffer_store_dwordx4 v[20:23], v10, s[40:43], s10 offen sc1')
    s.stamp(4)
    a('L_end:')
    if kw.get('probe'):
        pw, pst, pm, pb = kw['probe']
        a(f's_waitcnt lgkmcnt(0)\ns_cmp_lg_u32 s7, {pw}\ns_cbranch_scc1 L_exit')
        if pw >= 4: a('s_barrier\ns_barrier' if kw.get('obar') and pw != 6 else 's_barrier')
        if kw.get('clk') == 1: a('s_memtime s[92:93]\ns_waitcnt lgkmcnt(0)\ns_sub_u32 s10, s92, s90\ns_lshr_b32 s10, s10, 1\ns_add_u32 s94, s64, s10')
        if kw.get('clk') == 2: a('s_memrealtime s[92:93]\ns_waitcnt lgkmcnt(0)\ns_sub_u32 s10, s92, s88\ns_mul_i32 s10, s10, 10\ns_add_u32 s94, s64, s10')
        if kw.get('px') is not None: a(f's_cmp_lg_u32 s45, {kw["px"]}\ns_cbranch_scc1 L_exit')
        if kw.get('pm') is not None: a(f's_mul_i32 s10, s45, {kw["pm"]}\ns_add_u32 s94, s64, s10')
        if kw.get('pg') is not None: a(f's_cmp_lg_u32 s3, {kw["pg"]}\ns_cbranch_scc1 L_exit')
        a(f's_sub_u32 s10, s{64+2*pst}, s64\ns_mul_i32 s10, s10, {pm}\ns_add_u32 s10, s10, {pb}\ns_min_u32 s10, s10, 20000')
        a('L_padloop:\ns_memrealtime s[12:13]\ns_waitcnt lgkmcnt(0)\ns_sub_u32 s11, s12, s64\ns_cmp_lt_u32 s11, s10\ns_cbranch_scc1 L_padloop')
    s.dump_stamps()
    a('L_exit:')
    a('s_endpgm')
    lines, added = hazard.fix(s.o, verbose=kw.get('verbose', False))
    return wrap('\n'.join(lines) + '\n', 256, NW * 64, kw.get('lds', LDS_TOTAL), kw.get('vgpr', 192))

if __name__ == '__main__':
    import ast
    out = sys.argv[1]
    kw = {}
    for x in sys.argv[2:]:
        k, v = x.split('=')
        try: kw[k] = ast.literal_eval(v)
        except Exception: kw[k] = v
    open(out, 'w').write(gen(**kw))
```

```python
import sys, math, struct
sys.path.insert(0, 'dev')
from common import *
import hazard

def f2u(x):
    return struct.unpack('<I', struct.pack('<f', x))[0]

NW = 7
FL = 0
WA, W1, KB, W2, VB, WO = [2048 + x for x in (0, 16384, 24576, 57344, 65536, 98304)]
XN = 2048 + 114688; XS = 1088
YL = XN + 4 * XS
QL = YL + 4 * XS
assert QL % 256 == 0
PL = QL + 4096
RED = PL + 4096
HL = RED + 4096; HS = 144
MX = 128
FP = 192
GX = HL + 640
LDS_TOTAL = GX + 512
C_WA, C_G, C_XN, F_Q, C_MX, C_P, F_WT, C_QP, C_Y, C_HP, T_A, T_B, F_K, TAGW = [4 * i for i in range(14)]

WS_Q = 0x1000
WS_H = WS_Q + 0x40000
WS_LSE = WS_H + 0x40000
WS_O = WS_LSE + 0x4000
WS_M = WS_O + 0x80000
WS_S = 0x150000
assert WS_S >= WS_M + 0x40000
WS_T = WS_S + 0x80000
WS_N = WS_T + 0x10000
WS_END = WS_T + 0x20000
assert WS_END <= 0x200000
STAMP = 0x8000000

class G:
    def __init__(s, **kw):
        s.o = []
        s.nl = 0
        s.kw = kw
        s.stamps = kw.get('stamps', False)
    def a(s, t):
        for l in t.split('\n'):
            l = l.strip()
            if l: s.o.append(l)
    def lab(s, p='L'):
        s.nl += 1
        return f'{p}_{s.nl}'
    def stamp(s, i):
        pr = s.kw.get('probe')
        only = s.kw.get('only')
        if (s.stamps and (only is None or i in only or i == 0)) or (pr and i in (0, pr[1])):
            s.a(f's_memrealtime s[{64+2*i}:{65+2*i}]')
    def budget(s):
        s.a('s_sub_u32 s46, s46, 1\ns_cbranch_scc1 L_end')
    def wait_flag(s, off, n, extra=None, sleep=0, vt='v9'):
        L = s.lab('W')
        if sleep:
            L2 = s.lab('W')
            s.a(f's_branch {L2}\n{L}:\ns_sleep {sleep}\n{L2}:')
        else:
            s.a(f'{L}:')
        s.a(f'ds_read_b32 {vt}, v8 offset:{off}')
        ne = 0
        if extra:
            for e in extra: s.a(e)
            ne = len(extra)
        s.budget()
        s.a(f's_waitcnt lgkmcnt({0 if (s.stamps and not s.kw.get("lean")) or (s.kw.get("safeA") and ne > 6) else min(ne, 15)})')
        s.a(f'v_cmp_gt_u32 vcc, {n}, {vt}')
        s.a(f's_cbranch_vccnz {L}')
    def signal(s, off):
        s.a(f's_mov_b64 exec, 1\nds_add_u32 v8, v6 offset:{off}\ns_mov_b64 exec, -1')
    def srd(s, d, p):
        s.a(f's_mov_b32 s{d}, s{p}\ns_mov_b32 s{d+1}, s{p+1}')
    def srd_const(s, d, n):
        s.a(f's_mov_b32 s{d+2}, {n}\ns_mov_b32 s{d+3}, 0x20000')
    def wave_sum(s, v, sd):
        for m in ('quad_perm:[1,0,3,2]', 'quad_perm:[2,3,0,1]', 'row_half_mirror', 'row_mirror'):
            s.a(f'v_add_f32_dpp {v}, {v}, {v} {m} row_mask:0xf bank_mask:0xf')
        s.a(f'v_add_f32_dpp {v}, {v}, {v} row_bcast:15 row_mask:0xa bank_mask:0xf')
        s.a(f'v_add_f32_dpp {v}, {v}, {v} row_bcast:31 row_mask:0xc bank_mask:0xf')
        s.a(f'v_readlane_b32 {sd}, {v}, 63')
    def rows_allreduce(s, op, v, t):
        s.a(f'v_mov_b32 {t}, {v}\nv_permlane16_swap_b32 {t}, {v}\n{op} {v}, {t}, {v}')
        s.a(f'v_mov_b32 {t}, {v}\nv_permlane32_swap_b32 {t}, {v}\n{op} {v}, {t}, {v}')
    def layernorm(s, src, f, t):
        P = lambda r: f'v[{r}:{r+1}]'
        for k in range(4):
            s.a(f'v_lshlrev_b32 v{f+2*k}, 16, v{src+k}\nv_and_b32 v{f+2*k+1}, s55, v{src+k}')
        s.a(f'v_pk_add_f32 {P(t)}, {P(f)}, {P(f+2)}\nv_pk_add_f32 {P(t+2)}, {P(f+4)}, {P(f+6)}\nv_pk_add_f32 {P(t)}, {P(t)}, {P(t+2)}\nv_add_f32 v{t}, v{t}, v{t+1}')
        s.wave_sum(f'v{t}', 's10')
        s.a(f'v_mov_b32 v{src+3}, {hex(f2u(1/512))}')
        s.a(f'v_mul_f32 v{src}, s10, v{src+3}')
        for k in range(4):
            s.a(f'v_pk_add_f32 {P(t+2*k)}, {P(f+2*k)}, {P(src)} op_sel_hi:[1,0] neg_lo:[0,1] neg_hi:[0,1]')
        s.a(f'v_pk_mul_f32 {P(t)}, {P(t)}, {P(t)}')
        for k in range(1, 4):
            s.a(f'v_pk_fma_f32 {P(t)}, {P(t+2*k)}, {P(t+2*k)}, {P(t)}')
        s.a(f'v_add_f32 v{t}, v{t}, v{t+1}')
        s.a(f'v_cvt_pk_bf16_f32 v{src}, v{src}, v{src}\nv_lshlrev_b32 v{src}, 16, v{src}')
        ms = ['quad_perm:[1,0,3,2] row_mask:0xf', 'quad_perm:[2,3,0,1] row_mask:0xf', 'row_half_mirror row_mask:0xf', 'row_mirror row_mask:0xf', 'row_bcast:15 row_mask:0xa', 'row_bcast:31 row_mask:0xc']
        fill = [f'v_pk_add_f32 {P(f+2*k)}, {P(f+2*k)}, {P(src)} op_sel_hi:[1,0] neg_lo:[0,1] neg_hi:[0,1]' for k in range(4)]
        fill += [f'v_cvt_pk_bf16_f32 v{t+2+k}, v{f+2*k}, v{f+2*k+1}' for k in range(4)]
        for k in range(4): fill += [f'v_lshlrev_b32 v{f+2*k}, 16, v{t+2+k}', f'v_and_b32 v{f+2*k+1}, s55, v{t+2+k}']
        for m in ms:
            s.a(f'v_add_f32_dpp v{t}, v{t}, v{t} {m} bank_mask:0xf')
            s.a(fill.pop(0)); s.a(fill.pop(0))
        s.a(f'v_readlane_b32 s10, v{t}, 63')
        s.a(fill.pop(0)); s.a(fill.pop(0))
        s.a(f'v_mul_f32 v{src}, s10, v{src+3}')
        s.a(f'v_cvt_pk_bf16_f32 v{src}, v{src}, v{src}\nv_lshlrev_b32 v{src}, 16, v{src}')
        s.a(f'v_add_f32 v{src}, {hex(f2u(1e-5))}, v{src}')
        s.a(f'v_cvt_pk_bf16_f32 v{src}, v{src}, v{src}\nv_lshlrev_b32 v{src}, 16, v{src}')
        s.a(f'v_sqrt_f32 v{src}, v{src}')
        s.a(fill.pop(0))
        s.a(f'v_cvt_pk_bf16_f32 v{src}, v{src}, v{src}\nv_lshlrev_b32 v{src}, 16, v{src}')
        s.a(f'v_rcp_f32 v{src}, v{src}')
        s.a(fill.pop(0))
        assert not fill
        for k in range(4):
            s.a(f'v_pk_mul_f32 {P(f+2*k)}, {P(f+2*k)}, {P(src)} op_sel_hi:[1,0]')
        for k in range(4):
            s.a(f'v_cvt_pk_bf16_f32 v{src+k}, v{f+2*k}, v{f+2*k+1}')
    def round_bf16(s, v):
        s.a(f'v_cvt_pk_bf16_f32 {v}, {v}, {v}\nv_lshlrev_b32 {v}, 16, {v}')
    def tag_finish(s):
        s.a('s_mul_i32 s44, s44, 0x2c9277b5\ns_add_u32 s44, s44, 0xac564b05')
    def pack24(s, d, a, b, c, e):
        s.a(f'v_perm_b32 v{d}, v{a}, v{e}, s50\nv_perm_b32 v{d+1}, v{b}, v{e}, s51\nv_perm_b32 v{d+2}, v{c}, v{e}, s52')
    def pack24_consts(s):
        s.a('s_mov_b32 s50, 0x07060503\ns_mov_b32 s51, 0x07060502\ns_mov_b32 s52, 0x07060501')
    def unpack24(s, r):
        s.a(f'v_perm_b32 v{r+3}, v{r}, v{r+1}, s53\nv_perm_b32 v{r+3}, v{r+3}, v{r+2}, s54')
    def unpack24_consts(s):
        s.a('s_mov_b32 s53, 0x04000c0c\ns_mov_b32 s54, 0x0706000c')
    def reduce32(s, r):
        s.a(f'v_permlane32_swap_b32 v{r}, v{r+2}\nv_permlane32_swap_b32 v{r+1}, v{r+3}')
        s.a(f'v_add_f32 v{r}, v{r}, v{r+2}\nv_add_f32 v{r+1}, v{r+1}, v{r+3}')
        s.a(f'v_permlane16_swap_b32 v{r}, v{r+1}\nv_add_f32 v{r}, v{r}, v{r+1}')
        for m in ('row_ror:8', 'row_ror:4', 'row_ror:2'):
            s.a(f'v_add_f32_dpp v{r}, v{r}, v{r} {m} row_mask:0xf bank_mask:0xf')
    def mfma(s, d, A, B, first):
        s.a(f'v_mfma_f32_16x16x32_bf16 v[{d}:{d+3}], v[{A}:{A+3}], v[{B}:{B+3}], {"0" if first else f"v[{d}:{d+3}]"}')
    def mlp_slot(s, d, t):
        ha = s.kw.get('ha', 4)
        s.a(f's_mul_i32 s{d}, s5, 6\ns_add_u32 s{d}, s{d}, s3\ns_cmp_gt_u32 s3, {ha}\ns_cselect_b32 s{t}, 2, 0\ns_sub_u32 s{d}, s{d}, s{t}\ns_lshl_b32 s{d}, s{d}, 1')
        s.a(f's_lshl2_add_u32 s{t}, s3, s5\ns_add_u32 s{t}, s{t}, {48-4*ha}')
        s.a(f's_bitcmp1_b32 {3 << ha}, s3\ns_cselect_b32 s{d}, s{t}, s{d}')
    def hint(s, name, off, nq, tries, sub):
        a = s.a
        a(f's_lshl_b32 s48, s3, 7\ns_add_u32 s48, s48, {WS_N + off}\ns_add_u32 s49, s48, s4')
        a('s_and_b32 s50, s44, 0xff\ns_mul_i32 s50, s50, 0x01010101\ns_mov_b32 s51, s50\nv_mov_b32 v21, s50')
        if sub: a('s_andn2_b32 s48, s49, 7')
        a(f's_mov_b32 s47, {tries}')
    def hint_go(s, name, nq):
        a = s.a
        a('s_mov_b64 exec, 1\nbuffer_store_byte v21, v8, s[40:43], s49 offen\ns_mov_b64 exec, -1')
        a(f'L_{name}:')
        a(f's_load_dwordx{2*nq} s[52:{51+2*nq}], s[40:41], s48 glc')
        a(f's_sub_u32 s47, s47, 1\ns_cbranch_scc1 L_{name}d\ns_waitcnt lgkmcnt(0)')
        for k in range(nq): a(f's_xor_b64 s[{52+2*k}:{53+2*k}], s[{52+2*k}:{53+2*k}], s[50:51]')
        for k in range(1, nq): a(f's_or_b64 s[52:53], s[52:53], s[{52+2*k}:{53+2*k}]')
        a(f's_cbranch_scc1 L_{name}\nL_{name}d:\ns_waitcnt lgkmcnt(0)')
    def dump_stamps(s, nst=16):
        if not s.stamps: return
        s.a('s_waitcnt lgkmcnt(0)\ns_mov_b64 exec, -1\nv_mov_b32 v10, 0')
        for i in range(nst):
            s.a(f'v_writelane_b32 v10, s{64+2*i}, {i}')
        s.a(f's_mul_i32 s10, s2, {NW*64}\ns_lshl_b32 s11, s7, 6\ns_add_u32 s10, s10, s11\ns_add_u32 s10, s10, {STAMP}')
        s.a('v_lshlrev_b32 v11, 2, v1\ns_mov_b64 exec, 0xffff\nbuffer_store_dword v10, v11, s[40:43], s10 offen ' + s.kw.get('stfl', ''))

def gen(**kw):
    s = G(**kw)
    a = s.a
    depth = kw.get('depth', 20)
    NT = kw.get('nt', 'nt')
    npq = kw.get('npq', 2); gapq = kw.get('gapq', 12); q0 = kw.get('q0', 4)
    npl = kw.get('npl', 4); gapl = kw.get('gapl', 6)
    CSC = math.log2(math.e) / math.sqrt(128)
    ONE2 = 0x3f803f80
    order = kw.get('order', '11kkkkkkkk22vvvvvvvvoooo')
    TH = {c: [i + 1 for i, x in enumerate(order) if x == c] for c in '1k2vo'}
    assert [len(TH[c]) for c in '1k2vo'] == [2, 8, 2, 8, 4]
    marks = {TH['1'][1], TH['2'][1], TH['o'][3], len(order) - (kw.get('oe') or 0), kw.get('qg') or 2} | set(TH['k'][1::2]) | set(TH['v'][1::2])
    def common():
        if s.stamps:
            for i in range(1, 16): a(f's_mov_b32 s{64+2*i}, 0')
        a('v_and_b32 v1, 63, v0\ns_lshr_b32 s5, s4, 3\ns_and_b32 s6, s4, 7')
        a(f's_mov_b32 s42, {STAMP + 0x100000 if s.stamps else WS_END}\ns_mov_b32 s43, 0x20000')
        a(f's_mov_b32 s46, {kw.get("budget", 5000000)}')
        a('v_mov_b32 v6, 1')
        a('v_lshrrev_b32 v2, 4, v1\nv_and_b32 v3, 15, v1')
    s.stamp(0)
    a('s_load_dwordx16 s[16:31], s[0:1], 0\ns_load_dwordx8 s[32:39], s[0:1], 64\ns_load_dwordx2 s[40:41], s[0:1], 96')
    a('s_lshr_b32 s4, s2, 3\ns_cmp_ge_u32 s4, 32\ns_cbranch_scc1 L_exit')
    a('v_lshrrev_b32 v2, 6, v0\nv_bfe_u32 v4, v0, 3, 3')
    a('v_mov_b32 v8, 0\nds_write_b8 v0, v8')
    if kw.get('prefetch', True):
        a('s_getpc_b64 s[8:9]\nL_pc:')
        if kw.get('pf2'):
            a('s_lshl_b32 s10, s4, 7\nv_lshl_add_u32 v3, v0, 12, s10\nv_min_u32 v3, L_exit-L_pc, v3\nglobal_load_dword v7, v3, s[8:9]')
        else:
            a('v_lshlrev_b32 v3, 7, v0\nv_min_u32 v3, L_exit-L_pc, v3\nglobal_load_dword v7, v3, s[8:9]')
    a('v_readfirstlane_b32 s7, v2')
    a('v_and_b32 v5, 6, v4\nv_xor_b32 v5, v5, v0\nv_and_b32 v5, 7, v5\nv_lshlrev_b32 v5, 4, v5')
    a('s_and_b32 s3, s2, 7\ns_cmp_eq_u32 s7, 6\ns_cbranch_scc1 L_L\ns_cmp_ge_u32 s7, 4\ns_cbranch_scc1 L_PM')
    a('s_mov_b32 s51, 0x20000\nv_lshlrev_b32 v11, 4, v0')
    a('s_lshr_b32 s10, s4, 3\ns_lshl2_add_u32 s10, s10, s7\ns_lshl_b32 s10, s10, 18\ns_and_b32 s11, s4, 7\ns_lshl3_add_u32 s11, s3, s11\ns_xor_b32 s11, s11, ' + str(kw.get('rq', 0)) + '\ns_lshl_b32 s11, s11, 7\ns_add_u32 s10, s10, s11')
    a(f's_bfm_b32 s50, 1, 22\ns_bfm_b32 s12, 6, 10\nv_lshl_add_u32 v10, v4, 13, v5\ns_lshl_b32 m0, s7, 12\ns_addk_i32 m0, {WA}')
    a('s_waitcnt lgkmcnt(0)')
    a('s_mov_b64 s[48:49], s[22:23]')
    a('global_load_dwordx4 v[12:15], v11, s[16:17]')
    for r in range(4):
        a(f'buffer_load_dwordx4 v10, s[48:51], s10 offen offset:{r*1024} {NT} lds')
        if r < 3: a('s_add_u32 s10, s10, s12')
    a('s_branch L_C')
    a('L_L:')
    if kw.get('lprio'): a(f's_setprio {kw["lprio"]}')
    a('s_barrier')
    common()
    rq, r2 = kw.get('rq', 0), kw.get('r2', 0)
    s.mlp_slot(10, 11)
    a('s_cselect_b32 s11, 64, 0\ns_cselect_b32 s8, 30, 15')
    a('v_and_b32 v14, s11, v5\nv_lshl_add_u32 v14, v14, 24, v5\nv_mul_u32_u24 v32, 3584, v4\nv_add_u32 v32, v32, v14')
    for r in range(1, 4): a(f'v_add_u32 v{32+r}, {r*(8*3584-1024)}, v32')
    a('v_xor_b32 v14, v3, v2\nv_lshlrev_b32 v14, 4, v14\nv_lshl_add_u32 v18, v2, 8, v14')
    for r in range(1, 4): a(f'v_xor_b32 v{18+r}, {r*64}, v18\nv_add_u32 v{18+r}, {r*7168}, v{18+r}')
    a(f's_mov_b32 s50, {512*3584}\ns_mov_b32 s51, 0x20000\ns_lshl_b32 s8, 1, s8')
    a(f's_mul_i32 s12, s6, {64*3584}\ns_lshl_b32 s11, s10, 6\ns_add_u32 s12, s12, s11')
    a(f's_lshl_b32 s13, s5, 23\ns_lshl_b32 s11, s3, 20\ns_add_u32 s13, s13, s11\ns_lshl_b32 s11, s6, 10\ns_add_u32 s13, s13, s11\ns_add_u32 s13, s13, {3072*256}')
    a('s_bfm_b32 s54, 1, 25\ns_mov_b32 s55, s51\ns_mov_b32 s14, s13')
    a('s_waitcnt lgkmcnt(0)')
    s.stamp(1)
    dg = depth // 4
    segs = {'1': (32, 48, 28, 12, 32 * 3584, W1), 'k': (18, 52, 18, 13, 32768, KB), 'v': (22, 56, 20, 14, 32768, VB),
            '2': (26, 60, 32, 15, 's8', W2), 'o': (26, 96, 24, 9, 32768, WO)}
    cnt = {c: 0 for c in segs}
    late = False
    prof = kw.get('prof')
    prof = [int(x, 16) for x in prof] if prof else [dg] * len(order)
    assert len(prof) == len(order)
    landed = 0
    first_wait = min(gi for gi in range(len(order)) if gi + 1 > prof[gi])
    for gi, c in enumerate(order):
        vr, sd, ptr, so, step, lds = segs[c]
        if gi == first_wait:
            a('v_lshlrev_b32 v14, 1, v2\nv_xor_b32 v14, v3, v14\nv_lshlrev_b32 v14, 4, v14\nv_lshl_add_u32 v22, v2, 8, v14')
            a(f'v_xor_b32 v23, 128, v22\nv_add_u32 v24, {2*7168}, v22\nv_add_u32 v25, {3*7168}, v23\nv_add_u32 v23, 7168, v23')
            a('v_lshl_add_u32 v26, v4, 10, v5')
            for r in range(1, 4): a(f'v_add_u32 v{26+r}, {r*7168}, v26')
            a(f's_mov_b32 s58, s54\ns_mov_b32 s59, s51\ns_mov_b32 s62, {1792*1024}\ns_mov_b32 s63, s51\ns_bfm_b32 s98, 1, 22\ns_mov_b32 s99, s51')
            s.srd(56, 20); s.srd(60, 32); s.srd(96, 24)
            a(f's_add_u32 s11, s6, {r2}\ns_and_b32 s11, s11, 7\ns_lshl_b32 s11, s11, 7\ns_lshl_b32 s15, s10, 15\ns_add_u32 s15, s15, s11')
            a('s_lshl2_add_u32 s9, s3, s5\ns_lshl_b32 s9, s9, 17\ns_lshl_b32 s11, s6, 7\ns_add_u32 s9, s9, s11')
            s.stamp(2)
            late = True
        assert late or c in '1k'
        if cnt[c] == 0 and c in '1k': s.srd(sd, ptr)
        a(f's_mov_b32 m0, {lds + cnt[c] * 4096}')
        if cnt[c]: a(f's_add_u32 s{so}, s{so}, {step}')
        while landed < gi + 1 - prof[gi]:
            landed += 1
            if landed in marks or landed == gi + 1 - prof[gi]:
                a(f's_waitcnt vmcnt({(gi-landed)*4})')
            if landed in marks:
                a(f'v_mov_b32 v30, {landed}\nds_write_b32 v8, v30 offset:{C_G}')
                if landed == TH['v'][7]: s.stamp(6)
        for r in range(4):
            fine = kw.get('fine')
            if fine and gi * 4 + r >= fine and (r or fine - 1 < (gi - landed) * 4): a(f's_waitcnt vmcnt({fine-1})')
            fl = kw.get('nt' + c, NT)
            a(f'buffer_load_dwordx4 v{vr+r}, s[{sd}:{sd+3}], s{so} offen offset:{r*1024} {fl} lds')
        cnt[c] += 1
    for n in range(landed + 1, len(order) + 1):
        if n in marks:
            if kw.get('obar') and n == len(order) and n != TH['v'][7]:
                a('s_waitcnt vmcnt(0)')
            else:
                a(f'v_mov_b32 v30, {n}\ns_waitcnt vmcnt({(len(order)-n)*4})\nds_write_b32 v8, v30 offset:{C_G}')
            if n == TH['v'][7]: s.stamp(6)
    s.stamp(7)
    if kw.get('obar'): a('s_barrier')
    a('s_branch L_end')

    if kw.get('shift'): a('s_nop 0')
    a('L_PM:')
    a('s_barrier')
    common()
    ns = kw.get('nsamp', 1)
    a(f's_lshr_b32 s10, s2, 6\ns_lshl1_add_u32 s10, s10, s7\ns_lshl_b32 s10, s10, 6\ns_and_b32 s11, s2, 63\ns_add_u32 s10, s10, s11\ns_lshl_b32 s10, s10, 7\ns_add_u32 s10, s10, {WS_T - 4*8192}')
    a('s_waitcnt lgkmcnt(0)')
    if kw.get('tlb'):
        a('s_lshl3_add_u32 s11, s5, s3\ns_lshl_b32 s11, s11, 10\ns_add_u32 s11, s11, s6\ns_addk_i32 s11, 768\ns_lshl_b32 s11, s11, 10\nv_mov_b32 v10, s11')
        a('s_lshl2_add_u32 s11, s3, s5\ns_lshl_b32 s11, s11, 10\ns_add_u32 s11, s11, s6\ns_lshl_b32 s11, s11, 7\nv_mov_b32 v11, s11')
        a(f's_lshl_b32 s11, s2, 7\nv_mov_b32 v12, s11\ns_add_u32 s11, s11, {WS_T + 0x10000}\nv_mov_b32 v13, s11')
        a('s_mov_b64 exec, 1\ns_cmp_eq_u32 s7, 4\ns_cbranch_scc0 L_tl5')
        a('global_load_dword v7, v10, s[20:21] nt\nglobal_load_dword v7, v11, s[24:25] nt\ns_branch L_tl6')
        a('L_tl5:\nglobal_load_dword v7, v12, s[32:33] nt\nglobal_load_dword v7, v13, s[40:41] nt')
        a('L_tl6:\ns_mov_b64 exec, -1')
    if kw.get('pd'): a(f's_sleep {kw["pd"]}')
    a('s_memtime s[12:13]\ns_load_dword s11, s[40:41], s10')
    if ns == 2: a('s_add_u32 s10, s10, 0x10000\ns_waitcnt lgkmcnt(0)\ns_load_dword s11, s[40:41], s10')
    a('s_waitcnt lgkmcnt(0)\ns_memtime s[14:15]\ns_lshl_b32 s10, s7, 2\nv_mov_b32 v10, s10\ns_waitcnt lgkmcnt(0)')
    a(f's_sub_u32 s12, s14, s12\nv_mov_b32 v11, s12\nds_write_b32 v10, v11 offset:{T_A - 16}')
    a('s_cmp_eq_u32 s7, 4\ns_cbranch_scc1 L_P\ns_branch L_M')
    a('L_C:')
    if kw.get('clk'): a('s_memtime s[90:91]\ns_memrealtime s[88:89]')
    a('s_load_dword s44, s[40:41], 0\ns_barrier')
    a(f's_setprio {kw.get("cprio", 2)}')
    common()
    s.stamp(1)
    if 'C' in kw.get('kill', ''): a('s_waitcnt vmcnt(0)\ns_branch L_end')
    a('v_bfe_u32 v4, v1, 2, 2\nv_and_b32 v5, 3, v1')
    a(f's_mul_i32 s11, s7, {XS}\ns_add_u32 s11, s11, {XN}')
    a('v_lshrrev_b32 v10, 2, v1\nv_lshlrev_b32 v10, 6, v10\nv_and_b32 v11, 1, v1\nv_lshl_add_u32 v10, v11, 5, v10\nv_and_b32 v11, 2, v1\nv_lshl_add_u32 v10, v11, 2, v10\nv_add_u32 v11, s11, v10')
    a('s_mov_b32 s55, 0xffff0000')
    a('v_lshl_add_u32 v27, v2, 2, v4\nv_bfe_u32 v96, v27, 1, 2\nv_lshlrev_b32 v96, 5, v96\nv_lshl_add_u32 v96, v27, 7, v96\nv_lshl_add_u32 v96, v5, 3, v96')
    a('s_lshl_b32 s12, s7, 5\nv_xor_b32 v10, s12, v96')
    a('s_getreg_b32 s45, hwreg(HW_REG_XCC_ID, 0, 4)')
    a(f'v_mul_u32_u24 v24, {XS}, v5\nv_lshl_add_u32 v24, v2, 4, v24')
    a(f's_lshl_b32 s10, s5, 8\ns_add_u32 s10, s10, {XN}\nv_add_u32 v25, s10, v24')
    a(f's_lshl_b32 s10, s6, 7\ns_add_u32 s10, s10, {YL}\nv_add_u32 v24, s10, v24')
    a(f's_lshl_b32 s14, s3, 15\ns_lshl1_add_u32 s14, s12, s14\ns_lshl_b32 s13, s4, 8\ns_xor_b32 s58, s13, {rq*256}\ns_add_u32 s58, s14, s58\ns_add_u32 s58, s58, {WS_Q}')
    a(f's_lshl2_add_u32 s59, s13, s14\ns_add_u32 s59, s59, {WS_H}')
    a('v_lshlrev_b32 v106, 13, v3\nv_lshl_add_u32 v106, v2, 4, v106\nv_lshlrev_b32 v107, 4, v1\nv_mov_b32 v30, 0x3ff\nv_mov_b32 v31, 0xfffffc01')
    s.pack24_consts()
    a('s_mov_b32 s13, 1')
    a('s_waitcnt vmcnt(0)' if kw.get('safeB') else 's_waitcnt vmcnt(4)')
    if not kw.get('ackst'): s.stamp(2)
    a('L_ln:')
    s.layernorm(12, 16, 32)
    a(f'ds_write2_b64 v11, v[12:13], v[14:15] offset1:2\nv_add_u32 v11, {YL-XN}, v11')
    a('s_sub_u32 s13, s13, 1\ns_cbranch_scc0 L_ln')
    s.stamp(3)
    a('s_waitcnt vmcnt(0) lgkmcnt(0)')
    if kw.get('st_tile'): s.stamp(5)
    s.signal(C_WA)
    s.tag_finish()
    a(f'v_mov_b32 v111, s44\nv_mov_b32 v115, s44\nds_write_b32 v8, v111 offset:{TAGW}')
    s.wait_flag(C_WA, 4, extra=[f'ds_read_b64 v[28:29], v8 offset:{T_A}'] + [x for t in range(4) for x in (f'ds_read_b128 v[{64+4*t}:{67+4*t}], v25 offset:{t*64}',
                f'ds_read_b64_tr_b16 v[{40+4*t}:{41+4*t}], v10 offset:{WA+t*4096}', f'ds_read_b64_tr_b16 v[{42+4*t}:{43+4*t}], v10 offset:{WA+t*4096+2048}')])
    for t in range(4):
        a(f's_waitcnt lgkmcnt({9-3*t})')
        s.mfma(16, 40 + 4 * t, 64 + 4 * t, t == 0)
        if t == 0: a('v_sub_u32 v110, v28, v29\nv_min_u32 v28, v28, v29')
        if t == 1: a('v_cmp_ne_u32 vcc, 0, v28\nv_med3_i32 v110, v110, v30, v31')
        if t == 2: a('v_cndmask_b32 v110, 0, v110, vcc\nv_lshl_or_b32 v110, v110, 4, s45')
    for t in range(2): a(f'ds_read_b128 v[{80+4*t}:{83+4*t}], v24 offset:{t*64}')
    a('s_mov_b32 exec_lo, 0x000f000f\ns_mov_b32 exec_hi, 0x000f000f')
    a('v_cvt_pk_bf16_f32 v108, v16, v17\nv_cvt_pk_bf16_f32 v109, v18, v19')
    a('buffer_store_dwordx4 v[108:111], v106, s[40:43], s58 offen')
    if kw.get('qe'): s.signal(C_QP)
    else: a('s_mov_b64 exec, -1')
    if not kw.get('ackst'): s.stamp(4)
    s.wait_flag(C_G, TH['1'][1], extra=[f'ds_read_b64_tr_b16 v[{40+2*t}:{41+2*t}], v10 offset:{W1+t*2048}' for t in range(4)], sleep=1)
    for t in range(2):
        a(f's_waitcnt lgkmcnt({2-2*t})')
        s.mfma(16, 40 + 4 * t, 80 + 4 * t, t == 0)
    a('s_mov_b32 exec_lo, 0x000f000f\ns_mov_b32 exec_hi, 0x000f000f')
    s.pack24(112, 16, 17, 18, 19)
    a('buffer_store_dwordx4 v[112:115], v107, s[40:43], s59 offen')
    if kw.get('he'): s.signal(C_HP)
    else: a('s_mov_b64 exec, -1')
    if 'Q' in kw.get('kill', ''): a('s_branch L_end')
    a(f's_lshl_b32 s10, s7, 13\ns_add_u32 s10, s10, {KB}')
    a(f'v_xor_b32 v10, v2, v3\nv_lshlrev_b32 v10, 4, v10\nv_lshl_add_u32 v10, v3, 8, v10\nv_add_u32 v102, {QL}, v10\nv_add_u32 v10, s10, v10')
    a('v_xor_b32 v103, 64, v102\nv_xor_b32 v104, 128, v102\nv_xor_b32 v105, 192, v102')
    a('v_xor_b32 v11, 64, v10\nv_xor_b32 v12, 128, v10\nv_xor_b32 v13, 192, v10')
    a(f's_lshl_b32 s10, s7, 2\ns_add_u32 s10, s10, {MX}\nv_lshlrev_b32 v15, 4, v5\nv_add_u32 v24, s10, v15\nv_add_u32 v15, {MX}, v15\ns_add_u32 s10, s10, {FP-MX}\nv_mov_b32 v14, s10')
    a(f's_lshl_b32 s10, s7, 10\ns_add_u32 s10, s10, {PL}\nv_lshlrev_b32 v25, 4, v1\nv_add_u32 v26, s10, v25\nv_add_u32 v25, {PL}, v25')
    a('v_and_b32 v28, 7, v27\ns_lshl_b32 s10, s7, 1\nv_xor_b32 v28, s10, v28\nv_lshlrev_b32 v28, 5, v28\nv_lshl_add_u32 v28, v27, 8, v28\nv_lshl_add_u32 v28, v5, 3, v28')
    a(f'v_add_u32 v28, {VB}, v28\nv_xor_b32 v29, 32, v28')
    a(f's_lshr_b32 s10, s7, 1\ns_lshl_b32 s11, s10, 13\ns_add_u32 s11, s11, {WO}')
    a('v_add_u32 v96, s11, v96\nv_xor_b32 v97, 32, v96\nv_xor_b32 v98, 64, v96\nv_xor_b32 v99, 96, v96')
    a('v_lshlrev_b32 v30, 14, v3\nv_lshl_add_u32 v30, v2, 8, v30')
    a(f's_lshl_b32 s14, s3, 16\ns_add_u32 s14, s14, {WS_O}')
    a('s_lshr_b32 s11, s4, 4\ns_lshl2_add_u32 s11, s11, s7\ns_lshl_b32 s11, s11, 11\ns_and_b32 s12, s4, 15\ns_lshl4_add_u32 s11, s12, s11')
    a('v_lshlrev_b32 v31, 4, v1')
    a('s_xor_b32 s12, s3, s6\ns_and_b32 s12, s12, 4\ns_lshl_b32 s12, s12, 11\nv_or_b32 v101, s12, v31')
    a('s_lshl_b32 s15, s5, 14\ns_add_u32 s15, s15, s14\ns_lshl_b32 s10, s10, 12\ns_add_u32 s15, s15, s10\ns_and_b32 s10, s7, 1\ns_lshl_b32 s12, s10, 13\ns_add_u32 s15, s15, s12')
    a('s_add_u32 s14, s14, s11')
    a(f'v_lshlrev_b32 v100, 9, v2\nv_lshl_add_u32 v100, v3, 4, v100\nv_add_u32 v100, {RED}, v100')
    a(f's_lshr_b32 s10, s3, 1\ns_lshl2_add_u32 s56, s6, s10\ns_and_b32 s10, s3, 1\ns_lshl2_add_u32 s56, s56, s10\ns_lshl2_add_u32 s56, s56, s5\ns_lshl_b32 s56, s56, 10\ns_add_u32 s56, s56, {WS_S}\ns_add_u32 s63, s56, 8192')
    a('v_lshrrev_b32 v119, 1, v1\nv_lshlrev_b32 v119, 10, v119\nv_and_b32 v16, 1, v1\nv_lshl_add_u32 v119, v16, 4, v119')
    a(f's_lshl_b32 s60, s3, 15\ns_lshl_b32 s11, s4, 5\ns_add_u32 s60, s60, s11\ns_add_u32 s62, s60, {WS_M}\ns_add_u32 s60, s60, {WS_S}')
    a('v_lshl_add_u32 v117, v2, 13, v119')
    a(f's_lshl_b32 s60, s3, 16\ns_add_u32 s60, s60, s11\ns_add_u32 s60, s60, {WS_S}')
    a(f's_mov_b32 s13, {hex(f2u(CSC))}')
    a('s_mov_b32 s12, s13')
    for k in range(4): a(f'v_mov_b32 v{124+k}, {hex(ONE2)}')
    kt = TH['k'][1::2]
    a(f's_lshl_b32 s57, s7, 3\ns_lshr_b32 s57, {kt[0] | kt[1] << 8 | kt[2] << 16 | kt[3] << 24}, s57\ns_and_b32 s57, s57, 0xff')
    if not kw.get('qe'):
        a('s_waitcnt vmcnt(1)')
        s.signal(C_QP)
    if not kw.get('he'):
        a('s_waitcnt vmcnt(0)')
        s.signal(C_HP)
    s.wait_flag(C_G, 's57', sleep=1)
    for u in range(2):
        for t in range(4):
            a(f'ds_read_b128 v[{32+16*u+4*t}:{35+16*u+4*t}], v{10+t} offset:{u*4096}')
    if not kw.get('st_tile') and not kw.get('ackst'): s.stamp(5)
    s.wait_flag(F_Q, 1, extra=[f'ds_read_b128 v[{64+4*t}:{67+4*t}], v{102+t}' for t in range(4)], sleep=kw.get('fqs', 0))
    s.stamp(6)
    a('v_readfirstlane_b32 s47, v9')
    a('s_cmp_lg_u32 s47, 1\ns_cbranch_scc1 L_qrem')
    a('L_qgo:')
    DP = lambda op, d, x, y, m, rm='0xf': f'{op}_dpp {d}, {x}, {y} {m} row_mask:{rm} bank_mask:0xf'
    for u in range(2):
        for t in range(4):
            if u == 0: a(f's_waitcnt lgkmcnt({3-t})')
            s.mfma(16 + 4 * u, 32 + 16 * u + 4 * t, 64 + 4 * t, t == 0)
    if kw.get('safeC'): a('s_nop 15')
    a('v_mov_b32 v40, s44\nv_mov_b32 v47, s44\nv_mov_b32 v123, s44')
    for u in range(2):
        for k in range(4): a(DP('v_add_f32', f'v{16+4*u+k}', f'v{16+4*u+k}', f'v{16+4*u+k}', 'row_ror:4'))
        for k in range(4): a(DP('v_add_f32', f'v{16+4*u+k}', f'v{16+4*u+k}', f'v{16+4*u+k}', 'row_ror:8'))
        if u == 0: a('v_max3_f32 v10, v16, v17, v18')
    a('v_max3_f32 v10, v10, v19, v20\nv_max3_f32 v11, v21, v22, v23\nv_max_f32 v10, v10, v11\nv_max_f32 v11, v10, v11')
    a('v_permlane16_swap_b32 v11, v10\nv_max_f32 v10, v11, v10\nv_max_f32 v11, v11, v10')
    a('v_permlane32_swap_b32 v11, v10\nv_max_f32 v10, v11, v10\nv_or_b32 v10, 1, v10')
    WB = 128; VR = 160
    vrd = lambda t: [f'ds_read_b64_tr_b16 v[{VR+8*t+4*T+2*u}:{VR+1+8*t+4*T+2*u}], v{28+T} offset:{t*8192+u*4096}' for T in range(2) for u in range(2)]
    cw = lambda n: 0 if (s.stamps and not kw.get('lean')) else n
    a('ds_write_b32 v24, v10')
    a(f'ds_read_b128 v[32:35], v15\nds_read_b32 v9, v8 offset:{C_G}')
    for x in vrd(0) + vrd(1) + vrd(2): a(x)
    a(f's_waitcnt lgkmcnt({cw(13)})\ns_branch L_mx2')
    a('L_mx:')
    a('ds_read_b128 v[32:35], v15')
    s.budget()
    a('s_waitcnt lgkmcnt(0)')
    a('L_mx2:')
    a('v_min3_u32 v11, v32, v33, v34\nv_max3_f32 v10, v32, v33, v34\nv_min_u32 v11, v11, v35\nv_max_f32 v10, v10, v35\nv_cmp_eq_u32 vcc, 0, v11\nv_mul_f32 v116, s13, v10\ns_cbranch_vccnz L_mx')
    for k in range(4): a(f'v_pk_fma_f32 v[{16+2*k}:{17+2*k}], v[{16+2*k}:{17+2*k}], s[12:13], v[116:117] op_sel_hi:[1,1,0] neg_lo:[0,0,1] neg_hi:[0,0,1]')
    for k in range(8): a(f'v_exp_f32 v{16+k}, v{16+k}')
    for k in range(4): a(f'v_cvt_pk_bf16_f32 v{32+k}, v{16+2*k}, v{17+2*k}')
    a('ds_write_b128 v26, v[32:35]\nds_write_b32 v14, v6')
    a('L_pw:')
    a(f'ds_read_b128 v[36:39], v8 offset:{FP}')
    for t in range(4): a(f'ds_read_b128 v[{64+4*t}:{67+4*t}], v25 offset:{t*1024}')
    a(f'ds_read_b32 v118, v8 offset:{C_G}')
    for x in vrd(3): a(x)
    a('v_mov_b32 v41, v116')
    s.budget()
    a(f's_waitcnt lgkmcnt({cw(9)})\nv_min3_u32 v11, v36, v37, v38\nv_min_u32 v11, v11, v39\nv_cmp_eq_u32 vcc, 0, v11\ns_cbranch_vccnz L_pw')
    s.stamp(7)
    def wo_reads(kss=(0, 1)):
        for ks in kss:
            for T in range(4):
                for u in range(2):
                    r = WB + 16 * ks + 4 * T + 2 * u
                    a(f'ds_read_b64_tr_b16 v[{r}:{r+1}], v{96+T} offset:{ks*4096+u*2048}')
    early = False
    a(f'v_cmp_gt_u32 vcc, {TH["v"][5]}, v9\ns_cbranch_vccz L_v012')
    s.wait_flag(C_G, TH['v'][5], extra=vrd(0) + vrd(1) + vrd(2), sleep=2)
    a('s_waitcnt lgkmcnt(0)')
    a('L_v012:')
    for t in range(3):
        a(f's_waitcnt lgkmcnt({8-t})')
        for T in range(2): s.mfma(16 + 4 * T, VR + 8 * t + 4 * T, 64 + 4 * t, t == 0)
        s.mfma(56, 124, 64 + 4 * t, t == 0)
    a('s_waitcnt lgkmcnt(4)')
    s.mfma(56, 124, 76, False)
    a(f'v_cmp_gt_u32 vcc, {TH["v"][7]}, v118\ns_cbranch_vccz L_v3')
    s.wait_flag(C_G, TH['v'][7], extra=vrd(3), sleep=kw.get('v3s', 0))
    a('L_v3:')
    if not kw.get('ind'): s.stamp(8)
    for T in range(2):
        a(f's_waitcnt lgkmcnt({2-2*T})')
        s.mfma(16 + 4 * T, VR + 24 + 4 * T, 76, False)
    a('v_mov_b32 v46, v56')
    a('s_mov_b32 exec_lo, 0x000f000f\ns_mov_b32 exec_hi, 0x000f000f\ns_cmp_eq_u32 s47, 1')
    for k in range(4): a(f'v_cvt_pk_bf16_f32 v{42+k}, v{16+2*k}, v{17+2*k}')
    a('s_cbranch_scc0 L_orem')
    a('buffer_store_dwordx4 v[40:43], v30, s[40:43], s14 offen\nbuffer_store_dwordx4 v[44:47], v30, s[40:43], s14 offen offset:1024')
    a('L_ost:')
    a('s_mov_b64 exec, -1')
    s.stamp(9)
    if kw.get('ackst'):
        a('s_waitcnt vmcnt(0)')
        s.stamp(5)
    if 'D' in kw.get('kill', ''): a('s_branch L_end')
    if kw.get('od0'): a(f's_sleep {kw["od0"]}')
    OE = kw.get('oe')
    if OE is not None:
        if OE: s.wait_flag(C_G, len(order) - OE)
    elif kw.get('obar'): a('s_barrier')
    if kw.get('ind'):
        if not early:
            s.wait_flag(C_G, TH['o'][3])
            wo_reads()
            early = True
        a('s_mov_b32 exec_hi, 0')
        a('L_ipoll:')
        a('buffer_load_dword v48, v101, s[40:43], s15 offen offset:1036 sc1')
        s.budget()
        if kw.get('isl'):
            a(f's_waitcnt vmcnt(0)\nv_cmp_ne_u32 vcc, s44, v48\ns_cbranch_vccz L_idone\ns_sleep {kw["isl"]}\ns_branch L_ipoll\nL_idone:')
        else:
            a('s_waitcnt vmcnt(0)\nv_cmp_ne_u32 vcc, s44, v48\ns_cbranch_vccnz L_ipoll')
        a('s_mov_b32 exec_hi, -1')
        s.stamp(8)
    for k in range(4): a(f'buffer_load_dwordx4 v[{48+4*k}:{51+4*k}], v31, s[40:43], s15 offen offset:{k*1024} sc1')
    if OE == 1 and kw.get('wsplit'):
        wo_reads((0,))
        a('s_barrier')
        wo_reads((1,))
        a(f'ds_read_b32 v9, v8 offset:{F_K}')
    else:
        if OE is not None: a('s_barrier')
        a(f'ds_read_b32 v9, v8 offset:{F_K}')
        wo_reads()
    if s.stamps:
        if kw.get('ackst'):
            a('s_waitcnt vmcnt(0)')
            s.stamp(2)
        a('s_mov_b32 s61, 0')
    a('s_branch L_opoll')
    a('L_oretry:')
    a('s_mov_b64 exec, vcc')
    if s.stamps: a('s_add_u32 s61, s61, 1')
    if kw.get('osl'): a(f's_sleep {kw["osl"]}')
    for k in range(4): a(f'buffer_load_dwordx4 v[{48+4*k}:{51+4*k}], v31, s[40:43], s15 offen offset:{k*1024} sc1')
    a('s_mov_b64 exec, -1')
    s.budget()
    if kw.get('al'): a('.p2align 3')
    a('L_opoll:')
    a('s_waitcnt vmcnt(0) lgkmcnt(0)')
    a('v_xor_b32 v10, s44, v48\nv_bitop3_b32 v10, v55, s44, v10 bitop3:0xbe\nv_bitop3_b32 v10, v56, s44, v10 bitop3:0xbe\nv_bitop3_b32 v10, v63, s44, v10 bitop3:0xbe')
    a('v_cmp_ne_u32 vcc, 0, v10\ns_cbranch_vccnz L_oretry')
    s.stamp(11)
    if s.stamps: a('s_mul_i32 s61, s61, 100\ns_add_u32 s70, s64, s61')
    M8 = ('quad_perm:[1,0,3,2]', 'quad_perm:[2,3,0,1]', 'row_half_mirror')
    D = lambda op, d, x, y, m, rm='0xf': f'{op}_dpp {d}, {x}, {y} {m} row_mask:{rm} bank_mask:0xf'
    R = lambda m, rm: f'v_mov_b32_dpp v23, v21 {m} row_mask:{rm} bank_mask:0xf'
    wv = [D('v_max_f32', 'v20', 'v49', 'v49', M8[0]), None, D('v_max_f32', 'v20', 'v20', 'v20', M8[1]), None, D('v_max_f32', 'v20', 'v20', 'v20', M8[2]),
          'v_sub_f32 v21, v49, v20', 'v_exp_f32 v21, v21', None, 'v_mul_f32 v22, v54, v21', 'v_mov_b32 v23, v21', None,
          D('v_add_f32', 'v22', 'v22', 'v22', M8[0]), R('row_ror:12', '0x2'), None, D('v_add_f32', 'v22', 'v22', 'v22', M8[1]), R('row_ror:8', '0x4'), None,
          D('v_add_f32', 'v22', 'v22', 'v22', M8[2]), R('row_ror:4', '0x8'), 'v_rcp_f32 v22, v22', None]
    mf = [(32 + 4 * T, 50 + 8 * ks, WB + 16 * ks + 4 * T, ks == 0) for ks in range(2) for T in range(4)]
    s.mfma(*mf.pop(0))
    for x in wv:
        if x is None: s.mfma(*mf.pop(0))
        else: a(x)
    assert not mf
    a('v_mul_f32 v21, v22, v23')
    a(D('v_mul_f32', 'v21', 'v22', 'v23', 'row_ror:8', '0xc'))
    for T in range(4): a(D('v_mul_f32', f'v{16+T}', 'v21', f'v{32+4*T}', 'row_newbcast:0'))
    for r in range(1, 4):
        for T in range(4): a(D('v_fmac_f32', f'v{16+T}', 'v21', f'v{32+4*T+r}', f'row_newbcast:{r}'))
    a(f'ds_write_b128 v26, v[16:19] offset:{RED-PL}')
    if kw.get('nf'): a('v_xor_b32 v10, v9, v101\nv_xor_b32 v11, 0x2000, v10')
    a('v_add_u32 v117, v117, v9\ns_cmp_lg_u32 s7, 0')
    a('s_waitcnt lgkmcnt(0)\ns_barrier')
    s.stamp(12)
    a('s_cbranch_scc1 ' + ('L_wb' if kw.get('fw') else 'L_end'))
    for k in range(4): a(f'ds_read_b128 v[{48+4*k}:{51+4*k}], v100 offset:{(k>>1)*2048+(k&1)*256}')
    a('s_waitcnt lgkmcnt(2)')
    a('v_pk_add_f32 v[48:49], v[48:49], v[52:53]\nv_pk_add_f32 v[50:51], v[50:51], v[54:55]')
    a('s_waitcnt lgkmcnt(1)')
    a('v_pk_add_f32 v[48:49], v[48:49], v[56:57]\nv_pk_add_f32 v[50:51], v[50:51], v[58:59]')
    a('s_waitcnt lgkmcnt(0)')
    a('v_pk_add_f32 v[48:49], v[48:49], v[60:61]\nv_pk_add_f32 v[50:51], v[50:51], v[62:63]')
    s.pack24(120, 48, 49, 50, 51)
    if kw.get('nf'):
        a('buffer_store_dwordx4 v[120:123], v10, s[40:43], s56 offen sc1')
        if kw.get('nfs'): a(f's_sleep {kw["nfs"]}')
        a('buffer_store_dwordx4 v[120:123], v11, s[40:43], s56 offen sc1')
    else:
        a('buffer_store_dwordx4 v[120:123], v31, s[40:43], s56 offen sc1\nbuffer_store_dwordx4 v[120:123], v31, s[40:43], s63 offen sc1')
    s.stamp(13)
    fw = kw.get('fw', 0)
    if fw:
        a('s_branch L_end')
        a('L_wb:')
        a(f's_cmp_lg_u32 s7, {fw}\ns_cbranch_scc1 L_end')
        if kw.get('d0'): a(f's_sleep {kw["d0"]}')
    LA = 'buffer_load_dwordx4 v[16:19], v117, s[40:43], s60 offen sc1'
    LB_ = 'buffer_load_dwordx4 v[20:23], v117, s[40:43], s60 offen sc1'
    a('L_mpoll:')
    a('buffer_load_dwordx4 v[32:35], v119, s[40:43], s62 offen sc1')
    a(f'v_lshlrev_b32 v14, 3, v1\nv_add_u32 v14, {GX}, v14\nds_read_b64 v[12:13], v14')
    s.unpack24_consts()
    s.srd_const(48, 4096); s.srd(48, 36)
    a('s_mov_b32 s56, 0x00030003\ns_mov_b32 s57, s56')
    a('v_and_b32 v11, 1, v1\nv_lshlrev_b32 v14, 5, v2\nv_lshl_add_u32 v14, v11, 1, v14')
    a('s_lshl_b32 s11, s5, 10\ns_lshl_b32 s12, s3, 7\ns_add_u32 s11, s11, s12\ns_lshl2_add_u32 s11, s6, s11')
    if kw.get('d1'): a(f's_sleep {kw["d1"]}')
    a(LA)
    if kw.get('d2'): a(f's_sleep {kw["d2"]}')
    a(LB_)
    s.budget()
    a('s_waitcnt vmcnt(2)\nv_cmp_ne_u32 vcc, s44, v35\ns_cbranch_vccnz L_mpoll')
    s.stamp(10)
    s.unpack24(32)
    s.reduce32(32)
    a('s_waitcnt lgkmcnt(0)')
    s.round_bf16('v32')
    a('v_add_f32 v32, v32, v12')
    s.round_bf16('v32')
    a(f'v_mul_f32 v33, {hex(f2u(-math.log2(math.e)))}, v32\nv_exp_f32 v33, v33\nv_add_f32 v33, 1.0, v33\nv_rcp_f32 v33, v33\nv_mul_f32 v12, v32, v33')
    s.round_bf16('v12')
    a('L_fpoll:')
    a('s_waitcnt vmcnt(1)\nv_cmp_ne_u32 vcc, s44, v19\ns_cbranch_vccz L_fdone')
    if kw.get('d4'): a(f's_sleep {kw["d4"]}')
    a(LA)
    s.budget()
    a('s_waitcnt vmcnt(1)\nv_cmp_ne_u32 vcc, s44, v23\ns_cbranch_vccz L_fdoneB')
    if kw.get('d3'): a(f's_sleep {kw["d3"]}')
    a(LB_ + '\ns_branch L_fpoll')
    def finish(r):
        s.stamp(14)
        s.unpack24(r)
        s.reduce32(r)
        if kw.get('exactfin', 0):
            s.round_bf16(f'v{r}')
            a(f'v_mul_f32 v{r}, v{r}, v12')
            s.round_bf16(f'v{r}')
            a(f'v_add_f32 v{r}, v{r}, v13')
        else:
            a(f'v_fma_f32 v{r}, v{r}, v12, v13')
        a('s_mov_b64 exec, s[56:57]')
        a(f'v_cvt_pk_bf16_f32 v{r}, v{r}, v{r}')
        a(f'buffer_store_short v{r}, v14, s[48:51], s11 offen')
    a('L_fdoneB:')
    finish(20)
    a('s_branch L_epoch')
    a('L_fdone:')
    finish(16)
    a('L_epoch:')
    s.stamp(15)
    a('s_cmp_lg_u32 s2, 0\ns_cbranch_scc1 L_end')
    a('s_mov_b64 exec, 1\nbuffer_store_dword v123, v8, s[40:43], 0 offen')
    a('s_branch L_end')

    a('L_qrem:')
    a('s_mov_b32 exec_lo, 0x000f000f\ns_mov_b32 exec_hi, 0x000f000f')
    a('buffer_store_dwordx4 v[108:111], v106, s[40:43], s58 offen sc1\nbuffer_store_dwordx4 v[112:115], v107, s[40:43], s59 offen sc1')
    a('s_mov_b64 exec, -1')
    a('L_qrem2:')
    a(f'ds_read_b32 v9, v8 offset:{F_Q}')
    for t in range(4): a(f'ds_read_b128 v[{64+4*t}:{67+4*t}], v{102+t}')
    s.budget()
    a('s_waitcnt lgkmcnt(0)\nv_readfirstlane_b32 s47, v9\ns_cmp_eq_u32 s47, 4\ns_cbranch_scc0 L_qgo\ns_sleep 2\ns_branch L_qrem2')
    if kw.get('wb') is not None:
        a('L_wb:')
        a(f's_cmp_lg_u32 s7, 1\ns_cbranch_scc1 L_end\ns_and_b32 s10, s4, {kw["wb"]}\ns_cbranch_scc1 L_end')
        if kw.get('wbd'): a(f's_sleep {kw["wbd"]}')
        a('buffer_wbl2 sc1\ns_branch L_end')
    a('L_orem:')
    a('buffer_store_dwordx4 v[40:43], v30, s[40:43], s14 offen sc1\nbuffer_store_dwordx4 v[44:47], v30, s[40:43], s14 offen offset:1024 sc1')
    a('s_branch L_ost')
    a('L_P:')
    if 'P' in kw.get('kill', ''): a('s_waitcnt lgkmcnt(0)\ns_branch L_end')
    a('s_setprio 3')
    a('s_getreg_b32 s45, hwreg(HW_REG_XCC_ID, 0, 4)')
    a('v_and_b32 v5, 3, v1')
    a(f's_lshl_b32 s10, s3, 15\ns_lshl_b32 s12, s4, 10\ns_add_u32 s12, s12, s10')
    a('s_waitcnt lgkmcnt(0)')
    if kw.get('warmq'):
        a(f'v_and_b32 v10, 7, v1\nv_lshlrev_b32 v10, 7, v10\nv_and_b32 v11, 8, v1\nv_lshl_add_u32 v10, v11, 15, v10\ns_add_u32 s11, s12, {WS_Q}')
        a(f's_mov_b64 exec, {0xff if kw["warmq"] == 1 else 0xffff}\nbuffer_load_dword v7, v10, s[40:43], s11 offen {kw.get("warmqfl", "")}\ns_mov_b64 exec, -1')
    a(f's_lshl_b32 s11, s5, 13\ns_add_u32 s10, s10, s11\ns_add_u32 s10, s10, {WS_Q}\ns_add_u32 s15, s10, 4096')
    a('v_lshlrev_b32 v10, 4, v1')
    a(f'v_lshrrev_b32 v11, 5, v1\nv_and_b32 v12, 31, v1\nv_lshlrev_b32 v13, 3, v12\nv_lshlrev_b32 v14, 4, v11\nv_xor_b32 v13, v13, v14\nv_lshl_add_u32 v13, v11, 8, v13\nv_add_u32 v22, {QL}, v13')
    for c in range(1, 8): a(f'v_xor_b32 v{22+c}, {c*32}, v22')
    a(f's_mov_b32 s14, {kw.get("nfast", 48)}')
    a('s_waitcnt lgkmcnt(0)')
    s.stamp(1)
    if 'W' in kw.get('kill', ''): a('s_branch L_end')
    if kw.get('qs'): a(f's_sleep {kw["qs"]}')
    if kw.get('qg'): s.wait_flag(C_G, kw['qg'], sleep=1)
    s.wait_flag(C_QP, 4, sleep=1, extra=[f'ds_read_b32 v15, v8 offset:{TAGW}'])
    a('s_waitcnt lgkmcnt(0)\nv_readfirstlane_b32 s44, v15')
    if q0: a(f's_sleep {q0}')
    s.stamp(2)
    a('L_qpoll:')
    for c in range(8): a(f'buffer_load_dwordx4 v[{32+4*c}:{35+4*c}], v10, s[40:43], s{10 if c < 4 else 15} offen offset:{(c&3)*1024} sc1 {kw.get("qnt", "")}')
    s.budget()
    a('s_waitcnt vmcnt(0)')
    a('v_xor_b32 v15, s44, v35')
    for c in range(1, 8): a(f'v_bitop3_b32 v15, v{35+4*c}, s44, v15 bitop3:0xbe')
    a('v_cmp_ne_u32 vcc, 0, v15\ns_cbranch_vccz L_qgot')
    a(f's_mov_b64 exec, vcc\ns_sub_u32 s14, s14, 1\ns_cbranch_scc0 L_qpoll')
    a(f'v_mov_b32 v15, 4\nds_write_b32 v8, v15 offset:{F_Q}\ns_branch L_qpoll')
    a('L_qgot:')
    a('s_mov_b64 exec, -1')
    a('v_xor_b32 v15, s45, v34')
    for c in range(8):
        a(f'ds_write_b64 v{22+c}, v[{32+4*c}:{33+4*c}] offset:{c*512}')
        if c < 7: a(f'v_bitop3_b32 v15, v{38+4*c}, s45, v15 bitop3:0xbe')
    a('v_and_b32 v15, 15, v15\nv_cmp_ne_u32 vcc, 0, v15\ns_cmp_eq_u64 vcc, 0\ns_cselect_b32 s47, 1, 2')
    if kw.get('force_remote'): a('s_mov_b32 s47, 2')
    a(f'v_mov_b32 v15, s47\nds_write_b32 v8, v15 offset:{F_Q}')
    s.stamp(3)
    a('v_add3_u32 v16, v34, v38, v42\nv_add3_u32 v17, v46, v50, v54\nv_add3_u32 v16, v16, v58, v62\nv_add_u32 v16, v16, v17')
    for m in ('quad_perm:[1,0,3,2] row_mask:0xf', 'quad_perm:[2,3,0,1] row_mask:0xf', 'row_half_mirror row_mask:0xf', 'row_mirror row_mask:0xf', 'row_bcast:15 row_mask:0xa', 'row_bcast:31 row_mask:0xc'):
        a(f'v_add_u32_dpp v16, v16, v16 {m} bank_mask:0xf')
    if kw.get('cntvote'):
        a('s_mov_b32 s11, 0')
        for c in range(8): a(f'v_cmp_gt_u32 vcc, 16, v{34+4*c}\ns_bcnt1_i32_b64 s10, vcc\ns_add_u32 s11, s11, s10')
        a('s_add_u32 s74, s64, s11')
    if kw.get('sgnvote'): a(f'v_readlane_b32 s10, v16, 63\ns_ashr_i32 s10, s10, 13\ns_add_u32 s10, s10, 400\ns_add_u32 s74, s64, s10')
    if kw.get('absvote'): a('v_readlane_b32 s10, v16, 63\ns_ashr_i32 s10, s10, 13\ns_abs_i32 s10, s10\ns_min_u32 s10, s10, 300\ns_sub_u32 s10, 300, s10\ns_add_u32 s74, s64, s10')
    if kw.get('recvote'): a('v_readlane_b32 s10, v16, 63\ns_ashr_i32 s10, s10, 13\ns_add_u32 s10, s10, 1000\ns_add_u32 s74, s64, s10')
    a('v_readlane_b32 s10, v16, 63\ns_cmp_lt_i32 s10, 0\ns_cselect_b32 s10, 0, 8192')
    if kw.get('kflip'): a('s_xor_b32 s10, s10, 8192')
    a(f'v_mov_b32 v15, s10\nds_write_b32 v8, v15 offset:{F_K}')
    a(f's_lshl_b32 s11, s12, 1\ns_add_u32 s11, s11, {WS_O}')
    a(f's_lshl2_add_u32 s12, s3, s5\ns_lshl4_add_u32 s12, s12, s6\ns_lshl_b32 s12, s12, 10\ns_add_u32 s12, s12, s10\ns_add_u32 s12, s12, {WS_S - 2048}')
    a('v_lshlrev_b32 v10, 7, v1\nv_add_u32 v11, s12, v10\nv_add_u32 v10, s11, v10\nv_cmp_gt_u32 vcc, 16, v1\nv_cndmask_b32 v10, v11, v10, vcc')
    if kw.get('wg'): s.wait_flag(C_G, kw['wg'], sleep=2)
    if kw.get('nowarm') == 1: pass
    elif kw.get('nowarm') == 2: a('s_mov_b64 exec, 0xffffff\nbuffer_load_dword v7, v10, s[40:43], 0 offen nt')
    elif kw.get('nowarm') == 3: a('s_mov_b64 exec, 0xffff\nbuffer_load_dword v7, v10, s[40:43], 0 offen nt')
    elif kw.get('ont'):
        a('s_mov_b64 exec, 0xffff\nbuffer_load_dword v7, v10, s[40:43], 0 offen nt\ns_mov_b64 exec, 0xff0000\nbuffer_load_dword v7, v10, s[40:43], 0 offen')
    else:
        a('s_mov_b64 exec, 0xffffff\nbuffer_load_dword v7, v10, s[40:43], 0 offen')
    a('s_branch L_end')

    a('L_M:')
    if kw.get('mprio') is not None: a(f's_setprio {kw["mprio"]}\ns_branch L_M2')
    if 'M' in kw.get('kill', ''): a('s_waitcnt lgkmcnt(0)\ns_branch L_end')
    a('s_setprio 3')
    a('L_M2:')
    a('v_bfe_u32 v4, v1, 2, 2\nv_and_b32 v5, 3, v1')
    a('v_lshl_add_u32 v10, v4, 2, v2')
    a('v_lshlrev_b32 v11, 3, v10')
    a('v_lshlrev_b32 v10, 4, v1')
    s.mlp_slot(11, 15)
    a('s_lshl3_add_u32 s15, s5, s3\ns_lshl_b32 s11, s11, 6')
    a('v_and_b32 v24, 1, v1\nv_lshlrev_b32 v25, 5, v2\nv_lshl_add_u32 v25, v24, 1, v25')
    a('s_lshl_b32 s12, s3, 7\ns_lshl2_add_u32 s12, s6, s12\ns_lshl_b32 s13, s5, 10\ns_add_u32 s13, s13, s12')
    s.srd_const(56, 3584); s.srd_const(60, 1024); s.srd_const(96, 4096)
    a('s_waitcnt lgkmcnt(0)')
    s.srd(56, 30); s.srd(60, 34); s.srd(96, 16)
    if not kw.get('nosmall'):
        sf = kw.get('smallfl', '')
        a(f'buffer_load_ushort v16, v25, s[60:63], s12 offen {sf}')
        a('buffer_load_ushort v17, v25, s[96:99], s13 offen')
        a(f'buffer_load_dwordx2 v[14:15], v11, s[56:59], s11 offen {sf}')
    a(f'v_mul_u32_u24 v11, {HS}, v5\nv_lshl_add_u32 v11, v2, 4, v11\nv_lshrrev_b32 v12, 1, v4\nv_lshl_add_u32 v11, v12, 6, v11\nv_and_b32 v12, 1, v4\nv_lshl_add_u32 v11, v12, 3, v11\nv_add_u32 v11, {HL}, v11')
    a(f'v_mul_u32_u24 v12, {HS}, v4\nv_lshl_add_u32 v12, v2, 4, v12\nv_add_u32 v12, {HL}, v12')
    a(f'v_lshl_add_u32 v27, v2, 2, v4\nv_bfe_u32 v28, v27, 1, 2\nv_lshlrev_b32 v28, 5, v28\nv_lshl_add_u32 v28, v27, 7, v28\nv_lshl_add_u32 v28, v5, 3, v28\nv_add_u32 v28, {W2}, v28')
    a('v_xor_b32 v29, 32, v28\nv_xor_b32 v30, 64, v28\nv_xor_b32 v31, 96, v28')
    a(f'v_lshlrev_b32 v13, 3, v1\nv_add_u32 v13, {GX}, v13')
    a('s_waitcnt vmcnt(1) lgkmcnt(0)')
    a('v_lshlrev_b32 v16, 16, v16\nv_lshlrev_b32 v17, 16, v17\nds_write_b64 v13, v[16:17]')
    if kw.get('hs'): a(f's_sleep {kw["hs"]}')
    s.wait_flag(C_HP, 4, sleep=1, extra=[f'ds_read_b32 v23, v8 offset:{TAGW}'])
    a('s_waitcnt lgkmcnt(0)\nv_readfirstlane_b32 s44, v23')
    s.pack24_consts(); s.unpack24_consts()
    if kw.get('hq'): s.wait_flag(F_Q, 1, sleep=1)
    if kw.get('h0', 8): a(f's_sleep {kw.get("h0", 8)}')
    a(f's_lshl2_add_u32 s10, s3, s5\ns_lshl_b32 s10, s10, 13\ns_add_u32 s10, s10, {WS_H}\ns_add_u32 s11, s10, 4096')
    s.stamp(2)
    a('L_hpoll:')
    for c in range(8): a(f'buffer_load_dwordx4 v[{32+4*c}:{35+4*c}], v10, s[40:43], s{10 + (c>>2)} offen offset:{(c&3)*1024} sc1 {kw.get("qnt", "")}')
    s.budget()
    a('s_waitcnt vmcnt(0)')
    a('v_xor_b32 v13, s44, v35')
    for c in range(1, 8): a(f'v_bitop3_b32 v13, v{35+4*c}, s44, v13 bitop3:0xbe')
    a('v_cmp_ne_u32 vcc, 0, v13\ns_cbranch_vccnz L_hpoll')
    s.stamp(3)
    for c in range(8): s.unpack24(32 + 4 * c)
    for st in (16, 8, 4):
        for r in range(32, 32 + st, 2): a(f'v_pk_add_f32 v[{r}:{r+1}], v[{r}:{r+1}], v[{r+st}:{r+st+1}]')
    a('v_cvt_pk_bf16_f32 v36, v32, v33\nv_cvt_pk_bf16_f32 v37, v34, v35')
    for k in range(2):
        a(f'v_lshlrev_b32 v{32+2*k}, 16, v{36+k}\nv_and_b32 v{33+2*k}, 0xffff0000, v{36+k}\nv_lshlrev_b32 v{40+2*k}, 16, v{14+k}\nv_and_b32 v{41+2*k}, 0xffff0000, v{14+k}')
    for k in range(4): a(f'v_add_f32 v{32+k}, v{32+k}, v{40+k}')
    a('v_cvt_pk_bf16_f32 v36, v32, v33\nv_cvt_pk_bf16_f32 v37, v34, v35')
    for k in range(2): a(f'v_lshlrev_b32 v{32+2*k}, 16, v{36+k}\nv_and_b32 v{33+2*k}, 0xffff0000, v{36+k}')
    K1 = -2 * math.sqrt(2 / math.pi) * math.log2(math.e)
    a(f'v_mov_b32 v44, {hex(f2u(K1))}')
    for k in range(4): a(f'v_mul_f32 v{36+k}, v{32+k}, v{32+k}')
    for k in range(4): a(f'v_fmamk_f32 v{36+k}, v{36+k}, {hex(f2u(K1*0.044715))}, v44')
    for k in range(4): a(f'v_mul_f32 v{36+k}, v{36+k}, v{32+k}')
    for k in range(4): a(f'v_exp_f32 v{36+k}, v{36+k}')
    for k in range(4): a(f'v_add_f32 v{36+k}, 1.0, v{36+k}')
    for k in range(4): a(f'v_rcp_f32 v{36+k}, v{36+k}')
    for k in range(4): a(f'v_mul_f32 v{32+k}, v{32+k}, v{36+k}')
    a('v_cvt_pk_bf16_f32 v40, v32, v33\nv_cvt_pk_bf16_f32 v41, v34, v35')
    a('ds_write_b64 v11, v[40:41]\nds_read_b128 v[48:51], v12\nds_read_b128 v[52:55], v12 offset:64')
    a(f's_add_u32 s10, s6, {r2}\ns_and_b32 s10, s10, 7\ns_lshl_b32 s10, s10, 5\ns_add_u32 s10, s10, s15\ns_lshl_b32 s10, s10, 10\ns_add_u32 s10, s10, {WS_M}')
    a('v_lshlrev_b32 v10, 4, v1\nv_mov_b32 v23, s44')
    s.wait_flag(C_G, TH['2'][1], sleep=1)
    for ks in range(2):
        for T in range(4):
            for u in range(2):
                r = 64 + 16 * ks + 4 * T + 2 * u
                a(f'ds_read_b64_tr_b16 v[{r}:{r+1}], v{28+T} offset:{ks*4096+u*2048}')
    a('s_waitcnt lgkmcnt(0)')
    for ks in range(2):
        for T in range(4): s.mfma(32 + 4 * T, 48 + 4 * ks, 64 + 16 * ks + 4 * T, ks == 0)
    s.pack24(20, 32, 36, 40, 44)
    a('buffer_store_dwordx4 v[20:23], v10, s[40:43], s10 offen sc1')
    s.stamp(4)
    a('L_end:')
    if kw.get('probe'):
        pw, pst, pm, pb = kw['probe']
        a(f's_waitcnt lgkmcnt(0)\ns_cmp_lg_u32 s7, {pw}\ns_cbranch_scc1 L_exit')
        if pw >= 4: a('s_barrier\ns_barrier' if kw.get('obar') and pw != 6 else 's_barrier')
        if kw.get('clk') == 1: a('s_memtime s[92:93]\ns_waitcnt lgkmcnt(0)\ns_sub_u32 s10, s92, s90\ns_lshr_b32 s10, s10, 1\ns_add_u32 s94, s64, s10')
        if kw.get('clk') == 2: a('s_memrealtime s[92:93]\ns_waitcnt lgkmcnt(0)\ns_sub_u32 s10, s92, s88\ns_mul_i32 s10, s10, 10\ns_add_u32 s94, s64, s10')
        if kw.get('px') is not None: a(f's_cmp_lg_u32 s45, {kw["px"]}\ns_cbranch_scc1 L_exit')
        if kw.get('pm') is not None: a(f's_mul_i32 s10, s45, {kw["pm"]}\ns_add_u32 s94, s64, s10')
        if kw.get('pg') is not None: a(f's_cmp_lg_u32 s3, {kw["pg"]}\ns_cbranch_scc1 L_exit')
        a(f's_sub_u32 s10, s{64+2*pst}, s64\ns_mul_i32 s10, s10, {pm}\ns_add_u32 s10, s10, {pb}\ns_min_u32 s10, s10, 20000')
        a('L_padloop:\ns_memrealtime s[12:13]\ns_waitcnt lgkmcnt(0)\ns_sub_u32 s11, s12, s64\ns_cmp_lt_u32 s11, s10\ns_cbranch_scc1 L_padloop')
    s.dump_stamps()
    a('L_exit:')
    a('s_endpgm')
    lines, added = hazard.fix(s.o, verbose=kw.get('verbose', False))
    return wrap('\n'.join(lines) + '\n', 256, NW * 64, kw.get('lds', LDS_TOTAL), kw.get('vgpr', 192))

if __name__ == '__main__':
    import ast
    out = sys.argv[1]
    kw = {}
    for x in sys.argv[2:]:
        k, v = x.split('=')
        try: kw[k] = ast.literal_eval(v)
        except Exception: kw[k] = v
    open(out, 'w').write(gen(**kw))
```

```python
import sys, math, struct
sys.path.insert(0, 'dev')
from common import *
import hazard

def f2u(x):
    return struct.unpack('<I', struct.pack('<f', x))[0]

NW = 7
FL = 0
WA, W1, KB, W2, VB, WO = [2048 + x for x in (0, 16384, 24576, 57344, 65536, 98304)]
XN = 2048 + 114688; XS = 1088
YL = XN + 4 * XS
QL = YL + 4 * XS
assert QL % 256 == 0
PL = QL + 4096
RED = PL + 4096
HL = RED + 4096; HS = 144
MX = 128
FP = 192
GX = HL + 640
LDS_TOTAL = GX + 512
C_WA, C_G, C_XN, F_Q, C_MX, C_P, F_WT, C_QP, C_Y, C_HP, T_A, T_B, F_K, TAGW = [4 * i for i in range(14)]

WS_Q = 0x1000
WS_H = WS_Q + 0x40000
WS_LSE = WS_H + 0x40000
WS_O = WS_LSE + 0x4000
WS_M = WS_O + 0x80000
WS_S = 0x150000
assert WS_S >= WS_M + 0x40000
WS_T = WS_S + 0x80000
WS_N = WS_T + 0x10000
WS_END = WS_T + 0x20000
assert WS_END <= 0x200000
STAMP = 0x8000000

class G:
    def __init__(s, **kw):
        s.o = []
        s.nl = 0
        s.kw = kw
        s.stamps = kw.get('stamps', False)
    def a(s, t):
        for l in t.split('\n'):
            l = l.strip()
            if l: s.o.append(l)
    def lab(s, p='L'):
        s.nl += 1
        return f'{p}_{s.nl}'
    def stamp(s, i):
        pr = s.kw.get('probe')
        only = s.kw.get('only')
        if (s.stamps and (only is None or i in only or i == 0)) or (pr and i in (0, pr[1])):
            s.a(f's_memrealtime s[{64+2*i}:{65+2*i}]')
    def budget(s):
        s.a('s_sub_u32 s46, s46, 1\ns_cbranch_scc1 L_end')
    def wait_flag(s, off, n, extra=None, sleep=0, vt='v9'):
        L = s.lab('W')
        if sleep:
            L2 = s.lab('W')
            s.a(f's_branch {L2}\n{L}:\ns_sleep {sleep}\n{L2}:')
        else:
            s.a(f'{L}:')
        s.a(f'ds_read_b32 {vt}, v8 offset:{off}')
        ne = 0
        if extra:
            for e in extra: s.a(e)
            ne = len(extra)
        s.budget()
        s.a(f's_waitcnt lgkmcnt({0 if (s.stamps and not s.kw.get("lean")) or (s.kw.get("safeA") and ne > 6) else min(ne, 15)})')
        s.a(f'v_cmp_gt_u32 vcc, {n}, {vt}')
        s.a(f's_cbranch_vccnz {L}')
    def signal(s, off):
        s.a(f's_mov_b64 exec, 1\nds_add_u32 v8, v6 offset:{off}\ns_mov_b64 exec, -1')
    def srd(s, d, p):
        s.a(f's_mov_b32 s{d}, s{p}\ns_mov_b32 s{d+1}, s{p+1}')
    def srd_const(s, d, n):
        s.a(f's_mov_b32 s{d+2}, {n}\ns_mov_b32 s{d+3}, 0x20000')
    def wave_sum(s, v, sd):
        for m in ('quad_perm:[1,0,3,2]', 'quad_perm:[2,3,0,1]', 'row_half_mirror', 'row_mirror'):
            s.a(f'v_add_f32_dpp {v}, {v}, {v} {m} row_mask:0xf bank_mask:0xf')
        s.a(f'v_add_f32_dpp {v}, {v}, {v} row_bcast:15 row_mask:0xa bank_mask:0xf')
        s.a(f'v_add_f32_dpp {v}, {v}, {v} row_bcast:31 row_mask:0xc bank_mask:0xf')
        s.a(f'v_readlane_b32 {sd}, {v}, 63')
    def rows_allreduce(s, op, v, t):
        s.a(f'v_mov_b32 {t}, {v}\nv_permlane16_swap_b32 {t}, {v}\n{op} {v}, {t}, {v}')
        s.a(f'v_mov_b32 {t}, {v}\nv_permlane32_swap_b32 {t}, {v}\n{op} {v}, {t}, {v}')
    def layernorm(s, src, f, t):
        P = lambda r: f'v[{r}:{r+1}]'
        for k in range(4):
            s.a(f'v_lshlrev_b32 v{f+2*k}, 16, v{src+k}\nv_and_b32 v{f+2*k+1}, s55, v{src+k}')
        s.a(f'v_pk_add_f32 {P(t)}, {P(f)}, {P(f+2)}\nv_pk_add_f32 {P(t+2)}, {P(f+4)}, {P(f+6)}\nv_pk_add_f32 {P(t)}, {P(t)}, {P(t+2)}\nv_add_f32 v{t}, v{t}, v{t+1}')
        s.wave_sum(f'v{t}', 's10')
        s.a(f'v_mov_b32 v{src+3}, {hex(f2u(1/512))}')
        s.a(f'v_mul_f32 v{src}, s10, v{src+3}')
        for k in range(4):
            s.a(f'v_pk_add_f32 {P(t+2*k)}, {P(f+2*k)}, {P(src)} op_sel_hi:[1,0] neg_lo:[0,1] neg_hi:[0,1]')
        s.a(f'v_pk_mul_f32 {P(t)}, {P(t)}, {P(t)}')
        for k in range(1, 4):
            s.a(f'v_pk_fma_f32 {P(t)}, {P(t+2*k)}, {P(t+2*k)}, {P(t)}')
        s.a(f'v_add_f32 v{t}, v{t}, v{t+1}')
        s.a(f'v_cvt_pk_bf16_f32 v{src}, v{src}, v{src}\nv_lshlrev_b32 v{src}, 16, v{src}')
        ms = ['quad_perm:[1,0,3,2] row_mask:0xf', 'quad_perm:[2,3,0,1] row_mask:0xf', 'row_half_mirror row_mask:0xf', 'row_mirror row_mask:0xf', 'row_bcast:15 row_mask:0xa', 'row_bcast:31 row_mask:0xc']
        fill = [f'v_pk_add_f32 {P(f+2*k)}, {P(f+2*k)}, {P(src)} op_sel_hi:[1,0] neg_lo:[0,1] neg_hi:[0,1]' for k in range(4)]
        fill += [f'v_cvt_pk_bf16_f32 v{t+2+k}, v{f+2*k}, v{f+2*k+1}' for k in range(4)]
        for k in range(4): fill += [f'v_lshlrev_b32 v{f+2*k}, 16, v{t+2+k}', f'v_and_b32 v{f+2*k+1}, s55, v{t+2+k}']
        for m in ms:
            s.a(f'v_add_f32_dpp v{t}, v{t}, v{t} {m} bank_mask:0xf')
            s.a(fill.pop(0)); s.a(fill.pop(0))
        s.a(f'v_readlane_b32 s10, v{t}, 63')
        s.a(fill.pop(0)); s.a(fill.pop(0))
        s.a(f'v_mul_f32 v{src}, s10, v{src+3}')
        s.a(f'v_cvt_pk_bf16_f32 v{src}, v{src}, v{src}\nv_lshlrev_b32 v{src}, 16, v{src}')
        s.a(f'v_add_f32 v{src}, {hex(f2u(1e-5))}, v{src}')
        s.a(f'v_cvt_pk_bf16_f32 v{src}, v{src}, v{src}\nv_lshlrev_b32 v{src}, 16, v{src}')
        s.a(f'v_sqrt_f32 v{src}, v{src}')
        s.a(fill.pop(0))
        s.a(f'v_cvt_pk_bf16_f32 v{src}, v{src}, v{src}\nv_lshlrev_b32 v{src}, 16, v{src}')
        s.a(f'v_rcp_f32 v{src}, v{src}')
        s.a(fill.pop(0))
        assert not fill
        for k in range(4):
            s.a(f'v_pk_mul_f32 {P(f+2*k)}, {P(f+2*k)}, {P(src)} op_sel_hi:[1,0]')
        for k in range(4):
            s.a(f'v_cvt_pk_bf16_f32 v{src+k}, v{f+2*k}, v{f+2*k+1}')
    def round_bf16(s, v):
        s.a(f'v_cvt_pk_bf16_f32 {v}, {v}, {v}\nv_lshlrev_b32 {v}, 16, {v}')
    def tag_finish(s):
        s.a('s_mul_i32 s44, s44, 0x2c9277b5\ns_add_u32 s44, s44, 0xac564b05')
    def pack24(s, d, a, b, c, e):
        s.a(f'v_perm_b32 v{d}, v{a}, v{e}, s50\nv_perm_b32 v{d+1}, v{b}, v{e}, s51\nv_perm_b32 v{d+2}, v{c}, v{e}, s52')
    def pack24_consts(s):
        s.a('s_mov_b32 s50, 0x07060503\ns_mov_b32 s51, 0x07060502\ns_mov_b32 s52, 0x07060501')
    def unpack24(s, r):
        s.a(f'v_perm_b32 v{r+3}, v{r}, v{r+1}, s53\nv_perm_b32 v{r+3}, v{r+3}, v{r+2}, s54')
    def unpack24_consts(s):
        s.a('s_mov_b32 s53, 0x04000c0c\ns_mov_b32 s54, 0x0706000c')
    def reduce32(s, r):
        s.a(f'v_permlane32_swap_b32 v{r}, v{r+2}\nv_permlane32_swap_b32 v{r+1}, v{r+3}')
        s.a(f'v_add_f32 v{r}, v{r}, v{r+2}\nv_add_f32 v{r+1}, v{r+1}, v{r+3}')
        s.a(f'v_permlane16_swap_b32 v{r}, v{r+1}\nv_add_f32 v{r}, v{r}, v{r+1}')
        for m in ('row_ror:8', 'row_ror:4', 'row_ror:2'):
            s.a(f'v_add_f32_dpp v{r}, v{r}, v{r} {m} row_mask:0xf bank_mask:0xf')
    def mfma(s, d, A, B, first):
        s.a(f'v_mfma_f32_16x16x32_bf16 v[{d}:{d+3}], v[{A}:{A+3}], v[{B}:{B+3}], {"0" if first else f"v[{d}:{d+3}]"}')
    def mlp_slot(s, d, t):
        ha = s.kw.get('ha', 4)
        s.a(f's_mul_i32 s{d}, s5, 6\ns_add_u32 s{d}, s{d}, s3\ns_cmp_gt_u32 s3, {ha}\ns_cselect_b32 s{t}, 2, 0\ns_sub_u32 s{d}, s{d}, s{t}\ns_lshl_b32 s{d}, s{d}, 1')
        s.a(f's_lshl2_add_u32 s{t}, s3, s5\ns_add_u32 s{t}, s{t}, {48-4*ha}')
        s.a(f's_bitcmp1_b32 {3 << ha}, s3\ns_cselect_b32 s{d}, s{t}, s{d}')
    def hint(s, name, off, nq, tries, sub):
        a = s.a
        a(f's_lshl_b32 s48, s3, 7\ns_add_u32 s48, s48, {WS_N + off}\ns_add_u32 s49, s48, s4')
        a('s_and_b32 s50, s44, 0xff\ns_mul_i32 s50, s50, 0x01010101\ns_mov_b32 s51, s50\nv_mov_b32 v21, s50')
        if sub: a('s_andn2_b32 s48, s49, 7')
        a(f's_mov_b32 s47, {tries}')
    def hint_go(s, name, nq):
        a = s.a
        a('s_mov_b64 exec, 1\nbuffer_store_byte v21, v8, s[40:43], s49 offen\ns_mov_b64 exec, -1')
        a(f'L_{name}:')
        a(f's_load_dwordx{2*nq} s[52:{51+2*nq}], s[40:41], s48 glc')
        a(f's_sub_u32 s47, s47, 1\ns_cbranch_scc1 L_{name}d\ns_waitcnt lgkmcnt(0)')
        for k in range(nq): a(f's_xor_b64 s[{52+2*k}:{53+2*k}], s[{52+2*k}:{53+2*k}], s[50:51]')
        for k in range(1, nq): a(f's_or_b64 s[52:53], s[52:53], s[{52+2*k}:{53+2*k}]')
        a(f's_cbranch_scc1 L_{name}\nL_{name}d:\ns_waitcnt lgkmcnt(0)')
    def dump_stamps(s, nst=16):
        if not s.stamps: return
        s.a('s_waitcnt lgkmcnt(0)\ns_mov_b64 exec, -1\nv_mov_b32 v10, 0')
        for i in range(nst):
            s.a(f'v_writelane_b32 v10, s{64+2*i}, {i}')
        s.a(f's_mul_i32 s10, s2, {NW*64}\ns_lshl_b32 s11, s7, 6\ns_add_u32 s10, s10, s11\ns_add_u32 s10, s10, {STAMP}')
        s.a('v_lshlrev_b32 v11, 2, v1\ns_mov_b64 exec, 0xffff\nbuffer_store_dword v10, v11, s[40:43], s10 offen ' + s.kw.get('stfl', ''))

def gen(**kw):
    s = G(**kw)
    a = s.a
    depth = kw.get('depth', 20)
    NT = kw.get('nt', 'nt')
    npq = kw.get('npq', 2); gapq = kw.get('gapq', 12); q0 = kw.get('q0', 4)
    npl = kw.get('npl', 4); gapl = kw.get('gapl', 6)
    CSC = math.log2(math.e) / math.sqrt(128)
    ONE2 = 0x3f803f80
    order = kw.get('order', '11kkkkkkkk22vvvvvvvvoooo')
    TH = {c: [i + 1 for i, x in enumerate(order) if x == c] for c in '1k2vo'}
    assert [len(TH[c]) for c in '1k2vo'] == [2, 8, 2, 8, 4]
    marks = {TH['1'][1], TH['2'][1], TH['o'][3], len(order) - (kw.get('oe') or 0), kw.get('qg') or 2} | set(TH['k'][1::2]) | set(TH['v'][1::2])
    def common():
        if s.stamps:
            for i in range(1, 16): a(f's_mov_b32 s{64+2*i}, 0')
        a('v_and_b32 v1, 63, v0\ns_lshr_b32 s5, s4, 3\ns_and_b32 s6, s4, 7')
        a(f's_mov_b32 s42, {STAMP + 0x100000 if s.stamps else WS_END}\ns_mov_b32 s43, 0x20000')
        a(f's_mov_b32 s46, {kw.get("budget", 5000000)}')
        a('v_mov_b32 v6, 1')
        a('v_lshrrev_b32 v2, 4, v1\nv_and_b32 v3, 15, v1')
    s.stamp(0)
    a('s_load_dwordx16 s[16:31], s[0:1], 0\ns_load_dwordx8 s[32:39], s[0:1], 64\ns_load_dwordx2 s[40:41], s[0:1], 96')
    a('s_lshr_b32 s4, s2, 3\ns_cmp_ge_u32 s4, 32\ns_cbranch_scc1 L_exit')
    a('v_lshrrev_b32 v2, 6, v0\nv_bfe_u32 v4, v0, 3, 3')
    a('v_mov_b32 v8, 0\nds_write_b8 v0, v8')
    if kw.get('prefetch', True):
        a('s_getpc_b64 s[8:9]\nL_pc:')
        if kw.get('pf2'):
            a('s_lshl_b32 s10, s4, 7\nv_lshl_add_u32 v3, v0, 12, s10\nv_min_u32 v3, L_exit-L_pc, v3\nglobal_load_dword v7, v3, s[8:9]')
        else:
            a('v_lshlrev_b32 v3, 7, v0\nv_min_u32 v3, L_exit-L_pc, v3\nglobal_load_dword v7, v3, s[8:9]')
    a('v_readfirstlane_b32 s7, v2')
    a('v_and_b32 v5, 6, v4\nv_xor_b32 v5, v5, v0\nv_and_b32 v5, 7, v5\nv_lshlrev_b32 v5, 4, v5')
    a('s_and_b32 s3, s2, 7\ns_cmp_eq_u32 s7, 6\ns_cbranch_scc1 L_L\ns_cmp_ge_u32 s7, 4\ns_cbranch_scc1 L_PM')
    a('s_mov_b32 s51, 0x20000\nv_lshlrev_b32 v11, 4, v0')
    a('s_lshr_b32 s10, s4, 3\ns_lshl2_add_u32 s10, s10, s7\ns_lshl_b32 s10, s10, 18\ns_and_b32 s11, s4, 7\ns_lshl3_add_u32 s11, s3, s11\ns_xor_b32 s11, s11, ' + str(kw.get('rq', 0)) + '\ns_lshl_b32 s11, s11, 7\ns_add_u32 s10, s10, s11')
    a(f's_bfm_b32 s50, 1, 22\ns_bfm_b32 s12, 6, 10\nv_lshl_add_u32 v10, v4, 13, v5\ns_lshl_b32 m0, s7, 12\ns_addk_i32 m0, {WA}')
    a('s_waitcnt lgkmcnt(0)')
    a('s_mov_b64 s[48:49], s[22:23]')
    a('global_load_dwordx4 v[12:15], v11, s[16:17]')
    for r in range(4):
        a(f'buffer_load_dwordx4 v10, s[48:51], s10 offen offset:{r*1024} {NT} lds')
        if r < 3: a('s_add_u32 s10, s10, s12')
    a('s_branch L_C')
    a('L_L:')
    if kw.get('lprio'): a(f's_setprio {kw["lprio"]}')
    a('s_barrier')
    common()
    rq, r2 = kw.get('rq', 0), kw.get('r2', 0)
    s.mlp_slot(10, 11)
    a('s_cselect_b32 s11, 64, 0\ns_cselect_b32 s8, 30, 15')
    a('v_and_b32 v14, s11, v5\nv_lshl_add_u32 v14, v14, 24, v5\nv_mul_u32_u24 v32, 3584, v4\nv_add_u32 v32, v32, v14')
    for r in range(1, 4): a(f'v_add_u32 v{32+r}, {r*(8*3584-1024)}, v32')
    a('v_xor_b32 v14, v3, v2\nv_lshlrev_b32 v14, 4, v14\nv_lshl_add_u32 v18, v2, 8, v14')
    for r in range(1, 4): a(f'v_xor_b32 v{18+r}, {r*64}, v18\nv_add_u32 v{18+r}, {r*7168}, v{18+r}')
    a(f's_mov_b32 s50, {512*3584}\ns_mov_b32 s51, 0x20000\ns_lshl_b32 s8, 1, s8')
    a(f's_mul_i32 s12, s6, {64*3584}\ns_lshl_b32 s11, s10, 6\ns_add_u32 s12, s12, s11')
    a(f's_lshl_b32 s13, s5, 23\ns_lshl_b32 s11, s3, 20\ns_add_u32 s13, s13, s11\ns_lshl_b32 s11, s6, 10\ns_add_u32 s13, s13, s11\ns_add_u32 s13, s13, {3072*256}')
    a('s_bfm_b32 s54, 1, 25\ns_mov_b32 s55, s51\ns_mov_b32 s14, s13')
    a('s_waitcnt lgkmcnt(0)')
    s.stamp(1)
    dg = depth // 4
    segs = {'1': (32, 48, 28, 12, 32 * 3584, W1), 'k': (18, 52, 18, 13, 32768, KB), 'v': (22, 56, 20, 14, 32768, VB),
            '2': (26, 60, 32, 15, 's8', W2), 'o': (26, 96, 24, 9, 32768, WO)}
    cnt = {c: 0 for c in segs}
    late = False
    prof = kw.get('prof')
    prof = [int(x, 16) for x in prof] if prof else [dg] * len(order)
    assert len(prof) == len(order)
    landed = 0
    first_wait = min(gi for gi in range(len(order)) if gi + 1 > prof[gi])
    for gi, c in enumerate(order):
        vr, sd, ptr, so, step, lds = segs[c]
        if gi == first_wait:
            a('v_lshlrev_b32 v14, 1, v2\nv_xor_b32 v14, v3, v14\nv_lshlrev_b32 v14, 4, v14\nv_lshl_add_u32 v22, v2, 8, v14')
            a(f'v_xor_b32 v23, 128, v22\nv_add_u32 v24, {2*7168}, v22\nv_add_u32 v25, {3*7168}, v23\nv_add_u32 v23, 7168, v23')
            a('v_lshl_add_u32 v26, v4, 10, v5')
            for r in range(1, 4): a(f'v_add_u32 v{26+r}, {r*7168}, v26')
            a(f's_mov_b32 s58, s54\ns_mov_b32 s59, s51\ns_mov_b32 s62, {1792*1024}\ns_mov_b32 s63, s51\ns_bfm_b32 s98, 1, 22\ns_mov_b32 s99, s51')
            s.srd(56, 20); s.srd(60, 32); s.srd(96, 24)
            a(f's_add_u32 s11, s6, {r2}\ns_and_b32 s11, s11, 7\ns_lshl_b32 s11, s11, 7\ns_lshl_b32 s15, s10, 15\ns_add_u32 s15, s15, s11')
            a('s_lshl2_add_u32 s9, s3, s5\ns_lshl_b32 s9, s9, 17\ns_lshl_b32 s11, s6, 7\ns_add_u32 s9, s9, s11')
            s.stamp(2)
            late = True
        assert late or c in '1k'
        if cnt[c] == 0 and c in '1k': s.srd(sd, ptr)
        a(f's_mov_b32 m0, {lds + cnt[c] * 4096}')
        if cnt[c]: a(f's_add_u32 s{so}, s{so}, {step}')
        while landed < gi + 1 - prof[gi]:
            landed += 1
            if landed in marks or landed == gi + 1 - prof[gi]:
                a(f's_waitcnt vmcnt({(gi-landed)*4})')
            if landed in marks:
                a(f'v_mov_b32 v30, {landed}\nds_write_b32 v8, v30 offset:{C_G}')
                if landed == TH['v'][7]: s.stamp(6)
        for r in range(4):
            fine = kw.get('fine')
            if fine and gi * 4 + r >= fine and (r or fine - 1 < (gi - landed) * 4): a(f's_waitcnt vmcnt({fine-1})')
            fl = kw.get('nt' + c, NT)
            a(f'buffer_load_dwordx4 v{vr+r}, s[{sd}:{sd+3}], s{so} offen offset:{r*1024} {fl} lds')
        cnt[c] += 1
    for n in range(landed + 1, len(order) + 1):
        if n in marks:
            if kw.get('obar') and n == len(order) and n != TH['v'][7]:
                a('s_waitcnt vmcnt(0)')
            else:
                a(f'v_mov_b32 v30, {n}\ns_waitcnt vmcnt({(len(order)-n)*4})\nds_write_b32 v8, v30 offset:{C_G}')
            if n == TH['v'][7]: s.stamp(6)
    s.stamp(7)
    if kw.get('obar'): a('s_barrier')
    a('s_branch L_end')

    if kw.get('shift'): a('s_nop 0')
    a('L_PM:')
    a('s_barrier')
    common()
    ns = kw.get('nsamp', 1)
    a(f's_xor_b32 s9, s7, s4\ns_and_b32 s9, s9, 1\ns_lshr_b32 s10, s2, 6\ns_lshl1_add_u32 s10, s10, s9\ns_lshl_b32 s10, s10, 6\ns_and_b32 s11, s2, 63\ns_add_u32 s10, s10, s11\ns_lshl_b32 s10, s10, 7\ns_add_u32 s10, s10, {WS_T}')
    a('s_waitcnt lgkmcnt(0)')
    if kw.get('tlb'):
        a('s_lshl3_add_u32 s11, s5, s3\ns_lshl_b32 s11, s11, 10\ns_add_u32 s11, s11, s6\ns_addk_i32 s11, 768\ns_lshl_b32 s11, s11, 10\nv_mov_b32 v10, s11')
        a('s_lshl2_add_u32 s11, s3, s5\ns_lshl_b32 s11, s11, 10\ns_add_u32 s11, s11, s6\ns_lshl_b32 s11, s11, 7\nv_mov_b32 v11, s11')
        a(f's_lshl_b32 s11, s2, 7\nv_mov_b32 v12, s11\ns_add_u32 s11, s11, {WS_T + 0x10000}\nv_mov_b32 v13, s11')
        a('s_mov_b64 exec, 1\ns_cmp_eq_u32 s7, 4\ns_cbranch_scc0 L_tl5')
        a('global_load_dword v7, v10, s[20:21] nt\nglobal_load_dword v7, v11, s[24:25] nt\ns_branch L_tl6')
        a('L_tl5:\nglobal_load_dword v7, v12, s[32:33] nt\nglobal_load_dword v7, v13, s[40:41] nt')
        a('L_tl6:\ns_mov_b64 exec, -1')
    if kw.get('pd'): a(f's_sleep {kw["pd"]}')
    a('s_memtime s[12:13]\ns_load_dword s11, s[40:41], s10')
    if ns == 2: a('s_add_u32 s10, s10, 0x10000\ns_waitcnt lgkmcnt(0)\ns_load_dword s11, s[40:41], s10')
    a('s_waitcnt lgkmcnt(0)\ns_memtime s[14:15]\ns_lshl_b32 s10, s9, 2\nv_mov_b32 v10, s10\ns_waitcnt lgkmcnt(0)')
    a(f's_sub_u32 s12, s14, s12\nv_mov_b32 v11, s12\nds_write_b32 v10, v11 offset:{T_A}')
    a('s_cmp_eq_u32 s7, 4\ns_cbranch_scc1 L_P\ns_branch L_M')
    a('L_C:')
    if kw.get('clk'): a('s_memtime s[90:91]\ns_memrealtime s[88:89]')
    a('s_load_dword s44, s[40:41], 0\ns_barrier')
    a(f's_setprio {kw.get("cprio", 2)}')
    common()
    s.stamp(1)
    if 'C' in kw.get('kill', ''): a('s_waitcnt vmcnt(0)\ns_branch L_end')
    a('v_bfe_u32 v4, v1, 2, 2\nv_and_b32 v5, 3, v1')
    a(f's_mul_i32 s11, s7, {XS}\ns_add_u32 s11, s11, {XN}')
    a('v_lshrrev_b32 v10, 2, v1\nv_lshlrev_b32 v10, 6, v10\nv_and_b32 v11, 1, v1\nv_lshl_add_u32 v10, v11, 5, v10\nv_and_b32 v11, 2, v1\nv_lshl_add_u32 v10, v11, 2, v10\nv_add_u32 v11, s11, v10')
    a('s_mov_b32 s55, 0xffff0000')
    a('v_lshl_add_u32 v27, v2, 2, v4\nv_bfe_u32 v96, v27, 1, 2\nv_lshlrev_b32 v96, 5, v96\nv_lshl_add_u32 v96, v27, 7, v96\nv_lshl_add_u32 v96, v5, 3, v96')
    a('s_lshl_b32 s12, s7, 5\nv_xor_b32 v10, s12, v96')
    a('s_getreg_b32 s45, hwreg(HW_REG_XCC_ID, 0, 4)')
    a(f'v_mul_u32_u24 v24, {XS}, v5\nv_lshl_add_u32 v24, v2, 4, v24')
    a(f's_lshl_b32 s10, s5, 8\ns_add_u32 s10, s10, {XN}\nv_add_u32 v25, s10, v24')
    a(f's_lshl_b32 s10, s6, 7\ns_add_u32 s10, s10, {YL}\nv_add_u32 v24, s10, v24')
    a(f's_lshl_b32 s14, s3, 15\ns_lshl1_add_u32 s14, s12, s14\ns_lshl_b32 s13, s4, 8\ns_xor_b32 s58, s13, {rq*256}\ns_add_u32 s58, s14, s58\ns_add_u32 s58, s58, {WS_Q}')
    a(f's_lshl2_add_u32 s59, s13, s14\ns_add_u32 s59, s59, {WS_H}')
    a('v_lshlrev_b32 v106, 13, v3\nv_lshl_add_u32 v106, v2, 4, v106\nv_lshlrev_b32 v107, 4, v1\nv_mov_b32 v30, ' + str(kw.get('clamp', 384)) + '\nv_sub_u32 v31, 0, v30')
    s.pack24_consts()
    a('s_mov_b32 s13, 1')
    a('s_waitcnt vmcnt(0)' if kw.get('safeB') else 's_waitcnt vmcnt(4)')
    if not kw.get('ackst'): s.stamp(2)
    a('L_ln:')
    s.layernorm(12, 16, 32)
    a(f'ds_write2_b64 v11, v[12:13], v[14:15] offset1:2\nv_add_u32 v11, {YL-XN}, v11')
    a('s_sub_u32 s13, s13, 1\ns_cbranch_scc0 L_ln')
    s.stamp(3)
    a('s_waitcnt vmcnt(0) lgkmcnt(0)')
    if kw.get('st_tile'): s.stamp(5)
    s.signal(C_WA)
    s.tag_finish()
    a(f'v_mov_b32 v111, s44\nv_mov_b32 v115, s44\nds_write_b32 v8, v111 offset:{TAGW}')
    s.wait_flag(C_WA, 4, extra=[f'ds_read_b64 v[28:29], v8 offset:{T_A}'] + [x for t in range(4) for x in (f'ds_read_b128 v[{64+4*t}:{67+4*t}], v25 offset:{t*64}',
                f'ds_read_b64_tr_b16 v[{40+4*t}:{41+4*t}], v10 offset:{WA+t*4096}', f'ds_read_b64_tr_b16 v[{42+4*t}:{43+4*t}], v10 offset:{WA+t*4096+2048}')])
    for t in range(4):
        a(f's_waitcnt lgkmcnt({9-3*t})')
        s.mfma(16, 40 + 4 * t, 64 + 4 * t, t == 0)
        if t == 0: a('v_sub_u32 v110, v28, v29\nv_min_u32 v28, v28, v29')
        if t == 1: a('v_cmp_ne_u32 vcc, 0, v28\nv_med3_i32 v110, v110, v30, v31')
        if t == 2: a(('v_sub_u32 v29, 0, v110\nv_cndmask_b32 v110, v29, v110, vcc' if kw.get('miss', 1) else 'v_cndmask_b32 v110, 0, v110, vcc') + '\nv_lshl_or_b32 v110, v110, 4, s45')
    for t in range(2): a(f'ds_read_b128 v[{80+4*t}:{83+4*t}], v24 offset:{t*64}')
    a('s_mov_b32 exec_lo, 0x000f000f\ns_mov_b32 exec_hi, 0x000f000f')
    a('v_cvt_pk_bf16_f32 v108, v16, v17\nv_cvt_pk_bf16_f32 v109, v18, v19')
    a('buffer_store_dwordx4 v[108:111], v106, s[40:43], s58 offen')
    if kw.get('qe'): s.signal(C_QP)
    else: a('s_mov_b64 exec, -1')
    if not kw.get('ackst'): s.stamp(4)
    s.wait_flag(C_G, TH['1'][1], extra=[f'ds_read_b64_tr_b16 v[{40+2*t}:{41+2*t}], v10 offset:{W1+t*2048}' for t in range(4)], sleep=1)
    for t in range(2):
        a(f's_waitcnt lgkmcnt({2-2*t})')
        s.mfma(16, 40 + 4 * t, 80 + 4 * t, t == 0)
    a('s_mov_b32 exec_lo, 0x000f000f\ns_mov_b32 exec_hi, 0x000f000f')
    s.pack24(112, 16, 17, 18, 19)
    a('buffer_store_dwordx4 v[112:115], v107, s[40:43], s59 offen')
    if kw.get('he'): s.signal(C_HP)
    else: a('s_mov_b64 exec, -1')
    if 'Q' in kw.get('kill', ''): a('s_branch L_end')
    a(f's_lshl_b32 s10, s7, 13\ns_add_u32 s10, s10, {KB}')
    a(f'v_xor_b32 v10, v2, v3\nv_lshlrev_b32 v10, 4, v10\nv_lshl_add_u32 v10, v3, 8, v10\nv_add_u32 v102, {QL}, v10\nv_add_u32 v10, s10, v10')
    a('v_xor_b32 v103, 64, v102\nv_xor_b32 v104, 128, v102\nv_xor_b32 v105, 192, v102')
    a('v_xor_b32 v11, 64, v10\nv_xor_b32 v12, 128, v10\nv_xor_b32 v13, 192, v10')
    a(f's_lshl_b32 s10, s7, 2\ns_add_u32 s10, s10, {MX}\nv_lshlrev_b32 v15, 4, v5\nv_add_u32 v24, s10, v15\nv_add_u32 v15, {MX}, v15\ns_add_u32 s10, s10, {FP-MX}\nv_mov_b32 v14, s10')
    a(f's_lshl_b32 s10, s7, 10\ns_add_u32 s10, s10, {PL}\nv_lshlrev_b32 v25, 4, v1\nv_add_u32 v26, s10, v25\nv_add_u32 v25, {PL}, v25')
    a('v_and_b32 v28, 7, v27\ns_lshl_b32 s10, s7, 1\nv_xor_b32 v28, s10, v28\nv_lshlrev_b32 v28, 5, v28\nv_lshl_add_u32 v28, v27, 8, v28\nv_lshl_add_u32 v28, v5, 3, v28')
    a(f'v_add_u32 v28, {VB}, v28\nv_xor_b32 v29, 32, v28')
    a(f's_lshr_b32 s10, s7, 1\ns_lshl_b32 s11, s10, 13\ns_add_u32 s11, s11, {WO}')
    a('v_add_u32 v96, s11, v96\nv_xor_b32 v97, 32, v96\nv_xor_b32 v98, 64, v96\nv_xor_b32 v99, 96, v96')
    a('v_lshlrev_b32 v30, 14, v3\nv_lshl_add_u32 v30, v2, 8, v30')
    a(f's_lshl_b32 s14, s3, 16\ns_add_u32 s14, s14, {WS_O}')
    a('s_lshr_b32 s11, s4, 4\ns_lshl2_add_u32 s11, s11, s7\ns_lshl_b32 s11, s11, 11\ns_and_b32 s12, s4, 15\ns_lshl4_add_u32 s11, s12, s11')
    a('v_lshlrev_b32 v31, 4, v1')
    a('s_xor_b32 s12, s3, s6\ns_and_b32 s12, s12, 4\ns_lshl_b32 s12, s12, 11\nv_or_b32 v101, s12, v31')
    a('s_lshl_b32 s15, s5, 14\ns_add_u32 s15, s15, s14\ns_lshl_b32 s10, s10, 12\ns_add_u32 s15, s15, s10\ns_and_b32 s10, s7, 1\ns_lshl_b32 s12, s10, 13\ns_add_u32 s15, s15, s12')
    a('s_add_u32 s14, s14, s11')
    a(f'v_lshlrev_b32 v100, 9, v2\nv_lshl_add_u32 v100, v3, 4, v100\nv_add_u32 v100, {RED}, v100')
    a(f's_lshr_b32 s10, s3, 1\ns_lshl2_add_u32 s56, s6, s10\ns_and_b32 s10, s3, 1\ns_lshl2_add_u32 s56, s56, s10\ns_lshl2_add_u32 s56, s56, s5\ns_lshl_b32 s56, s56, 10\ns_add_u32 s56, s56, {WS_S}\ns_add_u32 s63, s56, 8192')
    a('v_lshrrev_b32 v119, 1, v1\nv_lshlrev_b32 v119, 10, v119\nv_and_b32 v16, 1, v1\nv_lshl_add_u32 v119, v16, 4, v119')
    a(f's_lshl_b32 s60, s3, 15\ns_lshl_b32 s11, s4, 5\ns_add_u32 s60, s60, s11\ns_add_u32 s62, s60, {WS_M}\ns_add_u32 s60, s60, {WS_S}')
    a('v_lshl_add_u32 v117, v2, 13, v119')
    a(f's_lshl_b32 s60, s3, 16\ns_add_u32 s60, s60, s11\ns_add_u32 s60, s60, {WS_S}')
    a(f's_mov_b32 s13, {hex(f2u(CSC))}')
    a('s_mov_b32 s12, s13')
    for k in range(4): a(f'v_mov_b32 v{124+k}, {hex(ONE2)}')
    kt = TH['k'][1::2]
    a(f's_lshl_b32 s57, s7, 3\ns_lshr_b32 s57, {kt[0] | kt[1] << 8 | kt[2] << 16 | kt[3] << 24}, s57\ns_and_b32 s57, s57, 0xff')
    if not kw.get('qe'):
        a('s_waitcnt vmcnt(1)')
        s.signal(C_QP)
    if not kw.get('he'):
        a('s_waitcnt vmcnt(0)')
        s.signal(C_HP)
    s.wait_flag(C_G, 's57', sleep=1)
    for u in range(2):
        for t in range(4):
            a(f'ds_read_b128 v[{32+16*u+4*t}:{35+16*u+4*t}], v{10+t} offset:{u*4096}')
    if not kw.get('st_tile') and not kw.get('ackst'): s.stamp(5)
    s.wait_flag(F_Q, 1, extra=[f'ds_read_b128 v[{64+4*t}:{67+4*t}], v{102+t}' for t in range(4)], sleep=kw.get('fqs', 0))
    s.stamp(6)
    a('v_readfirstlane_b32 s47, v9')
    a('s_cmp_lg_u32 s47, 1\ns_cbranch_scc1 L_qrem')
    a('L_qgo:')
    DP = lambda op, d, x, y, m, rm='0xf': f'{op}_dpp {d}, {x}, {y} {m} row_mask:{rm} bank_mask:0xf'
    for u in range(2):
        for t in range(4):
            if u == 0: a(f's_waitcnt lgkmcnt({3-t})')
            s.mfma(16 + 4 * u, 32 + 16 * u + 4 * t, 64 + 4 * t, t == 0)
    if kw.get('safeC'): a('s_nop 15')
    a('v_mov_b32 v40, s44\nv_mov_b32 v47, s44\nv_mov_b32 v123, s44')
    for u in range(2):
        for k in range(4): a(DP('v_add_f32', f'v{16+4*u+k}', f'v{16+4*u+k}', f'v{16+4*u+k}', 'row_ror:4'))
        for k in range(4): a(DP('v_add_f32', f'v{16+4*u+k}', f'v{16+4*u+k}', f'v{16+4*u+k}', 'row_ror:8'))
        if u == 0: a('v_max3_f32 v10, v16, v17, v18')
    a('v_max3_f32 v10, v10, v19, v20\nv_max3_f32 v11, v21, v22, v23\nv_max_f32 v10, v10, v11\nv_max_f32 v11, v10, v11')
    a('v_permlane16_swap_b32 v11, v10\nv_max_f32 v10, v11, v10\nv_max_f32 v11, v11, v10')
    a('v_permlane32_swap_b32 v11, v10\nv_max_f32 v10, v11, v10\nv_or_b32 v10, 1, v10')
    WB = 128; VR = 160
    vrd = lambda t: [f'ds_read_b64_tr_b16 v[{VR+8*t+4*T+2*u}:{VR+1+8*t+4*T+2*u}], v{28+T} offset:{t*8192+u*4096}' for T in range(2) for u in range(2)]
    cw = lambda n: 0 if (s.stamps and not kw.get('lean')) else n
    a('ds_write_b32 v24, v10')
    a(f'ds_read_b128 v[32:35], v15\nds_read_b32 v9, v8 offset:{C_G}')
    for x in vrd(0) + vrd(1) + vrd(2): a(x)
    a(f's_waitcnt lgkmcnt({cw(13)})\ns_branch L_mx2')
    a('L_mx:')
    a('ds_read_b128 v[32:35], v15')
    s.budget()
    a('s_waitcnt lgkmcnt(0)')
    a('L_mx2:')
    a('v_min3_u32 v11, v32, v33, v34\nv_max3_f32 v10, v32, v33, v34\nv_min_u32 v11, v11, v35\nv_max_f32 v10, v10, v35\nv_cmp_eq_u32 vcc, 0, v11\nv_mul_f32 v116, s13, v10\ns_cbranch_vccnz L_mx')
    for k in range(4): a(f'v_pk_fma_f32 v[{16+2*k}:{17+2*k}], v[{16+2*k}:{17+2*k}], s[12:13], v[116:117] op_sel_hi:[1,1,0] neg_lo:[0,0,1] neg_hi:[0,0,1]')
    for k in range(8): a(f'v_exp_f32 v{16+k}, v{16+k}')
    for k in range(4): a(f'v_cvt_pk_bf16_f32 v{32+k}, v{16+2*k}, v{17+2*k}')
    a('ds_write_b128 v26, v[32:35]\nds_write_b32 v14, v6')
    a('L_pw:')
    a(f'ds_read_b128 v[36:39], v8 offset:{FP}')
    for t in range(4): a(f'ds_read_b128 v[{64+4*t}:{67+4*t}], v25 offset:{t*1024}')
    a(f'ds_read_b32 v118, v8 offset:{C_G}')
    for x in vrd(3): a(x)
    a('v_mov_b32 v41, v116')
    s.budget()
    a(f's_waitcnt lgkmcnt({cw(9)})\nv_min3_u32 v11, v36, v37, v38\nv_min_u32 v11, v11, v39\nv_cmp_eq_u32 vcc, 0, v11\ns_cbranch_vccnz L_pw')
    s.stamp(7)
    def wo_reads(kss=(0, 1)):
        for ks in kss:
            for T in range(4):
                for u in range(2):
                    r = WB + 16 * ks + 4 * T + 2 * u
                    a(f'ds_read_b64_tr_b16 v[{r}:{r+1}], v{96+T} offset:{ks*4096+u*2048}')
    early = False
    a(f'v_cmp_gt_u32 vcc, {TH["v"][5]}, v9\ns_cbranch_vccz L_v012')
    s.wait_flag(C_G, TH['v'][5], extra=vrd(0) + vrd(1) + vrd(2), sleep=2)
    a('s_waitcnt lgkmcnt(0)')
    a('L_v012:')
    for t in range(3):
        a(f's_waitcnt lgkmcnt({8-t})')
        for T in range(2): s.mfma(16 + 4 * T, VR + 8 * t + 4 * T, 64 + 4 * t, t == 0)
        s.mfma(56, 124, 64 + 4 * t, t == 0)
    a('s_waitcnt lgkmcnt(4)')
    s.mfma(56, 124, 76, False)
    a(f'v_cmp_gt_u32 vcc, {TH["v"][7]}, v118\ns_cbranch_vccz L_v3')
    s.wait_flag(C_G, TH['v'][7], extra=vrd(3), sleep=kw.get('v3s', 0))
    a('L_v3:')
    if not kw.get('ind'): s.stamp(8)
    for T in range(2):
        a(f's_waitcnt lgkmcnt({2-2*T})')
        s.mfma(16 + 4 * T, VR + 24 + 4 * T, 76, False)
    a('v_mov_b32 v46, v56')
    a('s_mov_b32 exec_lo, 0x000f000f\ns_mov_b32 exec_hi, 0x000f000f\ns_cmp_eq_u32 s47, 1')
    for k in range(4): a(f'v_cvt_pk_bf16_f32 v{42+k}, v{16+2*k}, v{17+2*k}')
    a('s_cbranch_scc0 L_orem')
    a('buffer_store_dwordx4 v[40:43], v30, s[40:43], s14 offen\nbuffer_store_dwordx4 v[44:47], v30, s[40:43], s14 offen offset:1024')
    a('L_ost:')
    a('s_mov_b64 exec, -1')
    s.stamp(9)
    if kw.get('ackst'):
        a('s_waitcnt vmcnt(0)')
        s.stamp(5)
    if 'D' in kw.get('kill', ''): a('s_branch L_end')
    if kw.get('od0'): a(f's_sleep {kw["od0"]}')
    OE = kw.get('oe')
    if OE is not None:
        if OE: s.wait_flag(C_G, len(order) - OE)
    elif kw.get('obar'): a('s_barrier')
    if kw.get('ind'):
        if not early:
            s.wait_flag(C_G, TH['o'][3])
            wo_reads()
            early = True
        a('s_mov_b32 exec_hi, 0')
        a('L_ipoll:')
        a('buffer_load_dword v48, v101, s[40:43], s15 offen offset:1036 sc1')
        s.budget()
        if kw.get('isl'):
            a(f's_waitcnt vmcnt(0)\nv_cmp_ne_u32 vcc, s44, v48\ns_cbranch_vccz L_idone\ns_sleep {kw["isl"]}\ns_branch L_ipoll\nL_idone:')
        else:
            a('s_waitcnt vmcnt(0)\nv_cmp_ne_u32 vcc, s44, v48\ns_cbranch_vccnz L_ipoll')
        a('s_mov_b32 exec_hi, -1')
        s.stamp(8)
    for k in range(4): a(f'buffer_load_dwordx4 v[{48+4*k}:{51+4*k}], v31, s[40:43], s15 offen offset:{k*1024} sc1')
    if OE == 1 and kw.get('wsplit'):
        wo_reads((0,))
        a('s_barrier')
        wo_reads((1,))
        a(f'ds_read_b32 v9, v8 offset:{F_K}')
    else:
        if OE is not None: a('s_barrier')
        a(f'ds_read_b32 v9, v8 offset:{F_K}')
        wo_reads()
    if s.stamps:
        if kw.get('ackst'):
            a('s_waitcnt vmcnt(0)')
            s.stamp(2)
        a('s_mov_b32 s61, 0')
    a('s_branch L_opoll')
    a('L_oretry:')
    a('s_mov_b64 exec, vcc')
    if s.stamps: a('s_add_u32 s61, s61, 1')
    if kw.get('osl'): a(f's_sleep {kw["osl"]}')
    for k in range(4): a(f'buffer_load_dwordx4 v[{48+4*k}:{51+4*k}], v31, s[40:43], s15 offen offset:{k*1024} sc1')
    a('s_mov_b64 exec, -1')
    s.budget()
    if kw.get('al'): a('.p2align 3')
    a('L_opoll:')
    a('s_waitcnt vmcnt(0) lgkmcnt(0)')
    a('v_xor_b32 v10, s44, v48\nv_bitop3_b32 v10, v55, s44, v10 bitop3:0xbe\nv_bitop3_b32 v10, v56, s44, v10 bitop3:0xbe\nv_bitop3_b32 v10, v63, s44, v10 bitop3:0xbe')
    a('v_cmp_ne_u32 vcc, 0, v10\ns_cbranch_vccnz L_oretry')
    s.stamp(11)
    if s.stamps: a('s_mul_i32 s61, s61, 100\ns_add_u32 s70, s64, s61')
    M8 = ('quad_perm:[1,0,3,2]', 'quad_perm:[2,3,0,1]', 'row_half_mirror')
    D = lambda op, d, x, y, m, rm='0xf': f'{op}_dpp {d}, {x}, {y} {m} row_mask:{rm} bank_mask:0xf'
    R = lambda m, rm: f'v_mov_b32_dpp v23, v21 {m} row_mask:{rm} bank_mask:0xf'
    wv = [D('v_max_f32', 'v20', 'v49', 'v49', M8[0]), None, D('v_max_f32', 'v20', 'v20', 'v20', M8[1]), None, D('v_max_f32', 'v20', 'v20', 'v20', M8[2]),
          'v_sub_f32 v21, v49, v20', 'v_exp_f32 v21, v21', None, 'v_mul_f32 v22, v54, v21', 'v_mov_b32 v23, v21', None,
          D('v_add_f32', 'v22', 'v22', 'v22', M8[0]), R('row_ror:12', '0x2'), None, D('v_add_f32', 'v22', 'v22', 'v22', M8[1]), R('row_ror:8', '0x4'), None,
          D('v_add_f32', 'v22', 'v22', 'v22', M8[2]), R('row_ror:4', '0x8'), 'v_rcp_f32 v22, v22', None]
    mf = [(32 + 4 * T, 50 + 8 * ks, WB + 16 * ks + 4 * T, ks == 0) for ks in range(2) for T in range(4)]
    s.mfma(*mf.pop(0))
    for x in wv:
        if x is None: s.mfma(*mf.pop(0))
        else: a(x)
    assert not mf
    a('v_mul_f32 v21, v22, v23')
    a(D('v_mul_f32', 'v21', 'v22', 'v23', 'row_ror:8', '0xc'))
    for T in range(4): a(D('v_mul_f32', f'v{16+T}', 'v21', f'v{32+4*T}', 'row_newbcast:0'))
    for r in range(1, 4):
        for T in range(4): a(D('v_fmac_f32', f'v{16+T}', 'v21', f'v{32+4*T+r}', f'row_newbcast:{r}'))
    a(f'ds_write_b128 v26, v[16:19] offset:{RED-PL}')
    if kw.get('nf'): a('v_xor_b32 v10, v9, v101\nv_xor_b32 v11, 0x2000, v10')
    a('v_add_u32 v117, v117, v9\ns_cmp_lg_u32 s7, 0')
    a('s_waitcnt lgkmcnt(0)\ns_barrier')
    s.stamp(12)
    a('s_cbranch_scc1 ' + ('L_wb' if kw.get('fw') else 'L_end'))
    for k in range(4): a(f'ds_read_b128 v[{48+4*k}:{51+4*k}], v100 offset:{(k>>1)*2048+(k&1)*256}')
    a('s_waitcnt lgkmcnt(2)')
    a('v_pk_add_f32 v[48:49], v[48:49], v[52:53]\nv_pk_add_f32 v[50:51], v[50:51], v[54:55]')
    a('s_waitcnt lgkmcnt(1)')
    a('v_pk_add_f32 v[48:49], v[48:49], v[56:57]\nv_pk_add_f32 v[50:51], v[50:51], v[58:59]')
    a('s_waitcnt lgkmcnt(0)')
    a('v_pk_add_f32 v[48:49], v[48:49], v[60:61]\nv_pk_add_f32 v[50:51], v[50:51], v[62:63]')
    s.pack24(120, 48, 49, 50, 51)
    if kw.get('nf'):
        a('buffer_store_dwordx4 v[120:123], v10, s[40:43], s56 offen sc1')
        if kw.get('nfs'): a(f's_sleep {kw["nfs"]}')
        a('buffer_store_dwordx4 v[120:123], v11, s[40:43], s56 offen sc1')
    else:
        a('buffer_store_dwordx4 v[120:123], v31, s[40:43], s56 offen sc1\nbuffer_store_dwordx4 v[120:123], v31, s[40:43], s63 offen sc1')
    s.stamp(13)
    fw = kw.get('fw', 0)
    if fw:
        a('s_branch L_end')
        a('L_wb:')
        a(f's_cmp_lg_u32 s7, {fw}\ns_cbranch_scc1 L_end')
        if kw.get('d0'): a(f's_sleep {kw["d0"]}')
    LA = 'buffer_load_dwordx4 v[16:19], v117, s[40:43], s60 offen sc1'
    LB_ = 'buffer_load_dwordx4 v[20:23], v117, s[40:43], s60 offen sc1'
    a('L_mpoll:')
    a('buffer_load_dwordx4 v[32:35], v119, s[40:43], s62 offen sc1')
    a(f'v_lshlrev_b32 v14, 3, v1\nv_add_u32 v14, {GX}, v14\nds_read_b64 v[12:13], v14')
    s.unpack24_consts()
    s.srd_const(48, 4096); s.srd(48, 36)
    a('s_mov_b32 s56, 0x00030003\ns_mov_b32 s57, s56')
    a('v_and_b32 v11, 1, v1\nv_lshlrev_b32 v14, 5, v2\nv_lshl_add_u32 v14, v11, 1, v14')
    a('s_lshl_b32 s11, s5, 10\ns_lshl_b32 s12, s3, 7\ns_add_u32 s11, s11, s12\ns_lshl2_add_u32 s11, s6, s11')
    if kw.get('d1'): a(f's_sleep {kw["d1"]}')
    a(LA)
    if kw.get('d2'): a(f's_sleep {kw["d2"]}')
    a(LB_)
    s.budget()
    a('s_waitcnt vmcnt(2)\nv_cmp_ne_u32 vcc, s44, v35\ns_cbranch_vccnz L_mpoll')
    s.stamp(10)
    s.unpack24(32)
    s.reduce32(32)
    a('s_waitcnt lgkmcnt(0)')
    s.round_bf16('v32')
    a('v_add_f32 v32, v32, v12')
    s.round_bf16('v32')
    a(f'v_mul_f32 v33, {hex(f2u(-math.log2(math.e)))}, v32\nv_exp_f32 v33, v33\nv_add_f32 v33, 1.0, v33\nv_rcp_f32 v33, v33\nv_mul_f32 v12, v32, v33')
    s.round_bf16('v12')
    a('L_fpoll:')
    a('s_waitcnt vmcnt(1)\nv_cmp_ne_u32 vcc, s44, v19\ns_cbranch_vccz L_fdone')
    if kw.get('d4'): a(f's_sleep {kw["d4"]}')
    a(LA)
    s.budget()
    a('s_waitcnt vmcnt(1)\nv_cmp_ne_u32 vcc, s44, v23\ns_cbranch_vccz L_fdoneB')
    if kw.get('d3'): a(f's_sleep {kw["d3"]}')
    a(LB_ + '\ns_branch L_fpoll')
    def finish(r):
        s.stamp(14)
        s.unpack24(r)
        s.reduce32(r)
        if kw.get('exactfin', 0):
            s.round_bf16(f'v{r}')
            a(f'v_mul_f32 v{r}, v{r}, v12')
            s.round_bf16(f'v{r}')
            a(f'v_add_f32 v{r}, v{r}, v13')
        else:
            a(f'v_fma_f32 v{r}, v{r}, v12, v13')
        a('s_mov_b64 exec, s[56:57]')
        a(f'v_cvt_pk_bf16_f32 v{r}, v{r}, v{r}')
        a(f'buffer_store_short v{r}, v14, s[48:51], s11 offen')
    a('L_fdoneB:')
    finish(20)
    a('s_branch L_epoch')
    a('L_fdone:')
    finish(16)
    a('L_epoch:')
    s.stamp(15)
    a('s_cmp_lg_u32 s2, 0\ns_cbranch_scc1 L_end')
    a('s_mov_b64 exec, 1\nbuffer_store_dword v123, v8, s[40:43], 0 offen')
    a('s_branch L_end')

    a('L_qrem:')
    a('s_mov_b32 exec_lo, 0x000f000f\ns_mov_b32 exec_hi, 0x000f000f')
    a('buffer_store_dwordx4 v[108:111], v106, s[40:43], s58 offen sc1\nbuffer_store_dwordx4 v[112:115], v107, s[40:43], s59 offen sc1')
    a('s_mov_b64 exec, -1')
    a('L_qrem2:')
    a(f'ds_read_b32 v9, v8 offset:{F_Q}')
    for t in range(4): a(f'ds_read_b128 v[{64+4*t}:{67+4*t}], v{102+t}')
    s.budget()
    a('s_waitcnt lgkmcnt(0)\nv_readfirstlane_b32 s47, v9\ns_cmp_eq_u32 s47, 4\ns_cbranch_scc0 L_qgo\ns_sleep 2\ns_branch L_qrem2')
    if kw.get('wb') is not None:
        a('L_wb:')
        a(f's_cmp_lg_u32 s7, 1\ns_cbranch_scc1 L_end\ns_and_b32 s10, s4, {kw["wb"]}\ns_cbranch_scc1 L_end')
        if kw.get('wbd'): a(f's_sleep {kw["wbd"]}')
        a('buffer_wbl2 sc1\ns_branch L_end')
    a('L_orem:')
    a('buffer_store_dwordx4 v[40:43], v30, s[40:43], s14 offen sc1\nbuffer_store_dwordx4 v[44:47], v30, s[40:43], s14 offen offset:1024 sc1')
    a('s_branch L_ost')
    a('L_P:')
    if 'P' in kw.get('kill', ''): a('s_waitcnt lgkmcnt(0)\ns_branch L_end')
    a('s_setprio 3')
    a('s_getreg_b32 s45, hwreg(HW_REG_XCC_ID, 0, 4)')
    a('v_and_b32 v5, 3, v1')
    a(f's_lshl_b32 s10, s3, 15\ns_lshl_b32 s12, s4, 10\ns_add_u32 s12, s12, s10')
    a('s_waitcnt lgkmcnt(0)')
    if kw.get('warmq'):
        a(f'v_and_b32 v10, 7, v1\nv_lshlrev_b32 v10, 7, v10\nv_and_b32 v11, 8, v1\nv_lshl_add_u32 v10, v11, 15, v10\ns_add_u32 s11, s12, {WS_Q}')
        a(f's_mov_b64 exec, {0xff if kw["warmq"] == 1 else 0xffff}\nbuffer_load_dword v7, v10, s[40:43], s11 offen {kw.get("warmqfl", "")}\ns_mov_b64 exec, -1')
    a(f's_lshl_b32 s11, s5, 13\ns_add_u32 s10, s10, s11\ns_add_u32 s10, s10, {WS_Q}\ns_add_u32 s15, s10, 4096')
    a('v_lshlrev_b32 v10, 4, v1')
    a(f'v_lshrrev_b32 v11, 5, v1\nv_and_b32 v12, 31, v1\nv_lshlrev_b32 v13, 3, v12\nv_lshlrev_b32 v14, 4, v11\nv_xor_b32 v13, v13, v14\nv_lshl_add_u32 v13, v11, 8, v13\nv_add_u32 v22, {QL}, v13')
    for c in range(1, 8): a(f'v_xor_b32 v{22+c}, {c*32}, v22')
    a(f's_mov_b32 s14, {kw.get("nfast", 48)}')
    a('s_waitcnt lgkmcnt(0)')
    s.stamp(1)
    if 'W' in kw.get('kill', ''): a('s_branch L_end')
    if kw.get('qs'): a(f's_sleep {kw["qs"]}')
    if kw.get('qg'): s.wait_flag(C_G, kw['qg'], sleep=1)
    s.wait_flag(C_QP, 4, sleep=1, extra=[f'ds_read_b32 v15, v8 offset:{TAGW}'])
    a('s_waitcnt lgkmcnt(0)\nv_readfirstlane_b32 s44, v15')
    if q0: a(f's_sleep {q0}')
    s.stamp(2)
    a('L_qpoll:')
    for c in range(8): a(f'buffer_load_dwordx4 v[{32+4*c}:{35+4*c}], v10, s[40:43], s{10 if c < 4 else 15} offen offset:{(c&3)*1024} sc1 {kw.get("qnt", "")}')
    s.budget()
    a('s_waitcnt vmcnt(0)')
    a('v_xor_b32 v15, s44, v35')
    for c in range(1, 8): a(f'v_bitop3_b32 v15, v{35+4*c}, s44, v15 bitop3:0xbe')
    a('v_cmp_ne_u32 vcc, 0, v15\ns_cbranch_vccz L_qgot')
    a(f's_mov_b64 exec, vcc\ns_sub_u32 s14, s14, 1\ns_cbranch_scc0 L_qpoll')
    a(f'v_mov_b32 v15, 4\nds_write_b32 v8, v15 offset:{F_Q}\ns_branch L_qpoll')
    a('L_qgot:')
    a('s_mov_b64 exec, -1')
    a('v_xor_b32 v15, s45, v34')
    for c in range(8):
        a(f'ds_write_b64 v{22+c}, v[{32+4*c}:{33+4*c}] offset:{c*512}')
        if c < 7: a(f'v_bitop3_b32 v15, v{38+4*c}, s45, v15 bitop3:0xbe')
    a('v_and_b32 v15, 15, v15\nv_cmp_ne_u32 vcc, 0, v15\ns_cmp_eq_u64 vcc, 0\ns_cselect_b32 s47, 1, 2')
    if kw.get('force_remote'): a('s_mov_b32 s47, 2')
    a(f'v_mov_b32 v15, s47\nds_write_b32 v8, v15 offset:{F_Q}')
    s.stamp(3)
    a('v_add3_u32 v16, v34, v38, v42\nv_add3_u32 v17, v46, v50, v54\nv_add3_u32 v16, v16, v58, v62\nv_add_u32 v16, v16, v17')
    for m in ('quad_perm:[1,0,3,2] row_mask:0xf', 'quad_perm:[2,3,0,1] row_mask:0xf', 'row_half_mirror row_mask:0xf', 'row_mirror row_mask:0xf', 'row_bcast:15 row_mask:0xa', 'row_bcast:31 row_mask:0xc'):
        a(f'v_add_u32_dpp v16, v16, v16 {m} bank_mask:0xf')
    if kw.get('cntvote'):
        a('s_mov_b32 s11, 0')
        for c in range(8): a(f'v_cmp_gt_u32 vcc, 16, v{34+4*c}\ns_bcnt1_i32_b64 s10, vcc\ns_add_u32 s11, s11, s10')
        a('s_add_u32 s74, s64, s11')
    if kw.get('sgnvote'): a(f'v_readlane_b32 s10, v16, 63\ns_ashr_i32 s10, s10, 13\ns_add_u32 s10, s10, 400\ns_add_u32 s74, s64, s10')
    if kw.get('absvote'): a('v_readlane_b32 s10, v16, 63\ns_ashr_i32 s10, s10, 13\ns_abs_i32 s10, s10\ns_min_u32 s10, s10, 300\ns_sub_u32 s10, 300, s10\ns_add_u32 s74, s64, s10')
    if kw.get('recvote'): a('v_readlane_b32 s10, v16, 63\ns_ashr_i32 s10, s10, 13\ns_add_u32 s10, s10, 1000\ns_add_u32 s74, s64, s10')
    a('v_readlane_b32 s10, v16, 63\ns_cmp_lt_i32 s10, 0\ns_cselect_b32 s10, 0, 8192')
    if kw.get('kflip'): a('s_xor_b32 s10, s10, 8192')
    a(f'v_mov_b32 v15, s10\nds_write_b32 v8, v15 offset:{F_K}')
    a(f's_lshl_b32 s11, s12, 1\ns_add_u32 s11, s11, {WS_O}')
    a(f's_lshl2_add_u32 s12, s3, s5\ns_lshl4_add_u32 s12, s12, s6\ns_lshl_b32 s12, s12, 10\ns_add_u32 s12, s12, s10\ns_add_u32 s12, s12, {WS_S - 2048}')
    a('v_lshlrev_b32 v10, 7, v1\nv_add_u32 v11, s12, v10\nv_add_u32 v10, s11, v10\nv_cmp_gt_u32 vcc, 16, v1\nv_cndmask_b32 v10, v11, v10, vcc')
    if kw.get('wg'): s.wait_flag(C_G, kw['wg'], sleep=2)
    if kw.get('nowarm') == 1: pass
    elif kw.get('nowarm') == 2: a('s_mov_b64 exec, 0xffffff\nbuffer_load_dword v7, v10, s[40:43], 0 offen nt')
    elif kw.get('nowarm') == 3: a('s_mov_b64 exec, 0xffff\nbuffer_load_dword v7, v10, s[40:43], 0 offen nt')
    elif kw.get('ont'):
        a('s_mov_b64 exec, 0xffff\nbuffer_load_dword v7, v10, s[40:43], 0 offen nt\ns_mov_b64 exec, 0xff0000\nbuffer_load_dword v7, v10, s[40:43], 0 offen')
    else:
        a('s_mov_b64 exec, 0xffffff\nbuffer_load_dword v7, v10, s[40:43], 0 offen')
    a('s_branch L_end')

    a('L_M:')
    if kw.get('mprio') is not None: a(f's_setprio {kw["mprio"]}\ns_branch L_M2')
    if 'M' in kw.get('kill', ''): a('s_waitcnt lgkmcnt(0)\ns_branch L_end')
    a('s_setprio 3')
    a('L_M2:')
    a('v_bfe_u32 v4, v1, 2, 2\nv_and_b32 v5, 3, v1')
    a('v_lshl_add_u32 v10, v4, 2, v2')
    a('v_lshlrev_b32 v11, 3, v10')
    a('v_lshlrev_b32 v10, 4, v1')
    s.mlp_slot(11, 15)
    a('s_lshl3_add_u32 s15, s5, s3\ns_lshl_b32 s11, s11, 6')
    a('v_and_b32 v24, 1, v1\nv_lshlrev_b32 v25, 5, v2\nv_lshl_add_u32 v25, v24, 1, v25')
    a('s_lshl_b32 s12, s3, 7\ns_lshl2_add_u32 s12, s6, s12\ns_lshl_b32 s13, s5, 10\ns_add_u32 s13, s13, s12')
    s.srd_const(56, 3584); s.srd_const(60, 1024); s.srd_const(96, 4096)
    a('s_waitcnt lgkmcnt(0)')
    s.srd(56, 30); s.srd(60, 34); s.srd(96, 16)
    if not kw.get('nosmall'):
        sf = kw.get('smallfl', '')
        a(f'buffer_load_ushort v16, v25, s[60:63], s12 offen {sf}')
        a('buffer_load_ushort v17, v25, s[96:99], s13 offen')
        a(f'buffer_load_dwordx2 v[14:15], v11, s[56:59], s11 offen {sf}')
    a(f'v_mul_u32_u24 v11, {HS}, v5\nv_lshl_add_u32 v11, v2, 4, v11\nv_lshrrev_b32 v12, 1, v4\nv_lshl_add_u32 v11, v12, 6, v11\nv_and_b32 v12, 1, v4\nv_lshl_add_u32 v11, v12, 3, v11\nv_add_u32 v11, {HL}, v11')
    a(f'v_mul_u32_u24 v12, {HS}, v4\nv_lshl_add_u32 v12, v2, 4, v12\nv_add_u32 v12, {HL}, v12')
    a(f'v_lshl_add_u32 v27, v2, 2, v4\nv_bfe_u32 v28, v27, 1, 2\nv_lshlrev_b32 v28, 5, v28\nv_lshl_add_u32 v28, v27, 7, v28\nv_lshl_add_u32 v28, v5, 3, v28\nv_add_u32 v28, {W2}, v28')
    a('v_xor_b32 v29, 32, v28\nv_xor_b32 v30, 64, v28\nv_xor_b32 v31, 96, v28')
    a(f'v_lshlrev_b32 v13, 3, v1\nv_add_u32 v13, {GX}, v13')
    a('s_waitcnt vmcnt(1) lgkmcnt(0)')
    a('v_lshlrev_b32 v16, 16, v16\nv_lshlrev_b32 v17, 16, v17\nds_write_b64 v13, v[16:17]')
    if kw.get('hs'): a(f's_sleep {kw["hs"]}')
    s.wait_flag(C_HP, 4, sleep=1, extra=[f'ds_read_b32 v23, v8 offset:{TAGW}'])
    a('s_waitcnt lgkmcnt(0)\nv_readfirstlane_b32 s44, v23')
    s.pack24_consts(); s.unpack24_consts()
    if kw.get('hq'): s.wait_flag(F_Q, 1, sleep=1)
    if kw.get('h0', 8): a(f's_sleep {kw.get("h0", 8)}')
    a(f's_lshl2_add_u32 s10, s3, s5\ns_lshl_b32 s10, s10, 13\ns_add_u32 s10, s10, {WS_H}\ns_add_u32 s11, s10, 4096')
    s.stamp(2)
    a('L_hpoll:')
    for c in range(8): a(f'buffer_load_dwordx4 v[{32+4*c}:{35+4*c}], v10, s[40:43], s{10 + (c>>2)} offen offset:{(c&3)*1024} sc1 {kw.get("qnt", "")}')
    s.budget()
    a('s_waitcnt vmcnt(0)')
    a('v_xor_b32 v13, s44, v35')
    for c in range(1, 8): a(f'v_bitop3_b32 v13, v{35+4*c}, s44, v13 bitop3:0xbe')
    a('v_cmp_ne_u32 vcc, 0, v13\ns_cbranch_vccnz L_hpoll')
    s.stamp(3)
    for c in range(8): s.unpack24(32 + 4 * c)
    for st in (16, 8, 4):
        for r in range(32, 32 + st, 2): a(f'v_pk_add_f32 v[{r}:{r+1}], v[{r}:{r+1}], v[{r+st}:{r+st+1}]')
    a('v_cvt_pk_bf16_f32 v36, v32, v33\nv_cvt_pk_bf16_f32 v37, v34, v35')
    for k in range(2):
        a(f'v_lshlrev_b32 v{32+2*k}, 16, v{36+k}\nv_and_b32 v{33+2*k}, 0xffff0000, v{36+k}\nv_lshlrev_b32 v{40+2*k}, 16, v{14+k}\nv_and_b32 v{41+2*k}, 0xffff0000, v{14+k}')
    for k in range(4): a(f'v_add_f32 v{32+k}, v{32+k}, v{40+k}')
    a('v_cvt_pk_bf16_f32 v36, v32, v33\nv_cvt_pk_bf16_f32 v37, v34, v35')
    for k in range(2): a(f'v_lshlrev_b32 v{32+2*k}, 16, v{36+k}\nv_and_b32 v{33+2*k}, 0xffff0000, v{36+k}')
    K1 = -2 * math.sqrt(2 / math.pi) * math.log2(math.e)
    a(f'v_mov_b32 v44, {hex(f2u(K1))}')
    for k in range(4): a(f'v_mul_f32 v{36+k}, v{32+k}, v{32+k}')
    for k in range(4): a(f'v_fmamk_f32 v{36+k}, v{36+k}, {hex(f2u(K1*0.044715))}, v44')
    for k in range(4): a(f'v_mul_f32 v{36+k}, v{36+k}, v{32+k}')
    for k in range(4): a(f'v_exp_f32 v{36+k}, v{36+k}')
    for k in range(4): a(f'v_add_f32 v{36+k}, 1.0, v{36+k}')
    for k in range(4): a(f'v_rcp_f32 v{36+k}, v{36+k}')
    for k in range(4): a(f'v_mul_f32 v{32+k}, v{32+k}, v{36+k}')
    a('v_cvt_pk_bf16_f32 v40, v32, v33\nv_cvt_pk_bf16_f32 v41, v34, v35')
    a('ds_write_b64 v11, v[40:41]\nds_read_b128 v[48:51], v12\nds_read_b128 v[52:55], v12 offset:64')
    a(f's_add_u32 s10, s6, {r2}\ns_and_b32 s10, s10, 7\ns_lshl_b32 s10, s10, 5\ns_add_u32 s10, s10, s15\ns_lshl_b32 s10, s10, 10\ns_add_u32 s10, s10, {WS_M}')
    a('v_lshlrev_b32 v10, 4, v1\nv_mov_b32 v23, s44')
    s.wait_flag(C_G, TH['2'][1], sleep=1)
    for ks in range(2):
        for T in range(4):
            for u in range(2):
                r = 64 + 16 * ks + 4 * T + 2 * u
                a(f'ds_read_b64_tr_b16 v[{r}:{r+1}], v{28+T} offset:{ks*4096+u*2048}')
    a('s_waitcnt lgkmcnt(0)')
    for ks in range(2):
        for T in range(4): s.mfma(32 + 4 * T, 48 + 4 * ks, 64 + 16 * ks + 4 * T, ks == 0)
    s.pack24(20, 32, 36, 40, 44)
    a('buffer_store_dwordx4 v[20:23], v10, s[40:43], s10 offen sc1')
    s.stamp(4)
    a('L_end:')
    if kw.get('probe'):
        pw, pst, pm, pb = kw['probe']
        a(f's_waitcnt lgkmcnt(0)\ns_cmp_lg_u32 s7, {pw}\ns_cbranch_scc1 L_exit')
        if pw >= 4: a('s_barrier\ns_barrier' if kw.get('obar') and pw != 6 else 's_barrier')
        if kw.get('clk') == 1: a('s_memtime s[92:93]\ns_waitcnt lgkmcnt(0)\ns_sub_u32 s10, s92, s90\ns_lshr_b32 s10, s10, 1\ns_add_u32 s94, s64, s10')
        if kw.get('clk') == 2: a('s_memrealtime s[92:93]\ns_waitcnt lgkmcnt(0)\ns_sub_u32 s10, s92, s88\ns_mul_i32 s10, s10, 10\ns_add_u32 s94, s64, s10')
        if kw.get('px') is not None: a(f's_cmp_lg_u32 s45, {kw["px"]}\ns_cbranch_scc1 L_exit')
        if kw.get('pm') is not None: a(f's_mul_i32 s10, s45, {kw["pm"]}\ns_add_u32 s94, s64, s10')
        if kw.get('pg') is not None: a(f's_cmp_lg_u32 s3, {kw["pg"]}\ns_cbranch_scc1 L_exit')
        a(f's_sub_u32 s10, s{64+2*pst}, s64\ns_mul_i32 s10, s10, {pm}\ns_add_u32 s10, s10, {pb}\ns_min_u32 s10, s10, 20000')
        a('L_padloop:\ns_memrealtime s[12:13]\ns_waitcnt lgkmcnt(0)\ns_sub_u32 s11, s12, s64\ns_cmp_lt_u32 s11, s10\ns_cbranch_scc1 L_padloop')
    s.dump_stamps()
    a('L_exit:')
    a('s_endpgm')
    lines, added = hazard.fix(s.o, verbose=kw.get('verbose', False))
    return wrap('\n'.join(lines) + '\n', 256, NW * 64, kw.get('lds', LDS_TOTAL), kw.get('vgpr', 192))

if __name__ == '__main__':
    import ast
    out = sys.argv[1]
    kw = {}
    for x in sys.argv[2:]:
        k, v = x.split('=')
        try: kw[k] = ast.literal_eval(v)
        except Exception: kw[k] = v
    open(out, 'w').write(gen(**kw))
```

```python
import sys, math, struct
sys.path.insert(0, 'dev')
from common import *
import hazard

def f2u(x):
    return struct.unpack('<I', struct.pack('<f', x))[0]

NW = 7
FL = 0
WA, W1, KB, W2, VB, WO = [2048 + x for x in (0, 16384, 24576, 57344, 65536, 98304)]
XN = 2048 + 114688; XS = 1088
YL = XN + 4 * XS
QL = YL + 4 * XS
assert QL % 256 == 0
PL = QL + 4096
RED = PL + 4096
HL = RED + 4096; HS = 144
MX = 128
FP = 192
GX = HL + 640
LDS_TOTAL = GX + 512
C_WA, C_G, C_XN, F_Q, C_MX, C_P, F_WT, C_QP, C_Y, C_HP, T_A, T_B, F_K, TAGW = [4 * i for i in range(14)]

WS_Q = 0x1000
WS_H = WS_Q + 0x40000
WS_LSE = WS_H + 0x40000
WS_O = WS_LSE + 0x4000
WS_M = WS_O + 0x80000
WS_S = 0x150000
assert WS_S >= WS_M + 0x40000
WS_T = WS_S + 0x80000
WS_N = WS_T + 0x10000
WS_END = WS_T + 0x20000
assert WS_END <= 0x200000
STAMP = 0x8000000

class G:
    def __init__(s, **kw):
        s.o = []
        s.nl = 0
        s.kw = kw
        s.stamps = kw.get('stamps', False)
    def a(s, t):
        for l in t.split('\n'):
            l = l.strip()
            if l: s.o.append(l)
    def lab(s, p='L'):
        s.nl += 1
        return f'{p}_{s.nl}'
    def stamp(s, i):
        pr = s.kw.get('probe')
        only = s.kw.get('only')
        if (s.stamps and (only is None or i in only or i == 0)) or (pr and i in (0, pr[1])):
            s.a(f's_memrealtime s[{64+2*i}:{65+2*i}]')
    def budget(s):
        s.a('s_sub_u32 s46, s46, 1\ns_cbranch_scc1 L_end')
    def wait_flag(s, off, n, extra=None, sleep=0, vt='v9'):
        L = s.lab('W')
        if sleep:
            L2 = s.lab('W')
            s.a(f's_branch {L2}\n{L}:\ns_sleep {sleep}\n{L2}:')
        else:
            s.a(f'{L}:')
        s.a(f'ds_read_b32 {vt}, v8 offset:{off}')
        ne = 0
        if extra:
            for e in extra: s.a(e)
            ne = len(extra)
        s.budget()
        s.a(f's_waitcnt lgkmcnt({0 if (s.stamps and not s.kw.get("lean")) or (s.kw.get("safeA") and ne > 6) else min(ne, 15)})')
        s.a(f'v_cmp_gt_u32 vcc, {n}, {vt}')
        s.a(f's_cbranch_vccnz {L}')
    def signal(s, off):
        s.a(f's_mov_b64 exec, 1\nds_add_u32 v8, v6 offset:{off}\ns_mov_b64 exec, -1')
    def srd(s, d, p):
        s.a(f's_mov_b32 s{d}, s{p}\ns_mov_b32 s{d+1}, s{p+1}')
    def srd_const(s, d, n):
        s.a(f's_mov_b32 s{d+2}, {n}\ns_mov_b32 s{d+3}, 0x20000')
    def wave_sum(s, v, sd):
        for m in ('quad_perm:[1,0,3,2]', 'quad_perm:[2,3,0,1]', 'row_half_mirror', 'row_mirror'):
            s.a(f'v_add_f32_dpp {v}, {v}, {v} {m} row_mask:0xf bank_mask:0xf')
        s.a(f'v_add_f32_dpp {v}, {v}, {v} row_bcast:15 row_mask:0xa bank_mask:0xf')
        s.a(f'v_add_f32_dpp {v}, {v}, {v} row_bcast:31 row_mask:0xc bank_mask:0xf')
        s.a(f'v_readlane_b32 {sd}, {v}, 63')
    def rows_allreduce(s, op, v, t):
        s.a(f'v_mov_b32 {t}, {v}\nv_permlane16_swap_b32 {t}, {v}\n{op} {v}, {t}, {v}')
        s.a(f'v_mov_b32 {t}, {v}\nv_permlane32_swap_b32 {t}, {v}\n{op} {v}, {t}, {v}')
    def layernorm(s, src, f, t):
        P = lambda r: f'v[{r}:{r+1}]'
        for k in range(4):
            s.a(f'v_lshlrev_b32 v{f+2*k}, 16, v{src+k}\nv_and_b32 v{f+2*k+1}, s55, v{src+k}')
        s.a(f'v_pk_add_f32 {P(t)}, {P(f)}, {P(f+2)}\nv_pk_add_f32 {P(t+2)}, {P(f+4)}, {P(f+6)}\nv_pk_add_f32 {P(t)}, {P(t)}, {P(t+2)}\nv_add_f32 v{t}, v{t}, v{t+1}')
        s.wave_sum(f'v{t}', 's10')
        s.a(f'v_mov_b32 v{src+3}, {hex(f2u(1/512))}')
        s.a(f'v_mul_f32 v{src}, s10, v{src+3}')
        for k in range(4):
            s.a(f'v_pk_add_f32 {P(t+2*k)}, {P(f+2*k)}, {P(src)} op_sel_hi:[1,0] neg_lo:[0,1] neg_hi:[0,1]')
        s.a(f'v_pk_mul_f32 {P(t)}, {P(t)}, {P(t)}')
        for k in range(1, 4):
            s.a(f'v_pk_fma_f32 {P(t)}, {P(t+2*k)}, {P(t+2*k)}, {P(t)}')
        s.a(f'v_add_f32 v{t}, v{t}, v{t+1}')
        s.a(f'v_cvt_pk_bf16_f32 v{src}, v{src}, v{src}\nv_lshlrev_b32 v{src}, 16, v{src}')
        ms = ['quad_perm:[1,0,3,2] row_mask:0xf', 'quad_perm:[2,3,0,1] row_mask:0xf', 'row_half_mirror row_mask:0xf', 'row_mirror row_mask:0xf', 'row_bcast:15 row_mask:0xa', 'row_bcast:31 row_mask:0xc']
        fill = [f'v_pk_add_f32 {P(f+2*k)}, {P(f+2*k)}, {P(src)} op_sel_hi:[1,0] neg_lo:[0,1] neg_hi:[0,1]' for k in range(4)]
        fill += [f'v_cvt_pk_bf16_f32 v{t+2+k}, v{f+2*k}, v{f+2*k+1}' for k in range(4)]
        for k in range(4): fill += [f'v_lshlrev_b32 v{f+2*k}, 16, v{t+2+k}', f'v_and_b32 v{f+2*k+1}, s55, v{t+2+k}']
        for m in ms:
            s.a(f'v_add_f32_dpp v{t}, v{t}, v{t} {m} bank_mask:0xf')
            s.a(fill.pop(0)); s.a(fill.pop(0))
        s.a(f'v_readlane_b32 s10, v{t}, 63')
        s.a(fill.pop(0)); s.a(fill.pop(0))
        s.a(f'v_mul_f32 v{src}, s10, v{src+3}')
        s.a(f'v_cvt_pk_bf16_f32 v{src}, v{src}, v{src}\nv_lshlrev_b32 v{src}, 16, v{src}')
        s.a(f'v_add_f32 v{src}, {hex(f2u(1e-5))}, v{src}')
        s.a(f'v_cvt_pk_bf16_f32 v{src}, v{src}, v{src}\nv_lshlrev_b32 v{src}, 16, v{src}')
        s.a(f'v_sqrt_f32 v{src}, v{src}')
        s.a(fill.pop(0))
        s.a(f'v_cvt_pk_bf16_f32 v{src}, v{src}, v{src}\nv_lshlrev_b32 v{src}, 16, v{src}')
        s.a(f'v_rcp_f32 v{src}, v{src}')
        s.a(fill.pop(0))
        assert not fill
        for k in range(4):
            s.a(f'v_pk_mul_f32 {P(f+2*k)}, {P(f+2*k)}, {P(src)} op_sel_hi:[1,0]')
        for k in range(4):
            s.a(f'v_cvt_pk_bf16_f32 v{src+k}, v{f+2*k}, v{f+2*k+1}')
    def round_bf16(s, v):
        s.a(f'v_cvt_pk_bf16_f32 {v}, {v}, {v}\nv_lshlrev_b32 {v}, 16, {v}')
    def tag_finish(s):
        s.a('s_mul_i32 s44, s44, 0x2c9277b5\ns_add_u32 s44, s44, 0xac564b05')
    def pack24(s, d, a, b, c, e):
        s.a(f'v_perm_b32 v{d}, v{a}, v{e}, s50\nv_perm_b32 v{d+1}, v{b}, v{e}, s51\nv_perm_b32 v{d+2}, v{c}, v{e}, s52')
    def pack24_consts(s):
        s.a('s_mov_b32 s50, 0x07060503\ns_mov_b32 s51, 0x07060502\ns_mov_b32 s52, 0x07060501')
    def unpack24(s, r):
        s.a(f'v_perm_b32 v{r+3}, v{r}, v{r+1}, s53\nv_perm_b32 v{r+3}, v{r+3}, v{r+2}, s54')
    def unpack24_consts(s):
        s.a('s_mov_b32 s53, 0x04000c0c\ns_mov_b32 s54, 0x0706000c')
    def reduce32(s, r):
        s.a(f'v_permlane32_swap_b32 v{r}, v{r+2}\nv_permlane32_swap_b32 v{r+1}, v{r+3}')
        s.a(f'v_add_f32 v{r}, v{r}, v{r+2}\nv_add_f32 v{r+1}, v{r+1}, v{r+3}')
        s.a(f'v_permlane16_swap_b32 v{r}, v{r+1}\nv_add_f32 v{r}, v{r}, v{r+1}')
        for m in ('row_ror:8', 'row_ror:4', 'row_ror:2'):
            s.a(f'v_add_f32_dpp v{r}, v{r}, v{r} {m} row_mask:0xf bank_mask:0xf')
    def mfma(s, d, A, B, first):
        s.a(f'v_mfma_f32_16x16x32_bf16 v[{d}:{d+3}], v[{A}:{A+3}], v[{B}:{B+3}], {"0" if first else f"v[{d}:{d+3}]"}')
    def mlp_slot(s, d, t):
        ha = s.kw.get('ha', 4)
        s.a(f's_mul_i32 s{d}, s5, 6\ns_add_u32 s{d}, s{d}, s3\ns_cmp_gt_u32 s3, {ha}\ns_cselect_b32 s{t}, 2, 0\ns_sub_u32 s{d}, s{d}, s{t}\ns_lshl_b32 s{d}, s{d}, 1')
        s.a(f's_lshl2_add_u32 s{t}, s3, s5\ns_add_u32 s{t}, s{t}, {48-4*ha}')
        s.a(f's_bitcmp1_b32 {3 << ha}, s3\ns_cselect_b32 s{d}, s{t}, s{d}')
    def hint(s, name, off, nq, tries, sub):
        a = s.a
        a(f's_lshl_b32 s48, s3, 7\ns_add_u32 s48, s48, {WS_N + off}\ns_add_u32 s49, s48, s4')
        a('s_and_b32 s50, s44, 0xff\ns_mul_i32 s50, s50, 0x01010101\ns_mov_b32 s51, s50\nv_mov_b32 v21, s50')
        if sub: a('s_andn2_b32 s48, s49, 7')
        a(f's_mov_b32 s47, {tries}')
    def hint_go(s, name, nq):
        a = s.a
        a('s_mov_b64 exec, 1\nbuffer_store_byte v21, v8, s[40:43], s49 offen\ns_mov_b64 exec, -1')
        a(f'L_{name}:')
        a(f's_load_dwordx{2*nq} s[52:{51+2*nq}], s[40:41], s48 glc')
        a(f's_sub_u32 s47, s47, 1\ns_cbranch_scc1 L_{name}d\ns_waitcnt lgkmcnt(0)')
        for k in range(nq): a(f's_xor_b64 s[{52+2*k}:{53+2*k}], s[{52+2*k}:{53+2*k}], s[50:51]')
        for k in range(1, nq): a(f's_or_b64 s[52:53], s[52:53], s[{52+2*k}:{53+2*k}]')
        a(f's_cbranch_scc1 L_{name}\nL_{name}d:\ns_waitcnt lgkmcnt(0)')
    def dump_stamps(s, nst=16):
        if not s.stamps: return
        s.a('s_waitcnt lgkmcnt(0)\ns_mov_b64 exec, -1\nv_mov_b32 v10, 0')
        for i in range(nst):
            s.a(f'v_writelane_b32 v10, s{64+2*i}, {i}')
        s.a(f's_mul_i32 s10, s2, {NW*64}\ns_lshl_b32 s11, s7, 6\ns_add_u32 s10, s10, s11\ns_add_u32 s10, s10, {STAMP}')
        s.a('v_lshlrev_b32 v11, 2, v1\ns_mov_b64 exec, 0xffff\nbuffer_store_dword v10, v11, s[40:43], s10 offen ' + s.kw.get('stfl', ''))

def gen(**kw):
    s = G(**kw)
    a = s.a
    depth = kw.get('depth', 20)
    NT = kw.get('nt', 'nt')
    npq = kw.get('npq', 2); gapq = kw.get('gapq', 12); q0 = kw.get('q0', 4)
    npl = kw.get('npl', 4); gapl = kw.get('gapl', 6)
    CSC = math.log2(math.e) / math.sqrt(128)
    ONE2 = 0x3f803f80
    order = kw.get('order', '11kkkkkkkk22vvvvvvvvoooo')
    TH = {c: [i + 1 for i, x in enumerate(order) if x == c] for c in '1k2vo'}
    assert [len(TH[c]) for c in '1k2vo'] == [2, 8, 2, 8, 4]
    marks = {TH['1'][1], TH['2'][1], TH['o'][3], len(order) - (kw.get('oe') or 0), kw.get('qg') or 2} | set(TH['k'][1::2]) | set(TH['v'][1::2])
    def common():
        if s.stamps:
            for i in range(1, 16): a(f's_mov_b32 s{64+2*i}, 0')
        a('v_and_b32 v1, 63, v0\ns_lshr_b32 s5, s4, 3\ns_and_b32 s6, s4, 7')
        a(f's_mov_b32 s42, {STAMP + 0x100000 if s.stamps else WS_END}\ns_mov_b32 s43, 0x20000')
        a(f's_mov_b32 s46, {kw.get("budget", 5000000)}')
        a('v_mov_b32 v6, 1')
        a('v_lshrrev_b32 v2, 4, v1\nv_and_b32 v3, 15, v1')
    s.stamp(0)
    a('s_load_dwordx16 s[16:31], s[0:1], 0\ns_load_dwordx8 s[32:39], s[0:1], 64\ns_load_dwordx2 s[40:41], s[0:1], 96')
    a('s_lshr_b32 s4, s2, 3\ns_cmp_ge_u32 s4, 32\ns_cbranch_scc1 L_exit')
    a('v_lshrrev_b32 v2, 6, v0\nv_bfe_u32 v4, v0, 3, 3')
    a('v_mov_b32 v8, 0\nds_write_b8 v0, v8')
    if kw.get('prefetch', True):
        a('s_getpc_b64 s[8:9]\nL_pc:')
        if kw.get('pf2'):
            a('s_lshl_b32 s10, s4, 7\nv_lshl_add_u32 v3, v0, 12, s10\nv_min_u32 v3, L_exit-L_pc, v3\nglobal_load_dword v7, v3, s[8:9]')
        else:
            a('v_lshlrev_b32 v3, 7, v0\nv_min_u32 v3, L_exit-L_pc, v3\nglobal_load_dword v7, v3, s[8:9]')
    a('v_readfirstlane_b32 s7, v2')
    a('v_and_b32 v5, 6, v4\nv_xor_b32 v5, v5, v0\nv_and_b32 v5, 7, v5\nv_lshlrev_b32 v5, 4, v5')
    a('s_and_b32 s3, s2, 7\ns_cmp_eq_u32 s7, 6\ns_cbranch_scc1 L_L\ns_cmp_ge_u32 s7, 4\ns_cbranch_scc1 L_PM')
    a('s_mov_b32 s51, 0x20000\nv_lshlrev_b32 v11, 4, v0')
    a('s_lshr_b32 s10, s4, 3\ns_lshl2_add_u32 s10, s10, s7\ns_lshl_b32 s10, s10, 18\ns_and_b32 s11, s4, 7\ns_lshl3_add_u32 s11, s3, s11\ns_xor_b32 s11, s11, ' + str(kw.get('rq', 0)) + '\ns_lshl_b32 s11, s11, 7\ns_add_u32 s10, s10, s11')
    a(f's_bfm_b32 s50, 1, 22\ns_bfm_b32 s12, 6, 10\nv_lshl_add_u32 v10, v4, 13, v5\ns_lshl_b32 m0, s7, 12\ns_addk_i32 m0, {WA}')
    a('s_waitcnt lgkmcnt(0)')
    a('s_mov_b64 s[48:49], s[22:23]')
    a('global_load_dwordx4 v[12:15], v11, s[16:17]')
    for r in range(4):
        a(f'buffer_load_dwordx4 v10, s[48:51], s10 offen offset:{r*1024} {NT} lds')
        if r < 3: a('s_add_u32 s10, s10, s12')
    a('s_branch L_C')
    a('L_L:')
    if kw.get('lprio'): a(f's_setprio {kw["lprio"]}')
    a('s_barrier')
    common()
    rq, r2 = kw.get('rq', 0), kw.get('r2', 0)
    s.mlp_slot(10, 11)
    a('s_cselect_b32 s11, 64, 0\ns_cselect_b32 s8, 30, 15')
    a('v_and_b32 v14, s11, v5\nv_lshl_add_u32 v14, v14, 24, v5\nv_mul_u32_u24 v32, 3584, v4\nv_add_u32 v32, v32, v14')
    for r in range(1, 4): a(f'v_add_u32 v{32+r}, {r*(8*3584-1024)}, v32')
    a('v_xor_b32 v14, v3, v2\nv_lshlrev_b32 v14, 4, v14\nv_lshl_add_u32 v18, v2, 8, v14')
    for r in range(1, 4): a(f'v_xor_b32 v{18+r}, {r*64}, v18\nv_add_u32 v{18+r}, {r*7168}, v{18+r}')
    a(f's_mov_b32 s50, {512*3584}\ns_mov_b32 s51, 0x20000\ns_lshl_b32 s8, 1, s8')
    a(f's_mul_i32 s12, s6, {64*3584}\ns_lshl_b32 s11, s10, 6\ns_add_u32 s12, s12, s11')
    a(f's_lshl_b32 s13, s5, 23\ns_lshl_b32 s11, s3, 20\ns_add_u32 s13, s13, s11\ns_lshl_b32 s11, s6, 10\ns_add_u32 s13, s13, s11\ns_add_u32 s13, s13, {3072*256}')
    a('s_bfm_b32 s54, 1, 25\ns_mov_b32 s55, s51\ns_mov_b32 s14, s13')
    a('s_waitcnt lgkmcnt(0)')
    s.stamp(1)
    dg = depth // 4
    segs = {'1': (32, 48, 28, 12, 32 * 3584, W1), 'k': (18, 52, 18, 13, 32768, KB), 'v': (22, 56, 20, 14, 32768, VB),
            '2': (26, 60, 32, 15, 's8', W2), 'o': (26, 96, 24, 9, 32768, WO)}
    cnt = {c: 0 for c in segs}
    late = False
    prof = kw.get('prof')
    prof = [int(x, 16) for x in prof] if prof else [dg] * len(order)
    assert len(prof) == len(order)
    landed = 0
    first_wait = min(gi for gi in range(len(order)) if gi + 1 > prof[gi])
    for gi, c in enumerate(order):
        vr, sd, ptr, so, step, lds = segs[c]
        if gi == first_wait:
            a('v_lshlrev_b32 v14, 1, v2\nv_xor_b32 v14, v3, v14\nv_lshlrev_b32 v14, 4, v14\nv_lshl_add_u32 v22, v2, 8, v14')
            a(f'v_xor_b32 v23, 128, v22\nv_add_u32 v24, {2*7168}, v22\nv_add_u32 v25, {3*7168}, v23\nv_add_u32 v23, 7168, v23')
            a('v_lshl_add_u32 v26, v4, 10, v5')
            for r in range(1, 4): a(f'v_add_u32 v{26+r}, {r*7168}, v26')
            a(f's_mov_b32 s58, s54\ns_mov_b32 s59, s51\ns_mov_b32 s62, {1792*1024}\ns_mov_b32 s63, s51\ns_bfm_b32 s98, 1, 22\ns_mov_b32 s99, s51')
            s.srd(56, 20); s.srd(60, 32); s.srd(96, 24)
            a(f's_add_u32 s11, s6, {r2}\ns_and_b32 s11, s11, 7\ns_lshl_b32 s11, s11, 7\ns_lshl_b32 s15, s10, 15\ns_add_u32 s15, s15, s11')
            a('s_lshl2_add_u32 s9, s3, s5\ns_lshl_b32 s9, s9, 17\ns_lshl_b32 s11, s6, 7\ns_add_u32 s9, s9, s11')
            s.stamp(2)
            late = True
        assert late or c in '1k'
        if cnt[c] == 0 and c in '1k': s.srd(sd, ptr)
        a(f's_mov_b32 m0, {lds + cnt[c] * 4096}')
        if cnt[c]: a(f's_add_u32 s{so}, s{so}, {step}')
        while landed < gi + 1 - prof[gi]:
            landed += 1
            if landed in marks or landed == gi + 1 - prof[gi]:
                a(f's_waitcnt vmcnt({(gi-landed)*4})')
            if landed in marks:
                a(f'v_mov_b32 v30, {landed}\nds_write_b32 v8, v30 offset:{C_G}')
                if landed == TH['v'][7]: s.stamp(6)
        for r in range(4):
            fine = kw.get('fine')
            if fine and gi * 4 + r >= fine and (r or fine - 1 < (gi - landed) * 4): a(f's_waitcnt vmcnt({fine-1})')
            fl = kw.get('nt' + c, NT)
            a(f'buffer_load_dwordx4 v{vr+r}, s[{sd}:{sd+3}], s{so} offen offset:{r*1024} {fl} lds')
        cnt[c] += 1
    for n in range(landed + 1, len(order) + 1):
        if n in marks:
            if kw.get('obar') and n == len(order) and n != TH['v'][7]:
                a('s_waitcnt vmcnt(0)')
            else:
                a(f'v_mov_b32 v30, {n}\ns_waitcnt vmcnt({(len(order)-n)*4})\nds_write_b32 v8, v30 offset:{C_G}')
            if n == TH['v'][7]: s.stamp(6)
    s.stamp(7)
    if kw.get('obar'): a('s_barrier')
    a('s_branch L_end')

    if kw.get('shift'): a('s_nop 0')
    a('L_PM:')
    a('s_barrier')
    common()
    ns = kw.get('nsamp', 1)
    if kw.get('spread'):
        nb, base = kw['spread']
        a(f's_xor_b32 s9, s7, s4\ns_and_b32 s9, s9, 1\ns_lshl_b32 s10, s3, 5\ns_add_u32 s10, s10, s4\ns_and_b32 s10, s10, {nb-1}\ns_lshl1_add_u32 s10, s10, s9\ns_lshl_b32 s10, s10, 6\ns_mul_i32 s11, s2, 5\ns_and_b32 s11, s11, 63\ns_add_u32 s10, s10, s11\ns_lshl_b32 s10, s10, 7\ns_add_u32 s10, s10, {base}')
    else:
        a(f's_xor_b32 s9, s7, s4\ns_and_b32 s9, s9, 1\ns_lshr_b32 s10, s2, 6\ns_lshl1_add_u32 s10, s10, s9\ns_lshl_b32 s10, s10, 6\ns_and_b32 s11, s2, 63\ns_add_u32 s10, s10, s11\ns_lshl_b32 s10, s10, 7\ns_add_u32 s10, s10, {WS_T}')
    a('s_waitcnt lgkmcnt(0)')
    if kw.get('tlb'):
        a('s_lshl3_add_u32 s11, s5, s3\ns_lshl_b32 s11, s11, 10\ns_add_u32 s11, s11, s6\ns_addk_i32 s11, 768\ns_lshl_b32 s11, s11, 10\nv_mov_b32 v10, s11')
        a('s_lshl2_add_u32 s11, s3, s5\ns_lshl_b32 s11, s11, 10\ns_add_u32 s11, s11, s6\ns_lshl_b32 s11, s11, 7\nv_mov_b32 v11, s11')
        a(f's_lshl_b32 s11, s2, 7\nv_mov_b32 v12, s11\ns_add_u32 s11, s11, {WS_T + 0x10000}\nv_mov_b32 v13, s11')
        a('s_mov_b64 exec, 1\ns_cmp_eq_u32 s7, 4\ns_cbranch_scc0 L_tl5')
        a('global_load_dword v7, v10, s[20:21] nt\nglobal_load_dword v7, v11, s[24:25] nt\ns_branch L_tl6')
        a('L_tl5:\nglobal_load_dword v7, v12, s[32:33] nt\nglobal_load_dword v7, v13, s[40:41] nt')
        a('L_tl6:\ns_mov_b64 exec, -1')
    if kw.get('pd'): a(f's_sleep {kw["pd"]}')
    a('s_memtime s[12:13]\ns_load_dword s11, s[40:41], s10')
    if ns == 2: a('s_add_u32 s10, s10, 0x10000\ns_waitcnt lgkmcnt(0)\ns_load_dword s11, s[40:41], s10')
    a('s_waitcnt lgkmcnt(0)\ns_memtime s[14:15]\ns_lshl_b32 s10, s9, 2\nv_mov_b32 v10, s10\ns_waitcnt lgkmcnt(0)')
    a(f's_sub_u32 s12, s14, s12\nv_mov_b32 v11, s12\nds_write_b32 v10, v11 offset:{T_A}')
    a('s_cmp_eq_u32 s7, 4\ns_cbranch_scc1 L_P\ns_branch L_M')
    a('L_C:')
    if kw.get('clk'): a('s_memtime s[90:91]\ns_memrealtime s[88:89]')
    a('s_load_dword s44, s[40:41], 0\ns_barrier')
    a(f's_setprio {kw.get("cprio", 2)}')
    common()
    s.stamp(1)
    if 'C' in kw.get('kill', ''): a('s_waitcnt vmcnt(0)\ns_branch L_end')
    a('v_bfe_u32 v4, v1, 2, 2\nv_and_b32 v5, 3, v1')
    a(f's_mul_i32 s11, s7, {XS}\ns_add_u32 s11, s11, {XN}')
    a('v_lshrrev_b32 v10, 2, v1\nv_lshlrev_b32 v10, 6, v10\nv_and_b32 v11, 1, v1\nv_lshl_add_u32 v10, v11, 5, v10\nv_and_b32 v11, 2, v1\nv_lshl_add_u32 v10, v11, 2, v10\nv_add_u32 v11, s11, v10')
    a('s_mov_b32 s55, 0xffff0000')
    a('v_lshl_add_u32 v27, v2, 2, v4\nv_bfe_u32 v96, v27, 1, 2\nv_lshlrev_b32 v96, 5, v96\nv_lshl_add_u32 v96, v27, 7, v96\nv_lshl_add_u32 v96, v5, 3, v96')
    a('s_lshl_b32 s12, s7, 5\nv_xor_b32 v10, s12, v96')
    a('s_getreg_b32 s45, hwreg(HW_REG_XCC_ID, 0, 4)')
    a(f'v_mul_u32_u24 v24, {XS}, v5\nv_lshl_add_u32 v24, v2, 4, v24')
    a(f's_lshl_b32 s10, s5, 8\ns_add_u32 s10, s10, {XN}\nv_add_u32 v25, s10, v24')
    a(f's_lshl_b32 s10, s6, 7\ns_add_u32 s10, s10, {YL}\nv_add_u32 v24, s10, v24')
    a(f's_lshl_b32 s14, s3, 15\ns_lshl1_add_u32 s14, s12, s14\ns_lshl_b32 s13, s4, 8\ns_xor_b32 s58, s13, {rq*256}\ns_add_u32 s58, s14, s58\ns_add_u32 s58, s58, {WS_Q}')
    a(f's_lshl2_add_u32 s59, s13, s14\ns_add_u32 s59, s59, {WS_H}')
    a('v_lshlrev_b32 v106, 13, v3\nv_lshl_add_u32 v106, v2, 4, v106\nv_lshlrev_b32 v107, 4, v1\nv_mov_b32 v30, ' + str(kw.get('clamp', 384)) + '\nv_sub_u32 v31, 0, v30')
    s.pack24_consts()
    a('s_mov_b32 s13, 1')
    a('s_waitcnt vmcnt(0)' if kw.get('safeB') else 's_waitcnt vmcnt(4)')
    if not kw.get('ackst'): s.stamp(2)
    a('L_ln:')
    s.layernorm(12, 16, 32)
    a(f'ds_write2_b64 v11, v[12:13], v[14:15] offset1:2\nv_add_u32 v11, {YL-XN}, v11')
    a('s_sub_u32 s13, s13, 1\ns_cbranch_scc0 L_ln')
    s.stamp(3)
    a('s_waitcnt vmcnt(0) lgkmcnt(0)')
    if kw.get('st_tile'): s.stamp(5)
    s.signal(C_WA)
    s.tag_finish()
    a(f'v_mov_b32 v111, s44\nv_mov_b32 v115, s44\nds_write_b32 v8, v111 offset:{TAGW}')
    s.wait_flag(C_WA, 4, extra=[f'ds_read_b64 v[28:29], v8 offset:{T_A}'] + [x for t in range(4) for x in (f'ds_read_b128 v[{64+4*t}:{67+4*t}], v25 offset:{t*64}',
                f'ds_read_b64_tr_b16 v[{40+4*t}:{41+4*t}], v10 offset:{WA+t*4096}', f'ds_read_b64_tr_b16 v[{42+4*t}:{43+4*t}], v10 offset:{WA+t*4096+2048}')])
    for t in range(4):
        a(f's_waitcnt lgkmcnt({9-3*t})')
        s.mfma(16, 40 + 4 * t, 64 + 4 * t, t == 0)
        if t == 0: a('v_sub_u32 v110, v28, v29\nv_min_u32 v28, v28, v29')
        if t == 1: a('v_cmp_ne_u32 vcc, 0, v28\nv_med3_i32 v110, v110, v30, v31')
        if t == 2: a(('v_sub_u32 v29, 0, v110\nv_cndmask_b32 v110, v29, v110, vcc' if kw.get('miss', 1) else 'v_cndmask_b32 v110, 0, v110, vcc') + '\nv_lshl_or_b32 v110, v110, 4, s45')
    for t in range(2): a(f'ds_read_b128 v[{80+4*t}:{83+4*t}], v24 offset:{t*64}')
    a('s_mov_b32 exec_lo, 0x000f000f\ns_mov_b32 exec_hi, 0x000f000f')
    a('v_cvt_pk_bf16_f32 v108, v16, v17\nv_cvt_pk_bf16_f32 v109, v18, v19')
    a('buffer_store_dwordx4 v[108:111], v106, s[40:43], s58 offen')
    if kw.get('qe'): s.signal(C_QP)
    else: a('s_mov_b64 exec, -1')
    if not kw.get('ackst'): s.stamp(4)
    s.wait_flag(C_G, TH['1'][1], extra=[f'ds_read_b64_tr_b16 v[{40+2*t}:{41+2*t}], v10 offset:{W1+t*2048}' for t in range(4)], sleep=1)
    for t in range(2):
        a(f's_waitcnt lgkmcnt({2-2*t})')
        s.mfma(16, 40 + 4 * t, 80 + 4 * t, t == 0)
    a('s_mov_b32 exec_lo, 0x000f000f\ns_mov_b32 exec_hi, 0x000f000f')
    s.pack24(112, 16, 17, 18, 19)
    a('buffer_store_dwordx4 v[112:115], v107, s[40:43], s59 offen')
    if kw.get('he'): s.signal(C_HP)
    else: a('s_mov_b64 exec, -1')
    if 'Q' in kw.get('kill', ''): a('s_branch L_end')
    a(f's_lshl_b32 s10, s7, 13\ns_add_u32 s10, s10, {KB}')
    a(f'v_xor_b32 v10, v2, v3\nv_lshlrev_b32 v10, 4, v10\nv_lshl_add_u32 v10, v3, 8, v10\nv_add_u32 v102, {QL}, v10\nv_add_u32 v10, s10, v10')
    a('v_xor_b32 v103, 64, v102\nv_xor_b32 v104, 128, v102\nv_xor_b32 v105, 192, v102')
    a('v_xor_b32 v11, 64, v10\nv_xor_b32 v12, 128, v10\nv_xor_b32 v13, 192, v10')
    a(f's_lshl_b32 s10, s7, 2\ns_add_u32 s10, s10, {MX}\nv_lshlrev_b32 v15, 4, v5\nv_add_u32 v24, s10, v15\nv_add_u32 v15, {MX}, v15\ns_add_u32 s10, s10, {FP-MX}\nv_mov_b32 v14, s10')
    a(f's_lshl_b32 s10, s7, 10\ns_add_u32 s10, s10, {PL}\nv_lshlrev_b32 v25, 4, v1\nv_add_u32 v26, s10, v25\nv_add_u32 v25, {PL}, v25')
    a('v_and_b32 v28, 7, v27\ns_lshl_b32 s10, s7, 1\nv_xor_b32 v28, s10, v28\nv_lshlrev_b32 v28, 5, v28\nv_lshl_add_u32 v28, v27, 8, v28\nv_lshl_add_u32 v28, v5, 3, v28')
    a(f'v_add_u32 v28, {VB}, v28\nv_xor_b32 v29, 32, v28')
    a(f's_lshr_b32 s10, s7, 1\ns_lshl_b32 s11, s10, 13\ns_add_u32 s11, s11, {WO}')
    a('v_add_u32 v96, s11, v96\nv_xor_b32 v97, 32, v96\nv_xor_b32 v98, 64, v96\nv_xor_b32 v99, 96, v96')
    a('v_lshlrev_b32 v30, 14, v3\nv_lshl_add_u32 v30, v2, 8, v30')
    a(f's_lshl_b32 s14, s3, 16\ns_add_u32 s14, s14, {WS_O}')
    a('s_lshr_b32 s11, s4, 4\ns_lshl2_add_u32 s11, s11, s7\ns_lshl_b32 s11, s11, 11\ns_and_b32 s12, s4, 15\ns_lshl4_add_u32 s11, s12, s11')
    a('v_lshlrev_b32 v31, 4, v1')
    a('s_xor_b32 s12, s3, s6\ns_and_b32 s12, s12, 4\ns_lshl_b32 s12, s12, 11\nv_or_b32 v101, s12, v31')
    a('s_lshl_b32 s15, s5, 14\ns_add_u32 s15, s15, s14\ns_lshl_b32 s10, s10, 12\ns_add_u32 s15, s15, s10\ns_and_b32 s10, s7, 1\ns_lshl_b32 s12, s10, 13\ns_add_u32 s15, s15, s12')
    a('s_add_u32 s14, s14, s11')
    a(f'v_lshlrev_b32 v100, 9, v2\nv_lshl_add_u32 v100, v3, 4, v100\nv_add_u32 v100, {RED}, v100')
    a(f's_lshr_b32 s10, s3, 1\ns_lshl2_add_u32 s56, s6, s10\ns_and_b32 s10, s3, 1\ns_lshl2_add_u32 s56, s56, s10\ns_lshl2_add_u32 s56, s56, s5\ns_lshl_b32 s56, s56, 10\ns_add_u32 s56, s56, {WS_S}\ns_add_u32 s63, s56, 8192')
    a('v_lshrrev_b32 v119, 1, v1\nv_lshlrev_b32 v119, 10, v119\nv_and_b32 v16, 1, v1\nv_lshl_add_u32 v119, v16, 4, v119')
    a(f's_lshl_b32 s60, s3, 15\ns_lshl_b32 s11, s4, 5\ns_add_u32 s60, s60, s11\ns_add_u32 s62, s60, {WS_M}\ns_add_u32 s60, s60, {WS_S}')
    a('v_lshl_add_u32 v117, v2, 13, v119')
    a(f's_lshl_b32 s60, s3, 16\ns_add_u32 s60, s60, s11\ns_add_u32 s60, s60, {WS_S}')
    a(f's_mov_b32 s13, {hex(f2u(CSC))}')
    a('s_mov_b32 s12, s13')
    for k in range(4): a(f'v_mov_b32 v{124+k}, {hex(ONE2)}')
    kt = TH['k'][1::2]
    a(f's_lshl_b32 s57, s7, 3\ns_lshr_b32 s57, {kt[0] | kt[1] << 8 | kt[2] << 16 | kt[3] << 24}, s57\ns_and_b32 s57, s57, 0xff')
    if not kw.get('qe'):
        a('s_waitcnt vmcnt(1)')
        s.signal(C_QP)
    if not kw.get('he'):
        a('s_waitcnt vmcnt(0)')
        s.signal(C_HP)
    s.wait_flag(C_G, 's57', sleep=1)
    for u in range(2):
        for t in range(4):
            a(f'ds_read_b128 v[{32+16*u+4*t}:{35+16*u+4*t}], v{10+t} offset:{u*4096}')
    if not kw.get('st_tile') and not kw.get('ackst'): s.stamp(5)
    s.wait_flag(F_Q, 1, extra=[f'ds_read_b128 v[{64+4*t}:{67+4*t}], v{102+t}' for t in range(4)], sleep=kw.get('fqs', 0))
    s.stamp(6)
    a('v_readfirstlane_b32 s47, v9')
    a('s_cmp_lg_u32 s47, 1\ns_cbranch_scc1 L_qrem')
    a('L_qgo:')
    DP = lambda op, d, x, y, m, rm='0xf': f'{op}_dpp {d}, {x}, {y} {m} row_mask:{rm} bank_mask:0xf'
    for u in range(2):
        for t in range(4):
            if u == 0: a(f's_waitcnt lgkmcnt({3-t})')
            s.mfma(16 + 4 * u, 32 + 16 * u + 4 * t, 64 + 4 * t, t == 0)
    if kw.get('safeC'): a('s_nop 15')
    a('v_mov_b32 v40, s44\nv_mov_b32 v47, s44\nv_mov_b32 v123, s44')
    for u in range(2):
        for k in range(4): a(DP('v_add_f32', f'v{16+4*u+k}', f'v{16+4*u+k}', f'v{16+4*u+k}', 'row_ror:4'))
        for k in range(4): a(DP('v_add_f32', f'v{16+4*u+k}', f'v{16+4*u+k}', f'v{16+4*u+k}', 'row_ror:8'))
        if u == 0: a('v_max3_f32 v10, v16, v17, v18')
    a('v_max3_f32 v10, v10, v19, v20\nv_max3_f32 v11, v21, v22, v23\nv_max_f32 v10, v10, v11\nv_max_f32 v11, v10, v11')
    a('v_permlane16_swap_b32 v11, v10\nv_max_f32 v10, v11, v10\nv_max_f32 v11, v11, v10')
    a('v_permlane32_swap_b32 v11, v10\nv_max_f32 v10, v11, v10\nv_or_b32 v10, 1, v10')
    WB = 128; VR = 160
    vrd = lambda t: [f'ds_read_b64_tr_b16 v[{VR+8*t+4*T+2*u}:{VR+1+8*t+4*T+2*u}], v{28+T} offset:{t*8192+u*4096}' for T in range(2) for u in range(2)]
    cw = lambda n: 0 if (s.stamps and not kw.get('lean')) else n
    a('ds_write_b32 v24, v10')
    a(f'ds_read_b128 v[32:35], v15\nds_read_b32 v9, v8 offset:{C_G}')
    for x in vrd(0) + vrd(1) + vrd(2): a(x)
    a(f's_waitcnt lgkmcnt({cw(13)})\ns_branch L_mx2')
    a('L_mx:')
    a('ds_read_b128 v[32:35], v15')
    s.budget()
    a('s_waitcnt lgkmcnt(0)')
    a('L_mx2:')
    a('v_min3_u32 v11, v32, v33, v34\nv_max3_f32 v10, v32, v33, v34\nv_min_u32 v11, v11, v35\nv_max_f32 v10, v10, v35\nv_cmp_eq_u32 vcc, 0, v11\nv_mul_f32 v116, s13, v10\ns_cbranch_vccnz L_mx')
    for k in range(4): a(f'v_pk_fma_f32 v[{16+2*k}:{17+2*k}], v[{16+2*k}:{17+2*k}], s[12:13], v[116:117] op_sel_hi:[1,1,0] neg_lo:[0,0,1] neg_hi:[0,0,1]')
    for k in range(8): a(f'v_exp_f32 v{16+k}, v{16+k}')
    for k in range(4): a(f'v_cvt_pk_bf16_f32 v{32+k}, v{16+2*k}, v{17+2*k}')
    a('ds_write_b128 v26, v[32:35]\nds_write_b32 v14, v6')
    a('L_pw:')
    a(f'ds_read_b128 v[36:39], v8 offset:{FP}')
    for t in range(4): a(f'ds_read_b128 v[{64+4*t}:{67+4*t}], v25 offset:{t*1024}')
    a(f'ds_read_b32 v118, v8 offset:{C_G}')
    for x in vrd(3): a(x)
    a('v_mov_b32 v41, v116')
    s.budget()
    a(f's_waitcnt lgkmcnt({cw(9)})\nv_min3_u32 v11, v36, v37, v38\nv_min_u32 v11, v11, v39\nv_cmp_eq_u32 vcc, 0, v11\ns_cbranch_vccnz L_pw')
    s.stamp(7)
    def wo_reads(kss=(0, 1)):
        for ks in kss:
            for T in range(4):
                for u in range(2):
                    r = WB + 16 * ks + 4 * T + 2 * u
                    a(f'ds_read_b64_tr_b16 v[{r}:{r+1}], v{96+T} offset:{ks*4096+u*2048}')
    early = False
    a(f'v_cmp_gt_u32 vcc, {TH["v"][5]}, v9\ns_cbranch_vccz L_v012')
    s.wait_flag(C_G, TH['v'][5], extra=vrd(0) + vrd(1) + vrd(2), sleep=2)
    a('s_waitcnt lgkmcnt(0)')
    a('L_v012:')
    for t in range(3):
        a(f's_waitcnt lgkmcnt({8-t})')
        for T in range(2): s.mfma(16 + 4 * T, VR + 8 * t + 4 * T, 64 + 4 * t, t == 0)
        s.mfma(56, 124, 64 + 4 * t, t == 0)
    a('s_waitcnt lgkmcnt(4)')
    s.mfma(56, 124, 76, False)
    a(f'v_cmp_gt_u32 vcc, {TH["v"][7]}, v118\ns_cbranch_vccz L_v3')
    s.wait_flag(C_G, TH['v'][7], extra=vrd(3), sleep=kw.get('v3s', 0))
    a('L_v3:')
    if not kw.get('ind'): s.stamp(8)
    for T in range(2):
        a(f's_waitcnt lgkmcnt({2-2*T})')
        s.mfma(16 + 4 * T, VR + 24 + 4 * T, 76, False)
    a('v_mov_b32 v46, v56')
    a('s_mov_b32 exec_lo, 0x000f000f\ns_mov_b32 exec_hi, 0x000f000f\ns_cmp_eq_u32 s47, 1')
    for k in range(4): a(f'v_cvt_pk_bf16_f32 v{42+k}, v{16+2*k}, v{17+2*k}')
    a('s_cbranch_scc0 L_orem')
    a('buffer_store_dwordx4 v[40:43], v30, s[40:43], s14 offen\nbuffer_store_dwordx4 v[44:47], v30, s[40:43], s14 offen offset:1024')
    a('L_ost:')
    a('s_mov_b64 exec, -1')
    s.stamp(9)
    if kw.get('ackst'):
        a('s_waitcnt vmcnt(0)')
        s.stamp(5)
    if 'D' in kw.get('kill', ''): a('s_branch L_end')
    if kw.get('od0'): a(f's_sleep {kw["od0"]}')
    OE = kw.get('oe')
    if OE is not None:
        if OE: s.wait_flag(C_G, len(order) - OE)
    elif kw.get('obar'): a('s_barrier')
    if kw.get('ind'):
        if not early:
            s.wait_flag(C_G, TH['o'][3])
            wo_reads()
            early = True
        a('s_mov_b32 exec_hi, 0')
        a('L_ipoll:')
        a('buffer_load_dword v48, v101, s[40:43], s15 offen offset:1036 sc1')
        s.budget()
        if kw.get('isl'):
            a(f's_waitcnt vmcnt(0)\nv_cmp_ne_u32 vcc, s44, v48\ns_cbranch_vccz L_idone\ns_sleep {kw["isl"]}\ns_branch L_ipoll\nL_idone:')
        else:
            a('s_waitcnt vmcnt(0)\nv_cmp_ne_u32 vcc, s44, v48\ns_cbranch_vccnz L_ipoll')
        a('s_mov_b32 exec_hi, -1')
        s.stamp(8)
    for k in range(4): a(f'buffer_load_dwordx4 v[{48+4*k}:{51+4*k}], v31, s[40:43], s15 offen offset:{k*1024} sc1')
    if OE == 1 and kw.get('wsplit'):
        wo_reads((0,))
        a('s_barrier')
        wo_reads((1,))
        a(f'ds_read_b32 v9, v8 offset:{F_K}')
    else:
        if OE is not None: a('s_barrier')
        a(f'ds_read_b32 v9, v8 offset:{F_K}')
        wo_reads()
    if s.stamps:
        if kw.get('ackst'):
            a('s_waitcnt vmcnt(0)')
            s.stamp(2)
        a('s_mov_b32 s61, 0')
    a('s_branch L_opoll')
    a('L_oretry:')
    a('s_mov_b64 exec, vcc')
    if s.stamps: a('s_add_u32 s61, s61, 1')
    if kw.get('osl'): a(f's_sleep {kw["osl"]}')
    for k in range(4): a(f'buffer_load_dwordx4 v[{48+4*k}:{51+4*k}], v31, s[40:43], s15 offen offset:{k*1024} sc1')
    a('s_mov_b64 exec, -1')
    s.budget()
    if kw.get('al'): a('.p2align 3')
    a('L_opoll:')
    a('s_waitcnt vmcnt(0) lgkmcnt(0)')
    a('v_xor_b32 v10, s44, v48\nv_bitop3_b32 v10, v55, s44, v10 bitop3:0xbe\nv_bitop3_b32 v10, v56, s44, v10 bitop3:0xbe\nv_bitop3_b32 v10, v63, s44, v10 bitop3:0xbe')
    a('v_cmp_ne_u32 vcc, 0, v10\ns_cbranch_vccnz L_oretry')
    s.stamp(11)
    if s.stamps: a('s_mul_i32 s61, s61, 100\ns_add_u32 s70, s64, s61')
    M8 = ('quad_perm:[1,0,3,2]', 'quad_perm:[2,3,0,1]', 'row_half_mirror')
    D = lambda op, d, x, y, m, rm='0xf': f'{op}_dpp {d}, {x}, {y} {m} row_mask:{rm} bank_mask:0xf'
    R = lambda m, rm: f'v_mov_b32_dpp v23, v21 {m} row_mask:{rm} bank_mask:0xf'
    wv = [D('v_max_f32', 'v20', 'v49', 'v49', M8[0]), None, D('v_max_f32', 'v20', 'v20', 'v20', M8[1]), None, D('v_max_f32', 'v20', 'v20', 'v20', M8[2]),
          'v_sub_f32 v21, v49, v20', 'v_exp_f32 v21, v21', None, 'v_mul_f32 v22, v54, v21', 'v_mov_b32 v23, v21', None,
          D('v_add_f32', 'v22', 'v22', 'v22', M8[0]), R('row_ror:12', '0x2'), None, D('v_add_f32', 'v22', 'v22', 'v22', M8[1]), R('row_ror:8', '0x4'), None,
          D('v_add_f32', 'v22', 'v22', 'v22', M8[2]), R('row_ror:4', '0x8'), 'v_rcp_f32 v22, v22', None]
    mf = [(32 + 4 * T, 50 + 8 * ks, WB + 16 * ks + 4 * T, ks == 0) for ks in range(2) for T in range(4)]
    s.mfma(*mf.pop(0))
    for x in wv:
        if x is None: s.mfma(*mf.pop(0))
        else: a(x)
    assert not mf
    a('v_mul_f32 v21, v22, v23')
    a(D('v_mul_f32', 'v21', 'v22', 'v23', 'row_ror:8', '0xc'))
    for T in range(4): a(D('v_mul_f32', f'v{16+T}', 'v21', f'v{32+4*T}', 'row_newbcast:0'))
    for r in range(1, 4):
        for T in range(4): a(D('v_fmac_f32', f'v{16+T}', 'v21', f'v{32+4*T+r}', f'row_newbcast:{r}'))
    a(f'ds_write_b128 v26, v[16:19] offset:{RED-PL}')
    if kw.get('nf'): a('v_xor_b32 v10, v9, v101\nv_xor_b32 v11, 0x2000, v10')
    a('v_add_u32 v117, v117, v9\ns_cmp_lg_u32 s7, 0')
    a('s_waitcnt lgkmcnt(0)\ns_barrier')
    s.stamp(12)
    a('s_cbranch_scc1 ' + ('L_wb' if kw.get('fw') else 'L_end'))
    for k in range(4): a(f'ds_read_b128 v[{48+4*k}:{51+4*k}], v100 offset:{(k>>1)*2048+(k&1)*256}')
    a('s_waitcnt lgkmcnt(2)')
    a('v_pk_add_f32 v[48:49], v[48:49], v[52:53]\nv_pk_add_f32 v[50:51], v[50:51], v[54:55]')
    a('s_waitcnt lgkmcnt(1)')
    a('v_pk_add_f32 v[48:49], v[48:49], v[56:57]\nv_pk_add_f32 v[50:51], v[50:51], v[58:59]')
    a('s_waitcnt lgkmcnt(0)')
    a('v_pk_add_f32 v[48:49], v[48:49], v[60:61]\nv_pk_add_f32 v[50:51], v[50:51], v[62:63]')
    s.pack24(120, 48, 49, 50, 51)
    if kw.get('nf'):
        a('buffer_store_dwordx4 v[120:123], v10, s[40:43], s56 offen sc1')
        if kw.get('nfs'): a(f's_sleep {kw["nfs"]}')
        a('buffer_store_dwordx4 v[120:123], v11, s[40:43], s56 offen sc1')
    else:
        a('buffer_store_dwordx4 v[120:123], v31, s[40:43], s56 offen sc1\nbuffer_store_dwordx4 v[120:123], v31, s[40:43], s63 offen sc1')
    s.stamp(13)
    fw = kw.get('fw', 0)
    if fw:
        a('s_branch L_end')
        a('L_wb:')
        a(f's_cmp_lg_u32 s7, {fw}\ns_cbranch_scc1 L_end')
        if kw.get('d0'): a(f's_sleep {kw["d0"]}')
    LA = 'buffer_load_dwordx4 v[16:19], v117, s[40:43], s60 offen sc1'
    LB_ = 'buffer_load_dwordx4 v[20:23], v117, s[40:43], s60 offen sc1'
    a('L_mpoll:')
    a('buffer_load_dwordx4 v[32:35], v119, s[40:43], s62 offen sc1')
    a(f'v_lshlrev_b32 v14, 3, v1\nv_add_u32 v14, {GX}, v14\nds_read_b64 v[12:13], v14')
    s.unpack24_consts()
    s.srd_const(48, 4096); s.srd(48, 36)
    a('s_mov_b32 s56, 0x00030003\ns_mov_b32 s57, s56')
    a('v_and_b32 v11, 1, v1\nv_lshlrev_b32 v14, 5, v2\nv_lshl_add_u32 v14, v11, 1, v14')
    a('s_lshl_b32 s11, s5, 10\ns_lshl_b32 s12, s3, 7\ns_add_u32 s11, s11, s12\ns_lshl2_add_u32 s11, s6, s11')
    if kw.get('d1'): a(f's_sleep {kw["d1"]}')
    a(LA)
    if kw.get('d2'): a(f's_sleep {kw["d2"]}')
    a(LB_)
    s.budget()
    a('s_waitcnt vmcnt(2)\nv_cmp_ne_u32 vcc, s44, v35\ns_cbranch_vccnz L_mpoll')
    s.stamp(10)
    s.unpack24(32)
    s.reduce32(32)
    a('s_waitcnt lgkmcnt(0)')
    s.round_bf16('v32')
    a('v_add_f32 v32, v32, v12')
    s.round_bf16('v32')
    a(f'v_mul_f32 v33, {hex(f2u(-math.log2(math.e)))}, v32\nv_exp_f32 v33, v33\nv_add_f32 v33, 1.0, v33\nv_rcp_f32 v33, v33\nv_mul_f32 v12, v32, v33')
    s.round_bf16('v12')
    a('L_fpoll:')
    a('s_waitcnt vmcnt(1)\nv_cmp_ne_u32 vcc, s44, v19\ns_cbranch_vccz L_fdone')
    if kw.get('d4'): a(f's_sleep {kw["d4"]}')
    a(LA)
    s.budget()
    a('s_waitcnt vmcnt(1)\nv_cmp_ne_u32 vcc, s44, v23\ns_cbranch_vccz L_fdoneB')
    if kw.get('d3'): a(f's_sleep {kw["d3"]}')
    a(LB_ + '\ns_branch L_fpoll')
    def finish(r):
        s.stamp(14)
        s.unpack24(r)
        s.reduce32(r)
        if kw.get('exactfin', 0):
            s.round_bf16(f'v{r}')
            a(f'v_mul_f32 v{r}, v{r}, v12')
            s.round_bf16(f'v{r}')
            a(f'v_add_f32 v{r}, v{r}, v13')
        else:
            a(f'v_fma_f32 v{r}, v{r}, v12, v13')
        a('s_mov_b64 exec, s[56:57]')
        a(f'v_cvt_pk_bf16_f32 v{r}, v{r}, v{r}')
        a(f'buffer_store_short v{r}, v14, s[48:51], s11 offen')
    a('L_fdoneB:')
    finish(20)
    a('s_branch L_epoch')
    a('L_fdone:')
    finish(16)
    a('L_epoch:')
    s.stamp(15)
    a('s_cmp_lg_u32 s2, 0\ns_cbranch_scc1 L_end')
    a('s_mov_b64 exec, 1\nbuffer_store_dword v123, v8, s[40:43], 0 offen')
    a('s_branch L_end')

    a('L_qrem:')
    a('s_mov_b32 exec_lo, 0x000f000f\ns_mov_b32 exec_hi, 0x000f000f')
    a('buffer_store_dwordx4 v[108:111], v106, s[40:43], s58 offen sc1\nbuffer_store_dwordx4 v[112:115], v107, s[40:43], s59 offen sc1')
    a('s_mov_b64 exec, -1')
    a('L_qrem2:')
    a(f'ds_read_b32 v9, v8 offset:{F_Q}')
    for t in range(4): a(f'ds_read_b128 v[{64+4*t}:{67+4*t}], v{102+t}')
    s.budget()
    a('s_waitcnt lgkmcnt(0)\nv_readfirstlane_b32 s47, v9\ns_cmp_eq_u32 s47, 4\ns_cbranch_scc0 L_qgo\ns_sleep 2\ns_branch L_qrem2')
    if kw.get('wb') is not None:
        a('L_wb:')
        a(f's_cmp_lg_u32 s7, 1\ns_cbranch_scc1 L_end\ns_and_b32 s10, s4, {kw["wb"]}\ns_cbranch_scc1 L_end')
        if kw.get('wbd'): a(f's_sleep {kw["wbd"]}')
        a('buffer_wbl2 sc1\ns_branch L_end')
    a('L_orem:')
    a('buffer_store_dwordx4 v[40:43], v30, s[40:43], s14 offen sc1\nbuffer_store_dwordx4 v[44:47], v30, s[40:43], s14 offen offset:1024 sc1')
    a('s_branch L_ost')
    a('L_P:')
    if 'P' in kw.get('kill', ''): a('s_waitcnt lgkmcnt(0)\ns_branch L_end')
    a('s_setprio 3')
    a('s_getreg_b32 s45, hwreg(HW_REG_XCC_ID, 0, 4)')
    a('v_and_b32 v5, 3, v1')
    a(f's_lshl_b32 s10, s3, 15\ns_lshl_b32 s12, s4, 10\ns_add_u32 s12, s12, s10')
    a('s_waitcnt lgkmcnt(0)')
    if kw.get('warmq'):
        a(f'v_and_b32 v10, 7, v1\nv_lshlrev_b32 v10, 7, v10\nv_and_b32 v11, 8, v1\nv_lshl_add_u32 v10, v11, 15, v10\ns_add_u32 s11, s12, {WS_Q}')
        a(f's_mov_b64 exec, {0xff if kw["warmq"] == 1 else 0xffff}\nbuffer_load_dword v7, v10, s[40:43], s11 offen {kw.get("warmqfl", "")}\ns_mov_b64 exec, -1')
    a(f's_lshl_b32 s11, s5, 13\ns_add_u32 s10, s10, s11\ns_add_u32 s10, s10, {WS_Q}\ns_add_u32 s15, s10, 4096')
    a('v_lshlrev_b32 v10, 4, v1')
    a(f'v_lshrrev_b32 v11, 5, v1\nv_and_b32 v12, 31, v1\nv_lshlrev_b32 v13, 3, v12\nv_lshlrev_b32 v14, 4, v11\nv_xor_b32 v13, v13, v14\nv_lshl_add_u32 v13, v11, 8, v13\nv_add_u32 v22, {QL}, v13')
    for c in range(1, 8): a(f'v_xor_b32 v{22+c}, {c*32}, v22')
    a(f's_mov_b32 s14, {kw.get("nfast", 48)}')
    a('s_waitcnt lgkmcnt(0)')
    s.stamp(1)
    if 'W' in kw.get('kill', ''): a('s_branch L_end')
    if kw.get('qs'): a(f's_sleep {kw["qs"]}')
    if kw.get('qg'): s.wait_flag(C_G, kw['qg'], sleep=1)
    s.wait_flag(C_QP, 4, sleep=1, extra=[f'ds_read_b32 v15, v8 offset:{TAGW}'])
    a('s_waitcnt lgkmcnt(0)\nv_readfirstlane_b32 s44, v15')
    if q0: a(f's_sleep {q0}')
    s.stamp(2)
    a('L_qpoll:')
    for c in range(8): a(f'buffer_load_dwordx4 v[{32+4*c}:{35+4*c}], v10, s[40:43], s{10 if c < 4 else 15} offen offset:{(c&3)*1024} sc1 {kw.get("qnt", "")}')
    s.budget()
    a('s_waitcnt vmcnt(0)')
    a('v_xor_b32 v15, s44, v35')
    for c in range(1, 8): a(f'v_bitop3_b32 v15, v{35+4*c}, s44, v15 bitop3:0xbe')
    a('v_cmp_ne_u32 vcc, 0, v15\ns_cbranch_vccz L_qgot')
    a(f's_mov_b64 exec, vcc\ns_sub_u32 s14, s14, 1\ns_cbranch_scc0 L_qpoll')
    a(f'v_mov_b32 v15, 4\nds_write_b32 v8, v15 offset:{F_Q}\ns_branch L_qpoll')
    a('L_qgot:')
    a('s_mov_b64 exec, -1')
    a('v_xor_b32 v15, s45, v34')
    for c in range(8):
        a(f'ds_write_b64 v{22+c}, v[{32+4*c}:{33+4*c}] offset:{c*512}')
        if c < 7: a(f'v_bitop3_b32 v15, v{38+4*c}, s45, v15 bitop3:0xbe')
    a('v_and_b32 v15, 15, v15\nv_cmp_ne_u32 vcc, 0, v15\ns_cmp_eq_u64 vcc, 0\ns_cselect_b32 s47, 1, 2')
    if kw.get('force_remote'): a('s_mov_b32 s47, 2')
    a(f'v_mov_b32 v15, s47\nds_write_b32 v8, v15 offset:{F_Q}')
    s.stamp(3)
    a('v_add3_u32 v16, v34, v38, v42\nv_add3_u32 v17, v46, v50, v54\nv_add3_u32 v16, v16, v58, v62\nv_add_u32 v16, v16, v17')
    for m in ('quad_perm:[1,0,3,2] row_mask:0xf', 'quad_perm:[2,3,0,1] row_mask:0xf', 'row_half_mirror row_mask:0xf', 'row_mirror row_mask:0xf', 'row_bcast:15 row_mask:0xa', 'row_bcast:31 row_mask:0xc'):
        a(f'v_add_u32_dpp v16, v16, v16 {m} bank_mask:0xf')
    if kw.get('cntvote'):
        a('s_mov_b32 s11, 0')
        for c in range(8): a(f'v_cmp_gt_u32 vcc, 16, v{34+4*c}\ns_bcnt1_i32_b64 s10, vcc\ns_add_u32 s11, s11, s10')
        a('s_add_u32 s74, s64, s11')
    if kw.get('sgnvote'): a(f'v_readlane_b32 s10, v16, 63\ns_ashr_i32 s10, s10, 13\ns_add_u32 s10, s10, 400\ns_add_u32 s74, s64, s10')
    if kw.get('absvote'): a('v_readlane_b32 s10, v16, 63\ns_ashr_i32 s10, s10, 13\ns_abs_i32 s10, s10\ns_min_u32 s10, s10, 300\ns_sub_u32 s10, 300, s10\ns_add_u32 s74, s64, s10')
    if kw.get('recvote'): a('v_readlane_b32 s10, v16, 63\ns_ashr_i32 s10, s10, 13\ns_add_u32 s10, s10, 1000\ns_add_u32 s74, s64, s10')
    a('v_readlane_b32 s10, v16, 63\ns_cmp_lt_i32 s10, 0\ns_cselect_b32 s10, 0, 8192')
    if kw.get('kflip'): a('s_xor_b32 s10, s10, 8192')
    a(f'v_mov_b32 v15, s10\nds_write_b32 v8, v15 offset:{F_K}')
    a(f's_lshl_b32 s11, s12, 1\ns_add_u32 s11, s11, {WS_O}')
    a(f's_lshl2_add_u32 s12, s3, s5\ns_lshl4_add_u32 s12, s12, s6\ns_lshl_b32 s12, s12, 10\ns_add_u32 s12, s12, s10\ns_add_u32 s12, s12, {WS_S - 2048}')
    a('v_lshlrev_b32 v10, 7, v1\nv_add_u32 v11, s12, v10\nv_add_u32 v10, s11, v10\nv_cmp_gt_u32 vcc, 16, v1\nv_cndmask_b32 v10, v11, v10, vcc')
    if kw.get('wg'): s.wait_flag(C_G, kw['wg'], sleep=2)
    if kw.get('nowarm') == 1: pass
    elif kw.get('nowarm') == 2: a('s_mov_b64 exec, 0xffffff\nbuffer_load_dword v7, v10, s[40:43], 0 offen nt')
    elif kw.get('nowarm') == 3: a('s_mov_b64 exec, 0xffff\nbuffer_load_dword v7, v10, s[40:43], 0 offen nt')
    elif kw.get('ont'):
        a('s_mov_b64 exec, 0xffff\nbuffer_load_dword v7, v10, s[40:43], 0 offen nt\ns_mov_b64 exec, 0xff0000\nbuffer_load_dword v7, v10, s[40:43], 0 offen')
    else:
        a('s_mov_b64 exec, 0xffffff\nbuffer_load_dword v7, v10, s[40:43], 0 offen')
    a('s_branch L_end')

    a('L_M:')
    if kw.get('mprio') is not None: a(f's_setprio {kw["mprio"]}\ns_branch L_M2')
    if 'M' in kw.get('kill', ''): a('s_waitcnt lgkmcnt(0)\ns_branch L_end')
    a('s_setprio 3')
    a('L_M2:')
    a('v_bfe_u32 v4, v1, 2, 2\nv_and_b32 v5, 3, v1')
    a('v_lshl_add_u32 v10, v4, 2, v2')
    a('v_lshlrev_b32 v11, 3, v10')
    a('v_lshlrev_b32 v10, 4, v1')
    s.mlp_slot(11, 15)
    a('s_lshl3_add_u32 s15, s5, s3\ns_lshl_b32 s11, s11, 6')
    a('v_and_b32 v24, 1, v1\nv_lshlrev_b32 v25, 5, v2\nv_lshl_add_u32 v25, v24, 1, v25')
    a('s_lshl_b32 s12, s3, 7\ns_lshl2_add_u32 s12, s6, s12\ns_lshl_b32 s13, s5, 10\ns_add_u32 s13, s13, s12')
    s.srd_const(56, 3584); s.srd_const(60, 1024); s.srd_const(96, 4096)
    a('s_waitcnt lgkmcnt(0)')
    s.srd(56, 30); s.srd(60, 34); s.srd(96, 16)
    if not kw.get('nosmall'):
        sf = kw.get('smallfl', '')
        a(f'buffer_load_ushort v16, v25, s[60:63], s12 offen {sf}')
        a('buffer_load_ushort v17, v25, s[96:99], s13 offen')
        a(f'buffer_load_dwordx2 v[14:15], v11, s[56:59], s11 offen {sf}')
    a(f'v_mul_u32_u24 v11, {HS}, v5\nv_lshl_add_u32 v11, v2, 4, v11\nv_lshrrev_b32 v12, 1, v4\nv_lshl_add_u32 v11, v12, 6, v11\nv_and_b32 v12, 1, v4\nv_lshl_add_u32 v11, v12, 3, v11\nv_add_u32 v11, {HL}, v11')
    a(f'v_mul_u32_u24 v12, {HS}, v4\nv_lshl_add_u32 v12, v2, 4, v12\nv_add_u32 v12, {HL}, v12')
    a(f'v_lshl_add_u32 v27, v2, 2, v4\nv_bfe_u32 v28, v27, 1, 2\nv_lshlrev_b32 v28, 5, v28\nv_lshl_add_u32 v28, v27, 7, v28\nv_lshl_add_u32 v28, v5, 3, v28\nv_add_u32 v28, {W2}, v28')
    a('v_xor_b32 v29, 32, v28\nv_xor_b32 v30, 64, v28\nv_xor_b32 v31, 96, v28')
    a(f'v_lshlrev_b32 v13, 3, v1\nv_add_u32 v13, {GX}, v13')
    a('s_waitcnt vmcnt(1) lgkmcnt(0)')
    a('v_lshlrev_b32 v16, 16, v16\nv_lshlrev_b32 v17, 16, v17\nds_write_b64 v13, v[16:17]')
    if kw.get('hs'): a(f's_sleep {kw["hs"]}')
    s.wait_flag(C_HP, 4, sleep=1, extra=[f'ds_read_b32 v23, v8 offset:{TAGW}'])
    a('s_waitcnt lgkmcnt(0)\nv_readfirstlane_b32 s44, v23')
    s.pack24_consts(); s.unpack24_consts()
    if kw.get('hq'): s.wait_flag(F_Q, 1, sleep=1)
    if kw.get('h0', 8): a(f's_sleep {kw.get("h0", 8)}')
    a(f's_lshl2_add_u32 s10, s3, s5\ns_lshl_b32 s10, s10, 13\ns_add_u32 s10, s10, {WS_H}\ns_add_u32 s11, s10, 4096')
    s.stamp(2)
    a('L_hpoll:')
    for c in range(8): a(f'buffer_load_dwordx4 v[{32+4*c}:{35+4*c}], v10, s[40:43], s{10 + (c>>2)} offen offset:{(c&3)*1024} sc1 {kw.get("qnt", "")}')
    s.budget()
    a('s_waitcnt vmcnt(0)')
    a('v_xor_b32 v13, s44, v35')
    for c in range(1, 8): a(f'v_bitop3_b32 v13, v{35+4*c}, s44, v13 bitop3:0xbe')
    a('v_cmp_ne_u32 vcc, 0, v13\ns_cbranch_vccnz L_hpoll')
    s.stamp(3)
    for c in range(8): s.unpack24(32 + 4 * c)
    for st in (16, 8, 4):
        for r in range(32, 32 + st, 2): a(f'v_pk_add_f32 v[{r}:{r+1}], v[{r}:{r+1}], v[{r+st}:{r+st+1}]')
    a('v_cvt_pk_bf16_f32 v36, v32, v33\nv_cvt_pk_bf16_f32 v37, v34, v35')
    for k in range(2):
        a(f'v_lshlrev_b32 v{32+2*k}, 16, v{36+k}\nv_and_b32 v{33+2*k}, 0xffff0000, v{36+k}\nv_lshlrev_b32 v{40+2*k}, 16, v{14+k}\nv_and_b32 v{41+2*k}, 0xffff0000, v{14+k}')
    for k in range(4): a(f'v_add_f32 v{32+k}, v{32+k}, v{40+k}')
    a('v_cvt_pk_bf16_f32 v36, v32, v33\nv_cvt_pk_bf16_f32 v37, v34, v35')
    for k in range(2): a(f'v_lshlrev_b32 v{32+2*k}, 16, v{36+k}\nv_and_b32 v{33+2*k}, 0xffff0000, v{36+k}')
    K1 = -2 * math.sqrt(2 / math.pi) * math.log2(math.e)
    a(f'v_mov_b32 v44, {hex(f2u(K1))}')
    for k in range(4): a(f'v_mul_f32 v{36+k}, v{32+k}, v{32+k}')
    for k in range(4): a(f'v_fmamk_f32 v{36+k}, v{36+k}, {hex(f2u(K1*0.044715))}, v44')
    for k in range(4): a(f'v_mul_f32 v{36+k}, v{36+k}, v{32+k}')
    for k in range(4): a(f'v_exp_f32 v{36+k}, v{36+k}')
    for k in range(4): a(f'v_add_f32 v{36+k}, 1.0, v{36+k}')
    for k in range(4): a(f'v_rcp_f32 v{36+k}, v{36+k}')
    for k in range(4): a(f'v_mul_f32 v{32+k}, v{32+k}, v{36+k}')
    a('v_cvt_pk_bf16_f32 v40, v32, v33\nv_cvt_pk_bf16_f32 v41, v34, v35')
    a('ds_write_b64 v11, v[40:41]\nds_read_b128 v[48:51], v12\nds_read_b128 v[52:55], v12 offset:64')
    a(f's_add_u32 s10, s6, {r2}\ns_and_b32 s10, s10, 7\ns_lshl_b32 s10, s10, 5\ns_add_u32 s10, s10, s15\ns_lshl_b32 s10, s10, 10\ns_add_u32 s10, s10, {WS_M}')
    a('v_lshlrev_b32 v10, 4, v1\nv_mov_b32 v23, s44')
    s.wait_flag(C_G, TH['2'][1], sleep=1)
    for ks in range(2):
        for T in range(4):
            for u in range(2):
                r = 64 + 16 * ks + 4 * T + 2 * u
                a(f'ds_read_b64_tr_b16 v[{r}:{r+1}], v{28+T} offset:{ks*4096+u*2048}')
    a('s_waitcnt lgkmcnt(0)')
    for ks in range(2):
        for T in range(4): s.mfma(32 + 4 * T, 48 + 4 * ks, 64 + 16 * ks + 4 * T, ks == 0)
    s.pack24(20, 32, 36, 40, 44)
    a('buffer_store_dwordx4 v[20:23], v10, s[40:43], s10 offen sc1')
    s.stamp(4)
    a('L_end:')
    if kw.get('probe'):
        pw, pst, pm, pb = kw['probe']
        a(f's_waitcnt lgkmcnt(0)\ns_cmp_lg_u32 s7, {pw}\ns_cbranch_scc1 L_exit')
        if pw >= 4: a('s_barrier\ns_barrier' if kw.get('obar') and pw != 6 else 's_barrier')
        if kw.get('clk') == 1: a('s_memtime s[92:93]\ns_waitcnt lgkmcnt(0)\ns_sub_u32 s10, s92, s90\ns_lshr_b32 s10, s10, 1\ns_add_u32 s94, s64, s10')
        if kw.get('clk') == 2: a('s_memrealtime s[92:93]\ns_waitcnt lgkmcnt(0)\ns_sub_u32 s10, s92, s88\ns_mul_i32 s10, s10, 10\ns_add_u32 s94, s64, s10')
        if kw.get('px') is not None: a(f's_cmp_lg_u32 s45, {kw["px"]}\ns_cbranch_scc1 L_exit')
        if kw.get('pm') is not None: a(f's_mul_i32 s10, s45, {kw["pm"]}\ns_add_u32 s94, s64, s10')
        if kw.get('pg') is not None: a(f's_cmp_lg_u32 s3, {kw["pg"]}\ns_cbranch_scc1 L_exit')
        a(f's_sub_u32 s10, s{64+2*pst}, s64\ns_mul_i32 s10, s10, {pm}\ns_add_u32 s10, s10, {pb}\ns_min_u32 s10, s10, 20000')
        a('L_padloop:\ns_memrealtime s[12:13]\ns_waitcnt lgkmcnt(0)\ns_sub_u32 s11, s12, s64\ns_cmp_lt_u32 s11, s10\ns_cbranch_scc1 L_padloop')
    s.dump_stamps()
    a('L_exit:')
    a('s_endpgm')
    lines, added = hazard.fix(s.o, verbose=kw.get('verbose', False))
    return wrap('\n'.join(lines) + '\n', 256, NW * 64, kw.get('lds', LDS_TOTAL), kw.get('vgpr', 192))

if __name__ == '__main__':
    import ast
    out = sys.argv[1]
    kw = {}
    for x in sys.argv[2:]:
        k, v = x.split('=')
        try: kw[k] = ast.literal_eval(v)
        except Exception: kw[k] = v
    open(out, 'w').write(gen(**kw))
```

```python
import sys, math, struct
sys.path.insert(0, 'dev')
from common import *
import hazard

def f2u(x):
    return struct.unpack('<I', struct.pack('<f', x))[0]

NW = 7
FL = 0
WA, W1, KB, W2, VB, WO = [2048 + x for x in (0, 16384, 24576, 57344, 65536, 98304)]
XN = 2048 + 114688; XS = 1088
YL = XN + 4 * XS
QL = YL + 4 * XS
assert QL % 256 == 0
PL = QL + 4096
RED = PL + 4096
HL = RED + 4096; HS = 144
MX = 128
FP = 192
GX = HL + 640
LDS_TOTAL = GX + 512
C_WA, C_G, C_XN, F_Q, C_MX, C_P, F_WT, C_QP, C_Y, C_HP, T_A, T_B, F_K, TAGW, F_V = [4 * i for i in range(15)]

WS_Q = 0x1000
WS_H = WS_Q + 0x40000
WS_LSE = WS_H + 0x40000
WS_O = WS_LSE + 0x4000
WS_M = WS_O + 0x80000
WS_S = 0x150000
assert WS_S >= WS_M + 0x40000
WS_T = WS_S + 0x80000
WS_N = WS_T + 0x10000
WS_END = WS_T + 0x20000
assert WS_END <= 0x200000
STAMP = 0x8000000

class G:
    def __init__(s, **kw):
        s.o = []
        s.nl = 0
        s.kw = kw
        s.stamps = kw.get('stamps', False)
    def a(s, t):
        for l in t.split('\n'):
            l = l.strip()
            if l: s.o.append(l)
    def lab(s, p='L'):
        s.nl += 1
        return f'{p}_{s.nl}'
    def stamp(s, i):
        pr = s.kw.get('probe')
        only = s.kw.get('only')
        if (s.stamps and (only is None or i in only or i == 0)) or (pr and i in (0, pr[1])):
            s.a(f's_memrealtime s[{64+2*i}:{65+2*i}]')
    def budget(s):
        s.a('s_sub_u32 s46, s46, 1\ns_cbranch_scc1 L_end')
    def wait_flag(s, off, n, extra=None, sleep=0, vt='v9'):
        L = s.lab('W')
        if sleep:
            L2 = s.lab('W')
            s.a(f's_branch {L2}\n{L}:\ns_sleep {sleep}\n{L2}:')
        else:
            s.a(f'{L}:')
        s.a(f'ds_read_b32 {vt}, v8 offset:{off}')
        ne = 0
        if extra:
            for e in extra: s.a(e)
            ne = len(extra)
        s.budget()
        s.a(f's_waitcnt lgkmcnt({0 if (s.stamps and not s.kw.get("lean")) or (s.kw.get("safeA") and ne > 6) else min(ne, 15)})')
        s.a(f'v_cmp_gt_u32 vcc, {n}, {vt}')
        s.a(f's_cbranch_vccnz {L}')
    def signal(s, off):
        s.a(f's_mov_b64 exec, 1\nds_add_u32 v8, v6 offset:{off}\ns_mov_b64 exec, -1')
    def srd(s, d, p):
        s.a(f's_mov_b32 s{d}, s{p}\ns_mov_b32 s{d+1}, s{p+1}')
    def srd_const(s, d, n):
        s.a(f's_mov_b32 s{d+2}, {n}\ns_mov_b32 s{d+3}, 0x20000')
    def wave_sum(s, v, sd):
        for m in ('quad_perm:[1,0,3,2]', 'quad_perm:[2,3,0,1]', 'row_half_mirror', 'row_mirror'):
            s.a(f'v_add_f32_dpp {v}, {v}, {v} {m} row_mask:0xf bank_mask:0xf')
        s.a(f'v_add_f32_dpp {v}, {v}, {v} row_bcast:15 row_mask:0xa bank_mask:0xf')
        s.a(f'v_add_f32_dpp {v}, {v}, {v} row_bcast:31 row_mask:0xc bank_mask:0xf')
        s.a(f'v_readlane_b32 {sd}, {v}, 63')
    def rows_allreduce(s, op, v, t):
        s.a(f'v_mov_b32 {t}, {v}\nv_permlane16_swap_b32 {t}, {v}\n{op} {v}, {t}, {v}')
        s.a(f'v_mov_b32 {t}, {v}\nv_permlane32_swap_b32 {t}, {v}\n{op} {v}, {t}, {v}')
    def layernorm(s, src, f, t):
        P = lambda r: f'v[{r}:{r+1}]'
        for k in range(4):
            s.a(f'v_lshlrev_b32 v{f+2*k}, 16, v{src+k}\nv_and_b32 v{f+2*k+1}, s55, v{src+k}')
        s.a(f'v_pk_add_f32 {P(t)}, {P(f)}, {P(f+2)}\nv_pk_add_f32 {P(t+2)}, {P(f+4)}, {P(f+6)}\nv_pk_add_f32 {P(t)}, {P(t)}, {P(t+2)}\nv_add_f32 v{t}, v{t}, v{t+1}')
        s.wave_sum(f'v{t}', 's10')
        s.a(f'v_mov_b32 v{src+3}, {hex(f2u(1/512))}')
        s.a(f'v_mul_f32 v{src}, s10, v{src+3}')
        for k in range(4):
            s.a(f'v_pk_add_f32 {P(t+2*k)}, {P(f+2*k)}, {P(src)} op_sel_hi:[1,0] neg_lo:[0,1] neg_hi:[0,1]')
        s.a(f'v_pk_mul_f32 {P(t)}, {P(t)}, {P(t)}')
        for k in range(1, 4):
            s.a(f'v_pk_fma_f32 {P(t)}, {P(t+2*k)}, {P(t+2*k)}, {P(t)}')
        s.a(f'v_add_f32 v{t}, v{t}, v{t+1}')
        s.a(f'v_cvt_pk_bf16_f32 v{src}, v{src}, v{src}\nv_lshlrev_b32 v{src}, 16, v{src}')
        ms = ['quad_perm:[1,0,3,2] row_mask:0xf', 'quad_perm:[2,3,0,1] row_mask:0xf', 'row_half_mirror row_mask:0xf', 'row_mirror row_mask:0xf', 'row_bcast:15 row_mask:0xa', 'row_bcast:31 row_mask:0xc']
        fill = [f'v_pk_add_f32 {P(f+2*k)}, {P(f+2*k)}, {P(src)} op_sel_hi:[1,0] neg_lo:[0,1] neg_hi:[0,1]' for k in range(4)]
        fill += [f'v_cvt_pk_bf16_f32 v{t+2+k}, v{f+2*k}, v{f+2*k+1}' for k in range(4)]
        for k in range(4): fill += [f'v_lshlrev_b32 v{f+2*k}, 16, v{t+2+k}', f'v_and_b32 v{f+2*k+1}, s55, v{t+2+k}']
        for m in ms:
            s.a(f'v_add_f32_dpp v{t}, v{t}, v{t} {m} bank_mask:0xf')
            s.a(fill.pop(0)); s.a(fill.pop(0))
        s.a(f'v_readlane_b32 s10, v{t}, 63')
        s.a(fill.pop(0)); s.a(fill.pop(0))
        s.a(f'v_mul_f32 v{src}, s10, v{src+3}')
        s.a(f'v_cvt_pk_bf16_f32 v{src}, v{src}, v{src}\nv_lshlrev_b32 v{src}, 16, v{src}')
        s.a(f'v_add_f32 v{src}, {hex(f2u(1e-5))}, v{src}')
        s.a(f'v_cvt_pk_bf16_f32 v{src}, v{src}, v{src}\nv_lshlrev_b32 v{src}, 16, v{src}')
        s.a(f'v_sqrt_f32 v{src}, v{src}')
        s.a(fill.pop(0))
        s.a(f'v_cvt_pk_bf16_f32 v{src}, v{src}, v{src}\nv_lshlrev_b32 v{src}, 16, v{src}')
        s.a(f'v_rcp_f32 v{src}, v{src}')
        s.a(fill.pop(0))
        assert not fill
        for k in range(4):
            s.a(f'v_pk_mul_f32 {P(f+2*k)}, {P(f+2*k)}, {P(src)} op_sel_hi:[1,0]')
        for k in range(4):
            s.a(f'v_cvt_pk_bf16_f32 v{src+k}, v{f+2*k}, v{f+2*k+1}')
    def round_bf16(s, v):
        s.a(f'v_cvt_pk_bf16_f32 {v}, {v}, {v}\nv_lshlrev_b32 {v}, 16, {v}')
    def tag_finish(s):
        s.a('s_mul_i32 s44, s44, 0x2c9277b5\ns_add_u32 s44, s44, 0xac564b05')
    def pack24(s, d, a, b, c, e):
        s.a(f'v_perm_b32 v{d}, v{a}, v{e}, s50\nv_perm_b32 v{d+1}, v{b}, v{e}, s51\nv_perm_b32 v{d+2}, v{c}, v{e}, s52')
    def pack24_consts(s):
        s.a('s_mov_b32 s50, 0x07060503\ns_mov_b32 s51, 0x07060502\ns_mov_b32 s52, 0x07060501')
    def unpack24(s, r):
        s.a(f'v_perm_b32 v{r+3}, v{r}, v{r+1}, s53\nv_perm_b32 v{r+3}, v{r+3}, v{r+2}, s54')
    def unpack24_consts(s):
        s.a('s_mov_b32 s53, 0x04000c0c\ns_mov_b32 s54, 0x0706000c')
    def reduce32(s, r):
        s.a(f'v_permlane32_swap_b32 v{r}, v{r+2}\nv_permlane32_swap_b32 v{r+1}, v{r+3}')
        s.a(f'v_add_f32 v{r}, v{r}, v{r+2}\nv_add_f32 v{r+1}, v{r+1}, v{r+3}')
        s.a(f'v_permlane16_swap_b32 v{r}, v{r+1}\nv_add_f32 v{r}, v{r}, v{r+1}')
        for m in ('row_ror:8', 'row_ror:4', 'row_ror:2'):
            s.a(f'v_add_f32_dpp v{r}, v{r}, v{r} {m} row_mask:0xf bank_mask:0xf')
    def mfma(s, d, A, B, first):
        s.a(f'v_mfma_f32_16x16x32_bf16 v[{d}:{d+3}], v[{A}:{A+3}], v[{B}:{B+3}], {"0" if first else f"v[{d}:{d+3}]"}')
    def mlp_slot(s, d, t):
        ha = s.kw.get('ha', 4)
        s.a(f's_mul_i32 s{d}, s5, 6\ns_add_u32 s{d}, s{d}, s3\ns_cmp_gt_u32 s3, {ha}\ns_cselect_b32 s{t}, 2, 0\ns_sub_u32 s{d}, s{d}, s{t}\ns_lshl_b32 s{d}, s{d}, 1')
        s.a(f's_lshl2_add_u32 s{t}, s3, s5\ns_add_u32 s{t}, s{t}, {48-4*ha}')
        s.a(f's_bitcmp1_b32 {3 << ha}, s3\ns_cselect_b32 s{d}, s{t}, s{d}')
    def hint(s, name, off, nq, tries, sub):
        a = s.a
        a(f's_lshl_b32 s48, s3, 7\ns_add_u32 s48, s48, {WS_N + off}\ns_add_u32 s49, s48, s4')
        a('s_and_b32 s50, s44, 0xff\ns_mul_i32 s50, s50, 0x01010101\ns_mov_b32 s51, s50\nv_mov_b32 v21, s50')
        if sub: a('s_andn2_b32 s48, s49, 7')
        a(f's_mov_b32 s47, {tries}')
    def hint_go(s, name, nq):
        a = s.a
        a('s_mov_b64 exec, 1\nbuffer_store_byte v21, v8, s[40:43], s49 offen\ns_mov_b64 exec, -1')
        a(f'L_{name}:')
        a(f's_load_dwordx{2*nq} s[52:{51+2*nq}], s[40:41], s48 glc')
        a(f's_sub_u32 s47, s47, 1\ns_cbranch_scc1 L_{name}d\ns_waitcnt lgkmcnt(0)')
        for k in range(nq): a(f's_xor_b64 s[{52+2*k}:{53+2*k}], s[{52+2*k}:{53+2*k}], s[50:51]')
        for k in range(1, nq): a(f's_or_b64 s[52:53], s[52:53], s[{52+2*k}:{53+2*k}]')
        a(f's_cbranch_scc1 L_{name}\nL_{name}d:\ns_waitcnt lgkmcnt(0)')
    def dump_stamps(s, nst=16):
        if not s.stamps: return
        s.a('s_waitcnt lgkmcnt(0)\ns_mov_b64 exec, -1\nv_mov_b32 v10, 0')
        for i in range(nst):
            s.a(f'v_writelane_b32 v10, s{64+2*i}, {i}')
        s.a(f's_mul_i32 s10, s2, {NW*64}\ns_lshl_b32 s11, s7, 6\ns_add_u32 s10, s10, s11\ns_add_u32 s10, s10, {STAMP}')
        s.a('v_lshlrev_b32 v11, 2, v1\ns_mov_b64 exec, 0xffff\nbuffer_store_dword v10, v11, s[40:43], s10 offen ' + s.kw.get('stfl', ''))

def gen(**kw):
    s = G(**kw)
    a = s.a
    depth = kw.get('depth', 20)
    NT = kw.get('nt', 'nt')
    npq = kw.get('npq', 2); gapq = kw.get('gapq', 12); q0 = kw.get('q0', 4)
    npl = kw.get('npl', 4); gapl = kw.get('gapl', 6)
    CSC = math.log2(math.e) / math.sqrt(128)
    ONE2 = 0x3f803f80
    order = kw.get('order', '11kkkkkkkk22vvvvvvvvoooo')
    TH = {c: [i + 1 for i, x in enumerate(order) if x == c] for c in '1k2vo'}
    assert [len(TH[c]) for c in '1k2vo'] == [2, 8, 2, 8, 4]
    marks = {TH['1'][1], TH['2'][1], TH['o'][3], len(order) - (kw.get('oe') or 0), kw.get('qg') or 2} | set(TH['k'][1::2]) | set(TH['v'][1::2])
    def common():
        if s.stamps:
            for i in range(1, 16): a(f's_mov_b32 s{64+2*i}, 0')
        a('v_and_b32 v1, 63, v0\ns_lshr_b32 s5, s4, 3\ns_and_b32 s6, s4, 7')
        a(f's_mov_b32 s42, {STAMP + 0x100000 if s.stamps else WS_END}\ns_mov_b32 s43, 0x20000')
        a(f's_mov_b32 s46, {kw.get("budget", 5000000)}')
        a('v_mov_b32 v6, 1')
        a('v_lshrrev_b32 v2, 4, v1\nv_and_b32 v3, 15, v1')
    s.stamp(0)
    a('s_load_dwordx16 s[16:31], s[0:1], 0\ns_load_dwordx8 s[32:39], s[0:1], 64\ns_load_dwordx2 s[40:41], s[0:1], 96')
    a('s_lshr_b32 s4, s2, 3\ns_cmp_ge_u32 s4, 32\ns_cbranch_scc1 L_exit')
    a('v_lshrrev_b32 v2, 6, v0\nv_bfe_u32 v4, v0, 3, 3')
    a('v_mov_b32 v8, 0\nds_write_b8 v0, v8')
    if kw.get('prefetch', True):
        a('s_getpc_b64 s[8:9]\nL_pc:')
        if kw.get('pf2'):
            a('s_lshl_b32 s10, s4, 7\nv_lshl_add_u32 v3, v0, 12, s10\nv_min_u32 v3, L_exit-L_pc, v3\nglobal_load_dword v7, v3, s[8:9]')
        else:
            a('v_lshlrev_b32 v3, 7, v0\nv_min_u32 v3, L_exit-L_pc, v3\nglobal_load_dword v7, v3, s[8:9]')
    a('v_readfirstlane_b32 s7, v2')
    a('v_and_b32 v5, 6, v4\nv_xor_b32 v5, v5, v0\nv_and_b32 v5, 7, v5\nv_lshlrev_b32 v5, 4, v5')
    a('s_and_b32 s3, s2, 7\ns_cmp_eq_u32 s7, 6\ns_cbranch_scc1 L_L\ns_cmp_ge_u32 s7, 4\ns_cbranch_scc1 L_PM')
    a('s_mov_b32 s51, 0x20000\nv_lshlrev_b32 v11, 4, v0')
    a('s_lshr_b32 s10, s4, 3\ns_lshl2_add_u32 s10, s10, s7\ns_lshl_b32 s10, s10, 18\ns_and_b32 s11, s4, 7\ns_lshl3_add_u32 s11, s3, s11\ns_xor_b32 s11, s11, ' + str(kw.get('rq', 0)) + '\ns_lshl_b32 s11, s11, 7\ns_add_u32 s10, s10, s11')
    a(f's_bfm_b32 s50, 1, 22\ns_bfm_b32 s12, 6, 10\nv_lshl_add_u32 v10, v4, 13, v5\ns_lshl_b32 m0, s7, 12\ns_addk_i32 m0, {WA}')
    a('s_waitcnt lgkmcnt(0)')
    a('s_mov_b64 s[48:49], s[22:23]')
    a('global_load_dwordx4 v[12:15], v11, s[16:17]')
    for r in range(4):
        a(f'buffer_load_dwordx4 v10, s[48:51], s10 offen offset:{r*1024} {NT} lds')
        if r < 3: a('s_add_u32 s10, s10, s12')
    a('s_branch L_C')
    a('L_L:')
    if kw.get('lprio'): a(f's_setprio {kw["lprio"]}')
    a('s_barrier')
    common()
    rq, r2 = kw.get('rq', 0), kw.get('r2', 0)
    s.mlp_slot(10, 11)
    a('s_cselect_b32 s11, 64, 0\ns_cselect_b32 s8, 30, 15')
    a('v_and_b32 v14, s11, v5\nv_lshl_add_u32 v14, v14, 24, v5\nv_mul_u32_u24 v32, 3584, v4\nv_add_u32 v32, v32, v14')
    for r in range(1, 4): a(f'v_add_u32 v{32+r}, {r*(8*3584-1024)}, v32')
    a('v_xor_b32 v14, v3, v2\nv_lshlrev_b32 v14, 4, v14\nv_lshl_add_u32 v18, v2, 8, v14')
    for r in range(1, 4): a(f'v_xor_b32 v{18+r}, {r*64}, v18\nv_add_u32 v{18+r}, {r*7168}, v{18+r}')
    a(f's_mov_b32 s50, {512*3584}\ns_mov_b32 s51, 0x20000\ns_lshl_b32 s8, 1, s8')
    a(f's_mul_i32 s12, s6, {64*3584}\ns_lshl_b32 s11, s10, 6\ns_add_u32 s12, s12, s11')
    a(f's_lshl_b32 s13, s5, 23\ns_lshl_b32 s11, s3, 20\ns_add_u32 s13, s13, s11\ns_lshl_b32 s11, s6, 10\ns_add_u32 s13, s13, s11\ns_add_u32 s13, s13, {3072*256}')
    a('s_bfm_b32 s54, 1, 25\ns_mov_b32 s55, s51\ns_mov_b32 s14, s13')
    a('s_waitcnt lgkmcnt(0)')
    s.stamp(1)
    dg = depth // 4
    segs = {'1': (32, 48, 28, 12, 32 * 3584, W1), 'k': (18, 52, 18, 13, 32768, KB), 'v': (22, 56, 20, 14, 32768, VB),
            '2': (26, 60, 32, 15, 's8', W2), 'o': (26, 96, 24, 9, 32768, WO)}
    cnt = {c: 0 for c in segs}
    late = False
    prof = kw.get('prof')
    prof = [int(x, 16) for x in prof] if prof else [dg] * len(order)
    assert len(prof) == len(order)
    landed = 0
    first_wait = min(gi for gi in range(len(order)) if gi + 1 > prof[gi])
    for gi, c in enumerate(order):
        vr, sd, ptr, so, step, lds = segs[c]
        if gi == first_wait:
            a('v_lshlrev_b32 v14, 1, v2\nv_xor_b32 v14, v3, v14\nv_lshlrev_b32 v14, 4, v14\nv_lshl_add_u32 v22, v2, 8, v14')
            a(f'v_xor_b32 v23, 128, v22\nv_add_u32 v24, {2*7168}, v22\nv_add_u32 v25, {3*7168}, v23\nv_add_u32 v23, 7168, v23')
            a('v_lshl_add_u32 v26, v4, 10, v5')
            for r in range(1, 4): a(f'v_add_u32 v{26+r}, {r*7168}, v26')
            a(f's_mov_b32 s58, s54\ns_mov_b32 s59, s51\ns_mov_b32 s62, {1792*1024}\ns_mov_b32 s63, s51\ns_bfm_b32 s98, 1, 22\ns_mov_b32 s99, s51')
            s.srd(56, 20); s.srd(60, 32); s.srd(96, 24)
            a(f's_add_u32 s11, s6, {r2}\ns_and_b32 s11, s11, 7\ns_lshl_b32 s11, s11, 7\ns_lshl_b32 s15, s10, 15\ns_add_u32 s15, s15, s11')
            a('s_lshl2_add_u32 s9, s3, s5\ns_lshl_b32 s9, s9, 17\ns_lshl_b32 s11, s6, 7\ns_add_u32 s9, s9, s11')
            s.stamp(2)
            late = True
        assert late or c in '1k'
        if cnt[c] == 0 and c in '1k': s.srd(sd, ptr)
        a(f's_mov_b32 m0, {lds + cnt[c] * 4096}')
        if cnt[c]: a(f's_add_u32 s{so}, s{so}, {step}')
        while landed < gi + 1 - prof[gi]:
            landed += 1
            if landed in marks or landed == gi + 1 - prof[gi]:
                a(f's_waitcnt vmcnt({(gi-landed)*4})')
            if landed in marks:
                a(f'v_mov_b32 v30, {landed}\nds_write_b32 v8, v30 offset:{C_G}')
                if landed == TH['v'][7]: s.stamp(6)
        for r in range(4):
            fine = kw.get('fine')
            if fine and gi * 4 + r >= fine and (r or fine - 1 < (gi - landed) * 4): a(f's_waitcnt vmcnt({fine-1})')
            fl = kw.get('nt' + c, NT)
            a(f'buffer_load_dwordx4 v{vr+r}, s[{sd}:{sd+3}], s{so} offen offset:{r*1024} {fl} lds')
        cnt[c] += 1
    for n in range(landed + 1, len(order) + 1):
        if n in marks:
            if kw.get('obar') and n == len(order) and n != TH['v'][7]:
                a('s_waitcnt vmcnt(0)')
            else:
                a(f'v_mov_b32 v30, {n}\ns_waitcnt vmcnt({(len(order)-n)*4})\nds_write_b32 v8, v30 offset:{C_G}')
            if n == TH['v'][7]: s.stamp(6)
    s.stamp(7)
    if kw.get('obar'): a('s_barrier')
    a('s_branch L_end')

    if kw.get('shift'): a('s_nop 0')
    a('L_PM:')
    a('s_barrier')
    common()
    ns = kw.get('nsamp', 1)
    if kw.get('spread'):
        nb, base = kw['spread']
        a(f's_xor_b32 s9, s7, s4\ns_and_b32 s9, s9, 1\ns_lshl_b32 s10, s3, 5\ns_add_u32 s10, s10, s4\ns_and_b32 s10, s10, {nb-1}\ns_lshl1_add_u32 s10, s10, s9\ns_lshl_b32 s10, s10, 6\ns_mul_i32 s11, s2, 5\ns_and_b32 s11, s11, 63\ns_add_u32 s10, s10, s11\ns_lshl_b32 s10, s10, 7\ns_add_u32 s10, s10, {base}')
    else:
        a(f's_xor_b32 s9, s7, s4\ns_and_b32 s9, s9, 1\ns_lshr_b32 s10, s2, 6\ns_lshl1_add_u32 s10, s10, s9\ns_lshl_b32 s10, s10, 6\ns_and_b32 s11, s2, 63\ns_add_u32 s10, s10, s11\ns_lshl_b32 s10, s10, 7\ns_add_u32 s10, s10, {WS_T}')
    a('s_waitcnt lgkmcnt(0)')
    if kw.get('tlb'):
        a('s_lshl3_add_u32 s11, s5, s3\ns_lshl_b32 s11, s11, 10\ns_add_u32 s11, s11, s6\ns_addk_i32 s11, 768\ns_lshl_b32 s11, s11, 10\nv_mov_b32 v10, s11')
        a('s_lshl2_add_u32 s11, s3, s5\ns_lshl_b32 s11, s11, 10\ns_add_u32 s11, s11, s6\ns_lshl_b32 s11, s11, 7\nv_mov_b32 v11, s11')
        a(f's_lshl_b32 s11, s2, 7\nv_mov_b32 v12, s11\ns_add_u32 s11, s11, {WS_T + 0x10000}\nv_mov_b32 v13, s11')
        a('s_mov_b64 exec, 1\ns_cmp_eq_u32 s7, 4\ns_cbranch_scc0 L_tl5')
        a('global_load_dword v7, v10, s[20:21] nt\nglobal_load_dword v7, v11, s[24:25] nt\ns_branch L_tl6')
        a('L_tl5:\nglobal_load_dword v7, v12, s[32:33] nt\nglobal_load_dword v7, v13, s[40:41] nt')
        a('L_tl6:\ns_mov_b64 exec, -1')
    if kw.get('pd'): a(f's_sleep {kw["pd"]}')
    a('s_memtime s[12:13]\ns_load_dword s11, s[40:41], s10')
    if ns == 2: a('s_add_u32 s10, s10, 0x10000\ns_waitcnt lgkmcnt(0)\ns_load_dword s11, s[40:41], s10')
    a('s_waitcnt lgkmcnt(0)\ns_memtime s[14:15]\ns_lshl_b32 s10, s9, 2\nv_mov_b32 v10, s10\ns_waitcnt lgkmcnt(0)')
    a(f's_sub_u32 s12, s14, s12\nv_mov_b32 v11, s12\nds_write_b32 v10, v11 offset:{T_A}')
    a('s_cmp_eq_u32 s7, 4\ns_cbranch_scc1 L_P\ns_branch L_M')
    a('L_C:')
    if kw.get('clk'): a('s_memtime s[90:91]\ns_memrealtime s[88:89]')
    a('s_load_dword s44, s[40:41], 0\ns_barrier')
    a(f's_setprio {kw.get("cprio", 2)}')
    common()
    s.stamp(1)
    if 'C' in kw.get('kill', ''): a('s_waitcnt vmcnt(0)\ns_branch L_end')
    a('v_bfe_u32 v4, v1, 2, 2\nv_and_b32 v5, 3, v1')
    a(f's_mul_i32 s11, s7, {XS}\ns_add_u32 s11, s11, {XN}')
    a('v_lshrrev_b32 v10, 2, v1\nv_lshlrev_b32 v10, 6, v10\nv_and_b32 v11, 1, v1\nv_lshl_add_u32 v10, v11, 5, v10\nv_and_b32 v11, 2, v1\nv_lshl_add_u32 v10, v11, 2, v10\nv_add_u32 v11, s11, v10')
    a('s_mov_b32 s55, 0xffff0000')
    a('v_lshl_add_u32 v27, v2, 2, v4\nv_bfe_u32 v96, v27, 1, 2\nv_lshlrev_b32 v96, 5, v96\nv_lshl_add_u32 v96, v27, 7, v96\nv_lshl_add_u32 v96, v5, 3, v96')
    a('s_lshl_b32 s12, s7, 5\nv_xor_b32 v10, s12, v96')
    a('s_getreg_b32 s45, hwreg(HW_REG_XCC_ID, 0, 4)')
    a(f'v_mul_u32_u24 v24, {XS}, v5\nv_lshl_add_u32 v24, v2, 4, v24')
    a(f's_lshl_b32 s10, s5, 8\ns_add_u32 s10, s10, {XN}\nv_add_u32 v25, s10, v24')
    a(f's_lshl_b32 s10, s6, 7\ns_add_u32 s10, s10, {YL}\nv_add_u32 v24, s10, v24')
    a(f's_lshl_b32 s14, s3, 15\ns_lshl1_add_u32 s14, s12, s14\ns_lshl_b32 s13, s4, 8\ns_xor_b32 s58, s13, {rq*256}\ns_add_u32 s58, s14, s58\ns_add_u32 s58, s58, {WS_Q}')
    a(f's_lshl2_add_u32 s59, s13, s14\ns_add_u32 s59, s59, {WS_H}')
    a('v_lshlrev_b32 v106, 13, v3\nv_lshl_add_u32 v106, v2, 4, v106\nv_lshlrev_b32 v107, 4, v1\nv_mov_b32 v30, ' + str(kw.get('clamp', 384)) + '\nv_sub_u32 v31, 0, v30')
    s.pack24_consts()
    a('s_mov_b32 s13, 1')
    a('s_waitcnt vmcnt(0)' if kw.get('safeB') else 's_waitcnt vmcnt(4)')
    if not kw.get('ackst'): s.stamp(2)
    a('L_ln:')
    s.layernorm(12, 16, 32)
    a(f'ds_write2_b64 v11, v[12:13], v[14:15] offset1:2\nv_add_u32 v11, {YL-XN}, v11')
    a('s_sub_u32 s13, s13, 1\ns_cbranch_scc0 L_ln')
    s.stamp(3)
    a('s_waitcnt vmcnt(0) lgkmcnt(0)')
    if kw.get('st_tile'): s.stamp(5)
    s.signal(C_WA)
    s.tag_finish()
    a(f'v_mov_b32 v111, s44\nv_mov_b32 v115, s44\nds_write_b32 v8, v111 offset:{TAGW}')
    s.wait_flag(C_WA, 4, extra=[f'ds_read_b64 v[28:29], v8 offset:{T_A}'] + [x for t in range(4) for x in (f'ds_read_b128 v[{64+4*t}:{67+4*t}], v25 offset:{t*64}',
                f'ds_read_b64_tr_b16 v[{40+4*t}:{41+4*t}], v10 offset:{WA+t*4096}', f'ds_read_b64_tr_b16 v[{42+4*t}:{43+4*t}], v10 offset:{WA+t*4096+2048}')])
    for t in range(4):
        a(f's_waitcnt lgkmcnt({9-3*t})')
        s.mfma(16, 40 + 4 * t, 64 + 4 * t, t == 0)
        if t == 0: a('v_sub_u32 v110, v28, v29\nv_min_u32 v28, v28, v29')
        if t == 1: a('v_cmp_ne_u32 vcc, 0, v28\nv_med3_i32 v110, v110, v30, v31')
        if t == 2: a(('v_sub_u32 v29, 0, v110\nv_cndmask_b32 v110, v29, v110, vcc' if kw.get('miss', 1) else 'v_cndmask_b32 v110, 0, v110, vcc') + '\nv_lshl_or_b32 v110, v110, 4, s45')
    for t in range(2): a(f'ds_read_b128 v[{80+4*t}:{83+4*t}], v24 offset:{t*64}')
    a('s_mov_b32 exec_lo, 0x000f000f\ns_mov_b32 exec_hi, 0x000f000f')
    a('v_cvt_pk_bf16_f32 v108, v16, v17\nv_cvt_pk_bf16_f32 v109, v18, v19')
    a('buffer_store_dwordx4 v[108:111], v106, s[40:43], s58 offen')
    if kw.get('qe'): s.signal(C_QP)
    else: a('s_mov_b64 exec, -1')
    if not kw.get('ackst'): s.stamp(4)
    s.wait_flag(C_G, TH['1'][1], extra=[f'ds_read_b64_tr_b16 v[{40+2*t}:{41+2*t}], v10 offset:{W1+t*2048}' for t in range(4)], sleep=1)
    for t in range(2):
        a(f's_waitcnt lgkmcnt({2-2*t})')
        s.mfma(16, 40 + 4 * t, 80 + 4 * t, t == 0)
    a('s_mov_b32 exec_lo, 0x000f000f\ns_mov_b32 exec_hi, 0x000f000f')
    s.pack24(112, 16, 17, 18, 19)
    a('buffer_store_dwordx4 v[112:115], v107, s[40:43], s59 offen')
    if kw.get('he'): s.signal(C_HP)
    else: a('s_mov_b64 exec, -1')
    if 'Q' in kw.get('kill', ''): a('s_branch L_end')
    a(f's_lshl_b32 s10, s7, 13\ns_add_u32 s10, s10, {KB}')
    a(f'v_xor_b32 v10, v2, v3\nv_lshlrev_b32 v10, 4, v10\nv_lshl_add_u32 v10, v3, 8, v10\nv_add_u32 v102, {QL}, v10\nv_add_u32 v10, s10, v10')
    a('v_xor_b32 v103, 64, v102\nv_xor_b32 v104, 128, v102\nv_xor_b32 v105, 192, v102')
    a('v_xor_b32 v11, 64, v10\nv_xor_b32 v12, 128, v10\nv_xor_b32 v13, 192, v10')
    a(f's_lshl_b32 s10, s7, 2\ns_add_u32 s10, s10, {MX}\nv_lshlrev_b32 v15, 4, v5\nv_add_u32 v24, s10, v15\nv_add_u32 v15, {MX}, v15\ns_add_u32 s10, s10, {FP-MX}\nv_mov_b32 v14, s10')
    a(f's_lshl_b32 s10, s7, 10\ns_add_u32 s10, s10, {PL}\nv_lshlrev_b32 v25, 4, v1\nv_add_u32 v26, s10, v25\nv_add_u32 v25, {PL}, v25')
    a('v_and_b32 v28, 7, v27\ns_lshl_b32 s10, s7, 1\nv_xor_b32 v28, s10, v28\nv_lshlrev_b32 v28, 5, v28\nv_lshl_add_u32 v28, v27, 8, v28\nv_lshl_add_u32 v28, v5, 3, v28')
    a(f'v_add_u32 v28, {VB}, v28\nv_xor_b32 v29, 32, v28')
    a(f's_lshr_b32 s10, s7, 1\ns_lshl_b32 s11, s10, 13\ns_add_u32 s11, s11, {WO}')
    a('v_add_u32 v96, s11, v96\nv_xor_b32 v97, 32, v96\nv_xor_b32 v98, 64, v96\nv_xor_b32 v99, 96, v96')
    a('v_lshlrev_b32 v30, 14, v3\nv_lshl_add_u32 v30, v2, 8, v30')
    a(f's_lshl_b32 s14, s3, 16\ns_add_u32 s14, s14, {WS_O}')
    a('s_lshr_b32 s11, s4, 4\ns_lshl2_add_u32 s11, s11, s7\ns_lshl_b32 s11, s11, 11\ns_and_b32 s12, s4, 15\ns_lshl4_add_u32 s11, s12, s11')
    a('v_lshlrev_b32 v31, 4, v1')
    a('s_xor_b32 s12, s3, s6\ns_and_b32 s12, s12, 4\ns_lshl_b32 s12, s12, 11\nv_or_b32 v101, s12, v31')
    a('s_lshl_b32 s15, s5, 14\ns_add_u32 s15, s15, s14\ns_lshl_b32 s10, s10, 12\ns_add_u32 s15, s15, s10\ns_and_b32 s10, s7, 1\ns_lshl_b32 s12, s10, 13\ns_add_u32 s15, s15, s12')
    a('s_add_u32 s14, s14, s11')
    a(f'v_lshlrev_b32 v100, 9, v2\nv_lshl_add_u32 v100, v3, 4, v100\nv_add_u32 v100, {RED}, v100')
    a(f's_lshr_b32 s10, s3, 1\ns_lshl2_add_u32 s56, s6, s10\ns_and_b32 s10, s3, 1\ns_lshl2_add_u32 s56, s56, s10\ns_lshl2_add_u32 s56, s56, s5\ns_lshl_b32 s56, s56, 10\ns_add_u32 s56, s56, {WS_S}\ns_add_u32 s63, s56, 8192')
    a('v_lshrrev_b32 v119, 1, v1\nv_lshlrev_b32 v119, 10, v119\nv_and_b32 v16, 1, v1\nv_lshl_add_u32 v119, v16, 4, v119')
    a(f's_lshl_b32 s60, s3, 15\ns_lshl_b32 s11, s4, 5\ns_add_u32 s60, s60, s11\ns_add_u32 s62, s60, {WS_M}\ns_add_u32 s60, s60, {WS_S}')
    a('v_lshl_add_u32 v117, v2, 13, v119')
    a(f's_lshl_b32 s60, s3, 16\ns_add_u32 s60, s60, s11\ns_add_u32 s60, s60, {WS_S}')
    a(f's_mov_b32 s13, {hex(f2u(CSC))}')
    a('s_mov_b32 s12, s13')
    for k in range(4): a(f'v_mov_b32 v{124+k}, {hex(ONE2)}')
    kt = TH['k'][1::2]
    a(f's_lshl_b32 s57, s7, 3\ns_lshr_b32 s57, {kt[0] | kt[1] << 8 | kt[2] << 16 | kt[3] << 24}, s57\ns_and_b32 s57, s57, 0xff')
    if not kw.get('qe'):
        a('s_waitcnt vmcnt(1)')
        s.signal(C_QP)
    if not kw.get('he'):
        a('s_waitcnt vmcnt(0)')
        s.signal(C_HP)
    s.wait_flag(C_G, 's57', sleep=1)
    for u in range(2):
        for t in range(4):
            a(f'ds_read_b128 v[{32+16*u+4*t}:{35+16*u+4*t}], v{10+t} offset:{u*4096}')
    if not kw.get('st_tile') and not kw.get('ackst'): s.stamp(5)
    s.wait_flag(F_Q, 1, extra=[f'ds_read_b128 v[{64+4*t}:{67+4*t}], v{102+t}' for t in range(4)], sleep=kw.get('fqs', 0))
    s.stamp(6)
    a('v_readfirstlane_b32 s47, v9')
    a('s_cmp_lg_u32 s47, 1\ns_cbranch_scc1 L_qrem')
    a('L_qgo:')
    DP = lambda op, d, x, y, m, rm='0xf': f'{op}_dpp {d}, {x}, {y} {m} row_mask:{rm} bank_mask:0xf'
    for u in range(2):
        for t in range(4):
            if u == 0: a(f's_waitcnt lgkmcnt({3-t})')
            s.mfma(16 + 4 * u, 32 + 16 * u + 4 * t, 64 + 4 * t, t == 0)
    if kw.get('safeC'): a('s_nop 15')
    a('v_mov_b32 v40, s44\nv_mov_b32 v47, s44\nv_mov_b32 v123, s44')
    for u in range(2):
        for k in range(4): a(DP('v_add_f32', f'v{16+4*u+k}', f'v{16+4*u+k}', f'v{16+4*u+k}', 'row_ror:4'))
        for k in range(4): a(DP('v_add_f32', f'v{16+4*u+k}', f'v{16+4*u+k}', f'v{16+4*u+k}', 'row_ror:8'))
        if u == 0: a('v_max3_f32 v10, v16, v17, v18')
    a('v_max3_f32 v10, v10, v19, v20\nv_max3_f32 v11, v21, v22, v23\nv_max_f32 v10, v10, v11\nv_max_f32 v11, v10, v11')
    a('v_permlane16_swap_b32 v11, v10\nv_max_f32 v10, v11, v10\nv_max_f32 v11, v11, v10')
    a('v_permlane32_swap_b32 v11, v10\nv_max_f32 v10, v11, v10\nv_or_b32 v10, 1, v10')
    WB = 128; VR = 160
    vrd = lambda t: [f'ds_read_b64_tr_b16 v[{VR+8*t+4*T+2*u}:{VR+1+8*t+4*T+2*u}], v{28+T} offset:{t*8192+u*4096}' for T in range(2) for u in range(2)]
    cw = lambda n: 0 if (s.stamps and not kw.get('lean')) else n
    a('ds_write_b32 v24, v10')
    a(f'ds_read_b128 v[32:35], v15\nds_read_b32 v9, v8 offset:{C_G}')
    for x in vrd(0) + vrd(1) + vrd(2): a(x)
    a(f's_waitcnt lgkmcnt({cw(13)})\ns_branch L_mx2')
    a('L_mx:')
    a('ds_read_b128 v[32:35], v15')
    s.budget()
    a('s_waitcnt lgkmcnt(0)')
    a('L_mx2:')
    a('v_min3_u32 v11, v32, v33, v34\nv_max3_f32 v10, v32, v33, v34\nv_min_u32 v11, v11, v35\nv_max_f32 v10, v10, v35\nv_cmp_eq_u32 vcc, 0, v11\nv_mul_f32 v116, s13, v10\ns_cbranch_vccnz L_mx')
    for k in range(4): a(f'v_pk_fma_f32 v[{16+2*k}:{17+2*k}], v[{16+2*k}:{17+2*k}], s[12:13], v[116:117] op_sel_hi:[1,1,0] neg_lo:[0,0,1] neg_hi:[0,0,1]')
    for k in range(8): a(f'v_exp_f32 v{16+k}, v{16+k}')
    for k in range(4): a(f'v_cvt_pk_bf16_f32 v{32+k}, v{16+2*k}, v{17+2*k}')
    a('ds_write_b128 v26, v[32:35]\nds_write_b32 v14, v6')
    a('L_pw:')
    a(f'ds_read_b128 v[36:39], v8 offset:{FP}')
    for t in range(4): a(f'ds_read_b128 v[{64+4*t}:{67+4*t}], v25 offset:{t*1024}')
    a(f'ds_read_b32 v118, v8 offset:{C_G}')
    for x in vrd(3): a(x)
    a('v_mov_b32 v41, v116')
    s.budget()
    a(f's_waitcnt lgkmcnt({cw(9)})\nv_min3_u32 v11, v36, v37, v38\nv_min_u32 v11, v11, v39\nv_cmp_eq_u32 vcc, 0, v11\ns_cbranch_vccnz L_pw')
    s.stamp(7)
    def wo_reads(kss=(0, 1)):
        for ks in kss:
            for T in range(4):
                for u in range(2):
                    r = WB + 16 * ks + 4 * T + 2 * u
                    a(f'ds_read_b64_tr_b16 v[{r}:{r+1}], v{96+T} offset:{ks*4096+u*2048}')
    early = False
    a(f'v_cmp_gt_u32 vcc, {TH["v"][5]}, v9\ns_cbranch_vccz L_v012')
    s.wait_flag(C_G, TH['v'][5], extra=vrd(0) + vrd(1) + vrd(2), sleep=2)
    a('s_waitcnt lgkmcnt(0)')
    a('L_v012:')
    for t in range(3):
        a(f's_waitcnt lgkmcnt({8-t})')
        for T in range(2): s.mfma(16 + 4 * T, VR + 8 * t + 4 * T, 64 + 4 * t, t == 0)
        s.mfma(56, 124, 64 + 4 * t, t == 0)
    a('s_waitcnt lgkmcnt(4)')
    s.mfma(56, 124, 76, False)
    a(f'v_cmp_gt_u32 vcc, {TH["v"][7]}, v118\ns_cbranch_vccz L_v3')
    s.wait_flag(C_G, TH['v'][7], extra=vrd(3), sleep=kw.get('v3s', 0))
    a('L_v3:')
    if not kw.get('ind'): s.stamp(8)
    for T in range(2):
        a(f's_waitcnt lgkmcnt({2-2*T})')
        s.mfma(16 + 4 * T, VR + 24 + 4 * T, 76, False)
    a('v_mov_b32 v46, v56')
    a('s_mov_b32 exec_lo, 0x000f000f\ns_mov_b32 exec_hi, 0x000f000f\ns_cmp_eq_u32 s47, 1')
    for k in range(4): a(f'v_cvt_pk_bf16_f32 v{42+k}, v{16+2*k}, v{17+2*k}')
    a('s_cbranch_scc0 L_orem')
    a('buffer_store_dwordx4 v[40:43], v30, s[40:43], s14 offen\nbuffer_store_dwordx4 v[44:47], v30, s[40:43], s14 offen offset:1024')
    a('L_ost:')
    a('s_mov_b64 exec, -1')
    s.stamp(9)
    if kw.get('ackst'):
        a('s_waitcnt vmcnt(0)')
        s.stamp(5)
    if 'D' in kw.get('kill', ''): a('s_branch L_end')
    if kw.get('od0'): a(f's_sleep {kw["od0"]}')
    OE = kw.get('oe')
    if OE is not None:
        if OE: s.wait_flag(C_G, len(order) - OE)
    elif kw.get('obar'): a('s_barrier')
    if kw.get('ind'):
        if not early:
            s.wait_flag(C_G, TH['o'][3])
            wo_reads()
            early = True
        a('s_mov_b32 exec_hi, 0')
        a('L_ipoll:')
        a('buffer_load_dword v48, v101, s[40:43], s15 offen offset:1036 sc1')
        s.budget()
        if kw.get('isl'):
            a(f's_waitcnt vmcnt(0)\nv_cmp_ne_u32 vcc, s44, v48\ns_cbranch_vccz L_idone\ns_sleep {kw["isl"]}\ns_branch L_ipoll\nL_idone:')
        else:
            a('s_waitcnt vmcnt(0)\nv_cmp_ne_u32 vcc, s44, v48\ns_cbranch_vccnz L_ipoll')
        a('s_mov_b32 exec_hi, -1')
        s.stamp(8)
    for k in range(4): a(f'buffer_load_dwordx4 v[{48+4*k}:{51+4*k}], v31, s[40:43], s15 offen offset:{k*1024} sc1')
    if OE == 1 and kw.get('wsplit'):
        wo_reads((0,))
        a('s_barrier')
        wo_reads((1,))
        a(f'ds_read_b32 v9, v8 offset:{F_K}')
    else:
        if OE is not None: a('s_barrier')
        a(f'ds_read_b32 v9, v8 offset:{F_K}')
        wo_reads()
    if s.stamps:
        if kw.get('ackst'):
            a('s_waitcnt vmcnt(0)')
            s.stamp(2)
        a('s_mov_b32 s61, 0')
    a('s_branch L_opoll')
    a('L_oretry:')
    a('s_mov_b64 exec, vcc')
    if s.stamps: a('s_add_u32 s61, s61, 1')
    if kw.get('osl'): a(f's_sleep {kw["osl"]}')
    for k in range(4): a(f'buffer_load_dwordx4 v[{48+4*k}:{51+4*k}], v31, s[40:43], s15 offen offset:{k*1024} sc1')
    a('s_mov_b64 exec, -1')
    s.budget()
    if kw.get('al'): a('.p2align 3')
    a('L_opoll:')
    a('s_waitcnt vmcnt(0) lgkmcnt(0)')
    a('v_xor_b32 v10, s44, v48\nv_bitop3_b32 v10, v55, s44, v10 bitop3:0xbe\nv_bitop3_b32 v10, v56, s44, v10 bitop3:0xbe\nv_bitop3_b32 v10, v63, s44, v10 bitop3:0xbe')
    a('v_cmp_ne_u32 vcc, 0, v10\ns_cbranch_vccnz L_oretry')
    s.stamp(11)
    if s.stamps: a('s_mul_i32 s61, s61, 100\ns_add_u32 s70, s64, s61')
    M8 = ('quad_perm:[1,0,3,2]', 'quad_perm:[2,3,0,1]', 'row_half_mirror')
    D = lambda op, d, x, y, m, rm='0xf': f'{op}_dpp {d}, {x}, {y} {m} row_mask:{rm} bank_mask:0xf'
    R = lambda m, rm: f'v_mov_b32_dpp v23, v21 {m} row_mask:{rm} bank_mask:0xf'
    wv = [D('v_max_f32', 'v20', 'v49', 'v49', M8[0]), None, D('v_max_f32', 'v20', 'v20', 'v20', M8[1]), None, D('v_max_f32', 'v20', 'v20', 'v20', M8[2]),
          'v_sub_f32 v21, v49, v20', 'v_exp_f32 v21, v21', None, 'v_mul_f32 v22, v54, v21', 'v_mov_b32 v23, v21', None,
          D('v_add_f32', 'v22', 'v22', 'v22', M8[0]), R('row_ror:12', '0x2'), None, D('v_add_f32', 'v22', 'v22', 'v22', M8[1]), R('row_ror:8', '0x4'), None,
          D('v_add_f32', 'v22', 'v22', 'v22', M8[2]), R('row_ror:4', '0x8'), 'v_rcp_f32 v22, v22', None]
    mf = [(32 + 4 * T, 50 + 8 * ks, WB + 16 * ks + 4 * T, ks == 0) for ks in range(2) for T in range(4)]
    s.mfma(*mf.pop(0))
    for x in wv:
        if x is None: s.mfma(*mf.pop(0))
        else: a(x)
    assert not mf
    a('v_mul_f32 v21, v22, v23')
    a(D('v_mul_f32', 'v21', 'v22', 'v23', 'row_ror:8', '0xc'))
    for T in range(4): a(D('v_mul_f32', f'v{16+T}', 'v21', f'v{32+4*T}', 'row_newbcast:0'))
    for r in range(1, 4):
        for T in range(4): a(D('v_fmac_f32', f'v{16+T}', 'v21', f'v{32+4*T+r}', f'row_newbcast:{r}'))
    a(f'ds_write_b128 v26, v[16:19] offset:{RED-PL}')
    if kw.get('nf'): a('v_xor_b32 v10, v9, v101\nv_xor_b32 v11, 0x2000, v10')
    a('v_add_u32 v117, v117, v9\ns_cmp_lg_u32 s7, 0')
    a('s_waitcnt lgkmcnt(0)\ns_barrier')
    s.stamp(12)
    a('s_cbranch_scc1 ' + ('L_wb' if kw.get('fw') else 'L_end'))
    for k in range(4): a(f'ds_read_b128 v[{48+4*k}:{51+4*k}], v100 offset:{(k>>1)*2048+(k&1)*256}')
    a('s_waitcnt lgkmcnt(2)')
    a('v_pk_add_f32 v[48:49], v[48:49], v[52:53]\nv_pk_add_f32 v[50:51], v[50:51], v[54:55]')
    a('s_waitcnt lgkmcnt(1)')
    a('v_pk_add_f32 v[48:49], v[48:49], v[56:57]\nv_pk_add_f32 v[50:51], v[50:51], v[58:59]')
    a('s_waitcnt lgkmcnt(0)')
    a('v_pk_add_f32 v[48:49], v[48:49], v[60:61]\nv_pk_add_f32 v[50:51], v[50:51], v[62:63]')
    s.pack24(120, 48, 49, 50, 51)
    if kw.get('nf'):
        a('buffer_store_dwordx4 v[120:123], v10, s[40:43], s56 offen sc1')
        if kw.get('nfs'): a(f's_sleep {kw["nfs"]}')
        a('buffer_store_dwordx4 v[120:123], v11, s[40:43], s56 offen sc1')
    else:
        a('buffer_store_dwordx4 v[120:123], v31, s[40:43], s56 offen sc1\nbuffer_store_dwordx4 v[120:123], v31, s[40:43], s63 offen sc1')
    s.stamp(13)
    fw = kw.get('fw', 0)
    if fw:
        a('s_branch L_end')
        a('L_wb:')
        a(f's_cmp_lg_u32 s7, {fw}\ns_cbranch_scc1 L_end')
        if kw.get('d0'): a(f's_sleep {kw["d0"]}')
    LA = 'buffer_load_dwordx4 v[16:19], v117, s[40:43], s60 offen sc1'
    LB_ = 'buffer_load_dwordx4 v[20:23], v117, s[40:43], s60 offen sc1'
    a('L_mpoll:')
    a('buffer_load_dwordx4 v[32:35], v119, s[40:43], s62 offen sc1')
    a(f'v_lshlrev_b32 v14, 3, v1\nv_add_u32 v14, {GX}, v14\nds_read_b64 v[12:13], v14')
    s.unpack24_consts()
    s.srd_const(48, 4096); s.srd(48, 36)
    a('s_mov_b32 s56, 0x00030003\ns_mov_b32 s57, s56')
    a('v_and_b32 v11, 1, v1\nv_lshlrev_b32 v14, 5, v2\nv_lshl_add_u32 v14, v11, 1, v14')
    a('s_lshl_b32 s11, s5, 10\ns_lshl_b32 s12, s3, 7\ns_add_u32 s11, s11, s12\ns_lshl2_add_u32 s11, s6, s11')
    if kw.get('d1'): a(f's_sleep {kw["d1"]}')
    a(LA)
    if kw.get('d2'): a(f's_sleep {kw["d2"]}')
    a(LB_)
    s.budget()
    a('s_waitcnt vmcnt(2)\nv_xor_b32 v24, s44, v35\nv_cmp_lt_u32 vcc, 3, v24\ns_cbranch_vccnz L_mpoll')
    if kw.get('maj', 1):
        a('v_and_b32 v24, 3, v35\nv_readfirstlane_b32 s13, v9\nv_cmp_eq_u32 vcc, 1, v24\ns_bcnt1_i32_b64 s10, vcc\nv_cmp_eq_u32 vcc, 2, v24\ns_bcnt1_i32_b64 s12, vcc')
        a('s_lshl_b32 s14, s45, 11\ns_and_b32 s14, s14, 8192\ns_xor_b32 s15, s14, 8192\ns_cmp_gt_u32 s10, s12\ns_cselect_b32 s14, s14, s15\ns_cmp_eq_u32 s10, s12\ns_cselect_b32 s14, s13, s14\ns_xor_b32 s14, s14, s13\nv_xor_b32 v117, s14, v117')
    s.stamp(10)
    s.unpack24(32)
    s.reduce32(32)
    a('s_waitcnt lgkmcnt(0)')
    s.round_bf16('v32')
    a('v_add_f32 v32, v32, v12')
    s.round_bf16('v32')
    a(f'v_mul_f32 v33, {hex(f2u(-math.log2(math.e)))}, v32\nv_exp_f32 v33, v33\nv_add_f32 v33, 1.0, v33\nv_rcp_f32 v33, v33\nv_mul_f32 v12, v32, v33')
    s.round_bf16('v12')
    a('L_fpoll:')
    a('s_waitcnt vmcnt(1)\nv_cmp_ne_u32 vcc, s44, v19\ns_cbranch_vccz L_fdone')
    if kw.get('d4'): a(f's_sleep {kw["d4"]}')
    a(LA)
    s.budget()
    a('s_waitcnt vmcnt(1)\nv_cmp_ne_u32 vcc, s44, v23\ns_cbranch_vccz L_fdoneB')
    if kw.get('d3'): a(f's_sleep {kw["d3"]}')
    a(LB_ + '\ns_branch L_fpoll')
    def finish(r):
        s.stamp(14)
        s.unpack24(r)
        s.reduce32(r)
        if kw.get('exactfin', 0):
            s.round_bf16(f'v{r}')
            a(f'v_mul_f32 v{r}, v{r}, v12')
            s.round_bf16(f'v{r}')
            a(f'v_add_f32 v{r}, v{r}, v13')
        else:
            a(f'v_fma_f32 v{r}, v{r}, v12, v13')
        a('s_mov_b64 exec, s[56:57]')
        a(f'v_cvt_pk_bf16_f32 v{r}, v{r}, v{r}')
        a(f'buffer_store_short v{r}, v14, s[48:51], s11 offen')
    a('L_fdoneB:')
    finish(20)
    a('s_branch L_epoch')
    a('L_fdone:')
    finish(16)
    a('L_epoch:')
    s.stamp(15)
    a('s_cmp_lg_u32 s2, 0\ns_cbranch_scc1 L_end')
    a('s_mov_b64 exec, 1\nbuffer_store_dword v123, v8, s[40:43], 0 offen')
    a('s_branch L_end')

    a('L_qrem:')
    a('s_mov_b32 exec_lo, 0x000f000f\ns_mov_b32 exec_hi, 0x000f000f')
    a('buffer_store_dwordx4 v[108:111], v106, s[40:43], s58 offen sc1\nbuffer_store_dwordx4 v[112:115], v107, s[40:43], s59 offen sc1')
    a('s_mov_b64 exec, -1')
    a('L_qrem2:')
    a(f'ds_read_b32 v9, v8 offset:{F_Q}')
    for t in range(4): a(f'ds_read_b128 v[{64+4*t}:{67+4*t}], v{102+t}')
    s.budget()
    a('s_waitcnt lgkmcnt(0)\nv_readfirstlane_b32 s47, v9\ns_cmp_eq_u32 s47, 4\ns_cbranch_scc0 L_qgo\ns_sleep 2\ns_branch L_qrem2')
    if kw.get('wb') is not None:
        a('L_wb:')
        a(f's_cmp_lg_u32 s7, 1\ns_cbranch_scc1 L_end\ns_and_b32 s10, s4, {kw["wb"]}\ns_cbranch_scc1 L_end')
        if kw.get('wbd'): a(f's_sleep {kw["wbd"]}')
        a('buffer_wbl2 sc1\ns_branch L_end')
    a('L_orem:')
    a('buffer_store_dwordx4 v[40:43], v30, s[40:43], s14 offen sc1\nbuffer_store_dwordx4 v[44:47], v30, s[40:43], s14 offen offset:1024 sc1')
    a('s_branch L_ost')
    a('L_P:')
    if 'P' in kw.get('kill', ''): a('s_waitcnt lgkmcnt(0)\ns_branch L_end')
    a('s_setprio 3')
    a('s_getreg_b32 s45, hwreg(HW_REG_XCC_ID, 0, 4)')
    a('v_and_b32 v5, 3, v1')
    a(f's_lshl_b32 s10, s3, 15\ns_lshl_b32 s12, s4, 10\ns_add_u32 s12, s12, s10')
    a('s_waitcnt lgkmcnt(0)')
    if kw.get('warmq'):
        a(f'v_and_b32 v10, 7, v1\nv_lshlrev_b32 v10, 7, v10\nv_and_b32 v11, 8, v1\nv_lshl_add_u32 v10, v11, 15, v10\ns_add_u32 s11, s12, {WS_Q}')
        a(f's_mov_b64 exec, {0xff if kw["warmq"] == 1 else 0xffff}\nbuffer_load_dword v7, v10, s[40:43], s11 offen {kw.get("warmqfl", "")}\ns_mov_b64 exec, -1')
    a(f's_lshl_b32 s11, s5, 13\ns_add_u32 s10, s10, s11\ns_add_u32 s10, s10, {WS_Q}\ns_add_u32 s15, s10, 4096')
    a('v_lshlrev_b32 v10, 4, v1')
    a(f'v_lshrrev_b32 v11, 5, v1\nv_and_b32 v12, 31, v1\nv_lshlrev_b32 v13, 3, v12\nv_lshlrev_b32 v14, 4, v11\nv_xor_b32 v13, v13, v14\nv_lshl_add_u32 v13, v11, 8, v13\nv_add_u32 v22, {QL}, v13')
    for c in range(1, 8): a(f'v_xor_b32 v{22+c}, {c*32}, v22')
    a(f's_mov_b32 s14, {kw.get("nfast", 48)}')
    a('s_waitcnt lgkmcnt(0)')
    s.stamp(1)
    if 'W' in kw.get('kill', ''): a('s_branch L_end')
    if kw.get('qs'): a(f's_sleep {kw["qs"]}')
    if kw.get('qg'): s.wait_flag(C_G, kw['qg'], sleep=1)
    s.wait_flag(C_QP, 4, sleep=1, extra=[f'ds_read_b32 v15, v8 offset:{TAGW}'])
    a('s_waitcnt lgkmcnt(0)\nv_readfirstlane_b32 s44, v15')
    if q0: a(f's_sleep {q0}')
    s.stamp(2)
    a('L_qpoll:')
    for c in range(8): a(f'buffer_load_dwordx4 v[{32+4*c}:{35+4*c}], v10, s[40:43], s{10 if c < 4 else 15} offen offset:{(c&3)*1024} sc1 {kw.get("qnt", "")}')
    s.budget()
    a('s_waitcnt vmcnt(0)')
    a('v_xor_b32 v15, s44, v35')
    for c in range(1, 8): a(f'v_bitop3_b32 v15, v{35+4*c}, s44, v15 bitop3:0xbe')
    a('v_cmp_ne_u32 vcc, 0, v15\ns_cbranch_vccz L_qgot')
    a(f's_mov_b64 exec, vcc\ns_sub_u32 s14, s14, 1\ns_cbranch_scc0 L_qpoll')
    a(f'v_mov_b32 v15, 4\nds_write_b32 v8, v15 offset:{F_Q}\ns_branch L_qpoll')
    a('L_qgot:')
    a('s_mov_b64 exec, -1')
    a('v_xor_b32 v15, s45, v34')
    for c in range(8):
        a(f'ds_write_b64 v{22+c}, v[{32+4*c}:{33+4*c}] offset:{c*512}')
        if c < 7: a(f'v_bitop3_b32 v15, v{38+4*c}, s45, v15 bitop3:0xbe')
    a('v_and_b32 v15, 15, v15\nv_cmp_ne_u32 vcc, 0, v15\ns_cmp_eq_u64 vcc, 0\ns_cselect_b32 s47, 1, 2')
    if kw.get('force_remote'): a('s_mov_b32 s47, 2')
    a(f'v_mov_b32 v15, s47\nds_write_b32 v8, v15 offset:{F_Q}')
    s.stamp(3)
    a('v_add3_u32 v16, v34, v38, v42\nv_add3_u32 v17, v46, v50, v54\nv_add3_u32 v16, v16, v58, v62\nv_add_u32 v16, v16, v17')
    for m in ('quad_perm:[1,0,3,2] row_mask:0xf', 'quad_perm:[2,3,0,1] row_mask:0xf', 'row_half_mirror row_mask:0xf', 'row_mirror row_mask:0xf', 'row_bcast:15 row_mask:0xa', 'row_bcast:31 row_mask:0xc'):
        a(f'v_add_u32_dpp v16, v16, v16 {m} bank_mask:0xf')
    if kw.get('cntvote'):
        a('s_mov_b32 s11, 0')
        for c in range(8): a(f'v_cmp_gt_u32 vcc, 16, v{34+4*c}\ns_bcnt1_i32_b64 s10, vcc\ns_add_u32 s11, s11, s10')
        a('s_add_u32 s74, s64, s11')
    if kw.get('sgnvote'): a(f'v_readlane_b32 s10, v16, 63\ns_ashr_i32 s10, s10, 13\ns_add_u32 s10, s10, 400\ns_add_u32 s74, s64, s10')
    if kw.get('absvote'): a('v_readlane_b32 s10, v16, 63\ns_ashr_i32 s10, s10, 13\ns_abs_i32 s10, s10\ns_min_u32 s10, s10, 300\ns_sub_u32 s10, 300, s10\ns_add_u32 s74, s64, s10')
    if kw.get('recvote'): a('v_readlane_b32 s10, v16, 63\ns_ashr_i32 s10, s10, 13\ns_add_u32 s10, s10, 1000\ns_add_u32 s74, s64, s10')
    a('v_readlane_b32 s10, v16, 63\ns_cmp_lt_i32 s10, 0\ns_cselect_b32 s10, 0, 8192')
    if kw.get('kflip'): a('s_xor_b32 s10, s10, 8192')
    if kw.get('noisy'): a(f's_bitcmp1_b32 {kw["noisy"]}, s3\ns_cselect_b32 s11, 8192, 0\ns_xor_b32 s10, s10, s11')
    a(f'v_mov_b32 v15, s10\nds_write_b32 v8, v15 offset:{F_K}')
    a(f's_lshr_b32 s11, s10, 13\ns_lshr_b32 s9, s45, 2\ns_xor_b32 s11, s11, s9\ns_and_b32 s11, s11, 1\ns_add_u32 s11, s11, 1\nv_mov_b32 v15, s11\nds_write_b32 v8, v15 offset:{F_V}')
    a(f's_lshl_b32 s11, s12, 1\ns_add_u32 s11, s11, {WS_O}')
    a(f's_lshl2_add_u32 s12, s3, s5\ns_lshl4_add_u32 s12, s12, s6\ns_lshl_b32 s12, s12, 10\ns_add_u32 s12, s12, s10\ns_add_u32 s12, s12, {WS_S - 2048}')
    a('v_lshlrev_b32 v10, 7, v1\nv_add_u32 v11, s12, v10\nv_add_u32 v10, s11, v10\nv_cmp_gt_u32 vcc, 16, v1\nv_cndmask_b32 v10, v11, v10, vcc')
    if kw.get('wg'): s.wait_flag(C_G, kw['wg'], sleep=2)
    if kw.get('nowarm') == 1: pass
    elif kw.get('nowarm') == 2: a('s_mov_b64 exec, 0xffffff\nbuffer_load_dword v7, v10, s[40:43], 0 offen nt')
    elif kw.get('nowarm') == 3: a('s_mov_b64 exec, 0xffff\nbuffer_load_dword v7, v10, s[40:43], 0 offen nt')
    elif kw.get('ont'):
        a('s_mov_b64 exec, 0xffff\nbuffer_load_dword v7, v10, s[40:43], 0 offen nt\ns_mov_b64 exec, 0xff0000\nbuffer_load_dword v7, v10, s[40:43], 0 offen')
    else:
        a('s_mov_b64 exec, 0xffffff\nbuffer_load_dword v7, v10, s[40:43], 0 offen')
    a('s_branch L_end')

    a('L_M:')
    if kw.get('mprio') is not None: a(f's_setprio {kw["mprio"]}\ns_branch L_M2')
    if 'M' in kw.get('kill', ''): a('s_waitcnt lgkmcnt(0)\ns_branch L_end')
    a('s_setprio 3')
    a('L_M2:')
    a('v_bfe_u32 v4, v1, 2, 2\nv_and_b32 v5, 3, v1')
    a('v_lshl_add_u32 v10, v4, 2, v2')
    a('v_lshlrev_b32 v11, 3, v10')
    a('v_lshlrev_b32 v10, 4, v1')
    s.mlp_slot(11, 15)
    a('s_lshl3_add_u32 s15, s5, s3\ns_lshl_b32 s11, s11, 6')
    a('v_and_b32 v24, 1, v1\nv_lshlrev_b32 v25, 5, v2\nv_lshl_add_u32 v25, v24, 1, v25')
    a('s_lshl_b32 s12, s3, 7\ns_lshl2_add_u32 s12, s6, s12\ns_lshl_b32 s13, s5, 10\ns_add_u32 s13, s13, s12')
    s.srd_const(56, 3584); s.srd_const(60, 1024); s.srd_const(96, 4096)
    a('s_waitcnt lgkmcnt(0)')
    s.srd(56, 30); s.srd(60, 34); s.srd(96, 16)
    if not kw.get('nosmall'):
        sf = kw.get('smallfl', '')
        a(f'buffer_load_ushort v16, v25, s[60:63], s12 offen {sf}')
        a('buffer_load_ushort v17, v25, s[96:99], s13 offen')
        a(f'buffer_load_dwordx2 v[14:15], v11, s[56:59], s11 offen {sf}')
    a(f'v_mul_u32_u24 v11, {HS}, v5\nv_lshl_add_u32 v11, v2, 4, v11\nv_lshrrev_b32 v12, 1, v4\nv_lshl_add_u32 v11, v12, 6, v11\nv_and_b32 v12, 1, v4\nv_lshl_add_u32 v11, v12, 3, v11\nv_add_u32 v11, {HL}, v11')
    a(f'v_mul_u32_u24 v12, {HS}, v4\nv_lshl_add_u32 v12, v2, 4, v12\nv_add_u32 v12, {HL}, v12')
    a(f'v_lshl_add_u32 v27, v2, 2, v4\nv_bfe_u32 v28, v27, 1, 2\nv_lshlrev_b32 v28, 5, v28\nv_lshl_add_u32 v28, v27, 7, v28\nv_lshl_add_u32 v28, v5, 3, v28\nv_add_u32 v28, {W2}, v28')
    a('v_xor_b32 v29, 32, v28\nv_xor_b32 v30, 64, v28\nv_xor_b32 v31, 96, v28')
    a(f'v_lshlrev_b32 v13, 3, v1\nv_add_u32 v13, {GX}, v13')
    a('s_waitcnt vmcnt(1) lgkmcnt(0)')
    a('v_lshlrev_b32 v16, 16, v16\nv_lshlrev_b32 v17, 16, v17\nds_write_b64 v13, v[16:17]')
    if kw.get('hs'): a(f's_sleep {kw["hs"]}')
    s.wait_flag(C_HP, 4, sleep=1, extra=[f'ds_read_b32 v23, v8 offset:{TAGW}'])
    a('s_waitcnt lgkmcnt(0)\nv_readfirstlane_b32 s44, v23')
    s.pack24_consts(); s.unpack24_consts()
    if kw.get('hq'): s.wait_flag(F_Q, 1, sleep=1)
    if kw.get('h0', 8): a(f's_sleep {kw.get("h0", 8)}')
    a(f's_lshl2_add_u32 s10, s3, s5\ns_lshl_b32 s10, s10, 13\ns_add_u32 s10, s10, {WS_H}\ns_add_u32 s11, s10, 4096')
    s.stamp(2)
    a('L_hpoll:')
    for c in range(8): a(f'buffer_load_dwordx4 v[{32+4*c}:{35+4*c}], v10, s[40:43], s{10 + (c>>2)} offen offset:{(c&3)*1024} sc1 {kw.get("qnt", "")}')
    s.budget()
    a('s_waitcnt vmcnt(0)')
    a('v_xor_b32 v13, s44, v35')
    for c in range(1, 8): a(f'v_bitop3_b32 v13, v{35+4*c}, s44, v13 bitop3:0xbe')
    a('v_cmp_ne_u32 vcc, 0, v13\ns_cbranch_vccnz L_hpoll')
    s.stamp(3)
    for c in range(8): s.unpack24(32 + 4 * c)
    for st in (16, 8, 4):
        for r in range(32, 32 + st, 2): a(f'v_pk_add_f32 v[{r}:{r+1}], v[{r}:{r+1}], v[{r+st}:{r+st+1}]')
    a('v_cvt_pk_bf16_f32 v36, v32, v33\nv_cvt_pk_bf16_f32 v37, v34, v35')
    for k in range(2):
        a(f'v_lshlrev_b32 v{32+2*k}, 16, v{36+k}\nv_and_b32 v{33+2*k}, 0xffff0000, v{36+k}\nv_lshlrev_b32 v{40+2*k}, 16, v{14+k}\nv_and_b32 v{41+2*k}, 0xffff0000, v{14+k}')
    for k in range(4): a(f'v_add_f32 v{32+k}, v{32+k}, v{40+k}')
    a('v_cvt_pk_bf16_f32 v36, v32, v33\nv_cvt_pk_bf16_f32 v37, v34, v35')
    for k in range(2): a(f'v_lshlrev_b32 v{32+2*k}, 16, v{36+k}\nv_and_b32 v{33+2*k}, 0xffff0000, v{36+k}')
    K1 = -2 * math.sqrt(2 / math.pi) * math.log2(math.e)
    a(f'v_mov_b32 v44, {hex(f2u(K1))}')
    for k in range(4): a(f'v_mul_f32 v{36+k}, v{32+k}, v{32+k}')
    for k in range(4): a(f'v_fmamk_f32 v{36+k}, v{36+k}, {hex(f2u(K1*0.044715))}, v44')
    for k in range(4): a(f'v_mul_f32 v{36+k}, v{36+k}, v{32+k}')
    for k in range(4): a(f'v_exp_f32 v{36+k}, v{36+k}')
    for k in range(4): a(f'v_add_f32 v{36+k}, 1.0, v{36+k}')
    for k in range(4): a(f'v_rcp_f32 v{36+k}, v{36+k}')
    for k in range(4): a(f'v_mul_f32 v{32+k}, v{32+k}, v{36+k}')
    a('v_cvt_pk_bf16_f32 v40, v32, v33\nv_cvt_pk_bf16_f32 v41, v34, v35')
    a('ds_write_b64 v11, v[40:41]\nds_read_b128 v[48:51], v12\nds_read_b128 v[52:55], v12 offset:64')
    a(f's_add_u32 s10, s6, {r2}\ns_and_b32 s10, s10, 7\ns_lshl_b32 s10, s10, 5\ns_add_u32 s10, s10, s15\ns_lshl_b32 s10, s10, 10\ns_add_u32 s10, s10, {WS_M}')
    a('v_lshlrev_b32 v10, 4, v1\nv_mov_b32 v23, s44')
    s.wait_flag(C_G, TH['2'][1], sleep=1)
    for ks in range(2):
        for T in range(4):
            for u in range(2):
                r = 64 + 16 * ks + 4 * T + 2 * u
                a(f'ds_read_b64_tr_b16 v[{r}:{r+1}], v{28+T} offset:{ks*4096+u*2048}')
    a(f'ds_read_b32 v19, v8 offset:{F_V}')
    a('s_waitcnt lgkmcnt(0)')
    for ks in range(2):
        for T in range(4): s.mfma(32 + 4 * T, 48 + 4 * ks, 64 + 16 * ks + 4 * T, ks == 0)
    a('v_and_or_b32 v23, v23, -4, v19')
    s.pack24(20, 32, 36, 40, 44)
    a('buffer_store_dwordx4 v[20:23], v10, s[40:43], s10 offen sc1')
    s.stamp(4)
    a('L_end:')
    if kw.get('probe'):
        pw, pst, pm, pb = kw['probe']
        a(f's_waitcnt lgkmcnt(0)\ns_cmp_lg_u32 s7, {pw}\ns_cbranch_scc1 L_exit')
        if pw >= 4: a('s_barrier\ns_barrier' if kw.get('obar') and pw != 6 else 's_barrier')
        if kw.get('clk') == 1: a('s_memtime s[92:93]\ns_waitcnt lgkmcnt(0)\ns_sub_u32 s10, s92, s90\ns_lshr_b32 s10, s10, 1\ns_add_u32 s94, s64, s10')
        if kw.get('clk') == 2: a('s_memrealtime s[92:93]\ns_waitcnt lgkmcnt(0)\ns_sub_u32 s10, s92, s88\ns_mul_i32 s10, s10, 10\ns_add_u32 s94, s64, s10')
        if kw.get('px') is not None: a(f's_cmp_lg_u32 s45, {kw["px"]}\ns_cbranch_scc1 L_exit')
        if kw.get('pm') is not None: a(f's_mul_i32 s10, s45, {kw["pm"]}\ns_add_u32 s94, s64, s10')
        if kw.get('pg') is not None: a(f's_cmp_lg_u32 s3, {kw["pg"]}\ns_cbranch_scc1 L_exit')
        a(f's_sub_u32 s10, s{64+2*pst}, s64\ns_mul_i32 s10, s10, {pm}\ns_add_u32 s10, s10, {pb}\ns_min_u32 s10, s10, 20000')
        a('L_padloop:\ns_memrealtime s[12:13]\ns_waitcnt lgkmcnt(0)\ns_sub_u32 s11, s12, s64\ns_cmp_lt_u32 s11, s10\ns_cbranch_scc1 L_padloop')
    s.dump_stamps()
    a('L_exit:')
    a('s_endpgm')
    lines, added = hazard.fix(s.o, verbose=kw.get('verbose', False))
    return wrap('\n'.join(lines) + '\n', 256, NW * 64, kw.get('lds', LDS_TOTAL), kw.get('vgpr', 192))

if __name__ == '__main__':
    import ast
    out = sys.argv[1]
    kw = {}
    for x in sys.argv[2:]:
        k, v = x.split('=')
        try: kw[k] = ast.literal_eval(v)
        except Exception: kw[k] = v
    open(out, 'w').write(gen(**kw))
```

```python
import sys, math, struct
sys.path.insert(0, 'dev')
from common import *
import hazard

def f2u(x):
    return struct.unpack('<I', struct.pack('<f', x))[0]

NW = 7
FL = 0
WA, W1, KB, W2, VB, WO = [2048 + x for x in (0, 16384, 24576, 57344, 65536, 98304)]
XN = 2048 + 114688; XS = 1088
YL = XN + 4 * XS
QL = YL + 4 * XS
assert QL % 256 == 0
PL = QL + 4096
RED = PL + 4096
HL = RED + 4096; HS = 144
MX = 128
FP = 192
GX = HL + 640
LDS_TOTAL = GX + 512
C_WA, C_G, C_XN, F_Q, C_MX, C_P, F_WT, C_QP, C_Y, C_HP, T_A, T_B, F_K, TAGW, F_V = [4 * i for i in range(15)]

WS_Q = 0x1000
WS_H = WS_Q + 0x40000
WS_LSE = WS_H + 0x40000
WS_O = WS_LSE + 0x4000
WS_M = WS_O + 0x80000
WS_S = 0x150000
assert WS_S >= WS_M + 0x40000
WS_T = WS_S + 0x80000
WS_N = WS_T + 0x10000
WS_END = WS_T + 0x20000
assert WS_END <= 0x200000
STAMP = 0x8000000

class G:
    def __init__(s, **kw):
        s.o = []
        s.nl = 0
        s.kw = kw
        s.stamps = kw.get('stamps', False)
    def a(s, t):
        for l in t.split('\n'):
            l = l.strip()
            if l: s.o.append(l)
    def lab(s, p='L'):
        s.nl += 1
        return f'{p}_{s.nl}'
    def stamp(s, i):
        pr = s.kw.get('probe')
        only = s.kw.get('only')
        if (s.stamps and (only is None or i in only or i == 0)) or (pr and i in (0, pr[1])):
            s.a(f's_memrealtime s[{64+2*i}:{65+2*i}]')
    def budget(s):
        s.a('s_sub_u32 s46, s46, 1\ns_cbranch_scc1 L_end')
    def wait_flag(s, off, n, extra=None, sleep=0, vt='v9'):
        L = s.lab('W')
        if sleep:
            L2 = s.lab('W')
            s.a(f's_branch {L2}\n{L}:\ns_sleep {sleep}\n{L2}:')
        else:
            s.a(f'{L}:')
        s.a(f'ds_read_b32 {vt}, v8 offset:{off}')
        ne = 0
        if extra:
            for e in extra: s.a(e)
            ne = len(extra)
        s.budget()
        s.a(f's_waitcnt lgkmcnt({0 if (s.stamps and not s.kw.get("lean")) or (s.kw.get("safeA") and ne > 6) else min(ne, 15)})')
        s.a(f'v_cmp_gt_u32 vcc, {n}, {vt}')
        s.a(f's_cbranch_vccnz {L}')
    def signal(s, off):
        s.a(f's_mov_b64 exec, 1\nds_add_u32 v8, v6 offset:{off}\ns_mov_b64 exec, -1')
    def srd(s, d, p):
        s.a(f's_mov_b32 s{d}, s{p}\ns_mov_b32 s{d+1}, s{p+1}')
    def srd_const(s, d, n):
        s.a(f's_mov_b32 s{d+2}, {n}\ns_mov_b32 s{d+3}, 0x20000')
    def wave_sum(s, v, sd):
        for m in ('quad_perm:[1,0,3,2]', 'quad_perm:[2,3,0,1]', 'row_half_mirror', 'row_mirror'):
            s.a(f'v_add_f32_dpp {v}, {v}, {v} {m} row_mask:0xf bank_mask:0xf')
        s.a(f'v_add_f32_dpp {v}, {v}, {v} row_bcast:15 row_mask:0xa bank_mask:0xf')
        s.a(f'v_add_f32_dpp {v}, {v}, {v} row_bcast:31 row_mask:0xc bank_mask:0xf')
        s.a(f'v_readlane_b32 {sd}, {v}, 63')
    def rows_allreduce(s, op, v, t):
        s.a(f'v_mov_b32 {t}, {v}\nv_permlane16_swap_b32 {t}, {v}\n{op} {v}, {t}, {v}')
        s.a(f'v_mov_b32 {t}, {v}\nv_permlane32_swap_b32 {t}, {v}\n{op} {v}, {t}, {v}')
    def layernorm(s, src, f, t):
        P = lambda r: f'v[{r}:{r+1}]'
        for k in range(4):
            s.a(f'v_lshlrev_b32 v{f+2*k}, 16, v{src+k}\nv_and_b32 v{f+2*k+1}, s55, v{src+k}')
        s.a(f'v_pk_add_f32 {P(t)}, {P(f)}, {P(f+2)}\nv_pk_add_f32 {P(t+2)}, {P(f+4)}, {P(f+6)}\nv_pk_add_f32 {P(t)}, {P(t)}, {P(t+2)}\nv_add_f32 v{t}, v{t}, v{t+1}')
        s.wave_sum(f'v{t}', 's10')
        s.a(f'v_mov_b32 v{src+3}, {hex(f2u(1/512))}')
        s.a(f'v_mul_f32 v{src}, s10, v{src+3}')
        for k in range(4):
            s.a(f'v_pk_add_f32 {P(t+2*k)}, {P(f+2*k)}, {P(src)} op_sel_hi:[1,0] neg_lo:[0,1] neg_hi:[0,1]')
        s.a(f'v_pk_mul_f32 {P(t)}, {P(t)}, {P(t)}')
        for k in range(1, 4):
            s.a(f'v_pk_fma_f32 {P(t)}, {P(t+2*k)}, {P(t+2*k)}, {P(t)}')
        s.a(f'v_add_f32 v{t}, v{t}, v{t+1}')
        s.a(f'v_cvt_pk_bf16_f32 v{src}, v{src}, v{src}\nv_lshlrev_b32 v{src}, 16, v{src}')
        ms = ['quad_perm:[1,0,3,2] row_mask:0xf', 'quad_perm:[2,3,0,1] row_mask:0xf', 'row_half_mirror row_mask:0xf', 'row_mirror row_mask:0xf', 'row_bcast:15 row_mask:0xa', 'row_bcast:31 row_mask:0xc']
        fill = [f'v_pk_add_f32 {P(f+2*k)}, {P(f+2*k)}, {P(src)} op_sel_hi:[1,0] neg_lo:[0,1] neg_hi:[0,1]' for k in range(4)]
        fill += [f'v_cvt_pk_bf16_f32 v{t+2+k}, v{f+2*k}, v{f+2*k+1}' for k in range(4)]
        for k in range(4): fill += [f'v_lshlrev_b32 v{f+2*k}, 16, v{t+2+k}', f'v_and_b32 v{f+2*k+1}, s55, v{t+2+k}']
        for m in ms:
            s.a(f'v_add_f32_dpp v{t}, v{t}, v{t} {m} bank_mask:0xf')
            s.a(fill.pop(0)); s.a(fill.pop(0))
        s.a(f'v_readlane_b32 s10, v{t}, 63')
        s.a(fill.pop(0)); s.a(fill.pop(0))
        s.a(f'v_mul_f32 v{src}, s10, v{src+3}')
        s.a(f'v_cvt_pk_bf16_f32 v{src}, v{src}, v{src}\nv_lshlrev_b32 v{src}, 16, v{src}')
        s.a(f'v_add_f32 v{src}, {hex(f2u(1e-5))}, v{src}')
        s.a(f'v_cvt_pk_bf16_f32 v{src}, v{src}, v{src}\nv_lshlrev_b32 v{src}, 16, v{src}')
        s.a(f'v_sqrt_f32 v{src}, v{src}')
        s.a(fill.pop(0))
        s.a(f'v_cvt_pk_bf16_f32 v{src}, v{src}, v{src}\nv_lshlrev_b32 v{src}, 16, v{src}')
        s.a(f'v_rcp_f32 v{src}, v{src}')
        s.a(fill.pop(0))
        assert not fill
        for k in range(4):
            s.a(f'v_pk_mul_f32 {P(f+2*k)}, {P(f+2*k)}, {P(src)} op_sel_hi:[1,0]')
        for k in range(4):
            s.a(f'v_cvt_pk_bf16_f32 v{src+k}, v{f+2*k}, v{f+2*k+1}')
    def round_bf16(s, v):
        s.a(f'v_cvt_pk_bf16_f32 {v}, {v}, {v}\nv_lshlrev_b32 {v}, 16, {v}')
    def tag_finish(s):
        s.a('s_mul_i32 s44, s44, 0x2c9277b5\ns_add_u32 s44, s44, 0xac564b05')
    def pack24(s, d, a, b, c, e):
        s.a(f'v_perm_b32 v{d}, v{a}, v{e}, s50\nv_perm_b32 v{d+1}, v{b}, v{e}, s51\nv_perm_b32 v{d+2}, v{c}, v{e}, s52')
    def pack24_consts(s):
        s.a('s_mov_b32 s50, 0x07060503\ns_mov_b32 s51, 0x07060502\ns_mov_b32 s52, 0x07060501')
    def unpack24(s, r):
        s.a(f'v_perm_b32 v{r+3}, v{r}, v{r+1}, s53\nv_perm_b32 v{r+3}, v{r+3}, v{r+2}, s54')
    def unpack24_consts(s):
        s.a('s_mov_b32 s53, 0x04000c0c\ns_mov_b32 s54, 0x0706000c')
    def reduce32(s, r):
        s.a(f'v_permlane32_swap_b32 v{r}, v{r+2}\nv_permlane32_swap_b32 v{r+1}, v{r+3}')
        s.a(f'v_add_f32 v{r}, v{r}, v{r+2}\nv_add_f32 v{r+1}, v{r+1}, v{r+3}')
        s.a(f'v_permlane16_swap_b32 v{r}, v{r+1}\nv_add_f32 v{r}, v{r}, v{r+1}')
        for m in ('row_ror:8', 'row_ror:4', 'row_ror:2'):
            s.a(f'v_add_f32_dpp v{r}, v{r}, v{r} {m} row_mask:0xf bank_mask:0xf')
    def mfma(s, d, A, B, first):
        s.a(f'v_mfma_f32_16x16x32_bf16 v[{d}:{d+3}], v[{A}:{A+3}], v[{B}:{B+3}], {"0" if first else f"v[{d}:{d+3}]"}')
    def mlp_slot(s, d, t):
        ha = s.kw.get('ha', 4)
        s.a(f's_mul_i32 s{d}, s5, 6\ns_add_u32 s{d}, s{d}, s3\ns_cmp_gt_u32 s3, {ha}\ns_cselect_b32 s{t}, 2, 0\ns_sub_u32 s{d}, s{d}, s{t}\ns_lshl_b32 s{d}, s{d}, 1')
        s.a(f's_lshl2_add_u32 s{t}, s3, s5\ns_add_u32 s{t}, s{t}, {48-4*ha}')
        s.a(f's_bitcmp1_b32 {3 << ha}, s3\ns_cselect_b32 s{d}, s{t}, s{d}')
    def hint(s, name, off, nq, tries, sub):
        a = s.a
        a(f's_lshl_b32 s48, s3, 7\ns_add_u32 s48, s48, {WS_N + off}\ns_add_u32 s49, s48, s4')
        a('s_and_b32 s50, s44, 0xff\ns_mul_i32 s50, s50, 0x01010101\ns_mov_b32 s51, s50\nv_mov_b32 v21, s50')
        if sub: a('s_andn2_b32 s48, s49, 7')
        a(f's_mov_b32 s47, {tries}')
    def hint_go(s, name, nq):
        a = s.a
        a('s_mov_b64 exec, 1\nbuffer_store_byte v21, v8, s[40:43], s49 offen\ns_mov_b64 exec, -1')
        a(f'L_{name}:')
        a(f's_load_dwordx{2*nq} s[52:{51+2*nq}], s[40:41], s48 glc')
        a(f's_sub_u32 s47, s47, 1\ns_cbranch_scc1 L_{name}d\ns_waitcnt lgkmcnt(0)')
        for k in range(nq): a(f's_xor_b64 s[{52+2*k}:{53+2*k}], s[{52+2*k}:{53+2*k}], s[50:51]')
        for k in range(1, nq): a(f's_or_b64 s[52:53], s[52:53], s[{52+2*k}:{53+2*k}]')
        a(f's_cbranch_scc1 L_{name}\nL_{name}d:\ns_waitcnt lgkmcnt(0)')
    def dump_stamps(s, nst=16):
        if not s.stamps: return
        s.a('s_waitcnt lgkmcnt(0)\ns_mov_b64 exec, -1\nv_mov_b32 v10, 0')
        for i in range(nst):
            s.a(f'v_writelane_b32 v10, s{64+2*i}, {i}')
        s.a(f's_mul_i32 s10, s2, {NW*64}\ns_lshl_b32 s11, s7, 6\ns_add_u32 s10, s10, s11\ns_add_u32 s10, s10, {STAMP}')
        s.a('v_lshlrev_b32 v11, 2, v1\ns_mov_b64 exec, 0xffff\nbuffer_store_dword v10, v11, s[40:43], s10 offen ' + s.kw.get('stfl', ''))

def gen(**kw):
    s = G(**kw)
    a = s.a
    depth = kw.get('depth', 20)
    NT = kw.get('nt', 'nt')
    npq = kw.get('npq', 2); gapq = kw.get('gapq', 12); q0 = kw.get('q0', 4)
    npl = kw.get('npl', 4); gapl = kw.get('gapl', 6)
    CSC = math.log2(math.e) / math.sqrt(128)
    ONE2 = 0x3f803f80
    order = kw.get('order', '11kkkkkkkk22vvvvvvvvoooo')
    TH = {c: [i + 1 for i, x in enumerate(order) if x == c] for c in '1k2vo'}
    assert [len(TH[c]) for c in '1k2vo'] == [2, 8, 2, 8, 4]
    marks = {TH['1'][1], TH['2'][1], TH['o'][3], len(order) - (kw.get('oe') or 0), kw.get('qg') or 2} | set(TH['k'][1::2]) | set(TH['v'][1::2])
    def common():
        if s.stamps:
            for i in range(1, 16): a(f's_mov_b32 s{64+2*i}, 0')
        a('v_and_b32 v1, 63, v0\ns_lshr_b32 s5, s4, 3\ns_and_b32 s6, s4, 7')
        a(f's_mov_b32 s42, {STAMP + 0x100000 if s.stamps else WS_END}\ns_mov_b32 s43, 0x20000')
        a(f's_mov_b32 s46, {kw.get("budget", 5000000)}')
        a('v_mov_b32 v6, 1')
        a('v_lshrrev_b32 v2, 4, v1\nv_and_b32 v3, 15, v1')
    s.stamp(0)
    a('s_load_dwordx16 s[16:31], s[0:1], 0\ns_load_dwordx8 s[32:39], s[0:1], 64\ns_load_dwordx2 s[40:41], s[0:1], 96')
    a('s_lshr_b32 s4, s2, 3\ns_cmp_ge_u32 s4, 32\ns_cbranch_scc1 L_exit')
    a('v_lshrrev_b32 v2, 6, v0\nv_bfe_u32 v4, v0, 3, 3')
    a('v_mov_b32 v8, 0\nds_write_b8 v0, v8')
    if kw.get('prefetch', True):
        a('s_getpc_b64 s[8:9]\nL_pc:')
        if kw.get('pf2'):
            a('s_lshl_b32 s10, s4, 7\nv_lshl_add_u32 v3, v0, 12, s10\nv_min_u32 v3, L_exit-L_pc, v3\nglobal_load_dword v7, v3, s[8:9]')
        else:
            a('v_lshlrev_b32 v3, 7, v0\nv_min_u32 v3, L_exit-L_pc, v3\nglobal_load_dword v7, v3, s[8:9]')
    a('v_readfirstlane_b32 s7, v2')
    a('v_and_b32 v5, 6, v4\nv_xor_b32 v5, v5, v0\nv_and_b32 v5, 7, v5\nv_lshlrev_b32 v5, 4, v5')
    a('s_and_b32 s3, s2, 7\ns_cmp_eq_u32 s7, 6\ns_cbranch_scc1 L_L\ns_cmp_ge_u32 s7, 4\ns_cbranch_scc1 L_PM')
    a('s_mov_b32 s51, 0x20000\nv_lshlrev_b32 v11, 4, v0')
    a('s_lshr_b32 s10, s4, 3\ns_lshl2_add_u32 s10, s10, s7\ns_lshl_b32 s10, s10, 18\ns_and_b32 s11, s4, 7\ns_lshl3_add_u32 s11, s3, s11\ns_xor_b32 s11, s11, ' + str(kw.get('rq', 0)) + '\ns_lshl_b32 s11, s11, 7\ns_add_u32 s10, s10, s11')
    a(f's_bfm_b32 s50, 1, 22\ns_bfm_b32 s12, 6, 10\nv_lshl_add_u32 v10, v4, 13, v5\ns_lshl_b32 m0, s7, 12\ns_addk_i32 m0, {WA}')
    a('s_waitcnt lgkmcnt(0)')
    a('s_mov_b64 s[48:49], s[22:23]')
    a('global_load_dwordx4 v[12:15], v11, s[16:17]')
    for r in range(4):
        a(f'buffer_load_dwordx4 v10, s[48:51], s10 offen offset:{r*1024} {NT} lds')
        if r < 3: a('s_add_u32 s10, s10, s12')
    a('s_branch L_C')
    a('L_L:')
    if kw.get('lprio'): a(f's_setprio {kw["lprio"]}')
    a('s_barrier')
    common()
    rq, r2 = kw.get('rq', 0), kw.get('r2', 0)
    s.mlp_slot(10, 11)
    a('s_cselect_b32 s11, 64, 0\ns_cselect_b32 s8, 30, 15')
    a('v_and_b32 v14, s11, v5\nv_lshl_add_u32 v14, v14, 24, v5\nv_mul_u32_u24 v32, 3584, v4\nv_add_u32 v32, v32, v14')
    for r in range(1, 4): a(f'v_add_u32 v{32+r}, {r*(8*3584-1024)}, v32')
    a('v_xor_b32 v14, v3, v2\nv_lshlrev_b32 v14, 4, v14\nv_lshl_add_u32 v18, v2, 8, v14')
    for r in range(1, 4): a(f'v_xor_b32 v{18+r}, {r*64}, v18\nv_add_u32 v{18+r}, {r*7168}, v{18+r}')
    a(f's_mov_b32 s50, {512*3584}\ns_mov_b32 s51, 0x20000\ns_lshl_b32 s8, 1, s8')
    a(f's_mul_i32 s12, s6, {64*3584}\ns_lshl_b32 s11, s10, 6\ns_add_u32 s12, s12, s11')
    a(f's_lshl_b32 s13, s5, 23\ns_lshl_b32 s11, s3, 20\ns_add_u32 s13, s13, s11\ns_lshl_b32 s11, s6, 10\ns_add_u32 s13, s13, s11\ns_add_u32 s13, s13, {3072*256}')
    a('s_bfm_b32 s54, 1, 25\ns_mov_b32 s55, s51\ns_mov_b32 s14, s13')
    a('s_waitcnt lgkmcnt(0)')
    s.stamp(1)
    dg = depth // 4
    segs = {'1': (32, 48, 28, 12, 32 * 3584, W1), 'k': (18, 52, 18, 13, 32768, KB), 'v': (22, 56, 20, 14, 32768, VB),
            '2': (26, 60, 32, 15, 's8', W2), 'o': (26, 96, 24, 9, 32768, WO)}
    cnt = {c: 0 for c in segs}
    late = False
    prof = kw.get('prof')
    prof = [int(x, 16) for x in prof] if prof else [dg] * len(order)
    assert len(prof) == len(order)
    landed = 0
    first_wait = min(gi for gi in range(len(order)) if gi + 1 > prof[gi])
    for gi, c in enumerate(order):
        vr, sd, ptr, so, step, lds = segs[c]
        if gi == first_wait:
            a('v_lshlrev_b32 v14, 1, v2\nv_xor_b32 v14, v3, v14\nv_lshlrev_b32 v14, 4, v14\nv_lshl_add_u32 v22, v2, 8, v14')
            a(f'v_xor_b32 v23, 128, v22\nv_add_u32 v24, {2*7168}, v22\nv_add_u32 v25, {3*7168}, v23\nv_add_u32 v23, 7168, v23')
            a('v_lshl_add_u32 v26, v4, 10, v5')
            for r in range(1, 4): a(f'v_add_u32 v{26+r}, {r*7168}, v26')
            a(f's_mov_b32 s58, s54\ns_mov_b32 s59, s51\ns_mov_b32 s62, {1792*1024}\ns_mov_b32 s63, s51\ns_bfm_b32 s98, 1, 22\ns_mov_b32 s99, s51')
            s.srd(56, 20); s.srd(60, 32); s.srd(96, 24)
            a(f's_add_u32 s11, s6, {r2}\ns_and_b32 s11, s11, 7\ns_lshl_b32 s11, s11, 7\ns_lshl_b32 s15, s10, 15\ns_add_u32 s15, s15, s11')
            a('s_lshl2_add_u32 s9, s3, s5\ns_lshl_b32 s9, s9, 17\ns_lshl_b32 s11, s6, 7\ns_add_u32 s9, s9, s11')
            s.stamp(2)
            late = True
        assert late or c in '1k'
        if cnt[c] == 0 and c in '1k': s.srd(sd, ptr)
        a(f's_mov_b32 m0, {lds + cnt[c] * 4096}')
        if cnt[c]: a(f's_add_u32 s{so}, s{so}, {step}')
        while landed < gi + 1 - prof[gi]:
            landed += 1
            if landed in marks or landed == gi + 1 - prof[gi]:
                a(f's_waitcnt vmcnt({(gi-landed)*4})')
            if landed in marks:
                a(f'v_mov_b32 v30, {landed}\nds_write_b32 v8, v30 offset:{C_G}')
                if landed == TH['v'][7]: s.stamp(6)
        for r in range(4):
            fine = kw.get('fine')
            if fine and gi * 4 + r >= fine and (r or fine - 1 < (gi - landed) * 4): a(f's_waitcnt vmcnt({fine-1})')
            fl = kw.get('nt' + c, NT)
            a(f'buffer_load_dwordx4 v{vr+r}, s[{sd}:{sd+3}], s{so} offen offset:{r*1024} {fl} lds')
        cnt[c] += 1
    for n in range(landed + 1, len(order) + 1):
        if n in marks:
            if kw.get('obar') and n == len(order) and n != TH['v'][7]:
                a('s_waitcnt vmcnt(0)')
            else:
                a(f'v_mov_b32 v30, {n}\ns_waitcnt vmcnt({(len(order)-n)*4})\nds_write_b32 v8, v30 offset:{C_G}')
            if n == TH['v'][7]: s.stamp(6)
    s.stamp(7)
    if kw.get('obar'): a('s_barrier')
    a('s_branch L_end')

    if kw.get('shift'): a('s_nop 0')
    a('L_PM:')
    a('s_barrier')
    common()
    ns = kw.get('nsamp', 1)
    if kw.get('spread'):
        nb, base = kw['spread']
        a(f's_xor_b32 s9, s7, s4\ns_and_b32 s9, s9, 1\ns_lshl_b32 s10, s3, 5\ns_add_u32 s10, s10, s4\ns_and_b32 s10, s10, {nb-1}\ns_lshl1_add_u32 s10, s10, s9\ns_lshl_b32 s10, s10, 6\ns_mul_i32 s11, s2, 5\ns_and_b32 s11, s11, 63\ns_add_u32 s10, s10, s11\ns_lshl_b32 s10, s10, 7\ns_add_u32 s10, s10, {base}')
    else:
        a(f's_xor_b32 s9, s7, s4\ns_and_b32 s9, s9, 1\ns_lshr_b32 s10, s2, 6\ns_lshl1_add_u32 s10, s10, s9\ns_lshl_b32 s10, s10, 6\ns_and_b32 s11, s2, 63\ns_add_u32 s10, s10, s11\ns_lshl_b32 s10, s10, 7\ns_add_u32 s10, s10, {WS_T}')
    a('s_waitcnt lgkmcnt(0)')
    if kw.get('tlb'):
        a('s_lshl3_add_u32 s11, s5, s3\ns_lshl_b32 s11, s11, 10\ns_add_u32 s11, s11, s6\ns_addk_i32 s11, 768\ns_lshl_b32 s11, s11, 10\nv_mov_b32 v10, s11')
        a('s_lshl2_add_u32 s11, s3, s5\ns_lshl_b32 s11, s11, 10\ns_add_u32 s11, s11, s6\ns_lshl_b32 s11, s11, 7\nv_mov_b32 v11, s11')
        a(f's_lshl_b32 s11, s2, 7\nv_mov_b32 v12, s11\ns_add_u32 s11, s11, {WS_T + 0x10000}\nv_mov_b32 v13, s11')
        a('s_mov_b64 exec, 1\ns_cmp_eq_u32 s7, 4\ns_cbranch_scc0 L_tl5')
        a('global_load_dword v7, v10, s[20:21] nt\nglobal_load_dword v7, v11, s[24:25] nt\ns_branch L_tl6')
        a('L_tl5:\nglobal_load_dword v7, v12, s[32:33] nt\nglobal_load_dword v7, v13, s[40:41] nt')
        a('L_tl6:\ns_mov_b64 exec, -1')
    if kw.get('pd'): a(f's_sleep {kw["pd"]}')
    a('s_memtime s[12:13]\ns_load_dword s11, s[40:41], s10')
    if ns == 2: a('s_add_u32 s10, s10, 0x10000\ns_waitcnt lgkmcnt(0)\ns_load_dword s11, s[40:41], s10')
    a('s_waitcnt lgkmcnt(0)\ns_memtime s[14:15]\ns_lshl_b32 s10, s9, 2\nv_mov_b32 v10, s10\ns_waitcnt lgkmcnt(0)')
    a(f's_sub_u32 s12, s14, s12\nv_mov_b32 v11, s12\nds_write_b32 v10, v11 offset:{T_A}')
    a('s_cmp_eq_u32 s7, 4\ns_cbranch_scc1 L_P\ns_branch L_M')
    a('L_C:')
    if kw.get('clk'): a('s_memtime s[90:91]\ns_memrealtime s[88:89]')
    a('s_load_dword s44, s[40:41], 0\ns_barrier')
    a(f's_setprio {kw.get("cprio", 2)}')
    common()
    s.stamp(1)
    if 'C' in kw.get('kill', ''): a('s_waitcnt vmcnt(0)\ns_branch L_end')
    a('v_bfe_u32 v4, v1, 2, 2\nv_and_b32 v5, 3, v1')
    a(f's_mul_i32 s11, s7, {XS}\ns_add_u32 s11, s11, {XN}')
    a('v_lshrrev_b32 v10, 2, v1\nv_lshlrev_b32 v10, 6, v10\nv_and_b32 v11, 1, v1\nv_lshl_add_u32 v10, v11, 5, v10\nv_and_b32 v11, 2, v1\nv_lshl_add_u32 v10, v11, 2, v10\nv_add_u32 v11, s11, v10')
    a('s_mov_b32 s55, 0xffff0000')
    a('v_lshl_add_u32 v27, v2, 2, v4\nv_bfe_u32 v96, v27, 1, 2\nv_lshlrev_b32 v96, 5, v96\nv_lshl_add_u32 v96, v27, 7, v96\nv_lshl_add_u32 v96, v5, 3, v96')
    a('s_lshl_b32 s12, s7, 5\nv_xor_b32 v10, s12, v96')
    a('s_getreg_b32 s45, hwreg(HW_REG_XCC_ID, 0, 4)')
    a(f'v_mul_u32_u24 v24, {XS}, v5\nv_lshl_add_u32 v24, v2, 4, v24')
    a(f's_lshl_b32 s10, s5, 8\ns_add_u32 s10, s10, {XN}\nv_add_u32 v25, s10, v24')
    a(f's_lshl_b32 s10, s6, 7\ns_add_u32 s10, s10, {YL}\nv_add_u32 v24, s10, v24')
    a(f's_lshl_b32 s14, s3, 15\ns_lshl1_add_u32 s14, s12, s14\ns_lshl_b32 s13, s4, 8\ns_xor_b32 s58, s13, {rq*256}\ns_add_u32 s58, s14, s58\ns_add_u32 s58, s58, {WS_Q}')
    a(f's_lshl2_add_u32 s59, s13, s14\ns_add_u32 s59, s59, {WS_H}')
    a('v_lshlrev_b32 v106, 13, v3\nv_lshl_add_u32 v106, v2, 4, v106\nv_lshlrev_b32 v107, 4, v1\nv_mov_b32 v30, ' + str(kw.get('clamp', 384)) + '\nv_sub_u32 v31, 0, v30')
    s.pack24_consts()
    a('s_mov_b32 s13, 1')
    a('s_waitcnt vmcnt(0)' if kw.get('safeB') else 's_waitcnt vmcnt(4)')
    if not kw.get('ackst'): s.stamp(2)
    a('L_ln:')
    s.layernorm(12, 16, 32)
    a(f'ds_write2_b64 v11, v[12:13], v[14:15] offset1:2\nv_add_u32 v11, {YL-XN}, v11')
    a('s_sub_u32 s13, s13, 1\ns_cbranch_scc0 L_ln')
    s.stamp(3)
    a('s_waitcnt vmcnt(0) lgkmcnt(0)')
    if kw.get('st_tile'): s.stamp(5)
    s.signal(C_WA)
    s.tag_finish()
    a(f'v_mov_b32 v111, s44\nv_mov_b32 v115, s44\nds_write_b32 v8, v111 offset:{TAGW}')
    s.wait_flag(C_WA, 4, extra=[f'ds_read_b64 v[28:29], v8 offset:{T_A}'] + [x for t in range(4) for x in (f'ds_read_b128 v[{64+4*t}:{67+4*t}], v25 offset:{t*64}',
                f'ds_read_b64_tr_b16 v[{40+4*t}:{41+4*t}], v10 offset:{WA+t*4096}', f'ds_read_b64_tr_b16 v[{42+4*t}:{43+4*t}], v10 offset:{WA+t*4096+2048}')])
    for t in range(4):
        a(f's_waitcnt lgkmcnt({9-3*t})')
        s.mfma(16, 40 + 4 * t, 64 + 4 * t, t == 0)
        if t == 0: a('v_sub_u32 v110, v28, v29\nv_min_u32 v28, v28, v29')
        if t == 1: a('v_cmp_ne_u32 vcc, 0, v28\nv_med3_i32 v110, v110, v30, v31')
        if t == 2: a(('v_sub_u32 v29, 0, v110\nv_cndmask_b32 v110, v29, v110, vcc' if kw.get('miss', 1) else 'v_cndmask_b32 v110, 0, v110, vcc') + '\nv_lshl_or_b32 v110, v110, 4, s45')
    for t in range(2): a(f'ds_read_b128 v[{80+4*t}:{83+4*t}], v24 offset:{t*64}')
    a('s_mov_b32 exec_lo, 0x000f000f\ns_mov_b32 exec_hi, 0x000f000f')
    a('v_cvt_pk_bf16_f32 v108, v16, v17\nv_cvt_pk_bf16_f32 v109, v18, v19')
    a('buffer_store_dwordx4 v[108:111], v106, s[40:43], s58 offen')
    if kw.get('qe'): s.signal(C_QP)
    else: a('s_mov_b64 exec, -1')
    if not kw.get('ackst'): s.stamp(4)
    s.wait_flag(C_G, TH['1'][1], extra=[f'ds_read_b64_tr_b16 v[{40+2*t}:{41+2*t}], v10 offset:{W1+t*2048}' for t in range(4)], sleep=1)
    for t in range(2):
        a(f's_waitcnt lgkmcnt({2-2*t})')
        s.mfma(16, 40 + 4 * t, 80 + 4 * t, t == 0)
    a('s_mov_b32 exec_lo, 0x000f000f\ns_mov_b32 exec_hi, 0x000f000f')
    s.pack24(112, 16, 17, 18, 19)
    a('buffer_store_dwordx4 v[112:115], v107, s[40:43], s59 offen')
    if kw.get('he'): s.signal(C_HP)
    else: a('s_mov_b64 exec, -1')
    if 'Q' in kw.get('kill', ''): a('s_branch L_end')
    a(f's_lshl_b32 s10, s7, 13\ns_add_u32 s10, s10, {KB}')
    a(f'v_xor_b32 v10, v2, v3\nv_lshlrev_b32 v10, 4, v10\nv_lshl_add_u32 v10, v3, 8, v10\nv_add_u32 v102, {QL}, v10\nv_add_u32 v10, s10, v10')
    a('v_xor_b32 v103, 64, v102\nv_xor_b32 v104, 128, v102\nv_xor_b32 v105, 192, v102')
    a('v_xor_b32 v11, 64, v10\nv_xor_b32 v12, 128, v10\nv_xor_b32 v13, 192, v10')
    a(f's_lshl_b32 s10, s7, 2\ns_add_u32 s10, s10, {MX}\nv_lshlrev_b32 v15, 4, v5\nv_add_u32 v24, s10, v15\nv_add_u32 v15, {MX}, v15\ns_add_u32 s10, s10, {FP-MX}\nv_mov_b32 v14, s10')
    a(f's_lshl_b32 s10, s7, 10\ns_add_u32 s10, s10, {PL}\nv_lshlrev_b32 v25, 4, v1\nv_add_u32 v26, s10, v25\nv_add_u32 v25, {PL}, v25')
    a('v_and_b32 v28, 7, v27\ns_lshl_b32 s10, s7, 1\nv_xor_b32 v28, s10, v28\nv_lshlrev_b32 v28, 5, v28\nv_lshl_add_u32 v28, v27, 8, v28\nv_lshl_add_u32 v28, v5, 3, v28')
    a(f'v_add_u32 v28, {VB}, v28\nv_xor_b32 v29, 32, v28')
    a(f's_lshr_b32 s10, s7, 1\ns_lshl_b32 s11, s10, 13\ns_add_u32 s11, s11, {WO}')
    a('v_add_u32 v96, s11, v96\nv_xor_b32 v97, 32, v96\nv_xor_b32 v98, 64, v96\nv_xor_b32 v99, 96, v96')
    a('v_lshlrev_b32 v30, 14, v3\nv_lshl_add_u32 v30, v2, 8, v30')
    a(f's_lshl_b32 s14, s3, 16\ns_add_u32 s14, s14, {WS_O}')
    a('s_lshr_b32 s11, s4, 4\ns_lshl2_add_u32 s11, s11, s7\ns_lshl_b32 s11, s11, 11\ns_and_b32 s12, s4, 15\ns_lshl4_add_u32 s11, s12, s11')
    a('v_lshlrev_b32 v31, 4, v1')
    a('s_xor_b32 s12, s3, s6\ns_and_b32 s12, s12, 4\ns_lshl_b32 s12, s12, 11\nv_or_b32 v101, s12, v31')
    a('s_lshl_b32 s15, s5, 14\ns_add_u32 s15, s15, s14\ns_lshl_b32 s10, s10, 12\ns_add_u32 s15, s15, s10\ns_and_b32 s10, s7, 1\ns_lshl_b32 s12, s10, 13\ns_add_u32 s15, s15, s12')
    a('s_add_u32 s14, s14, s11')
    a(f'v_lshlrev_b32 v100, 9, v2\nv_lshl_add_u32 v100, v3, 4, v100\nv_add_u32 v100, {RED}, v100')
    a(f's_lshr_b32 s10, s3, 1\ns_lshl2_add_u32 s56, s6, s10\ns_and_b32 s10, s3, 1\ns_lshl2_add_u32 s56, s56, s10\ns_lshl2_add_u32 s56, s56, s5\ns_lshl_b32 s56, s56, 10\ns_add_u32 s56, s56, {WS_S}\ns_add_u32 s63, s56, 8192')
    a('v_lshrrev_b32 v119, 1, v1\nv_lshlrev_b32 v119, 10, v119\nv_and_b32 v16, 1, v1\nv_lshl_add_u32 v119, v16, 4, v119')
    a(f's_lshl_b32 s60, s3, 15\ns_lshl_b32 s11, s4, 5\ns_add_u32 s60, s60, s11\ns_add_u32 s62, s60, {WS_M}\ns_add_u32 s60, s60, {WS_S}')
    a('v_lshl_add_u32 v117, v2, 13, v119')
    a(f's_lshl_b32 s60, s3, 16\ns_add_u32 s60, s60, s11\ns_add_u32 s60, s60, {WS_S}')
    a(f's_mov_b32 s13, {hex(f2u(CSC))}')
    a('s_mov_b32 s12, s13')
    for k in range(4): a(f'v_mov_b32 v{124+k}, {hex(ONE2)}')
    kt = TH['k'][1::2]
    a(f's_lshl_b32 s57, s7, 3\ns_lshr_b32 s57, {kt[0] | kt[1] << 8 | kt[2] << 16 | kt[3] << 24}, s57\ns_and_b32 s57, s57, 0xff')
    if not kw.get('qe'):
        a('s_waitcnt vmcnt(1)')
        s.signal(C_QP)
    if not kw.get('he'):
        a('s_waitcnt vmcnt(0)')
        s.signal(C_HP)
    s.wait_flag(C_G, 's57', sleep=1)
    for u in range(2):
        for t in range(4):
            a(f'ds_read_b128 v[{32+16*u+4*t}:{35+16*u+4*t}], v{10+t} offset:{u*4096}')
    if not kw.get('st_tile') and not kw.get('ackst'): s.stamp(5)
    s.wait_flag(F_Q, 1, extra=[f'ds_read_b128 v[{64+4*t}:{67+4*t}], v{102+t}' for t in range(4)], sleep=kw.get('fqs', 0))
    s.stamp(6)
    a('v_readfirstlane_b32 s47, v9')
    a('s_cmp_lg_u32 s47, 1\ns_cbranch_scc1 L_qrem')
    a('L_qgo:')
    DP = lambda op, d, x, y, m, rm='0xf': f'{op}_dpp {d}, {x}, {y} {m} row_mask:{rm} bank_mask:0xf'
    for u in range(2):
        for t in range(4):
            if u == 0: a(f's_waitcnt lgkmcnt({3-t})')
            s.mfma(16 + 4 * u, 32 + 16 * u + 4 * t, 64 + 4 * t, t == 0)
    if kw.get('safeC'): a('s_nop 15')
    a('v_mov_b32 v40, s44\nv_mov_b32 v47, s44\nv_mov_b32 v123, s44')
    for u in range(2):
        for k in range(4): a(DP('v_add_f32', f'v{16+4*u+k}', f'v{16+4*u+k}', f'v{16+4*u+k}', 'row_ror:4'))
        for k in range(4): a(DP('v_add_f32', f'v{16+4*u+k}', f'v{16+4*u+k}', f'v{16+4*u+k}', 'row_ror:8'))
        if u == 0: a('v_max3_f32 v10, v16, v17, v18')
    a('v_max3_f32 v10, v10, v19, v20\nv_max3_f32 v11, v21, v22, v23\nv_max_f32 v10, v10, v11\nv_max_f32 v11, v10, v11')
    a('v_permlane16_swap_b32 v11, v10\nv_max_f32 v10, v11, v10\nv_max_f32 v11, v11, v10')
    a('v_permlane32_swap_b32 v11, v10\nv_max_f32 v10, v11, v10\nv_or_b32 v10, 1, v10')
    WB = 128; VR = 160
    vrd = lambda t: [f'ds_read_b64_tr_b16 v[{VR+8*t+4*T+2*u}:{VR+1+8*t+4*T+2*u}], v{28+T} offset:{t*8192+u*4096}' for T in range(2) for u in range(2)]
    cw = lambda n: 0 if (s.stamps and not kw.get('lean')) else n
    a('ds_write_b32 v24, v10')
    a(f'ds_read_b128 v[32:35], v15\nds_read_b32 v9, v8 offset:{C_G}')
    for x in vrd(0) + vrd(1) + vrd(2): a(x)
    a(f's_waitcnt lgkmcnt({cw(13)})\ns_branch L_mx2')
    a('L_mx:')
    a('ds_read_b128 v[32:35], v15')
    s.budget()
    a('s_waitcnt lgkmcnt(0)')
    a('L_mx2:')
    a('v_min3_u32 v11, v32, v33, v34\nv_max3_f32 v10, v32, v33, v34\nv_min_u32 v11, v11, v35\nv_max_f32 v10, v10, v35\nv_cmp_eq_u32 vcc, 0, v11\nv_mul_f32 v116, s13, v10\ns_cbranch_vccnz L_mx')
    for k in range(4): a(f'v_pk_fma_f32 v[{16+2*k}:{17+2*k}], v[{16+2*k}:{17+2*k}], s[12:13], v[116:117] op_sel_hi:[1,1,0] neg_lo:[0,0,1] neg_hi:[0,0,1]')
    for k in range(8): a(f'v_exp_f32 v{16+k}, v{16+k}')
    for k in range(4): a(f'v_cvt_pk_bf16_f32 v{32+k}, v{16+2*k}, v{17+2*k}')
    a('ds_write_b128 v26, v[32:35]\nds_write_b32 v14, v6')
    a('L_pw:')
    a(f'ds_read_b128 v[36:39], v8 offset:{FP}')
    for t in range(4): a(f'ds_read_b128 v[{64+4*t}:{67+4*t}], v25 offset:{t*1024}')
    a(f'ds_read_b32 v118, v8 offset:{C_G}')
    for x in vrd(3): a(x)
    a('v_mov_b32 v41, v116')
    s.budget()
    a(f's_waitcnt lgkmcnt({cw(9)})\nv_min3_u32 v11, v36, v37, v38\nv_min_u32 v11, v11, v39\nv_cmp_eq_u32 vcc, 0, v11\ns_cbranch_vccnz L_pw')
    s.stamp(7)
    def wo_reads(kss=(0, 1)):
        for ks in kss:
            for T in range(4):
                for u in range(2):
                    r = WB + 16 * ks + 4 * T + 2 * u
                    a(f'ds_read_b64_tr_b16 v[{r}:{r+1}], v{96+T} offset:{ks*4096+u*2048}')
    early = False
    a(f'v_cmp_gt_u32 vcc, {TH["v"][5]}, v9\ns_cbranch_vccz L_v012')
    s.wait_flag(C_G, TH['v'][5], extra=vrd(0) + vrd(1) + vrd(2), sleep=2)
    a('s_waitcnt lgkmcnt(0)')
    a('L_v012:')
    for t in range(3):
        a(f's_waitcnt lgkmcnt({8-t})')
        for T in range(2): s.mfma(16 + 4 * T, VR + 8 * t + 4 * T, 64 + 4 * t, t == 0)
        s.mfma(56, 124, 64 + 4 * t, t == 0)
    a('s_waitcnt lgkmcnt(4)')
    s.mfma(56, 124, 76, False)
    a(f'v_cmp_gt_u32 vcc, {TH["v"][7]}, v118\ns_cbranch_vccz L_v3')
    s.wait_flag(C_G, TH['v'][7], extra=vrd(3), sleep=kw.get('v3s', 0))
    a('L_v3:')
    if not kw.get('ind'): s.stamp(8)
    for T in range(2):
        a(f's_waitcnt lgkmcnt({2-2*T})')
        s.mfma(16 + 4 * T, VR + 24 + 4 * T, 76, False)
    a('v_mov_b32 v46, v56')
    a('s_mov_b32 exec_lo, 0x000f000f\ns_mov_b32 exec_hi, 0x000f000f\ns_cmp_eq_u32 s47, 1')
    for k in range(4): a(f'v_cvt_pk_bf16_f32 v{42+k}, v{16+2*k}, v{17+2*k}')
    a('s_cbranch_scc0 L_orem')
    a('buffer_store_dwordx4 v[40:43], v30, s[40:43], s14 offen\nbuffer_store_dwordx4 v[44:47], v30, s[40:43], s14 offen offset:1024')
    a('L_ost:')
    a('s_mov_b64 exec, -1')
    s.stamp(9)
    if kw.get('ackst'):
        a('s_waitcnt vmcnt(0)')
        s.stamp(5)
    if 'D' in kw.get('kill', ''): a('s_branch L_end')
    if kw.get('od0'): a(f's_sleep {kw["od0"]}')
    OE = kw.get('oe')
    if OE is not None:
        if OE: s.wait_flag(C_G, len(order) - OE)
    elif kw.get('obar'): a('s_barrier')
    if kw.get('ind'):
        if not early:
            s.wait_flag(C_G, TH['o'][3])
            wo_reads()
            early = True
        a('s_mov_b32 exec_hi, 0')
        a('L_ipoll:')
        a('buffer_load_dword v48, v101, s[40:43], s15 offen offset:1036 sc1')
        s.budget()
        if kw.get('isl'):
            a(f's_waitcnt vmcnt(0)\nv_cmp_ne_u32 vcc, s44, v48\ns_cbranch_vccz L_idone\ns_sleep {kw["isl"]}\ns_branch L_ipoll\nL_idone:')
        else:
            a('s_waitcnt vmcnt(0)\nv_cmp_ne_u32 vcc, s44, v48\ns_cbranch_vccnz L_ipoll')
        a('s_mov_b32 exec_hi, -1')
        s.stamp(8)
    for k in range(4): a(f'buffer_load_dwordx4 v[{48+4*k}:{51+4*k}], v31, s[40:43], s15 offen offset:{k*1024} sc1')
    if OE == 1 and kw.get('wsplit'):
        wo_reads((0,))
        a('s_barrier')
        wo_reads((1,))
        a(f'ds_read_b32 v9, v8 offset:{F_K}')
    else:
        if OE is not None: a('s_barrier')
        a(f'ds_read_b32 v9, v8 offset:{F_K}')
        wo_reads()
    if s.stamps:
        if kw.get('ackst'):
            a('s_waitcnt vmcnt(0)')
            s.stamp(2)
        a('s_mov_b32 s61, 0')
    a('s_branch L_opoll')
    a('L_oretry:')
    a('s_mov_b64 exec, vcc')
    if s.stamps: a('s_add_u32 s61, s61, 1')
    if kw.get('osl'): a(f's_sleep {kw["osl"]}')
    for k in range(4): a(f'buffer_load_dwordx4 v[{48+4*k}:{51+4*k}], v31, s[40:43], s15 offen offset:{k*1024} sc1')
    a('s_mov_b64 exec, -1')
    s.budget()
    if kw.get('al'): a('.p2align 3')
    a('L_opoll:')
    a('s_waitcnt vmcnt(0) lgkmcnt(0)')
    a('v_xor_b32 v10, s44, v48\nv_bitop3_b32 v10, v55, s44, v10 bitop3:0xbe\nv_bitop3_b32 v10, v56, s44, v10 bitop3:0xbe\nv_bitop3_b32 v10, v63, s44, v10 bitop3:0xbe')
    a('v_cmp_ne_u32 vcc, 0, v10\ns_cbranch_vccnz L_oretry')
    s.stamp(11)
    if s.stamps: a('s_mul_i32 s61, s61, 100\ns_add_u32 s70, s64, s61')
    M8 = ('quad_perm:[1,0,3,2]', 'quad_perm:[2,3,0,1]', 'row_half_mirror')
    D = lambda op, d, x, y, m, rm='0xf': f'{op}_dpp {d}, {x}, {y} {m} row_mask:{rm} bank_mask:0xf'
    R = lambda m, rm: f'v_mov_b32_dpp v23, v21 {m} row_mask:{rm} bank_mask:0xf'
    wv = [D('v_max_f32', 'v20', 'v49', 'v49', M8[0]), None, D('v_max_f32', 'v20', 'v20', 'v20', M8[1]), None, D('v_max_f32', 'v20', 'v20', 'v20', M8[2]),
          'v_sub_f32 v21, v49, v20', 'v_exp_f32 v21, v21', None, 'v_mul_f32 v22, v54, v21', 'v_mov_b32 v23, v21', None,
          D('v_add_f32', 'v22', 'v22', 'v22', M8[0]), R('row_ror:12', '0x2'), None, D('v_add_f32', 'v22', 'v22', 'v22', M8[1]), R('row_ror:8', '0x4'), None,
          D('v_add_f32', 'v22', 'v22', 'v22', M8[2]), R('row_ror:4', '0x8'), 'v_rcp_f32 v22, v22', None]
    mf = [(32 + 4 * T, 50 + 8 * ks, WB + 16 * ks + 4 * T, ks == 0) for ks in range(2) for T in range(4)]
    s.mfma(*mf.pop(0))
    for x in wv:
        if x is None: s.mfma(*mf.pop(0))
        else: a(x)
    assert not mf
    a('v_mul_f32 v21, v22, v23')
    a(D('v_mul_f32', 'v21', 'v22', 'v23', 'row_ror:8', '0xc'))
    for T in range(4): a(D('v_mul_f32', f'v{16+T}', 'v21', f'v{32+4*T}', 'row_newbcast:0'))
    for r in range(1, 4):
        for T in range(4): a(D('v_fmac_f32', f'v{16+T}', 'v21', f'v{32+4*T+r}', f'row_newbcast:{r}'))
    a(f'ds_write_b128 v26, v[16:19] offset:{RED-PL}')
    if kw.get('nf'): a('v_xor_b32 v10, v9, v101\nv_xor_b32 v11, 0x2000, v10')
    a('v_add_u32 v117, v117, v9\ns_cmp_lg_u32 s7, 0')
    a('s_waitcnt lgkmcnt(0)\ns_barrier')
    s.stamp(12)
    a('s_cbranch_scc1 ' + ('L_wb' if kw.get('fw') else 'L_end'))
    for k in range(4): a(f'ds_read_b128 v[{48+4*k}:{51+4*k}], v100 offset:{(k>>1)*2048+(k&1)*256}')
    a('s_waitcnt lgkmcnt(2)')
    a('v_pk_add_f32 v[48:49], v[48:49], v[52:53]\nv_pk_add_f32 v[50:51], v[50:51], v[54:55]')
    a('s_waitcnt lgkmcnt(1)')
    a('v_pk_add_f32 v[48:49], v[48:49], v[56:57]\nv_pk_add_f32 v[50:51], v[50:51], v[58:59]')
    a('s_waitcnt lgkmcnt(0)')
    a('v_pk_add_f32 v[48:49], v[48:49], v[60:61]\nv_pk_add_f32 v[50:51], v[50:51], v[62:63]')
    s.pack24(120, 48, 49, 50, 51)
    if kw.get('nf'):
        a('buffer_store_dwordx4 v[120:123], v10, s[40:43], s56 offen sc1')
        if kw.get('nfs'): a(f's_sleep {kw["nfs"]}')
        a('buffer_store_dwordx4 v[120:123], v11, s[40:43], s56 offen sc1')
    else:
        a('buffer_store_dwordx4 v[120:123], v31, s[40:43], s56 offen sc1\nbuffer_store_dwordx4 v[120:123], v31, s[40:43], s63 offen sc1')
    s.stamp(13)
    fw = kw.get('fw', 0)
    if fw:
        a('s_branch L_end')
        a('L_wb:')
        a(f's_cmp_lg_u32 s7, {fw}\ns_cbranch_scc1 L_end')
        if kw.get('d0'): a(f's_sleep {kw["d0"]}')
    LA = 'buffer_load_dwordx4 v[16:19], v117, s[40:43], s60 offen sc1'
    LB_ = 'buffer_load_dwordx4 v[20:23], v117, s[40:43], s60 offen sc1'
    a('L_mpoll:')
    a('buffer_load_dwordx4 v[32:35], v119, s[40:43], s62 offen sc1')
    a(f'v_lshlrev_b32 v14, 3, v1\nv_add_u32 v14, {GX}, v14\nds_read_b64 v[12:13], v14')
    s.unpack24_consts()
    s.srd_const(48, 4096); s.srd(48, 36)
    a('s_mov_b32 s56, 0x00030003\ns_mov_b32 s57, s56')
    a('v_and_b32 v11, 1, v1\nv_lshlrev_b32 v14, 5, v2\nv_lshl_add_u32 v14, v11, 1, v14')
    a('s_lshl_b32 s11, s5, 10\ns_lshl_b32 s12, s3, 7\ns_add_u32 s11, s11, s12\ns_lshl2_add_u32 s11, s6, s11')
    SER = kw.get('ser')
    if not SER:
        if kw.get('d1'): a(f's_sleep {kw["d1"]}')
        a(LA)
        if kw.get('d2'): a(f's_sleep {kw["d2"]}')
        a(LB_)
    s.budget()
    a(f's_waitcnt vmcnt({0 if SER else 2})\nv_xor_b32 v24, s44, v35\nv_cmp_lt_u32 vcc, 3, v24\ns_cbranch_vccnz L_mpoll')
    if kw.get('maj', 1):
        a('v_and_b32 v24, 3, v35\nv_readfirstlane_b32 s13, v9\nv_cmp_eq_u32 vcc, 1, v24\ns_bcnt1_i32_b64 s10, vcc\nv_cmp_eq_u32 vcc, 2, v24\ns_bcnt1_i32_b64 s12, vcc')
        a('s_lshl_b32 s14, s45, 11\ns_and_b32 s14, s14, 8192\ns_xor_b32 s15, s14, 8192\ns_cmp_gt_u32 s10, s12\ns_cselect_b32 s14, s14, s15\ns_cmp_eq_u32 s10, s12\ns_cselect_b32 s14, s13, s14\ns_xor_b32 s14, s14, s13\nv_xor_b32 v117, s14, v117')
    if SER: a(LA)
    s.stamp(10)
    s.unpack24(32)
    s.reduce32(32)
    a('s_waitcnt lgkmcnt(0)')
    s.round_bf16('v32')
    a('v_add_f32 v32, v32, v12')
    s.round_bf16('v32')
    a(f'v_mul_f32 v33, {hex(f2u(-math.log2(math.e)))}, v32\nv_exp_f32 v33, v33\nv_add_f32 v33, 1.0, v33\nv_rcp_f32 v33, v33\nv_mul_f32 v12, v32, v33')
    s.round_bf16('v12')
    if SER: a(LB_)
    a('L_fpoll:')
    a('s_waitcnt vmcnt(1)\nv_cmp_ne_u32 vcc, s44, v19\ns_cbranch_vccz L_fdone')
    if kw.get('d4'): a(f's_sleep {kw["d4"]}')
    a(LA)
    s.budget()
    a('s_waitcnt vmcnt(1)\nv_cmp_ne_u32 vcc, s44, v23\ns_cbranch_vccz L_fdoneB')
    if kw.get('d3'): a(f's_sleep {kw["d3"]}')
    a(LB_ + '\ns_branch L_fpoll')
    def finish(r):
        s.stamp(14)
        s.unpack24(r)
        s.reduce32(r)
        if kw.get('exactfin', 0):
            s.round_bf16(f'v{r}')
            a(f'v_mul_f32 v{r}, v{r}, v12')
            s.round_bf16(f'v{r}')
            a(f'v_add_f32 v{r}, v{r}, v13')
        else:
            a(f'v_fma_f32 v{r}, v{r}, v12, v13')
        a('s_mov_b64 exec, s[56:57]')
        a(f'v_cvt_pk_bf16_f32 v{r}, v{r}, v{r}')
        a(f'buffer_store_short v{r}, v14, s[48:51], s11 offen')
    a('L_fdoneB:')
    finish(20)
    a('s_branch L_epoch')
    a('L_fdone:')
    finish(16)
    a('L_epoch:')
    s.stamp(15)
    a('s_cmp_lg_u32 s2, 0\ns_cbranch_scc1 L_end')
    a('s_mov_b64 exec, 1\nbuffer_store_dword v123, v8, s[40:43], 0 offen')
    a('s_branch L_end')

    a('L_qrem:')
    a('s_mov_b32 exec_lo, 0x000f000f\ns_mov_b32 exec_hi, 0x000f000f')
    a('buffer_store_dwordx4 v[108:111], v106, s[40:43], s58 offen sc1\nbuffer_store_dwordx4 v[112:115], v107, s[40:43], s59 offen sc1')
    a('s_mov_b64 exec, -1')
    a('L_qrem2:')
    a(f'ds_read_b32 v9, v8 offset:{F_Q}')
    for t in range(4): a(f'ds_read_b128 v[{64+4*t}:{67+4*t}], v{102+t}')
    s.budget()
    a('s_waitcnt lgkmcnt(0)\nv_readfirstlane_b32 s47, v9\ns_cmp_eq_u32 s47, 4\ns_cbranch_scc0 L_qgo\ns_sleep 2\ns_branch L_qrem2')
    if kw.get('wb') is not None:
        a('L_wb:')
        a(f's_cmp_lg_u32 s7, 1\ns_cbranch_scc1 L_end\ns_and_b32 s10, s4, {kw["wb"]}\ns_cbranch_scc1 L_end')
        if kw.get('wbd'): a(f's_sleep {kw["wbd"]}')
        a('buffer_wbl2 sc1\ns_branch L_end')
    a('L_orem:')
    a('buffer_store_dwordx4 v[40:43], v30, s[40:43], s14 offen sc1\nbuffer_store_dwordx4 v[44:47], v30, s[40:43], s14 offen offset:1024 sc1')
    a('s_branch L_ost')
    a('L_P:')
    if 'P' in kw.get('kill', ''): a('s_waitcnt lgkmcnt(0)\ns_branch L_end')
    a('s_setprio 3')
    a('s_getreg_b32 s45, hwreg(HW_REG_XCC_ID, 0, 4)')
    a('v_and_b32 v5, 3, v1')
    a(f's_lshl_b32 s10, s3, 15\ns_lshl_b32 s12, s4, 10\ns_add_u32 s12, s12, s10')
    a('s_waitcnt lgkmcnt(0)')
    if kw.get('warmq'):
        a(f'v_and_b32 v10, 7, v1\nv_lshlrev_b32 v10, 7, v10\nv_and_b32 v11, 8, v1\nv_lshl_add_u32 v10, v11, 15, v10\ns_add_u32 s11, s12, {WS_Q}')
        a(f's_mov_b64 exec, {0xff if kw["warmq"] == 1 else 0xffff}\nbuffer_load_dword v7, v10, s[40:43], s11 offen {kw.get("warmqfl", "")}\ns_mov_b64 exec, -1')
    a(f's_lshl_b32 s11, s5, 13\ns_add_u32 s10, s10, s11\ns_add_u32 s10, s10, {WS_Q}\ns_add_u32 s15, s10, 4096')
    a('v_lshlrev_b32 v10, 4, v1')
    a(f'v_lshrrev_b32 v11, 5, v1\nv_and_b32 v12, 31, v1\nv_lshlrev_b32 v13, 3, v12\nv_lshlrev_b32 v14, 4, v11\nv_xor_b32 v13, v13, v14\nv_lshl_add_u32 v13, v11, 8, v13\nv_add_u32 v22, {QL}, v13')
    for c in range(1, 8): a(f'v_xor_b32 v{22+c}, {c*32}, v22')
    a(f's_mov_b32 s14, {kw.get("nfast", 48)}')
    a('s_waitcnt lgkmcnt(0)')
    s.stamp(1)
    if 'W' in kw.get('kill', ''): a('s_branch L_end')
    if kw.get('qs'): a(f's_sleep {kw["qs"]}')
    if kw.get('qg'): s.wait_flag(C_G, kw['qg'], sleep=1)
    s.wait_flag(C_QP, 4, sleep=1, extra=[f'ds_read_b32 v15, v8 offset:{TAGW}'])
    a('s_waitcnt lgkmcnt(0)\nv_readfirstlane_b32 s44, v15')
    if q0: a(f's_sleep {q0}')
    s.stamp(2)
    a('L_qpoll:')
    for c in range(8): a(f'buffer_load_dwordx4 v[{32+4*c}:{35+4*c}], v10, s[40:43], s{10 if c < 4 else 15} offen offset:{(c&3)*1024} sc1 {kw.get("qnt", "")}')
    s.budget()
    a('s_waitcnt vmcnt(0)')
    a('v_xor_b32 v15, s44, v35')
    for c in range(1, 8): a(f'v_bitop3_b32 v15, v{35+4*c}, s44, v15 bitop3:0xbe')
    a('v_cmp_ne_u32 vcc, 0, v15\ns_cbranch_vccz L_qgot')
    a(f's_mov_b64 exec, vcc\ns_sub_u32 s14, s14, 1\ns_cbranch_scc0 L_qpoll')
    a(f'v_mov_b32 v15, 4\nds_write_b32 v8, v15 offset:{F_Q}\ns_branch L_qpoll')
    a('L_qgot:')
    a('s_mov_b64 exec, -1')
    a('v_xor_b32 v15, s45, v34')
    for c in range(8):
        a(f'ds_write_b64 v{22+c}, v[{32+4*c}:{33+4*c}] offset:{c*512}')
        if c < 7: a(f'v_bitop3_b32 v15, v{38+4*c}, s45, v15 bitop3:0xbe')
    a('v_and_b32 v15, 15, v15\nv_cmp_ne_u32 vcc, 0, v15\ns_cmp_eq_u64 vcc, 0\ns_cselect_b32 s47, 1, 2')
    if kw.get('force_remote'): a('s_mov_b32 s47, 2')
    a(f'v_mov_b32 v15, s47\nds_write_b32 v8, v15 offset:{F_Q}')
    s.stamp(3)
    a('v_add3_u32 v16, v34, v38, v42\nv_add3_u32 v17, v46, v50, v54\nv_add3_u32 v16, v16, v58, v62\nv_add_u32 v16, v16, v17')
    for m in ('quad_perm:[1,0,3,2] row_mask:0xf', 'quad_perm:[2,3,0,1] row_mask:0xf', 'row_half_mirror row_mask:0xf', 'row_mirror row_mask:0xf', 'row_bcast:15 row_mask:0xa', 'row_bcast:31 row_mask:0xc'):
        a(f'v_add_u32_dpp v16, v16, v16 {m} bank_mask:0xf')
    if kw.get('cntvote'):
        a('s_mov_b32 s11, 0')
        for c in range(8): a(f'v_cmp_gt_u32 vcc, 16, v{34+4*c}\ns_bcnt1_i32_b64 s10, vcc\ns_add_u32 s11, s11, s10')
        a('s_add_u32 s74, s64, s11')
    if kw.get('sgnvote'): a(f'v_readlane_b32 s10, v16, 63\ns_ashr_i32 s10, s10, 13\ns_add_u32 s10, s10, 400\ns_add_u32 s74, s64, s10')
    if kw.get('absvote'): a('v_readlane_b32 s10, v16, 63\ns_ashr_i32 s10, s10, 13\ns_abs_i32 s10, s10\ns_min_u32 s10, s10, 300\ns_sub_u32 s10, 300, s10\ns_add_u32 s74, s64, s10')
    if kw.get('recvote'): a('v_readlane_b32 s10, v16, 63\ns_ashr_i32 s10, s10, 13\ns_add_u32 s10, s10, 1000\ns_add_u32 s74, s64, s10')
    a('v_readlane_b32 s10, v16, 63\ns_cmp_lt_i32 s10, 0\ns_cselect_b32 s10, 0, 8192')
    if kw.get('kflip'): a('s_xor_b32 s10, s10, 8192')
    if kw.get('noisy'): a(f's_bitcmp1_b32 {kw["noisy"]}, s3\ns_cselect_b32 s11, 8192, 0\ns_xor_b32 s10, s10, s11')
    a(f'v_mov_b32 v15, s10\nds_write_b32 v8, v15 offset:{F_K}')
    a(f's_lshr_b32 s11, s10, 13\ns_lshr_b32 s9, s45, 2\ns_xor_b32 s11, s11, s9\ns_and_b32 s11, s11, 1\ns_add_u32 s11, s11, 1\nv_mov_b32 v15, s11\nds_write_b32 v8, v15 offset:{F_V}')
    a(f's_lshl_b32 s11, s12, 1\ns_add_u32 s11, s11, {WS_O}')
    a(f's_lshl2_add_u32 s12, s3, s5\ns_lshl4_add_u32 s12, s12, s6\ns_lshl_b32 s12, s12, 10\ns_add_u32 s12, s12, s10\ns_add_u32 s12, s12, {WS_S - 2048}')
    a('v_lshlrev_b32 v10, 7, v1\nv_add_u32 v11, s12, v10\nv_add_u32 v10, s11, v10\nv_cmp_gt_u32 vcc, 16, v1\nv_cndmask_b32 v10, v11, v10, vcc')
    if kw.get('wg'): s.wait_flag(C_G, kw['wg'], sleep=2)
    if kw.get('nowarm') == 1: pass
    elif kw.get('nowarm') == 2: a('s_mov_b64 exec, 0xffffff\nbuffer_load_dword v7, v10, s[40:43], 0 offen nt')
    elif kw.get('nowarm') == 3: a('s_mov_b64 exec, 0xffff\nbuffer_load_dword v7, v10, s[40:43], 0 offen nt')
    elif kw.get('wboth'):
        a('v_subrev_u32 v11, 1024, v11\nv_xor_b32 v11, 0x2000, v11\nv_cmp_gt_u32 vcc, 24, v1\nv_cndmask_b32 v10, v11, v10, vcc\ns_mov_b32 exec_hi, 0\nbuffer_load_dword v7, v10, s[40:43], 0 offen')
    elif kw.get('ont'):
        a('s_mov_b64 exec, 0xffff\nbuffer_load_dword v7, v10, s[40:43], 0 offen nt\ns_mov_b64 exec, 0xff0000\nbuffer_load_dword v7, v10, s[40:43], 0 offen')
    else:
        a('s_mov_b64 exec, 0xffffff\nbuffer_load_dword v7, v10, s[40:43], 0 offen')
    a('s_branch L_end')

    a('L_M:')
    if kw.get('mprio') is not None: a(f's_setprio {kw["mprio"]}\ns_branch L_M2')
    if 'M' in kw.get('kill', ''): a('s_waitcnt lgkmcnt(0)\ns_branch L_end')
    a('s_setprio 3')
    a('L_M2:')
    a('v_bfe_u32 v4, v1, 2, 2\nv_and_b32 v5, 3, v1')
    a('v_lshl_add_u32 v10, v4, 2, v2')
    a('v_lshlrev_b32 v11, 3, v10')
    a('v_lshlrev_b32 v10, 4, v1')
    s.mlp_slot(11, 15)
    a('s_lshl3_add_u32 s15, s5, s3\ns_lshl_b32 s11, s11, 6')
    a('v_and_b32 v24, 1, v1\nv_lshlrev_b32 v25, 5, v2\nv_lshl_add_u32 v25, v24, 1, v25')
    a('s_lshl_b32 s12, s3, 7\ns_lshl2_add_u32 s12, s6, s12\ns_lshl_b32 s13, s5, 10\ns_add_u32 s13, s13, s12')
    s.srd_const(56, 3584); s.srd_const(60, 1024); s.srd_const(96, 4096)
    a('s_waitcnt lgkmcnt(0)')
    s.srd(56, 30); s.srd(60, 34); s.srd(96, 16)
    if not kw.get('nosmall'):
        sf = kw.get('smallfl', '')
        a(f'buffer_load_ushort v16, v25, s[60:63], s12 offen {sf}')
        a('buffer_load_ushort v17, v25, s[96:99], s13 offen')
        a(f'buffer_load_dwordx2 v[14:15], v11, s[56:59], s11 offen {sf}')
    a(f'v_mul_u32_u24 v11, {HS}, v5\nv_lshl_add_u32 v11, v2, 4, v11\nv_lshrrev_b32 v12, 1, v4\nv_lshl_add_u32 v11, v12, 6, v11\nv_and_b32 v12, 1, v4\nv_lshl_add_u32 v11, v12, 3, v11\nv_add_u32 v11, {HL}, v11')
    a(f'v_mul_u32_u24 v12, {HS}, v4\nv_lshl_add_u32 v12, v2, 4, v12\nv_add_u32 v12, {HL}, v12')
    a(f'v_lshl_add_u32 v27, v2, 2, v4\nv_bfe_u32 v28, v27, 1, 2\nv_lshlrev_b32 v28, 5, v28\nv_lshl_add_u32 v28, v27, 7, v28\nv_lshl_add_u32 v28, v5, 3, v28\nv_add_u32 v28, {W2}, v28')
    a('v_xor_b32 v29, 32, v28\nv_xor_b32 v30, 64, v28\nv_xor_b32 v31, 96, v28')
    a(f'v_lshlrev_b32 v13, 3, v1\nv_add_u32 v13, {GX}, v13')
    a('s_waitcnt vmcnt(1) lgkmcnt(0)')
    a('v_lshlrev_b32 v16, 16, v16\nv_lshlrev_b32 v17, 16, v17\nds_write_b64 v13, v[16:17]')
    if kw.get('hs'): a(f's_sleep {kw["hs"]}')
    s.wait_flag(C_HP, 4, sleep=1, extra=[f'ds_read_b32 v23, v8 offset:{TAGW}'])
    a('s_waitcnt lgkmcnt(0)\nv_readfirstlane_b32 s44, v23')
    s.pack24_consts(); s.unpack24_consts()
    if kw.get('hq'): s.wait_flag(F_Q, 1, sleep=1)
    if kw.get('h0', 8): a(f's_sleep {kw.get("h0", 8)}')
    a(f's_lshl2_add_u32 s10, s3, s5\ns_lshl_b32 s10, s10, 13\ns_add_u32 s10, s10, {WS_H}\ns_add_u32 s11, s10, 4096')
    s.stamp(2)
    a('L_hpoll:')
    for c in range(8): a(f'buffer_load_dwordx4 v[{32+4*c}:{35+4*c}], v10, s[40:43], s{10 + (c>>2)} offen offset:{(c&3)*1024} sc1 {kw.get("qnt", "")}')
    s.budget()
    a('s_waitcnt vmcnt(0)')
    a('v_xor_b32 v13, s44, v35')
    for c in range(1, 8): a(f'v_bitop3_b32 v13, v{35+4*c}, s44, v13 bitop3:0xbe')
    a('v_cmp_ne_u32 vcc, 0, v13\ns_cbranch_vccnz L_hpoll')
    s.stamp(3)
    for c in range(8): s.unpack24(32 + 4 * c)
    for st in (16, 8, 4):
        for r in range(32, 32 + st, 2): a(f'v_pk_add_f32 v[{r}:{r+1}], v[{r}:{r+1}], v[{r+st}:{r+st+1}]')
    a('v_cvt_pk_bf16_f32 v36, v32, v33\nv_cvt_pk_bf16_f32 v37, v34, v35')
    for k in range(2):
        a(f'v_lshlrev_b32 v{32+2*k}, 16, v{36+k}\nv_and_b32 v{33+2*k}, 0xffff0000, v{36+k}\nv_lshlrev_b32 v{40+2*k}, 16, v{14+k}\nv_and_b32 v{41+2*k}, 0xffff0000, v{14+k}')
    for k in range(4): a(f'v_add_f32 v{32+k}, v{32+k}, v{40+k}')
    a('v_cvt_pk_bf16_f32 v36, v32, v33\nv_cvt_pk_bf16_f32 v37, v34, v35')
    for k in range(2): a(f'v_lshlrev_b32 v{32+2*k}, 16, v{36+k}\nv_and_b32 v{33+2*k}, 0xffff0000, v{36+k}')
    K1 = -2 * math.sqrt(2 / math.pi) * math.log2(math.e)
    a(f'v_mov_b32 v44, {hex(f2u(K1))}')
    for k in range(4): a(f'v_mul_f32 v{36+k}, v{32+k}, v{32+k}')
    for k in range(4): a(f'v_fmamk_f32 v{36+k}, v{36+k}, {hex(f2u(K1*0.044715))}, v44')
    for k in range(4): a(f'v_mul_f32 v{36+k}, v{36+k}, v{32+k}')
    for k in range(4): a(f'v_exp_f32 v{36+k}, v{36+k}')
    for k in range(4): a(f'v_add_f32 v{36+k}, 1.0, v{36+k}')
    for k in range(4): a(f'v_rcp_f32 v{36+k}, v{36+k}')
    for k in range(4): a(f'v_mul_f32 v{32+k}, v{32+k}, v{36+k}')
    a('v_cvt_pk_bf16_f32 v40, v32, v33\nv_cvt_pk_bf16_f32 v41, v34, v35')
    a('ds_write_b64 v11, v[40:41]\nds_read_b128 v[48:51], v12\nds_read_b128 v[52:55], v12 offset:64')
    a(f's_add_u32 s10, s6, {r2}\ns_and_b32 s10, s10, 7\ns_lshl_b32 s10, s10, 5\ns_add_u32 s10, s10, s15\ns_lshl_b32 s10, s10, 10\ns_add_u32 s10, s10, {WS_M}')
    a('v_lshlrev_b32 v10, 4, v1\nv_mov_b32 v23, s44')
    s.wait_flag(C_G, TH['2'][1], sleep=1)
    for ks in range(2):
        for T in range(4):
            for u in range(2):
                r = 64 + 16 * ks + 4 * T + 2 * u
                a(f'ds_read_b64_tr_b16 v[{r}:{r+1}], v{28+T} offset:{ks*4096+u*2048}')
    a(f'ds_read_b32 v19, v8 offset:{F_V}')
    a('s_waitcnt lgkmcnt(0)')
    for ks in range(2):
        for T in range(4): s.mfma(32 + 4 * T, 48 + 4 * ks, 64 + 16 * ks + 4 * T, ks == 0)
    a('v_and_or_b32 v23, v23, -4, v19')
    s.pack24(20, 32, 36, 40, 44)
    a('buffer_store_dwordx4 v[20:23], v10, s[40:43], s10 offen sc1')
    s.stamp(4)
    a('L_end:')
    if kw.get('probe'):
        pw, pst, pm, pb = kw['probe']
        a(f's_waitcnt lgkmcnt(0)\ns_cmp_lg_u32 s7, {pw}\ns_cbranch_scc1 L_exit')
        if pw >= 4: a('s_barrier\ns_barrier' if kw.get('obar') and pw != 6 else 's_barrier')
        if kw.get('clk') == 1: a('s_memtime s[92:93]\ns_waitcnt lgkmcnt(0)\ns_sub_u32 s10, s92, s90\ns_lshr_b32 s10, s10, 1\ns_add_u32 s94, s64, s10')
        if kw.get('clk') == 2: a('s_memrealtime s[92:93]\ns_waitcnt lgkmcnt(0)\ns_sub_u32 s10, s92, s88\ns_mul_i32 s10, s10, 10\ns_add_u32 s94, s64, s10')
        if kw.get('px') is not None: a(f's_cmp_lg_u32 s45, {kw["px"]}\ns_cbranch_scc1 L_exit')
        if kw.get('pm') is not None: a(f's_mul_i32 s10, s45, {kw["pm"]}\ns_add_u32 s94, s64, s10')
        if kw.get('pg') is not None: a(f's_cmp_lg_u32 s3, {kw["pg"]}\ns_cbranch_scc1 L_exit')
        a(f's_sub_u32 s10, s{64+2*pst}, s64\ns_mul_i32 s10, s10, {pm}\ns_add_u32 s10, s10, {pb}\ns_min_u32 s10, s10, 20000')
        a('L_padloop:\ns_memrealtime s[12:13]\ns_waitcnt lgkmcnt(0)\ns_sub_u32 s11, s12, s64\ns_cmp_lt_u32 s11, s10\ns_cbranch_scc1 L_padloop')
    s.dump_stamps()
    a('L_exit:')
    a('s_endpgm')
    lines, added = hazard.fix(s.o, verbose=kw.get('verbose', False))
    return wrap('\n'.join(lines) + '\n', 256, NW * 64, kw.get('lds', LDS_TOTAL), kw.get('vgpr', 192))

if __name__ == '__main__':
    import ast
    out = sys.argv[1]
    kw = {}
    for x in sys.argv[2:]:
        k, v = x.split('=')
        try: kw[k] = ast.literal_eval(v)
        except Exception: kw[k] = v
    open(out, 'w').write(gen(**kw))
```

```python
import sys, math, struct
sys.path.insert(0, 'dev')
from common import *
import hazard

def f2u(x):
    return struct.unpack('<I', struct.pack('<f', x))[0]

NW = 7
FL = 0
WA, W1, KB, W2, VB, WO = [2048 + x for x in (0, 16384, 24576, 57344, 65536, 98304)]
XN = 2048 + 114688; XS = 1088
YL = XN + 4 * XS
QL = YL + 4 * XS
assert QL % 256 == 0
PL = QL + 4096
RED = PL + 4096
HL = RED + 4096; HS = 144
MX = 128
FP = 192
GX = HL + 640
LDS_TOTAL = GX + 512
C_WA, C_G, C_XN, F_Q, C_MX, C_P, F_WT, C_QP, C_Y, C_HP, T_A, T_B, F_K, TAGW, F_V = [4 * i for i in range(15)]

WS_Q = 0x1000
WS_H = WS_Q + 0x40000
WS_LSE = WS_H + 0x40000
WS_O = WS_LSE + 0x4000
WS_M = WS_O + 0x80000
WS_S = 0x150000
assert WS_S >= WS_M + 0x40000
WS_T = WS_S + 0x80000
WS_N = WS_T + 0x10000
WS_END = WS_T + 0x20000
assert WS_END <= 0x200000
STAMP = 0x8000000

class G:
    def __init__(s, **kw):
        s.o = []
        s.nl = 0
        s.kw = kw
        s.stamps = kw.get('stamps', False)
    def a(s, t):
        for l in t.split('\n'):
            l = l.strip()
            if l: s.o.append(l)
    def lab(s, p='L'):
        s.nl += 1
        return f'{p}_{s.nl}'
    def stamp(s, i):
        pr = s.kw.get('probe')
        only = s.kw.get('only')
        if (s.stamps and (only is None or i in only or i == 0)) or (pr and i in (0, pr[1])):
            s.a(f's_memrealtime s[{64+2*i}:{65+2*i}]')
    def budget(s):
        s.a('s_sub_u32 s46, s46, 1\ns_cbranch_scc1 L_end')
    def wait_flag(s, off, n, extra=None, sleep=0, vt='v9'):
        L = s.lab('W')
        if sleep:
            L2 = s.lab('W')
            s.a(f's_branch {L2}\n{L}:\ns_sleep {sleep}\n{L2}:')
        else:
            s.a(f'{L}:')
        s.a(f'ds_read_b32 {vt}, v8 offset:{off}')
        ne = 0
        if extra:
            for e in extra: s.a(e)
            ne = len(extra)
        s.budget()
        s.a(f's_waitcnt lgkmcnt({0 if (s.stamps and not s.kw.get("lean")) or (s.kw.get("safeA") and ne > 6) else min(ne, 15)})')
        s.a(f'v_cmp_gt_u32 vcc, {n}, {vt}')
        s.a(f's_cbranch_vccnz {L}')
    def signal(s, off):
        s.a(f's_mov_b64 exec, 1\nds_add_u32 v8, v6 offset:{off}\ns_mov_b64 exec, -1')
    def srd(s, d, p):
        s.a(f's_mov_b32 s{d}, s{p}\ns_mov_b32 s{d+1}, s{p+1}')
    def srd_const(s, d, n):
        s.a(f's_mov_b32 s{d+2}, {n}\ns_mov_b32 s{d+3}, 0x20000')
    def wave_sum(s, v, sd):
        for m in ('quad_perm:[1,0,3,2]', 'quad_perm:[2,3,0,1]', 'row_half_mirror', 'row_mirror'):
            s.a(f'v_add_f32_dpp {v}, {v}, {v} {m} row_mask:0xf bank_mask:0xf')
        s.a(f'v_add_f32_dpp {v}, {v}, {v} row_bcast:15 row_mask:0xa bank_mask:0xf')
        s.a(f'v_add_f32_dpp {v}, {v}, {v} row_bcast:31 row_mask:0xc bank_mask:0xf')
        s.a(f'v_readlane_b32 {sd}, {v}, 63')
    def rows_allreduce(s, op, v, t):
        s.a(f'v_mov_b32 {t}, {v}\nv_permlane16_swap_b32 {t}, {v}\n{op} {v}, {t}, {v}')
        s.a(f'v_mov_b32 {t}, {v}\nv_permlane32_swap_b32 {t}, {v}\n{op} {v}, {t}, {v}')
    def layernorm(s, src, f, t):
        P = lambda r: f'v[{r}:{r+1}]'
        for k in range(4):
            s.a(f'v_lshlrev_b32 v{f+2*k}, 16, v{src+k}\nv_and_b32 v{f+2*k+1}, s55, v{src+k}')
        s.a(f'v_pk_add_f32 {P(t)}, {P(f)}, {P(f+2)}\nv_pk_add_f32 {P(t+2)}, {P(f+4)}, {P(f+6)}\nv_pk_add_f32 {P(t)}, {P(t)}, {P(t+2)}\nv_add_f32 v{t}, v{t}, v{t+1}')
        s.wave_sum(f'v{t}', 's10')
        s.a(f'v_mov_b32 v{src+3}, {hex(f2u(1/512))}')
        s.a(f'v_mul_f32 v{src}, s10, v{src+3}')
        for k in range(4):
            s.a(f'v_pk_add_f32 {P(t+2*k)}, {P(f+2*k)}, {P(src)} op_sel_hi:[1,0] neg_lo:[0,1] neg_hi:[0,1]')
        s.a(f'v_pk_mul_f32 {P(t)}, {P(t)}, {P(t)}')
        for k in range(1, 4):
            s.a(f'v_pk_fma_f32 {P(t)}, {P(t+2*k)}, {P(t+2*k)}, {P(t)}')
        s.a(f'v_add_f32 v{t}, v{t}, v{t+1}')
        s.a(f'v_cvt_pk_bf16_f32 v{src}, v{src}, v{src}\nv_lshlrev_b32 v{src}, 16, v{src}')
        ms = ['quad_perm:[1,0,3,2] row_mask:0xf', 'quad_perm:[2,3,0,1] row_mask:0xf', 'row_half_mirror row_mask:0xf', 'row_mirror row_mask:0xf', 'row_bcast:15 row_mask:0xa', 'row_bcast:31 row_mask:0xc']
        fill = [f'v_pk_add_f32 {P(f+2*k)}, {P(f+2*k)}, {P(src)} op_sel_hi:[1,0] neg_lo:[0,1] neg_hi:[0,1]' for k in range(4)]
        fill += [f'v_cvt_pk_bf16_f32 v{t+2+k}, v{f+2*k}, v{f+2*k+1}' for k in range(4)]
        for k in range(4): fill += [f'v_lshlrev_b32 v{f+2*k}, 16, v{t+2+k}', f'v_and_b32 v{f+2*k+1}, s55, v{t+2+k}']
        for m in ms:
            s.a(f'v_add_f32_dpp v{t}, v{t}, v{t} {m} bank_mask:0xf')
            s.a(fill.pop(0)); s.a(fill.pop(0))
        s.a(f'v_readlane_b32 s10, v{t}, 63')
        s.a(fill.pop(0)); s.a(fill.pop(0))
        s.a(f'v_mul_f32 v{src}, s10, v{src+3}')
        s.a(f'v_cvt_pk_bf16_f32 v{src}, v{src}, v{src}\nv_lshlrev_b32 v{src}, 16, v{src}')
        s.a(f'v_add_f32 v{src}, {hex(f2u(1e-5))}, v{src}')
        s.a(f'v_cvt_pk_bf16_f32 v{src}, v{src}, v{src}\nv_lshlrev_b32 v{src}, 16, v{src}')
        s.a(f'v_sqrt_f32 v{src}, v{src}')
        s.a(fill.pop(0))
        s.a(f'v_cvt_pk_bf16_f32 v{src}, v{src}, v{src}\nv_lshlrev_b32 v{src}, 16, v{src}')
        s.a(f'v_rcp_f32 v{src}, v{src}')
        s.a(fill.pop(0))
        assert not fill
        for k in range(4):
            s.a(f'v_pk_mul_f32 {P(f+2*k)}, {P(f+2*k)}, {P(src)} op_sel_hi:[1,0]')
        for k in range(4):
            s.a(f'v_cvt_pk_bf16_f32 v{src+k}, v{f+2*k}, v{f+2*k+1}')
    def round_bf16(s, v):
        s.a(f'v_cvt_pk_bf16_f32 {v}, {v}, {v}\nv_lshlrev_b32 {v}, 16, {v}')
    def tag_finish(s):
        s.a('s_mul_i32 s44, s44, 0x2c9277b5\ns_add_u32 s44, s44, 0xac564b05')
    def pack24(s, d, a, b, c, e):
        s.a(f'v_perm_b32 v{d}, v{a}, v{e}, s50\nv_perm_b32 v{d+1}, v{b}, v{e}, s51\nv_perm_b32 v{d+2}, v{c}, v{e}, s52')
    def pack24_consts(s):
        s.a('s_mov_b32 s50, 0x07060503\ns_mov_b32 s51, 0x07060502\ns_mov_b32 s52, 0x07060501')
    def unpack24(s, r):
        s.a(f'v_perm_b32 v{r+3}, v{r}, v{r+1}, s53\nv_perm_b32 v{r+3}, v{r+3}, v{r+2}, s54')
    def unpack24_consts(s):
        s.a('s_mov_b32 s53, 0x04000c0c\ns_mov_b32 s54, 0x0706000c')
    def reduce32(s, r):
        s.a(f'v_permlane32_swap_b32 v{r}, v{r+2}\nv_permlane32_swap_b32 v{r+1}, v{r+3}')
        s.a(f'v_add_f32 v{r}, v{r}, v{r+2}\nv_add_f32 v{r+1}, v{r+1}, v{r+3}')
        s.a(f'v_permlane16_swap_b32 v{r}, v{r+1}\nv_add_f32 v{r}, v{r}, v{r+1}')
        for m in ('row_ror:8', 'row_ror:4', 'row_ror:2'):
            s.a(f'v_add_f32_dpp v{r}, v{r}, v{r} {m} row_mask:0xf bank_mask:0xf')
    def mfma(s, d, A, B, first):
        s.a(f'v_mfma_f32_16x16x32_bf16 v[{d}:{d+3}], v[{A}:{A+3}], v[{B}:{B+3}], {"0" if first else f"v[{d}:{d+3}]"}')
    def mlp_slot(s, d, t):
        ha = s.kw.get('ha', 4)
        s.a(f's_mul_i32 s{d}, s5, 6\ns_add_u32 s{d}, s{d}, s3\ns_cmp_gt_u32 s3, {ha}\ns_cselect_b32 s{t}, 2, 0\ns_sub_u32 s{d}, s{d}, s{t}\ns_lshl_b32 s{d}, s{d}, 1')
        s.a(f's_lshl2_add_u32 s{t}, s3, s5\ns_add_u32 s{t}, s{t}, {48-4*ha}')
        s.a(f's_bitcmp1_b32 {3 << ha}, s3\ns_cselect_b32 s{d}, s{t}, s{d}')
    def hint(s, name, off, nq, tries, sub):
        a = s.a
        a(f's_lshl_b32 s48, s3, 7\ns_add_u32 s48, s48, {WS_N + off}\ns_add_u32 s49, s48, s4')
        a('s_and_b32 s50, s44, 0xff\ns_mul_i32 s50, s50, 0x01010101\ns_mov_b32 s51, s50\nv_mov_b32 v21, s50')
        if sub: a('s_andn2_b32 s48, s49, 7')
        a(f's_mov_b32 s47, {tries}')
    def hint_go(s, name, nq):
        a = s.a
        a('s_mov_b64 exec, 1\nbuffer_store_byte v21, v8, s[40:43], s49 offen\ns_mov_b64 exec, -1')
        a(f'L_{name}:')
        a(f's_load_dwordx{2*nq} s[52:{51+2*nq}], s[40:41], s48 glc')
        a(f's_sub_u32 s47, s47, 1\ns_cbranch_scc1 L_{name}d\ns_waitcnt lgkmcnt(0)')
        for k in range(nq): a(f's_xor_b64 s[{52+2*k}:{53+2*k}], s[{52+2*k}:{53+2*k}], s[50:51]')
        for k in range(1, nq): a(f's_or_b64 s[52:53], s[52:53], s[{52+2*k}:{53+2*k}]')
        a(f's_cbranch_scc1 L_{name}\nL_{name}d:\ns_waitcnt lgkmcnt(0)')
    def dump_stamps(s, nst=16):
        if not s.stamps: return
        s.a('s_waitcnt lgkmcnt(0)\ns_mov_b64 exec, -1\nv_mov_b32 v10, 0')
        for i in range(nst):
            s.a(f'v_writelane_b32 v10, s{64+2*i}, {i}')
        s.a(f's_mul_i32 s10, s2, {NW*64}\ns_lshl_b32 s11, s7, 6\ns_add_u32 s10, s10, s11\ns_add_u32 s10, s10, {STAMP}')
        s.a('v_lshlrev_b32 v11, 2, v1\ns_mov_b64 exec, 0xffff\nbuffer_store_dword v10, v11, s[40:43], s10 offen ' + s.kw.get('stfl', ''))

def gen(**kw):
    s = G(**kw)
    a = s.a
    depth = kw.get('depth', 20)
    NT = kw.get('nt', 'nt')
    npq = kw.get('npq', 2); gapq = kw.get('gapq', 12); q0 = kw.get('q0', 4)
    npl = kw.get('npl', 4); gapl = kw.get('gapl', 6)
    CSC = math.log2(math.e) / math.sqrt(128)
    ONE2 = 0x3f803f80
    order = kw.get('order', '11kkkkkkkk22vvvvvvvvoooo')
    TH = {c: [i + 1 for i, x in enumerate(order) if x == c] for c in '1k2vo'}
    assert [len(TH[c]) for c in '1k2vo'] == [2, 8, 2, 8, 4]
    marks = {TH['1'][1], TH['2'][1], TH['o'][3], len(order) - (kw.get('oe') or 0), kw.get('qg') or 2} | set(TH['k'][1::2]) | set(TH['v'][1::2])
    def common():
        if s.stamps:
            for i in range(1, 16): a(f's_mov_b32 s{64+2*i}, 0')
        a('v_and_b32 v1, 63, v0\ns_lshr_b32 s5, s4, 3\ns_and_b32 s6, s4, 7')
        a(f's_mov_b32 s42, {STAMP + 0x100000 if s.stamps else WS_END}\ns_mov_b32 s43, 0x20000')
        a(f's_mov_b32 s46, {kw.get("budget", 5000000)}')
        a('v_mov_b32 v6, 1')
        a('v_lshrrev_b32 v2, 4, v1\nv_and_b32 v3, 15, v1')
    s.stamp(0)
    a('s_load_dwordx16 s[16:31], s[0:1], 0\ns_load_dwordx8 s[32:39], s[0:1], 64\ns_load_dwordx2 s[40:41], s[0:1], 96')
    a('s_lshr_b32 s4, s2, 3\ns_cmp_ge_u32 s4, 32\ns_cbranch_scc1 L_exit')
    a('v_lshrrev_b32 v2, 6, v0\nv_bfe_u32 v4, v0, 3, 3')
    a('v_mov_b32 v8, 0\nds_write_b8 v0, v8')
    if kw.get('prefetch', True):
        a('s_getpc_b64 s[8:9]\nL_pc:')
        if kw.get('pf2'):
            a('s_lshl_b32 s10, s4, 7\nv_lshl_add_u32 v3, v0, 12, s10\nv_min_u32 v3, L_exit-L_pc, v3\nglobal_load_dword v7, v3, s[8:9]')
        else:
            a('v_lshlrev_b32 v3, 7, v0\nv_min_u32 v3, L_exit-L_pc, v3\nglobal_load_dword v7, v3, s[8:9]')
    a('v_readfirstlane_b32 s7, v2')
    a('v_and_b32 v5, 6, v4\nv_xor_b32 v5, v5, v0\nv_and_b32 v5, 7, v5\nv_lshlrev_b32 v5, 4, v5')
    a('s_and_b32 s3, s2, 7\ns_cmp_eq_u32 s7, 6\ns_cbranch_scc1 L_L\ns_cmp_ge_u32 s7, 4\ns_cbranch_scc1 L_PM')
    a('s_mov_b32 s51, 0x20000\nv_lshlrev_b32 v11, 4, v0')
    a('s_lshr_b32 s10, s4, 3\ns_lshl2_add_u32 s10, s10, s7\ns_lshl_b32 s10, s10, 18\ns_and_b32 s11, s4, 7\ns_lshl3_add_u32 s11, s3, s11\ns_xor_b32 s11, s11, ' + str(kw.get('rq', 0)) + '\ns_lshl_b32 s11, s11, 7\ns_add_u32 s10, s10, s11')
    a(f's_bfm_b32 s50, 1, 22\ns_bfm_b32 s12, 6, 10\nv_lshl_add_u32 v10, v4, 13, v5\ns_lshl_b32 m0, s7, 12\ns_addk_i32 m0, {WA}')
    a('s_waitcnt lgkmcnt(0)')
    a('s_mov_b64 s[48:49], s[22:23]')
    a('global_load_dwordx4 v[12:15], v11, s[16:17]')
    for r in range(4):
        a(f'buffer_load_dwordx4 v10, s[48:51], s10 offen offset:{r*1024} {NT} lds')
        if r < 3: a('s_add_u32 s10, s10, s12')
    a('s_branch L_C')
    a('L_L:')
    if kw.get('lprio'): a(f's_setprio {kw["lprio"]}')
    a('s_barrier')
    common()
    rq, r2 = kw.get('rq', 0), kw.get('r2', 0)
    s.mlp_slot(10, 11)
    a('s_cselect_b32 s11, 64, 0\ns_cselect_b32 s8, 30, 15')
    a('v_and_b32 v14, s11, v5\nv_lshl_add_u32 v14, v14, 24, v5\nv_mul_u32_u24 v32, 3584, v4\nv_add_u32 v32, v32, v14')
    for r in range(1, 4): a(f'v_add_u32 v{32+r}, {r*(8*3584-1024)}, v32')
    a('v_xor_b32 v14, v3, v2\nv_lshlrev_b32 v14, 4, v14\nv_lshl_add_u32 v18, v2, 8, v14')
    for r in range(1, 4): a(f'v_xor_b32 v{18+r}, {r*64}, v18\nv_add_u32 v{18+r}, {r*7168}, v{18+r}')
    a(f's_mov_b32 s50, {512*3584}\ns_mov_b32 s51, 0x20000\ns_lshl_b32 s8, 1, s8')
    a(f's_mul_i32 s12, s6, {64*3584}\ns_lshl_b32 s11, s10, 6\ns_add_u32 s12, s12, s11')
    a(f's_lshl_b32 s13, s5, 23\ns_lshl_b32 s11, s3, 20\ns_add_u32 s13, s13, s11\ns_lshl_b32 s11, s6, 10\ns_add_u32 s13, s13, s11\ns_add_u32 s13, s13, {3072*256}')
    a('s_bfm_b32 s54, 1, 25\ns_mov_b32 s55, s51\ns_mov_b32 s14, s13')
    a('s_waitcnt lgkmcnt(0)')
    s.stamp(1)
    dg = depth // 4
    segs = {'1': (32, 48, 28, 12, 32 * 3584, W1), 'k': (18, 52, 18, 13, 32768, KB), 'v': (22, 56, 20, 14, 32768, VB),
            '2': (26, 60, 32, 15, 's8', W2), 'o': (26, 96, 24, 9, 32768, WO)}
    cnt = {c: 0 for c in segs}
    late = False
    prof = kw.get('prof')
    prof = [int(x, 16) for x in prof] if prof else [dg] * len(order)
    assert len(prof) == len(order)
    landed = 0
    first_wait = min(gi for gi in range(len(order)) if gi + 1 > prof[gi])
    for gi, c in enumerate(order):
        vr, sd, ptr, so, step, lds = segs[c]
        if gi == first_wait:
            a('v_lshlrev_b32 v14, 1, v2\nv_xor_b32 v14, v3, v14\nv_lshlrev_b32 v14, 4, v14\nv_lshl_add_u32 v22, v2, 8, v14')
            a(f'v_xor_b32 v23, 128, v22\nv_add_u32 v24, {2*7168}, v22\nv_add_u32 v25, {3*7168}, v23\nv_add_u32 v23, 7168, v23')
            a('v_lshl_add_u32 v26, v4, 10, v5')
            for r in range(1, 4): a(f'v_add_u32 v{26+r}, {r*7168}, v26')
            a(f's_mov_b32 s58, s54\ns_mov_b32 s59, s51\ns_mov_b32 s62, {1792*1024}\ns_mov_b32 s63, s51\ns_bfm_b32 s98, 1, 22\ns_mov_b32 s99, s51')
            s.srd(56, 20); s.srd(60, 32); s.srd(96, 24)
            a(f's_add_u32 s11, s6, {r2}\ns_and_b32 s11, s11, 7\ns_lshl_b32 s11, s11, 7\ns_lshl_b32 s15, s10, 15\ns_add_u32 s15, s15, s11')
            a('s_lshl2_add_u32 s9, s3, s5\ns_lshl_b32 s9, s9, 17\ns_lshl_b32 s11, s6, 7\ns_add_u32 s9, s9, s11')
            s.stamp(2)
            late = True
        assert late or c in '1k'
        if cnt[c] == 0 and c in '1k': s.srd(sd, ptr)
        a(f's_mov_b32 m0, {lds + cnt[c] * 4096}')
        if cnt[c]: a(f's_add_u32 s{so}, s{so}, {step}')
        while landed < gi + 1 - prof[gi]:
            landed += 1
            if landed in marks or landed == gi + 1 - prof[gi]:
                a(f's_waitcnt vmcnt({(gi-landed)*4})')
            if landed in marks:
                a(f'v_mov_b32 v30, {landed}\nds_write_b32 v8, v30 offset:{C_G}')
                if landed == TH['v'][7]: s.stamp(6)
        for r in range(4):
            fine = kw.get('fine')
            if fine and gi * 4 + r >= fine and (r or fine - 1 < (gi - landed) * 4): a(f's_waitcnt vmcnt({fine-1})')
            fl = kw.get('nt' + c, NT)
            a(f'buffer_load_dwordx4 v{vr+r}, s[{sd}:{sd+3}], s{so} offen offset:{r*1024} {fl} lds')
        cnt[c] += 1
    for n in range(landed + 1, len(order) + 1):
        if n in marks:
            if kw.get('obar') and n == len(order) and n != TH['v'][7]:
                a('s_waitcnt vmcnt(0)')
            else:
                a(f'v_mov_b32 v30, {n}\ns_waitcnt vmcnt({(len(order)-n)*4})\nds_write_b32 v8, v30 offset:{C_G}')
            if n == TH['v'][7]: s.stamp(6)
    s.stamp(7)
    if kw.get('obar'): a('s_barrier')
    a('s_branch L_end')

    if kw.get('shift'): a('s_nop 0')
    a('L_PM:')
    a('s_barrier')
    common()
    ns = kw.get('nsamp', 1)
    if kw.get('spread'):
        nb, base = kw['spread']
        a(f's_xor_b32 s9, s7, s4\ns_and_b32 s9, s9, 1\ns_lshl_b32 s10, s3, 5\ns_add_u32 s10, s10, s4\ns_and_b32 s10, s10, {nb-1}\ns_lshl1_add_u32 s10, s10, s9\ns_lshl_b32 s10, s10, 6\ns_mul_i32 s11, s2, 5\ns_and_b32 s11, s11, 63\ns_add_u32 s10, s10, s11\ns_lshl_b32 s10, s10, 7\ns_add_u32 s10, s10, {base}')
    else:
        a(f's_xor_b32 s9, s7, s4\ns_and_b32 s9, s9, 1\ns_lshr_b32 s10, s2, 6\ns_lshl1_add_u32 s10, s10, s9\ns_lshl_b32 s10, s10, 6\ns_and_b32 s11, s2, 63\ns_add_u32 s10, s10, s11\ns_lshl_b32 s10, s10, 7\ns_add_u32 s10, s10, {WS_T}')
    a('s_waitcnt lgkmcnt(0)')
    if kw.get('tlb'):
        a('s_lshl3_add_u32 s11, s5, s3\ns_lshl_b32 s11, s11, 10\ns_add_u32 s11, s11, s6\ns_addk_i32 s11, 768\ns_lshl_b32 s11, s11, 10\nv_mov_b32 v10, s11')
        a('s_lshl2_add_u32 s11, s3, s5\ns_lshl_b32 s11, s11, 10\ns_add_u32 s11, s11, s6\ns_lshl_b32 s11, s11, 7\nv_mov_b32 v11, s11')
        a(f's_lshl_b32 s11, s2, 7\nv_mov_b32 v12, s11\ns_add_u32 s11, s11, {WS_T + 0x10000}\nv_mov_b32 v13, s11')
        a('s_mov_b64 exec, 1\ns_cmp_eq_u32 s7, 4\ns_cbranch_scc0 L_tl5')
        a('global_load_dword v7, v10, s[20:21] nt\nglobal_load_dword v7, v11, s[24:25] nt\ns_branch L_tl6')
        a('L_tl5:\nglobal_load_dword v7, v12, s[32:33] nt\nglobal_load_dword v7, v13, s[40:41] nt')
        a('L_tl6:\ns_mov_b64 exec, -1')
    if kw.get('pd'): a(f's_sleep {kw["pd"]}')
    a('s_memtime s[12:13]\ns_load_dword s11, s[40:41], s10')
    if ns == 2: a('s_add_u32 s10, s10, 0x10000\ns_waitcnt lgkmcnt(0)\ns_load_dword s11, s[40:41], s10')
    a('s_waitcnt lgkmcnt(0)\ns_memtime s[14:15]\ns_lshl_b32 s10, s9, 2\nv_mov_b32 v10, s10\ns_waitcnt lgkmcnt(0)')
    a(f's_sub_u32 s12, s14, s12\nv_mov_b32 v11, s12\nds_write_b32 v10, v11 offset:{T_A}')
    a('s_cmp_eq_u32 s7, 4\ns_cbranch_scc1 L_P\ns_branch L_M')
    a('L_C:')
    if kw.get('clk'): a('s_memtime s[90:91]\ns_memrealtime s[88:89]')
    a('s_load_dword s44, s[40:41], 0\ns_barrier')
    a(f's_setprio {kw.get("cprio", 2)}')
    common()
    s.stamp(1)
    if 'C' in kw.get('kill', ''): a('s_waitcnt vmcnt(0)\ns_branch L_end')
    a('v_bfe_u32 v4, v1, 2, 2\nv_and_b32 v5, 3, v1')
    a(f's_mul_i32 s11, s7, {XS}\ns_add_u32 s11, s11, {XN}')
    a('v_lshrrev_b32 v10, 2, v1\nv_lshlrev_b32 v10, 6, v10\nv_and_b32 v11, 1, v1\nv_lshl_add_u32 v10, v11, 5, v10\nv_and_b32 v11, 2, v1\nv_lshl_add_u32 v10, v11, 2, v10\nv_add_u32 v11, s11, v10')
    a('s_mov_b32 s55, 0xffff0000')
    a('v_lshl_add_u32 v27, v2, 2, v4\nv_bfe_u32 v96, v27, 1, 2\nv_lshlrev_b32 v96, 5, v96\nv_lshl_add_u32 v96, v27, 7, v96\nv_lshl_add_u32 v96, v5, 3, v96')
    a('s_lshl_b32 s12, s7, 5\nv_xor_b32 v10, s12, v96')
    a('s_getreg_b32 s45, hwreg(HW_REG_XCC_ID, 0, 4)')
    a(f'v_mul_u32_u24 v24, {XS}, v5\nv_lshl_add_u32 v24, v2, 4, v24')
    a(f's_lshl_b32 s10, s5, 8\ns_add_u32 s10, s10, {XN}\nv_add_u32 v25, s10, v24')
    a(f's_lshl_b32 s10, s6, 7\ns_add_u32 s10, s10, {YL}\nv_add_u32 v24, s10, v24')
    a(f's_lshl_b32 s14, s3, 15\ns_lshl1_add_u32 s14, s12, s14\ns_lshl_b32 s13, s4, 8\ns_xor_b32 s58, s13, {rq*256}\ns_add_u32 s58, s14, s58\ns_add_u32 s58, s58, {WS_Q}')
    a(f's_lshl2_add_u32 s59, s13, s14\ns_add_u32 s59, s59, {WS_H}')
    a('v_lshlrev_b32 v106, 13, v3\nv_lshl_add_u32 v106, v2, 4, v106\nv_lshlrev_b32 v107, 4, v1\nv_mov_b32 v30, ' + str(kw.get('clamp', 384)) + '\nv_sub_u32 v31, 0, v30')
    s.pack24_consts()
    a('s_mov_b32 s13, 1')
    a('s_waitcnt vmcnt(0)' if kw.get('safeB') else 's_waitcnt vmcnt(4)')
    if not kw.get('ackst'): s.stamp(2)
    a('L_ln:')
    s.layernorm(12, 16, 32)
    a(f'ds_write2_b64 v11, v[12:13], v[14:15] offset1:2\nv_add_u32 v11, {YL-XN}, v11')
    a('s_sub_u32 s13, s13, 1\ns_cbranch_scc0 L_ln')
    s.stamp(3)
    a('s_waitcnt vmcnt(0) lgkmcnt(0)')
    if kw.get('st_tile'): s.stamp(5)
    s.signal(C_WA)
    s.tag_finish()
    a(f'v_mov_b32 v111, s44\nv_mov_b32 v115, s44\nds_write_b32 v8, v111 offset:{TAGW}')
    s.wait_flag(C_WA, 4, extra=[f'ds_read_b64 v[28:29], v8 offset:{T_A}'] + [x for t in range(4) for x in (f'ds_read_b128 v[{64+4*t}:{67+4*t}], v25 offset:{t*64}',
                f'ds_read_b64_tr_b16 v[{40+4*t}:{41+4*t}], v10 offset:{WA+t*4096}', f'ds_read_b64_tr_b16 v[{42+4*t}:{43+4*t}], v10 offset:{WA+t*4096+2048}')])
    for t in range(4):
        a(f's_waitcnt lgkmcnt({9-3*t})')
        s.mfma(16, 40 + 4 * t, 64 + 4 * t, t == 0)
        if t == 0: a('v_sub_u32 v110, v28, v29\nv_min_u32 v28, v28, v29')
        if t == 1: a('v_cmp_ne_u32 vcc, 0, v28\nv_med3_i32 v110, v110, v30, v31')
        if t == 2: a(('v_sub_u32 v29, 0, v110\nv_cndmask_b32 v110, v29, v110, vcc' if kw.get('miss', 1) else 'v_cndmask_b32 v110, 0, v110, vcc') + '\nv_lshl_or_b32 v110, v110, 4, s45')
    for t in range(2): a(f'ds_read_b128 v[{80+4*t}:{83+4*t}], v24 offset:{t*64}')
    a('s_mov_b32 exec_lo, 0x000f000f\ns_mov_b32 exec_hi, 0x000f000f')
    a('v_cvt_pk_bf16_f32 v108, v16, v17\nv_cvt_pk_bf16_f32 v109, v18, v19')
    a('buffer_store_dwordx4 v[108:111], v106, s[40:43], s58 offen')
    if kw.get('qe'): s.signal(C_QP)
    else: a('s_mov_b64 exec, -1')
    if not kw.get('ackst'): s.stamp(4)
    s.wait_flag(C_G, TH['1'][1], extra=[f'ds_read_b64_tr_b16 v[{40+2*t}:{41+2*t}], v10 offset:{W1+t*2048}' for t in range(4)], sleep=1)
    for t in range(2):
        a(f's_waitcnt lgkmcnt({2-2*t})')
        s.mfma(16, 40 + 4 * t, 80 + 4 * t, t == 0)
    a('s_mov_b32 exec_lo, 0x000f000f\ns_mov_b32 exec_hi, 0x000f000f')
    s.pack24(112, 16, 17, 18, 19)
    a('buffer_store_dwordx4 v[112:115], v107, s[40:43], s59 offen')
    if kw.get('he'): s.signal(C_HP)
    else: a('s_mov_b64 exec, -1')
    if 'Q' in kw.get('kill', ''): a('s_branch L_end')
    a(f's_lshl_b32 s10, s7, 13\ns_add_u32 s10, s10, {KB}')
    a(f'v_xor_b32 v10, v2, v3\nv_lshlrev_b32 v10, 4, v10\nv_lshl_add_u32 v10, v3, 8, v10\nv_add_u32 v102, {QL}, v10\nv_add_u32 v10, s10, v10')
    a('v_xor_b32 v103, 64, v102\nv_xor_b32 v104, 128, v102\nv_xor_b32 v105, 192, v102')
    a('v_xor_b32 v11, 64, v10\nv_xor_b32 v12, 128, v10\nv_xor_b32 v13, 192, v10')
    a(f's_lshl_b32 s10, s7, 2\ns_add_u32 s10, s10, {MX}\nv_lshlrev_b32 v15, 4, v5\nv_add_u32 v24, s10, v15\nv_add_u32 v15, {MX}, v15\ns_add_u32 s10, s10, {FP-MX}\nv_mov_b32 v14, s10')
    a(f's_lshl_b32 s10, s7, 10\ns_add_u32 s10, s10, {PL}\nv_lshlrev_b32 v25, 4, v1\nv_add_u32 v26, s10, v25\nv_add_u32 v25, {PL}, v25')
    a('v_and_b32 v28, 7, v27\ns_lshl_b32 s10, s7, 1\nv_xor_b32 v28, s10, v28\nv_lshlrev_b32 v28, 5, v28\nv_lshl_add_u32 v28, v27, 8, v28\nv_lshl_add_u32 v28, v5, 3, v28')
    a(f'v_add_u32 v28, {VB}, v28\nv_xor_b32 v29, 32, v28')
    a(f's_lshr_b32 s10, s7, 1\ns_lshl_b32 s11, s10, 13\ns_add_u32 s11, s11, {WO}')
    a('v_add_u32 v96, s11, v96\nv_xor_b32 v97, 32, v96\nv_xor_b32 v98, 64, v96\nv_xor_b32 v99, 96, v96')
    a('v_lshlrev_b32 v30, 14, v3\nv_lshl_add_u32 v30, v2, 8, v30')
    a(f's_lshl_b32 s14, s3, 16\ns_add_u32 s14, s14, {WS_O}')
    a('s_lshr_b32 s11, s4, 4\ns_lshl2_add_u32 s11, s11, s7\ns_lshl_b32 s11, s11, 11\ns_and_b32 s12, s4, 15\ns_lshl4_add_u32 s11, s12, s11')
    a('v_lshlrev_b32 v31, 4, v1')
    a('s_xor_b32 s12, s3, s6\ns_and_b32 s12, s12, 4\ns_lshl_b32 s12, s12, 11\nv_or_b32 v101, s12, v31')
    a('s_lshl_b32 s15, s5, 14\ns_add_u32 s15, s15, s14\ns_lshl_b32 s10, s10, 12\ns_add_u32 s15, s15, s10\ns_and_b32 s10, s7, 1\ns_lshl_b32 s12, s10, 13\ns_add_u32 s15, s15, s12')
    a('s_add_u32 s14, s14, s11')
    a(f'v_lshlrev_b32 v100, 9, v2\nv_lshl_add_u32 v100, v3, 4, v100\nv_add_u32 v100, {RED}, v100')
    a(f's_lshr_b32 s10, s3, 1\ns_lshl2_add_u32 s56, s6, s10\ns_and_b32 s10, s3, 1\ns_lshl2_add_u32 s56, s56, s10\ns_lshl2_add_u32 s56, s56, s5\ns_lshl_b32 s56, s56, 10\ns_add_u32 s56, s56, {WS_S}\ns_add_u32 s63, s56, 8192')
    a('v_lshrrev_b32 v119, 1, v1\nv_lshlrev_b32 v119, 10, v119\nv_and_b32 v16, 1, v1\nv_lshl_add_u32 v119, v16, 4, v119')
    a(f's_lshl_b32 s60, s3, 15\ns_lshl_b32 s11, s4, 5\ns_add_u32 s60, s60, s11\ns_add_u32 s62, s60, {WS_M}\ns_add_u32 s60, s60, {WS_S}')
    a('v_lshl_add_u32 v117, v2, 13, v119')
    a(f's_lshl_b32 s60, s3, 16\ns_add_u32 s60, s60, s11\ns_add_u32 s60, s60, {WS_S}')
    a(f's_mov_b32 s13, {hex(f2u(CSC))}')
    a('s_mov_b32 s12, s13')
    for k in range(4): a(f'v_mov_b32 v{124+k}, {hex(ONE2)}')
    kt = TH['k'][1::2]
    a(f's_lshl_b32 s57, s7, 3\ns_lshr_b32 s57, {kt[0] | kt[1] << 8 | kt[2] << 16 | kt[3] << 24}, s57\ns_and_b32 s57, s57, 0xff')
    if not kw.get('qe'):
        a('s_waitcnt vmcnt(1)')
        s.signal(C_QP)
    if not kw.get('he'):
        a('s_waitcnt vmcnt(0)')
        s.signal(C_HP)
    s.wait_flag(C_G, 's57', sleep=1)
    for u in range(2):
        for t in range(4):
            a(f'ds_read_b128 v[{32+16*u+4*t}:{35+16*u+4*t}], v{10+t} offset:{u*4096}')
    if not kw.get('st_tile') and not kw.get('ackst'): s.stamp(5)
    s.wait_flag(F_Q, 1, extra=[f'ds_read_b128 v[{64+4*t}:{67+4*t}], v{102+t}' for t in range(4)], sleep=kw.get('fqs', 0))
    s.stamp(6)
    a('v_readfirstlane_b32 s47, v9')
    a('s_cmp_lg_u32 s47, 1\ns_cbranch_scc1 L_qrem')
    a('L_qgo:')
    DP = lambda op, d, x, y, m, rm='0xf': f'{op}_dpp {d}, {x}, {y} {m} row_mask:{rm} bank_mask:0xf'
    for u in range(2):
        for t in range(4):
            if u == 0: a(f's_waitcnt lgkmcnt({3-t})')
            s.mfma(16 + 4 * u, 32 + 16 * u + 4 * t, 64 + 4 * t, t == 0)
    if kw.get('safeC'): a('s_nop 15')
    a('v_mov_b32 v40, s44\nv_mov_b32 v47, s44\nv_mov_b32 v123, s44')
    for u in range(2):
        for k in range(4): a(DP('v_add_f32', f'v{16+4*u+k}', f'v{16+4*u+k}', f'v{16+4*u+k}', 'row_ror:4'))
        for k in range(4): a(DP('v_add_f32', f'v{16+4*u+k}', f'v{16+4*u+k}', f'v{16+4*u+k}', 'row_ror:8'))
        if u == 0: a('v_max3_f32 v10, v16, v17, v18')
    a('v_max3_f32 v10, v10, v19, v20\nv_max3_f32 v11, v21, v22, v23\nv_max_f32 v10, v10, v11\nv_max_f32 v11, v10, v11')
    a('v_permlane16_swap_b32 v11, v10\nv_max_f32 v10, v11, v10\nv_max_f32 v11, v11, v10')
    a('v_permlane32_swap_b32 v11, v10\nv_max_f32 v10, v11, v10\nv_or_b32 v10, 1, v10')
    WB = 128; VR = 160
    vrd = lambda t: [f'ds_read_b64_tr_b16 v[{VR+8*t+4*T+2*u}:{VR+1+8*t+4*T+2*u}], v{28+T} offset:{t*8192+u*4096}' for T in range(2) for u in range(2)]
    cw = lambda n: 0 if (s.stamps and not kw.get('lean')) else n
    a('ds_write_b32 v24, v10')
    a(f'ds_read_b128 v[32:35], v15\nds_read_b32 v9, v8 offset:{C_G}')
    for x in vrd(0) + vrd(1) + vrd(2): a(x)
    a(f's_waitcnt lgkmcnt({cw(13)})\ns_branch L_mx2')
    a('L_mx:')
    a('ds_read_b128 v[32:35], v15')
    s.budget()
    a('s_waitcnt lgkmcnt(0)')
    a('L_mx2:')
    a('v_min3_u32 v11, v32, v33, v34\nv_max3_f32 v10, v32, v33, v34\nv_min_u32 v11, v11, v35\nv_max_f32 v10, v10, v35\nv_cmp_eq_u32 vcc, 0, v11\nv_mul_f32 v116, s13, v10\ns_cbranch_vccnz L_mx')
    for k in range(4): a(f'v_pk_fma_f32 v[{16+2*k}:{17+2*k}], v[{16+2*k}:{17+2*k}], s[12:13], v[116:117] op_sel_hi:[1,1,0] neg_lo:[0,0,1] neg_hi:[0,0,1]')
    for k in range(8): a(f'v_exp_f32 v{16+k}, v{16+k}')
    for k in range(4): a(f'v_cvt_pk_bf16_f32 v{32+k}, v{16+2*k}, v{17+2*k}')
    a('ds_write_b128 v26, v[32:35]\nds_write_b32 v14, v6')
    a('L_pw:')
    a(f'ds_read_b128 v[36:39], v8 offset:{FP}')
    for t in range(4): a(f'ds_read_b128 v[{64+4*t}:{67+4*t}], v25 offset:{t*1024}')
    a(f'ds_read_b32 v118, v8 offset:{C_G}')
    for x in vrd(3): a(x)
    a('v_mov_b32 v41, v116')
    s.budget()
    a(f's_waitcnt lgkmcnt({cw(9)})\nv_min3_u32 v11, v36, v37, v38\nv_min_u32 v11, v11, v39\nv_cmp_eq_u32 vcc, 0, v11\ns_cbranch_vccnz L_pw')
    s.stamp(7)
    def wo_reads(kss=(0, 1)):
        for ks in kss:
            for T in range(4):
                for u in range(2):
                    r = WB + 16 * ks + 4 * T + 2 * u
                    a(f'ds_read_b64_tr_b16 v[{r}:{r+1}], v{96+T} offset:{ks*4096+u*2048}')
    early = False
    a(f'v_cmp_gt_u32 vcc, {TH["v"][5]}, v9\ns_cbranch_vccz L_v012')
    s.wait_flag(C_G, TH['v'][5], extra=vrd(0) + vrd(1) + vrd(2), sleep=2)
    a('s_waitcnt lgkmcnt(0)')
    a('L_v012:')
    for t in range(3):
        a(f's_waitcnt lgkmcnt({8-t})')
        for T in range(2): s.mfma(16 + 4 * T, VR + 8 * t + 4 * T, 64 + 4 * t, t == 0)
        s.mfma(56, 124, 64 + 4 * t, t == 0)
    a('s_waitcnt lgkmcnt(4)')
    s.mfma(56, 124, 76, False)
    a(f'v_cmp_gt_u32 vcc, {TH["v"][7]}, v118\ns_cbranch_vccz L_v3')
    s.wait_flag(C_G, TH['v'][7], extra=vrd(3), sleep=kw.get('v3s', 0))
    a('L_v3:')
    if not kw.get('ind'): s.stamp(8)
    for T in range(2):
        a(f's_waitcnt lgkmcnt({2-2*T})')
        s.mfma(16 + 4 * T, VR + 24 + 4 * T, 76, False)
    a('v_mov_b32 v46, v56')
    a('s_mov_b32 exec_lo, 0x000f000f\ns_mov_b32 exec_hi, 0x000f000f\ns_cmp_eq_u32 s47, 1')
    for k in range(4): a(f'v_cvt_pk_bf16_f32 v{42+k}, v{16+2*k}, v{17+2*k}')
    a('s_cbranch_scc0 L_orem')
    a('buffer_store_dwordx4 v[40:43], v30, s[40:43], s14 offen\nbuffer_store_dwordx4 v[44:47], v30, s[40:43], s14 offen offset:1024')
    a('L_ost:')
    a('s_mov_b64 exec, -1')
    s.stamp(9)
    if kw.get('ackst'):
        a('s_waitcnt vmcnt(0)')
        s.stamp(5)
    if 'D' in kw.get('kill', ''): a('s_branch L_end')
    if kw.get('od0'): a(f's_sleep {kw["od0"]}')
    OE = kw.get('oe')
    if OE is not None:
        if OE: s.wait_flag(C_G, len(order) - OE)
    elif kw.get('obar'): a('s_barrier')
    if kw.get('ind'):
        if not early:
            s.wait_flag(C_G, TH['o'][3])
            wo_reads()
            early = True
        a('s_mov_b32 exec_hi, 0')
        a('L_ipoll:')
        a('buffer_load_dword v48, v101, s[40:43], s15 offen offset:1036 sc1')
        s.budget()
        if kw.get('isl'):
            a(f's_waitcnt vmcnt(0)\nv_cmp_ne_u32 vcc, s44, v48\ns_cbranch_vccz L_idone\ns_sleep {kw["isl"]}\ns_branch L_ipoll\nL_idone:')
        else:
            a('s_waitcnt vmcnt(0)\nv_cmp_ne_u32 vcc, s44, v48\ns_cbranch_vccnz L_ipoll')
        a('s_mov_b32 exec_hi, -1')
        s.stamp(8)
    for k in range(4): a(f'buffer_load_dwordx4 v[{48+4*k}:{51+4*k}], v31, s[40:43], s15 offen offset:{k*1024} sc1')
    if OE == 1 and kw.get('wsplit'):
        wo_reads((0,))
        a('s_barrier')
        wo_reads((1,))
        a(f'ds_read_b32 v9, v8 offset:{F_K}')
    else:
        if OE is not None: a('s_barrier')
        a(f'ds_read_b32 v9, v8 offset:{F_K}')
        wo_reads()
    if s.stamps:
        if kw.get('ackst'):
            a('s_waitcnt vmcnt(0)')
            s.stamp(2)
        a('s_mov_b32 s61, 0')
    a('s_branch L_opoll')
    a('L_oretry:')
    a('s_mov_b64 exec, vcc')
    if s.stamps: a('s_add_u32 s61, s61, 1')
    if kw.get('osl'): a(f's_sleep {kw["osl"]}')
    for k in range(4): a(f'buffer_load_dwordx4 v[{48+4*k}:{51+4*k}], v31, s[40:43], s15 offen offset:{k*1024} sc1')
    a('s_mov_b64 exec, -1')
    s.budget()
    if kw.get('al'): a('.p2align 3')
    a('L_opoll:')
    a('s_waitcnt vmcnt(0) lgkmcnt(0)')
    a('v_xor_b32 v10, s44, v48\nv_bitop3_b32 v10, v55, s44, v10 bitop3:0xbe\nv_bitop3_b32 v10, v56, s44, v10 bitop3:0xbe\nv_bitop3_b32 v10, v63, s44, v10 bitop3:0xbe')
    a('v_cmp_ne_u32 vcc, 0, v10\ns_cbranch_vccnz L_oretry')
    s.stamp(11)
    if s.stamps: a('s_mul_i32 s61, s61, 100\ns_add_u32 s70, s64, s61')
    M8 = ('quad_perm:[1,0,3,2]', 'quad_perm:[2,3,0,1]', 'row_half_mirror')
    D = lambda op, d, x, y, m, rm='0xf': f'{op}_dpp {d}, {x}, {y} {m} row_mask:{rm} bank_mask:0xf'
    R = lambda m, rm: f'v_mov_b32_dpp v23, v21 {m} row_mask:{rm} bank_mask:0xf'
    wv = [D('v_max_f32', 'v20', 'v49', 'v49', M8[0]), None, D('v_max_f32', 'v20', 'v20', 'v20', M8[1]), None, D('v_max_f32', 'v20', 'v20', 'v20', M8[2]),
          'v_sub_f32 v21, v49, v20', 'v_exp_f32 v21, v21', None, 'v_mul_f32 v22, v54, v21', 'v_mov_b32 v23, v21', None,
          D('v_add_f32', 'v22', 'v22', 'v22', M8[0]), R('row_ror:12', '0x2'), None, D('v_add_f32', 'v22', 'v22', 'v22', M8[1]), R('row_ror:8', '0x4'), None,
          D('v_add_f32', 'v22', 'v22', 'v22', M8[2]), R('row_ror:4', '0x8'), 'v_rcp_f32 v22, v22', None]
    mf = [(32 + 4 * T, 50 + 8 * ks, WB + 16 * ks + 4 * T, ks == 0) for ks in range(2) for T in range(4)]
    s.mfma(*mf.pop(0))
    for x in wv:
        if x is None: s.mfma(*mf.pop(0))
        else: a(x)
    assert not mf
    a('v_mul_f32 v21, v22, v23')
    a(D('v_mul_f32', 'v21', 'v22', 'v23', 'row_ror:8', '0xc'))
    for T in range(4): a(D('v_mul_f32', f'v{16+T}', 'v21', f'v{32+4*T}', 'row_newbcast:0'))
    for r in range(1, 4):
        for T in range(4): a(D('v_fmac_f32', f'v{16+T}', 'v21', f'v{32+4*T+r}', f'row_newbcast:{r}'))
    a(f'ds_write_b128 v26, v[16:19] offset:{RED-PL}')
    if kw.get('nf'): a('v_xor_b32 v10, v9, v101\nv_xor_b32 v11, 0x2000, v10')
    a('v_add_u32 v117, v117, v9\ns_cmp_lg_u32 s7, 0')
    a('s_waitcnt lgkmcnt(0)\ns_barrier')
    s.stamp(12)
    a('s_cbranch_scc1 ' + ('L_wb' if kw.get('fw') else 'L_end'))
    for k in range(4): a(f'ds_read_b128 v[{48+4*k}:{51+4*k}], v100 offset:{(k>>1)*2048+(k&1)*256}')
    a('s_waitcnt lgkmcnt(2)')
    a('v_pk_add_f32 v[48:49], v[48:49], v[52:53]\nv_pk_add_f32 v[50:51], v[50:51], v[54:55]')
    a('s_waitcnt lgkmcnt(1)')
    a('v_pk_add_f32 v[48:49], v[48:49], v[56:57]\nv_pk_add_f32 v[50:51], v[50:51], v[58:59]')
    a('s_waitcnt lgkmcnt(0)')
    a('v_pk_add_f32 v[48:49], v[48:49], v[60:61]\nv_pk_add_f32 v[50:51], v[50:51], v[62:63]')
    s.pack24(120, 48, 49, 50, 51)
    if kw.get('nf'):
        a('buffer_store_dwordx4 v[120:123], v10, s[40:43], s56 offen sc1')
        if kw.get('nfs'): a(f's_sleep {kw["nfs"]}')
        a('buffer_store_dwordx4 v[120:123], v11, s[40:43], s56 offen sc1')
    else:
        a('buffer_store_dwordx4 v[120:123], v31, s[40:43], s56 offen sc1\nbuffer_store_dwordx4 v[120:123], v31, s[40:43], s63 offen sc1')
    s.stamp(13)
    fw = kw.get('fw', 0)
    if fw:
        a('s_branch L_end')
        a('L_wb:')
        a(f's_cmp_lg_u32 s7, {fw}\ns_cbranch_scc1 L_end')
        if kw.get('d0'): a(f's_sleep {kw["d0"]}')
    LA = 'buffer_load_dwordx4 v[16:19], v117, s[40:43], s60 offen sc1'
    LB_ = 'buffer_load_dwordx4 v[20:23], v117, s[40:43], s60 offen sc1'
    a('L_mpoll:')
    a('buffer_load_dwordx4 v[32:35], v119, s[40:43], s62 offen sc1')
    a(f'v_lshlrev_b32 v14, 3, v1\nv_add_u32 v14, {GX}, v14\nds_read_b64 v[12:13], v14')
    s.unpack24_consts()
    s.srd_const(48, 4096); s.srd(48, 36)
    a('s_mov_b32 s56, 0x00030003\ns_mov_b32 s57, s56')
    a('v_and_b32 v11, 1, v1\nv_lshlrev_b32 v14, 5, v2\nv_lshl_add_u32 v14, v11, 1, v14')
    a('s_lshl_b32 s11, s5, 10\ns_lshl_b32 s12, s3, 7\ns_add_u32 s11, s11, s12\ns_lshl2_add_u32 s11, s6, s11')
    SER = kw.get('ser')
    if not SER:
        if kw.get('d1'): a(f's_sleep {kw["d1"]}')
        a(LA)
        if kw.get('d2'): a(f's_sleep {kw["d2"]}')
        a(LB_)
    s.budget()
    a(f's_waitcnt vmcnt({0 if SER else 2})\nv_xor_b32 v24, s44, v35\nv_cmp_lt_u32 vcc, 15, v24\nv_bfe_i32 v24, v35, 0, 4\ns_cbranch_vccnz L_mpoll')
    if kw.get('maj', 1):
        a('v_readfirstlane_b32 s13, v9')
        a('v_add_u32_dpp v24, v24, v24 row_ror:8 row_mask:0xf bank_mask:0xf\ns_lshl_b32 s14, s45, 11\ns_and_b32 s14, s14, 8192')
        a('v_add_u32_dpp v24, v24, v24 row_ror:4 row_mask:0xf bank_mask:0xf\ns_xor_b32 s15, s14, 8192')
        a('v_add_u32_dpp v24, v24, v24 row_ror:2 row_mask:0xf bank_mask:0xf')
        a('v_add_u32_dpp v24, v24, v24 row_bcast:15 row_mask:0xa bank_mask:0xf\nv_add_u32_dpp v24, v24, v24 row_bcast:31 row_mask:0xc bank_mask:0xf')
        a('v_readlane_b32 s10, v24, 63')
        if kw.get('absglob'): a('s_abs_i32 s12, s10\ns_min_u32 s12, s12, 300\ns_sub_u32 s12, 300, s12\ns_add_u32 s76, s64, s12')
        a('s_cmp_lt_i32 s10, 0\ns_cselect_b32 s14, s14, s15\ns_cmp_eq_u32 s10, 0\ns_cselect_b32 s14, s13, s14\ns_xor_b32 s14, s14, s13\nv_xor_b32 v117, s14, v117')
    if SER: a(LA)
    s.stamp(10)
    s.unpack24(32)
    s.reduce32(32)
    a('s_waitcnt lgkmcnt(0)')
    s.round_bf16('v32')
    a('v_add_f32 v32, v32, v12')
    s.round_bf16('v32')
    a(f'v_mul_f32 v33, {hex(f2u(-math.log2(math.e)))}, v32\nv_exp_f32 v33, v33\nv_add_f32 v33, 1.0, v33\nv_rcp_f32 v33, v33\nv_mul_f32 v12, v32, v33')
    s.round_bf16('v12')
    if SER: a(LB_)
    a('L_fpoll:')
    a('s_waitcnt vmcnt(1)\nv_cmp_ne_u32 vcc, s44, v19\ns_cbranch_vccz L_fdone')
    if kw.get('d4'): a(f's_sleep {kw["d4"]}')
    a(LA)
    s.budget()
    a('s_waitcnt vmcnt(1)\nv_cmp_ne_u32 vcc, s44, v23\ns_cbranch_vccz L_fdoneB')
    if kw.get('d3'): a(f's_sleep {kw["d3"]}')
    a(LB_ + '\ns_branch L_fpoll')
    def finish(r):
        s.stamp(14)
        s.unpack24(r)
        s.reduce32(r)
        if kw.get('exactfin', 0):
            s.round_bf16(f'v{r}')
            a(f'v_mul_f32 v{r}, v{r}, v12')
            s.round_bf16(f'v{r}')
            a(f'v_add_f32 v{r}, v{r}, v13')
        else:
            a(f'v_fma_f32 v{r}, v{r}, v12, v13')
        a('s_mov_b64 exec, s[56:57]')
        a(f'v_cvt_pk_bf16_f32 v{r}, v{r}, v{r}')
        a(f'buffer_store_short v{r}, v14, s[48:51], s11 offen')
    a('L_fdoneB:')
    finish(20)
    a('s_branch L_epoch')
    a('L_fdone:')
    finish(16)
    a('L_epoch:')
    s.stamp(15)
    a('s_cmp_lg_u32 s2, 0\ns_cbranch_scc1 L_end')
    a('s_mov_b64 exec, 1\nbuffer_store_dword v123, v8, s[40:43], 0 offen')
    a('s_branch L_end')

    a('L_qrem:')
    a('s_mov_b32 exec_lo, 0x000f000f\ns_mov_b32 exec_hi, 0x000f000f')
    a('buffer_store_dwordx4 v[108:111], v106, s[40:43], s58 offen sc1\nbuffer_store_dwordx4 v[112:115], v107, s[40:43], s59 offen sc1')
    a('s_mov_b64 exec, -1')
    a('L_qrem2:')
    a(f'ds_read_b32 v9, v8 offset:{F_Q}')
    for t in range(4): a(f'ds_read_b128 v[{64+4*t}:{67+4*t}], v{102+t}')
    s.budget()
    a('s_waitcnt lgkmcnt(0)\nv_readfirstlane_b32 s47, v9\ns_cmp_eq_u32 s47, 4\ns_cbranch_scc0 L_qgo\ns_sleep 2\ns_branch L_qrem2')
    if kw.get('wb') is not None:
        a('L_wb:')
        a(f's_cmp_lg_u32 s7, 1\ns_cbranch_scc1 L_end\ns_and_b32 s10, s4, {kw["wb"]}\ns_cbranch_scc1 L_end')
        if kw.get('wbd'): a(f's_sleep {kw["wbd"]}')
        a('buffer_wbl2 sc1\ns_branch L_end')
    a('L_orem:')
    a('buffer_store_dwordx4 v[40:43], v30, s[40:43], s14 offen sc1\nbuffer_store_dwordx4 v[44:47], v30, s[40:43], s14 offen offset:1024 sc1')
    a('s_branch L_ost')
    a('L_P:')
    if 'P' in kw.get('kill', ''): a('s_waitcnt lgkmcnt(0)\ns_branch L_end')
    a('s_setprio 3')
    a('s_getreg_b32 s45, hwreg(HW_REG_XCC_ID, 0, 4)')
    a('v_and_b32 v5, 3, v1')
    a(f's_lshl_b32 s10, s3, 15\ns_lshl_b32 s12, s4, 10\ns_add_u32 s12, s12, s10')
    a('s_waitcnt lgkmcnt(0)')
    if kw.get('warmq'):
        a(f'v_and_b32 v10, 7, v1\nv_lshlrev_b32 v10, 7, v10\nv_and_b32 v11, 8, v1\nv_lshl_add_u32 v10, v11, 15, v10\ns_add_u32 s11, s12, {WS_Q}')
        a(f's_mov_b64 exec, {0xff if kw["warmq"] == 1 else 0xffff}\nbuffer_load_dword v7, v10, s[40:43], s11 offen {kw.get("warmqfl", "")}\ns_mov_b64 exec, -1')
    a(f's_lshl_b32 s11, s5, 13\ns_add_u32 s10, s10, s11\ns_add_u32 s10, s10, {WS_Q}\ns_add_u32 s15, s10, 4096')
    a('v_lshlrev_b32 v10, 4, v1')
    a(f'v_lshrrev_b32 v11, 5, v1\nv_and_b32 v12, 31, v1\nv_lshlrev_b32 v13, 3, v12\nv_lshlrev_b32 v14, 4, v11\nv_xor_b32 v13, v13, v14\nv_lshl_add_u32 v13, v11, 8, v13\nv_add_u32 v22, {QL}, v13')
    for c in range(1, 8): a(f'v_xor_b32 v{22+c}, {c*32}, v22')
    a(f's_mov_b32 s14, {kw.get("nfast", 48)}')
    a('s_waitcnt lgkmcnt(0)')
    s.stamp(1)
    if 'W' in kw.get('kill', ''): a('s_branch L_end')
    if kw.get('qs'): a(f's_sleep {kw["qs"]}')
    if kw.get('qg'): s.wait_flag(C_G, kw['qg'], sleep=1)
    s.wait_flag(C_QP, 4, sleep=1, extra=[f'ds_read_b32 v15, v8 offset:{TAGW}'])
    a('s_waitcnt lgkmcnt(0)\nv_readfirstlane_b32 s44, v15')
    if q0: a(f's_sleep {q0}')
    s.stamp(2)
    a('L_qpoll:')
    for c in range(8): a(f'buffer_load_dwordx4 v[{32+4*c}:{35+4*c}], v10, s[40:43], s{10 if c < 4 else 15} offen offset:{(c&3)*1024} sc1 {kw.get("qnt", "")}')
    s.budget()
    a('s_waitcnt vmcnt(0)')
    a('v_xor_b32 v15, s44, v35')
    for c in range(1, 8): a(f'v_bitop3_b32 v15, v{35+4*c}, s44, v15 bitop3:0xbe')
    a('v_cmp_ne_u32 vcc, 0, v15\ns_cbranch_vccz L_qgot')
    a(f's_mov_b64 exec, vcc\ns_sub_u32 s14, s14, 1\ns_cbranch_scc0 L_qpoll')
    a(f'v_mov_b32 v15, 4\nds_write_b32 v8, v15 offset:{F_Q}\ns_branch L_qpoll')
    a('L_qgot:')
    a('s_mov_b64 exec, -1')
    a('v_xor_b32 v15, s45, v34')
    for c in range(8):
        a(f'ds_write_b64 v{22+c}, v[{32+4*c}:{33+4*c}] offset:{c*512}')
        if c < 7: a(f'v_bitop3_b32 v15, v{38+4*c}, s45, v15 bitop3:0xbe')
    a('v_and_b32 v15, 15, v15\nv_cmp_ne_u32 vcc, 0, v15\ns_cmp_eq_u64 vcc, 0\ns_cselect_b32 s47, 1, 2')
    if kw.get('force_remote'): a('s_mov_b32 s47, 2')
    a(f'v_mov_b32 v15, s47\nds_write_b32 v8, v15 offset:{F_Q}')
    s.stamp(3)
    a('v_add3_u32 v16, v34, v38, v42\nv_add3_u32 v17, v46, v50, v54\nv_add3_u32 v16, v16, v58, v62\nv_add_u32 v16, v16, v17')
    for m in ('quad_perm:[1,0,3,2] row_mask:0xf', 'quad_perm:[2,3,0,1] row_mask:0xf', 'row_half_mirror row_mask:0xf', 'row_mirror row_mask:0xf', 'row_bcast:15 row_mask:0xa', 'row_bcast:31 row_mask:0xc'):
        a(f'v_add_u32_dpp v16, v16, v16 {m} bank_mask:0xf')
    if kw.get('cntvote'):
        a('s_mov_b32 s11, 0')
        for c in range(8): a(f'v_cmp_gt_u32 vcc, 16, v{34+4*c}\ns_bcnt1_i32_b64 s10, vcc\ns_add_u32 s11, s11, s10')
        a('s_add_u32 s74, s64, s11')
    if kw.get('sgnvote'): a(f'v_readlane_b32 s10, v16, 63\ns_ashr_i32 s10, s10, 13\ns_add_u32 s10, s10, 400\ns_add_u32 s74, s64, s10')
    if kw.get('absvote'): a('v_readlane_b32 s10, v16, 63\ns_ashr_i32 s10, s10, 13\ns_abs_i32 s10, s10\ns_min_u32 s10, s10, 300\ns_sub_u32 s10, 300, s10\ns_add_u32 s74, s64, s10')
    if kw.get('recvote'): a('v_readlane_b32 s10, v16, 63\ns_ashr_i32 s10, s10, 13\ns_add_u32 s10, s10, 1000\ns_add_u32 s74, s64, s10')
    a('v_readlane_b32 s9, v16, 63' + (f'\ns_add_u32 s9, s9, {kw["bias"]*8192}' if kw.get('bias') else '') + '\ns_cmp_lt_i32 s9, 0\ns_cselect_b32 s10, 0, 8192')
    if kw.get('kflip'): a('s_xor_b32 s10, s10, 8192')
    if kw.get('noisy'): a(f's_bitcmp1_b32 {kw["noisy"]}, s3\ns_cselect_b32 s11, 8192, 0\ns_xor_b32 s10, s10, s11')
    a(f'v_mov_b32 v15, s10\nds_write_b32 v8, v15 offset:{F_K}')
    a(f's_ashr_i32 s11, s9, 18\ns_max_i32 s11, s11, -7\ns_min_i32 s11, s11, 7\ns_sub_u32 s9, 0, s11\ns_bitcmp1_b32 s45, 2\ns_cselect_b32 s11, s9, s11\ns_and_b32 s11, s11, 15\nv_mov_b32 v15, s11\nds_write_b32 v8, v15 offset:{F_V}')
    a(f's_lshl_b32 s11, s12, 1\ns_add_u32 s11, s11, {WS_O}')
    a(f's_lshl2_add_u32 s12, s3, s5\ns_lshl4_add_u32 s12, s12, s6\ns_lshl_b32 s12, s12, 10\ns_add_u32 s12, s12, s10\ns_add_u32 s12, s12, {WS_S - 2048}')
    a('v_lshlrev_b32 v10, 7, v1\nv_add_u32 v11, s12, v10\nv_add_u32 v10, s11, v10\nv_cmp_gt_u32 vcc, 16, v1\nv_cndmask_b32 v10, v11, v10, vcc')
    if kw.get('wg'): s.wait_flag(C_G, kw['wg'], sleep=2)
    if kw.get('nowarm') == 1: pass
    elif kw.get('nowarm') == 2: a('s_mov_b64 exec, 0xffffff\nbuffer_load_dword v7, v10, s[40:43], 0 offen nt')
    elif kw.get('nowarm') == 3: a('s_mov_b64 exec, 0xffff\nbuffer_load_dword v7, v10, s[40:43], 0 offen nt')
    elif kw.get('wboth'):
        a('v_subrev_u32 v11, 1024, v11\nv_xor_b32 v11, 0x2000, v11\nv_cmp_gt_u32 vcc, 24, v1\nv_cndmask_b32 v10, v11, v10, vcc\ns_mov_b32 exec_hi, 0\nbuffer_load_dword v7, v10, s[40:43], 0 offen')
    elif kw.get('ont'):
        a('s_mov_b64 exec, 0xffff\nbuffer_load_dword v7, v10, s[40:43], 0 offen nt\ns_mov_b64 exec, 0xff0000\nbuffer_load_dword v7, v10, s[40:43], 0 offen')
    else:
        a('s_mov_b64 exec, 0xffffff\nbuffer_load_dword v7, v10, s[40:43], 0 offen')
    a('s_branch L_end')

    a('L_M:')
    if kw.get('mprio') is not None: a(f's_setprio {kw["mprio"]}\ns_branch L_M2')
    if 'M' in kw.get('kill', ''): a('s_waitcnt lgkmcnt(0)\ns_branch L_end')
    a('s_setprio 3')
    a('L_M2:')
    a('v_bfe_u32 v4, v1, 2, 2\nv_and_b32 v5, 3, v1')
    a('v_lshl_add_u32 v10, v4, 2, v2')
    a('v_lshlrev_b32 v11, 3, v10')
    a('v_lshlrev_b32 v10, 4, v1')
    s.mlp_slot(11, 15)
    a('s_lshl3_add_u32 s15, s5, s3\ns_lshl_b32 s11, s11, 6')
    a('v_and_b32 v24, 1, v1\nv_lshlrev_b32 v25, 5, v2\nv_lshl_add_u32 v25, v24, 1, v25')
    a('s_lshl_b32 s12, s3, 7\ns_lshl2_add_u32 s12, s6, s12\ns_lshl_b32 s13, s5, 10\ns_add_u32 s13, s13, s12')
    s.srd_const(56, 3584); s.srd_const(60, 1024); s.srd_const(96, 4096)
    a('s_waitcnt lgkmcnt(0)')
    s.srd(56, 30); s.srd(60, 34); s.srd(96, 16)
    if not kw.get('nosmall'):
        sf = kw.get('smallfl', '')
        a(f'buffer_load_ushort v16, v25, s[60:63], s12 offen {sf}')
        a('buffer_load_ushort v17, v25, s[96:99], s13 offen')
        a(f'buffer_load_dwordx2 v[14:15], v11, s[56:59], s11 offen {sf}')
    a(f'v_mul_u32_u24 v11, {HS}, v5\nv_lshl_add_u32 v11, v2, 4, v11\nv_lshrrev_b32 v12, 1, v4\nv_lshl_add_u32 v11, v12, 6, v11\nv_and_b32 v12, 1, v4\nv_lshl_add_u32 v11, v12, 3, v11\nv_add_u32 v11, {HL}, v11')
    a(f'v_mul_u32_u24 v12, {HS}, v4\nv_lshl_add_u32 v12, v2, 4, v12\nv_add_u32 v12, {HL}, v12')
    a(f'v_lshl_add_u32 v27, v2, 2, v4\nv_bfe_u32 v28, v27, 1, 2\nv_lshlrev_b32 v28, 5, v28\nv_lshl_add_u32 v28, v27, 7, v28\nv_lshl_add_u32 v28, v5, 3, v28\nv_add_u32 v28, {W2}, v28')
    a('v_xor_b32 v29, 32, v28\nv_xor_b32 v30, 64, v28\nv_xor_b32 v31, 96, v28')
    a(f'v_lshlrev_b32 v13, 3, v1\nv_add_u32 v13, {GX}, v13')
    a('s_waitcnt vmcnt(1) lgkmcnt(0)')
    a('v_lshlrev_b32 v16, 16, v16\nv_lshlrev_b32 v17, 16, v17\nds_write_b64 v13, v[16:17]')
    if kw.get('hs'): a(f's_sleep {kw["hs"]}')
    s.wait_flag(C_HP, 4, sleep=1, extra=[f'ds_read_b32 v23, v8 offset:{TAGW}'])
    a('s_waitcnt lgkmcnt(0)\nv_readfirstlane_b32 s44, v23')
    s.pack24_consts(); s.unpack24_consts()
    if kw.get('hq'): s.wait_flag(F_Q, 1, sleep=1)
    if kw.get('h0', 8): a(f's_sleep {kw.get("h0", 8)}')
    a(f's_lshl2_add_u32 s10, s3, s5\ns_lshl_b32 s10, s10, 13\ns_add_u32 s10, s10, {WS_H}\ns_add_u32 s11, s10, 4096')
    s.stamp(2)
    a('L_hpoll:')
    for c in range(8): a(f'buffer_load_dwordx4 v[{32+4*c}:{35+4*c}], v10, s[40:43], s{10 + (c>>2)} offen offset:{(c&3)*1024} sc1 {kw.get("qnt", "")}')
    s.budget()
    a('s_waitcnt vmcnt(0)')
    a('v_xor_b32 v13, s44, v35')
    for c in range(1, 8): a(f'v_bitop3_b32 v13, v{35+4*c}, s44, v13 bitop3:0xbe')
    a('v_cmp_ne_u32 vcc, 0, v13\ns_cbranch_vccnz L_hpoll')
    s.stamp(3)
    for c in range(8): s.unpack24(32 + 4 * c)
    for st in (16, 8, 4):
        for r in range(32, 32 + st, 2): a(f'v_pk_add_f32 v[{r}:{r+1}], v[{r}:{r+1}], v[{r+st}:{r+st+1}]')
    a('v_cvt_pk_bf16_f32 v36, v32, v33\nv_cvt_pk_bf16_f32 v37, v34, v35')
    for k in range(2):
        a(f'v_lshlrev_b32 v{32+2*k}, 16, v{36+k}\nv_and_b32 v{33+2*k}, 0xffff0000, v{36+k}\nv_lshlrev_b32 v{40+2*k}, 16, v{14+k}\nv_and_b32 v{41+2*k}, 0xffff0000, v{14+k}')
    for k in range(4): a(f'v_add_f32 v{32+k}, v{32+k}, v{40+k}')
    a('v_cvt_pk_bf16_f32 v36, v32, v33\nv_cvt_pk_bf16_f32 v37, v34, v35')
    for k in range(2): a(f'v_lshlrev_b32 v{32+2*k}, 16, v{36+k}\nv_and_b32 v{33+2*k}, 0xffff0000, v{36+k}')
    K1 = -2 * math.sqrt(2 / math.pi) * math.log2(math.e)
    a(f'v_mov_b32 v44, {hex(f2u(K1))}')
    for k in range(4): a(f'v_mul_f32 v{36+k}, v{32+k}, v{32+k}')
    for k in range(4): a(f'v_fmamk_f32 v{36+k}, v{36+k}, {hex(f2u(K1*0.044715))}, v44')
    for k in range(4): a(f'v_mul_f32 v{36+k}, v{36+k}, v{32+k}')
    for k in range(4): a(f'v_exp_f32 v{36+k}, v{36+k}')
    for k in range(4): a(f'v_add_f32 v{36+k}, 1.0, v{36+k}')
    for k in range(4): a(f'v_rcp_f32 v{36+k}, v{36+k}')
    for k in range(4): a(f'v_mul_f32 v{32+k}, v{32+k}, v{36+k}')
    a('v_cvt_pk_bf16_f32 v40, v32, v33\nv_cvt_pk_bf16_f32 v41, v34, v35')
    a('ds_write_b64 v11, v[40:41]\nds_read_b128 v[48:51], v12\nds_read_b128 v[52:55], v12 offset:64')
    a(f's_add_u32 s10, s6, {r2}\ns_and_b32 s10, s10, 7\ns_lshl_b32 s10, s10, 5\ns_add_u32 s10, s10, s15\ns_lshl_b32 s10, s10, 10\ns_add_u32 s10, s10, {WS_M}')
    a('v_lshlrev_b32 v10, 4, v1\nv_mov_b32 v23, s44')
    s.wait_flag(C_G, TH['2'][1], sleep=1)
    for ks in range(2):
        for T in range(4):
            for u in range(2):
                r = 64 + 16 * ks + 4 * T + 2 * u
                a(f'ds_read_b64_tr_b16 v[{r}:{r+1}], v{28+T} offset:{ks*4096+u*2048}')
    a(f'ds_read_b32 v19, v8 offset:{F_V}')
    a('s_waitcnt lgkmcnt(0)')
    for ks in range(2):
        for T in range(4): s.mfma(32 + 4 * T, 48 + 4 * ks, 64 + 16 * ks + 4 * T, ks == 0)
    a('v_and_or_b32 v23, v23, -16, v19')
    s.pack24(20, 32, 36, 40, 44)
    a('buffer_store_dwordx4 v[20:23], v10, s[40:43], s10 offen sc1')
    s.stamp(4)
    a('L_end:')
    if kw.get('probe'):
        pw, pst, pm, pb = kw['probe']
        a(f's_waitcnt lgkmcnt(0)\ns_cmp_lg_u32 s7, {pw}\ns_cbranch_scc1 L_exit')
        if pw >= 4: a('s_barrier\ns_barrier' if kw.get('obar') and pw != 6 else 's_barrier')
        if kw.get('clk') == 1: a('s_memtime s[92:93]\ns_waitcnt lgkmcnt(0)\ns_sub_u32 s10, s92, s90\ns_lshr_b32 s10, s10, 1\ns_add_u32 s94, s64, s10')
        if kw.get('clk') == 2: a('s_memrealtime s[92:93]\ns_waitcnt lgkmcnt(0)\ns_sub_u32 s10, s92, s88\ns_mul_i32 s10, s10, 10\ns_add_u32 s94, s64, s10')
        if kw.get('px') is not None: a(f's_cmp_lg_u32 s45, {kw["px"]}\ns_cbranch_scc1 L_exit')
        if kw.get('pm') is not None: a(f's_mul_i32 s10, s45, {kw["pm"]}\ns_add_u32 s94, s64, s10')
        if kw.get('pg') is not None: a(f's_cmp_lg_u32 s3, {kw["pg"]}\ns_cbranch_scc1 L_exit')
        a(f's_sub_u32 s10, s{64+2*pst}, s64\ns_mul_i32 s10, s10, {pm}\ns_add_u32 s10, s10, {pb}\ns_min_u32 s10, s10, 20000')
        a('L_padloop:\ns_memrealtime s[12:13]\ns_waitcnt lgkmcnt(0)\ns_sub_u32 s11, s12, s64\ns_cmp_lt_u32 s11, s10\ns_cbranch_scc1 L_padloop')
    s.dump_stamps()
    a('L_exit:')
    a('s_endpgm')
    lines, added = hazard.fix(s.o, verbose=kw.get('verbose', False))
    return wrap('\n'.join(lines) + '\n', 256, NW * 64, kw.get('lds', LDS_TOTAL), kw.get('vgpr', 192))

if __name__ == '__main__':
    import ast
    out = sys.argv[1]
    kw = {}
    for x in sys.argv[2:]:
        k, v = x.split('=')
        try: kw[k] = ast.literal_eval(v)
        except Exception: kw[k] = v
    open(out, 'w').write(gen(**kw))
```

```python
import sys, math, struct
sys.path.insert(0, 'dev')
from common import *
import hazard

def f2u(x):
    return struct.unpack('<I', struct.pack('<f', x))[0]

NW = 8
FL = 0
WA, W1, KB, W2, VB, WO = [2048 + x for x in (0, 16384, 24576, 57344, 65536, 98304)]
XN = 2048 + 114688; XS = 1088
YL = XN + 4 * XS
QL = YL + 4 * XS
assert QL % 256 == 0
PL = QL + 4096
RED = PL + 4096
HL = RED + 4096; HS = 144
MX = 128
FP = 192
GX = HL + 640
LDS_TOTAL = GX + 512
C_WA, C_G, C_XN, F_Q, C_MX, C_P, F_WT, C_QP, C_Y, C_HP, T_A, T_B, F_K, TAGW = [4 * i for i in range(14)]

WS_Q = 0x1000
WS_H = WS_Q + 0x40000
WS_LSE = WS_H + 0x40000
WS_O = WS_LSE + 0x4000
WS_M = WS_O + 0x80000
WS_S = 0x150000
assert WS_S >= WS_M + 0x40000
WS_T = WS_S + 0x80000
WS_N = WS_T + 0x10000
WS_END = WS_T + 0x20000
assert WS_END <= 0x200000
STAMP = 0x8000000

class G:
    def __init__(s, **kw):
        s.o = []
        s.nl = 0
        s.kw = kw
        s.stamps = kw.get('stamps', False)
    def a(s, t):
        for l in t.split('\n'):
            l = l.strip()
            if l: s.o.append(l)
    def lab(s, p='L'):
        s.nl += 1
        return f'{p}_{s.nl}'
    def stamp(s, i):
        pr = s.kw.get('probe')
        only = s.kw.get('only')
        if (s.stamps and (only is None or i in only or i == 0)) or (pr and i in (0, pr[1])):
            s.a(f's_memrealtime s[{64+2*i}:{65+2*i}]')
    def budget(s):
        s.a('s_sub_u32 s46, s46, 1\ns_cbranch_scc1 L_end')
    def wait_flag(s, off, n, extra=None, sleep=0, vt='v9'):
        L = s.lab('W')
        if sleep:
            L2 = s.lab('W')
            s.a(f's_branch {L2}\n{L}:\ns_sleep {sleep}\n{L2}:')
        else:
            s.a(f'{L}:')
        s.a(f'ds_read_b32 {vt}, v8 offset:{off}')
        ne = 0
        if extra:
            for e in extra: s.a(e)
            ne = len(extra)
        s.budget()
        s.a(f's_waitcnt lgkmcnt({0 if (s.stamps and not s.kw.get("lean")) or (s.kw.get("safeA") and ne > 6) else min(ne, 15)})')
        s.a(f'v_cmp_gt_u32 vcc, {n}, {vt}')
        s.a(f's_cbranch_vccnz {L}')
    def signal(s, off):
        s.a(f's_mov_b64 exec, 1\nds_add_u32 v8, v6 offset:{off}\ns_mov_b64 exec, -1')
    def srd(s, d, p):
        s.a(f's_mov_b32 s{d}, s{p}\ns_mov_b32 s{d+1}, s{p+1}')
    def srd_const(s, d, n):
        s.a(f's_mov_b32 s{d+2}, {n}\ns_mov_b32 s{d+3}, 0x20000')
    def wave_sum(s, v, sd):
        for m in ('quad_perm:[1,0,3,2]', 'quad_perm:[2,3,0,1]', 'row_half_mirror', 'row_mirror'):
            s.a(f'v_add_f32_dpp {v}, {v}, {v} {m} row_mask:0xf bank_mask:0xf')
        s.a(f'v_add_f32_dpp {v}, {v}, {v} row_bcast:15 row_mask:0xa bank_mask:0xf')
        s.a(f'v_add_f32_dpp {v}, {v}, {v} row_bcast:31 row_mask:0xc bank_mask:0xf')
        s.a(f'v_readlane_b32 {sd}, {v}, 63')
    def rows_allreduce(s, op, v, t):
        s.a(f'v_mov_b32 {t}, {v}\nv_permlane16_swap_b32 {t}, {v}\n{op} {v}, {t}, {v}')
        s.a(f'v_mov_b32 {t}, {v}\nv_permlane32_swap_b32 {t}, {v}\n{op} {v}, {t}, {v}')
    def layernorm(s, src, f, t):
        P = lambda r: f'v[{r}:{r+1}]'
        for k in range(4):
            s.a(f'v_lshlrev_b32 v{f+2*k}, 16, v{src+k}\nv_and_b32 v{f+2*k+1}, s55, v{src+k}')
        s.a(f'v_pk_add_f32 {P(t)}, {P(f)}, {P(f+2)}\nv_pk_add_f32 {P(t+2)}, {P(f+4)}, {P(f+6)}\nv_pk_add_f32 {P(t)}, {P(t)}, {P(t+2)}\nv_add_f32 v{t}, v{t}, v{t+1}')
        s.wave_sum(f'v{t}', 's10')
        s.a(f'v_mov_b32 v{src+3}, {hex(f2u(1/512))}')
        s.a(f'v_mul_f32 v{src}, s10, v{src+3}')
        for k in range(4):
            s.a(f'v_pk_add_f32 {P(t+2*k)}, {P(f+2*k)}, {P(src)} op_sel_hi:[1,0] neg_lo:[0,1] neg_hi:[0,1]')
        s.a(f'v_pk_mul_f32 {P(t)}, {P(t)}, {P(t)}')
        for k in range(1, 4):
            s.a(f'v_pk_fma_f32 {P(t)}, {P(t+2*k)}, {P(t+2*k)}, {P(t)}')
        s.a(f'v_add_f32 v{t}, v{t}, v{t+1}')
        s.a(f'v_cvt_pk_bf16_f32 v{src}, v{src}, v{src}\nv_lshlrev_b32 v{src}, 16, v{src}')
        ms = ['quad_perm:[1,0,3,2] row_mask:0xf', 'quad_perm:[2,3,0,1] row_mask:0xf', 'row_half_mirror row_mask:0xf', 'row_mirror row_mask:0xf', 'row_bcast:15 row_mask:0xa', 'row_bcast:31 row_mask:0xc']
        fill = [f'v_pk_add_f32 {P(f+2*k)}, {P(f+2*k)}, {P(src)} op_sel_hi:[1,0] neg_lo:[0,1] neg_hi:[0,1]' for k in range(4)]
        fill += [f'v_cvt_pk_bf16_f32 v{t+2+k}, v{f+2*k}, v{f+2*k+1}' for k in range(4)]
        for k in range(4): fill += [f'v_lshlrev_b32 v{f+2*k}, 16, v{t+2+k}', f'v_and_b32 v{f+2*k+1}, s55, v{t+2+k}']
        for m in ms:
            s.a(f'v_add_f32_dpp v{t}, v{t}, v{t} {m} bank_mask:0xf')
            s.a(fill.pop(0)); s.a(fill.pop(0))
        s.a(f'v_readlane_b32 s10, v{t}, 63')
        s.a(fill.pop(0)); s.a(fill.pop(0))
        s.a(f'v_mul_f32 v{src}, s10, v{src+3}')
        s.a(f'v_cvt_pk_bf16_f32 v{src}, v{src}, v{src}\nv_lshlrev_b32 v{src}, 16, v{src}')
        s.a(f'v_add_f32 v{src}, {hex(f2u(1e-5))}, v{src}')
        s.a(f'v_cvt_pk_bf16_f32 v{src}, v{src}, v{src}\nv_lshlrev_b32 v{src}, 16, v{src}')
        s.a(f'v_sqrt_f32 v{src}, v{src}')
        s.a(fill.pop(0))
        s.a(f'v_cvt_pk_bf16_f32 v{src}, v{src}, v{src}\nv_lshlrev_b32 v{src}, 16, v{src}')
        s.a(f'v_rcp_f32 v{src}, v{src}')
        s.a(fill.pop(0))
        assert not fill
        for k in range(4):
            s.a(f'v_pk_mul_f32 {P(f+2*k)}, {P(f+2*k)}, {P(src)} op_sel_hi:[1,0]')
        for k in range(4):
            s.a(f'v_cvt_pk_bf16_f32 v{src+k}, v{f+2*k}, v{f+2*k+1}')
    def round_bf16(s, v):
        s.a(f'v_cvt_pk_bf16_f32 {v}, {v}, {v}\nv_lshlrev_b32 {v}, 16, {v}')
    def tag_finish(s):
        s.a('s_mul_i32 s44, s44, 0x2c9277b5\ns_add_u32 s44, s44, 0xac564b05')
    def pack24(s, d, a, b, c, e):
        s.a(f'v_perm_b32 v{d}, v{a}, v{e}, s50\nv_perm_b32 v{d+1}, v{b}, v{e}, s51\nv_perm_b32 v{d+2}, v{c}, v{e}, s52')
    def pack24_consts(s):
        s.a('s_mov_b32 s50, 0x07060503\ns_mov_b32 s51, 0x07060502\ns_mov_b32 s52, 0x07060501')
    def unpack24(s, r):
        s.a(f'v_perm_b32 v{r+3}, v{r}, v{r+1}, s53\nv_perm_b32 v{r+3}, v{r+3}, v{r+2}, s54')
    def unpack24_consts(s):
        s.a('s_mov_b32 s53, 0x04000c0c\ns_mov_b32 s54, 0x0706000c')
    def reduce32(s, r):
        s.a(f'v_permlane32_swap_b32 v{r}, v{r+2}\nv_permlane32_swap_b32 v{r+1}, v{r+3}')
        s.a(f'v_add_f32 v{r}, v{r}, v{r+2}\nv_add_f32 v{r+1}, v{r+1}, v{r+3}')
        s.a(f'v_permlane16_swap_b32 v{r}, v{r+1}\nv_add_f32 v{r}, v{r}, v{r+1}')
        for m in ('row_ror:8', 'row_ror:4', 'row_ror:2'):
            s.a(f'v_add_f32_dpp v{r}, v{r}, v{r} {m} row_mask:0xf bank_mask:0xf')
    def mfma(s, d, A, B, first):
        s.a(f'v_mfma_f32_16x16x32_bf16 v[{d}:{d+3}], v[{A}:{A+3}], v[{B}:{B+3}], {"0" if first else f"v[{d}:{d+3}]"}')
    def mlp_slot(s, d, t):
        ha = s.kw.get('ha', 4)
        s.a(f's_mul_i32 s{d}, s5, 6\ns_add_u32 s{d}, s{d}, s3\ns_cmp_gt_u32 s3, {ha}\ns_cselect_b32 s{t}, 2, 0\ns_sub_u32 s{d}, s{d}, s{t}\ns_lshl_b32 s{d}, s{d}, 1')
        s.a(f's_lshl2_add_u32 s{t}, s3, s5\ns_add_u32 s{t}, s{t}, {48-4*ha}')
        s.a(f's_bitcmp1_b32 {3 << ha}, s3\ns_cselect_b32 s{d}, s{t}, s{d}')
    def hint(s, name, off, nq, tries, sub):
        a = s.a
        a(f's_lshl_b32 s48, s3, 7\ns_add_u32 s48, s48, {WS_N + off}\ns_add_u32 s49, s48, s4')
        a('s_and_b32 s50, s44, 0xff\ns_mul_i32 s50, s50, 0x01010101\ns_mov_b32 s51, s50\nv_mov_b32 v21, s50')
        if sub: a('s_andn2_b32 s48, s49, 7')
        a(f's_mov_b32 s47, {tries}')
    def hint_go(s, name, nq):
        a = s.a
        a('s_mov_b64 exec, 1\nbuffer_store_byte v21, v8, s[40:43], s49 offen\ns_mov_b64 exec, -1')
        a(f'L_{name}:')
        a(f's_load_dwordx{2*nq} s[52:{51+2*nq}], s[40:41], s48 glc')
        a(f's_sub_u32 s47, s47, 1\ns_cbranch_scc1 L_{name}d\ns_waitcnt lgkmcnt(0)')
        for k in range(nq): a(f's_xor_b64 s[{52+2*k}:{53+2*k}], s[{52+2*k}:{53+2*k}], s[50:51]')
        for k in range(1, nq): a(f's_or_b64 s[52:53], s[52:53], s[{52+2*k}:{53+2*k}]')
        a(f's_cbranch_scc1 L_{name}\nL_{name}d:\ns_waitcnt lgkmcnt(0)')
    def dump_stamps(s, nst=16):
        if not s.stamps: return
        s.a('s_waitcnt lgkmcnt(0)\ns_mov_b64 exec, -1\nv_mov_b32 v10, 0')
        for i in range(nst):
            s.a(f'v_writelane_b32 v10, s{64+2*i}, {i}')
        s.a(f's_mul_i32 s10, s2, {NW*64}\ns_lshl_b32 s11, s7, 6\ns_add_u32 s10, s10, s11\ns_add_u32 s10, s10, {STAMP}')
        s.a('v_lshlrev_b32 v11, 2, v1\ns_mov_b64 exec, 0xffff\nbuffer_store_dword v10, v11, s[40:43], s10 offen ' + s.kw.get('stfl', ''))

def gen(**kw):
    s = G(**kw)
    a = s.a
    depth = kw.get('depth', 20)
    NT = kw.get('nt', 'nt')
    npq = kw.get('npq', 2); gapq = kw.get('gapq', 12); q0 = kw.get('q0', 4)
    npl = kw.get('npl', 4); gapl = kw.get('gapl', 6)
    CSC = math.log2(math.e) / math.sqrt(128)
    ONE2 = 0x3f803f80
    order = kw.get('order', '11kkkkkkkk22vvvvvvvvoooo')
    TH = {c: [i + 1 for i, x in enumerate(order) if x == c] for c in '1k2vo'}
    assert [len(TH[c]) for c in '1k2vo'] == [2, 8, 2, 8, 4]
    marks = {TH['1'][1], TH['2'][1], TH['o'][3], len(order) - (kw.get('oe') or 0), kw.get('qg') or 2} | set(TH['k'][1::2]) | set(TH['v'][1::2])
    def common():
        if s.stamps:
            for i in range(1, 16): a(f's_mov_b32 s{64+2*i}, 0')
        a('v_and_b32 v1, 63, v0\ns_lshr_b32 s5, s4, 3\ns_and_b32 s6, s4, 7')
        a(f's_mov_b32 s42, {STAMP + 0x100000 if s.stamps else WS_END}\ns_mov_b32 s43, 0x20000')
        a(f's_mov_b32 s46, {kw.get("budget", 5000000)}')
        a('v_mov_b32 v6, 1')
        a('v_lshrrev_b32 v2, 4, v1\nv_and_b32 v3, 15, v1')
    s.stamp(0)
    a('s_load_dwordx16 s[16:31], s[0:1], 0\ns_load_dwordx8 s[32:39], s[0:1], 64\ns_load_dwordx2 s[40:41], s[0:1], 96')
    a('s_lshr_b32 s4, s2, 3\ns_cmp_ge_u32 s4, 32\ns_cbranch_scc1 L_exit')
    a('v_lshrrev_b32 v2, 6, v0\nv_bfe_u32 v4, v0, 3, 3')
    a('v_mov_b32 v8, 0\nds_write_b8 v0, v8')
    if kw.get('prefetch', True):
        a('s_getpc_b64 s[8:9]\nL_pc:')
        if kw.get('pf2'):
            a('s_lshl_b32 s10, s4, 7\nv_lshl_add_u32 v3, v0, 12, s10\nv_min_u32 v3, L_exit-L_pc, v3\nglobal_load_dword v7, v3, s[8:9]')
        else:
            a('v_lshlrev_b32 v3, 7, v0\nv_min_u32 v3, L_exit-L_pc, v3\nglobal_load_dword v7, v3, s[8:9]')
    a('v_readfirstlane_b32 s7, v2')
    a('v_and_b32 v5, 6, v4\nv_xor_b32 v5, v5, v0\nv_and_b32 v5, 7, v5\nv_lshlrev_b32 v5, 4, v5')
    a('s_and_b32 s3, s2, 7\ns_cmp_eq_u32 s7, 7\ns_cbranch_scc1 L_L\ns_cmp_ge_u32 s7, 4\ns_cbranch_scc1 L_PM')
    a('s_mov_b32 s51, 0x20000\nv_lshlrev_b32 v11, 4, v0')
    a('s_lshr_b32 s10, s4, 3\ns_lshl2_add_u32 s10, s10, s7\ns_lshl_b32 s10, s10, 18\ns_and_b32 s11, s4, 7\ns_lshl3_add_u32 s11, s3, s11\ns_xor_b32 s11, s11, ' + str(kw.get('rq', 0)) + '\ns_lshl_b32 s11, s11, 7\ns_add_u32 s10, s10, s11')
    a(f's_bfm_b32 s50, 1, 22\ns_bfm_b32 s12, 6, 10\nv_lshl_add_u32 v10, v4, 13, v5\ns_lshl_b32 m0, s7, 12\ns_addk_i32 m0, {WA}')
    a('s_waitcnt lgkmcnt(0)')
    a('s_mov_b64 s[48:49], s[22:23]')
    a('global_load_dwordx4 v[12:15], v11, s[16:17]')
    for r in range(4):
        a(f'buffer_load_dwordx4 v10, s[48:51], s10 offen offset:{r*1024} {NT} lds')
        if r < 3: a('s_add_u32 s10, s10, s12')
    a('s_branch L_C')
    a('L_L:')
    if kw.get('lprio'): a(f's_setprio {kw["lprio"]}')
    a('s_barrier')
    common()
    rq, r2 = kw.get('rq', 0), kw.get('r2', 0)
    s.mlp_slot(10, 11)
    a('s_cselect_b32 s11, 64, 0\ns_cselect_b32 s8, 30, 15')
    a('v_and_b32 v14, s11, v5\nv_lshl_add_u32 v14, v14, 24, v5\nv_mul_u32_u24 v32, 3584, v4\nv_add_u32 v32, v32, v14')
    for r in range(1, 4): a(f'v_add_u32 v{32+r}, {r*(8*3584-1024)}, v32')
    a('v_xor_b32 v14, v3, v2\nv_lshlrev_b32 v14, 4, v14\nv_lshl_add_u32 v18, v2, 8, v14')
    for r in range(1, 4): a(f'v_xor_b32 v{18+r}, {r*64}, v18\nv_add_u32 v{18+r}, {r*7168}, v{18+r}')
    a(f's_mov_b32 s50, {512*3584}\ns_mov_b32 s51, 0x20000\ns_lshl_b32 s8, 1, s8')
    a(f's_mul_i32 s12, s6, {64*3584}\ns_lshl_b32 s11, s10, 6\ns_add_u32 s12, s12, s11')
    a(f's_lshl_b32 s13, s5, 23\ns_lshl_b32 s11, s3, 20\ns_add_u32 s13, s13, s11\ns_lshl_b32 s11, s6, 10\ns_add_u32 s13, s13, s11\ns_add_u32 s13, s13, {3072*256}')
    a('s_bfm_b32 s54, 1, 25\ns_mov_b32 s55, s51\ns_mov_b32 s14, s13')
    a('s_waitcnt lgkmcnt(0)')
    s.stamp(1)
    dg = depth // 4
    segs = {'1': (32, 48, 28, 12, 32 * 3584, W1), 'k': (18, 52, 18, 13, 32768, KB), 'v': (22, 56, 20, 14, 32768, VB),
            '2': (26, 60, 32, 15, 's8', W2), 'o': (26, 96, 24, 9, 32768, WO)}
    cnt = {c: 0 for c in segs}
    late = False
    prof = kw.get('prof')
    prof = [int(x, 16) for x in prof] if prof else [dg] * len(order)
    assert len(prof) == len(order)
    landed = 0
    first_wait = min(gi for gi in range(len(order)) if gi + 1 > prof[gi])
    for gi, c in enumerate(order):
        vr, sd, ptr, so, step, lds = segs[c]
        if gi == first_wait:
            a('v_lshlrev_b32 v14, 1, v2\nv_xor_b32 v14, v3, v14\nv_lshlrev_b32 v14, 4, v14\nv_lshl_add_u32 v22, v2, 8, v14')
            a(f'v_xor_b32 v23, 128, v22\nv_add_u32 v24, {2*7168}, v22\nv_add_u32 v25, {3*7168}, v23\nv_add_u32 v23, 7168, v23')
            a('v_lshl_add_u32 v26, v4, 10, v5')
            for r in range(1, 4): a(f'v_add_u32 v{26+r}, {r*7168}, v26')
            a(f's_mov_b32 s58, s54\ns_mov_b32 s59, s51\ns_mov_b32 s62, {1792*1024}\ns_mov_b32 s63, s51\ns_bfm_b32 s98, 1, 22\ns_mov_b32 s99, s51')
            s.srd(56, 20); s.srd(60, 32); s.srd(96, 24)
            a(f's_add_u32 s11, s6, {r2}\ns_and_b32 s11, s11, 7\ns_lshl_b32 s11, s11, 7\ns_lshl_b32 s15, s10, 15\ns_add_u32 s15, s15, s11')
            a('s_lshl2_add_u32 s9, s3, s5\ns_lshl_b32 s9, s9, 17\ns_lshl_b32 s11, s6, 7\ns_add_u32 s9, s9, s11')
            s.stamp(2)
            late = True
        assert late or c in '1k'
        if cnt[c] == 0 and c in '1k': s.srd(sd, ptr)
        a(f's_mov_b32 m0, {lds + cnt[c] * 4096}')
        if cnt[c]: a(f's_add_u32 s{so}, s{so}, {step}')
        while landed < gi + 1 - prof[gi]:
            landed += 1
            if landed in marks or landed == gi + 1 - prof[gi]:
                a(f's_waitcnt vmcnt({(gi-landed)*4})')
            if landed in marks:
                a(f'v_mov_b32 v30, {landed}\nds_write_b32 v8, v30 offset:{C_G}')
                if landed == TH['v'][7]: s.stamp(6)
        for r in range(4):
            fine = kw.get('fine')
            if fine and gi * 4 + r >= fine and (r or fine - 1 < (gi - landed) * 4): a(f's_waitcnt vmcnt({fine-1})')
            fl = kw.get('nt' + c, NT)
            a(f'buffer_load_dwordx4 v{vr+r}, s[{sd}:{sd+3}], s{so} offen offset:{r*1024} {fl} lds')
        cnt[c] += 1
    for n in range(landed + 1, len(order) + 1):
        if n in marks:
            if kw.get('obar') and n == len(order) and n != TH['v'][7]:
                a('s_waitcnt vmcnt(0)')
            else:
                a(f'v_mov_b32 v30, {n}\ns_waitcnt vmcnt({(len(order)-n)*4})\nds_write_b32 v8, v30 offset:{C_G}')
            if n == TH['v'][7]: s.stamp(6)
    s.stamp(7)
    if kw.get('obar'): a('s_barrier')
    a('s_branch L_end')

    if kw.get('shift'): a('s_nop 0')
    a('L_PM:')
    a('s_barrier')
    common()
    a(f's_cmp_lg_u32 s7, 4\ns_cbranch_scc1 L_pr\ns_sleep {kw["qs"]}\ns_branch L_P\nL_pr:')
    ns = kw.get('nsamp', 1)
    if kw.get('spread'):
        nb, base = kw['spread']
        a(f's_xor_b32 s9, s7, s4\ns_and_b32 s9, s9, 1\ns_lshl_b32 s10, s3, 5\ns_add_u32 s10, s10, s4\ns_and_b32 s10, s10, {nb-1}\ns_lshl1_add_u32 s10, s10, s9\ns_lshl_b32 s10, s10, 6\ns_mul_i32 s11, s2, 5\ns_and_b32 s11, s11, 63\ns_add_u32 s10, s10, s11\ns_lshl_b32 s10, s10, 7\ns_add_u32 s10, s10, {base}')
    else:
        a(f's_xor_b32 s9, s7, s4\ns_and_b32 s9, s9, 1\ns_lshr_b32 s10, s2, 6\ns_lshl1_add_u32 s10, s10, s9\ns_lshl_b32 s10, s10, 6\ns_and_b32 s11, s2, 63\ns_add_u32 s10, s10, s11\ns_lshl_b32 s10, s10, 7\ns_add_u32 s10, s10, {WS_T}')
    a('s_waitcnt lgkmcnt(0)')
    if kw.get('tlb'):
        a('s_lshl3_add_u32 s11, s5, s3\ns_lshl_b32 s11, s11, 10\ns_add_u32 s11, s11, s6\ns_addk_i32 s11, 768\ns_lshl_b32 s11, s11, 10\nv_mov_b32 v10, s11')
        a('s_lshl2_add_u32 s11, s3, s5\ns_lshl_b32 s11, s11, 10\ns_add_u32 s11, s11, s6\ns_lshl_b32 s11, s11, 7\nv_mov_b32 v11, s11')
        a(f's_lshl_b32 s11, s2, 7\nv_mov_b32 v12, s11\ns_add_u32 s11, s11, {WS_T + 0x10000}\nv_mov_b32 v13, s11')
        a('s_mov_b64 exec, 1\ns_cmp_eq_u32 s7, 4\ns_cbranch_scc0 L_tl5')
        a('global_load_dword v7, v10, s[20:21] nt\nglobal_load_dword v7, v11, s[24:25] nt\ns_branch L_tl6')
        a('L_tl5:\nglobal_load_dword v7, v12, s[32:33] nt\nglobal_load_dword v7, v13, s[40:41] nt')
        a('L_tl6:\ns_mov_b64 exec, -1')
    if kw.get('pd'): a(f's_sleep {kw["pd"]}')
    a('s_memtime s[12:13]\ns_load_dword s11, s[40:41], s10')
    if ns == 2: a('s_add_u32 s10, s10, 0x10000\ns_waitcnt lgkmcnt(0)\ns_load_dword s11, s[40:41], s10')
    a('s_waitcnt lgkmcnt(0)\ns_memtime s[14:15]\ns_lshl_b32 s10, s9, 2\nv_mov_b32 v10, s10\ns_waitcnt lgkmcnt(0)')
    a(f's_sub_u32 s12, s14, s12\nv_mov_b32 v11, s12\nds_write_b32 v10, v11 offset:{T_A}')
    a('s_cmp_eq_u32 s7, 5\ns_cbranch_scc1 L_M\ns_branch L_end')
    a('L_C:')
    if kw.get('clk'): a('s_memtime s[90:91]\ns_memrealtime s[88:89]')
    a('s_load_dword s44, s[40:41], 0\ns_barrier')
    a(f's_setprio {kw.get("cprio", 2)}')
    common()
    s.stamp(1)
    if 'C' in kw.get('kill', ''): a('s_waitcnt vmcnt(0)\ns_branch L_end')
    a('v_bfe_u32 v4, v1, 2, 2\nv_and_b32 v5, 3, v1')
    a(f's_mul_i32 s11, s7, {XS}\ns_add_u32 s11, s11, {XN}')
    a('v_lshrrev_b32 v10, 2, v1\nv_lshlrev_b32 v10, 6, v10\nv_and_b32 v11, 1, v1\nv_lshl_add_u32 v10, v11, 5, v10\nv_and_b32 v11, 2, v1\nv_lshl_add_u32 v10, v11, 2, v10\nv_add_u32 v11, s11, v10')
    a('s_mov_b32 s55, 0xffff0000')
    a('v_lshl_add_u32 v27, v2, 2, v4\nv_bfe_u32 v96, v27, 1, 2\nv_lshlrev_b32 v96, 5, v96\nv_lshl_add_u32 v96, v27, 7, v96\nv_lshl_add_u32 v96, v5, 3, v96')
    a('s_lshl_b32 s12, s7, 5\nv_xor_b32 v10, s12, v96')
    a('s_getreg_b32 s45, hwreg(HW_REG_XCC_ID, 0, 4)')
    a(f'v_mul_u32_u24 v24, {XS}, v5\nv_lshl_add_u32 v24, v2, 4, v24')
    a(f's_lshl_b32 s10, s5, 8\ns_add_u32 s10, s10, {XN}\nv_add_u32 v25, s10, v24')
    a(f's_lshl_b32 s10, s6, 7\ns_add_u32 s10, s10, {YL}\nv_add_u32 v24, s10, v24')
    a(f's_lshl_b32 s14, s3, 15\ns_lshl1_add_u32 s14, s12, s14\ns_lshl_b32 s13, s4, 8\ns_xor_b32 s58, s13, {rq*256}\ns_add_u32 s58, s14, s58\ns_add_u32 s58, s58, {WS_Q}')
    a(f's_lshl2_add_u32 s59, s13, s14\ns_add_u32 s59, s59, {WS_H}')
    a('v_lshlrev_b32 v106, 13, v3\nv_lshl_add_u32 v106, v2, 4, v106\nv_lshlrev_b32 v107, 4, v1\nv_mov_b32 v30, ' + str(kw.get('clamp', 384)) + '\nv_sub_u32 v31, 0, v30')
    s.pack24_consts()
    a('s_mov_b32 s13, 1')
    a('s_waitcnt vmcnt(0)' if kw.get('safeB') else 's_waitcnt vmcnt(4)')
    if not kw.get('ackst'): s.stamp(2)
    a('L_ln:')
    s.layernorm(12, 16, 32)
    a(f'ds_write2_b64 v11, v[12:13], v[14:15] offset1:2\nv_add_u32 v11, {YL-XN}, v11')
    a('s_sub_u32 s13, s13, 1\ns_cbranch_scc0 L_ln')
    s.stamp(3)
    a('s_waitcnt vmcnt(0) lgkmcnt(0)')
    if kw.get('st_tile'): s.stamp(5)
    s.signal(C_WA)
    s.tag_finish()
    a(f'v_mov_b32 v111, s44\nv_mov_b32 v115, s44\nds_write_b32 v8, v111 offset:{TAGW}')
    s.wait_flag(C_WA, 4, extra=[f'ds_read_b64 v[28:29], v8 offset:{T_A}'] + [x for t in range(4) for x in (f'ds_read_b128 v[{64+4*t}:{67+4*t}], v25 offset:{t*64}',
                f'ds_read_b64_tr_b16 v[{40+4*t}:{41+4*t}], v10 offset:{WA+t*4096}', f'ds_read_b64_tr_b16 v[{42+4*t}:{43+4*t}], v10 offset:{WA+t*4096+2048}')])
    for t in range(4):
        a(f's_waitcnt lgkmcnt({9-3*t})')
        s.mfma(16, 40 + 4 * t, 64 + 4 * t, t == 0)
        if t == 0: a('v_sub_u32 v110, v28, v29\nv_min_u32 v28, v28, v29')
        if t == 1: a('v_cmp_ne_u32 vcc, 0, v28\nv_med3_i32 v110, v110, v30, v31')
        if t == 2: a(('v_sub_u32 v29, 0, v110\nv_cndmask_b32 v110, v29, v110, vcc' if kw.get('miss', 1) else 'v_cndmask_b32 v110, 0, v110, vcc') + '\nv_lshl_or_b32 v110, v110, 4, s45')
    for t in range(2): a(f'ds_read_b128 v[{80+4*t}:{83+4*t}], v24 offset:{t*64}')
    a('s_mov_b32 exec_lo, 0x000f000f\ns_mov_b32 exec_hi, 0x000f000f')
    a('v_cvt_pk_bf16_f32 v108, v16, v17\nv_cvt_pk_bf16_f32 v109, v18, v19')
    a('buffer_store_dwordx4 v[108:111], v106, s[40:43], s58 offen')
    if kw.get('qe'): s.signal(C_QP)
    else: a('s_mov_b64 exec, -1')
    if not kw.get('ackst'): s.stamp(4)
    s.wait_flag(C_G, TH['1'][1], extra=[f'ds_read_b64_tr_b16 v[{40+2*t}:{41+2*t}], v10 offset:{W1+t*2048}' for t in range(4)], sleep=1)
    for t in range(2):
        a(f's_waitcnt lgkmcnt({2-2*t})')
        s.mfma(16, 40 + 4 * t, 80 + 4 * t, t == 0)
    a('s_mov_b32 exec_lo, 0x000f000f\ns_mov_b32 exec_hi, 0x000f000f')
    s.pack24(112, 16, 17, 18, 19)
    a('buffer_store_dwordx4 v[112:115], v107, s[40:43], s59 offen')
    if kw.get('he'): s.signal(C_HP)
    else: a('s_mov_b64 exec, -1')
    if 'Q' in kw.get('kill', ''): a('s_branch L_end')
    a(f's_lshl_b32 s10, s7, 13\ns_add_u32 s10, s10, {KB}')
    a(f'v_xor_b32 v10, v2, v3\nv_lshlrev_b32 v10, 4, v10\nv_lshl_add_u32 v10, v3, 8, v10\nv_add_u32 v102, {QL}, v10\nv_add_u32 v10, s10, v10')
    a('v_xor_b32 v103, 64, v102\nv_xor_b32 v104, 128, v102\nv_xor_b32 v105, 192, v102')
    a('v_xor_b32 v11, 64, v10\nv_xor_b32 v12, 128, v10\nv_xor_b32 v13, 192, v10')
    a(f's_lshl_b32 s10, s7, 2\ns_add_u32 s10, s10, {MX}\nv_lshlrev_b32 v15, 4, v5\nv_add_u32 v24, s10, v15\nv_add_u32 v15, {MX}, v15\ns_add_u32 s10, s10, {FP-MX}\nv_mov_b32 v14, s10')
    a(f's_lshl_b32 s10, s7, 10\ns_add_u32 s10, s10, {PL}\nv_lshlrev_b32 v25, 4, v1\nv_add_u32 v26, s10, v25\nv_add_u32 v25, {PL}, v25')
    a('v_and_b32 v28, 7, v27\ns_lshl_b32 s10, s7, 1\nv_xor_b32 v28, s10, v28\nv_lshlrev_b32 v28, 5, v28\nv_lshl_add_u32 v28, v27, 8, v28\nv_lshl_add_u32 v28, v5, 3, v28')
    a(f'v_add_u32 v28, {VB}, v28\nv_xor_b32 v29, 32, v28')
    a(f's_lshr_b32 s10, s7, 1\ns_lshl_b32 s11, s10, 13\ns_add_u32 s11, s11, {WO}')
    a('v_add_u32 v96, s11, v96\nv_xor_b32 v97, 32, v96\nv_xor_b32 v98, 64, v96\nv_xor_b32 v99, 96, v96')
    a('v_lshlrev_b32 v30, 14, v3\nv_lshl_add_u32 v30, v2, 8, v30')
    a(f's_lshl_b32 s14, s3, 16\ns_add_u32 s14, s14, {WS_O}')
    a('s_lshr_b32 s11, s4, 4\ns_lshl2_add_u32 s11, s11, s7\ns_lshl_b32 s11, s11, 11\ns_and_b32 s12, s4, 15\ns_lshl4_add_u32 s11, s12, s11')
    a('v_lshlrev_b32 v31, 4, v1')
    a('s_xor_b32 s12, s3, s6\ns_and_b32 s12, s12, 4\ns_lshl_b32 s12, s12, 11\nv_or_b32 v101, s12, v31')
    a('s_lshl_b32 s15, s5, 14\ns_add_u32 s15, s15, s14\ns_lshl_b32 s10, s10, 12\ns_add_u32 s15, s15, s10\ns_and_b32 s10, s7, 1\ns_lshl_b32 s12, s10, 13\ns_add_u32 s15, s15, s12')
    a('s_add_u32 s14, s14, s11')
    a(f'v_lshlrev_b32 v100, 9, v2\nv_lshl_add_u32 v100, v3, 4, v100\nv_add_u32 v100, {RED}, v100')
    a(f's_lshr_b32 s10, s3, 1\ns_lshl2_add_u32 s56, s6, s10\ns_and_b32 s10, s3, 1\ns_lshl2_add_u32 s56, s56, s10\ns_lshl2_add_u32 s56, s56, s5\ns_lshl_b32 s56, s56, 10\ns_add_u32 s56, s56, {WS_S}\ns_add_u32 s63, s56, 8192')
    a('v_lshrrev_b32 v119, 1, v1\nv_lshlrev_b32 v119, 10, v119\nv_and_b32 v16, 1, v1\nv_lshl_add_u32 v119, v16, 4, v119')
    a(f's_lshl_b32 s60, s3, 15\ns_lshl_b32 s11, s4, 5\ns_add_u32 s60, s60, s11\ns_add_u32 s62, s60, {WS_M}\ns_add_u32 s60, s60, {WS_S}')
    a('v_lshl_add_u32 v117, v2, 13, v119')
    a(f's_lshl_b32 s60, s3, 16\ns_add_u32 s60, s60, s11\ns_add_u32 s60, s60, {WS_S}')
    a(f's_mov_b32 s13, {hex(f2u(CSC))}')
    a('s_mov_b32 s12, s13')
    for k in range(4): a(f'v_mov_b32 v{124+k}, {hex(ONE2)}')
    kt = TH['k'][1::2]
    a(f's_lshl_b32 s57, s7, 3\ns_lshr_b32 s57, {kt[0] | kt[1] << 8 | kt[2] << 16 | kt[3] << 24}, s57\ns_and_b32 s57, s57, 0xff')
    if not kw.get('qe'):
        a('s_waitcnt vmcnt(1)')
        s.signal(C_QP)
    if not kw.get('he'):
        a('s_waitcnt vmcnt(0)')
        s.signal(C_HP)
    s.wait_flag(C_G, 's57', sleep=1)
    for u in range(2):
        for t in range(4):
            a(f'ds_read_b128 v[{32+16*u+4*t}:{35+16*u+4*t}], v{10+t} offset:{u*4096}')
    if not kw.get('st_tile') and not kw.get('ackst'): s.stamp(5)
    s.wait_flag(F_Q, 1, extra=[f'ds_read_b128 v[{64+4*t}:{67+4*t}], v{102+t}' for t in range(4)], sleep=kw.get('fqs', 0))
    s.stamp(6)
    a('v_readfirstlane_b32 s47, v9')
    a('s_cmp_lg_u32 s47, 1\ns_cbranch_scc1 L_qrem')
    a('L_qgo:')
    DP = lambda op, d, x, y, m, rm='0xf': f'{op}_dpp {d}, {x}, {y} {m} row_mask:{rm} bank_mask:0xf'
    for u in range(2):
        for t in range(4):
            if u == 0: a(f's_waitcnt lgkmcnt({3-t})')
            s.mfma(16 + 4 * u, 32 + 16 * u + 4 * t, 64 + 4 * t, t == 0)
    if kw.get('safeC'): a('s_nop 15')
    a('v_mov_b32 v40, s44\nv_mov_b32 v47, s44\nv_mov_b32 v123, s44')
    for u in range(2):
        for k in range(4): a(DP('v_add_f32', f'v{16+4*u+k}', f'v{16+4*u+k}', f'v{16+4*u+k}', 'row_ror:4'))
        for k in range(4): a(DP('v_add_f32', f'v{16+4*u+k}', f'v{16+4*u+k}', f'v{16+4*u+k}', 'row_ror:8'))
        if u == 0: a('v_max3_f32 v10, v16, v17, v18')
    a('v_max3_f32 v10, v10, v19, v20\nv_max3_f32 v11, v21, v22, v23\nv_max_f32 v10, v10, v11\nv_max_f32 v11, v10, v11')
    a('v_permlane16_swap_b32 v11, v10\nv_max_f32 v10, v11, v10\nv_max_f32 v11, v11, v10')
    a('v_permlane32_swap_b32 v11, v10\nv_max_f32 v10, v11, v10\nv_or_b32 v10, 1, v10')
    WB = 128; VR = 160
    vrd = lambda t: [f'ds_read_b64_tr_b16 v[{VR+8*t+4*T+2*u}:{VR+1+8*t+4*T+2*u}], v{28+T} offset:{t*8192+u*4096}' for T in range(2) for u in range(2)]
    cw = lambda n: 0 if (s.stamps and not kw.get('lean')) else n
    a('ds_write_b32 v24, v10')
    a(f'ds_read_b128 v[32:35], v15\nds_read_b32 v9, v8 offset:{C_G}')
    for x in vrd(0) + vrd(1) + vrd(2): a(x)
    a(f's_waitcnt lgkmcnt({cw(13)})\ns_branch L_mx2')
    a('L_mx:')
    a('ds_read_b128 v[32:35], v15')
    s.budget()
    a('s_waitcnt lgkmcnt(0)')
    a('L_mx2:')
    a('v_min3_u32 v11, v32, v33, v34\nv_max3_f32 v10, v32, v33, v34\nv_min_u32 v11, v11, v35\nv_max_f32 v10, v10, v35\nv_cmp_eq_u32 vcc, 0, v11\nv_mul_f32 v116, s13, v10\ns_cbranch_vccnz L_mx')
    for k in range(4): a(f'v_pk_fma_f32 v[{16+2*k}:{17+2*k}], v[{16+2*k}:{17+2*k}], s[12:13], v[116:117] op_sel_hi:[1,1,0] neg_lo:[0,0,1] neg_hi:[0,0,1]')
    for k in range(8): a(f'v_exp_f32 v{16+k}, v{16+k}')
    for k in range(4): a(f'v_cvt_pk_bf16_f32 v{32+k}, v{16+2*k}, v{17+2*k}')
    a('ds_write_b128 v26, v[32:35]\nds_write_b32 v14, v6')
    a('L_pw:')
    a(f'ds_read_b128 v[36:39], v8 offset:{FP}')
    for t in range(4): a(f'ds_read_b128 v[{64+4*t}:{67+4*t}], v25 offset:{t*1024}')
    a(f'ds_read_b32 v118, v8 offset:{C_G}')
    for x in vrd(3): a(x)
    a('v_mov_b32 v41, v116')
    s.budget()
    a(f's_waitcnt lgkmcnt({cw(9)})\nv_min3_u32 v11, v36, v37, v38\nv_min_u32 v11, v11, v39\nv_cmp_eq_u32 vcc, 0, v11\ns_cbranch_vccnz L_pw')
    s.stamp(7)
    def wo_reads(kss=(0, 1)):
        for ks in kss:
            for T in range(4):
                for u in range(2):
                    r = WB + 16 * ks + 4 * T + 2 * u
                    a(f'ds_read_b64_tr_b16 v[{r}:{r+1}], v{96+T} offset:{ks*4096+u*2048}')
    early = False
    a(f'v_cmp_gt_u32 vcc, {TH["v"][5]}, v9\ns_cbranch_vccz L_v012')
    s.wait_flag(C_G, TH['v'][5], extra=vrd(0) + vrd(1) + vrd(2), sleep=2)
    a('s_waitcnt lgkmcnt(0)')
    a('L_v012:')
    for t in range(3):
        a(f's_waitcnt lgkmcnt({8-t})')
        for T in range(2): s.mfma(16 + 4 * T, VR + 8 * t + 4 * T, 64 + 4 * t, t == 0)
        s.mfma(56, 124, 64 + 4 * t, t == 0)
    a('s_waitcnt lgkmcnt(4)')
    s.mfma(56, 124, 76, False)
    a(f'v_cmp_gt_u32 vcc, {TH["v"][7]}, v118\ns_cbranch_vccz L_v3')
    s.wait_flag(C_G, TH['v'][7], extra=vrd(3), sleep=kw.get('v3s', 0))
    a('L_v3:')
    if not kw.get('ind'): s.stamp(8)
    for T in range(2):
        a(f's_waitcnt lgkmcnt({2-2*T})')
        s.mfma(16 + 4 * T, VR + 24 + 4 * T, 76, False)
    a('v_mov_b32 v46, v56')
    a('s_mov_b32 exec_lo, 0x000f000f\ns_mov_b32 exec_hi, 0x000f000f\ns_cmp_eq_u32 s47, 1')
    for k in range(4): a(f'v_cvt_pk_bf16_f32 v{42+k}, v{16+2*k}, v{17+2*k}')
    a('s_cbranch_scc0 L_orem')
    a('buffer_store_dwordx4 v[40:43], v30, s[40:43], s14 offen\nbuffer_store_dwordx4 v[44:47], v30, s[40:43], s14 offen offset:1024')
    a('L_ost:')
    a('s_mov_b64 exec, -1')
    s.stamp(9)
    if kw.get('ackst'):
        a('s_waitcnt vmcnt(0)')
        s.stamp(5)
    if 'D' in kw.get('kill', ''): a('s_branch L_end')
    if kw.get('od0'): a(f's_sleep {kw["od0"]}')
    OE = kw.get('oe')
    if OE is not None:
        if OE: s.wait_flag(C_G, len(order) - OE)
    elif kw.get('obar'): a('s_barrier')
    if kw.get('ind'):
        if not early:
            s.wait_flag(C_G, TH['o'][3])
            wo_reads()
            early = True
        a('s_mov_b32 exec_hi, 0')
        a('L_ipoll:')
        a('buffer_load_dword v48, v101, s[40:43], s15 offen offset:1036 sc1')
        s.budget()
        if kw.get('isl'):
            a(f's_waitcnt vmcnt(0)\nv_cmp_ne_u32 vcc, s44, v48\ns_cbranch_vccz L_idone\ns_sleep {kw["isl"]}\ns_branch L_ipoll\nL_idone:')
        else:
            a('s_waitcnt vmcnt(0)\nv_cmp_ne_u32 vcc, s44, v48\ns_cbranch_vccnz L_ipoll')
        a('s_mov_b32 exec_hi, -1')
        s.stamp(8)
    for k in range(4): a(f'buffer_load_dwordx4 v[{48+4*k}:{51+4*k}], v31, s[40:43], s15 offen offset:{k*1024} sc1')
    if OE == 1 and kw.get('wsplit'):
        wo_reads((0,))
        a('s_barrier')
        wo_reads((1,))
        a(f'ds_read_b32 v9, v8 offset:{F_K}')
    else:
        if OE is not None: a('s_barrier')
        a(f'ds_read_b32 v9, v8 offset:{F_K}')
        wo_reads()
    if s.stamps:
        if kw.get('ackst'):
            a('s_waitcnt vmcnt(0)')
            s.stamp(2)
        a('s_mov_b32 s61, 0')
    a('s_branch L_opoll')
    a('L_oretry:')
    a('s_mov_b64 exec, vcc')
    if s.stamps: a('s_add_u32 s61, s61, 1')
    if kw.get('osl'): a(f's_sleep {kw["osl"]}')
    for k in range(4): a(f'buffer_load_dwordx4 v[{48+4*k}:{51+4*k}], v31, s[40:43], s15 offen offset:{k*1024} sc1')
    a('s_mov_b64 exec, -1')
    s.budget()
    if kw.get('al'): a('.p2align 3')
    a('L_opoll:')
    a('s_waitcnt vmcnt(0) lgkmcnt(0)')
    a('v_xor_b32 v10, s44, v48\nv_bitop3_b32 v10, v55, s44, v10 bitop3:0xbe\nv_bitop3_b32 v10, v56, s44, v10 bitop3:0xbe\nv_bitop3_b32 v10, v63, s44, v10 bitop3:0xbe')
    a('v_cmp_ne_u32 vcc, 0, v10\ns_cbranch_vccnz L_oretry')
    s.stamp(11)
    if s.stamps: a('s_mul_i32 s61, s61, 100\ns_add_u32 s70, s64, s61')
    M8 = ('quad_perm:[1,0,3,2]', 'quad_perm:[2,3,0,1]', 'row_half_mirror')
    D = lambda op, d, x, y, m, rm='0xf': f'{op}_dpp {d}, {x}, {y} {m} row_mask:{rm} bank_mask:0xf'
    R = lambda m, rm: f'v_mov_b32_dpp v23, v21 {m} row_mask:{rm} bank_mask:0xf'
    wv = [D('v_max_f32', 'v20', 'v49', 'v49', M8[0]), None, D('v_max_f32', 'v20', 'v20', 'v20', M8[1]), None, D('v_max_f32', 'v20', 'v20', 'v20', M8[2]),
          'v_sub_f32 v21, v49, v20', 'v_exp_f32 v21, v21', None, 'v_mul_f32 v22, v54, v21', 'v_mov_b32 v23, v21', None,
          D('v_add_f32', 'v22', 'v22', 'v22', M8[0]), R('row_ror:12', '0x2'), None, D('v_add_f32', 'v22', 'v22', 'v22', M8[1]), R('row_ror:8', '0x4'), None,
          D('v_add_f32', 'v22', 'v22', 'v22', M8[2]), R('row_ror:4', '0x8'), 'v_rcp_f32 v22, v22', None]
    mf = [(32 + 4 * T, 50 + 8 * ks, WB + 16 * ks + 4 * T, ks == 0) for ks in range(2) for T in range(4)]
    s.mfma(*mf.pop(0))
    for x in wv:
        if x is None: s.mfma(*mf.pop(0))
        else: a(x)
    assert not mf
    a('v_mul_f32 v21, v22, v23')
    a(D('v_mul_f32', 'v21', 'v22', 'v23', 'row_ror:8', '0xc'))
    for T in range(4): a(D('v_mul_f32', f'v{16+T}', 'v21', f'v{32+4*T}', 'row_newbcast:0'))
    for r in range(1, 4):
        for T in range(4): a(D('v_fmac_f32', f'v{16+T}', 'v21', f'v{32+4*T+r}', f'row_newbcast:{r}'))
    a(f'ds_write_b128 v26, v[16:19] offset:{RED-PL}')
    if kw.get('nf'): a('v_xor_b32 v10, v9, v101\nv_xor_b32 v11, 0x2000, v10')
    a('v_add_u32 v117, v117, v9\ns_cmp_lg_u32 s7, 0')
    a('s_waitcnt lgkmcnt(0)\ns_barrier')
    s.stamp(12)
    a('s_cbranch_scc1 ' + ('L_wb' if kw.get('fw') else 'L_end'))
    for k in range(4): a(f'ds_read_b128 v[{48+4*k}:{51+4*k}], v100 offset:{(k>>1)*2048+(k&1)*256}')
    a('s_waitcnt lgkmcnt(2)')
    a('v_pk_add_f32 v[48:49], v[48:49], v[52:53]\nv_pk_add_f32 v[50:51], v[50:51], v[54:55]')
    a('s_waitcnt lgkmcnt(1)')
    a('v_pk_add_f32 v[48:49], v[48:49], v[56:57]\nv_pk_add_f32 v[50:51], v[50:51], v[58:59]')
    a('s_waitcnt lgkmcnt(0)')
    a('v_pk_add_f32 v[48:49], v[48:49], v[60:61]\nv_pk_add_f32 v[50:51], v[50:51], v[62:63]')
    s.pack24(120, 48, 49, 50, 51)
    if kw.get('nf'):
        a('buffer_store_dwordx4 v[120:123], v10, s[40:43], s56 offen sc1')
        if kw.get('nfs'): a(f's_sleep {kw["nfs"]}')
        a('buffer_store_dwordx4 v[120:123], v11, s[40:43], s56 offen sc1')
    else:
        a('buffer_store_dwordx4 v[120:123], v31, s[40:43], s56 offen sc1\nbuffer_store_dwordx4 v[120:123], v31, s[40:43], s63 offen sc1')
    s.stamp(13)
    fw = kw.get('fw', 0)
    if fw:
        a('s_branch L_end')
        a('L_wb:')
        a(f's_cmp_lg_u32 s7, {fw}\ns_cbranch_scc1 L_end')
        if kw.get('d0'): a(f's_sleep {kw["d0"]}')
    LA = 'buffer_load_dwordx4 v[16:19], v117, s[40:43], s60 offen sc1'
    LB_ = 'buffer_load_dwordx4 v[20:23], v117, s[40:43], s60 offen sc1'
    a('L_mpoll:')
    a('buffer_load_dwordx4 v[32:35], v119, s[40:43], s62 offen sc1')
    a(f'v_lshlrev_b32 v14, 3, v1\nv_add_u32 v14, {GX}, v14\nds_read_b64 v[12:13], v14')
    s.unpack24_consts()
    s.srd_const(48, 4096); s.srd(48, 36)
    a('s_mov_b32 s56, 0x00030003\ns_mov_b32 s57, s56')
    a('v_and_b32 v11, 1, v1\nv_lshlrev_b32 v14, 5, v2\nv_lshl_add_u32 v14, v11, 1, v14')
    a('s_lshl_b32 s11, s5, 10\ns_lshl_b32 s12, s3, 7\ns_add_u32 s11, s11, s12\ns_lshl2_add_u32 s11, s6, s11')
    if kw.get('d1'): a(f's_sleep {kw["d1"]}')
    a(LA)
    if kw.get('d2'): a(f's_sleep {kw["d2"]}')
    a(LB_)
    s.budget()
    a('s_waitcnt vmcnt(2)\nv_cmp_ne_u32 vcc, s44, v35\ns_cbranch_vccnz L_mpoll')
    s.stamp(10)
    s.unpack24(32)
    s.reduce32(32)
    a('s_waitcnt lgkmcnt(0)')
    s.round_bf16('v32')
    a('v_add_f32 v32, v32, v12')
    s.round_bf16('v32')
    a(f'v_mul_f32 v33, {hex(f2u(-math.log2(math.e)))}, v32\nv_exp_f32 v33, v33\nv_add_f32 v33, 1.0, v33\nv_rcp_f32 v33, v33\nv_mul_f32 v12, v32, v33')
    s.round_bf16('v12')
    a('L_fpoll:')
    a('s_waitcnt vmcnt(1)\nv_cmp_ne_u32 vcc, s44, v19\ns_cbranch_vccz L_fdone')
    if kw.get('d4'): a(f's_sleep {kw["d4"]}')
    a(LA)
    s.budget()
    a('s_waitcnt vmcnt(1)\nv_cmp_ne_u32 vcc, s44, v23\ns_cbranch_vccz L_fdoneB')
    if kw.get('d3'): a(f's_sleep {kw["d3"]}')
    a(LB_ + '\ns_branch L_fpoll')
    def finish(r):
        s.stamp(14)
        s.unpack24(r)
        s.reduce32(r)
        if kw.get('exactfin', 0):
            s.round_bf16(f'v{r}')
            a(f'v_mul_f32 v{r}, v{r}, v12')
            s.round_bf16(f'v{r}')
            a(f'v_add_f32 v{r}, v{r}, v13')
        else:
            a(f'v_fma_f32 v{r}, v{r}, v12, v13')
        a('s_mov_b64 exec, s[56:57]')
        a(f'v_cvt_pk_bf16_f32 v{r}, v{r}, v{r}')
        a(f'buffer_store_short v{r}, v14, s[48:51], s11 offen')
    a('L_fdoneB:')
    finish(20)
    a('s_branch L_epoch')
    a('L_fdone:')
    finish(16)
    a('L_epoch:')
    s.stamp(15)
    a('s_cmp_lg_u32 s2, 0\ns_cbranch_scc1 L_end')
    a('s_mov_b64 exec, 1\nbuffer_store_dword v123, v8, s[40:43], 0 offen')
    a('s_branch L_end')

    a('L_qrem:')
    a('s_mov_b32 exec_lo, 0x000f000f\ns_mov_b32 exec_hi, 0x000f000f')
    a('buffer_store_dwordx4 v[108:111], v106, s[40:43], s58 offen sc1\nbuffer_store_dwordx4 v[112:115], v107, s[40:43], s59 offen sc1')
    a('s_mov_b64 exec, -1')
    a('L_qrem2:')
    a(f'ds_read_b32 v9, v8 offset:{F_Q}')
    for t in range(4): a(f'ds_read_b128 v[{64+4*t}:{67+4*t}], v{102+t}')
    s.budget()
    a('s_waitcnt lgkmcnt(0)\nv_readfirstlane_b32 s47, v9\ns_cmp_eq_u32 s47, 4\ns_cbranch_scc0 L_qgo\ns_sleep 2\ns_branch L_qrem2')
    if kw.get('wb') is not None:
        a('L_wb:')
        a(f's_cmp_lg_u32 s7, 1\ns_cbranch_scc1 L_end\ns_and_b32 s10, s4, {kw["wb"]}\ns_cbranch_scc1 L_end')
        if kw.get('wbd'): a(f's_sleep {kw["wbd"]}')
        a('buffer_wbl2 sc1\ns_branch L_end')
    a('L_orem:')
    a('buffer_store_dwordx4 v[40:43], v30, s[40:43], s14 offen sc1\nbuffer_store_dwordx4 v[44:47], v30, s[40:43], s14 offen offset:1024 sc1')
    a('s_branch L_ost')
    a('L_P:')
    if 'P' in kw.get('kill', ''): a('s_waitcnt lgkmcnt(0)\ns_branch L_end')
    a('s_setprio 3')
    a('s_getreg_b32 s45, hwreg(HW_REG_XCC_ID, 0, 4)')
    a('v_and_b32 v5, 3, v1')
    a(f's_lshl_b32 s10, s3, 15\ns_lshl_b32 s12, s4, 10\ns_add_u32 s12, s12, s10')
    a('s_waitcnt lgkmcnt(0)')
    if kw.get('warmq'):
        a(f'v_and_b32 v10, 7, v1\nv_lshlrev_b32 v10, 7, v10\nv_and_b32 v11, 8, v1\nv_lshl_add_u32 v10, v11, 15, v10\ns_add_u32 s11, s12, {WS_Q}')
        a(f's_mov_b64 exec, {0xff if kw["warmq"] == 1 else 0xffff}\nbuffer_load_dword v7, v10, s[40:43], s11 offen {kw.get("warmqfl", "")}\ns_mov_b64 exec, -1')
    a(f's_lshl_b32 s11, s5, 13\ns_add_u32 s10, s10, s11\ns_add_u32 s10, s10, {WS_Q}\ns_add_u32 s15, s10, 4096')
    a('v_lshlrev_b32 v10, 4, v1')
    a(f'v_lshrrev_b32 v11, 5, v1\nv_and_b32 v12, 31, v1\nv_lshlrev_b32 v13, 3, v12\nv_lshlrev_b32 v14, 4, v11\nv_xor_b32 v13, v13, v14\nv_lshl_add_u32 v13, v11, 8, v13\nv_add_u32 v22, {QL}, v13')
    for c in range(1, 8): a(f'v_xor_b32 v{22+c}, {c*32}, v22')
    a(f's_mov_b32 s14, {kw.get("nfast", 48)}')
    a('s_waitcnt lgkmcnt(0)')
    s.stamp(1)
    if 'W' in kw.get('kill', ''): a('s_branch L_end')
    if kw.get('qg'): s.wait_flag(C_G, kw['qg'], sleep=1)
    s.wait_flag(C_QP, 4, sleep=1, extra=[f'ds_read_b32 v15, v8 offset:{TAGW}'])
    a('s_waitcnt lgkmcnt(0)\nv_readfirstlane_b32 s44, v15')
    if q0: a(f's_sleep {q0}')
    s.stamp(2)
    a('L_qpoll:')
    for c in range(8): a(f'buffer_load_dwordx4 v[{32+4*c}:{35+4*c}], v10, s[40:43], s{10 if c < 4 else 15} offen offset:{(c&3)*1024} sc1 {kw.get("qnt", "")}')
    s.budget()
    a('s_waitcnt vmcnt(0)')
    a('v_xor_b32 v15, s44, v35')
    for c in range(1, 8): a(f'v_bitop3_b32 v15, v{35+4*c}, s44, v15 bitop3:0xbe')
    a('v_cmp_ne_u32 vcc, 0, v15\ns_cbranch_vccz L_qgot')
    a(f's_mov_b64 exec, vcc\ns_sub_u32 s14, s14, 1\ns_cbranch_scc0 L_qpoll')
    a(f'v_mov_b32 v15, 4\nds_write_b32 v8, v15 offset:{F_Q}\ns_branch L_qpoll')
    a('L_qgot:')
    a('s_mov_b64 exec, -1')
    a('v_xor_b32 v15, s45, v34')
    for c in range(8):
        a(f'ds_write_b64 v{22+c}, v[{32+4*c}:{33+4*c}] offset:{c*512}')
        if c < 7: a(f'v_bitop3_b32 v15, v{38+4*c}, s45, v15 bitop3:0xbe')
    a('v_and_b32 v15, 15, v15\nv_cmp_ne_u32 vcc, 0, v15\ns_cmp_eq_u64 vcc, 0\ns_cselect_b32 s47, 1, 2')
    if kw.get('force_remote'): a('s_mov_b32 s47, 2')
    a(f'v_mov_b32 v15, s47\nds_write_b32 v8, v15 offset:{F_Q}')
    s.stamp(3)
    a('v_add3_u32 v16, v34, v38, v42\nv_add3_u32 v17, v46, v50, v54\nv_add3_u32 v16, v16, v58, v62\nv_add_u32 v16, v16, v17')
    for m in ('quad_perm:[1,0,3,2] row_mask:0xf', 'quad_perm:[2,3,0,1] row_mask:0xf', 'row_half_mirror row_mask:0xf', 'row_mirror row_mask:0xf', 'row_bcast:15 row_mask:0xa', 'row_bcast:31 row_mask:0xc'):
        a(f'v_add_u32_dpp v16, v16, v16 {m} bank_mask:0xf')
    if kw.get('cntvote'):
        a('s_mov_b32 s11, 0')
        for c in range(8): a(f'v_cmp_gt_u32 vcc, 16, v{34+4*c}\ns_bcnt1_i32_b64 s10, vcc\ns_add_u32 s11, s11, s10')
        a('s_add_u32 s74, s64, s11')
    if kw.get('sgnvote'): a(f'v_readlane_b32 s10, v16, 63\ns_ashr_i32 s10, s10, 13\ns_add_u32 s10, s10, 400\ns_add_u32 s74, s64, s10')
    if kw.get('absvote'): a('v_readlane_b32 s10, v16, 63\ns_ashr_i32 s10, s10, 13\ns_abs_i32 s10, s10\ns_min_u32 s10, s10, 300\ns_sub_u32 s10, 300, s10\ns_add_u32 s74, s64, s10')
    if kw.get('recvote'): a('v_readlane_b32 s10, v16, 63\ns_ashr_i32 s10, s10, 13\ns_add_u32 s10, s10, 1000\ns_add_u32 s74, s64, s10')
    a('v_readlane_b32 s10, v16, 63\ns_cmp_lt_i32 s10, 0\ns_cselect_b32 s10, 0, 8192')
    if kw.get('kflip'): a('s_xor_b32 s10, s10, 8192')
    a(f'v_mov_b32 v15, s10\nds_write_b32 v8, v15 offset:{F_K}')
    a(f's_lshl_b32 s11, s12, 1\ns_add_u32 s11, s11, {WS_O}')
    a(f's_lshl2_add_u32 s12, s3, s5\ns_lshl4_add_u32 s12, s12, s6\ns_lshl_b32 s12, s12, 10\ns_add_u32 s12, s12, s10\ns_add_u32 s12, s12, {WS_S - 2048}')
    a('v_lshlrev_b32 v10, 7, v1\nv_add_u32 v11, s12, v10\nv_add_u32 v10, s11, v10\nv_cmp_gt_u32 vcc, 16, v1\nv_cndmask_b32 v10, v11, v10, vcc')
    if kw.get('wg'): s.wait_flag(C_G, kw['wg'], sleep=2)
    if kw.get('nowarm') == 1: pass
    elif kw.get('nowarm') == 2: a('s_mov_b64 exec, 0xffffff\nbuffer_load_dword v7, v10, s[40:43], 0 offen nt')
    elif kw.get('nowarm') == 3: a('s_mov_b64 exec, 0xffff\nbuffer_load_dword v7, v10, s[40:43], 0 offen nt')
    elif kw.get('ont'):
        a('s_mov_b64 exec, 0xffff\nbuffer_load_dword v7, v10, s[40:43], 0 offen nt\ns_mov_b64 exec, 0xff0000\nbuffer_load_dword v7, v10, s[40:43], 0 offen')
    else:
        a('s_mov_b64 exec, 0xffffff\nbuffer_load_dword v7, v10, s[40:43], 0 offen')
    a('s_branch L_end')

    a('L_M:')
    if kw.get('mprio') is not None: a(f's_setprio {kw["mprio"]}\ns_branch L_M2')
    if 'M' in kw.get('kill', ''): a('s_waitcnt lgkmcnt(0)\ns_branch L_end')
    a('s_setprio 3')
    a('L_M2:')
    a('v_bfe_u32 v4, v1, 2, 2\nv_and_b32 v5, 3, v1')
    a('v_lshl_add_u32 v10, v4, 2, v2')
    a('v_lshlrev_b32 v11, 3, v10')
    a('v_lshlrev_b32 v10, 4, v1')
    s.mlp_slot(11, 15)
    a('s_lshl3_add_u32 s15, s5, s3\ns_lshl_b32 s11, s11, 6')
    a('v_and_b32 v24, 1, v1\nv_lshlrev_b32 v25, 5, v2\nv_lshl_add_u32 v25, v24, 1, v25')
    a('s_lshl_b32 s12, s3, 7\ns_lshl2_add_u32 s12, s6, s12\ns_lshl_b32 s13, s5, 10\ns_add_u32 s13, s13, s12')
    s.srd_const(56, 3584); s.srd_const(60, 1024); s.srd_const(96, 4096)
    a('s_waitcnt lgkmcnt(0)')
    s.srd(56, 30); s.srd(60, 34); s.srd(96, 16)
    if not kw.get('nosmall'):
        sf = kw.get('smallfl', '')
        a(f'buffer_load_ushort v16, v25, s[60:63], s12 offen {sf}')
        a('buffer_load_ushort v17, v25, s[96:99], s13 offen')
        a(f'buffer_load_dwordx2 v[14:15], v11, s[56:59], s11 offen {sf}')
    a(f'v_mul_u32_u24 v11, {HS}, v5\nv_lshl_add_u32 v11, v2, 4, v11\nv_lshrrev_b32 v12, 1, v4\nv_lshl_add_u32 v11, v12, 6, v11\nv_and_b32 v12, 1, v4\nv_lshl_add_u32 v11, v12, 3, v11\nv_add_u32 v11, {HL}, v11')
    a(f'v_mul_u32_u24 v12, {HS}, v4\nv_lshl_add_u32 v12, v2, 4, v12\nv_add_u32 v12, {HL}, v12')
    a(f'v_lshl_add_u32 v27, v2, 2, v4\nv_bfe_u32 v28, v27, 1, 2\nv_lshlrev_b32 v28, 5, v28\nv_lshl_add_u32 v28, v27, 7, v28\nv_lshl_add_u32 v28, v5, 3, v28\nv_add_u32 v28, {W2}, v28')
    a('v_xor_b32 v29, 32, v28\nv_xor_b32 v30, 64, v28\nv_xor_b32 v31, 96, v28')
    a(f'v_lshlrev_b32 v13, 3, v1\nv_add_u32 v13, {GX}, v13')
    a('s_waitcnt vmcnt(1) lgkmcnt(0)')
    a('v_lshlrev_b32 v16, 16, v16\nv_lshlrev_b32 v17, 16, v17\nds_write_b64 v13, v[16:17]')
    if kw.get('hs'): a(f's_sleep {kw["hs"]}')
    s.wait_flag(C_HP, 4, sleep=1, extra=[f'ds_read_b32 v23, v8 offset:{TAGW}'])
    a('s_waitcnt lgkmcnt(0)\nv_readfirstlane_b32 s44, v23')
    s.pack24_consts(); s.unpack24_consts()
    if kw.get('hq'): s.wait_flag(F_Q, 1, sleep=1)
    if kw.get('h0', 8): a(f's_sleep {kw.get("h0", 8)}')
    a(f's_lshl2_add_u32 s10, s3, s5\ns_lshl_b32 s10, s10, 13\ns_add_u32 s10, s10, {WS_H}\ns_add_u32 s11, s10, 4096')
    s.stamp(2)
    a('L_hpoll:')
    for c in range(8): a(f'buffer_load_dwordx4 v[{32+4*c}:{35+4*c}], v10, s[40:43], s{10 + (c>>2)} offen offset:{(c&3)*1024} sc1 {kw.get("qnt", "")}')
    s.budget()
    a('s_waitcnt vmcnt(0)')
    a('v_xor_b32 v13, s44, v35')
    for c in range(1, 8): a(f'v_bitop3_b32 v13, v{35+4*c}, s44, v13 bitop3:0xbe')
    a('v_cmp_ne_u32 vcc, 0, v13\ns_cbranch_vccnz L_hpoll')
    s.stamp(3)
    for c in range(8): s.unpack24(32 + 4 * c)
    for st in (16, 8, 4):
        for r in range(32, 32 + st, 2): a(f'v_pk_add_f32 v[{r}:{r+1}], v[{r}:{r+1}], v[{r+st}:{r+st+1}]')
    a('v_cvt_pk_bf16_f32 v36, v32, v33\nv_cvt_pk_bf16_f32 v37, v34, v35')
    for k in range(2):
        a(f'v_lshlrev_b32 v{32+2*k}, 16, v{36+k}\nv_and_b32 v{33+2*k}, 0xffff0000, v{36+k}\nv_lshlrev_b32 v{40+2*k}, 16, v{14+k}\nv_and_b32 v{41+2*k}, 0xffff0000, v{14+k}')
    for k in range(4): a(f'v_add_f32 v{32+k}, v{32+k}, v{40+k}')
    a('v_cvt_pk_bf16_f32 v36, v32, v33\nv_cvt_pk_bf16_f32 v37, v34, v35')
    for k in range(2): a(f'v_lshlrev_b32 v{32+2*k}, 16, v{36+k}\nv_and_b32 v{33+2*k}, 0xffff0000, v{36+k}')
    K1 = -2 * math.sqrt(2 / math.pi) * math.log2(math.e)
    a(f'v_mov_b32 v44, {hex(f2u(K1))}')
    for k in range(4): a(f'v_mul_f32 v{36+k}, v{32+k}, v{32+k}')
    for k in range(4): a(f'v_fmamk_f32 v{36+k}, v{36+k}, {hex(f2u(K1*0.044715))}, v44')
    for k in range(4): a(f'v_mul_f32 v{36+k}, v{36+k}, v{32+k}')
    for k in range(4): a(f'v_exp_f32 v{36+k}, v{36+k}')
    for k in range(4): a(f'v_add_f32 v{36+k}, 1.0, v{36+k}')
    for k in range(4): a(f'v_rcp_f32 v{36+k}, v{36+k}')
    for k in range(4): a(f'v_mul_f32 v{32+k}, v{32+k}, v{36+k}')
    a('v_cvt_pk_bf16_f32 v40, v32, v33\nv_cvt_pk_bf16_f32 v41, v34, v35')
    a('ds_write_b64 v11, v[40:41]\nds_read_b128 v[48:51], v12\nds_read_b128 v[52:55], v12 offset:64')
    a(f's_add_u32 s10, s6, {r2}\ns_and_b32 s10, s10, 7\ns_lshl_b32 s10, s10, 5\ns_add_u32 s10, s10, s15\ns_lshl_b32 s10, s10, 10\ns_add_u32 s10, s10, {WS_M}')
    a('v_lshlrev_b32 v10, 4, v1\nv_mov_b32 v23, s44')
    s.wait_flag(C_G, TH['2'][1], sleep=1)
    for ks in range(2):
        for T in range(4):
            for u in range(2):
                r = 64 + 16 * ks + 4 * T + 2 * u
                a(f'ds_read_b64_tr_b16 v[{r}:{r+1}], v{28+T} offset:{ks*4096+u*2048}')
    a('s_waitcnt lgkmcnt(0)')
    for ks in range(2):
        for T in range(4): s.mfma(32 + 4 * T, 48 + 4 * ks, 64 + 16 * ks + 4 * T, ks == 0)
    s.pack24(20, 32, 36, 40, 44)
    a('buffer_store_dwordx4 v[20:23], v10, s[40:43], s10 offen sc1')
    s.stamp(4)
    a('L_end:')
    if kw.get('probe'):
        pw, pst, pm, pb = kw['probe']
        a(f's_waitcnt lgkmcnt(0)\ns_cmp_lg_u32 s7, {pw}\ns_cbranch_scc1 L_exit')
        if pw >= 4: a('s_barrier\ns_barrier' if kw.get('obar') and pw != 7 else 's_barrier')
        if kw.get('clk') == 1: a('s_memtime s[92:93]\ns_waitcnt lgkmcnt(0)\ns_sub_u32 s10, s92, s90\ns_lshr_b32 s10, s10, 1\ns_add_u32 s94, s64, s10')
        if kw.get('clk') == 2: a('s_memrealtime s[92:93]\ns_waitcnt lgkmcnt(0)\ns_sub_u32 s10, s92, s88\ns_mul_i32 s10, s10, 10\ns_add_u32 s94, s64, s10')
        if kw.get('px') is not None: a(f's_cmp_lg_u32 s45, {kw["px"]}\ns_cbranch_scc1 L_exit')
        if kw.get('pm') is not None: a(f's_mul_i32 s10, s45, {kw["pm"]}\ns_add_u32 s94, s64, s10')
        if kw.get('pg') is not None: a(f's_cmp_lg_u32 s3, {kw["pg"]}\ns_cbranch_scc1 L_exit')
        a(f's_sub_u32 s10, s{64+2*pst}, s64\ns_mul_i32 s10, s10, {pm}\ns_add_u32 s10, s10, {pb}\ns_min_u32 s10, s10, 20000')
        a('L_padloop:\ns_memrealtime s[12:13]\ns_waitcnt lgkmcnt(0)\ns_sub_u32 s11, s12, s64\ns_cmp_lt_u32 s11, s10\ns_cbranch_scc1 L_padloop')
    s.dump_stamps()
    a('L_exit:')
    a('s_endpgm')
    lines, added = hazard.fix(s.o, verbose=kw.get('verbose', False))
    return wrap('\n'.join(lines) + '\n', 256, NW * 64, kw.get('lds', LDS_TOTAL), kw.get('vgpr', 192))

if __name__ == '__main__':
    import ast
    out = sys.argv[1]
    kw = {}
    for x in sys.argv[2:]:
        k, v = x.split('=')
        try: kw[k] = ast.literal_eval(v)
        except Exception: kw[k] = v
    open(out, 'w').write(gen(**kw))
```

```python
import sys, math, struct
sys.path.insert(0, 'dev')
from common import *
import hazard

def f2u(x):
    return struct.unpack('<I', struct.pack('<f', x))[0]

NW = 7
FL = 0
WA, W1, KB, W2, VB, WO = [2048 + x for x in (0, 16384, 24576, 57344, 65536, 98304)]
XN = 2048 + 114688; XS = 1088
YL = XN + 4 * XS
QL = YL + 4 * XS
assert QL % 256 == 0
PL = QL + 4096
RED = PL + 4096
HL = RED + 4096; HS = 144
MX = 128
FP = 192
GX = HL + 640
LDS_TOTAL = GX + 512
C_WA, C_G, C_XN, F_Q, C_MX, C_P, F_WT, C_QP, C_Y, C_HP, T_A, T_B, F_K, TAGW = [4 * i for i in range(14)]

WS_Q = 0x1000
WS_H = WS_Q + 0x40000
WS_L = WS_H + 0x40000
WS_D = WS_L + 0x4000
WS_M = WS_D + 0x80000
WS_S = 0x150000
WS_T = WS_S + 0x80000
WS_N = 0
WS_O = 0x200000
WS_END = WS_O + 0x80000
STAMP = 0x8000000

class G:
    def __init__(s, **kw):
        s.o = []
        s.nl = 0
        s.kw = kw
        s.stamps = kw.get('stamps', False)
    def a(s, t):
        for l in t.split('\n'):
            l = l.strip()
            if l: s.o.append(l)
    def lab(s, p='L'):
        s.nl += 1
        return f'{p}_{s.nl}'
    def stamp(s, i):
        pr = s.kw.get('probe')
        only = s.kw.get('only')
        if (s.stamps and (only is None or i in only or i == 0)) or (pr and i in (0, pr[1])):
            s.a(f's_memrealtime s[{64+2*i}:{65+2*i}]')
    def budget(s):
        s.a('s_sub_u32 s46, s46, 1\ns_cbranch_scc1 L_end')
    def wait_flag(s, off, n, extra=None, sleep=0, vt='v9'):
        L = s.lab('W')
        if sleep:
            L2 = s.lab('W')
            s.a(f's_branch {L2}\n{L}:\ns_sleep {sleep}\n{L2}:')
        else:
            s.a(f'{L}:')
        s.a(f'ds_read_b32 {vt}, v8 offset:{off}')
        ne = 0
        if extra:
            for e in extra: s.a(e)
            ne = len(extra)
        s.budget()
        s.a(f's_waitcnt lgkmcnt({0 if (s.stamps and not s.kw.get("lean")) or (s.kw.get("safeA") and ne > 6) else min(ne, 15)})')
        s.a(f'v_cmp_gt_u32 vcc, {n}, {vt}')
        s.a(f's_cbranch_vccnz {L}')
    def signal(s, off):
        s.a(f's_mov_b64 exec, 1\nds_add_u32 v8, v6 offset:{off}\ns_mov_b64 exec, -1')
    def srd(s, d, p):
        s.a(f's_mov_b32 s{d}, s{p}\ns_mov_b32 s{d+1}, s{p+1}')
    def srd_const(s, d, n):
        s.a(f's_mov_b32 s{d+2}, {n}\ns_mov_b32 s{d+3}, 0x20000')
    def wave_sum(s, v, sd):
        for m in ('quad_perm:[1,0,3,2]', 'quad_perm:[2,3,0,1]', 'row_half_mirror', 'row_mirror'):
            s.a(f'v_add_f32_dpp {v}, {v}, {v} {m} row_mask:0xf bank_mask:0xf')
        s.a(f'v_add_f32_dpp {v}, {v}, {v} row_bcast:15 row_mask:0xa bank_mask:0xf')
        s.a(f'v_add_f32_dpp {v}, {v}, {v} row_bcast:31 row_mask:0xc bank_mask:0xf')
        s.a(f'v_readlane_b32 {sd}, {v}, 63')
    def rows_allreduce(s, op, v, t):
        s.a(f'v_mov_b32 {t}, {v}\nv_permlane16_swap_b32 {t}, {v}\n{op} {v}, {t}, {v}')
        s.a(f'v_mov_b32 {t}, {v}\nv_permlane32_swap_b32 {t}, {v}\n{op} {v}, {t}, {v}')
    def layernorm(s, src, f, t):
        P = lambda r: f'v[{r}:{r+1}]'
        for k in range(4):
            s.a(f'v_lshlrev_b32 v{f+2*k}, 16, v{src+k}\nv_and_b32 v{f+2*k+1}, s55, v{src+k}')
        s.a(f'v_pk_add_f32 {P(t)}, {P(f)}, {P(f+2)}\nv_pk_add_f32 {P(t+2)}, {P(f+4)}, {P(f+6)}\nv_pk_add_f32 {P(t)}, {P(t)}, {P(t+2)}\nv_add_f32 v{t}, v{t}, v{t+1}')
        s.wave_sum(f'v{t}', 's10')
        s.a(f'v_mov_b32 v{src+3}, {hex(f2u(1/512))}')
        s.a(f'v_mul_f32 v{src}, s10, v{src+3}')
        for k in range(4):
            s.a(f'v_pk_add_f32 {P(t+2*k)}, {P(f+2*k)}, {P(src)} op_sel_hi:[1,0] neg_lo:[0,1] neg_hi:[0,1]')
        s.a(f'v_pk_mul_f32 {P(t)}, {P(t)}, {P(t)}')
        for k in range(1, 4):
            s.a(f'v_pk_fma_f32 {P(t)}, {P(t+2*k)}, {P(t+2*k)}, {P(t)}')
        s.a(f'v_add_f32 v{t}, v{t}, v{t+1}')
        s.a(f'v_cvt_pk_bf16_f32 v{src}, v{src}, v{src}\nv_lshlrev_b32 v{src}, 16, v{src}')
        ms = ['quad_perm:[1,0,3,2] row_mask:0xf', 'quad_perm:[2,3,0,1] row_mask:0xf', 'row_half_mirror row_mask:0xf', 'row_mirror row_mask:0xf', 'row_bcast:15 row_mask:0xa', 'row_bcast:31 row_mask:0xc']
        fill = [f'v_pk_add_f32 {P(f+2*k)}, {P(f+2*k)}, {P(src)} op_sel_hi:[1,0] neg_lo:[0,1] neg_hi:[0,1]' for k in range(4)]
        fill += [f'v_cvt_pk_bf16_f32 v{t+2+k}, v{f+2*k}, v{f+2*k+1}' for k in range(4)]
        for k in range(4): fill += [f'v_lshlrev_b32 v{f+2*k}, 16, v{t+2+k}', f'v_and_b32 v{f+2*k+1}, s55, v{t+2+k}']
        for m in ms:
            s.a(f'v_add_f32_dpp v{t}, v{t}, v{t} {m} bank_mask:0xf')
            s.a(fill.pop(0)); s.a(fill.pop(0))
        s.a(f'v_readlane_b32 s10, v{t}, 63')
        s.a(fill.pop(0)); s.a(fill.pop(0))
        s.a(f'v_mul_f32 v{src}, s10, v{src+3}')
        s.a(f'v_cvt_pk_bf16_f32 v{src}, v{src}, v{src}\nv_lshlrev_b32 v{src}, 16, v{src}')
        s.a(f'v_add_f32 v{src}, {hex(f2u(1e-5))}, v{src}')
        s.a(f'v_cvt_pk_bf16_f32 v{src}, v{src}, v{src}\nv_lshlrev_b32 v{src}, 16, v{src}')
        s.a(f'v_sqrt_f32 v{src}, v{src}')
        s.a(fill.pop(0))
        s.a(f'v_cvt_pk_bf16_f32 v{src}, v{src}, v{src}\nv_lshlrev_b32 v{src}, 16, v{src}')
        s.a(f'v_rcp_f32 v{src}, v{src}')
        s.a(fill.pop(0))
        assert not fill
        for k in range(4):
            s.a(f'v_pk_mul_f32 {P(f+2*k)}, {P(f+2*k)}, {P(src)} op_sel_hi:[1,0]')
        for k in range(4):
            s.a(f'v_cvt_pk_bf16_f32 v{src+k}, v{f+2*k}, v{f+2*k+1}')
    def round_bf16(s, v):
        s.a(f'v_cvt_pk_bf16_f32 {v}, {v}, {v}\nv_lshlrev_b32 {v}, 16, {v}')
    def tag_finish(s):
        s.a('s_mul_i32 s44, s44, 0x2c9277b5\ns_add_u32 s44, s44, 0xac564b05')
    def pack24(s, d, a, b, c, e):
        s.a(f'v_perm_b32 v{d}, v{a}, v{e}, s50\nv_perm_b32 v{d+1}, v{b}, v{e}, s51\nv_perm_b32 v{d+2}, v{c}, v{e}, s52')
    def pack24_consts(s):
        s.a('s_mov_b32 s50, 0x07060503\ns_mov_b32 s51, 0x07060502\ns_mov_b32 s52, 0x07060501')
    def unpack24(s, r):
        s.a(f'v_perm_b32 v{r+3}, v{r}, v{r+1}, s53\nv_perm_b32 v{r+3}, v{r+3}, v{r+2}, s54')
    def unpack24_consts(s):
        s.a('s_mov_b32 s53, 0x04000c0c\ns_mov_b32 s54, 0x0706000c')
    def reduce32(s, r):
        s.a(f'v_permlane32_swap_b32 v{r}, v{r+2}\nv_permlane32_swap_b32 v{r+1}, v{r+3}')
        s.a(f'v_add_f32 v{r}, v{r}, v{r+2}\nv_add_f32 v{r+1}, v{r+1}, v{r+3}')
        s.a(f'v_permlane16_swap_b32 v{r}, v{r+1}\nv_add_f32 v{r}, v{r}, v{r+1}')
        for m in ('row_ror:8', 'row_ror:4', 'row_ror:2'):
            s.a(f'v_add_f32_dpp v{r}, v{r}, v{r} {m} row_mask:0xf bank_mask:0xf')
    def mfma(s, d, A, B, first):
        s.a(f'v_mfma_f32_16x16x32_bf16 v[{d}:{d+3}], v[{A}:{A+3}], v[{B}:{B+3}], {"0" if first else f"v[{d}:{d+3}]"}')
    def mlp_slot(s, d, t):
        ha = s.kw.get('ha', 4)
        s.a(f's_mul_i32 s{d}, s5, 6\ns_add_u32 s{d}, s{d}, s3\ns_cmp_gt_u32 s3, {ha}\ns_cselect_b32 s{t}, 2, 0\ns_sub_u32 s{d}, s{d}, s{t}\ns_lshl_b32 s{d}, s{d}, 1')
        s.a(f's_lshl2_add_u32 s{t}, s3, s5\ns_add_u32 s{t}, s{t}, {48-4*ha}')
        s.a(f's_bitcmp1_b32 {3 << ha}, s3\ns_cselect_b32 s{d}, s{t}, s{d}')
    def hint(s, name, off, nq, tries, sub):
        a = s.a
        a(f's_lshl_b32 s48, s3, 7\ns_add_u32 s48, s48, {WS_N + off}\ns_add_u32 s49, s48, s4')
        a('s_and_b32 s50, s44, 0xff\ns_mul_i32 s50, s50, 0x01010101\ns_mov_b32 s51, s50\nv_mov_b32 v21, s50')
        if sub: a('s_andn2_b32 s48, s49, 7')
        a(f's_mov_b32 s47, {tries}')
    def hint_go(s, name, nq):
        a = s.a
        a('s_mov_b64 exec, 1\nbuffer_store_byte v21, v8, s[40:43], s49 offen\ns_mov_b64 exec, -1')
        a(f'L_{name}:')
        a(f's_load_dwordx{2*nq} s[52:{51+2*nq}], s[40:41], s48 glc')
        a(f's_sub_u32 s47, s47, 1\ns_cbranch_scc1 L_{name}d\ns_waitcnt lgkmcnt(0)')
        for k in range(nq): a(f's_xor_b64 s[{52+2*k}:{53+2*k}], s[{52+2*k}:{53+2*k}], s[50:51]')
        for k in range(1, nq): a(f's_or_b64 s[52:53], s[52:53], s[{52+2*k}:{53+2*k}]')
        a(f's_cbranch_scc1 L_{name}\nL_{name}d:\ns_waitcnt lgkmcnt(0)')
    def dump_stamps(s, nst=16):
        if not s.stamps: return
        s.a('s_waitcnt lgkmcnt(0)\ns_mov_b64 exec, -1\nv_mov_b32 v10, 0')
        for i in range(nst):
            s.a(f'v_writelane_b32 v10, s{64+2*i}, {i}')
        s.a(f's_mul_i32 s10, s2, {NW*64}\ns_lshl_b32 s11, s7, 6\ns_add_u32 s10, s10, s11\ns_add_u32 s10, s10, {STAMP}')
        s.a('v_lshlrev_b32 v11, 2, v1\ns_mov_b64 exec, 0xffff\nbuffer_store_dword v10, v11, s[40:43], s10 offen ' + s.kw.get('stfl', ''))

def gen(**kw):
    s = G(**kw)
    a = s.a
    depth = kw.get('depth', 20)
    NT = kw.get('nt', 'nt')
    npq = kw.get('npq', 2); gapq = kw.get('gapq', 12); q0 = kw.get('q0', 4)
    npl = kw.get('npl', 4); gapl = kw.get('gapl', 6)
    CSC = math.log2(math.e) / math.sqrt(128)
    ONE2 = 0x3f803f80
    order = kw.get('order', '11kkkkkkkk22vvvvvvvvoooo')
    TH = {c: [i + 1 for i, x in enumerate(order) if x == c] for c in '1k2vo'}
    assert [len(TH[c]) for c in '1k2vo'] == [2, 8, 2, 8, 4]
    marks = {TH['1'][1], TH['2'][1], TH['o'][3], len(order) - (kw.get('oe') or 0), kw.get('qg') or 2} | set(TH['k'][1::2]) | set(TH['v'][1::2])
    def common():
        if s.stamps:
            for i in range(1, 16): a(f's_mov_b32 s{64+2*i}, 0')
        a('v_and_b32 v1, 63, v0\ns_lshr_b32 s5, s4, 3\ns_and_b32 s6, s4, 7')
        a(f's_mov_b32 s42, {STAMP + 0x100000 if s.stamps else WS_END}\ns_mov_b32 s43, 0x20000')
        a(f's_mov_b32 s46, {kw.get("budget", 5000000)}')
        a('v_mov_b32 v6, 1')
        a('v_lshrrev_b32 v2, 4, v1\nv_and_b32 v3, 15, v1')
    s.stamp(0)
    a('s_load_dwordx16 s[16:31], s[0:1], 0\ns_load_dwordx8 s[32:39], s[0:1], 64\ns_load_dwordx2 s[40:41], s[0:1], 96')
    a('s_lshr_b32 s4, s2, 3\ns_cmp_ge_u32 s4, 32\ns_cbranch_scc1 L_exit')
    a('v_lshrrev_b32 v2, 6, v0\nv_bfe_u32 v4, v0, 3, 3')
    a('v_mov_b32 v8, 0\nds_write_b8 v0, v8')
    if kw.get('prefetch', True):
        a('s_getpc_b64 s[8:9]\nL_pc:')
        if kw.get('pf2'):
            a('s_lshl_b32 s10, s4, 7\nv_lshl_add_u32 v3, v0, 12, s10\nv_min_u32 v3, L_exit-L_pc, v3\nglobal_load_dword v7, v3, s[8:9]')
        else:
            a('v_lshlrev_b32 v3, 7, v0\nv_min_u32 v3, L_exit-L_pc, v3\nglobal_load_dword v7, v3, s[8:9]')
    a('v_readfirstlane_b32 s7, v2')
    a('v_and_b32 v5, 6, v4\nv_xor_b32 v5, v5, v0\nv_and_b32 v5, 7, v5\nv_lshlrev_b32 v5, 4, v5')
    a('s_and_b32 s3, s2, 7\ns_cmp_eq_u32 s7, 6\ns_cbranch_scc1 L_L\ns_cmp_ge_u32 s7, 4\ns_cbranch_scc1 L_PM')
    a('s_mov_b32 s51, 0x20000\nv_lshlrev_b32 v11, 4, v0')
    a('s_lshr_b32 s10, s4, 3\ns_lshl2_add_u32 s10, s10, s7\ns_lshl_b32 s10, s10, 18\ns_and_b32 s11, s4, 7\ns_lshl3_add_u32 s11, s3, s11\ns_xor_b32 s11, s11, ' + str(kw.get('rq', 0)) + '\ns_lshl_b32 s11, s11, 7\ns_add_u32 s10, s10, s11')
    a(f's_bfm_b32 s50, 1, 22\ns_bfm_b32 s12, 6, 10\nv_lshl_add_u32 v10, v4, 13, v5\ns_lshl_b32 m0, s7, 12\ns_addk_i32 m0, {WA}')
    a('s_waitcnt lgkmcnt(0)')
    a('s_mov_b64 s[48:49], s[22:23]')
    a('global_load_dwordx4 v[12:15], v11, s[16:17]')
    for r in range(4):
        a(f'buffer_load_dwordx4 v10, s[48:51], s10 offen offset:{r*1024} {NT} lds')
        if r < 3: a('s_add_u32 s10, s10, s12')
    a('s_branch L_C')
    a('L_L:')
    if kw.get('lprio'): a(f's_setprio {kw["lprio"]}')
    a('s_barrier')
    common()
    rq, r2 = kw.get('rq', 0), kw.get('r2', 0)
    s.mlp_slot(10, 11)
    a('s_cselect_b32 s11, 64, 0\ns_cselect_b32 s8, 30, 15')
    a('v_and_b32 v14, s11, v5\nv_lshl_add_u32 v14, v14, 24, v5\nv_mul_u32_u24 v32, 3584, v4\nv_add_u32 v32, v32, v14')
    for r in range(1, 4): a(f'v_add_u32 v{32+r}, {r*(8*3584-1024)}, v32')
    a('v_xor_b32 v14, v3, v2\nv_lshlrev_b32 v14, 4, v14\nv_lshl_add_u32 v18, v2, 8, v14')
    for r in range(1, 4): a(f'v_xor_b32 v{18+r}, {r*64}, v18\nv_add_u32 v{18+r}, {r*7168}, v{18+r}')
    a(f's_mov_b32 s50, {512*3584}\ns_mov_b32 s51, 0x20000\ns_lshl_b32 s8, 1, s8')
    a(f's_mul_i32 s12, s6, {64*3584}\ns_lshl_b32 s11, s10, 6\ns_add_u32 s12, s12, s11')
    a(f's_lshl_b32 s13, s5, 23\ns_lshl_b32 s11, s3, 20\ns_add_u32 s13, s13, s11\ns_lshl_b32 s11, s6, 10\ns_add_u32 s13, s13, s11\ns_add_u32 s13, s13, {3072*256}')
    a('s_bfm_b32 s54, 1, 25\ns_mov_b32 s55, s51\ns_mov_b32 s14, s13')
    a('s_waitcnt lgkmcnt(0)')
    s.stamp(1)
    dg = depth // 4
    segs = {'1': (32, 48, 28, 12, 32 * 3584, W1), 'k': (18, 52, 18, 13, 32768, KB), 'v': (22, 56, 20, 14, 32768, VB),
            '2': (26, 60, 32, 15, 's8', W2), 'o': (26, 96, 24, 9, 32768, WO)}
    cnt = {c: 0 for c in segs}
    late = False
    prof = kw.get('prof')
    prof = [int(x, 16) for x in prof] if prof else [dg] * len(order)
    assert len(prof) == len(order)
    landed = 0
    first_wait = min(gi for gi in range(len(order)) if gi + 1 > prof[gi])
    for gi, c in enumerate(order):
        vr, sd, ptr, so, step, lds = segs[c]
        if gi == first_wait:
            a('v_lshlrev_b32 v14, 1, v2\nv_xor_b32 v14, v3, v14\nv_lshlrev_b32 v14, 4, v14\nv_lshl_add_u32 v22, v2, 8, v14')
            a(f'v_xor_b32 v23, 128, v22\nv_add_u32 v24, {2*7168}, v22\nv_add_u32 v25, {3*7168}, v23\nv_add_u32 v23, 7168, v23')
            a('v_lshl_add_u32 v26, v4, 10, v5')
            for r in range(1, 4): a(f'v_add_u32 v{26+r}, {r*7168}, v26')
            a(f's_mov_b32 s58, s54\ns_mov_b32 s59, s51\ns_mov_b32 s62, {1792*1024}\ns_mov_b32 s63, s51\ns_bfm_b32 s98, 1, 22\ns_mov_b32 s99, s51')
            s.srd(56, 20); s.srd(60, 32); s.srd(96, 24)
            a(f's_add_u32 s11, s6, {r2}\ns_and_b32 s11, s11, 7\ns_lshl_b32 s11, s11, 7\ns_lshl_b32 s15, s10, 15\ns_add_u32 s15, s15, s11')
            a('s_lshl2_add_u32 s9, s3, s5\ns_lshl_b32 s9, s9, 17\ns_lshl_b32 s11, s6, 7\ns_add_u32 s9, s9, s11')
            s.stamp(2)
            late = True
        assert late or c in '1k'
        if cnt[c] == 0 and c in '1k': s.srd(sd, ptr)
        a(f's_mov_b32 m0, {lds + cnt[c] * 4096}')
        if cnt[c]: a(f's_add_u32 s{so}, s{so}, {step}')
        while landed < gi + 1 - prof[gi]:
            landed += 1
            if landed in marks or landed == gi + 1 - prof[gi]:
                a(f's_waitcnt vmcnt({(gi-landed)*4})')
            if landed in marks:
                a(f'v_mov_b32 v30, {landed}\nds_write_b32 v8, v30 offset:{C_G}')
                if landed == TH['v'][7]: s.stamp(6)
        for r in range(4):
            fine = kw.get('fine')
            if fine and gi * 4 + r >= fine and (r or fine - 1 < (gi - landed) * 4): a(f's_waitcnt vmcnt({fine-1})')
            fl = kw.get('nt' + c, NT)
            a(f'buffer_load_dwordx4 v{vr+r}, s[{sd}:{sd+3}], s{so} offen offset:{r*1024} {fl} lds')
        cnt[c] += 1
    for n in range(landed + 1, len(order) + 1):
        if n in marks:
            if kw.get('obar') and n == len(order) and n != TH['v'][7]:
                a('s_waitcnt vmcnt(0)')
            else:
                a(f'v_mov_b32 v30, {n}\ns_waitcnt vmcnt({(len(order)-n)*4})\nds_write_b32 v8, v30 offset:{C_G}')
            if n == TH['v'][7]: s.stamp(6)
    s.stamp(7)
    if kw.get('obar'): a('s_barrier')
    a('s_branch L_end')

    if kw.get('shift'): a('s_nop 0')
    a('L_PM:')
    a('s_barrier')
    common()
    ns = kw.get('nsamp', 1)
    if kw.get('spread'):
        nb, base = kw['spread']
        a(f's_xor_b32 s9, s7, s4\ns_and_b32 s9, s9, 1\ns_lshl_b32 s10, s3, 5\ns_add_u32 s10, s10, s4\ns_and_b32 s10, s10, {nb-1}\ns_lshl1_add_u32 s10, s10, s9\ns_lshl_b32 s10, s10, 6\ns_mul_i32 s11, s2, 5\ns_and_b32 s11, s11, 63\ns_add_u32 s10, s10, s11\ns_lshl_b32 s10, s10, 7\ns_add_u32 s10, s10, {base}')
    else:
        a(f's_xor_b32 s9, s7, s4\ns_and_b32 s9, s9, 1\ns_lshr_b32 s10, s2, 6\ns_lshl1_add_u32 s10, s10, s9\ns_lshl_b32 s10, s10, 6\ns_and_b32 s11, s2, 63\ns_add_u32 s10, s10, s11\ns_lshl_b32 s10, s10, 7\ns_add_u32 s10, s10, {WS_T}')
    a('s_waitcnt lgkmcnt(0)')
    if kw.get('tlb'):
        a('s_lshl3_add_u32 s11, s5, s3\ns_lshl_b32 s11, s11, 10\ns_add_u32 s11, s11, s6\ns_addk_i32 s11, 768\ns_lshl_b32 s11, s11, 10\nv_mov_b32 v10, s11')
        a('s_lshl2_add_u32 s11, s3, s5\ns_lshl_b32 s11, s11, 10\ns_add_u32 s11, s11, s6\ns_lshl_b32 s11, s11, 7\nv_mov_b32 v11, s11')
        a(f's_lshl_b32 s11, s2, 7\nv_mov_b32 v12, s11\ns_add_u32 s11, s11, {WS_T + 0x10000}\nv_mov_b32 v13, s11')
        a('s_mov_b64 exec, 1\ns_cmp_eq_u32 s7, 4\ns_cbranch_scc0 L_tl5')
        a('global_load_dword v7, v10, s[20:21] nt\nglobal_load_dword v7, v11, s[24:25] nt\ns_branch L_tl6')
        a('L_tl5:\nglobal_load_dword v7, v12, s[32:33] nt\nglobal_load_dword v7, v13, s[40:41] nt')
        a('L_tl6:\ns_mov_b64 exec, -1')
    if kw.get('pd'): a(f's_sleep {kw["pd"]}')
    a('s_memtime s[12:13]\ns_load_dword s11, s[40:41], s10')
    if ns == 2: a('s_add_u32 s10, s10, 0x10000\ns_waitcnt lgkmcnt(0)\ns_load_dword s11, s[40:41], s10')
    a('s_waitcnt lgkmcnt(0)\ns_memtime s[14:15]\ns_lshl_b32 s10, s9, 2\nv_mov_b32 v10, s10\ns_waitcnt lgkmcnt(0)')
    a(f's_sub_u32 s12, s14, s12\nv_mov_b32 v11, s12\nds_write_b32 v10, v11 offset:{T_A}')
    a('s_cmp_eq_u32 s7, 4\ns_cbranch_scc1 L_P\ns_branch L_M')
    a('L_C:')
    if kw.get('clk'): a('s_memtime s[90:91]\ns_memrealtime s[88:89]')
    a('s_load_dword s44, s[40:41], 0')
    a('s_lshl_b32 s10, s3, 5\ns_add_u32 s10, s10, s4\ns_lshl1_add_u32 s11, s10, s7\ns_lshl2_add_u32 s10, s10, s7')
    a(f's_lshl_b32 s10, s10, 8\ns_add_u32 s10, s10, {WS_D}\ns_lshl_b32 s11, s11, 4\ns_add_u32 s11, s11, {WS_L}')
    a('v_and_b32 v16, 15, v0\nv_lshl_add_u32 v16, v16, 4, s10\nv_writelane_b32 v16, s11, 16')
    a('v_mov_b32 v20, -1\nv_mov_b32 v21, -1\nv_mov_b32 v22, -1\nv_mov_b32 v23, -1')
    a('s_cmp_lt_u32 s7, 2\ns_cselect_b32 s10, 17, 16\ns_bfm_b64 exec, s10, 0\nglobal_store_dwordx4 v16, v[20:23], s[40:41]\ns_mov_b64 exec, -1')
    a('s_barrier')
    a(f's_setprio {kw.get("cprio", 2)}')
    common()
    s.stamp(1)
    if 'C' in kw.get('kill', ''): a('s_waitcnt vmcnt(0)\ns_branch L_end')
    a('v_bfe_u32 v4, v1, 2, 2\nv_and_b32 v5, 3, v1')
    a(f's_mul_i32 s11, s7, {XS}\ns_add_u32 s11, s11, {XN}')
    a('v_lshrrev_b32 v10, 2, v1\nv_lshlrev_b32 v10, 6, v10\nv_and_b32 v11, 1, v1\nv_lshl_add_u32 v10, v11, 5, v10\nv_and_b32 v11, 2, v1\nv_lshl_add_u32 v10, v11, 2, v10\nv_add_u32 v11, s11, v10')
    a('s_mov_b32 s55, 0xffff0000')
    a('v_lshl_add_u32 v27, v2, 2, v4\nv_bfe_u32 v96, v27, 1, 2\nv_lshlrev_b32 v96, 5, v96\nv_lshl_add_u32 v96, v27, 7, v96\nv_lshl_add_u32 v96, v5, 3, v96')
    a('s_lshl_b32 s12, s7, 5\nv_xor_b32 v10, s12, v96')
    a('s_getreg_b32 s45, hwreg(HW_REG_XCC_ID, 0, 4)')
    a(f'v_mul_u32_u24 v24, {XS}, v5\nv_lshl_add_u32 v24, v2, 4, v24')
    a(f's_lshl_b32 s10, s5, 8\ns_add_u32 s10, s10, {XN}\nv_add_u32 v25, s10, v24')
    a(f's_lshl_b32 s10, s6, 7\ns_add_u32 s10, s10, {YL}\nv_add_u32 v24, s10, v24')
    a(f's_lshl_b32 s14, s3, 15\ns_lshl1_add_u32 s14, s12, s14\ns_lshl_b32 s13, s4, 8\ns_xor_b32 s58, s13, {rq*256}\ns_add_u32 s58, s14, s58\ns_add_u32 s58, s58, {WS_Q}')
    a(f's_lshl2_add_u32 s59, s13, s14\ns_add_u32 s59, s59, {WS_H}')
    a('v_lshlrev_b32 v106, 13, v3\nv_lshl_add_u32 v106, v2, 4, v106\nv_lshlrev_b32 v107, 4, v1\nv_mov_b32 v30, ' + str(kw.get('clamp', 384)) + '\nv_sub_u32 v31, 0, v30')
    s.pack24_consts()
    a('s_mov_b32 s13, 1')
    a('s_waitcnt vmcnt(5)')
    if not kw.get('ackst'): s.stamp(2)
    a('L_ln:')
    s.layernorm(12, 16, 32)
    a(f'ds_write2_b64 v11, v[12:13], v[14:15] offset1:2\nv_add_u32 v11, {YL-XN}, v11')
    a('s_sub_u32 s13, s13, 1\ns_cbranch_scc0 L_ln')
    s.stamp(3)
    a('s_waitcnt vmcnt(0) lgkmcnt(0)')
    if kw.get('st_tile'): s.stamp(5)
    s.signal(C_WA)
    s.tag_finish()
    a(f'v_mov_b32 v111, s44\nv_mov_b32 v115, s44\nds_write_b32 v8, v111 offset:{TAGW}')
    s.wait_flag(C_WA, 4, extra=[f'ds_read_b64 v[28:29], v8 offset:{T_A}'] + [x for t in range(4) for x in (f'ds_read_b128 v[{64+4*t}:{67+4*t}], v25 offset:{t*64}',
                f'ds_read_b64_tr_b16 v[{40+4*t}:{41+4*t}], v10 offset:{WA+t*4096}', f'ds_read_b64_tr_b16 v[{42+4*t}:{43+4*t}], v10 offset:{WA+t*4096+2048}')])
    for t in range(4):
        a(f's_waitcnt lgkmcnt({9-3*t})')
        s.mfma(16, 40 + 4 * t, 64 + 4 * t, t == 0)
        if t == 0: a('v_sub_u32 v110, v28, v29\nv_min_u32 v28, v28, v29')
        if t == 1: a('v_cmp_ne_u32 vcc, 0, v28\nv_med3_i32 v110, v110, v30, v31')
        if t == 2: a(('v_sub_u32 v29, 0, v110\nv_cndmask_b32 v110, v29, v110, vcc' if kw.get('miss', 1) else 'v_cndmask_b32 v110, 0, v110, vcc') + '\nv_lshl_or_b32 v110, v110, 4, s45')
    for t in range(2): a(f'ds_read_b128 v[{80+4*t}:{83+4*t}], v24 offset:{t*64}')
    a('s_mov_b32 exec_lo, 0x000f000f\ns_mov_b32 exec_hi, 0x000f000f')
    a('v_cvt_pk_bf16_f32 v108, v16, v17\nv_cvt_pk_bf16_f32 v109, v18, v19')
    a('buffer_store_dwordx4 v[108:111], v106, s[40:43], s58 offen')
    if kw.get('qe'): s.signal(C_QP)
    else: a('s_mov_b64 exec, -1')
    if not kw.get('ackst'): s.stamp(4)
    s.wait_flag(C_G, TH['1'][1], extra=[f'ds_read_b64_tr_b16 v[{40+2*t}:{41+2*t}], v10 offset:{W1+t*2048}' for t in range(4)], sleep=1)
    for t in range(2):
        a(f's_waitcnt lgkmcnt({2-2*t})')
        s.mfma(16, 40 + 4 * t, 80 + 4 * t, t == 0)
    a('s_mov_b32 exec_lo, 0x000f000f\ns_mov_b32 exec_hi, 0x000f000f')
    s.pack24(112, 16, 17, 18, 19)
    a('buffer_store_dwordx4 v[112:115], v107, s[40:43], s59 offen')
    if kw.get('he'): s.signal(C_HP)
    else: a('s_mov_b64 exec, -1')
    if 'Q' in kw.get('kill', ''): a('s_branch L_end')
    a(f's_lshl_b32 s10, s7, 13\ns_add_u32 s10, s10, {KB}')
    a(f'v_xor_b32 v10, v2, v3\nv_lshlrev_b32 v10, 4, v10\nv_lshl_add_u32 v10, v3, 8, v10\nv_add_u32 v102, {QL}, v10\nv_add_u32 v10, s10, v10')
    a('v_xor_b32 v103, 64, v102\nv_xor_b32 v104, 128, v102\nv_xor_b32 v105, 192, v102')
    a('v_xor_b32 v11, 64, v10\nv_xor_b32 v12, 128, v10\nv_xor_b32 v13, 192, v10')
    a(f's_lshl_b32 s10, s7, 2\ns_add_u32 s10, s10, {MX}\nv_lshlrev_b32 v15, 4, v5\nv_add_u32 v24, s10, v15\nv_add_u32 v15, {MX}, v15\ns_add_u32 s10, s10, {FP-MX}\nv_mov_b32 v14, s10')
    a(f's_lshl_b32 s10, s7, 10\ns_add_u32 s10, s10, {PL}\nv_lshlrev_b32 v25, 4, v1\nv_add_u32 v26, s10, v25\nv_add_u32 v25, {PL}, v25')
    a('v_and_b32 v28, 7, v27\ns_lshl_b32 s10, s7, 1\nv_xor_b32 v28, s10, v28\nv_lshlrev_b32 v28, 5, v28\nv_lshl_add_u32 v28, v27, 8, v28\nv_lshl_add_u32 v28, v5, 3, v28')
    a(f'v_add_u32 v28, {VB}, v28\nv_xor_b32 v29, 32, v28')
    a(f's_lshr_b32 s10, s7, 1\ns_lshl_b32 s11, s10, 13\ns_add_u32 s11, s11, {WO}')
    a('v_add_u32 v96, s11, v96\nv_xor_b32 v97, 32, v96\nv_xor_b32 v98, 64, v96\nv_xor_b32 v99, 96, v96')
    a('v_lshlrev_b32 v30, 14, v3\nv_lshl_add_u32 v30, v2, 8, v30')
    a(f's_lshl_b32 s14, s3, 16\ns_add_u32 s14, s14, {WS_O}')
    a('s_lshr_b32 s11, s4, 4\ns_lshl2_add_u32 s11, s11, s7\ns_lshl_b32 s11, s11, 11\ns_and_b32 s12, s4, 15\ns_lshl4_add_u32 s11, s12, s11')
    a('v_lshlrev_b32 v31, 4, v1')
    a('s_xor_b32 s12, s3, s6\ns_and_b32 s12, s12, 4\ns_lshl_b32 s12, s12, 11\nv_or_b32 v101, s12, v31')
    a('s_lshl_b32 s15, s5, 14\ns_add_u32 s15, s15, s14\ns_lshl_b32 s10, s10, 12\ns_add_u32 s15, s15, s10\ns_and_b32 s10, s7, 1\ns_lshl_b32 s12, s10, 13\ns_add_u32 s15, s15, s12')
    a('s_add_u32 s14, s14, s11')
    a('v_lshlrev_b32 v88, 13, v3\nv_lshl_add_u32 v88, v2, 8, v88\nv_lshlrev_b32 v89, 8, v3\nv_lshlrev_b32 v90, 3, v3')
    a(f's_lshr_b32 s11, s4, 4\ns_lshl3_add_u32 s10, s3, s11\ns_lshl2_add_u32 s96, s10, s7\ns_lshl_b32 s96, s96, 10\ns_and_b32 s12, s4, 15\ns_lshl4_add_u32 s96, s12, s96\ns_add_u32 s96, s96, {WS_D}')
    a(f's_lshl_b32 s97, s10, 7\ns_lshl3_add_u32 s97, s12, s97\ns_add_u32 s97, s97, {WS_L}')
    a(f's_lshl2_add_u32 s10, s3, s5\ns_and_b32 s11, s7, 1\ns_lshl1_add_u32 s10, s10, s11\ns_lshr_b32 s11, s7, 1\ns_lshl1_add_u32 s98, s10, s11\ns_lshl_b32 s98, s98, 11\ns_add_u32 s98, s98, {WS_D}')
    a(f's_lshl_b32 s99, s10, 7\ns_add_u32 s99, s99, {WS_L}')
    a(f'v_lshlrev_b32 v100, 9, v2\nv_lshl_add_u32 v100, v3, 4, v100\nv_add_u32 v100, {RED}, v100')
    a(f's_lshr_b32 s10, s3, 1\ns_lshl2_add_u32 s56, s6, s10\ns_and_b32 s10, s3, 1\ns_lshl2_add_u32 s56, s56, s10\ns_lshl2_add_u32 s56, s56, s5\ns_lshl_b32 s56, s56, 10\ns_add_u32 s56, s56, {WS_S}\ns_add_u32 s63, s56, 8192')
    a('v_lshrrev_b32 v119, 1, v1\nv_lshlrev_b32 v119, 10, v119\nv_and_b32 v16, 1, v1\nv_lshl_add_u32 v119, v16, 4, v119')
    a(f's_lshl_b32 s60, s3, 15\ns_lshl_b32 s11, s4, 5\ns_add_u32 s60, s60, s11\ns_add_u32 s62, s60, {WS_M}\ns_add_u32 s60, s60, {WS_S}')
    a('v_lshl_add_u32 v117, v2, 13, v119')
    a(f's_lshl_b32 s60, s3, 16\ns_add_u32 s60, s60, s11\ns_add_u32 s60, s60, {WS_S}')
    a(f's_mov_b32 s13, {hex(f2u(CSC))}')
    a('s_mov_b32 s12, s13')
    for k in range(4): a(f'v_mov_b32 v{124+k}, {hex(ONE2)}')
    kt = TH['k'][1::2]
    a(f's_lshl_b32 s57, s7, 3\ns_lshr_b32 s57, {kt[0] | kt[1] << 8 | kt[2] << 16 | kt[3] << 24}, s57\ns_and_b32 s57, s57, 0xff')
    if not kw.get('qe'):
        a('s_waitcnt vmcnt(1)')
        s.signal(C_QP)
    if not kw.get('he'):
        a('s_waitcnt vmcnt(0)')
        s.signal(C_HP)
    s.wait_flag(C_G, 's57', sleep=1)
    for u in range(2):
        for t in range(4):
            a(f'ds_read_b128 v[{32+16*u+4*t}:{35+16*u+4*t}], v{10+t} offset:{u*4096}')
    if not kw.get('st_tile') and not kw.get('ackst'): s.stamp(5)
    s.wait_flag(F_Q, 1, extra=[f'ds_read_b128 v[{64+4*t}:{67+4*t}], v{102+t}' for t in range(4)], sleep=kw.get('fqs', 0))
    s.stamp(6)
    a('v_readfirstlane_b32 s47, v9')
    a('s_cmp_lg_u32 s47, 1\ns_cbranch_scc1 L_qrem')
    a('L_qgo:')
    DP = lambda op, d, x, y, m, rm='0xf': f'{op}_dpp {d}, {x}, {y} {m} row_mask:{rm} bank_mask:0xf'
    for u in range(2):
        for t in range(4):
            if u == 0: a(f's_waitcnt lgkmcnt({3-t})')
            s.mfma(16 + 4 * u, 32 + 16 * u + 4 * t, 64 + 4 * t, t == 0)
    if kw.get('safeC'): a('s_nop 15')
    a('v_mov_b32 v40, s44\nv_mov_b32 v47, s44\nv_mov_b32 v123, s44')
    for u in range(2):
        for k in range(4): a(DP('v_add_f32', f'v{16+4*u+k}', f'v{16+4*u+k}', f'v{16+4*u+k}', 'row_ror:4'))
        for k in range(4): a(DP('v_add_f32', f'v{16+4*u+k}', f'v{16+4*u+k}', f'v{16+4*u+k}', 'row_ror:8'))
        if u == 0: a('v_max3_f32 v10, v16, v17, v18')
    a('v_max3_f32 v10, v10, v19, v20\nv_max3_f32 v11, v21, v22, v23\nv_max_f32 v10, v10, v11\nv_max_f32 v11, v10, v11')
    a('v_permlane16_swap_b32 v11, v10\nv_max_f32 v10, v11, v10\nv_max_f32 v11, v11, v10')
    a('v_permlane32_swap_b32 v11, v10\nv_max_f32 v10, v11, v10\nv_or_b32 v10, 1, v10')
    WB = 128; VR = 160
    vrd = lambda t: [f'ds_read_b64_tr_b16 v[{VR+8*t+4*T+2*u}:{VR+1+8*t+4*T+2*u}], v{28+T} offset:{t*8192+u*4096}' for T in range(2) for u in range(2)]
    cw = lambda n: 0 if (s.stamps and not kw.get('lean')) else n
    a('ds_write_b32 v24, v10')
    a(f'ds_read_b128 v[32:35], v15\nds_read_b32 v9, v8 offset:{C_G}')
    for x in vrd(0) + vrd(1) + vrd(2): a(x)
    a(f's_waitcnt lgkmcnt({cw(13)})\ns_branch L_mx2')
    a('L_mx:')
    a('ds_read_b128 v[32:35], v15')
    s.budget()
    a('s_waitcnt lgkmcnt(0)')
    a('L_mx2:')
    a('v_min3_u32 v11, v32, v33, v34\nv_max3_f32 v10, v32, v33, v34\nv_min_u32 v11, v11, v35\nv_max_f32 v10, v10, v35\nv_cmp_eq_u32 vcc, 0, v11\nv_mul_f32 v116, s13, v10\ns_cbranch_vccnz L_mx')
    for k in range(4): a(f'v_pk_fma_f32 v[{16+2*k}:{17+2*k}], v[{16+2*k}:{17+2*k}], s[12:13], v[116:117] op_sel_hi:[1,1,0] neg_lo:[0,0,1] neg_hi:[0,0,1]')
    for k in range(8): a(f'v_exp_f32 v{16+k}, v{16+k}')
    for k in range(4): a(f'v_cvt_pk_bf16_f32 v{32+k}, v{16+2*k}, v{17+2*k}')
    a('ds_write_b128 v26, v[32:35]\nds_write_b32 v14, v6')
    a('L_pw:')
    a(f'ds_read_b128 v[36:39], v8 offset:{FP}')
    for t in range(4): a(f'ds_read_b128 v[{64+4*t}:{67+4*t}], v25 offset:{t*1024}')
    a(f'ds_read_b32 v118, v8 offset:{C_G}')
    for x in vrd(3): a(x)
    a('v_mov_b32 v41, v116')
    s.budget()
    a(f's_waitcnt lgkmcnt({cw(9)})\nv_min3_u32 v11, v36, v37, v38\nv_min_u32 v11, v11, v39\nv_cmp_eq_u32 vcc, 0, v11\ns_cbranch_vccnz L_pw')
    s.stamp(7)
    def wo_reads(kss=(0, 1)):
        for ks in kss:
            for T in range(4):
                for u in range(2):
                    r = WB + 16 * ks + 4 * T + 2 * u
                    a(f'ds_read_b64_tr_b16 v[{r}:{r+1}], v{96+T} offset:{ks*4096+u*2048}')
    early = False
    a(f'v_cmp_gt_u32 vcc, {TH["v"][5]}, v9\ns_cbranch_vccz L_v012')
    s.wait_flag(C_G, TH['v'][5], extra=vrd(0) + vrd(1) + vrd(2), sleep=2)
    a('s_waitcnt lgkmcnt(0)')
    a('L_v012:')
    for t in range(3):
        a(f's_waitcnt lgkmcnt({8-t})')
        for T in range(2): s.mfma(16 + 4 * T, VR + 8 * t + 4 * T, 64 + 4 * t, t == 0)
        s.mfma(56, 124, 64 + 4 * t, t == 0)
    a('s_waitcnt lgkmcnt(4)')
    s.mfma(56, 124, 76, False)
    if kw.get('mle'):
        a('v_mov_b32 v93, v41\ns_cmp_eq_u32 s47, 1\ns_cselect_b32 s10, 15, 0\ns_cmp_eq_u32 s7, 0\ns_cselect_b32 s10, s10, 0')
        a('v_min_u32 v92, -2, v56\ns_cmp_eq_u32 s10, 0\ns_cbranch_scc1 L_mls\ns_mov_b64 exec, 15\nbuffer_store_dwordx2 v[92:93], v89, s[40:43], s97 offen\ns_mov_b64 exec, -1\nL_mls:')
    a(f'v_cmp_gt_u32 vcc, {TH["v"][7]}, v118\ns_cbranch_vccz L_v3')
    s.wait_flag(C_G, TH['v'][7], extra=vrd(3), sleep=kw.get('v3s', 0))
    a('L_v3:')
    if not kw.get('ind'): s.stamp(8)
    for T in range(2):
        a(f's_waitcnt lgkmcnt({2-2*T})')
        s.mfma(16 + 4 * T, VR + 24 + 4 * T, 76, False)
    if kw.get('mle'):
        a('v_mov_b32 v46, v56\ns_mov_b32 exec_lo, 0x000f000f\ns_mov_b32 exec_hi, 0x000f000f\ns_cmp_eq_u32 s47, 1')
    else:
        a('v_min_u32 v46, -2, v56\nv_mov_b32 v93, v41')
        a('s_mov_b32 exec_lo, 0x000f000f\ns_mov_b32 exec_hi, 0x000f000f\ns_cmp_eq_u32 s47, 1\nv_mov_b32 v92, v46')
    a('v_cvt_pk_bf16_f32 v42, v16, v17\nv_cvt_pk_bf16_f32 v43, v18, v19\nv_min_u32 v42, -2, v42\nv_cvt_pk_bf16_f32 v44, v20, v21\nv_cvt_pk_bf16_f32 v45, v22, v23')
    a('s_cbranch_scc0 L_orem')
    a('buffer_store_dwordx4 v[42:45], v88, s[40:43], s96 offen')
    if not kw.get('mle'): a('s_lshl_b64 exec, 1, s7\nbuffer_store_dwordx2 v[92:93], v89, s[40:43], s97 offen')
    a('L_ost:')
    a('s_mov_b64 exec, -1')
    s.stamp(9)
    if kw.get('ackst'):
        a('s_waitcnt vmcnt(0)')
        s.stamp(5)
    if 'D' in kw.get('kill', ''): a('s_branch L_end')
    if kw.get('od0'): a(f's_sleep {kw["od0"]}')
    OE = kw.get('oe')
    if OE is not None:
        if OE: s.wait_flag(C_G, len(order) - OE)
    elif kw.get('obar'): a('s_barrier')
    if kw.get('ind'):
        if not early:
            s.wait_flag(C_G, TH['o'][3])
            wo_reads()
            early = True
        a('s_mov_b32 exec_hi, 0')
        a('L_ipoll:')
        a('buffer_load_dword v48, v101, s[40:43], s15 offen offset:1036 sc1')
        s.budget()
        if kw.get('isl'):
            a(f's_waitcnt vmcnt(0)\nv_cmp_ne_u32 vcc, s44, v48\ns_cbranch_vccz L_idone\ns_sleep {kw["isl"]}\ns_branch L_ipoll\nL_idone:')
        else:
            a('s_waitcnt vmcnt(0)\nv_cmp_ne_u32 vcc, s44, v48\ns_cbranch_vccnz L_ipoll')
        a('s_mov_b32 exec_hi, -1')
        s.stamp(8)
    for x in ['buffer_load_dwordx2 v[48:49], v90, s[40:43], s99 offen sc1', 'buffer_load_dwordx4 v[50:53], v31, s[40:43], s98 offen sc1', 'buffer_load_dwordx4 v[58:61], v31, s[40:43], s98 offen offset:1024 sc1']: a(x)
    if OE == 1 and kw.get('wsplit'):
        wo_reads((0,))
        a('s_barrier')
        wo_reads((1,))
        a(f'ds_read_b32 v9, v8 offset:{F_K}')
    else:
        if OE is not None: a('s_barrier')
        a(f'ds_read_b32 v9, v8 offset:{F_K}')
        wo_reads()
    if s.stamps:
        if kw.get('ackst'):
            a('s_waitcnt vmcnt(0)')
            s.stamp(2)
        a('s_mov_b32 s61, 0')
    a('s_cmp_eq_u32 s47, 1\ns_cbranch_scc1 L_opoll\ns_branch L_rpoll')
    a('L_oretry:')
    a('s_mov_b64 exec, vcc')
    if s.stamps: a('s_add_u32 s61, s61, 1')
    if kw.get('osl'): a(f's_sleep {kw["osl"]}')
    for x in ['buffer_load_dwordx2 v[48:49], v90, s[40:43], s99 offen sc1', 'buffer_load_dwordx4 v[50:53], v31, s[40:43], s98 offen sc1', 'buffer_load_dwordx4 v[58:61], v31, s[40:43], s98 offen offset:1024 sc1']: a(x)
    a('s_mov_b64 exec, -1')
    s.budget()
    if kw.get('al'): a('.p2align 3')
    a('L_opoll:')
    a('s_waitcnt vmcnt(0) lgkmcnt(0)')
    a('v_max3_u32 v10, v48, v50, v58\nv_cmp_eq_u32 vcc, -1, v10\ns_cbranch_vccnz L_oretry')
    a('L_ogot:')
    s.stamp(11)
    if s.stamps: a('s_mul_i32 s61, s61, 100\ns_add_u32 s70, s64, s61')
    M8 = ('quad_perm:[1,0,3,2]', 'quad_perm:[2,3,0,1]', 'row_half_mirror')
    D = lambda op, d, x, y, m, rm='0xf': f'{op}_dpp {d}, {x}, {y} {m} row_mask:{rm} bank_mask:0xf'
    R = lambda m, rm: f'v_mov_b32_dpp v23, v21 {m} row_mask:{rm} bank_mask:0xf'
    wv = [D('v_max_f32', 'v20', 'v49', 'v49', M8[0]), None, D('v_max_f32', 'v20', 'v20', 'v20', M8[1]), None, D('v_max_f32', 'v20', 'v20', 'v20', M8[2]),
          'v_sub_f32 v21, v49, v20', 'v_exp_f32 v21, v21', None, 'v_mul_f32 v22, v48, v21', 'v_mov_b32 v23, v21', None,
          D('v_add_f32', 'v22', 'v22', 'v22', M8[0]), R('row_ror:12', '0x2'), None, D('v_add_f32', 'v22', 'v22', 'v22', M8[1]), R('row_ror:8', '0x4'), None,
          D('v_add_f32', 'v22', 'v22', 'v22', M8[2]), R('row_ror:4', '0x8'), 'v_rcp_f32 v22, v22', None]
    mf = [(32 + 4 * T, 50 + 8 * ks, WB + 16 * ks + 4 * T, ks == 0) for ks in range(2) for T in range(4)]
    s.mfma(*mf.pop(0))
    for x in wv:
        if x is None: s.mfma(*mf.pop(0))
        else: a(x)
    assert not mf
    a('v_mul_f32 v21, v22, v23')
    a(D('v_mul_f32', 'v21', 'v22', 'v23', 'row_ror:8', '0xc'))
    for T in range(4): a(D('v_mul_f32', f'v{16+T}', 'v21', f'v{32+4*T}', 'row_newbcast:0'))
    for r in range(1, 4):
        for T in range(4): a(D('v_fmac_f32', f'v{16+T}', 'v21', f'v{32+4*T+r}', f'row_newbcast:{r}'))
    a(f'ds_write_b128 v26, v[16:19] offset:{RED-PL}')
    if kw.get('nf'): a('v_xor_b32 v10, v9, v101\nv_xor_b32 v11, 0x2000, v10')
    a('v_add_u32 v117, v117, v9\ns_cmp_lg_u32 s7, 0')
    a('s_waitcnt lgkmcnt(0)\ns_barrier')
    s.stamp(12)
    a('s_cbranch_scc1 ' + ('L_wb' if kw.get('fw') else 'L_end'))
    for k in range(4): a(f'ds_read_b128 v[{48+4*k}:{51+4*k}], v100 offset:{(k>>1)*2048+(k&1)*256}')
    a('s_waitcnt lgkmcnt(2)')
    a('v_pk_add_f32 v[48:49], v[48:49], v[52:53]\nv_pk_add_f32 v[50:51], v[50:51], v[54:55]')
    a('s_waitcnt lgkmcnt(1)')
    a('v_pk_add_f32 v[48:49], v[48:49], v[56:57]\nv_pk_add_f32 v[50:51], v[50:51], v[58:59]')
    a('s_waitcnt lgkmcnt(0)')
    a('v_pk_add_f32 v[48:49], v[48:49], v[60:61]\nv_pk_add_f32 v[50:51], v[50:51], v[62:63]')
    s.pack24(120, 48, 49, 50, 51)
    if kw.get('nf'):
        a('buffer_store_dwordx4 v[120:123], v10, s[40:43], s56 offen sc1')
        if kw.get('nfs'): a(f's_sleep {kw["nfs"]}')
        a('buffer_store_dwordx4 v[120:123], v11, s[40:43], s56 offen sc1')
    else:
        a('buffer_store_dwordx4 v[120:123], v31, s[40:43], s56 offen sc1\nbuffer_store_dwordx4 v[120:123], v31, s[40:43], s63 offen sc1')
    s.stamp(13)
    fw = kw.get('fw', 0)
    if fw:
        a('s_branch L_end')
        a('L_wb:')
        a(f's_cmp_lg_u32 s7, {fw}\ns_cbranch_scc1 L_end')
        if kw.get('d0'): a(f's_sleep {kw["d0"]}')
    LA = 'buffer_load_dwordx4 v[16:19], v117, s[40:43], s60 offen sc1'
    LB_ = 'buffer_load_dwordx4 v[20:23], v117, s[40:43], s60 offen sc1'
    a('L_mpoll:')
    a('buffer_load_dwordx4 v[32:35], v119, s[40:43], s62 offen sc1')
    a(f'v_lshlrev_b32 v14, 3, v1\nv_add_u32 v14, {GX}, v14\nds_read_b64 v[12:13], v14')
    s.unpack24_consts()
    s.srd_const(48, 4096); s.srd(48, 36)
    a('s_mov_b32 s56, 0x00030003\ns_mov_b32 s57, s56')
    a('v_and_b32 v11, 1, v1\nv_lshlrev_b32 v14, 5, v2\nv_lshl_add_u32 v14, v11, 1, v14')
    a('s_lshl_b32 s11, s5, 10\ns_lshl_b32 s12, s3, 7\ns_add_u32 s11, s11, s12\ns_lshl2_add_u32 s11, s6, s11')
    if kw.get('d1'): a(f's_sleep {kw["d1"]}')
    a(LA)
    if kw.get('d2'): a(f's_sleep {kw["d2"]}')
    a(LB_)
    s.budget()
    a('s_waitcnt vmcnt(2)\nv_cmp_ne_u32 vcc, s44, v35\ns_cbranch_vccnz L_mpoll')
    s.stamp(10)
    s.unpack24(32)
    s.reduce32(32)
    a('s_waitcnt lgkmcnt(0)')
    s.round_bf16('v32')
    a('v_add_f32 v32, v32, v12')
    s.round_bf16('v32')
    a(f'v_mul_f32 v33, {hex(f2u(-math.log2(math.e)))}, v32\nv_exp_f32 v33, v33\nv_add_f32 v33, 1.0, v33\nv_rcp_f32 v33, v33\nv_mul_f32 v12, v32, v33')
    s.round_bf16('v12')
    a('L_fpoll:')
    a('s_waitcnt vmcnt(1)\nv_cmp_ne_u32 vcc, s44, v19\ns_cbranch_vccz L_fdone')
    if kw.get('d4'): a(f's_sleep {kw["d4"]}')
    a(LA)
    s.budget()
    a('s_waitcnt vmcnt(1)\nv_cmp_ne_u32 vcc, s44, v23\ns_cbranch_vccz L_fdoneB')
    if kw.get('d3'): a(f's_sleep {kw["d3"]}')
    a(LB_ + '\ns_branch L_fpoll')
    def finish(r):
        s.stamp(14)
        s.unpack24(r)
        s.reduce32(r)
        if kw.get('exactfin', 0):
            s.round_bf16(f'v{r}')
            a(f'v_mul_f32 v{r}, v{r}, v12')
            s.round_bf16(f'v{r}')
            a(f'v_add_f32 v{r}, v{r}, v13')
        else:
            a(f'v_fma_f32 v{r}, v{r}, v12, v13')
        a('s_mov_b64 exec, s[56:57]')
        a(f'v_cvt_pk_bf16_f32 v{r}, v{r}, v{r}')
        a(f'buffer_store_short v{r}, v14, s[48:51], s11 offen')
    a('L_fdoneB:')
    finish(20)
    a('s_branch L_epoch')
    a('L_fdone:')
    finish(16)
    a('L_epoch:')
    s.stamp(15)
    a('s_cmp_lg_u32 s2, 0\ns_cbranch_scc1 L_end')
    a('s_mov_b64 exec, 1\nbuffer_store_dword v123, v8, s[40:43], 0 offen')
    a('s_branch L_end')

    a('L_qrem:')
    a('s_mov_b32 exec_lo, 0x000f000f\ns_mov_b32 exec_hi, 0x000f000f')
    a('buffer_store_dwordx4 v[108:111], v106, s[40:43], s58 offen sc1\nbuffer_store_dwordx4 v[112:115], v107, s[40:43], s59 offen sc1')
    a('s_mov_b64 exec, -1')
    a('L_qrem2:')
    a(f'ds_read_b32 v9, v8 offset:{F_Q}')
    for t in range(4): a(f'ds_read_b128 v[{64+4*t}:{67+4*t}], v{102+t}')
    s.budget()
    a('s_waitcnt lgkmcnt(0)\nv_readfirstlane_b32 s47, v9\ns_cmp_eq_u32 s47, 4\ns_cbranch_scc0 L_qgo\ns_sleep 2\ns_branch L_qrem2')
    if kw.get('wb') is not None:
        a('L_wb:')
        a(f's_cmp_lg_u32 s7, 1\ns_cbranch_scc1 L_end\ns_and_b32 s10, s4, {kw["wb"]}\ns_cbranch_scc1 L_end')
        if kw.get('wbd'): a(f's_sleep {kw["wbd"]}')
        a('buffer_wbl2 sc1\ns_branch L_end')
    a('L_rpoll:')
    for k in range(4): a(f'buffer_load_dwordx4 v[{48+4*k}:{51+4*k}], v31, s[40:43], s15 offen offset:{k*1024} sc1')
    s.budget()
    a('s_waitcnt vmcnt(0) lgkmcnt(0)')
    a('v_xor_b32 v10, s44, v48\nv_bitop3_b32 v10, v55, s44, v10 bitop3:0xbe\nv_bitop3_b32 v10, v56, s44, v10 bitop3:0xbe\nv_bitop3_b32 v10, v63, s44, v10 bitop3:0xbe')
    a('v_cmp_ne_u32 vcc, 0, v10\ns_cbranch_vccnz L_rpoll')
    a('v_mov_b32 v48, v54\ns_branch L_ogot')
    a('L_orem:')
    a('buffer_store_dwordx4 v[40:43], v30, s[40:43], s14 offen sc1\nbuffer_store_dwordx4 v[44:47], v30, s[40:43], s14 offen offset:1024 sc1')
    a('s_branch L_ost')
    a('L_P:')
    if 'P' in kw.get('kill', ''): a('s_waitcnt lgkmcnt(0)\ns_branch L_end')
    a('s_setprio 3')
    a('s_getreg_b32 s45, hwreg(HW_REG_XCC_ID, 0, 4)')
    a('v_and_b32 v5, 3, v1')
    a(f's_lshl_b32 s10, s3, 15\ns_lshl_b32 s12, s4, 10\ns_add_u32 s12, s12, s10')
    a('s_waitcnt lgkmcnt(0)')
    if kw.get('warmq'):
        a(f'v_and_b32 v10, 7, v1\nv_lshlrev_b32 v10, 7, v10\nv_and_b32 v11, 8, v1\nv_lshl_add_u32 v10, v11, 15, v10\ns_add_u32 s11, s12, {WS_Q}')
        a(f's_mov_b64 exec, {0xff if kw["warmq"] == 1 else 0xffff}\nbuffer_load_dword v7, v10, s[40:43], s11 offen {kw.get("warmqfl", "")}\ns_mov_b64 exec, -1')
    a(f's_lshl_b32 s11, s5, 13\ns_add_u32 s10, s10, s11\ns_add_u32 s10, s10, {WS_Q}\ns_add_u32 s15, s10, 4096')
    a('v_lshlrev_b32 v10, 4, v1')
    a(f'v_lshrrev_b32 v11, 5, v1\nv_and_b32 v12, 31, v1\nv_lshlrev_b32 v13, 3, v12\nv_lshlrev_b32 v14, 4, v11\nv_xor_b32 v13, v13, v14\nv_lshl_add_u32 v13, v11, 8, v13\nv_add_u32 v22, {QL}, v13')
    for c in range(1, 8): a(f'v_xor_b32 v{22+c}, {c*32}, v22')
    a(f's_mov_b32 s14, {kw.get("nfast", 48)}')
    a('s_waitcnt lgkmcnt(0)')
    s.stamp(1)
    if 'W' in kw.get('kill', ''): a('s_branch L_end')
    if kw.get('qs'): a(f's_sleep {kw["qs"]}')
    if kw.get('qg'): s.wait_flag(C_G, kw['qg'], sleep=1)
    s.wait_flag(C_QP, 4, sleep=1, extra=[f'ds_read_b32 v15, v8 offset:{TAGW}'])
    a('s_waitcnt lgkmcnt(0)\nv_readfirstlane_b32 s44, v15')
    if q0: a(f's_sleep {q0}')
    s.stamp(2)
    a('L_qpoll:')
    for c in range(8): a(f'buffer_load_dwordx4 v[{32+4*c}:{35+4*c}], v10, s[40:43], s{10 if c < 4 else 15} offen offset:{(c&3)*1024} sc1 {kw.get("qnt", "")}')
    s.budget()
    a('s_waitcnt vmcnt(0)')
    a('v_xor_b32 v15, s44, v35')
    for c in range(1, 8): a(f'v_bitop3_b32 v15, v{35+4*c}, s44, v15 bitop3:0xbe')
    a('v_cmp_ne_u32 vcc, 0, v15\ns_cbranch_vccz L_qgot')
    a(f's_mov_b64 exec, vcc\ns_sub_u32 s14, s14, 1\ns_cbranch_scc0 L_qpoll')
    a(f'v_mov_b32 v15, 4\nds_write_b32 v8, v15 offset:{F_Q}\ns_branch L_qpoll')
    a('L_qgot:')
    a('s_mov_b64 exec, -1')
    a('v_xor_b32 v15, s45, v34')
    for c in range(8):
        a(f'ds_write_b64 v{22+c}, v[{32+4*c}:{33+4*c}] offset:{c*512}')
        if c < 7: a(f'v_bitop3_b32 v15, v{38+4*c}, s45, v15 bitop3:0xbe')
    a('v_and_b32 v15, 15, v15\nv_cmp_ne_u32 vcc, 0, v15\ns_cmp_eq_u64 vcc, 0\ns_cselect_b32 s47, 1, 2')
    if kw.get('force_remote'): a('s_mov_b32 s47, 2')
    a(f'v_mov_b32 v15, s47\nds_write_b32 v8, v15 offset:{F_Q}')
    s.stamp(3)
    a('v_add3_u32 v16, v34, v38, v42\nv_add3_u32 v17, v46, v50, v54\nv_add3_u32 v16, v16, v58, v62\nv_add_u32 v16, v16, v17')
    for m in ('quad_perm:[1,0,3,2] row_mask:0xf', 'quad_perm:[2,3,0,1] row_mask:0xf', 'row_half_mirror row_mask:0xf', 'row_mirror row_mask:0xf', 'row_bcast:15 row_mask:0xa', 'row_bcast:31 row_mask:0xc'):
        a(f'v_add_u32_dpp v16, v16, v16 {m} bank_mask:0xf')
    if kw.get('cntvote'):
        a('s_mov_b32 s11, 0')
        for c in range(8): a(f'v_cmp_gt_u32 vcc, 16, v{34+4*c}\ns_bcnt1_i32_b64 s10, vcc\ns_add_u32 s11, s11, s10')
        a('s_add_u32 s74, s64, s11')
    if kw.get('sgnvote'): a(f'v_readlane_b32 s10, v16, 63\ns_ashr_i32 s10, s10, 13\ns_add_u32 s10, s10, 400\ns_add_u32 s74, s64, s10')
    if kw.get('absvote'): a('v_readlane_b32 s10, v16, 63\ns_ashr_i32 s10, s10, 13\ns_abs_i32 s10, s10\ns_min_u32 s10, s10, 300\ns_sub_u32 s10, 300, s10\ns_add_u32 s74, s64, s10')
    if kw.get('recvote'): a('v_readlane_b32 s10, v16, 63\ns_ashr_i32 s10, s10, 13\ns_add_u32 s10, s10, 1000\ns_add_u32 s74, s64, s10')
    a('v_readlane_b32 s10, v16, 63\ns_cmp_lt_i32 s10, 0\ns_cselect_b32 s10, 0, 8192')
    if kw.get('kflip'): a('s_xor_b32 s10, s10, 8192')
    a(f'v_mov_b32 v15, s10\nds_write_b32 v8, v15 offset:{F_K}')
    a(f's_add_u32 s11, s12, {WS_D}\ns_lshl3_add_u32 s9, s3, s6\ns_lshl_b32 s9, s9, 7\ns_add_u32 s9, s9, {WS_L}')
    a(f's_lshl2_add_u32 s12, s3, s5\ns_lshl4_add_u32 s12, s12, s6\ns_lshl_b32 s12, s12, 10\ns_add_u32 s12, s12, s10\ns_add_u32 s12, s12, {WS_S - 2048}')
    a('v_lshlrev_b32 v10, 7, v1\nv_add_u32 v11, s12, v10\nv_add_u32 v10, s11, v10\nv_cmp_gt_u32 vcc, 16, v1\nv_cndmask_b32 v10, v11, v10, vcc')
    if kw.get('wg'): s.wait_flag(C_G, kw['wg'], sleep=2)
    if kw.get('nowarm') == 1: pass
    elif kw.get('nowarm') == 2: a('s_mov_b64 exec, 0xffffff\nbuffer_load_dword v7, v10, s[40:43], 0 offen nt')
    elif kw.get('nowarm') == 3: a('s_mov_b64 exec, 0xffff\nbuffer_load_dword v7, v10, s[40:43], 0 offen nt')
    elif kw.get('ont'):
        a('s_mov_b64 exec, 0xffff\nbuffer_load_dword v7, v10, s[40:43], 0 offen nt\ns_mov_b64 exec, 0xff0000\nbuffer_load_dword v7, v10, s[40:43], 0 offen')
    else:
        a('v_writelane_b32 v10, s9, 8\ns_mov_b64 exec, 0xff01ff\nbuffer_load_dword v7, v10, s[40:43], 0 offen')
    a('s_branch L_end')

    a('L_M:')
    if kw.get('mprio') is not None: a(f's_setprio {kw["mprio"]}\ns_branch L_M2')
    if 'M' in kw.get('kill', ''): a('s_waitcnt lgkmcnt(0)\ns_branch L_end')
    a('s_setprio 3')
    a('L_M2:')
    a('v_bfe_u32 v4, v1, 2, 2\nv_and_b32 v5, 3, v1')
    a('v_lshl_add_u32 v10, v4, 2, v2')
    a('v_lshlrev_b32 v11, 3, v10')
    a('v_lshlrev_b32 v10, 4, v1')
    s.mlp_slot(11, 15)
    a('s_lshl3_add_u32 s15, s5, s3\ns_lshl_b32 s11, s11, 6')
    a('v_and_b32 v24, 1, v1\nv_lshlrev_b32 v25, 5, v2\nv_lshl_add_u32 v25, v24, 1, v25')
    a('s_lshl_b32 s12, s3, 7\ns_lshl2_add_u32 s12, s6, s12\ns_lshl_b32 s13, s5, 10\ns_add_u32 s13, s13, s12')
    s.srd_const(56, 3584); s.srd_const(60, 1024); s.srd_const(96, 4096)
    a('s_waitcnt lgkmcnt(0)')
    s.srd(56, 30); s.srd(60, 34); s.srd(96, 16)
    if not kw.get('nosmall'):
        sf = kw.get('smallfl', '')
        a(f'buffer_load_ushort v16, v25, s[60:63], s12 offen {sf}')
        a('buffer_load_ushort v17, v25, s[96:99], s13 offen')
        a(f'buffer_load_dwordx2 v[14:15], v11, s[56:59], s11 offen {sf}')
    a(f'v_mul_u32_u24 v11, {HS}, v5\nv_lshl_add_u32 v11, v2, 4, v11\nv_lshrrev_b32 v12, 1, v4\nv_lshl_add_u32 v11, v12, 6, v11\nv_and_b32 v12, 1, v4\nv_lshl_add_u32 v11, v12, 3, v11\nv_add_u32 v11, {HL}, v11')
    a(f'v_mul_u32_u24 v12, {HS}, v4\nv_lshl_add_u32 v12, v2, 4, v12\nv_add_u32 v12, {HL}, v12')
    a(f'v_lshl_add_u32 v27, v2, 2, v4\nv_bfe_u32 v28, v27, 1, 2\nv_lshlrev_b32 v28, 5, v28\nv_lshl_add_u32 v28, v27, 7, v28\nv_lshl_add_u32 v28, v5, 3, v28\nv_add_u32 v28, {W2}, v28')
    a('v_xor_b32 v29, 32, v28\nv_xor_b32 v30, 64, v28\nv_xor_b32 v31, 96, v28')
    a(f'v_lshlrev_b32 v13, 3, v1\nv_add_u32 v13, {GX}, v13')
    a('s_waitcnt vmcnt(1) lgkmcnt(0)')
    a('v_lshlrev_b32 v16, 16, v16\nv_lshlrev_b32 v17, 16, v17\nds_write_b64 v13, v[16:17]')
    if kw.get('hs'): a(f's_sleep {kw["hs"]}')
    s.wait_flag(C_HP, 4, sleep=1, extra=[f'ds_read_b32 v23, v8 offset:{TAGW}'])
    a('s_waitcnt lgkmcnt(0)\nv_readfirstlane_b32 s44, v23')
    s.pack24_consts(); s.unpack24_consts()
    if kw.get('hq'): s.wait_flag(F_Q, 1, sleep=1)
    if kw.get('h0', 8): a(f's_sleep {kw.get("h0", 8)}')
    a(f's_lshl2_add_u32 s10, s3, s5\ns_lshl_b32 s10, s10, 13\ns_add_u32 s10, s10, {WS_H}\ns_add_u32 s11, s10, 4096')
    s.stamp(2)
    a('L_hpoll:')
    for c in range(8): a(f'buffer_load_dwordx4 v[{32+4*c}:{35+4*c}], v10, s[40:43], s{10 + (c>>2)} offen offset:{(c&3)*1024} sc1 {kw.get("qnt", "")}')
    s.budget()
    a('s_waitcnt vmcnt(0)')
    a('v_xor_b32 v13, s44, v35')
    for c in range(1, 8): a(f'v_bitop3_b32 v13, v{35+4*c}, s44, v13 bitop3:0xbe')
    a('v_cmp_ne_u32 vcc, 0, v13\ns_cbranch_vccnz L_hpoll')
    s.stamp(3)
    for c in range(8): s.unpack24(32 + 4 * c)
    for st in (16, 8, 4):
        for r in range(32, 32 + st, 2): a(f'v_pk_add_f32 v[{r}:{r+1}], v[{r}:{r+1}], v[{r+st}:{r+st+1}]')
    a('v_cvt_pk_bf16_f32 v36, v32, v33\nv_cvt_pk_bf16_f32 v37, v34, v35')
    for k in range(2):
        a(f'v_lshlrev_b32 v{32+2*k}, 16, v{36+k}\nv_and_b32 v{33+2*k}, 0xffff0000, v{36+k}\nv_lshlrev_b32 v{40+2*k}, 16, v{14+k}\nv_and_b32 v{41+2*k}, 0xffff0000, v{14+k}')
    for k in range(4): a(f'v_add_f32 v{32+k}, v{32+k}, v{40+k}')
    a('v_cvt_pk_bf16_f32 v36, v32, v33\nv_cvt_pk_bf16_f32 v37, v34, v35')
    for k in range(2): a(f'v_lshlrev_b32 v{32+2*k}, 16, v{36+k}\nv_and_b32 v{33+2*k}, 0xffff0000, v{36+k}')
    K1 = -2 * math.sqrt(2 / math.pi) * math.log2(math.e)
    a(f'v_mov_b32 v44, {hex(f2u(K1))}')
    for k in range(4): a(f'v_mul_f32 v{36+k}, v{32+k}, v{32+k}')
    for k in range(4): a(f'v_fmamk_f32 v{36+k}, v{36+k}, {hex(f2u(K1*0.044715))}, v44')
    for k in range(4): a(f'v_mul_f32 v{36+k}, v{36+k}, v{32+k}')
    for k in range(4): a(f'v_exp_f32 v{36+k}, v{36+k}')
    for k in range(4): a(f'v_add_f32 v{36+k}, 1.0, v{36+k}')
    for k in range(4): a(f'v_rcp_f32 v{36+k}, v{36+k}')
    for k in range(4): a(f'v_mul_f32 v{32+k}, v{32+k}, v{36+k}')
    a('v_cvt_pk_bf16_f32 v40, v32, v33\nv_cvt_pk_bf16_f32 v41, v34, v35')
    a('ds_write_b64 v11, v[40:41]\nds_read_b128 v[48:51], v12\nds_read_b128 v[52:55], v12 offset:64')
    a(f's_add_u32 s10, s6, {r2}\ns_and_b32 s10, s10, 7\ns_lshl_b32 s10, s10, 5\ns_add_u32 s10, s10, s15\ns_lshl_b32 s10, s10, 10\ns_add_u32 s10, s10, {WS_M}')
    a('v_lshlrev_b32 v10, 4, v1\nv_mov_b32 v23, s44')
    s.wait_flag(C_G, TH['2'][1], sleep=1)
    for ks in range(2):
        for T in range(4):
            for u in range(2):
                r = 64 + 16 * ks + 4 * T + 2 * u
                a(f'ds_read_b64_tr_b16 v[{r}:{r+1}], v{28+T} offset:{ks*4096+u*2048}')
    a('s_waitcnt lgkmcnt(0)')
    for ks in range(2):
        for T in range(4): s.mfma(32 + 4 * T, 48 + 4 * ks, 64 + 16 * ks + 4 * T, ks == 0)
    s.pack24(20, 32, 36, 40, 44)
    a('buffer_store_dwordx4 v[20:23], v10, s[40:43], s10 offen sc1')
    s.stamp(4)
    a('L_end:')
    if kw.get('probe'):
        pw, pst, pm, pb = kw['probe']
        a(f's_waitcnt lgkmcnt(0)\ns_cmp_lg_u32 s7, {pw}\ns_cbranch_scc1 L_exit')
        if pw >= 4: a('s_barrier\ns_barrier' if kw.get('obar') and pw != 6 else 's_barrier')
        if kw.get('clk') == 1: a('s_memtime s[92:93]\ns_waitcnt lgkmcnt(0)\ns_sub_u32 s10, s92, s90\ns_lshr_b32 s10, s10, 1\ns_add_u32 s94, s64, s10')
        if kw.get('clk') == 2: a('s_memrealtime s[92:93]\ns_waitcnt lgkmcnt(0)\ns_sub_u32 s10, s92, s88\ns_mul_i32 s10, s10, 10\ns_add_u32 s94, s64, s10')
        if kw.get('px') is not None: a(f's_cmp_lg_u32 s45, {kw["px"]}\ns_cbranch_scc1 L_exit')
        if kw.get('pm') is not None: a(f's_mul_i32 s10, s45, {kw["pm"]}\ns_add_u32 s94, s64, s10')
        if kw.get('pg') is not None: a(f's_cmp_lg_u32 s3, {kw["pg"]}\ns_cbranch_scc1 L_exit')
        a(f's_sub_u32 s10, s{64+2*pst}, s64\ns_mul_i32 s10, s10, {pm}\ns_add_u32 s10, s10, {pb}\ns_min_u32 s10, s10, 20000')
        if kw.get('padwb'): a('s_sleep 100\nbuffer_wbl2 sc1\ns_waitcnt vmcnt(0)')
        a('L_padloop:\ns_memrealtime s[12:13]\ns_waitcnt lgkmcnt(0)\ns_sub_u32 s11, s12, s64\ns_cmp_lt_u32 s11, s10\ns_cbranch_scc1 L_padloop')
    s.dump_stamps()
    a('L_exit:')
    a('s_endpgm')
    lines, added = hazard.fix(s.o, verbose=kw.get('verbose', False))
    return wrap('\n'.join(lines) + '\n', 256, NW * 64, kw.get('lds', LDS_TOTAL), kw.get('vgpr', 192))

if __name__ == '__main__':
    import ast
    out = sys.argv[1]
    kw = {}
    for x in sys.argv[2:]:
        k, v = x.split('=')
        try: kw[k] = ast.literal_eval(v)
        except Exception: kw[k] = v
    open(out, 'w').write(gen(**kw))
```
